```python
import torch

def _softmax(x, axis=-1):
    return torch.softmax(x, dim=axis)
def _gelu(x):
    return torch.nn.functional.gelu(x, approximate="tanh")
def _silu(x):
    return torch.nn.functional.silu(x)
def _sigmoid(x):
    return torch.sigmoid(x)
def _layernorm(x, axis=-1, eps=1e-5):
    m = x.mean(dim=axis, keepdim=True)
    v = x.var(dim=axis, keepdim=True, unbiased=False)
    return (x - m) / torch.sqrt(v + eps)
def _scatter_add(tgt, idx, src, axis=0):
    return tgt.clone().index_add_(axis, idx, src)
def _segment_sum(src, seg, n):
    out = torch.zeros((n,) + src.shape[1:], dtype=src.dtype)
    return out.index_add_(0, seg, src)
def _pad(x, pw):
    flat = tuple(v for pair in reversed(pw) for v in pair)
    return torch.nn.functional.pad(x, flat)

kernel_name = 'sequential_preLN__spectral_gfnet__glu_gated_swiglu__prompt'

def setup_inputs():

    _w = (lambda a: (lambda t: t.to(torch.bfloat16) if t.is_floating_point() else t)(torch.as_tensor(a)))
    def _A_setup():
        B, S, D = 1, 2048, 448
        Df = D // 2 + 1
        return {
            "x": _w((lambda *s: torch.randn(*s, dtype=torch.bfloat16) * 0.05)(B, S, D)),
            "w_r": _w((lambda *s: torch.randn(*s, dtype=torch.bfloat16) * 0.4)(S, Df) * 0.02),
            "w_i": _w((lambda *s: torch.randn(*s, dtype=torch.bfloat16) * 0.4)(S, Df) * 0.02),
        }
    _A_in = _A_setup()

    def _B_setup():
        B, S, D, F = 1, 2048, 448, 1792
        return {
            "x": _w((lambda *s: torch.randn(*s, dtype=torch.bfloat16) * 0.05)(B, S, D)),
            "w1": _w((lambda *s: torch.randn(*s, dtype=torch.bfloat16) * 0.2)(D, F) * (2.0 / D) ** 0.5),
            "w3": _w((lambda *s: torch.randn(*s, dtype=torch.bfloat16) * 0.2)(D, F) * (2.0 / D) ** 0.5),
            "w2": _w((lambda *s: torch.randn(*s, dtype=torch.bfloat16) * 0.2)(F, D) * (2.0 / F) ** 0.5),
        }
    _B_in = _B_setup()

    return {
        "A_x": _A_in["x"],
        "A_w_r": _A_in["w_r"],
        "A_w_i": _A_in["w_i"],
        "B_x": _B_in["x"],
        "B_w1": _B_in["w1"],
        "B_w3": _B_in["w3"],
        "B_w2": _B_in["w2"],
    }

def reference(A_x, A_w_r, A_w_i, B_x, B_w1, B_w3, B_w2):
    def _A_ref(x, w_r, w_i):
        B, S, D = x.shape
        X = (lambda x, axes=(-2,-1): torch.fft.rfft2(x.float(), dim=axes))(x, axes=(-2, -1))
        W = w_r + 1j * w_i
        X = X * W
        y = (lambda x, s, axes=(-2,-1): torch.fft.irfft2(x, s=s, dim=axes).to(torch.bfloat16))(X, (S, D), axes=(-2, -1))
        return y

    def _B_ref(x, w1, w3, w2):
        gate = torch.einsum("bsd,df->bsf", x, w1)
        up = torch.einsum("bsd,df->bsf", x, w3)
        h = _silu(gate) * up
        out = torch.einsum("bsf,fd->bsd", h, w2)
        return out

    x = A_x
    h = x + _A_ref(_layernorm(x, axis=-1), A_w_r, A_w_i)
    h2 = h + _B_ref(_layernorm(h, axis=-1), B_w1, B_w3, B_w2)
    return h2
```

```python
import re

REG_RE = re.compile(r'^(-|abs\()?([vas])(\d+|\[(\d+):(\d+)\])\)?$')

def parse_reg(tok):
    t = tok.strip()
    if t.startswith('-'): t = t[1:]
    if t.startswith('abs(') and t.endswith(')'): t = t[4:-1]
    if t.startswith('|') and t.endswith('|'): t = t[1:-1]
    if t == 'vcc': return ('s', 106, 107)
    if t == 'vcc_lo': return ('s', 106, 106)
    if t == 'vcc_hi': return ('s', 107, 107)
    if t == 'exec': return ('s', 126, 127)
    if t == 'm0': return ('s', 124, 124)
    m = re.match(r'^([vas])(\d+)$', t)
    if m: return (m.group(1), int(m.group(2)), int(m.group(2)))
    m = re.match(r'^([vas])\[(\d+):(\d+)\]$', t)
    if m: return (m.group(1), int(m.group(2)), int(m.group(3)))
    return None

def split_ops(s):
    s = s.split(';')[0].strip()
    parts = s.split(None, 1)
    op = parts[0]
    if len(parts) == 1: return op, [], ''
    rest = parts[1]
    toks = [t.strip() for t in rest.split(',')]
    last = toks[-1].split()
    mods = ' '.join(last[1:])
    toks[-1] = last[0] if last else ''
    return op, toks, mods

TRANS = ('v_exp_f32', 'v_log_f32', 'v_rcp_f32', 'v_rsq_f32', 'v_sqrt_f32', 'v_sin_f32', 'v_cos_f32', 'v_rcp_iflag_f32')

def overlap(a, b):
    return a and b and a[0] == b[0] and a[1] <= b[2] and b[1] <= a[2]

class I:
    __slots__ = ('text', 'op', 'kind', 'wr', 'rd', 'passes', 'srcc', 'dst', 'mods', 'trans', 'states', 'sgpr_rd_const', 'dpp')
    def __init__(self, text):
        self.text = text
        op, toks, mods = split_ops(text)
        base = re.sub(r'_(e32|e64|dpp|sdwa)$', '', op)
        self.op = base; self.mods = mods
        self.wr = []; self.rd = []; self.passes = 0; self.srcc = None; self.dst = None
        self.trans = base in TRANS
        self.states = 1
        self.dpp = op.endswith('_dpp') or 'row_' in mods or 'quad_perm' in mods
        regs = [parse_reg(t) for t in toks]
        if base == 's_nop':
            self.kind = 'nop'; self.states = int(toks[0], 0) + 1
        elif base.startswith('v_mfma'):
            self.kind = 'mfma'
            self.passes = 8 if '32x32' in base else 4
            self.dst = regs[0]; self.wr = [regs[0]]
            self.rd = [r for r in regs[1:4] if r]; self.srcc = regs[3]
        elif base.startswith('v_cmpx'):
            self.kind = 'valu'; self.wr = [regs[0], ('s', 126, 127)]; self.rd = [r for r in regs[1:] if r]
        elif base.startswith('v_'):
            self.kind = 'valu'
            if base in ('v_permlane32_swap_b32', 'v_permlane16_swap_b32'):
                self.wr = [regs[0], regs[1]]; self.rd = [regs[0], regs[1]]
            elif base in ('v_add_co_u32', 'v_sub_co_u32', 'v_addc_co_u32', 'v_subb_co_u32'):
                self.wr = [regs[0], regs[1]]; self.rd = [r for r in regs[2:] if r]
            else:
                self.wr = [regs[0]]; self.rd = [r for r in regs[1:] if r]
                if base.startswith('v_fmac') or base.startswith('v_dot2c') or base.startswith('v_pk_fmac') or base == 'v_writelane_b32' or 'op_sel' in mods:
                    self.rd.append(regs[0])
                if base.startswith('v_cndmask') and len(toks) == 3: self.rd.append(('s', 106, 107))
        elif base.startswith('ds_'):
            self.kind = 'ds'
            if base.startswith('ds_read') or base.startswith('ds_bpermute') or base.startswith('ds_permute') or base.startswith('ds_swizzle'):
                self.wr = [regs[0]]; self.rd = [r for r in regs[1:] if r]
            else:
                self.rd = [r for r in regs if r]
        elif base.startswith('buffer_') or base.startswith('global_'):
            self.kind = 'vmem'
            islds = ' lds' in (' ' + mods) or '_lds_' in base
            if base in ('buffer_wbl2', 'buffer_inv'):
                pass
            elif 'load' in base and not islds:
                self.wr = [regs[0]]; self.rd = [r for r in regs[1:] if r]
            elif 'atomic' in base and 'sc0' in mods:
                self.wr = [regs[0]]; self.rd = [r for r in regs if r]
            else:
                self.rd = [r for r in regs if r]
            if islds: self.rd.append(('s', 124, 124))
        elif base.startswith('s_'):
            self.kind = 'salu'
            if base.startswith('s_cmp') or base.startswith('s_cbranch') or base in ('s_branch', 's_barrier', 's_waitcnt', 's_endpgm', 's_sleep', 's_setprio', 's_setpc_b64'):
                self.rd = [r for r in regs if r]
            else:
                self.wr = [regs[0]] if regs and regs[0] else []
                self.rd = [r for r in regs[1:] if r]
                if 'saveexec' in base: self.wr.append(('s', 126, 127))
        else:
            raise ValueError('unknown instr ' + text)

def need(prev, cur):
    n = 0
    def ov(As, Bs): return any(overlap(a, b) for a in As for b in Bs)
    vfile = lambda rs: [r for r in rs if r[0] in 'va']
    sfile = lambda rs: [r for r in rs if r[0] == 's']
    if prev.kind == 'valu':
        pw = vfile(prev.wr); ps = sfile(prev.wr)
        if cur.kind == 'mfma' and ov(pw, cur.rd): n = max(n, 2)
        if cur.kind == 'valu':
            if prev.trans and not cur.trans and ov(pw, cur.rd): n = max(n, 1)
            if prev.trans and cur.trans and ov(pw, cur.rd): n = max(n, 1)
            if cur.op.startswith('v_permlane') and ov(pw, cur.rd): n = max(n, 2)
            if cur.op in ('v_readlane_b32', 'v_readfirstlane_b32') and ov(pw, cur.rd): n = max(n, 1)
            if cur.dpp and ov(pw, cur.rd): n = max(n, 2)
            if ps and ov(ps, sfile(cur.rd)): n = max(n, 4 if cur.op in ('v_readlane_b32', 'v_writelane_b32') else 2)
            if any(r[1] == 126 for r in ps):
                if cur.dpp: n = max(n, 5)
                if cur.op.startswith('v_permlane') or cur.op.startswith('v_read') : n = max(n, 4)
        if cur.kind == 'vmem' and ps and ov(ps, sfile(cur.rd)): n = max(n, 5)
        if cur.kind == 'salu' and ps and ov(ps, sfile(cur.rd)): n = max(n, 2)
        if cur.kind == 'mfma' and any(r[1] == 126 for r in ps): n = max(n, 4)
        if prev.trans and cur.kind in ('ds', 'vmem') and ov(pw, cur.rd): n = max(n, 1)
    if prev.kind == 'mfma':
        p = prev.passes
        full = {2: 5, 4: 8, 8: 12, 16: 20}[p]
        if cur.kind == 'mfma':
            ab = [r for r in cur.rd if r is not cur.srcc]
            if cur.srcc and overlap(prev.dst, cur.srcc):
                if not (cur.srcc == prev.dst and cur.passes == p):
                    n = max(n, {2: 4, 4: 6, 8: 10, 16: 18}[p])
            abr = cur.rd[:2]
            if ov([prev.dst], abr): n = max(n, full)
            if overlap(prev.dst, cur.dst) and not (cur.srcc == prev.dst and cur.passes == p):
                n = max(n, full)
        elif cur.kind in ('valu', 'ds', 'vmem'):
            if ov([prev.dst], cur.rd) or ov([prev.dst], cur.wr): n = max(n, full)
            if cur.kind == 'valu' and prev.srcc and ov([prev.srcc], cur.wr):
                n = max(n, {2: 1, 4: 3, 8: 7, 16: 15}[p])
    if prev.kind == 'vmem' and 'store' in prev.op and ('x4' in prev.op or 'x3' in prev.op):
        if cur.kind in ('valu',) and ov(vfile(prev.rd), cur.wr): n = max(n, 2)
        elif cur.kind in ('ds', 'vmem', 'mfma') and ov(vfile(prev.rd), cur.wr): n = max(n, 1)
    if prev.kind == 'ds' and 'write' in prev.op and ('b128' in prev.op or 'b96' in prev.op):
        if cur.kind == 'valu' and ov(vfile(prev.rd), cur.wr): n = max(n, 1)
    if prev.kind == 'salu' and any(r[1] == 124 for r in prev.wr):
        if cur.kind == 'vmem' and any(r[1] == 124 for r in cur.rd): n = max(n, 1)
    return n

class Emit:
    def __init__(self):
        self.out = []
        self.vm_issued = 0; self.vm_done = 0
        self.ds_issued = 0; self.ds_done = 0
    def __call__(self, s):
        self.out.append(s)
    def raw(self, s): self.out.append(s)
    def label(self, l): self.out.append(l + ':')
    def c(self, s): self.out.append('; ' + s)
    def vm(self, s):
        if self.vm_issued - self.vm_done >= 63:
            self.wait_vm(self.vm_issued - 62)
        self.out.append(s); self.vm_issued += 1
        return self.vm_issued
    def wait_vm(self, tok):
        if tok <= self.vm_done: return
        n = self.vm_issued - tok
        assert 0 <= n <= 63, n
        self.out.append(f's_waitcnt vmcnt({n})'); self.vm_done = tok
    def wait_vm_all(self):
        self.out.append('s_waitcnt vmcnt(0)'); self.vm_done = self.vm_issued
    def ds(self, s):
        if self.ds_issued - self.ds_done >= 15:
            self.wait_ds(self.ds_issued - 14)
        self.out.append(s); self.ds_issued += 1
        return self.ds_issued
    def wait_ds(self, tok):
        if tok <= self.ds_done: return
        n = self.ds_issued - tok
        assert 0 <= n <= 15, n
        self.out.append(f's_waitcnt lgkmcnt({n})'); self.ds_done = tok
    def wait_ds_all(self):
        self.out.append('s_waitcnt lgkmcnt(0)'); self.ds_done = self.ds_issued
    def barrier(self):
        self.out.append('s_barrier')

def hazard_pass(lines):
    res = []
    hist = []
    saved = {}
    MAXAGE = 24
    nins = 0
    for ln in lines:
        s = ln.split(';')[0].strip()
        if not s or s.startswith('.') and not s.endswith(':') or s.startswith('//'):
            res.append(ln); continue
        if s.endswith(':'):
            lab = s[:-1]
            if lab in saved:
                for h in saved[lab]:
                    d = {id(x[0]): x for x in hist}
                    for it, age in h:
                        if id(it) in d: d[id(it)][1] = min(d[id(it)][1], age)
                        else: hist.append([it, age])
            res.append(ln); continue
        cur = I(s)
        req = 0
        for it, age in hist:
            k = need(it, cur)
            if k > age: req = max(req, k - age)
        while req > 0:
            k = min(req, 16)
            res.append(f's_nop {k-1}'); nins += 1
            for x in hist: x[1] += k
            req -= k
        res.append(ln)
        for x in hist: x[1] += cur.states
        hist = [x for x in hist if x[1] < MAXAGE]
        if cur.kind in ('valu', 'mfma', 'vmem', 'ds', 'salu'):
            hist.append([cur, 0])
        if cur.op.startswith('s_cbranch') or cur.op == 's_branch':
            lab = s.split()[1]
            saved.setdefault(lab, []).append([[it, a] for it, a in hist])
            if cur.op == 's_branch': hist = []
        if cur.op == 's_endpgm': hist = []
    return res, nins
```

```python
import sys, struct
from asmlib import Emit, hazard_pass

NAME = "sequential_preLN__spectral_gfnet__glu_gated_swiglu__prompt"

T1_OFF  = 0x000000
T2_OFF  = 0x200000
HC_OFF  = 0x400000
HR_OFF  = 0x600000
ST1_OFF = 0x800000
ST2_OFF = 0x810000
W13_OFF = 0x900000
W2_OFF  = 0xD00000
HM_OFF  = 0x1000000
WS_SIZE = 0x1800000

def f2u(x): return struct.unpack('<I', struct.pack('<f', x))[0]
def lit(x): return '0x%08x' % f2u(x)
def vr(a, n=1): return f'v{a}' if n == 1 else f'v[{a}:{a+n-1}]'
def ar(a, n=1): return f'a{a}' if n == 1 else f'a[{a}:{a+n-1}]'
def sr(a, n=1): return f's{a}' if n == 1 else f's[{a}:{a+n-1}]'

def srd(e, d, ptr, size):
    e(f's_mov_b32 s{d}, s{ptr}')
    e(f's_and_b32 s{d+1}, s{ptr+1}, 0xffff')
    e(f's_mov_b32 s{d+2}, 0x{size:x}')
    e(f's_mov_b32 s{d+3}, 0x20000')

def lane_ids(e, vL=1, vN=2, vG=3, sW=18):
    e(f'v_lshrrev_b32 v4, 6, v0')
    e(f'v_and_b32 v{vL}, 63, v0')
    e(f'v_readfirstlane_b32 s{sW}, v4')
    e(f'v_and_b32 v{vN}, 15, v0')
    e(f'v_bfe_u32 v{vG}, v0, 4, 2')

def xsum_groups(e, v, tmp):
    e(f'v_mov_b32 v{tmp}, v{v}')
    e(f'v_permlane32_swap_b32 v{tmp}, v{v}')
    e(f'v_add_f32 v{v}, v{v}, v{tmp}')
    e(f'v_mov_b32 v{tmp}, v{v}')
    e(f'v_permlane16_swap_b32 v{tmp}, v{v}')
    e(f'v_add_f32 v{v}, v{v}, v{tmp}')

N_P1, N_P2 = 98, 56
def kernel_a():
    e = Emit()
    e.label('ka_kernel')
    e('s_cmp_ge_u32 s2, %d' % (256 + N_P1 + N_P2))
    e('s_cbranch_scc1 ka_end')
    e('s_load_dwordx2 s[4:5], s[0:1], 0')
    e('s_load_dwordx2 s[6:7], s[0:1], 72')
    e('s_load_dwordx4 s[24:27], s[0:1], 32')
    e('s_load_dwordx2 s[28:29], s[0:1], 48')
    lane_ids(e)
    e('s_cmp_ge_u32 s2, 256')
    e('s_cbranch_scc1 ka_prep')
    e('s_and_b32 s16, s2, 7')
    e('s_lshr_b32 s20, s2, 5')
    e('s_lshl_b32 s20, s20, 3')
    e('s_add_u32 s16, s16, s20')
    e('s_lshr_b32 s17, s2, 3')
    e('s_and_b32 s17, s17, 3')
    e('s_lshl_b32 s19, s17, 2')
    e('s_add_u32 s19, s19, s18')
    e('s_min_u32 s21, s19, 13')
    e('s_lshr_b32 s22, s18, 1')
    e('s_lshl_b32 s22, s22, 10')
    e('s_add_u32 s22, s22, s16')
    e('v_lshlrev_b32 v4, 6, v2')
    e('v_add_u32 v4, s22, v4')
    e('s_movk_i32 s23, 896')
    e('v_mul_lo_u32 v4, v4, s23')
    e('v_lshlrev_b32 v5, 4, v3')
    e('v_add_u32 v4, v4, v5')
    e('s_and_b32 s23, s18, 1')
    e('s_mul_i32 s23, s23, 448')
    e('v_add_u32 v4, s23, v4')
    e('s_waitcnt lgkmcnt(0)')
    srd(e, 8, 4, 1835008)
    srd(e, 12, 6, WS_SIZE)
    TA, FP, ACC, X = 16, 72, 96, 128
    xs_tok = []
    for i in range(7):
        xs_tok.append(e.vm(f'buffer_load_dwordx4 {vr(X+4*i,4)}, v4, s[8:11], 0 offen offset:{64*i}'))
    e.c('TA generation')
    e('s_cmp_lt_u32 s21, 7')
    e('s_cselect_b32 s22, 2, 1')
    e('s_cselect_b32 s30, 0, 7')
    e('s_sub_u32 s23, s21, s30')
    e('s_lshl_b32 s23, s23, 5')
    e('s_add_u32 s23, s23, s22')
    e('s_cmp_lt_u32 s21, 7')
    e(f's_cselect_b32 s31, {lit(1.0)}, {lit(-1.0)}')
    e('v_lshlrev_b32 v5, 1, v2')
    e('v_add_u32 v5, s23, v5')
    e('v_cvt_f32_u32 v5, v5')
    e(f'v_mul_f32 v5, {lit(1.0/448)}, v5')
    e('v_lshlrev_b32 v6, 3, v3')
    e('v_cvt_f32_u32 v6, v6')
    e('v_mul_f32 v6, v6, v5')
    TH, CO, SI = ACC, ACC + 8, ACC + 16
    for t in range(7):
        for j in range(8):
            cst = 32 * t + j
            if cst == 0: e(f'v_mov_b32 v{TH+j}, v6')
            else: e(f'v_fmamk_f32 v{TH+j}, v5, {lit(float(cst))}, v6')
        for j in range(8): e(f'v_cos_f32 v{CO+j}, v{TH+j}')
        for j in range(8): e(f'v_sin_f32_e64 v{SI+j}, -v{TH+j}')
        for i in range(4): e(f'v_cvt_pk_bf16_f32 v{TA+(t*2+0)*4+i}, v{CO+2*i}, v{CO+2*i+1}')
        for i in range(4): e(f'v_cvt_pk_bf16_f32 v{TA+(t*2+1)*4+i}, v{SI+2*i}, v{SI+2*i+1}')
    e.c("F' generation")
    e('s_mov_b32 s30, 0x80008000')
    e('v_cvt_f32_u32 v7, s16')
    e(f'v_mul_f32 v7, {lit(1.0/64)}, v7')
    e('v_lshlrev_b32 v8, 2, v3')
    e('v_cvt_f32_u32 v8, v8')
    e('v_add_f32 v8, v8, v7')
    for mt in range(2):
        e(f'v_add_u32 v9, {16*mt}, v2')
        e('v_cvt_f32_u32 v9, v9')
        e(f'v_mul_f32 v9, {lit(1.0/32)}, v9')
        e('v_mul_f32 v10, v9, v8')
        for j in range(8):
            cst = 16 * (j >> 2) + (j & 3)
            if cst == 0: e(f'v_mov_b32 v{TH+j}, v10')
            else: e(f'v_fmamk_f32 v{TH+j}, v9, {lit(float(cst))}, v10')
        for j in range(8): e(f'v_cos_f32 v{CO+j}, v{TH+j}')
        for j in range(8): e(f'v_sin_f32 v{SI+j}, v{TH+j}')
        for i in range(4): e(f'v_cvt_pk_bf16_f32 v{FP+mt*12+i}, v{CO+2*i}, v{CO+2*i+1}')
        for i in range(4): e(f'v_cvt_pk_bf16_f32 v{FP+mt*12+4+i}, v{SI+2*i}, v{SI+2*i+1}')
        for i in range(4): e(f'v_xor_b32 v{FP+mt*12+8+i}, s30, v{FP+mt*12+4+i}')
    e.c('stage x + stats')
    e('s_mul_i32 s22, s18, 7168')
    e('v_lshlrev_b32 v11, 4, v1')
    e('v_add_u32 v4, s22, v11')
    e('v_mov_b32 v5, 0')
    e('v_mov_b32 v6, 0')
    e('s_mov_b32 s30, 0x3f803f80')
    for i in range(7):
        e.wait_vm(xs_tok[i])
        e.ds(f'ds_write_b128 v4, {vr(X+4*i,4)} offset:{1024*i}')
        for d in range(4):
            e(f'v_dot2_f32_bf16 v5, v{X+4*i+d}, s30, v5')
            e(f'v_dot2_f32_bf16 v6, v{X+4*i+d}, v{X+4*i+d}, v6')
    xsum_groups(e, 5, 7)
    xsum_groups(e, 6, 8)
    e('s_lshl_b32 s22, s18, 7')
    e('v_lshlrev_b32 v7, 3, v2')
    e('v_add_u32 v7, s22, v7')
    e('v_mov_b32 v8, v5')
    e('v_mov_b32 v9, v6')
    e.ds('ds_write_b64 v7, v[8:9] offset:28672')
    e.wait_ds_all()
    e.barrier()
    e('v_and_b32 v4, 31, v1')
    e('v_lshrrev_b32 v5, 4, v4')
    e('v_lshlrev_b32 v5, 8, v5')
    e('v_lshlrev_b32 v6, 3, v2')
    e('v_add_u32 v5, v5, v6')
    t0 = e.ds('ds_read_b64 v[6:7], v5 offset:28672')
    t1 = e.ds('ds_read_b64 v[8:9], v5 offset:28800')
    xt = {}
    order = [(half, t, mt) for half in range(2) for t in range(7) for mt in range(2)]
    def xreg(mt, tt): return X + (mt * 14 + tt) * 4
    nread = 0
    def issue_x():
        nonlocal nread
        half, t, mt = order[nread]
        tt = t + 7 * half
        xt[(half, t, mt)] = e.ds(f'ds_read_b128 {vr(xreg(mt,tt),4)}, v11 offset:{(mt*14+tt)*1024}')
        nread += 1
    for _ in range(8): issue_x()
    e.wait_ds(t1)
    e('v_add_f32 v6, v6, v8')
    e('v_add_f32 v7, v7, v9')
    e(f'v_mul_f32 v6, {lit(1.0/448)}, v6')
    e(f'v_mul_f32 v7, {lit(1.0/448)}, v7')
    e('v_fma_f32 v7, -v6, v6, v7')
    e('v_max_f32 v7, 0, v7')
    e(f'v_add_f32 v7, {lit(1e-5)}, v7')
    e('v_rsq_f32 v7, v7')
    e('s_lshl_b32 s22, s18, 7')
    e('v_lshlrev_b32 v8, 2, v4')
    e('v_add_u32 v9, s22, v8')
    e.ds('ds_write_b32 v9, v7 offset:29184')
    e('s_or_b32 s22, s17, s18')
    e('s_cmp_lg_u32 s22, 0')
    e('s_cbranch_scc1 ka_nomean')
    e('s_lshl_b32 s22, s16, 7')
    e(f's_add_u32 s22, s22, 0x{ST1_OFF:x}')
    e('buffer_store_dword v6, v8, s[12:15], s22 offen')
    e.label('ka_nomean')
    e('s_lshl_b32 s22, s18, 7')
    e('v_lshlrev_b32 v9, 4, v3')
    e('v_add_u32 v9, s22, v9')
    RR = 240
    tr0 = e.ds(f'ds_read_b128 {vr(RR,4)}, v9 offset:29184')
    tr1 = e.ds(f'ds_read_b128 {vr(RR+4,4)}, v9 offset:29248')
    def acc(mt, c, half): return ACC + ((mt * 2 + c) * 2 + half) * 4
    for idx, (half, t, mt) in enumerate(order):
        if nread < len(order): issue_x()
        e.wait_ds(xt[(half, t, mt)])
        tt = t + 7 * half
        for c in range(2):
            a = acc(mt, c, half)
            src = '0' if t == 0 else vr(a, 4)
            e(f'v_mfma_f32_16x16x32_bf16 {vr(a,4)}, {vr(xreg(mt,tt),4)}, {vr(TA+(t*2+c)*4,4)}, {src}')
    e.wait_ds(tr1)
    BF = X
    TMP = X + 8
    for c in range(2):
        for mt in range(2):
            for r in range(4):
                e(f'v_fma_f32 v{TMP+mt*4+r}, v{acc(mt,c,1)+r}, s31, v{acc(mt,c,0)+r}')
            for r in range(4):
                e(f'v_mul_f32 v{TMP+mt*4+r}, v{TMP+mt*4+r}, v{RR+mt*4+r}')
        for mt in range(2):
            for i in range(2):
                e(f'v_cvt_pk_bf16_f32 v{BF+c*4+mt*2+i}, v{TMP+mt*4+2*i}, v{TMP+mt*4+2*i+1}')
    TT = X + 16
    for mt in range(2):
        C, Sp, Sn = FP + mt * 12, FP + mt * 12 + 4, FP + mt * 12 + 8
        e(f'v_mfma_f32_16x16x32_bf16 {vr(TT+mt*8,4)}, {vr(C,4)}, {vr(BF,4)}, 0')
        e(f'v_mfma_f32_16x16x32_bf16 {vr(TT+mt*8+4,4)}, {vr(Sn,4)}, {vr(BF,4)}, 0')
        e(f'v_mfma_f32_16x16x32_bf16 {vr(TT+mt*8,4)}, {vr(Sp,4)}, {vr(BF+4,4)}, {vr(TT+mt*8,4)}')
        e(f'v_mfma_f32_16x16x32_bf16 {vr(TT+mt*8+4,4)}, {vr(C,4)}, {vr(BF+4,4)}, {vr(TT+mt*8+4,4)}')
    e('s_cmp_ge_u32 s19, 14')
    e('s_cbranch_scc1 ka_end')
    e('s_mov_b32 s22, %d' % (4 * 57344))
    e('v_mul_lo_u32 v4, v3, s22')
    e('v_lshlrev_b32 v5, 2, v2')
    e('v_add_u32 v4, v4, v5')
    e('s_lshl_b32 s22, s19, 12')
    e('s_lshl_b32 s23, s16, 6')
    e('s_add_u32 s22, s22, s23')
    OUT = X + 40
    for mt in range(2):
        for r in range(4):
            e(f'v_cvt_pk_bf16_f32 v{OUT+mt*4+r}, v{TT+mt*8+r}, v{TT+mt*8+4+r}')
    for mt in range(2):
        for r in range(4):
            e(f's_add_u32 s23, s22, {T1_OFF + (16*mt+r)*57344}')
            e.vm(f'buffer_store_dword v{OUT+mt*4+r}, v4, s[12:15], s23 offen')
    e('s_endpgm')
    e.label('ka_prep')
    e('s_waitcnt lgkmcnt(0)')
    srd(e, 12, 6, WS_SIZE)
    e('s_sub_u32 s16, s2, 256')
    e(f's_cmp_ge_u32 s16, {N_P1}')
    e('s_cbranch_scc1 ka_prep2')
    e('s_mul_i32 s17, s16, 9363')
    e('s_lshr_b32 s17, s17, 16')
    e('s_mul_i32 s19, s17, 7')
    e('s_sub_u32 s19, s16, s19')
    srd(e, 8, 24, 448 * 3584)
    srd(e, 20, 26, 448 * 3584)
    e('v_lshrrev_b32 v4, 5, v0')
    e('v_and_b32 v5, 31, v0')
    e('s_lshl_b32 s30, s17, 4')
    e('v_add_u32 v6, s30, v4')
    e('s_movk_i32 s31, 3584')
    e('v_mul_lo_u32 v6, v6, s31')
    e('v_lshlrev_b32 v7, 4, v5')
    e('v_add_u32 v6, v6, v7')
    e('s_lshl_b32 s30, s19, 9')
    e('v_add_u32 v6, s30, v6')
    e('v_mul_u32_u24 v8, 544, v4')
    e('v_add_u32 v8, v8, v7')
    toks = []
    for i in range(8):
        mat, ii = i >> 2, i & 3
        drow = (ii & 1) * 8 + (ii >> 1) * 224
        e(f's_mov_b32 s30, {drow*3584}')
        toks.append(e.vm(f'buffer_load_dwordx4 {vr(16+4*i,4)}, v6, s[{8 if mat==0 else 20}:{11 if mat==0 else 23}], s30 offen'))
    for i in range(8):
        mat, ii = i >> 2, i & 3
        e.wait_vm(toks[i])
        e.ds(f'ds_write_b128 v8, {vr(16+4*i,4)} offset:{mat*17536 + ii*8*544}')
    e.wait_ds_all()
    e.barrier()
    e('v_and_b32 v4, 1, v3')
    e('v_mul_u32_u24 v4, 17536, v4')
    e('v_lshrrev_b32 v5, 1, v3')
    e('v_lshlrev_b32 v5, 2, v5')
    e('v_lshrrev_b32 v6, 2, v2')
    e('v_add_u32 v5, v5, v6')
    e('v_mul_u32_u24 v5, 544, v5')
    e('v_add_u32 v4, v4, v5')
    e('v_and_b32 v6, 3, v2')
    e('v_lshlrev_b32 v6, 3, v6')
    e('v_add_u32 v4, v4, v6')
    e('s_lshl_b32 s30, s18, 7')
    e('v_add_u32 v4, s30, v4')
    e('v_lshlrev_b32 v5, 4, v1')
    e('s_lshl_b32 s30, s19, 4')
    e('s_lshl_b32 s31, s18, 2')
    e('s_add_u32 s30, s30, s31')
    e('s_mul_i32 s30, s30, 28')
    e('s_lshl_b32 s31, s17, 1')
    e('s_add_u32 s30, s30, s31')
    e('s_lshl_b32 s30, s30, 10')
    e(f's_add_u32 s30, s30, 0x{W13_OFF:x}')
    k = 0
    for qq in range(4):
        for gg in range(2):
            R = 16 + 4 * k
            a = e.ds(f'ds_read_b64_tr_b16 {vr(R,2)}, v4 offset:{gg*8*544 + 32*qq}')
            b = e.ds(f'ds_read_b64_tr_b16 {vr(R+2,2)}, v4 offset:{gg*8*544 + 32*qq + 16*544}')
            k += 1
    e.wait_ds_all()
    k = 0
    for qq in range(4):
        for gg in range(2):
            e(f's_add_u32 s31, s30, {(qq*28+gg)*1024}')
            e.vm(f'buffer_store_dwordx4 {vr(16+4*k,4)}, v5, s[12:15], s31 offen')
            k += 1
    e('s_endpgm')
    e.label('ka_prep2')
    e.vm_issued = e.vm_done = 0; e.ds_issued = e.ds_done = 0
    e(f's_sub_u32 s16, s16, {N_P1}')
    srd(e, 8, 28, 1792 * 896)
    e('s_mul_i32 s17, s16, 28672')
    e('v_lshlrev_b32 v4, 4, v0')
    toks = []
    for i in range(7):
        e(f's_add_u32 s30, s17, {i*4096}')
        toks.append(e.vm(f'buffer_load_dwordx4 {vr(16+4*i,4)}, v4, s[8:11], s30 offen'))
    for i in range(7):
        e(f'v_add_u32 v5, {i*256}, v0')
        e('v_mul_u32_u24 v6, 18725, v5')
        e('v_lshrrev_b32 v6, 20, v6')
        e('v_lshlrev_b32 v6, 5, v6')
        e('v_lshlrev_b32 v5, 4, v5')
        e(f'v_add_u32 v{48+i}, v5, v6')
    for i in range(7):
        e.wait_vm(toks[i])
        e.ds(f'ds_write_b128 v{48+i}, {vr(16+4*i,4)}')
    e.wait_ds_all()
    e.barrier()
    e('s_and_b32 s19, s18, 1')
    e('s_lshr_b32 s20, s18, 1')
    e('s_mul_i32 s20, s20, 7')
    e('v_lshrrev_b32 v4, 1, v3')
    e('v_lshlrev_b32 v4, 2, v4')
    e('v_lshrrev_b32 v5, 2, v2')
    e('v_add_u32 v4, v4, v5')
    e('s_lshl_b32 s30, s19, 4')
    e('v_add_u32 v4, s30, v4')
    e('v_mul_u32_u24 v4, 928, v4')
    e('v_and_b32 v5, 1, v3')
    e('v_lshlrev_b32 v5, 4, v5')
    e('v_add_u32 v4, v4, v5')
    e('v_and_b32 v5, 1, v2')
    e('v_lshlrev_b32 v5, 3, v5')
    e('v_add_u32 v4, v4, v5')
    e('v_bfe_u32 v5, v2, 1, 1')
    e('v_mul_u32_u24 v5, 448, v5')
    e('v_add_u32 v4, v4, v5')
    e('s_lshl_b32 s30, s20, 5')
    e('v_add_u32 v4, s30, v4')
    e('v_lshlrev_b32 v5, 4, v1')
    for i in range(7):
        R = 16 + 4 * i
        e.ds(f'ds_read_b64_tr_b16 {vr(R,2)}, v4 offset:{32*i}')
        e.ds(f'ds_read_b64_tr_b16 {vr(R+2,2)}, v4 offset:{32*i + 8*928}')
    e.wait_ds_all()
    e('s_mul_i32 s30, s20, 112')
    e('s_lshl_b32 s31, s16, 1')
    e('s_add_u32 s30, s30, s31')
    e('s_add_u32 s30, s30, s19')
    e('s_lshl_b32 s30, s30, 10')
    e(f's_add_u32 s30, s30, 0x{W2_OFF:x}')
    for i in range(7):
        e(f's_add_u32 s31, s30, {i*112*1024}')
        e.vm(f'buffer_store_dwordx4 {vr(16+4*i,4)}, v5, s[12:15], s31 offen')
    e.label('ka_end')
    e('s_endpgm')
    return e.out, dict(vgpr=256, agpr=0, sgpr=48, lds=35072, grid=256 + N_P1 + N_P2, block=256)

assert all(((i * 9363) >> 16) == i // 7 for i in range(98)), "magic /7"
assert all(((i * 37) >> 8) == i // 7 for i in range(28)), "magic /7"
assert all(((p * 18725) >> 20) == p // 56 for p in range(1792)), "magic /56"

def kernel_b():
    e = Emit()
    e.label('kb_kernel')
    e('s_cmp_ge_u32 s2, 224')
    e('s_cbranch_scc1 kb_end')
    e('s_load_dwordx4 s[4:7], s[0:1], 8')
    e('s_load_dwordx2 s[24:25], s[0:1], 72')
    lane_ids(e)
    e('s_and_b32 s16, s2, 7')
    e('s_lshr_b32 s17, s2, 3')
    e('s_mul_i32 s19, s17, 37')
    e('s_lshr_b32 s19, s19, 8')
    e('s_mul_i32 s20, s19, 7')
    e('s_sub_u32 s20, s17, s20')
    e('s_lshl_b32 s19, s19, 3')
    e('s_add_u32 s16, s16, s19')
    e('s_lshl_b32 s20, s20, 1')
    e('s_add_u32 s17, s20, s18')
    e('s_mul_i32 s19, s16, 14')
    e('s_add_u32 s19, s19, s17')
    e('s_lshl_b32 s19, s19, 12')
    e(f's_add_u32 s19, s19, 0x{T1_OFF:x}')
    e('v_lshlrev_b32 v4, 8, v3')
    e('v_lshlrev_b32 v5, 2, v2')
    e('v_add_u32 v4, v4, v5')
    e('s_cmp_lt_u32 s17, 7')
    e('s_cselect_b32 s22, 2, 1')
    e('s_cselect_b32 s23, 0, 7')
    e('s_sub_u32 s23, s17, s23')
    e('s_lshl_b32 s23, s23, 5')
    e('s_add_u32 s23, s23, s22')
    e('v_lshlrev_b32 v6, 1, v2')
    e('v_add_u32 v6, s23, v6')
    e('v_lshlrev_b32 v6, 1, v6')
    e('v_lshlrev_b32 v7, 7, v3')
    e('v_add_u32 v7, s16, v7')
    e('s_movk_i32 s22, 450')
    e('v_mul_lo_u32 v7, v7, s22')
    e('v_add_u32 v6, v6, v7')
    e('s_waitcnt lgkmcnt(0)')
    srd(e, 8, 4, 2048 * 450)
    srd(e, 28, 6, 2048 * 450)
    srd(e, 12, 24, WS_SIZE)
    FC, FS, FN = 16, 48, 80
    TIN, WR, WI, BF = 112, 128, 144, 160
    XA = 176
    YF = 208
    tin = {}
    for t in range(2):
        for j in range(8):
            off = (32 * t + 16 * (j >> 2) + (j & 3)) * 64
            tin[(t, j)] = e.vm(f'buffer_load_dword v{TIN+t*8+j}, v4, s[12:15], s19 offen offset:{off}')
    wtok = {}
    for mt in range(4):
        for r in range(4):
            e(f's_mov_b32 s22, {(16*mt+r)*14400}')
            e.vm(f'buffer_load_short_d16_hi v{WR+mt*4+r}, v6, s[8:11], s22 offen')
            wtok[(mt, r)] = e.vm(f'buffer_load_short_d16_hi v{WI+mt*4+r}, v6, s[28:31], s22 offen')
    e.c('F64 generation')
    CO, SI = XA, XA + 16
    e('v_cvt_f32_u32 v8, v2')
    e(f'v_mul_f32 v8, {lit(1.0/64)}, v8')
    e('v_lshlrev_b32 v9, 2, v3')
    e('v_cvt_f32_u32 v9, v9')
    e('v_mul_f32 v9, v9, v8')
    TH = YF
    for t in range(2):
        for j in range(8):
            cst = 32 * t + 16 * (j >> 2) + (j & 3)
            if cst == 0: e(f'v_mov_b32 v{TH+j}, v9')
            else: e(f'v_fmamk_f32 v{TH+j}, v8, {lit(float(cst))}, v9')
        for j in range(8): e(f'v_cos_f32 v{CO+t*8+j}, v{TH+j}')
        for j in range(8): e(f'v_sin_f32 v{SI+t*8+j}, v{TH+j}')
    def rot(kind, t, j, mt):
        qt = (mt * (j & 3)) & 3
        c, s = f'v{CO+t*8+j}', f'v{SI+t*8+j}'
        if kind == 'C': return [c, '-' + s, '-' + c, s][qt]
        if kind == 'S': return [s, c, '-' + s, '-' + c][qt]
        if kind == 'N': return ['-' + s, '-' + c, s, c][qt]
    for kind, base in (('C', FC), ('S', FS), ('N', FN)):
        for mt in range(4):
            for t in range(2):
                for i in range(4):
                    e(f'v_cvt_pk_bf16_f32 v{base+(mt*2+t)*4+i}, {rot(kind,t,2*i,mt)}, {rot(kind,t,2*i+1,mt)}')
    e('s_mov_b32 s22, 0x05040100')
    e('s_mov_b32 s23, 0x07060302')
    for t in range(2):
        e.wait_vm(tin[(t, 7)])
        for i in range(4):
            e(f'v_perm_b32 v{BF+t*4+i}, v{TIN+t*8+2*i+1}, v{TIN+t*8+2*i}, s22')
            e(f'v_perm_b32 v{BF+8+t*4+i}, v{TIN+t*8+2*i+1}, v{TIN+t*8+2*i}, s23')
    def fr(base, mt, t): return vr(base + (mt * 2 + t) * 4, 4)
    def mm(d, a, b, first): e(f'v_mfma_f32_16x16x32_bf16 {vr(d,4)}, {a}, {vr(b,4)}, {"0" if first else vr(d,4)}')
    BRE = lambda t: BF + t * 4
    BIM = lambda t: BF + 8 + t * 4
    for mt in range(4):
        xr, xi = XA + mt * 8, XA + mt * 8 + 4
        mm(xr, fr(FC, mt, 0), BRE(0), True);  mm(xi, fr(FN, mt, 0), BRE(0), True)
        mm(xr, fr(FC, mt, 1), BRE(1), False); mm(xi, fr(FN, mt, 1), BRE(1), False)
        mm(xr, fr(FS, mt, 0), BIM(0), False); mm(xi, fr(FC, mt, 0), BIM(0), False)
        mm(xr, fr(FS, mt, 1), BIM(1), False); mm(xi, fr(FC, mt, 1), BIM(1), False)
    YR, YI = TIN, 224
    for mt in range(4):
        e.wait_vm(wtok[(mt, 3)])
        for r in range(4):
            xr, xi = XA + mt * 8 + r, XA + mt * 8 + 4 + r
            wr, wi = WR + mt * 4 + r, WI + mt * 4 + r
            e(f'v_mul_f32 v{YR+mt*4+r}, v{xr}, v{wr}')
            e(f'v_mul_f32 v{YI+mt*4+r}, v{xr}, v{wi}')
            e(f'v_fma_f32 v{YR+mt*4+r}, -v{xi}, v{wi}, v{YR+mt*4+r}')
            e(f'v_fma_f32 v{YI+mt*4+r}, v{xi}, v{wr}, v{YI+mt*4+r}')
    for c, src in ((0, YR), (1, YI)):
        for t in range(2):
            for i in range(4):
                mt = 2 * t + (i >> 1)
                e(f'v_cvt_pk_bf16_f32 v{YF+c*8+t*4+i}, v{src+mt*4+2*(i&1)}, v{src+mt*4+2*(i&1)+1}')
    YRE = lambda t: YF + t * 4
    YIM = lambda t: YF + 8 + t * 4
    for mt in range(4):
        xr, xi = XA + mt * 8, XA + mt * 8 + 4
        mm(xr, fr(FC, mt, 0), YRE(0), True);  mm(xi, fr(FS, mt, 0), YRE(0), True)
        mm(xr, fr(FC, mt, 1), YRE(1), False); mm(xi, fr(FS, mt, 1), YRE(1), False)
        mm(xr, fr(FN, mt, 0), YIM(0), False); mm(xi, fr(FC, mt, 0), YIM(0), False)
        mm(xr, fr(FN, mt, 1), YIM(1), False); mm(xi, fr(FC, mt, 1), YIM(1), False)
    e('s_mov_b32 s22, %d' % (4 * 28672))
    e('v_mul_lo_u32 v4, v3, s22')
    e('v_lshlrev_b32 v5, 2, v2')
    e('v_add_u32 v4, v4, v5')
    e('s_lshl_b32 s22, s17, 11')
    e('s_lshl_b32 s23, s16, 6')
    e('s_add_u32 s22, s22, s23')
    for mt in range(4):
        for r in range(4):
            e(f'v_cvt_pk_bf16_f32 v{TIN+mt*4+r}, v{XA+mt*8+r}, v{XA+mt*8+4+r}')
        for r in range(4):
            e(f's_add_u32 s23, s22, {T2_OFF + (16*mt+r)*28672}')
            e.vm(f'buffer_store_dword v{TIN+mt*4+r}, v4, s[12:15], s23 offen')
    e.label('kb_end')
    e('s_endpgm')
    return e.out, dict(vgpr=256, agpr=0, sgpr=48, lds=0, grid=224, block=128)

def kernel_c():
    e = Emit()
    e.label('kc_kernel')
    e('s_cmp_ge_u32 s2, 256')
    e('s_cbranch_scc1 kc_end')
    e('s_load_dwordx2 s[4:5], s[0:1], 0')
    e('s_load_dwordx2 s[6:7], s[0:1], 72')
    lane_ids(e)
    e('s_and_b32 s16, s2, 7')
    e('s_lshr_b32 s20, s2, 5')
    e('s_lshl_b32 s20, s20, 3')
    e('s_add_u32 s16, s16, s20')
    e('s_lshr_b32 s17, s2, 3')
    e('s_and_b32 s17, s17, 3')
    e('s_lshl_b32 s19, s17, 2')
    e('s_add_u32 s19, s19, s18')
    e('s_min_u32 s21, s19, 13')
    e('v_lshlrev_b32 v4, 2, v1')
    e('s_waitcnt lgkmcnt(0)')
    srd(e, 8, 4, 1835008)
    srd(e, 12, 6, WS_SIZE)
    G, TC, AIN, VA, PA, XR = 16, 48, 104, 136, 152, 168
    atok = {}
    for i in range(4):
        e(f's_add_u32 s22, s18, {4*i}')
        e('s_min_u32 s22, s22, 13')
        e('s_mul_i32 s23, s16, 14')
        e('s_add_u32 s22, s22, s23')
        e('s_lshl_b32 s22, s22, 11')
        e(f's_add_u32 s22, s22, 0x{T2_OFF:x}')
        for t in range(2):
            for ii in range(4):
                atok[(i, t, ii)] = e.vm(f'buffer_load_dword v{AIN+i*8+t*4+ii}, v4, s[12:15], s22 offen offset:{(16*t+4*ii)*64}')
    e('v_lshlrev_b32 v5, 6, v2')
    e('v_add_u32 v5, s16, v5')
    e('s_movk_i32 s22, 896')
    e('v_mul_lo_u32 v5, v5, s22')
    e('v_lshlrev_b32 v6, 3, v3')
    e('v_add_u32 v5, v5, v6')
    e('s_lshl_b32 s22, s21, 5')
    e('v_add_u32 v5, s22, v5')
    xtok = {}
    for nt in range(2):
        for pm in range(2):
            e(f's_mov_b32 s22, {nt*16*64*896}')
            xtok[(nt, pm)] = e.vm(f'buffer_load_dwordx2 {vr(XR+(nt*2+pm)*2,2)}, v5, s[8:11], s22 offen offset:{448*pm}')
    MEAN = XR + 8
    e('v_lshlrev_b32 v6, 2, v2')
    e('s_lshl_b32 s22, s16, 7')
    e(f's_add_u32 s22, s22, 0x{ST1_OFF:x}')
    mtok = [e.vm(f'buffer_load_dword v{MEAN+nt}, v6, s[12:15], s22 offen offset:{64*nt}') for nt in range(2)]
    e.c('G generation')
    TH, CO, SI = 180, 188, 196
    cscale = 2.0 / (2048.0 * 448.0)
    e('v_cvt_f32_u32 v7, v3')
    for nt in range(2):
        e(f'v_add_u32 v8, {16*nt}, v2')
        e('v_lshlrev_b32 v8, 6, v8')
        e('v_add_u32 v8, s16, v8')
        e('v_cvt_f32_u32 v8, v8')
        e(f'v_mul_f32 v8, {lit(1.0/2048)}, v8')
        e('v_mul_f32 v9, v7, v8')
        for t in range(2):
            for ii in range(4):
                cst = 16 * t + 4 * ii
                if cst == 0: e(f'v_mov_b32 v{TH+t*4+ii}, v9')
                else: e(f'v_fmamk_f32 v{TH+t*4+ii}, v8, {lit(float(cst))}, v9')
        for j in range(8): e(f'v_cos_f32 v{CO+j}, v{TH+j}')
        for j in range(8): e(f'v_sin_f32 v{SI+j}, v{TH+j}')
        for j in range(8): e(f'v_mul_f32 v{CO+j}, {lit(cscale)}, v{CO+j}')
        for j in range(8): e(f'v_mul_f32 v{SI+j}, {lit(cscale)}, v{SI+j}')
        for t in range(2):
            for ii in range(4):
                j = t * 4 + ii
                e(f'v_cvt_pk_bf16_f32 v{G+((0*2+t)*2+nt)*4+ii}, v{CO+j}, -v{SI+j}')
                e(f'v_cvt_pk_bf16_f32 v{G+((1*2+t)*2+nt)*4+ii}, v{SI+j}, v{CO+j}')
    e.c('TC generation')
    e('s_lshl_b32 s22, s21, 4')
    e('v_add_u32 v8, s22, v2')
    e('v_cvt_f32_u32 v8, v8')
    e(f'v_mul_f32 v8, {lit(1.0/448)}, v8')
    e('v_lshlrev_b32 v9, 3, v3')
    e('v_cvt_f32_u32 v9, v9')
    e('v_mul_f32 v9, v9, v8')
    e('v_cmp_eq_u32 vcc, 3, v3')
    e('v_mov_b32 v10, 1.0')
    e('v_cndmask_b32 v10, v10, 0.5, vcc') if False else None
    e('v_mov_b32 v11, 0.5')
    e('v_cndmask_b32 v10, v10, v11, vcc')
    for kp in range(7):
        for h, kb in enumerate((kp, kp + 7)):
            for j in range(4):
                cst = 32 * kp + 2 * j + (2 if h == 0 else 1)
                e(f'v_fmamk_f32 v{TH+h*4+j}, v8, {lit(float(cst))}, v9')
        for j in range(8): e(f'v_cos_f32 v{CO+j}, v{TH+j}')
        for j in range(8): e(f'v_sin_f32_e64 v{SI+j}, -v{TH+j}')
        if kp == 6:
            e(f'v_mul_f32 v{CO+3}, v{CO+3}, v10')
            e(f'v_mul_f32 v{SI+3}, v{SI+3}, v10')
        for h, kb in enumerate((kp, kp + 7)):
            e(f'v_cvt_pk_bf16_f32 v{TC+kb*4+0}, v{CO+h*4+0}, v{CO+h*4+1}')
            e(f'v_cvt_pk_bf16_f32 v{TC+kb*4+1}, v{CO+h*4+2}, v{CO+h*4+3}')
            e(f'v_cvt_pk_bf16_f32 v{TC+kb*4+2}, v{SI+h*4+0}, v{SI+h*4+1}')
            e(f'v_cvt_pk_bf16_f32 v{TC+kb*4+3}, v{SI+h*4+2}, v{SI+h*4+3}')
    e.c('inverse stage 1')
    e('v_lshlrev_b32 v11, 4, v1')
    e('s_lshl_b32 s22, s18, 11')
    e('v_add_u32 v12, s22, v11')
    PK = 204
    for i in range(4):
        e.wait_vm(atok[(i, 1, 3)])
        for nt in range(2):
            for out in range(2):
                d = VA + (out * 2 + nt) * 4
                e(f'v_mfma_f32_16x16x32_bf16 {vr(d,4)}, {vr(AIN+i*8,4)}, {vr(G+((out*2+0)*2+nt)*4,4)}, 0')
        for nt in range(2):
            for out in range(2):
                d = VA + (out * 2 + nt) * 4
                e(f'v_mfma_f32_16x16x32_bf16 {vr(d,4)}, {vr(AIN+i*8+4,4)}, {vr(G+((out*2+1)*2+nt)*4,4)}, {vr(d,4)}')
        if i == 3:
            e('s_cmp_ge_u32 s18, 2')
            e('s_cbranch_scc1 kc_skip3')
        for nt in range(2):
            p = PK + nt * 4 + (i & 1) * 8
            vre, vim = VA + (0 * 2 + nt) * 4, VA + (1 * 2 + nt) * 4
            e(f'v_cvt_pk_bf16_f32 v{p+0}, v{vre+0}, v{vre+1}')
            e(f'v_cvt_pk_bf16_f32 v{p+1}, v{vre+2}, v{vre+3}')
            e(f'v_cvt_pk_bf16_f32 v{p+2}, v{vim+0}, v{vim+1}')
            e(f'v_cvt_pk_bf16_f32 v{p+3}, v{vim+2}, v{vim+3}')
            e.ds(f'ds_write_b128 v12, {vr(p,4)} offset:{(4*i*2+nt)*1024}')
        if i == 3: e.label('kc_skip3')
    e.wait_ds_all()
    e.barrier()
    e.c('inverse row DFT')
    VB = 220
    order = [(kb, nt) for kb in range(14) for nt in range(2)]
    tok = {}
    nread = 0
    def issue():
        nonlocal nread
        kb, nt = order[nread]
        tok[nread] = e.ds(f'ds_read_b128 {vr(VB+(nread%8)*4,4)}, v11 offset:{(kb*2+nt)*1024}')
        nread += 1
    for _ in range(7): issue()
    for idx, (kb, nt) in enumerate(order):
        e.wait_ds(tok[idx])
        par = 0 if kb < 7 else 1
        d = PA + (par * 2 + nt) * 4
        first = kb in (0, 7)
        e(f'v_mfma_f32_16x16x32_bf16 {vr(d,4)}, {vr(TC+kb*4,4)}, {vr(VB+(idx%8)*4,4)}, {"0" if first else vr(d,4)}')
        if nread < len(order): issue()
    e.c('epilogue')
    e.wait_vm(mtok[1])
    H = 104
    HP, CP = 120, 128
    SQ = 180
    e('s_mov_b32 s22, 0xffff0000')
    for nt in range(2):
        pe, po = PA + nt * 4, PA + 8 + nt * 4
        for pm in range(2):
            xr = XR + (nt * 2 + pm) * 2
            for r in range(4):
                hv = H + (nt * 2 + pm) * 4 + r
                if pm == 0: e(f'v_add_f32 v{hv}, v{pe+r}, v{po+r}')
                else: e(f'v_sub_f32 v{hv}, v{pe+r}, v{po+r}')
                xv = 184 + r
                if r & 1: e(f'v_and_b32 v{xv}, s22, v{xr+(r>>1)}')
                else: e(f'v_lshlrev_b32 v{xv}, 16, v{xr+(r>>1)}')
            for r in range(4):
                hv = H + (nt * 2 + pm) * 4 + r
                e(f'v_add_f32 v{hv}, v{hv}, v{184+r}')
            for i in range(2):
                hv = H + (nt * 2 + pm) * 4 + 2 * i
                e(f'v_cvt_pk_bf16_f32 v{HP+nt*4+pm*2+i}, v{hv}, v{hv+1}')
        e(f'v_mov_b32 v{SQ+nt}, 0')
        for q in range(4):
            hp = HP + nt * 4 + q
            e(f'v_lshlrev_b32 v188, 16, v{hp}')
            e(f'v_and_b32 v189, s22, v{hp}')
            e(f'v_sub_f32 v188, v188, v{MEAN+nt}')
            e(f'v_sub_f32 v189, v189, v{MEAN+nt}')
            e(f'v_fma_f32 v{SQ+nt}, v188, v188, v{SQ+nt}')
            e(f'v_fma_f32 v{SQ+nt}, v189, v189, v{SQ+nt}')
            e(f'v_cvt_pk_bf16_f32 v{CP+nt*4+q}, v188, v189')
    e('v_lshrrev_b32 v4, 1, v3')
    e('v_lshlrev_b32 v4, 10, v4')
    e('v_and_b32 v5, 1, v3')
    e('v_lshlrev_b32 v5, 9, v5')
    e('v_add_u32 v4, v4, v5')
    e('v_lshlrev_b32 v5, 4, v2')
    e('v_add_u32 v4, v4, v5')
    e('s_mul_i32 s22, s16, 28')
    e('s_lshl_b32 s23, s21, 1')
    e('s_add_u32 s22, s22, s23')
    e('s_lshl_b32 s22, s22, 10')
    for nt in range(2): xsum_groups(e, SQ + nt, 190)
    e('s_cmp_ge_u32 s19, 14')
    e('s_cbranch_scc1 kc_nostore')
    e(f's_add_u32 s23, s22, 0x{HC_OFF:x}')
    e(f's_add_u32 s24, s22, 0x{HR_OFF:x}')
    for nt in range(2):
        e(f'buffer_store_dwordx4 {vr(CP+nt*4,4)}, v4, s[12:15], s23 offen offset:{256*nt}')
        e(f'buffer_store_dwordx4 {vr(HP+nt*4,4)}, v4, s[12:15], s24 offen offset:{256*nt}')
    e('s_branch kc_stat')
    e.label('kc_nostore')
    e(f'v_mov_b32 v{SQ}, 0')
    e(f'v_mov_b32 v{SQ+1}, 0')
    e.label('kc_stat')
    e('s_lshl_b32 s22, s18, 7')
    e('v_lshlrev_b32 v5, 2, v2')
    e('v_add_u32 v5, s22, v5')
    e.ds(f'ds_write_b32 v5, v{SQ} offset:28672')
    e.ds(f'ds_write_b32 v5, v{SQ+1} offset:28736')
    e.wait_ds_all()
    e.barrier()
    e('s_cmp_lg_u32 s18, 0')
    e('s_cbranch_scc1 kc_end')
    e('v_and_b32 v5, 31, v1')
    e('v_lshlrev_b32 v5, 2, v5')
    for w in range(4): e.ds(f'ds_read_b32 v{6+w}, v5 offset:{28672+128*w}')
    e.wait_ds_all()
    e('v_add_f32 v6, v6, v7')
    e('v_add_f32 v8, v8, v9')
    e('v_add_f32 v6, v6, v8')
    e('s_lshl_b32 s22, s17, 6')
    e('s_add_u32 s22, s22, s16')
    e('s_lshl_b32 s22, s22, 7')
    e(f's_add_u32 s22, s22, 0x{ST2_OFF:x}')
    e('buffer_store_dword v6, v5, s[12:15], s22 offen')
    e.label('kc_end')
    e('s_endpgm')
    out = [x for x in e.out if x is not None]
    return out, dict(vgpr=256, agpr=0, sgpr=48, lds=29696, grid=256, block=256)

def kernel_g1():
    e = Emit()
    e.label('kg1_kernel')
    e('s_cmp_ge_u32 s2, 224')
    e('s_cbranch_scc1 kg1_end')
    e('s_load_dwordx2 s[6:7], s[0:1], 72')
    lane_ids(e)
    e('s_and_b32 s16, s2, 3')
    e('s_lshl_b32 s16, s16, 2')
    e('s_lshr_b32 s20, s2, 3')
    e('s_and_b32 s21, s20, 3')
    e('s_add_u32 s16, s16, s21')
    e('s_bfe_u32 s17, s2, 0x10002')
    e('s_mul_i32 s17, s17, 7')
    e('s_lshr_b32 s20, s20, 2')
    e('s_add_u32 s17, s17, s20')
    e('v_lshlrev_b32 v4, 4, v1')
    e('s_waitcnt lgkmcnt(0)')
    srd(e, 12, 6, WS_SIZE)
    e('s_lshl_b32 s20, s17, 3')
    e('s_lshl_b32 s21, s18, 1')
    e('s_add_u32 s20, s20, s21')
    e('s_mul_i32 s21, s20, 28672')
    e(f's_add_u32 s21, s21, 0x{W13_OFF:x}')
    e('s_add_u32 s22, s21, 28672')
    e('s_lshl_b32 s23, s16, 2')
    e('s_add_u32 s23, s23, s18')
    e('s_mul_i32 s24, s23, 28672')
    e(f's_add_u32 s24, s24, 0x{HC_OFF:x}')
    e('s_mul_i32 s25, s18, 28672')
    e('v_and_b32 v5, 31, v1')
    e('v_lshlrev_b32 v5, 2, v5')
    ACC, BR, ST = 64, 16, 192
    stok = []
    e('s_lshl_b32 s26, s16, 9')
    for nt in range(4):
        for dg in range(4):
            e(f's_add_u32 s27, s26, {ST2_OFF + dg*64*128 + nt*128}')
            stok.append(e.vm(f'buffer_load_dword v{ST+nt*4+dg}, v5, s[12:15], s27 offen'))
    tok = {}
    for kap in range(28):
        if kap % 4 == 0:
            e(f's_add_u32 m0, s25, {kap*1024}')
            e(f's_add_u32 s27, s24, {kap*1024}')
            e(f's_add_u32 s28, s21, {kap*1024}')
            e(f's_add_u32 s29, s22, {kap*1024}')
        o = (kap % 4) * 1024
        e.vm(f'buffer_load_dwordx4 v4, s[12:15], s27 offen offset:{o} lds')
        e.vm(f'buffer_load_dwordx4 {ar((0*28+kap)*4,4)}, v4, s[12:15], s28 offen offset:{o}')
        tok[kap] = e.vm(f'buffer_load_dwordx4 {ar((1*28+kap)*4,4)}, v4, s[12:15], s29 offen offset:{o}')
    print('; vm issued', e.vm_issued, file=sys.stderr)
    RR = 208
    e('v_add_u32 v6, 57344, v4')
    first_chunk = True
    btok = {}
    for ch in range(4):
        e.wait_vm(tok[7 * ch + 6])
        e.barrier()
        if first_chunk:
            for nt in range(4):
                e(f'v_add_f32 v{ST+nt*4}, v{ST+nt*4}, v{ST+nt*4+1}')
                e(f'v_add_f32 v{ST+nt*4+2}, v{ST+nt*4+2}, v{ST+nt*4+3}')
                e(f'v_add_f32 v{ST+nt*4}, v{ST+nt*4}, v{ST+nt*4+2}')
                e(f'v_mov_b32 v7, {lit(1e-5)}')
                e(f'v_fmamk_f32 v{ST+nt*4}, v{ST+nt*4}, {lit(1.0/448)}, v7')
                e(f'v_rsq_f32 v{ST+nt*4}, v{ST+nt*4}')
                e(f'v_mul_f32 v{RR+nt}, {lit(-1.4426950408889634)}, v{ST+nt*4}')
                e(f'v_mul_f32 v{RR+4+nt}, v{ST+nt*4}, v{ST+nt*4}')
            first_chunk = False
        seq = [(kap, nt) for kap in range(7 * ch, 7 * ch + 7) for nt in range(4)]
        n = 0
        def issue():
            nonlocal n
            kap, nt = seq[n]
            slot = (kap * 4 + nt) % 8
            base = 'v4' if nt < 2 else 'v6'
            off = ((nt & 1) * 28 + kap) * 1024
            btok[(kap, nt)] = e.ds(f'ds_read_b128 {vr(BR+slot*4,4)}, {base} offset:{off}')
            n += 1
        for _ in range(6): issue()
        for (kap, nt) in seq:
            e.wait_ds(btok[(kap, nt)])
            slot = (kap * 4 + nt) % 8
            for mi in range(2):
                a = ACC + (mi * 4 + nt) * 16
                e(f'v_mfma_f32_32x32x16_bf16 {vr(a,16)}, {ar((mi*28+kap)*4,4)}, {vr(BR+slot*4,4)}, {"0" if kap == 0 else vr(a,16)}')
            if n < len(seq): issue()
    e.c('swiglu epilogue')
    T = 16
    e('s_lshl_b32 s26, s16, 2')
    for nt in range(4):
        for mi in range(2):
            a = ACC + (mi * 4 + nt) * 16
            for r in range(8): e(f'v_mul_f32 v{T+r}, v{a+r}, v{RR+nt}')
            for r in range(8): e(f'v_exp_f32 v{T+r}, v{T+r}')
            for r in range(8): e(f'v_mul_f32 v{T+8+r}, v{a+r}, v{a+8+r}')
            for r in range(8): e(f'v_add_f32 v{T+r}, 1.0, v{T+r}')
            for r in range(8): e(f'v_rcp_f32 v{T+r}, v{T+r}')
            for r in range(8): e(f'v_mul_f32 v{T+8+r}, v{T+8+r}, v{RR+4+nt}')
            for r in range(8): e(f'v_mul_f32 v{T+8+r}, v{T+8+r}, v{T+r}')
            P = 32 + ((nt * 2 + mi) % 2) * 4
            for i in range(4): e(f'v_cvt_pk_bf16_f32 v{P+i}, v{T+8+2*i}, v{T+8+2*i+1}')
            e(f's_add_u32 s27, s26, {nt}')
            e('s_mul_i32 s27, s27, 112')
            e('s_add_u32 s27, s27, s20')
            e(f's_add_u32 s27, s27, {mi}')
            e('s_lshl_b32 s27, s27, 10')
            e(f's_add_u32 s27, s27, 0x{HM_OFF:x}')
            e.vm(f'buffer_store_dwordx4 {vr(P,4)}, v4, s[12:15], s27 offen')
    e.label('kg1_end')
    e('s_endpgm')
    return e.out, dict(vgpr=256, agpr=224, sgpr=48, lds=114688, grid=224, block=256)

def kernel_g2():
    e = Emit()
    e.label('kg2_kernel')
    e('s_cmp_ge_u32 s2, 224')
    e('s_cbranch_scc1 kg2_end')
    e('s_load_dwordx2 s[6:7], s[0:1], 72')
    e('s_load_dwordx2 s[4:5], s[0:1], 56')
    lane_ids(e)
    e('s_and_b32 s16, s2, 7')
    e('s_lshr_b32 s17, s2, 3')
    e('s_mul_i32 s19, s17, 37')
    e('s_lshr_b32 s19, s19, 8')
    e('s_mul_i32 s20, s19, 7')
    e('s_sub_u32 s17, s17, s20')
    e('s_lshl_b32 s19, s19, 3')
    e('s_add_u32 s16, s16, s19')
    e('v_lshlrev_b32 v4, 4, v1')
    e('s_waitcnt lgkmcnt(0)')
    srd(e, 12, 6, WS_SIZE)
    srd(e, 8, 4, 1835008)
    e('s_mul_i32 s19, s18, 28')
    e('s_lshl_b32 s20, s17, 1')
    e('s_mul_i32 s21, s20, 112')
    e('s_add_u32 s21, s21, s19')
    e('s_lshl_b32 s21, s21, 10')
    e(f's_add_u32 s21, s21, 0x{W2_OFF:x}')
    e(f's_add_u32 s22, s21, {112*1024}')
    e('s_lshl_b32 s23, s16, 1')
    e('s_mul_i32 s24, s23, 112')
    e('s_add_u32 s24, s24, s19')
    e('s_lshl_b32 s24, s24, 10')
    e(f's_add_u32 s24, s24, 0x{HM_OFF:x}')
    e(f's_add_u32 s25, s24, {112*1024}')
    ACC, BR, HRR = 16, 80, 208
    NB = 14
    e('s_lshr_b32 s26, s18, 1')
    e('s_add_u32 s26, s26, s23')
    e('s_mul_i32 s27, s26, 28')
    e('s_and_b32 s28, s18, 1')
    e('s_add_u32 s28, s28, s20')
    e('s_lshl_b32 s29, s28, 1')
    e('s_add_u32 s27, s27, s29')
    e('s_lshl_b32 s27, s27, 10')
    e(f's_add_u32 s27, s27, 0x{HR_OFF:x}')
    htok = [e.vm(f'buffer_load_dwordx4 {vr(HRR+4*gg,4)}, v4, s[12:15], s27 offen offset:{1024*gg}') for gg in range(2)]
    tok = {}
    nl = 0
    def issue():
        nonlocal nl
        i = nl
        if i % 4 == 0:
            for s, b in ((30, 21), (31, 22), (32, 24), (33, 25)):
                e(f's_add_u32 s{s}, s{b}, {i*1024}')
        o = (i % 4) * 1024
        e.vm(f'buffer_load_dwordx4 {ar((0*28+i)*4,4)}, v4, s[12:15], s30 offen offset:{o}')
        e.vm(f'buffer_load_dwordx4 {ar((1*28+i)*4,4)}, v4, s[12:15], s31 offen offset:{o}')
        slot = i % NB
        e.vm(f'buffer_load_dwordx4 {vr(BR+slot*8,4)}, v4, s[12:15], s32 offen offset:{o}')
        tok[i] = e.vm(f'buffer_load_dwordx4 {vr(BR+slot*8+4,4)}, v4, s[12:15], s33 offen offset:{o}')
        nl += 1
    for _ in range(NB): issue()
    for i in range(28):
        e.wait_vm(tok[i])
        slot = i % NB
        for mi in range(2):
            for ni in range(2):
                a = ACC + (mi * 2 + ni) * 16
                e(f'v_mfma_f32_32x32x16_bf16 {vr(a,16)}, {ar((mi*28+i)*4,4)}, {vr(BR+slot*8+ni*4,4)}, {"0" if i == 0 else vr(a,16)}')
        if nl < 28: issue()
    e('s_lshl_b32 s29, s18, 12')
    e('v_add_u32 v5, s29, v4')
    for tile in range(4):
        mi, ni = tile & 1, tile >> 1
        a = ACC + (mi * 2 + ni) * 16
        for qd in range(4):
            e.ds(f'ds_write_b128 v5, {vr(a+qd*4,4)} offset:{tile*16384 + qd*1024}')
    e.wait_ds_all()
    e.barrier()
    e('s_lshl_b32 s29, s18, 14')
    e('v_add_u32 v5, s29, v4')
    R0 = 80
    for sw in range(4):
        for qd in range(4):
            e.ds(f'ds_read_b128 {vr(R0+sw*16+qd*4,4)}, v5 offset:{sw*4096 + qd*1024}')
    e.wait_ds_all()
    for r in range(16):
        e(f'v_add_f32 v{R0+r}, v{R0+r}, v{R0+16+r}')
        e(f'v_add_f32 v{R0+32+r}, v{R0+32+r}, v{R0+48+r}')
    for r in range(16):
        e(f'v_add_f32 v{R0+r}, v{R0+r}, v{R0+32+r}')
    e.wait_vm(htok[1])
    e('s_mov_b32 s29, 0xffff0000')
    PK = 16
    for i in range(8): e(f'v_cvt_pk_bf16_f32 v{PK+i}, v{R0+2*i}, v{R0+2*i+1}')
    for i in range(8):
        e(f'v_lshlrev_b32 v32, 16, v{PK+i}')
        e(f'v_and_b32 v33, s29, v{PK+i}')
        e(f'v_lshlrev_b32 v34, 16, v{HRR+i}')
        e(f'v_and_b32 v35, s29, v{HRR+i}')
        e('v_add_f32 v32, v32, v34')
        e('v_add_f32 v33, v33, v35')
        dst = {0: 40, 1: 41, 4: 42, 5: 43, 2: 44, 3: 45, 6: 46, 7: 47}[i]
        e(f'v_cvt_pk_bf16_f32 v{dst}, v32, v33')
    e('v_permlane32_swap_b32 v40, v42')
    e('v_permlane32_swap_b32 v41, v43')
    e('v_permlane32_swap_b32 v44, v46')
    e('v_permlane32_swap_b32 v45, v47')
    e('v_and_b32 v5, 31, v1')
    e('v_lshlrev_b32 v5, 6, v5')
    e('v_add_u32 v5, s26, v5')
    e('s_movk_i32 s29, 896')
    e('v_mul_lo_u32 v5, v5, s29')
    e('v_lshrrev_b32 v6, 5, v1')
    e('v_lshlrev_b32 v6, 4, v6')
    e('v_add_u32 v5, v5, v6')
    e('s_lshl_b32 s29, s28, 5')
    e('buffer_store_dwordx4 v[40:43], v5, s[8:11], s29 offen')
    e('buffer_store_dwordx4 v[44:47], v5, s[8:11], s29 offen offset:448')
    e.label('kg2_end')
    e('s_endpgm')
    return e.out, dict(vgpr=256, agpr=224, sgpr=48, lds=65536, grid=224, block=256)

def header():
    return open('cdna_kernels/' + NAME + '.s.ref').read().split('; Override launch')[0]

def build(kernels):
    hdr = header()
    lines = [hdr.rstrip('\n')]
    infos = []
    bodies = []
    for name, fn in kernels:
        body, info = fn()
        body, nn = hazard_pass(body)
        print(f'; {name}: {len(body)} lines, {nn} nops inserted', file=sys.stderr)
        infos.append((name, info)); bodies.append(body)
        lines.append(f"; @launch kernel={name} grid=({info['grid']},1,1) block=({info['block']},1,1) lds={info['lds']}")
    lines.append('.amdgcn_target "amdgcn-amd-amdhsa--gfx950"')
    lines.append('.text')
    for (name, info), body in zip(infos, bodies):
        lines.append(f'.globl {name}')
        lines.append('.p2align 8')
        lines.append(f'.type {name},@function')
        for ln in body:
            lines.append(ln if ln.endswith(':') else '    ' + ln)
    lines.append('.section .rodata,"a"')
    for name, info in infos:
        acc_off = info['vgpr']
        lines.append('.p2align 6')
        lines.append(f'.amdhsa_kernel {name}')
        lines.append(f"  .amdhsa_next_free_vgpr {info['vgpr'] + info['agpr']}")
        lines.append(f"  .amdhsa_next_free_sgpr {info['sgpr']}")
        lines.append(f'  .amdhsa_accum_offset {acc_off}')
        lines.append('  .amdhsa_group_segment_fixed_size 0')
        lines.append('  .amdhsa_kernarg_size 80')
        lines.append('  .amdhsa_user_sgpr_count 2')
        lines.append('  .amdhsa_user_sgpr_kernarg_segment_ptr 1')
        lines.append('  .amdhsa_system_sgpr_workgroup_id_x 1')
        lines.append('  .amdhsa_float_denorm_mode_32 3')
        lines.append('.end_amdhsa_kernel')
    return '\n'.join(lines) + '\n'

if __name__ == '__main__':
    ks = [('ka_kernel', kernel_a), ('kb_kernel', kernel_b), ('kc_kernel', kernel_c), ('kg1_kernel', kernel_g1), ('kg2_kernel', kernel_g2)]
    out = sys.argv[1] if len(sys.argv) > 1 else 'cdna_kernels/' + NAME + '.s'
    open(out, 'w').write(build(ks))
    print('written', out, file=sys.stderr)
```

```python
import sys, struct
from asmlib import Emit, hazard_pass

NAME = "sequential_preLN__spectral_gfnet__glu_gated_swiglu__prompt"
KN = NAME + "_kernel"

T1_OFF  = 0x000000
T2_OFF  = 0x200000
HC_OFF  = 0x400000
HR_OFF  = 0x600000
ST1_OFF = 0x800000
ST2_OFF = 0x810000
W2_OFF  = 0xD00000
HM_OFF  = 0x1000000
FL_OFF  = 0x1800000
DIAG_OFF = 0x1A00000
WS_SIZE = 0x1C00000
LDS_STAGE = 32768
LDS_BYTES = LDS_STAGE + 114688
MAXSPIN = 100000

DIAG = False
def f2u(x): return struct.unpack('<I', struct.pack('<f', x))[0]
def lit(x): return '0x%08x' % f2u(x)
def vr(a, n=1): return f'v{a}' if n == 1 else f'v[{a}:{a+n-1}]'
def ar(a, n=1): return f'a{a}' if n == 1 else f'a[{a}:{a+n-1}]'

S_X, S_WS, S_WR, S_WI, S_W1, S_W3, S_W2, S_OUT, S_DBG = 8, 12, 16, 20, 24, 28, 32, 36, 40
SX, SWS, SWR, SWI, SW1, SW3, SW2, SOUT, SDBG = [f's[{a}:{a+3}]' for a in (8, 12, 16, 20, 24, 28, 32, 36, 40)]
sW, sB, sGRP, sNONCE, sREP = 44, 45, 46, 47, 48
sR, sC, sSPIN = 49, 50, 51

def srd(e, d, ptr, size):
    e(f's_mov_b32 s{d}, s{ptr}')
    e(f's_and_b32 s{d+1}, s{ptr+1}, 0xffff')
    e(f's_mov_b32 s{d+2}, 0x{size:x}')
    e(f's_mov_b32 s{d+3}, 0x20000')

_stamp_n = [0]
STAMPS = []
def stamp(e, name):
    if not DIAG: return
    i = _stamp_n[0]; _stamp_n[0] += 1; STAMPS.append(name)
    e('s_memtime s[84:85]')
    e('s_waitcnt lgkmcnt(0)')
    e(f'v_writelane_b32 v255, s84, {i}')
def rstamp(e, name):
    if not DIAG: return
    i = _stamp_n[0]; _stamp_n[0] += 1; STAMPS.append(name)
    e('s_memrealtime s[84:85]')
    e('s_waitcnt lgkmcnt(0)')
    e(f'v_writelane_b32 v255, s84, {i}')

def xsum_groups(e, v, tmp):
    e(f'v_mov_b32 v{tmp}, v{v}')
    e(f'v_permlane32_swap_b32 v{tmp}, v{v}')
    e(f'v_add_f32 v{v}, v{v}, v{tmp}')
    e(f'v_mov_b32 v{tmp}, v{v}')
    e(f'v_permlane16_swap_b32 v{tmp}, v{v}')
    e(f'v_add_f32 v{v}, v{v}, v{tmp}')

_lab = [0]
def L(p):
    _lab[0] += 1
    return f'L{p}_{_lab[0]}'

def signal(e, sync):
    e.barrier()
    skip = L('sig')
    e(f's_cmp_lg_u32 s{sW}, 0')
    e(f's_cbranch_scc1 {skip}')
    e(f's_lshl_b32 s52, s2, 6')
    e(f's_add_u32 s52, s52, 0x{FL_OFF + sync*0x40000:x}')
    e(f'v_mov_b32 v14, s{sNONCE}')
    e('v_lshlrev_b32 v15, 14, v1')
    e('s_mov_b64 exec, 0xff')
    e(f'buffer_store_dword v14, v15, {SWS}, s52 offen sc1')
    e('s_mov_b64 exec, -1')
    e.label(skip)

def poll(e, sync, nflags, idx_code):
    skip = L('pollskip'); loop = L('poll'); done = L('polldone')
    e(f's_cmp_lg_u32 s{sW}, 0')
    e(f's_cbranch_scc1 {skip}')
    idx_code(e)
    e(f's_add_u32 s52, s{sREP}, 0x{FL_OFF + sync*0x40000:x}')
    e(f's_mov_b32 s{sSPIN}, 0')
    if nflags < 64: e(f's_mov_b64 exec, 0x{(1 << nflags) - 1:x}')
    e.label(loop)
    nl = max(1, nflags // 64)
    for i in range(nl):
        if i: e(f's_add_u32 s53, s52, {i*64*64}')
        e(f'buffer_load_dword v{6+i}, v5, {SWS}, {"s53" if i else "s52"} offen sc1')
    e('s_waitcnt vmcnt(0)')
    for i in range(nl): e(f'v_xor_b32 v{6+i}, s{sNONCE}, v{6+i}')
    if nl == 4:
        e('v_or_b32 v6, v6, v7'); e('v_or_b32 v8, v8, v9'); e('v_or_b32 v6, v6, v8')
    e('v_cmp_ne_u32 vcc, 0, v6')
    e('s_nop 4')
    e(f's_cbranch_vccz {done}')
    e(f's_add_u32 s{sSPIN}, s{sSPIN}, 1')
    e(f's_cmp_lt_u32 s{sSPIN}, {MAXSPIN}')
    e(f's_cbranch_scc1 {loop}')
    e.label(done)
    e('s_mov_b64 exec, -1')
    e.label(skip)
    e.barrier()

def w13_dma(e, half):
    e('v_lshlrev_b32 v4, 1, v3')
    e('v_xor_b32 v4, v4, v2')
    e('v_xor_b32 v5, 8, v4')
    e('v_lshlrev_b32 v4, 4, v4')
    e('v_lshlrev_b32 v5, 4, v5')
    e('v_mul_u32_u24 v6, 3584, v3')
    e('v_add_u32 v4, v4, v6')
    e('v_add_u32 v5, v5, v6')
    e(f's_lshl_b32 s52, s{sC}, 8')
    toks = []
    e(f's_mul_i32 s53, s{sW}, 56')
    e(f's_cmp_ge_u32 s{sW}, 2')
    e('s_cselect_b32 s54, 112, 0')
    e('s_add_u32 s53, s53, s54')
    e(f's_add_u32 s53, s53, {112*half}')
    e('s_mul_i32 s53, s53, 3584')
    e('s_add_u32 s53, s53, s52')
    e(f's_mul_i32 s54, s{sW}, 14336')
    e(f's_add_u32 s54, s54, {LDS_STAGE}')
    e('v_mov_b32 v14, v4')
    e('v_mov_b32 v15, v5')
    e('s_mov_b32 s88, s53')
    e('s_mov_b32 s89, s54')
    groups = []
    for mat in range(2):
        for ii in range(14):
            groups.append([f's_add_u32 m0, s89, {mat*57344 + ii*1024}', f's_add_u32 s90, s88, {ii*4*3584}',
                           ('vm', f'buffer_load_dwordx4 v{14+mat}, {SW1 if mat == 0 else SW3}, s90 offen lds')])
    return groups

def emit_interleaved(e, main, groups, start=0):
    n, m = len(main), len(groups)
    gi = 0; last = None
    for k, ins in enumerate(main):
        e(ins)
        if k >= start:
            want = ((k - start + 1) * m) // max(1, n - start)
            while gi < want:
                for op in groups[gi]:
                    if isinstance(op, tuple): last = e.vm(op[1])
                    else: e(op)
                gi += 1
    while gi < m:
        for op in groups[gi]:
            if isinstance(op, tuple): last = e.vm(op[1])
            else: e(op)
        gi += 1
    return last

def w13_trread(e, half):
    e('v_and_b32 v4, 1, v3')
    e('v_lshrrev_b32 v5, 1, v3')
    e('v_lshrrev_b32 v6, 2, v2')
    e('v_and_b32 v7, 3, v2')
    e('v_mul_u32_u24 v8, 57344, v4')
    e('v_lshlrev_b32 v9, 2, v5')
    e('v_add_u32 v9, v9, v6')
    e('v_lshlrev_b32 v9, 8, v9')
    e('v_add_u32 v8, v8, v9')
    e('v_and_b32 v9, 1, v7')
    e('v_lshlrev_b32 v9, 3, v9')
    e('v_add_u32 v8, v8, v9')
    e(f'v_add_u32 v8, {LDS_STAGE}, v8')
    e('v_lshrrev_b32 v7, 1, v7')
    e(f's_lshl_b32 s52, s{sW}, 2')
    e('v_add_u32 v7, s52, v7')
    e('v_lshlrev_b32 v6, 1, v6')
    e('v_lshlrev_b32 v4, 3, v4')
    e('v_xor_b32 v6, v6, v4')
    for mi in range(2):
        e(f'v_add_u32 v9, {2*mi}, v7')
        e('v_xor_b32 v9, v9, v6')
        e('v_lshlrev_b32 v9, 4, v9')
        e(f'v_add_u32 v{10+mi}, v8, v9')
    for mi in range(2):
        for jl in range(7):
            for gg in range(2):
                kap = 14 * half + 2 * jl + gg
                a = (mi * 28 + kap) * 4
                off = (16 * jl + 8 * gg) * 256
                e.ds(f'ds_read_b64_tr_b16 {ar(a,2)}, v{10+mi} offset:{off}')
                e.ds(f'ds_read_b64_tr_b16 {ar(a+2,2)}, v{10+mi} offset:{off + 112*256}')

def phase_a(e):
    e.c('======== phase A')
    e(f's_lshl_b32 s56, s{sGRP}, 2')
    e(f's_add_u32 s56, s56, s{sW}')
    e('s_min_u32 s57, s56, 13')
    e(f's_lshr_b32 s52, s{sW}, 1')
    e('s_lshl_b32 s52, s52, 10')
    e(f's_add_u32 s52, s52, s{sB}')
    e('v_lshlrev_b32 v4, 6, v2')
    e('v_add_u32 v4, s52, v4')
    e('v_mul_u32_u24 v4, 896, v4')
    e('v_lshlrev_b32 v5, 4, v3')
    e('v_add_u32 v4, v4, v5')
    e(f's_and_b32 s52, s{sW}, 1')
    e('s_mul_i32 s52, s52, 448')
    e('v_add_u32 v4, s52, v4')
    TA, FP, ACC, X = 16, 72, 96, 128
    xs_tok = [e.vm(f'buffer_load_dwordx4 {vr(X+4*i,4)}, v4, {SX}, 0 offen offset:{64*i}') for i in range(7)]
    stamp(e, 'A.issued')
    e('s_cmp_lt_u32 s57, 7')
    e('s_cselect_b32 s52, 2, 1')
    e('s_cselect_b32 s53, 0, 7')
    e('s_sub_u32 s53, s57, s53')
    e('s_lshl_b32 s53, s53, 5')
    e('s_add_u32 s53, s53, s52')
    e('s_cmp_lt_u32 s57, 7')
    e(f's_cselect_b32 s58, {lit(1.0)}, {lit(-1.0)}')
    e('v_lshlrev_b32 v5, 1, v2')
    e('v_add_u32 v5, s53, v5')
    e('v_cvt_f32_u32 v5, v5')
    e(f'v_mul_f32 v5, {lit(1.0/448)}, v5')
    e('v_lshlrev_b32 v6, 3, v3')
    e('v_cvt_f32_u32 v6, v6')
    e('v_mul_f32 v6, v6, v5')
    TH, CO, SI = ACC, ACC + 8, ACC + 16
    for t in range(7):
        for j in range(8):
            cst = 32 * t + j
            if cst == 0: e(f'v_mov_b32 v{TH+j}, v6')
            else: e(f'v_fmamk_f32 v{TH+j}, v5, {lit(float(cst))}, v6')
        for j in range(8): e(f'v_cos_f32 v{CO+j}, v{TH+j}')
        for j in range(8): e(f'v_sin_f32_e64 v{SI+j}, -v{TH+j}')
        for i in range(4): e(f'v_cvt_pk_bf16_f32 v{TA+(t*2+0)*4+i}, v{CO+2*i}, v{CO+2*i+1}')
        for i in range(4): e(f'v_cvt_pk_bf16_f32 v{TA+(t*2+1)*4+i}, v{SI+2*i}, v{SI+2*i+1}')
    e('s_mov_b32 s52, 0x80008000')
    e(f'v_cvt_f32_u32 v7, s{sB}')
    e(f'v_mul_f32 v7, {lit(1.0/64)}, v7')
    e('v_lshlrev_b32 v8, 2, v3')
    e('v_cvt_f32_u32 v8, v8')
    e('v_add_f32 v8, v8, v7')
    for mt in range(2):
        e(f'v_add_u32 v9, {16*mt}, v2')
        e('v_cvt_f32_u32 v9, v9')
        e(f'v_mul_f32 v9, {lit(1.0/32)}, v9')
        e('v_mul_f32 v10, v9, v8')
        for j in range(8):
            cst = 16 * (j >> 2) + (j & 3)
            if cst == 0: e(f'v_mov_b32 v{TH+j}, v10')
            else: e(f'v_fmamk_f32 v{TH+j}, v9, {lit(float(cst))}, v10')
        for j in range(8): e(f'v_cos_f32 v{CO+j}, v{TH+j}')
        for j in range(8): e(f'v_sin_f32 v{SI+j}, v{TH+j}')
        for i in range(4): e(f'v_cvt_pk_bf16_f32 v{FP+mt*12+i}, v{CO+2*i}, v{CO+2*i+1}')
        for i in range(4): e(f'v_cvt_pk_bf16_f32 v{FP+mt*12+4+i}, v{SI+2*i}, v{SI+2*i+1}')
        for i in range(4): e(f'v_xor_b32 v{FP+mt*12+8+i}, s52, v{FP+mt*12+4+i}')
    stamp(e, 'A.constgen')
    e(f's_mul_i32 s52, s{sW}, 7168')
    e('v_lshlrev_b32 v11, 4, v1')
    e('v_add_u32 v4, s52, v11')
    e('v_mov_b32 v5, 0')
    e('v_mov_b32 v6, 0')
    e('s_mov_b32 s52, 0x3f803f80')
    for i in range(7):
        e.wait_vm(xs_tok[i])
        e.ds(f'ds_write_b128 v4, {vr(X+4*i,4)} offset:{1024*i}')
        for d in range(4):
            e(f'v_dot2_f32_bf16 v5, v{X+4*i+d}, s52, v5')
            e(f'v_dot2_f32_bf16 v6, v{X+4*i+d}, v{X+4*i+d}, v6')
    xsum_groups(e, 5, 7)
    xsum_groups(e, 6, 8)
    e(f's_lshl_b32 s52, s{sW}, 7')
    e('v_lshlrev_b32 v7, 3, v2')
    e('v_add_u32 v7, s52, v7')
    e('v_mov_b32 v8, v5')
    e('v_mov_b32 v9, v6')
    e.ds('ds_write_b64 v7, v[8:9] offset:28672')
    e.wait_ds_all()
    stamp(e, 'A.xstaged')
    e.barrier()
    e('s_lshl_b32 s52, s2, 12')
    e('v_lshlrev_b32 v12, 4, v0')
    e('v_add_u32 v12, s52, v12')
    for sr_ in (SW1, SW3, SWR, SWI, SW2):
        e.vm(f'buffer_load_dwordx4 v[248:251], v12, {sr_}, 0 offen')
    e('s_mov_b32 s52, 0x100000')
    for sr_ in (SW1, SW3, SW2):
        e.vm(f'buffer_load_dwordx4 v[248:251], v12, {sr_}, s52 offen')
    e('v_mov_b32 v12, 0')
    nonce_tok = e.vm(f'buffer_load_dword v13, v12, {SDBG}, 0 offen sc1')
    e('v_and_b32 v4, 31, v1')
    e('v_lshrrev_b32 v5, 4, v4')
    e('v_lshlrev_b32 v5, 8, v5')
    e('v_lshlrev_b32 v6, 3, v2')
    e('v_add_u32 v5, v5, v6')
    t0 = e.ds('ds_read_b64 v[6:7], v5 offset:28672')
    t1 = e.ds('ds_read_b64 v[8:9], v5 offset:28800')
    xt = {}
    order = [(half, t, mt) for half in range(2) for t in range(7) for mt in range(2)]
    def xreg(mt, tt): return X + (mt * 14 + tt) * 4
    nread = [0]
    def issue_x():
        half, t, mt = order[nread[0]]
        tt = t + 7 * half
        xt[(half, t, mt)] = e.ds(f'ds_read_b128 {vr(xreg(mt,tt),4)}, v11 offset:{(mt*14+tt)*1024}')
        nread[0] += 1
    for _ in range(8): issue_x()
    e.wait_ds(t1)
    e('v_add_f32 v6, v6, v8')
    e('v_add_f32 v7, v7, v9')
    e(f'v_mul_f32 v6, {lit(1.0/448)}, v6')
    e(f'v_mul_f32 v7, {lit(1.0/448)}, v7')
    e('v_fma_f32 v7, -v6, v6, v7')
    e('v_max_f32 v7, 0, v7')
    e(f'v_add_f32 v7, {lit(1e-5)}, v7')
    e('v_rsq_f32 v7, v7')
    e(f's_lshl_b32 s52, s{sW}, 7')
    e('v_lshlrev_b32 v8, 2, v4')
    e('v_add_u32 v9, s52, v8')
    e.ds('ds_write_b32 v9, v7 offset:29184')
    nm = L('nomean')
    e(f's_or_b32 s52, s{sGRP}, s{sW}')
    e('s_cmp_lg_u32 s52, 0')
    e(f's_cbranch_scc1 {nm}')
    e(f's_lshl_b32 s52, s{sB}, 7')
    e(f's_add_u32 s52, s52, 0x{ST1_OFF:x}')
    e(f'buffer_store_dword v6, v8, {SWS}, s52 offen sc1')
    e.label(nm)
    e(f's_lshl_b32 s52, s{sW}, 7')
    e('v_lshlrev_b32 v9, 4, v3')
    e('v_add_u32 v9, s52, v9')
    RR = 240
    tr0 = e.ds(f'ds_read_b128 {vr(RR,4)}, v9 offset:29184')
    tr1 = e.ds(f'ds_read_b128 {vr(RR+4,4)}, v9 offset:29248')
    def acc(mt, c, half): return ACC + ((mt * 2 + c) * 2 + half) * 4
    for (half, t, mt) in order:
        if nread[0] < len(order): issue_x()
        e.wait_ds(xt[(half, t, mt)])
        tt = t + 7 * half
        for c in range(2):
            a = acc(mt, c, half)
            e(f'v_mfma_f32_16x16x32_bf16 {vr(a,4)}, {vr(xreg(mt,tt),4)}, {vr(TA+(t*2+c)*4,4)}, {"0" if t == 0 else vr(a,4)}')
    e.wait_ds(tr1)
    stamp(e, 'A.mfma')
    BF = X; TMP = X + 8
    for c in range(2):
        for mt in range(2):
            for r in range(4): e(f'v_fma_f32 v{TMP+mt*4+r}, v{acc(mt,c,1)+r}, s58, v{acc(mt,c,0)+r}')
            for r in range(4): e(f'v_mul_f32 v{TMP+mt*4+r}, v{TMP+mt*4+r}, v{RR+mt*4+r}')
        for mt in range(2):
            for i in range(2):
                e(f'v_cvt_pk_bf16_f32 v{BF+c*4+mt*2+i}, v{TMP+mt*4+2*i}, v{TMP+mt*4+2*i+1}')
    TT = X + 16
    for mt in range(2):
        C, Sp, Sn = FP + mt * 12, FP + mt * 12 + 4, FP + mt * 12 + 8
        e(f'v_mfma_f32_16x16x32_bf16 {vr(TT+mt*8,4)}, {vr(C,4)}, {vr(BF,4)}, 0')
        e(f'v_mfma_f32_16x16x32_bf16 {vr(TT+mt*8+4,4)}, {vr(Sn,4)}, {vr(BF,4)}, 0')
        e(f'v_mfma_f32_16x16x32_bf16 {vr(TT+mt*8,4)}, {vr(Sp,4)}, {vr(BF+4,4)}, {vr(TT+mt*8,4)}')
        e(f'v_mfma_f32_16x16x32_bf16 {vr(TT+mt*8+4,4)}, {vr(C,4)}, {vr(BF+4,4)}, {vr(TT+mt*8+4,4)}')
    e('s_mov_b32 s52, %d' % (4 * 57344))
    e('v_mul_lo_u32 v4, v3, s52')
    e('v_lshlrev_b32 v5, 2, v2')
    e('v_add_u32 v4, v4, v5')
    e('s_lshl_b32 s52, s56, 12')
    e(f's_lshl_b32 s53, s{sB}, 6')
    e('s_add_u32 s52, s52, s53')
    OUT = X + 40
    for mt in range(2):
        for r in range(4): e(f'v_cvt_pk_bf16_f32 v{OUT+mt*4+r}, v{TT+mt*8+r}, v{TT+mt*8+4+r}')
    ns = L('nostoreA')
    e('s_cmp_ge_u32 s56, 14')
    e(f's_cbranch_scc1 {ns}')
    for mt in range(2):
        for r in range(4):
            e(f's_add_u32 s53, s52, {T1_OFF + (16*mt+r)*57344}')
            e(f'buffer_store_dword v{OUT+mt*4+r}, v4, {SWS}, s53 offen sc1')
    e.label(ns)
    stamp(e, 'A.stored')
    e.wait_vm_all()
    sk, lp, dn = L('nsk'), L('nlp'), L('ndn')
    e(f's_cmp_lg_u32 s{sW}, 0')
    e(f's_cbranch_scc1 {sk}')
    e(f's_mov_b32 s{sSPIN}, 0')
    e.label(lp)
    e(f'v_readfirstlane_b32 s{sNONCE}, v13')
    e('s_nop 1')
    e(f's_cmp_lg_u32 s{sNONCE}, 0')
    e(f's_cbranch_scc1 {dn}')
    e(f'buffer_load_dword v13, v12, {SDBG}, 0 offen sc1')
    e('s_waitcnt vmcnt(0)')
    e(f's_add_u32 s{sSPIN}, s{sSPIN}, 1')
    e(f's_cmp_lt_u32 s{sSPIN}, {MAXSPIN}')
    e(f's_cbranch_scc1 {lp}')
    e.label(dn)
    e.label(sk)
    stamp(e, 'A.drained')
    signal(e, 0)

def phase_p2(e):
    e.c('======== P2 (w2 re-layout)')
    done = L('p2done')
    e('s_cmp_ge_u32 s2, 252')
    e(f's_cbranch_scc1 {done}')
    e('s_sub_u32 s56, s2, 224')
    e.vm_issued = e.vm_done = 0
    e('s_mul_i32 s52, s56, 57344')
    e('v_lshlrev_b32 v4, 4, v0')
    toks = []
    for i in range(14):
        e(f's_add_u32 s53, s52, {i*4096}')
        toks.append(e.vm(f'buffer_load_dwordx4 {vr(16+4*i,4)}, v4, {SW2}, s53 offen'))
    for i in range(14):
        e(f'v_add_u32 v5, {i*256}, v0')
        e('v_mul_u32_u24 v6, 18725, v5')
        e('v_lshrrev_b32 v6, 20, v6')
        e('v_lshlrev_b32 v6, 5, v6')
        e('v_lshlrev_b32 v5, 4, v5')
        e(f'v_add_u32 v{80+i}, v5, v6')
        e(f'v_add_u32 v{80+i}, {LDS_STAGE}, v{80+i}')
    for i in range(14):
        e.wait_vm(toks[i])
        e.ds(f'ds_write_b128 v{80+i}, {vr(16+4*i,4)}')
    e.wait_ds_all()
    e.barrier()
    e('v_lshrrev_b32 v4, 1, v3')
    e('v_lshlrev_b32 v4, 2, v4')
    e('v_lshrrev_b32 v5, 2, v2')
    e('v_add_u32 v4, v4, v5')
    e(f's_lshl_b32 s53, s{sW}, 4')
    e('v_add_u32 v4, s53, v4')
    e('v_mul_u32_u24 v4, 928, v4')
    e('v_and_b32 v5, 1, v3')
    e('v_lshlrev_b32 v5, 4, v5')
    e('v_add_u32 v4, v4, v5')
    e('v_and_b32 v5, 1, v2')
    e('v_lshlrev_b32 v5, 3, v5')
    e('v_add_u32 v4, v4, v5')
    e('v_bfe_u32 v5, v2, 1, 1')
    e('v_mul_u32_u24 v5, 448, v5')
    e('v_add_u32 v4, v4, v5')
    e(f'v_add_u32 v4, {LDS_STAGE}, v4')
    e('v_lshlrev_b32 v5, 4, v1')
    for j in range(14):
        R = 16 + 4 * j
        e.ds(f'ds_read_b64_tr_b16 {vr(R,2)}, v4 offset:{32*j}')
        e.ds(f'ds_read_b64_tr_b16 {vr(R+2,2)}, v4 offset:{32*j + 8*928}')
    e.wait_ds_all()
    e('s_lshl_b32 s53, s56, 2')
    e(f's_add_u32 s53, s53, s{sW}')
    e('s_lshl_b32 s53, s53, 10')
    e(f's_add_u32 s53, s53, 0x{W2_OFF:x}')
    for j in range(14):
        e(f's_add_u32 s54, s53, {j*112*1024}')
        e.vm(f'buffer_store_dwordx4 {vr(16+4*j,4)}, v5, {SWS}, s54 offen sc1')
    e.label(done)
    e.wait_vm_all()
assert all(((p * 18725) >> 20) == p // 56 for p in range(3584)), "magic /56"

def phase_b(e):
    e.c('======== window 1 + phase B')
    e('s_and_b32 s56, s2, 7')
    e('s_lshr_b32 s57, s2, 3')
    e('s_mul_i32 s52, s57, 37')
    e('s_lshr_b32 s52, s52, 8')
    e('s_mul_i32 s53, s52, 7')
    e('s_sub_u32 s53, s57, s53')
    e('s_lshl_b32 s52, s52, 3')
    e('s_add_u32 s56, s56, s52')
    e('s_lshl_b32 s53, s53, 1')
    e(f's_lshr_b32 s54, s{sW}, 1')
    e('s_add_u32 s57, s53, s54')
    e('s_lshr_b32 s59, s53, 2')
    e(f's_and_b32 s58, s{sW}, 1')
    FC, FS, FN = 16, 32, 48
    TIN, BF, WR, WI, XA, YR, YI, YF = 64, 80, 96, 104, 112, 128, 136, 144
    e('s_cmp_lt_u32 s57, 7')
    e('s_cselect_b32 s52, 2, 1')
    e('s_cselect_b32 s53, 0, 7')
    e('s_sub_u32 s53, s57, s53')
    e('s_lshl_b32 s53, s53, 5')
    e('s_add_u32 s53, s53, s52')
    e('v_lshlrev_b32 v6, 1, v2')
    e('v_add_u32 v6, s53, v6')
    e('v_lshlrev_b32 v6, 1, v6')
    e('v_lshlrev_b32 v7, 7, v3')
    e('s_lshl_b32 s52, s58, 10')
    e('s_add_u32 s52, s52, s56')
    e('v_add_u32 v7, s52, v7')
    e('v_mul_u32_u24 v7, 450, v7')
    e('v_add_u32 v6, v6, v7')
    wtok = {}
    for mtl in range(2):
        for r in range(4):
            e(f's_mov_b32 s52, {(16*mtl+r)*14400}')
            e.vm(f'buffer_load_short_d16_hi v{WR+mtl*4+r}, v6, {SWR}, s52 offen')
            wtok[(mtl, r)] = e.vm(f'buffer_load_short_d16_hi v{WI+mtl*4+r}, v6, {SWI}, s52 offen')
    CO, SI, TH = 160, 176, 192
    groups = w13_dma(e, 0)
    main = []
    em = main.append
    em('s_lshl_b32 s52, s58, 5')
    em('v_add_u32 v8, s52, v2')
    em('v_cvt_f32_u32 v8, v8')
    em(f'v_mul_f32 v8, {lit(1.0/64)}, v8')
    em('v_lshlrev_b32 v9, 2, v3')
    for tt in range(2):
        em(f's_xor_b32 s52, s58, {tt}')
        em('s_lshl_b32 s52, s52, 5')
        em('v_add_u32 v10, s52, v9')
        em('v_cvt_f32_u32 v10, v10')
        em('v_mul_f32 v10, v10, v8')
        for j in range(8):
            cst = 16 * (j >> 2) + (j & 3)
            if cst == 0: em(f'v_mov_b32 v{TH+j}, v10')
            else: em(f'v_fmamk_f32 v{TH+j}, v8, {lit(float(cst))}, v10')
        for j in range(8): em(f'v_cos_f32 v{CO+tt*8+j}, v{TH+j}')
        for j in range(8): em(f'v_sin_f32 v{SI+tt*8+j}, v{TH+j}')
    def rot(kind, t, j, mt):
        qt = (mt * (j & 3)) & 3
        c, s = f'v{CO+t*8+j}', f'v{SI+t*8+j}'
        if kind == 'C': return [c, '-' + s, '-' + c, s][qt]
        if kind == 'S': return [s, c, '-' + s, '-' + c][qt]
        if kind == 'N': return ['-' + s, '-' + c, s, c][qt]
    for kind, base in (('C', FC), ('S', FS), ('N', FN)):
        for mtl in range(2):
            for tt in range(2):
                for i in range(4):
                    em(f'v_cvt_pk_bf16_f32 v{base+(mtl*2+tt)*4+i}, {rot(kind,tt,2*i,mtl)}, {rot(kind,tt,2*i+1,mtl)}')
    emit_interleaved(e, main, groups)
    e('s_mul_i32 s60, s56, 14')
    e('s_add_u32 s60, s60, s57')
    e('s_lshl_b32 s60, s60, 12')
    e(f's_add_u32 s60, s60, 0x{T1_OFF:x}')
    e('v_lshlrev_b32 v11, 8, v3')
    e('v_lshlrev_b32 v10, 2, v2')
    e('v_add_u32 v11, v11, v10')
    stamp(e, 'W1.ready')
    def idx(e):
        e('v_and_b32 v5, 7, v1')
        e('v_lshrrev_b32 v6, 3, v1')
        e('v_lshlrev_b32 v6, 5, v6')
        e('v_add_u32 v5, v5, v6')
        e('s_lshl_b32 s53, s59, 3')
        e('v_add_u32 v5, s53, v5')
        e('v_lshlrev_b32 v5, 6, v5')
    poll(e, 0, 64, idx)
    stamp(e, 'B.go')
    tin = {}
    for tt in range(2):
        e(f's_xor_b32 s52, s58, {tt}')
        e('s_lshl_b32 s52, s52, 11')
        e('s_add_u32 s52, s52, s60')
        for j in range(8):
            off = (16 * (j >> 2) + (j & 3)) * 64
            tin[(tt, j)] = e.vm(f'buffer_load_dword v{TIN+tt*8+j}, v11, {SWS}, s52 offen offset:{off} sc1')
    e('s_mov_b32 s52, 0x05040100')
    e('s_mov_b32 s53, 0x07060302')
    for tt in range(2):
        e.wait_vm(tin[(tt, 7)])
        for i in range(4):
            e(f'v_perm_b32 v{BF+tt*4+i}, v{TIN+tt*8+2*i+1}, v{TIN+tt*8+2*i}, s52')
            e(f'v_perm_b32 v{BF+8+tt*4+i}, v{TIN+tt*8+2*i+1}, v{TIN+tt*8+2*i}, s53')
    stamp(e, 'B.loaded')
    def fr(base, mtl, tt): return vr(base + (mtl * 2 + tt) * 4, 4)
    def mm(d, a, b, first): e(f'v_mfma_f32_16x16x32_bf16 {vr(d,4)}, {a}, {vr(b,4)}, {"0" if first else vr(d,4)}')
    BRE = lambda t: BF + t * 4
    BIM = lambda t: BF + 8 + t * 4
    for step in range(4):
        for mtl in range(2):
            xr, xi = XA + mtl * 8, XA + mtl * 8 + 4
            tt = step & 1
            if step < 2:
                mm(xr, fr(FC, mtl, tt), BRE(tt), step == 0); mm(xi, fr(FN, mtl, tt), BRE(tt), step == 0)
            else:
                mm(xr, fr(FS, mtl, tt), BIM(tt), False); mm(xi, fr(FC, mtl, tt), BIM(tt), False)
    for mtl in range(2):
        for r in range(4):
            xr, xi = XA + mtl * 8 + r, XA + mtl * 8 + 4 + r
            wr, wi = WR + mtl * 4 + r, WI + mtl * 4 + r
            e(f'v_mul_f32 v{YR+mtl*4+r}, v{xr}, v{wr}')
            e(f'v_mul_f32 v{YI+mtl*4+r}, v{xr}, v{wi}')
            e(f'v_fma_f32 v{YR+mtl*4+r}, -v{xi}, v{wi}, v{YR+mtl*4+r}')
            e(f'v_fma_f32 v{YI+mtl*4+r}, v{xi}, v{wr}, v{YI+mtl*4+r}')
    for c, src in ((0, YR), (1, YI)):
        for i in range(4):
            e(f'v_cvt_pk_bf16_f32 v{YF+c*8+i}, v{src+(i>>1)*4+2*(i&1)}, v{src+(i>>1)*4+2*(i&1)+1}')
    e('v_lshlrev_b32 v10, 4, v1')
    e(f's_lshl_b32 s52, s{sW}, 11')
    e('v_add_u32 v12, s52, v10')
    e(f's_xor_b32 s52, s{sW}, 1')
    e('s_lshl_b32 s52, s52, 11')
    e('v_add_u32 v13, s52, v10')
    e.ds(f'ds_write_b128 v12, {vr(YF,4)}')
    e.ds(f'ds_write_b128 v12, {vr(YF+8,4)} offset:1024')
    e.wait_ds_all()
    e.barrier()
    p0 = e.ds(f'ds_read_b128 {vr(YF+4,4)}, v13')
    p1_ = e.ds(f'ds_read_b128 {vr(YF+12,4)}, v13 offset:1024')
    YRE = lambda t: YF + t * 4
    YIM = lambda t: YF + 8 + t * 4
    for mtl in range(2):
        xr, xi = XA + mtl * 8, XA + mtl * 8 + 4
        mm(xr, fr(FC, mtl, 0), YRE(0), True);  mm(xi, fr(FS, mtl, 0), YRE(0), True)
        mm(xr, fr(FN, mtl, 0), YIM(0), False); mm(xi, fr(FC, mtl, 0), YIM(0), False)
    e.wait_ds(p1_)
    for mtl in range(2):
        xr, xi = XA + mtl * 8, XA + mtl * 8 + 4
        mm(xr, fr(FC, mtl, 1), YRE(1), False); mm(xi, fr(FS, mtl, 1), YRE(1), False)
        mm(xr, fr(FN, mtl, 1), YIM(1), False); mm(xi, fr(FC, mtl, 1), YIM(1), False)
    e('s_mov_b32 s52, %d' % (4 * 28672))
    e('v_mul_lo_u32 v4, v3, s52')
    e('v_lshlrev_b32 v5, 2, v2')
    e('v_add_u32 v4, v4, v5')
    e('s_lshl_b32 s52, s57, 11')
    e('s_lshl_b32 s53, s56, 6')
    e('s_add_u32 s52, s52, s53')
    e(f's_mul_i32 s53, s58, {32*28672}')
    e('s_add_u32 s52, s52, s53')
    last = None
    for mtl in range(2):
        for r in range(4): e(f'v_cvt_pk_bf16_f32 v{TIN+mtl*4+r}, v{XA+mtl*8+r}, v{XA+mtl*8+4+r}')
        for r in range(4):
            e(f's_add_u32 s53, s52, {T2_OFF + (16*mtl+r)*28672}')
            last = e.vm(f'buffer_store_dword v{TIN+mtl*4+r}, v4, {SWS}, s53 offen sc1')
    stamp(e, 'B.stored')
    e.wait_vm_all()
    stamp(e, 'B.drained')

def phase_c(e):
    e.c('======== window 2 + phase C')
    e(f's_lshl_b32 s56, s{sGRP}, 2')
    e(f's_add_u32 s56, s56, s{sW}')
    e('s_min_u32 s57, s56, 13')
    G, TC, AIN, VA, PA, XR = 16, 48, 104, 136, 152, 168
    MEAN = XR + 8
    e('v_lshlrev_b32 v5, 6, v2')
    e(f'v_add_u32 v5, s{sB}, v5')
    e('v_mul_u32_u24 v5, 896, v5')
    e('v_lshlrev_b32 v6, 3, v3')
    e('v_add_u32 v5, v5, v6')
    e('s_lshl_b32 s52, s57, 5')
    e('v_add_u32 v5, s52, v5')
    for nt in range(2):
        for pm in range(2):
            e(f's_mov_b32 s52, {nt*16*64*896}')
            e.vm(f'buffer_load_dwordx2 {vr(XR+(nt*2+pm)*2,2)}, v5, {SX}, s52 offen offset:{448*pm}')
    nb = L('now13')
    e('s_cmp_ge_u32 s2, 224')
    e(f's_cbranch_scc1 {nb}')
    w13_trread(e, 0)
    e.wait_ds_all()
    e.label(nb)
    e.barrier()
    stamp(e, 'W2.trread')
    groups = w13_dma(e, 1)
    main = []
    em = main.append
    TH, CO, SI = 180, 188, 196
    cscale = 2.0 / (2048.0 * 448.0)
    em('v_cvt_f32_u32 v7, v3')
    for nt in range(2):
        em(f'v_add_u32 v8, {16*nt}, v2')
        em('v_lshlrev_b32 v8, 6, v8')
        em(f'v_add_u32 v8, s{sB}, v8')
        em('v_cvt_f32_u32 v8, v8')
        em(f'v_mul_f32 v8, {lit(1.0/2048)}, v8')
        em('v_mul_f32 v9, v7, v8')
        for t in range(2):
            for ii in range(4):
                cst = 16 * t + 4 * ii
                if cst == 0: em(f'v_mov_b32 v{TH+t*4+ii}, v9')
                else: em(f'v_fmamk_f32 v{TH+t*4+ii}, v8, {lit(float(cst))}, v9')
        for j in range(8): em(f'v_cos_f32 v{CO+j}, v{TH+j}')
        for j in range(8): em(f'v_sin_f32 v{SI+j}, v{TH+j}')
        for j in range(8): em(f'v_mul_f32 v{CO+j}, {lit(cscale)}, v{CO+j}')
        for j in range(8): em(f'v_mul_f32 v{SI+j}, {lit(cscale)}, v{SI+j}')
        for t in range(2):
            for ii in range(4):
                j = t * 4 + ii
                em(f'v_cvt_pk_bf16_f32 v{G+((0*2+t)*2+nt)*4+ii}, v{CO+j}, -v{SI+j}')
                em(f'v_cvt_pk_bf16_f32 v{G+((1*2+t)*2+nt)*4+ii}, v{SI+j}, v{CO+j}')
    em('s_lshl_b32 s52, s57, 4')
    em('v_add_u32 v8, s52, v2')
    em('v_cvt_f32_u32 v8, v8')
    em(f'v_mul_f32 v8, {lit(1.0/448)}, v8')
    em('v_lshlrev_b32 v9, 3, v3')
    em('v_cvt_f32_u32 v9, v9')
    em('v_mul_f32 v9, v9, v8')
    em('v_cmp_eq_u32 vcc, 3, v3')
    em('v_mov_b32 v10, 1.0')
    em('v_mov_b32 v11, 0.5')
    em('v_cndmask_b32 v10, v10, v11, vcc')
    for kp in range(7):
        for h in range(2):
            for j in range(4):
                cst = 32 * kp + 2 * j + (2 if h == 0 else 1)
                em(f'v_fmamk_f32 v{TH+h*4+j}, v8, {lit(float(cst))}, v9')
        for j in range(8): em(f'v_cos_f32 v{CO+j}, v{TH+j}')
        for j in range(8): em(f'v_sin_f32_e64 v{SI+j}, -v{TH+j}')
        if kp == 6:
            em(f'v_mul_f32 v{CO+3}, v{CO+3}, v10')
            em(f'v_mul_f32 v{SI+3}, v{SI+3}, v10')
        for h, kb in enumerate((kp, kp + 7)):
            em(f'v_cvt_pk_bf16_f32 v{TC+kb*4+0}, v{CO+h*4+0}, v{CO+h*4+1}')
            em(f'v_cvt_pk_bf16_f32 v{TC+kb*4+1}, v{CO+h*4+2}, v{CO+h*4+3}')
            em(f'v_cvt_pk_bf16_f32 v{TC+kb*4+2}, v{SI+h*4+0}, v{SI+h*4+1}')
            em(f'v_cvt_pk_bf16_f32 v{TC+kb*4+3}, v{SI+h*4+2}, v{SI+h*4+3}')
    l1, l2 = L('cg'), L('cg')
    e('s_cmp_ge_u32 s2, 224')
    e(f's_cbranch_scc1 {l1}')
    emit_interleaved(e, main, groups)
    e(f's_branch {l2}')
    e.label(l1)
    for ins in main: e(ins)
    e.label(l2)
    e('v_lshlrev_b32 v12, 2, v1')
    stamp(e, 'W2.ready')
    def idx(e): e('v_lshlrev_b32 v5, 6, v1')
    poll(e, 1, 256, idx)
    stamp(e, 'C.go')
    atok = {}
    for i in range(4):
        e(f's_add_u32 s52, s{sW}, {4*i}')
        e('s_min_u32 s52, s52, 13')
        e(f's_mul_i32 s53, s{sB}, 14')
        e('s_add_u32 s52, s52, s53')
        e('s_lshl_b32 s52, s52, 11')
        e(f's_add_u32 s52, s52, 0x{T2_OFF:x}')
        for t in range(2):
            for ii in range(4):
                atok[(i, t, ii)] = e.vm(f'buffer_load_dword v{AIN+i*8+t*4+ii}, v12, {SWS}, s52 offen offset:{(16*t+4*ii)*64} sc1')
    e('v_lshlrev_b32 v6, 2, v2')
    e(f's_lshl_b32 s52, s{sB}, 7')
    e(f's_add_u32 s52, s52, 0x{ST1_OFF:x}')
    mtok = [e.vm(f'buffer_load_dword v{MEAN+nt}, v6, {SWS}, s52 offen offset:{64*nt} sc1') for nt in range(2)]
    e('v_lshlrev_b32 v11, 4, v1')
    e(f's_lshl_b32 s52, s{sW}, 11')
    e('v_add_u32 v12, s52, v11')
    PK = 204
    for i in range(4):
        e.wait_vm(atok[(i, 1, 3)])
        if i == 0: stamp(e, 'C.loaded')
        for nt in range(2):
            for out in range(2):
                d = VA + (out * 2 + nt) * 4
                e(f'v_mfma_f32_16x16x32_bf16 {vr(d,4)}, {vr(AIN+i*8,4)}, {vr(G+((out*2+0)*2+nt)*4,4)}, 0')
        for nt in range(2):
            for out in range(2):
                d = VA + (out * 2 + nt) * 4
                e(f'v_mfma_f32_16x16x32_bf16 {vr(d,4)}, {vr(AIN+i*8+4,4)}, {vr(G+((out*2+1)*2+nt)*4,4)}, {vr(d,4)}')
        sk = L('skip3')
        if i == 3:
            e(f's_cmp_ge_u32 s{sW}, 2')
            e(f's_cbranch_scc1 {sk}')
        for nt in range(2):
            p = PK + nt * 4 + (i & 1) * 8
            vre, vim = VA + (0 * 2 + nt) * 4, VA + (1 * 2 + nt) * 4
            e(f'v_cvt_pk_bf16_f32 v{p+0}, v{vre+0}, v{vre+1}')
            e(f'v_cvt_pk_bf16_f32 v{p+1}, v{vre+2}, v{vre+3}')
            e(f'v_cvt_pk_bf16_f32 v{p+2}, v{vim+0}, v{vim+1}')
            e(f'v_cvt_pk_bf16_f32 v{p+3}, v{vim+2}, v{vim+3}')
            e.ds(f'ds_write_b128 v12, {vr(p,4)} offset:{(4*i*2+nt)*1024}')
        if i == 3: e.label(sk)
    e.wait_ds_all()
    stamp(e, 'C.st1')
    e.barrier()
    VB = 220
    order = [(kb, nt) for kb in range(14) for nt in range(2)]
    tok = {}
    nread = [0]
    def issue():
        kb, nt = order[nread[0]]
        tok[nread[0]] = e.ds(f'ds_read_b128 {vr(VB+(nread[0]%8)*4,4)}, v11 offset:{(kb*2+nt)*1024}')
        nread[0] += 1
    for _ in range(7): issue()
    for idx_, (kb, nt) in enumerate(order):
        e.wait_ds(tok[idx_])
        par = 0 if kb < 7 else 1
        d = PA + (par * 2 + nt) * 4
        first = kb in (0, 7)
        e(f'v_mfma_f32_16x16x32_bf16 {vr(d,4)}, {vr(TC+kb*4,4)}, {vr(VB+(idx_%8)*4,4)}, {"0" if first else vr(d,4)}')
        if nread[0] < len(order): issue()
    stamp(e, 'C.st2')
    e.wait_vm(mtok[1])
    H, HP, CP, SQ = 104, 120, 128, 180
    e('s_mov_b32 s52, 0xffff0000')
    for nt in range(2):
        pe, po = PA + nt * 4, PA + 8 + nt * 4
        for pm in range(2):
            xr = XR + (nt * 2 + pm) * 2
            for r in range(4):
                hv = H + (nt * 2 + pm) * 4 + r
                e(f'{"v_add_f32" if pm == 0 else "v_sub_f32"} v{hv}, v{pe+r}, v{po+r}')
                xv = 184 + r
                if r & 1: e(f'v_and_b32 v{xv}, s52, v{xr+(r>>1)}')
                else: e(f'v_lshlrev_b32 v{xv}, 16, v{xr+(r>>1)}')
            for r in range(4):
                hv = H + (nt * 2 + pm) * 4 + r
                e(f'v_add_f32 v{hv}, v{hv}, v{184+r}')
            for i in range(2):
                hv = H + (nt * 2 + pm) * 4 + 2 * i
                e(f'v_cvt_pk_bf16_f32 v{HP+nt*4+pm*2+i}, v{hv}, v{hv+1}')
        e(f'v_mov_b32 v{SQ+nt}, 0')
        for q in range(4):
            hp = HP + nt * 4 + q
            e(f'v_lshlrev_b32 v188, 16, v{hp}')
            e(f'v_and_b32 v189, s52, v{hp}')
            e(f'v_sub_f32 v188, v188, v{MEAN+nt}')
            e(f'v_sub_f32 v189, v189, v{MEAN+nt}')
            e(f'v_fma_f32 v{SQ+nt}, v188, v188, v{SQ+nt}')
            e(f'v_fma_f32 v{SQ+nt}, v189, v189, v{SQ+nt}')
            e(f'v_cvt_pk_bf16_f32 v{CP+nt*4+q}, v188, v189')
    e('v_lshrrev_b32 v4, 1, v3')
    e('v_lshlrev_b32 v4, 10, v4')
    e('v_and_b32 v5, 1, v3')
    e('v_lshlrev_b32 v5, 9, v5')
    e('v_add_u32 v4, v4, v5')
    e('v_lshlrev_b32 v5, 4, v2')
    e('v_add_u32 v4, v4, v5')
    e(f's_mul_i32 s52, s{sB}, 28')
    e('s_lshl_b32 s53, s57, 1')
    e('s_add_u32 s52, s52, s53')
    e('s_lshl_b32 s52, s52, 10')
    ns, st = L('cnostore'), L('cstat')
    e('s_cmp_ge_u32 s56, 14')
    e(f's_cbranch_scc1 {ns}')
    e(f's_add_u32 s53, s52, 0x{HC_OFF:x}')
    e(f's_add_u32 s54, s52, 0x{HR_OFF:x}')
    for nt in range(2):
        e(f'buffer_store_dwordx4 {vr(CP+nt*4,4)}, v4, {SWS}, s53 offen offset:{256*nt} sc1')
        e(f'buffer_store_dwordx4 {vr(HP+nt*4,4)}, v4, {SWS}, s54 offen offset:{256*nt} sc1')
    e.label(ns)
    for nt in range(2): xsum_groups(e, SQ + nt, 190)
    e('s_cmp_lt_u32 s56, 14')
    e(f's_cbranch_scc1 {st}')
    e(f'v_mov_b32 v{SQ}, 0')
    e(f'v_mov_b32 v{SQ+1}, 0')
    e.label(st)
    e(f's_lshl_b32 s52, s{sW}, 7')
    e('v_lshlrev_b32 v5, 2, v2')
    e('v_add_u32 v5, s52, v5')
    e.ds(f'ds_write_b32 v5, v{SQ} offset:28672')
    e.ds(f'ds_write_b32 v5, v{SQ+1} offset:28736')
    e.wait_ds_all()
    e.barrier()
    sk = L('st2skip')
    e(f's_cmp_lg_u32 s{sW}, 0')
    e(f's_cbranch_scc1 {sk}')
    e('v_and_b32 v5, 31, v1')
    e('v_lshlrev_b32 v5, 2, v5')
    for w in range(4): e(f'ds_read_b32 v{6+w}, v5 offset:{28672+128*w}')
    e('s_waitcnt lgkmcnt(0)')
    e('v_add_f32 v6, v6, v7')
    e('v_add_f32 v8, v8, v9')
    e('v_add_f32 v6, v6, v8')
    e(f's_lshl_b32 s52, s{sB}, 9')
    e(f's_lshl_b32 s53, s{sGRP}, 2')
    e('s_add_u32 s52, s52, s53')
    e(f's_add_u32 s52, s52, 0x{ST2_OFF:x}')
    e('v_lshlrev_b32 v5, 2, v5')
    e(f'buffer_store_dword v6, v5, {SWS}, s52 offen sc1')
    e.label(sk)
    stamp(e, 'C.stored')
    e.wait_vm_all()
    stamp(e, 'C.drained')
    signal(e, 2)

def w2reg(mi, s_):
    o = 2 * s_ + mi
    if o < 23: return vr(160 + 4 * o, 4), None
    if o < 31: return ar(224 + 4 * (o - 23), 4), None
    oo = o - 31
    return ar(((oo & 1) * 28 + (oo >> 1)) * 4, 4), (oo & 1, oo >> 1)

def phase_g(e):
    e.c('======== window 3 + G1')
    w13_trread(e, 1)
    e.wait_ds_all()
    stamp(e, 'W3.trread')
    e('v_lshlrev_b32 v4, 4, v1')
    e(f's_lshl_b32 s56, s{sC}, 3')
    e(f's_lshl_b32 s52, s{sW}, 1')
    e('s_add_u32 s56, s56, s52')
    e(f's_lshl_b32 s57, s{sR}, 2')
    e('s_and_b32 s58, s2, 7')
    e('s_lshr_b32 s59, s2, 3')
    e('s_mul_i32 s52, s59, 37')
    e('s_lshr_b32 s52, s52, 8')
    e('s_mul_i32 s53, s52, 7')
    e('s_sub_u32 s59, s59, s53')
    e('s_lshl_b32 s52, s52, 3')
    e('s_add_u32 s58, s58, s52')
    e(f's_mul_i32 s52, s{sW}, 28')
    e(f's_and_b32 s54, s{sW}, 1')
    for mi in range(2):
        e(f's_xor_b32 s53, s54, {mi}')
        e('s_lshl_b32 s55, s59, 1')
        e('s_add_u32 s53, s53, s55')
        e('s_mul_i32 s53, s53, 112')
        e('s_add_u32 s53, s53, s52')
        e('s_lshl_b32 s53, s53, 10')
        e(f's_add_u32 s{60+mi}, s53, 0x{W2_OFF:x}')
    def grp_off(dst, g):
        return [f's_add_u32 s{dst}, s59, {g}', f's_cmp_ge_u32 s{dst}, 7', f's_cselect_b32 s55, 7, 0',
                f's_sub_u32 s{dst}, s{dst}, s55', f's_lshl_b32 s{dst}, s{dst}, 12']
    def w2load(o):
        s_, mi = o >> 1, o & 1
        reg, dep = w2reg(mi, s_)
        pre = []
        if s_ % 4 == 0 and mi == 0:
            pre = grp_off(62, s_ // 4) + ['s_add_u32 s63, s61, s62', 's_add_u32 s62, s60, s62']
        return pre + [('vm', f'buffer_load_dwordx4 {reg}, v4, {SWS}, s{62+mi} offen offset:{(s_%4)*1024} sc1')]
    def idx(e):
        e('v_lshrrev_b32 v5, 2, v1')
        e('v_add_u32 v5, s57, v5')
        e('v_and_b32 v6, 7, v5')
        e('v_lshrrev_b32 v5, 3, v5')
        e('v_lshlrev_b32 v5, 5, v5')
        e('v_add_u32 v5, v5, v6')
        e('v_and_b32 v6, 3, v1')
        e('v_lshlrev_b32 v6, 3, v6')
        e('v_add_u32 v5, v5, v6')
        e('v_lshlrev_b32 v5, 6, v5')
    poll(e, 2, 16, idx)
    stamp(e, 'G1.go')
    ACC, BR, RRG, T = 64, 16, 48, 128
    ST = T
    dtok = {}
    e(f's_mul_i32 s88, s{sW}, 7168')
    def hc_groups(nt):
        gs = []
        for i in range(7):
            g = []
            if i == 0:
                g += [f's_add_u32 s89, s57, {nt}', 's_mul_i32 s89, s89, 28672', 's_add_u32 s89, s89, s88', f's_add_u32 s89, s89, 0x{HC_OFF:x}']
            if i == 4: g += ['s_add_u32 s89, s89, 4096']
            if i in (0, 4): g += [f's_add_u32 m0, s88, {nt*28672 + (4096 if i == 4 else 0)}']
            g.append(('vm', f'buffer_load_dwordx4 v4, {SWS}, s89 offen offset:{(i%4)*1024} sc1 lds', ('hc', nt)))
            gs.append(g)
        return gs
    def emit_op(op):
        if isinstance(op, tuple):
            t = e.vm(op[1])
            if len(op) > 2:
                if op[2][0] == 'hc': dtok[op[2][1]] = t
                if op[2][0] == 'st': dtok['st'] = t
            return t
        e(op); return None
    for g in hc_groups(0):
        for op in g: emit_op(op)
    e('v_and_b32 v5, 31, v1')
    e('v_lshlrev_b32 v5, 4, v5')
    e('s_lshl_b32 s54, s57, 9')
    e(f's_add_u32 s54, s54, 0x{ST2_OFF:x}')
    stok = [e.vm(f'buffer_load_dwordx4 {vr(ST+nt*4,4)}, v5, {SWS}, s54 offen offset:{nt*512} sc1') for nt in range(4)]
    e('v_add_u32 v6, 57344, v4')
    e.wait_vm(stok[-1])
    for nt in range(4):
        e(f'v_add_f32 v{ST+nt*4}, v{ST+nt*4}, v{ST+nt*4+1}')
        e(f'v_add_f32 v{ST+nt*4+2}, v{ST+nt*4+2}, v{ST+nt*4+3}')
        e(f'v_add_f32 v{ST+nt*4}, v{ST+nt*4}, v{ST+nt*4+2}')
        e(f'v_mov_b32 v7, {lit(1e-5)}')
        e(f'v_fmamk_f32 v{ST+nt*4}, v{ST+nt*4}, {lit(1.0/448)}, v7')
        e(f'v_rsq_f32 v{ST+nt*4}, v{ST+nt*4}')
        e(f'v_mul_f32 v{RRG+nt}, {lit(-1.4426950408889634)}, v{ST+nt*4}')
        e(f'v_mul_f32 v{RRG+4+nt}, v{ST+nt*4}, v{ST+nt*4}')
    def epi_ops(nt):
        ops = []
        for mi in range(2):
            a = ACC + ((nt & 1) * 2 + mi) * 16
            T0 = T + mi * 16
            for r in range(8): ops.append(f'v_mul_f32 v{T0+r}, v{a+r}, v{RRG+nt}')
            for r in range(8):
                ops.append(f'v_exp_f32 v{T0+r}, v{T0+r}')
                ops.append(f'v_mul_f32 v{T0+8+r}, v{a+r}, v{a+8+r}')
            for r in range(8):
                ops.append(f'v_add_f32 v{T0+r}, 1.0, v{T0+r}')
                ops.append(f'v_mul_f32 v{T0+8+r}, v{T0+8+r}, v{RRG+4+nt}')
            for r in range(8): ops.append(f'v_rcp_f32 v{T0+r}, v{T0+r}')
            for r in range(8): ops.append(f'v_mul_f32 v{T0+8+r}, v{T0+8+r}, v{T0+r}')
            P = 56 + mi * 4
            for i in range(4): ops.append(f'v_cvt_pk_bf16_f32 v{P+i}, v{T0+8+2*i}, v{T0+8+2*i+1}')
            ops.append(f's_add_u32 s53, s57, {nt}')
            ops.append('s_mul_i32 s53, s53, 112')
            ops.append('s_add_u32 s53, s53, s56')
            ops.append(f's_add_u32 s53, s53, {mi}')
            ops.append('s_lshl_b32 s53, s53, 10')
            ops.append(f's_add_u32 s53, s53, 0x{HM_OFF:x}')
            ops.append(('vm', f'buffer_store_dwordx4 {vr(P,4)}, v4, {SWS}, s53 offen sc1', ('store',)))
        return ops
    bg = {0: hc_groups(1) + hc_groups(2), 1: hc_groups(3) + [w2load(o) for o in range(0, 9)],
          2: [w2load(o) for o in range(9, 25)], 3: [w2load(o) for o in range(25, 31)]}
    last_store = None
    next_late = 31
    for nt in range(4):
        e.wait_vm(dtok[nt])
        e.barrier()
        if nt == 0: stamp(e, 'G1.t0')
        fill = epi_ops(nt - 1) if nt > 0 else []
        fi = 0; gi = 0
        btok = {}
        n = [0]
        def issue():
            kap = n[0]
            base = 'v4' if nt < 2 else 'v6'
            off = ((nt & 1) * 28 + kap) * 1024
            btok[kap] = e.ds(f'ds_read_b128 {vr(BR+(kap%8)*4,4)}, {base} offset:{off}')
            n[0] += 1
        for _ in range(5): issue()
        nm = 0
        G_ = bg[nt]
        for kap in range(28):
            e.wait_ds(btok[kap])
            for mi in range(2):
                a = ACC + ((nt & 1) * 2 + mi) * 16
                e(f'v_mfma_f32_32x32x16_bf16 {vr(a,16)}, {ar((mi*28+kap)*4,4)}, {vr(BR+(kap%8)*4,4)}, {"0" if kap == 0 else vr(a,16)}')
                nm += 1
                if mi == 0 and n[0] < 28: issue()
                span = 24 if nt == 3 else 56
                want = (len(G_) * nm + span - 1) // span
                while gi < min(want, len(G_)):
                    for op in G_[gi]: emit_op(op)
                    gi += 1
                if nt == 3 and gi >= len(G_) and nm % 4 == 0 and next_late < 43:
                    dep = w2reg(next_late & 1, next_late >> 1)[1]
                    if dep[1] * 2 + dep[0] < nm:
                        for op in w2load(next_late): emit_op(op)
                        next_late += 1
                if nm > 3:
                    want = (len(fill) * (nm - 3) + 49) // 50
                    while fi < min(want, len(fill)):
                        t = emit_op(fill[fi]); fi += 1
        while fi < len(fill):
            emit_op(fill[fi]); fi += 1
        stamp(e, f'G1.tile{nt}')
    for op in epi_ops(3):
        t = emit_op(op)
        if isinstance(op, tuple): last_store = t
    stamp(e, 'G1.stored')
    while next_late < 56:
        for op in w2load(next_late): emit_op(op)
        next_late += 1
    e.wait_vm(last_store)
    stamp(e, 'G1.drained')
    signal(e, 3)
    e.c('======== G2')
    ACC2, BR2, HRR, NB = 16, 80, 152, 9
    e('s_lshl_b32 s57, s58, 1')
    e(f's_mul_i32 s52, s{sW}, 28')
    e(f's_lshr_b32 s54, s{sW}, 1')
    for ni in range(2):
        e(f's_xor_b32 s53, s54, {ni}')
        e('s_add_u32 s53, s53, s57')
        e('s_mul_i32 s53, s53, 112')
        e('s_add_u32 s53, s53, s52')
        e('s_lshl_b32 s53, s53, 10')
        e(f's_add_u32 s{88+ni}, s53, 0x{HM_OFF:x}')
    e('s_add_u32 s56, s54, s57')
    e('s_mul_i32 s52, s56, 28')
    e(f's_and_b32 s60, s{sW}, 1')
    e('s_lshl_b32 s53, s59, 1')
    e('s_add_u32 s60, s60, s53')
    e('s_lshl_b32 s53, s60, 1')
    e('s_add_u32 s52, s52, s53')
    e('s_lshl_b32 s52, s52, 10')
    e(f's_add_u32 s52, s52, 0x{HR_OFF:x}')
    htok = [e.vm(f'buffer_load_dwordx4 {vr(HRR+4*gg,4)}, v4, {SWS}, s52 offen offset:{1024*gg} sc1') for gg in range(2)]
    def idx4(e):
        e('s_lshr_b32 s53, s58, 1')
        e('s_lshr_b32 s54, s53, 2')
        e('s_and_b32 s53, s53, 3')
        e('s_lshl_b32 s53, s53, 3')
        e('s_add_u32 s53, s53, s54')
        e('v_cmp_le_u32 vcc, 7, v1')
        e('v_mov_b32 v5, 0')
        e('v_mov_b32 v6, 1')
        e('v_cndmask_b32 v5, v5, v6, vcc')
        e('v_mul_u32_u24 v6, 7, v5')
        e('v_sub_u32 v6, v1, v6')
        e('v_lshlrev_b32 v6, 5, v6')
        e('v_lshlrev_b32 v5, 2, v5')
        e('v_add_u32 v5, v5, v6')
        e('v_add_u32 v5, s53, v5')
        e('v_lshlrev_b32 v5, 6, v5')
    poll(e, 3, 14, idx4)
    stamp(e, 'G2.go')
    tok = {}
    nl = [0]
    def issue2():
        i = nl[0]
        if i % 4 == 0:
            for op in grp_off(62, i // 4): e(op)
            e('s_add_u32 s63, s89, s62')
            e('s_add_u32 s62, s88, s62')
        o = (i % 4) * 1024
        slot = i % NB
        e.vm(f'buffer_load_dwordx4 {vr(BR2+slot*8,4)}, v4, {SWS}, s62 offen offset:{o} sc1')
        tok[i] = e.vm(f'buffer_load_dwordx4 {vr(BR2+slot*8+4,4)}, v4, {SWS}, s63 offen offset:{o} sc1')
        nl[0] += 1
    for _ in range(NB): issue2()
    for i in range(28):
        e.wait_vm(tok[i])
        if i == 0: stamp(e, 'G2.first')
        slot = i % NB
        for mi in range(2):
            for ni in range(2):
                a = ACC2 + (mi * 2 + ni) * 16
                e(f'v_mfma_f32_32x32x16_bf16 {vr(a,16)}, {w2reg(mi,i)[0]}, {vr(BR2+slot*8+ni*4,4)}, {"0" if i == 0 else vr(a,16)}')
        if nl[0] < 28: issue2()
    stamp(e, 'G2.mfma')
    for k, (mi, ni) in enumerate(((1, 0), (0, 1), (1, 1))):
        e(f's_xor_b32 s52, s{sW}, {k+1}')
        e('s_mul_i32 s52, s52, 12288')
        e(f'v_add_u32 v{5+k}, s52, v4')
    for k, (mi, ni) in enumerate(((1, 0), (0, 1), (1, 1))):
        a = ACC2 + (mi * 2 + ni) * 16
        for qd in range(4):
            e.ds(f'ds_write_b128 v{5+k}, {vr(a+qd*4,4)} offset:{k*4096 + qd*1024}')
    e.wait_ds_all()
    e.barrier()
    e(f's_mul_i32 s52, s{sW}, 12288')
    e('v_add_u32 v5, s52, v4')
    R0 = 80
    for k in range(3):
        for qd in range(4):
            e.ds(f'ds_read_b128 {vr(R0+k*16+qd*4,4)}, v5 offset:{k*4096 + qd*1024}')
    e.wait_ds_all()
    stamp(e, 'G2.red')
    for r in range(16):
        e(f'v_add_f32 v{R0+r}, v{R0+r}, v{R0+16+r}')
        e(f'v_add_f32 v{R0+32+r}, v{R0+32+r}, v{ACC2+r}')
    for r in range(16): e(f'v_add_f32 v{R0+r}, v{R0+r}, v{R0+32+r}')
    e('s_mov_b32 s52, 0xffff0000')
    PK = 32
    for i in range(8): e(f'v_cvt_pk_bf16_f32 v{PK+i}, v{R0+2*i}, v{R0+2*i+1}')
    for i in range(8):
        e(f'v_lshlrev_b32 v48, 16, v{PK+i}')
        e(f'v_and_b32 v49, s52, v{PK+i}')
        e(f'v_lshlrev_b32 v50, 16, v{HRR+i}')
        e(f'v_and_b32 v51, s52, v{HRR+i}')
        e('v_add_f32 v48, v48, v50')
        e('v_add_f32 v49, v49, v51')
        dst = {0: 40, 1: 41, 4: 42, 5: 43, 2: 44, 3: 45, 6: 46, 7: 47}[i]
        e(f'v_cvt_pk_bf16_f32 v{dst}, v48, v49')
    e('v_permlane32_swap_b32 v40, v42')
    e('v_permlane32_swap_b32 v41, v43')
    e('v_permlane32_swap_b32 v44, v46')
    e('v_permlane32_swap_b32 v45, v47')
    e('v_and_b32 v5, 31, v1')
    e('v_lshlrev_b32 v5, 6, v5')
    e('v_add_u32 v5, s56, v5')
    e('v_mul_u32_u24 v5, 896, v5')
    e('v_lshrrev_b32 v6, 5, v1')
    e('v_lshlrev_b32 v6, 4, v6')
    e('v_add_u32 v5, v5, v6')
    e('s_lshl_b32 s52, s60, 5')
    e(f'buffer_store_dwordx4 v[40:43], v5, {SOUT}, s52 offen')
    e(f'buffer_store_dwordx4 v[44:47], v5, {SOUT}, s52 offen offset:448')
    stamp(e, 'G2.end')

def diag_dump(e):
    if not DIAG: return
    e.wait_vm_all()
    rstamp(e, 'rt_end')
    sk = L('dd')
    e(f's_cmp_lg_u32 s{sW}, 0')
    e(f's_cbranch_scc1 {sk}')
    e('s_lshl_b32 s52, s2, 8')
    e(f's_add_u32 s52, s52, 0x{DIAG_OFF:x}')
    e('v_lshlrev_b32 v4, 2, v1')
    e(f'buffer_store_dword v255, v4, {SWS}, s52 offen')
    e.label(sk)

def kernel():
    e = Emit()
    e.label(KN)
    e('s_cmp_ge_u32 s2, 256')
    e('s_cbranch_scc1 L_end')
    e('s_load_dwordx16 s[64:79], s[0:1], 0')
    e('s_load_dwordx4 s[80:83], s[0:1], 64')
    e('s_memrealtime s[86:87]')
    if DIAG: e('v_mov_b32 v255, 0')
    e('v_lshrrev_b32 v4, 6, v0')
    e('v_and_b32 v1, 63, v0')
    e(f'v_readfirstlane_b32 s{sW}, v4')
    e('v_and_b32 v2, 15, v0')
    e('v_bfe_u32 v3, v0, 4, 2')
    e(f's_and_b32 s{sB}, s2, 7')
    e('s_lshr_b32 s52, s2, 5')
    e('s_lshl_b32 s52, s52, 3')
    e(f's_add_u32 s{sB}, s{sB}, s52')
    e(f's_lshr_b32 s{sGRP}, s2, 3')
    e(f's_and_b32 s{sGRP}, s{sGRP}, 3')
    e(f's_and_b32 s{sR}, s2, 3')
    e(f's_lshl_b32 s{sR}, s{sR}, 2')
    e('s_lshr_b32 s52, s2, 3')
    e('s_and_b32 s53, s52, 3')
    e(f's_add_u32 s{sR}, s{sR}, s53')
    e(f's_bfe_u32 s{sC}, s2, 0x10002')
    e(f's_mul_i32 s{sC}, s{sC}, 7')
    e('s_lshr_b32 s52, s52, 2')
    e(f's_add_u32 s{sC}, s{sC}, s52')
    e(f's_getreg_b32 s{sREP}, hwreg(HW_REG_XCC_ID, 0, 3)')
    e(f's_lshl_b32 s{sREP}, s{sREP}, 14')
    e(f's_mov_b32 s{sNONCE}, 0')
    e('s_waitcnt lgkmcnt(0)')
    srd(e, S_X, 64, 1835008)
    srd(e, S_WS, 82, WS_SIZE)
    srd(e, S_WR, 66, 2048 * 450)
    srd(e, S_WI, 68, 2048 * 450)
    srd(e, S_W1, 72, 448 * 3584)
    srd(e, S_W3, 74, 448 * 3584)
    srd(e, S_W2, 76, 1792 * 896)
    srd(e, S_OUT, 78, 1835008)
    srd(e, S_DBG, 80, 256)
    if DIAG:
        STAMPS.append('rt_start'); _stamp_n[0] += 1
        e('v_writelane_b32 v255, s86, 0')
    stamp(e, 'start')
    sk = L('nononce')
    e(f's_or_b32 s52, s2, s{sW}')
    e('s_cmp_lg_u32 s52, 0')
    e(f's_cbranch_scc1 {sk}')
    e('s_or_b32 s52, s86, 1')
    e('v_mov_b32 v4, s52')
    e('v_mov_b32 v5, 0')
    e('s_mov_b64 exec, 1')
    e(f'buffer_store_dword v4, v5, {SDBG}, 0 offen sc1')
    e('s_mov_b64 exec, -1')
    e.label(sk)
    phase_a(e)
    p2l, joinl = L('p2'), L('join')
    e('s_cmp_ge_u32 s2, 224')
    e(f's_cbranch_scc1 {p2l}')
    sv_ds = (e.ds_issued, e.ds_done)
    phase_b(e)
    e(f's_branch {joinl}')
    e.label(p2l)
    nstamp = _stamp_n[0]
    phase_p2(e)
    e.label(joinl)
    signal(e, 1)
    e.vm_issued = 0; e.vm_done = 0
    phase_c(e)
    e('s_cmp_ge_u32 s2, 224')
    e('s_cbranch_scc1 L_fin')
    phase_g(e)
    e.label('L_fin')
    diag_dump(e)
    e.label('L_end')
    e('s_endpgm')
    return e.out

def build():
    hdr = open('cdna_kernels/' + NAME + '.s.ref').read().split('; Override launch')[0]
    body = kernel()
    body, nn = hazard_pass(body)
    print(f'; {len(body)} lines, {nn} nops inserted', file=sys.stderr)
    lines = [hdr.rstrip('\n'),
             f'; @launch grid=(256,1,1) block=(256,1,1) lds={LDS_BYTES}',
             '.amdgcn_target "amdgcn-amd-amdhsa--gfx950"', '.text', f'.globl {KN}', '.p2align 8', f'.type {KN},@function']
    for ln in body: lines.append(ln if ln.endswith(':') else '    ' + ln)
    lines += ['.section .rodata,"a"', '.p2align 6', f'.amdhsa_kernel {KN}',
              '  .amdhsa_next_free_vgpr 512', '  .amdhsa_next_free_sgpr 96', '  .amdhsa_accum_offset 256',
              '  .amdhsa_group_segment_fixed_size 0', '  .amdhsa_kernarg_size 80', '  .amdhsa_user_sgpr_count 2',
              '  .amdhsa_user_sgpr_kernarg_segment_ptr 1', '  .amdhsa_system_sgpr_workgroup_id_x 1',
              '  .amdhsa_float_denorm_mode_32 3', '.end_amdhsa_kernel']
    return '\n'.join(lines) + '\n'

if __name__ == '__main__':
    if '--diag' in sys.argv:
        DIAG = True; sys.argv.remove('--diag')
    out = sys.argv[1] if len(sys.argv) > 1 else 'cdna_kernels/' + NAME + '.s'
    open(out, 'w').write(build())
    if DIAG:
        import json; json.dump(STAMPS, open(out + '.stamps.json', 'w'))
    print('written', out, file=sys.stderr)
```

```python
import sys, struct
from asmlib import Emit, hazard_pass

NAME = "sequential_preLN__spectral_gfnet__glu_gated_swiglu__prompt"
KN = NAME + "_kernel"

T1_OFF  = 0x000000
T2_OFF  = 0x200000
HC_OFF  = 0x400000
HR_OFF  = 0x600000
ST1_OFF = 0x800000
ST2_OFF = 0x810000
W2_OFF  = 0xD00000
HM_OFF  = 0x1000000
FL_OFF  = 0x1800000
DIAG_OFF = 0x1A00000
WS_SIZE = 0x1C00000
LDS_STAGE = 32768
LDS_BYTES = LDS_STAGE + 114688
MAXSPIN = 100000

DIAG = False
def f2u(x): return struct.unpack('<I', struct.pack('<f', x))[0]
def lit(x): return '0x%08x' % f2u(x)
def vr(a, n=1): return f'v{a}' if n == 1 else f'v[{a}:{a+n-1}]'
def ar(a, n=1): return f'a{a}' if n == 1 else f'a[{a}:{a+n-1}]'

S_X, S_WS, S_WR, S_WI, S_W1, S_W3, S_W2, S_OUT, S_DBG = 8, 12, 16, 20, 24, 28, 32, 36, 40
SX, SWS, SWR, SWI, SW1, SW3, SW2, SOUT, SDBG = [f's[{a}:{a+3}]' for a in (8, 12, 16, 20, 24, 28, 32, 36, 40)]
sW, sB, sGRP, sNONCE, sREP = 44, 45, 46, 47, 48
sR, sC, sSPIN = 49, 50, 51

def srd(e, d, ptr, size):
    e(f's_mov_b32 s{d}, s{ptr}')
    e(f's_and_b32 s{d+1}, s{ptr+1}, 0xffff')
    e(f's_mov_b32 s{d+2}, 0x{size:x}')
    e(f's_mov_b32 s{d+3}, 0x20000')

_stamp_n = [0]
STAMPS = []
def stamp(e, name):
    if not DIAG: return
    i = _stamp_n[0]; _stamp_n[0] += 1; STAMPS.append(name)
    e('s_memtime s[84:85]')
    e('s_waitcnt lgkmcnt(0)')
    e(f'v_writelane_b32 v255, s84, {i}')
def rstamp(e, name):
    if not DIAG: return
    i = _stamp_n[0]; _stamp_n[0] += 1; STAMPS.append(name)
    e('s_memrealtime s[84:85]')
    e('s_waitcnt lgkmcnt(0)')
    e(f'v_writelane_b32 v255, s84, {i}')

def xsum_groups(e, v, tmp):
    e(f'v_mov_b32 v{tmp}, v{v}')
    e(f'v_permlane32_swap_b32 v{tmp}, v{v}')
    e(f'v_add_f32 v{v}, v{v}, v{tmp}')
    e(f'v_mov_b32 v{tmp}, v{v}')
    e(f'v_permlane16_swap_b32 v{tmp}, v{v}')
    e(f'v_add_f32 v{v}, v{v}, v{tmp}')

_lab = [0]
def L(p):
    _lab[0] += 1
    return f'L{p}_{_lab[0]}'

def signal(e, sync):
    e.barrier()
    skip = L('sig')
    e(f's_cmp_lg_u32 s{sW}, 0')
    e(f's_cbranch_scc1 {skip}')
    e(f's_lshl_b32 s52, s2, 6')
    e(f's_add_u32 s52, s52, 0x{FL_OFF + sync*0x40000:x}')
    e(f'v_mov_b32 v14, s{sNONCE}')
    e('v_lshlrev_b32 v15, 14, v1')
    e('s_mov_b64 exec, 0xff')
    e(f'buffer_store_dword v14, v15, {SWS}, s52 offen sc1')
    e('s_mov_b64 exec, -1')
    e.label(skip)

def poll(e, sync, nflags, idx_code):
    skip = L('pollskip'); loop = L('poll'); done = L('polldone')
    e(f's_cmp_lg_u32 s{sW}, 0')
    e(f's_cbranch_scc1 {skip}')
    idx_code(e)
    e(f's_add_u32 s52, s{sREP}, 0x{FL_OFF + sync*0x40000:x}')
    e(f's_mov_b32 s{sSPIN}, 0')
    if nflags < 64: e(f's_mov_b64 exec, 0x{(1 << nflags) - 1:x}')
    e.label(loop)
    nl = max(1, nflags // 64)
    for i in range(nl):
        if i: e(f's_add_u32 s53, s52, {i*64*64}')
        e(f'buffer_load_dword v{6+i}, v5, {SWS}, {"s53" if i else "s52"} offen sc1')
    e('s_waitcnt vmcnt(0)')
    for i in range(nl): e(f'v_xor_b32 v{6+i}, s{sNONCE}, v{6+i}')
    if nl == 4:
        e('v_or_b32 v6, v6, v7'); e('v_or_b32 v8, v8, v9'); e('v_or_b32 v6, v6, v8')
    e('v_cmp_ne_u32 vcc, 0, v6')
    e('s_nop 4')
    e(f's_cbranch_vccz {done}')
    e(f's_add_u32 s{sSPIN}, s{sSPIN}, 1')
    e(f's_cmp_lt_u32 s{sSPIN}, {MAXSPIN}')
    e(f's_cbranch_scc1 {loop}')
    e.label(done)
    e('s_mov_b64 exec, -1')
    e.label(skip)
    e.barrier()

def w13_dma(e, half):
    e('v_lshlrev_b32 v4, 1, v3')
    e('v_xor_b32 v4, v4, v2')
    e('v_xor_b32 v5, 8, v4')
    e('v_lshlrev_b32 v4, 4, v4')
    e('v_lshlrev_b32 v5, 4, v5')
    e('v_mul_u32_u24 v6, 3584, v3')
    e('v_add_u32 v4, v4, v6')
    e('v_add_u32 v5, v5, v6')
    e(f's_lshl_b32 s52, s{sC}, 8')
    toks = []
    e(f's_mul_i32 s53, s{sW}, 56')
    e(f's_cmp_ge_u32 s{sW}, 2')
    e('s_cselect_b32 s54, 112, 0')
    e('s_add_u32 s53, s53, s54')
    e(f's_add_u32 s53, s53, {112*half}')
    e('s_mul_i32 s53, s53, 3584')
    e('s_add_u32 s53, s53, s52')
    e(f's_mul_i32 s54, s{sW}, 14336')
    e(f's_add_u32 s54, s54, {LDS_STAGE}')
    e('v_mov_b32 v14, v4')
    e('v_mov_b32 v15, v5')
    e('s_mov_b32 s88, s53')
    e('s_mov_b32 s89, s54')
    groups = []
    for mat in range(2):
        for ii in range(14):
            groups.append([f's_add_u32 m0, s89, {mat*57344 + ii*1024}', f's_add_u32 s90, s88, {ii*4*3584}',
                           ('vm', f'buffer_load_dwordx4 v{14+mat}, {SW1 if mat == 0 else SW3}, s90 offen lds')])
    return groups

def emit_interleaved(e, main, groups, start=0):
    n, m = len(main), len(groups)
    gi = 0; last = None
    for k, ins in enumerate(main):
        e(ins)
        if k >= start:
            want = ((k - start + 1) * m) // max(1, n - start)
            while gi < want:
                for op in groups[gi]:
                    if isinstance(op, tuple): last = e.vm(op[1])
                    else: e(op)
                gi += 1
    while gi < m:
        for op in groups[gi]:
            if isinstance(op, tuple): last = e.vm(op[1])
            else: e(op)
        gi += 1
    return last

def w13_trread(e, half):
    e('v_and_b32 v4, 1, v3')
    e('v_lshrrev_b32 v5, 1, v3')
    e('v_lshrrev_b32 v6, 2, v2')
    e('v_and_b32 v7, 3, v2')
    e('v_mul_u32_u24 v8, 57344, v4')
    e('v_lshlrev_b32 v9, 2, v5')
    e('v_add_u32 v9, v9, v6')
    e('v_lshlrev_b32 v9, 8, v9')
    e('v_add_u32 v8, v8, v9')
    e('v_and_b32 v9, 1, v7')
    e('v_lshlrev_b32 v9, 3, v9')
    e('v_add_u32 v8, v8, v9')
    e(f'v_add_u32 v8, {LDS_STAGE}, v8')
    e('v_lshrrev_b32 v7, 1, v7')
    e(f's_lshl_b32 s52, s{sW}, 2')
    e('v_add_u32 v7, s52, v7')
    e('v_lshlrev_b32 v6, 1, v6')
    e('v_lshlrev_b32 v4, 3, v4')
    e('v_xor_b32 v6, v6, v4')
    for mi in range(2):
        e(f'v_add_u32 v9, {2*mi}, v7')
        e('v_xor_b32 v9, v9, v6')
        e('v_lshlrev_b32 v9, 4, v9')
        e(f'v_add_u32 v{10+mi}, v8, v9')
    for mi in range(2):
        for jl in range(7):
            for gg in range(2):
                kap = 14 * half + 2 * jl + gg
                a = (mi * 28 + kap) * 4
                off = (16 * jl + 8 * gg) * 256
                e.ds(f'ds_read_b64_tr_b16 {ar(a,2)}, v{10+mi} offset:{off}')
                e.ds(f'ds_read_b64_tr_b16 {ar(a+2,2)}, v{10+mi} offset:{off + 112*256}')

def phase_a(e):
    e.c('======== phase A')
    e(f's_lshl_b32 s56, s{sGRP}, 2')
    e(f's_add_u32 s56, s56, s{sW}')
    e('s_min_u32 s57, s56, 13')
    e(f's_lshr_b32 s52, s{sW}, 1')
    e('s_lshl_b32 s52, s52, 10')
    e(f's_add_u32 s52, s52, s{sB}')
    e('v_lshlrev_b32 v4, 6, v2')
    e('v_add_u32 v4, s52, v4')
    e('v_mul_u32_u24 v4, 896, v4')
    e('v_lshlrev_b32 v5, 4, v3')
    e('v_add_u32 v4, v4, v5')
    e(f's_and_b32 s52, s{sW}, 1')
    e('s_mul_i32 s52, s52, 448')
    e('v_add_u32 v4, s52, v4')
    TA, FP, ACC, X = 16, 72, 96, 128
    xs_tok = [e.vm(f'buffer_load_dwordx4 {vr(X+4*i,4)}, v4, {SX}, 0 offen offset:{64*i}') for i in range(7)]
    stamp(e, 'A.issued')
    e('s_cmp_lt_u32 s57, 7')
    e('s_cselect_b32 s52, 2, 1')
    e('s_cselect_b32 s53, 0, 7')
    e('s_sub_u32 s53, s57, s53')
    e('s_lshl_b32 s53, s53, 5')
    e('s_add_u32 s53, s53, s52')
    e('s_cmp_lt_u32 s57, 7')
    e(f's_cselect_b32 s58, {lit(1.0)}, {lit(-1.0)}')
    e('v_lshlrev_b32 v5, 1, v2')
    e('v_add_u32 v5, s53, v5')
    e('v_cvt_f32_u32 v5, v5')
    e(f'v_mul_f32 v5, {lit(1.0/448)}, v5')
    e('v_lshlrev_b32 v6, 3, v3')
    e('v_cvt_f32_u32 v6, v6')
    e('v_mul_f32 v6, v6, v5')
    TH, CO, SI = ACC, ACC + 8, ACC + 16
    for t in range(7):
        for j in range(8):
            cst = 32 * t + j
            if cst == 0: e(f'v_mov_b32 v{TH+j}, v6')
            else: e(f'v_fmamk_f32 v{TH+j}, v5, {lit(float(cst))}, v6')
        for j in range(8): e(f'v_cos_f32 v{CO+j}, v{TH+j}')
        for j in range(8): e(f'v_sin_f32_e64 v{SI+j}, -v{TH+j}')
        for i in range(4): e(f'v_cvt_pk_bf16_f32 v{TA+(t*2+0)*4+i}, v{CO+2*i}, v{CO+2*i+1}')
        for i in range(4): e(f'v_cvt_pk_bf16_f32 v{TA+(t*2+1)*4+i}, v{SI+2*i}, v{SI+2*i+1}')
    e('s_mov_b32 s52, 0x80008000')
    e(f'v_cvt_f32_u32 v7, s{sB}')
    e(f'v_mul_f32 v7, {lit(1.0/64)}, v7')
    e('v_lshlrev_b32 v8, 2, v3')
    e('v_cvt_f32_u32 v8, v8')
    e('v_add_f32 v8, v8, v7')
    for mt in range(2):
        e(f'v_add_u32 v9, {16*mt}, v2')
        e('v_cvt_f32_u32 v9, v9')
        e(f'v_mul_f32 v9, {lit(1.0/32)}, v9')
        e('v_mul_f32 v10, v9, v8')
        for j in range(8):
            cst = 16 * (j >> 2) + (j & 3)
            if cst == 0: e(f'v_mov_b32 v{TH+j}, v10')
            else: e(f'v_fmamk_f32 v{TH+j}, v9, {lit(float(cst))}, v10')
        for j in range(8): e(f'v_cos_f32 v{CO+j}, v{TH+j}')
        for j in range(8): e(f'v_sin_f32 v{SI+j}, v{TH+j}')
        for i in range(4): e(f'v_cvt_pk_bf16_f32 v{FP+mt*12+i}, v{CO+2*i}, v{CO+2*i+1}')
        for i in range(4): e(f'v_cvt_pk_bf16_f32 v{FP+mt*12+4+i}, v{SI+2*i}, v{SI+2*i+1}')
        for i in range(4): e(f'v_xor_b32 v{FP+mt*12+8+i}, s52, v{FP+mt*12+4+i}')
    stamp(e, 'A.constgen')
    e(f's_mul_i32 s52, s{sW}, 7168')
    e('v_lshlrev_b32 v11, 4, v1')
    e('v_add_u32 v4, s52, v11')
    e('v_mov_b32 v5, 0')
    e('v_mov_b32 v6, 0')
    e('s_mov_b32 s52, 0x3f803f80')
    for i in range(7):
        e.wait_vm(xs_tok[i])
        e.ds(f'ds_write_b128 v4, {vr(X+4*i,4)} offset:{1024*i}')
        for d in range(4):
            e(f'v_dot2_f32_bf16 v5, v{X+4*i+d}, s52, v5')
            e(f'v_dot2_f32_bf16 v6, v{X+4*i+d}, v{X+4*i+d}, v6')
    xsum_groups(e, 5, 7)
    xsum_groups(e, 6, 8)
    e(f's_lshl_b32 s52, s{sW}, 7')
    e('v_lshlrev_b32 v7, 3, v2')
    e('v_add_u32 v7, s52, v7')
    e('v_mov_b32 v8, v5')
    e('v_mov_b32 v9, v6')
    e.ds('ds_write_b64 v7, v[8:9] offset:28672')
    e.wait_ds_all()
    stamp(e, 'A.xstaged')
    e.barrier()
    e('s_lshl_b32 s52, s2, 12')
    e('v_lshlrev_b32 v12, 4, v0')
    e('v_add_u32 v12, s52, v12')
    for sr_ in (SW1, SW3, SWR, SWI, SW2):
        e.vm(f'buffer_load_dwordx4 v[248:251], v12, {sr_}, 0 offen')
    e('s_mov_b32 s52, 0x100000')
    for sr_ in (SW1, SW3, SW2):
        e.vm(f'buffer_load_dwordx4 v[248:251], v12, {sr_}, s52 offen')
    e('v_mov_b32 v12, 0')
    nonce_tok = e.vm(f'buffer_load_dword v13, v12, {SDBG}, 0 offen sc1')
    e('v_and_b32 v4, 31, v1')
    e('v_lshrrev_b32 v5, 4, v4')
    e('v_lshlrev_b32 v5, 8, v5')
    e('v_lshlrev_b32 v6, 3, v2')
    e('v_add_u32 v5, v5, v6')
    t0 = e.ds('ds_read_b64 v[6:7], v5 offset:28672')
    t1 = e.ds('ds_read_b64 v[8:9], v5 offset:28800')
    xt = {}
    order = [(half, t, mt) for half in range(2) for t in range(7) for mt in range(2)]
    def xreg(mt, tt): return X + (mt * 14 + tt) * 4
    nread = [0]
    def issue_x():
        half, t, mt = order[nread[0]]
        tt = t + 7 * half
        xt[(half, t, mt)] = e.ds(f'ds_read_b128 {vr(xreg(mt,tt),4)}, v11 offset:{(mt*14+tt)*1024}')
        nread[0] += 1
    for _ in range(8): issue_x()
    e.wait_ds(t1)
    e('v_add_f32 v6, v6, v8')
    e('v_add_f32 v7, v7, v9')
    e(f'v_mul_f32 v6, {lit(1.0/448)}, v6')
    e(f'v_mul_f32 v7, {lit(1.0/448)}, v7')
    e('v_fma_f32 v7, -v6, v6, v7')
    e('v_max_f32 v7, 0, v7')
    e(f'v_add_f32 v7, {lit(1e-5)}, v7')
    e('v_rsq_f32 v7, v7')
    e(f's_lshl_b32 s52, s{sW}, 7')
    e('v_lshlrev_b32 v8, 2, v4')
    e('v_add_u32 v9, s52, v8')
    e.ds('ds_write_b32 v9, v7 offset:29184')
    nm = L('nomean')
    e(f's_or_b32 s52, s{sGRP}, s{sW}')
    e('s_cmp_lg_u32 s52, 0')
    e(f's_cbranch_scc1 {nm}')
    e(f's_lshl_b32 s52, s{sB}, 7')
    e(f's_add_u32 s52, s52, 0x{ST1_OFF:x}')
    e(f'buffer_store_dword v6, v8, {SWS}, s52 offen sc1')
    e.label(nm)
    e(f's_lshl_b32 s52, s{sW}, 7')
    e('v_lshlrev_b32 v9, 4, v3')
    e('v_add_u32 v9, s52, v9')
    RR = 240
    tr0 = e.ds(f'ds_read_b128 {vr(RR,4)}, v9 offset:29184')
    tr1 = e.ds(f'ds_read_b128 {vr(RR+4,4)}, v9 offset:29248')
    def acc(mt, c, half): return ACC + ((mt * 2 + c) * 2 + half) * 4
    for (half, t, mt) in order:
        if nread[0] < len(order): issue_x()
        e.wait_ds(xt[(half, t, mt)])
        tt = t + 7 * half
        for c in range(2):
            a = acc(mt, c, half)
            e(f'v_mfma_f32_16x16x32_bf16 {vr(a,4)}, {vr(xreg(mt,tt),4)}, {vr(TA+(t*2+c)*4,4)}, {"0" if t == 0 else vr(a,4)}')
    e.wait_ds(tr1)
    stamp(e, 'A.mfma')
    BF = X; TMP = X + 8
    for c in range(2):
        for mt in range(2):
            for r in range(4): e(f'v_fma_f32 v{TMP+mt*4+r}, v{acc(mt,c,1)+r}, s58, v{acc(mt,c,0)+r}')
            for r in range(4): e(f'v_mul_f32 v{TMP+mt*4+r}, v{TMP+mt*4+r}, v{RR+mt*4+r}')
        for mt in range(2):
            for i in range(2):
                e(f'v_cvt_pk_bf16_f32 v{BF+c*4+mt*2+i}, v{TMP+mt*4+2*i}, v{TMP+mt*4+2*i+1}')
    TT = X + 16
    for mt in range(2):
        C, Sp, Sn = FP + mt * 12, FP + mt * 12 + 4, FP + mt * 12 + 8
        e(f'v_mfma_f32_16x16x32_bf16 {vr(TT+mt*8,4)}, {vr(C,4)}, {vr(BF,4)}, 0')
        e(f'v_mfma_f32_16x16x32_bf16 {vr(TT+mt*8+4,4)}, {vr(Sn,4)}, {vr(BF,4)}, 0')
        e(f'v_mfma_f32_16x16x32_bf16 {vr(TT+mt*8,4)}, {vr(Sp,4)}, {vr(BF+4,4)}, {vr(TT+mt*8,4)}')
        e(f'v_mfma_f32_16x16x32_bf16 {vr(TT+mt*8+4,4)}, {vr(C,4)}, {vr(BF+4,4)}, {vr(TT+mt*8+4,4)}')
    e('s_mov_b32 s52, %d' % (4 * 57344))
    e('v_mul_lo_u32 v4, v3, s52')
    e('v_lshlrev_b32 v5, 2, v2')
    e('v_add_u32 v4, v4, v5')
    e('s_lshl_b32 s52, s56, 12')
    e(f's_lshl_b32 s53, s{sB}, 6')
    e('s_add_u32 s52, s52, s53')
    OUT = X + 40
    for mt in range(2):
        for r in range(4): e(f'v_cvt_pk_bf16_f32 v{OUT+mt*4+r}, v{TT+mt*8+r}, v{TT+mt*8+4+r}')
    ns = L('nostoreA')
    e('s_cmp_ge_u32 s56, 14')
    e(f's_cbranch_scc1 {ns}')
    for mt in range(2):
        for r in range(4):
            e(f's_add_u32 s53, s52, {T1_OFF + (16*mt+r)*57344}')
            e(f'buffer_store_dword v{OUT+mt*4+r}, v4, {SWS}, s53 offen sc1')
    e.label(ns)
    stamp(e, 'A.stored')
    e.wait_vm_all()
    sk, lp, dn = L('nsk'), L('nlp'), L('ndn')
    e(f's_cmp_lg_u32 s{sW}, 0')
    e(f's_cbranch_scc1 {sk}')
    e(f's_mov_b32 s{sSPIN}, 0')
    e.label(lp)
    e(f'v_readfirstlane_b32 s{sNONCE}, v13')
    e('s_nop 1')
    e(f's_cmp_lg_u32 s{sNONCE}, 0')
    e(f's_cbranch_scc1 {dn}')
    e(f'buffer_load_dword v13, v12, {SDBG}, 0 offen sc1')
    e('s_waitcnt vmcnt(0)')
    e(f's_add_u32 s{sSPIN}, s{sSPIN}, 1')
    e(f's_cmp_lt_u32 s{sSPIN}, {MAXSPIN}')
    e(f's_cbranch_scc1 {lp}')
    e.label(dn)
    e.label(sk)
    stamp(e, 'A.drained')
    signal(e, 0)

def phase_p2(e):
    e.c('======== P2 (w2 re-layout)')
    done = L('p2done')
    e('s_cmp_ge_u32 s2, 252')
    e(f's_cbranch_scc1 {done}')
    e('s_sub_u32 s56, s2, 224')
    e.vm_issued = e.vm_done = 0
    e('s_mul_i32 s52, s56, 57344')
    e('v_lshlrev_b32 v4, 4, v0')
    toks = []
    for i in range(14):
        e(f's_add_u32 s53, s52, {i*4096}')
        toks.append(e.vm(f'buffer_load_dwordx4 {vr(16+4*i,4)}, v4, {SW2}, s53 offen'))
    for i in range(14):
        e(f'v_add_u32 v5, {i*256}, v0')
        e('v_mul_u32_u24 v6, 18725, v5')
        e('v_lshrrev_b32 v6, 20, v6')
        e('v_lshlrev_b32 v6, 5, v6')
        e('v_lshlrev_b32 v5, 4, v5')
        e(f'v_add_u32 v{80+i}, v5, v6')
        e(f'v_add_u32 v{80+i}, {LDS_STAGE}, v{80+i}')
    for i in range(14):
        e.wait_vm(toks[i])
        e.ds(f'ds_write_b128 v{80+i}, {vr(16+4*i,4)}')
    e.wait_ds_all()
    e.barrier()
    e('v_lshrrev_b32 v4, 1, v3')
    e('v_lshlrev_b32 v4, 2, v4')
    e('v_lshrrev_b32 v5, 2, v2')
    e('v_add_u32 v4, v4, v5')
    e(f's_lshl_b32 s53, s{sW}, 4')
    e('v_add_u32 v4, s53, v4')
    e('v_mul_u32_u24 v4, 928, v4')
    e('v_and_b32 v5, 1, v3')
    e('v_lshlrev_b32 v5, 4, v5')
    e('v_add_u32 v4, v4, v5')
    e('v_and_b32 v5, 1, v2')
    e('v_lshlrev_b32 v5, 3, v5')
    e('v_add_u32 v4, v4, v5')
    e('v_bfe_u32 v5, v2, 1, 1')
    e('v_mul_u32_u24 v5, 448, v5')
    e('v_add_u32 v4, v4, v5')
    e(f'v_add_u32 v4, {LDS_STAGE}, v4')
    e('v_lshlrev_b32 v5, 4, v1')
    for j in range(14):
        R = 16 + 4 * j
        e.ds(f'ds_read_b64_tr_b16 {vr(R,2)}, v4 offset:{32*j}')
        e.ds(f'ds_read_b64_tr_b16 {vr(R+2,2)}, v4 offset:{32*j + 8*928}')
    e.wait_ds_all()
    e('s_lshl_b32 s53, s56, 2')
    e(f's_add_u32 s53, s53, s{sW}')
    e('s_lshl_b32 s53, s53, 10')
    e(f's_add_u32 s53, s53, 0x{W2_OFF:x}')
    for j in range(14):
        e(f's_add_u32 s54, s53, {j*112*1024}')
        e.vm(f'buffer_store_dwordx4 {vr(16+4*j,4)}, v5, {SWS}, s54 offen sc1')
    e.label(done)
    e.wait_vm_all()
assert all(((p * 18725) >> 20) == p // 56 for p in range(3584)), "magic /56"

def phase_b(e):
    e.c('======== window 1 + phase B')
    e('s_and_b32 s56, s2, 7')
    e('s_lshr_b32 s57, s2, 3')
    e('s_mul_i32 s52, s57, 37')
    e('s_lshr_b32 s52, s52, 8')
    e('s_mul_i32 s53, s52, 7')
    e('s_sub_u32 s53, s57, s53')
    e('s_lshl_b32 s52, s52, 3')
    e('s_add_u32 s56, s56, s52')
    e('s_lshl_b32 s53, s53, 1')
    e(f's_lshr_b32 s54, s{sW}, 1')
    e('s_add_u32 s57, s53, s54')
    e('s_lshr_b32 s59, s53, 2')
    e(f's_and_b32 s58, s{sW}, 1')
    FC, FS, FN = 16, 32, 48
    TIN, BF, WR, WI, XA, YR, YI, YF = 64, 80, 96, 104, 112, 128, 136, 144
    e('s_cmp_lt_u32 s57, 7')
    e('s_cselect_b32 s52, 2, 1')
    e('s_cselect_b32 s53, 0, 7')
    e('s_sub_u32 s53, s57, s53')
    e('s_lshl_b32 s53, s53, 5')
    e('s_add_u32 s53, s53, s52')
    e('v_lshlrev_b32 v6, 1, v2')
    e('v_add_u32 v6, s53, v6')
    e('v_lshlrev_b32 v6, 1, v6')
    e('v_lshlrev_b32 v7, 7, v3')
    e('s_lshl_b32 s52, s58, 10')
    e('s_add_u32 s52, s52, s56')
    e('v_add_u32 v7, s52, v7')
    e('v_mul_u32_u24 v7, 450, v7')
    e('v_add_u32 v6, v6, v7')
    wtok = {}
    for mtl in range(2):
        for r in range(4):
            e(f's_mov_b32 s52, {(16*mtl+r)*14400}')
            e.vm(f'buffer_load_short_d16_hi v{WR+mtl*4+r}, v6, {SWR}, s52 offen')
            wtok[(mtl, r)] = e.vm(f'buffer_load_short_d16_hi v{WI+mtl*4+r}, v6, {SWI}, s52 offen')
    CO, SI, TH = 160, 176, 192
    groups = w13_dma(e, 0)
    main = []
    em = main.append
    em('s_lshl_b32 s52, s58, 5')
    em('v_add_u32 v8, s52, v2')
    em('v_cvt_f32_u32 v8, v8')
    em(f'v_mul_f32 v8, {lit(1.0/64)}, v8')
    em('v_lshlrev_b32 v9, 2, v3')
    for tt in range(2):
        em(f's_xor_b32 s52, s58, {tt}')
        em('s_lshl_b32 s52, s52, 5')
        em('v_add_u32 v10, s52, v9')
        em('v_cvt_f32_u32 v10, v10')
        em('v_mul_f32 v10, v10, v8')
        for j in range(8):
            cst = 16 * (j >> 2) + (j & 3)
            if cst == 0: em(f'v_mov_b32 v{TH+j}, v10')
            else: em(f'v_fmamk_f32 v{TH+j}, v8, {lit(float(cst))}, v10')
        for j in range(8): em(f'v_cos_f32 v{CO+tt*8+j}, v{TH+j}')
        for j in range(8): em(f'v_sin_f32 v{SI+tt*8+j}, v{TH+j}')
    def rot(kind, t, j, mt):
        qt = (mt * (j & 3)) & 3
        c, s = f'v{CO+t*8+j}', f'v{SI+t*8+j}'
        if kind == 'C': return [c, '-' + s, '-' + c, s][qt]
        if kind == 'S': return [s, c, '-' + s, '-' + c][qt]
        if kind == 'N': return ['-' + s, '-' + c, s, c][qt]
    for kind, base in (('C', FC), ('S', FS), ('N', FN)):
        for mtl in range(2):
            for tt in range(2):
                for i in range(4):
                    em(f'v_cvt_pk_bf16_f32 v{base+(mtl*2+tt)*4+i}, {rot(kind,tt,2*i,mtl)}, {rot(kind,tt,2*i+1,mtl)}')
    emit_interleaved(e, main, groups)
    e('s_mul_i32 s60, s56, 14')
    e('s_add_u32 s60, s60, s57')
    e('s_lshl_b32 s60, s60, 12')
    e(f's_add_u32 s60, s60, 0x{T1_OFF:x}')
    e('v_lshlrev_b32 v11, 8, v3')
    e('v_lshlrev_b32 v10, 2, v2')
    e('v_add_u32 v11, v11, v10')
    stamp(e, 'W1.ready')
    def idx(e):
        e('v_and_b32 v5, 7, v1')
        e('v_lshrrev_b32 v6, 3, v1')
        e('v_lshlrev_b32 v6, 5, v6')
        e('v_add_u32 v5, v5, v6')
        e('s_lshl_b32 s53, s59, 3')
        e('v_add_u32 v5, s53, v5')
        e('v_lshlrev_b32 v5, 6, v5')
    poll(e, 0, 64, idx)
    stamp(e, 'B.go')
    tin = {}
    for tt in range(2):
        e(f's_xor_b32 s52, s58, {tt}')
        e('s_lshl_b32 s52, s52, 11')
        e('s_add_u32 s52, s52, s60')
        for j in range(8):
            off = (16 * (j >> 2) + (j & 3)) * 64
            tin[(tt, j)] = e.vm(f'buffer_load_dword v{TIN+tt*8+j}, v11, {SWS}, s52 offen offset:{off} sc1')
    e('s_mov_b32 s52, 0x05040100')
    e('s_mov_b32 s53, 0x07060302')
    for tt in range(2):
        e.wait_vm(tin[(tt, 7)])
        for i in range(4):
            e(f'v_perm_b32 v{BF+tt*4+i}, v{TIN+tt*8+2*i+1}, v{TIN+tt*8+2*i}, s52')
            e(f'v_perm_b32 v{BF+8+tt*4+i}, v{TIN+tt*8+2*i+1}, v{TIN+tt*8+2*i}, s53')
    stamp(e, 'B.loaded')
    def fr(base, mtl, tt): return vr(base + (mtl * 2 + tt) * 4, 4)
    def mm(d, a, b, first): e(f'v_mfma_f32_16x16x32_bf16 {vr(d,4)}, {a}, {vr(b,4)}, {"0" if first else vr(d,4)}')
    BRE = lambda t: BF + t * 4
    BIM = lambda t: BF + 8 + t * 4
    for step in range(4):
        for mtl in range(2):
            xr, xi = XA + mtl * 8, XA + mtl * 8 + 4
            tt = step & 1
            if step < 2:
                mm(xr, fr(FC, mtl, tt), BRE(tt), step == 0); mm(xi, fr(FN, mtl, tt), BRE(tt), step == 0)
            else:
                mm(xr, fr(FS, mtl, tt), BIM(tt), False); mm(xi, fr(FC, mtl, tt), BIM(tt), False)
    for mtl in range(2):
        for r in range(4):
            xr, xi = XA + mtl * 8 + r, XA + mtl * 8 + 4 + r
            wr, wi = WR + mtl * 4 + r, WI + mtl * 4 + r
            e(f'v_mul_f32 v{YR+mtl*4+r}, v{xr}, v{wr}')
            e(f'v_mul_f32 v{YI+mtl*4+r}, v{xr}, v{wi}')
            e(f'v_fma_f32 v{YR+mtl*4+r}, -v{xi}, v{wi}, v{YR+mtl*4+r}')
            e(f'v_fma_f32 v{YI+mtl*4+r}, v{xi}, v{wr}, v{YI+mtl*4+r}')
    for c, src in ((0, YR), (1, YI)):
        for i in range(4):
            e(f'v_cvt_pk_bf16_f32 v{YF+c*8+i}, v{src+(i>>1)*4+2*(i&1)}, v{src+(i>>1)*4+2*(i&1)+1}')
    e('v_lshlrev_b32 v10, 4, v1')
    e(f's_lshl_b32 s52, s{sW}, 11')
    e('v_add_u32 v12, s52, v10')
    e(f's_xor_b32 s52, s{sW}, 1')
    e('s_lshl_b32 s52, s52, 11')
    e('v_add_u32 v13, s52, v10')
    e.ds(f'ds_write_b128 v12, {vr(YF,4)}')
    e.ds(f'ds_write_b128 v12, {vr(YF+8,4)} offset:1024')
    e.wait_ds_all()
    e.barrier()
    p0 = e.ds(f'ds_read_b128 {vr(YF+4,4)}, v13')
    p1_ = e.ds(f'ds_read_b128 {vr(YF+12,4)}, v13 offset:1024')
    YRE = lambda t: YF + t * 4
    YIM = lambda t: YF + 8 + t * 4
    for mtl in range(2):
        xr, xi = XA + mtl * 8, XA + mtl * 8 + 4
        mm(xr, fr(FC, mtl, 0), YRE(0), True);  mm(xi, fr(FS, mtl, 0), YRE(0), True)
        mm(xr, fr(FN, mtl, 0), YIM(0), False); mm(xi, fr(FC, mtl, 0), YIM(0), False)
    e.wait_ds(p1_)
    for mtl in range(2):
        xr, xi = XA + mtl * 8, XA + mtl * 8 + 4
        mm(xr, fr(FC, mtl, 1), YRE(1), False); mm(xi, fr(FS, mtl, 1), YRE(1), False)
        mm(xr, fr(FN, mtl, 1), YIM(1), False); mm(xi, fr(FC, mtl, 1), YIM(1), False)
    e('s_mov_b32 s52, %d' % (4 * 28672))
    e('v_mul_lo_u32 v4, v3, s52')
    e('v_lshlrev_b32 v5, 2, v2')
    e('v_add_u32 v4, v4, v5')
    e('s_lshl_b32 s52, s57, 11')
    e('s_lshl_b32 s53, s56, 6')
    e('s_add_u32 s52, s52, s53')
    e(f's_mul_i32 s53, s58, {32*28672}')
    e('s_add_u32 s52, s52, s53')
    last = None
    for mtl in range(2):
        for r in range(4): e(f'v_cvt_pk_bf16_f32 v{TIN+mtl*4+r}, v{XA+mtl*8+r}, v{XA+mtl*8+4+r}')
        for r in range(4):
            e(f's_add_u32 s53, s52, {T2_OFF + (16*mtl+r)*28672}')
            last = e.vm(f'buffer_store_dword v{TIN+mtl*4+r}, v4, {SWS}, s53 offen sc1')
    stamp(e, 'B.stored')
    e.wait_vm_all()
    stamp(e, 'B.drained')

def phase_c(e):
    e.c('======== window 2 + phase C')
    e(f's_lshl_b32 s56, s{sGRP}, 2')
    e(f's_add_u32 s56, s56, s{sW}')
    e('s_min_u32 s57, s56, 13')
    G, TC, AIN, VA, PA, XR = 16, 48, 104, 136, 152, 168
    MEAN = XR + 8
    e('v_lshlrev_b32 v5, 6, v2')
    e(f'v_add_u32 v5, s{sB}, v5')
    e('v_mul_u32_u24 v5, 896, v5')
    e('v_lshlrev_b32 v6, 3, v3')
    e('v_add_u32 v5, v5, v6')
    e('s_lshl_b32 s52, s57, 5')
    e('v_add_u32 v5, s52, v5')
    for nt in range(2):
        for pm in range(2):
            e(f's_mov_b32 s52, {nt*16*64*896}')
            e.vm(f'buffer_load_dwordx2 {vr(XR+(nt*2+pm)*2,2)}, v5, {SX}, s52 offen offset:{448*pm}')
    nb = L('now13')
    e('s_cmp_ge_u32 s2, 224')
    e(f's_cbranch_scc1 {nb}')
    w13_trread(e, 0)
    e.wait_ds_all()
    e.label(nb)
    e.barrier()
    stamp(e, 'W2.trread')
    groups = w13_dma(e, 1)
    main = []
    em = main.append
    TH, CO, SI = 180, 188, 196
    cscale = 2.0 / (2048.0 * 448.0)
    em('v_cvt_f32_u32 v7, v3')
    for nt in range(2):
        em(f'v_add_u32 v8, {16*nt}, v2')
        em('v_lshlrev_b32 v8, 6, v8')
        em(f'v_add_u32 v8, s{sB}, v8')
        em('v_cvt_f32_u32 v8, v8')
        em(f'v_mul_f32 v8, {lit(1.0/2048)}, v8')
        em('v_mul_f32 v9, v7, v8')
        for t in range(2):
            for ii in range(4):
                cst = 16 * t + 4 * ii
                if cst == 0: em(f'v_mov_b32 v{TH+t*4+ii}, v9')
                else: em(f'v_fmamk_f32 v{TH+t*4+ii}, v8, {lit(float(cst))}, v9')
        for j in range(8): em(f'v_cos_f32 v{CO+j}, v{TH+j}')
        for j in range(8): em(f'v_sin_f32 v{SI+j}, v{TH+j}')
        for j in range(8): em(f'v_mul_f32 v{CO+j}, {lit(cscale)}, v{CO+j}')
        for j in range(8): em(f'v_mul_f32 v{SI+j}, {lit(cscale)}, v{SI+j}')
        for t in range(2):
            for ii in range(4):
                j = t * 4 + ii
                em(f'v_cvt_pk_bf16_f32 v{G+((0*2+t)*2+nt)*4+ii}, v{CO+j}, -v{SI+j}')
                em(f'v_cvt_pk_bf16_f32 v{G+((1*2+t)*2+nt)*4+ii}, v{SI+j}, v{CO+j}')
    em('s_lshl_b32 s52, s57, 4')
    em('v_add_u32 v8, s52, v2')
    em('v_cvt_f32_u32 v8, v8')
    em(f'v_mul_f32 v8, {lit(1.0/448)}, v8')
    em('v_lshlrev_b32 v9, 3, v3')
    em('v_cvt_f32_u32 v9, v9')
    em('v_mul_f32 v9, v9, v8')
    em('v_cmp_eq_u32 vcc, 3, v3')
    em('v_mov_b32 v10, 1.0')
    em('v_mov_b32 v11, 0.5')
    em('v_cndmask_b32 v10, v10, v11, vcc')
    for kp in range(7):
        for h in range(2):
            for j in range(4):
                cst = 32 * kp + 2 * j + (2 if h == 0 else 1)
                em(f'v_fmamk_f32 v{TH+h*4+j}, v8, {lit(float(cst))}, v9')
        for j in range(8): em(f'v_cos_f32 v{CO+j}, v{TH+j}')
        for j in range(8): em(f'v_sin_f32_e64 v{SI+j}, -v{TH+j}')
        if kp == 6:
            em(f'v_mul_f32 v{CO+3}, v{CO+3}, v10')
            em(f'v_mul_f32 v{SI+3}, v{SI+3}, v10')
        for h, kb in enumerate((kp, kp + 7)):
            em(f'v_cvt_pk_bf16_f32 v{TC+kb*4+0}, v{CO+h*4+0}, v{CO+h*4+1}')
            em(f'v_cvt_pk_bf16_f32 v{TC+kb*4+1}, v{CO+h*4+2}, v{CO+h*4+3}')
            em(f'v_cvt_pk_bf16_f32 v{TC+kb*4+2}, v{SI+h*4+0}, v{SI+h*4+1}')
            em(f'v_cvt_pk_bf16_f32 v{TC+kb*4+3}, v{SI+h*4+2}, v{SI+h*4+3}')
    l1, l2 = L('cg'), L('cg')
    e('s_cmp_ge_u32 s2, 224')
    e(f's_cbranch_scc1 {l1}')
    emit_interleaved(e, main, groups)
    e(f's_branch {l2}')
    e.label(l1)
    for ins in main: e(ins)
    e.label(l2)
    e('v_lshlrev_b32 v12, 2, v1')
    stamp(e, 'W2.ready')
    def idx(e): e('v_lshlrev_b32 v5, 6, v1')
    poll(e, 1, 256, idx)
    stamp(e, 'C.go')
    atok = {}
    for i in range(4):
        e(f's_add_u32 s52, s{sW}, {4*i}')
        e('s_min_u32 s52, s52, 13')
        e(f's_mul_i32 s53, s{sB}, 14')
        e('s_add_u32 s52, s52, s53')
        e('s_lshl_b32 s52, s52, 11')
        e(f's_add_u32 s52, s52, 0x{T2_OFF:x}')
        for t in range(2):
            for ii in range(4):
                atok[(i, t, ii)] = e.vm(f'buffer_load_dword v{AIN+i*8+t*4+ii}, v12, {SWS}, s52 offen offset:{(16*t+4*ii)*64} sc1')
    e('v_lshlrev_b32 v6, 2, v2')
    e(f's_lshl_b32 s52, s{sB}, 7')
    e(f's_add_u32 s52, s52, 0x{ST1_OFF:x}')
    mtok = [e.vm(f'buffer_load_dword v{MEAN+nt}, v6, {SWS}, s52 offen offset:{64*nt} sc1') for nt in range(2)]
    e('v_lshlrev_b32 v11, 4, v1')
    e(f's_lshl_b32 s52, s{sW}, 11')
    e('v_add_u32 v12, s52, v11')
    PK = 204
    for i in range(4):
        e.wait_vm(atok[(i, 1, 3)])
        if i == 0: stamp(e, 'C.loaded')
        for nt in range(2):
            for out in range(2):
                d = VA + (out * 2 + nt) * 4
                e(f'v_mfma_f32_16x16x32_bf16 {vr(d,4)}, {vr(AIN+i*8,4)}, {vr(G+((out*2+0)*2+nt)*4,4)}, 0')
        for nt in range(2):
            for out in range(2):
                d = VA + (out * 2 + nt) * 4
                e(f'v_mfma_f32_16x16x32_bf16 {vr(d,4)}, {vr(AIN+i*8+4,4)}, {vr(G+((out*2+1)*2+nt)*4,4)}, {vr(d,4)}')
        sk = L('skip3')
        if i == 3:
            e(f's_cmp_ge_u32 s{sW}, 2')
            e(f's_cbranch_scc1 {sk}')
        for nt in range(2):
            p = PK + nt * 4 + (i & 1) * 8
            vre, vim = VA + (0 * 2 + nt) * 4, VA + (1 * 2 + nt) * 4
            e(f'v_cvt_pk_bf16_f32 v{p+0}, v{vre+0}, v{vre+1}')
            e(f'v_cvt_pk_bf16_f32 v{p+1}, v{vre+2}, v{vre+3}')
            e(f'v_cvt_pk_bf16_f32 v{p+2}, v{vim+0}, v{vim+1}')
            e(f'v_cvt_pk_bf16_f32 v{p+3}, v{vim+2}, v{vim+3}')
            e.ds(f'ds_write_b128 v12, {vr(p,4)} offset:{(4*i*2+nt)*1024}')
        if i == 3: e.label(sk)
    e.wait_ds_all()
    stamp(e, 'C.st1')
    e.barrier()
    VB = 220
    order = [(kb, nt) for kb in range(14) for nt in range(2)]
    tok = {}
    nread = [0]
    def issue():
        kb, nt = order[nread[0]]
        tok[nread[0]] = e.ds(f'ds_read_b128 {vr(VB+(nread[0]%8)*4,4)}, v11 offset:{(kb*2+nt)*1024}')
        nread[0] += 1
    for _ in range(7): issue()
    for idx_, (kb, nt) in enumerate(order):
        e.wait_ds(tok[idx_])
        par = 0 if kb < 7 else 1
        d = PA + (par * 2 + nt) * 4
        first = kb in (0, 7)
        e(f'v_mfma_f32_16x16x32_bf16 {vr(d,4)}, {vr(TC+kb*4,4)}, {vr(VB+(idx_%8)*4,4)}, {"0" if first else vr(d,4)}')
        if nread[0] < len(order): issue()
    stamp(e, 'C.st2')
    e.wait_vm(mtok[1])
    H, HP, CP, SQ = 104, 120, 128, 180
    e('s_mov_b32 s52, 0xffff0000')
    for nt in range(2):
        pe, po = PA + nt * 4, PA + 8 + nt * 4
        for pm in range(2):
            xr = XR + (nt * 2 + pm) * 2
            for r in range(4):
                hv = H + (nt * 2 + pm) * 4 + r
                e(f'{"v_add_f32" if pm == 0 else "v_sub_f32"} v{hv}, v{pe+r}, v{po+r}')
                xv = 184 + r
                if r & 1: e(f'v_and_b32 v{xv}, s52, v{xr+(r>>1)}')
                else: e(f'v_lshlrev_b32 v{xv}, 16, v{xr+(r>>1)}')
            for r in range(4):
                hv = H + (nt * 2 + pm) * 4 + r
                e(f'v_add_f32 v{hv}, v{hv}, v{184+r}')
            for i in range(2):
                hv = H + (nt * 2 + pm) * 4 + 2 * i
                e(f'v_cvt_pk_bf16_f32 v{HP+nt*4+pm*2+i}, v{hv}, v{hv+1}')
        e(f'v_mov_b32 v{SQ+nt}, 0')
        for q in range(4):
            hp = HP + nt * 4 + q
            e(f'v_lshlrev_b32 v188, 16, v{hp}')
            e(f'v_and_b32 v189, s52, v{hp}')
            e(f'v_sub_f32 v188, v188, v{MEAN+nt}')
            e(f'v_sub_f32 v189, v189, v{MEAN+nt}')
            e(f'v_fma_f32 v{SQ+nt}, v188, v188, v{SQ+nt}')
            e(f'v_fma_f32 v{SQ+nt}, v189, v189, v{SQ+nt}')
            e(f'v_cvt_pk_bf16_f32 v{CP+nt*4+q}, v188, v189')
    e('v_lshrrev_b32 v4, 1, v3')
    e('v_lshlrev_b32 v4, 10, v4')
    e('v_and_b32 v5, 1, v3')
    e('v_lshlrev_b32 v5, 9, v5')
    e('v_add_u32 v4, v4, v5')
    e('v_lshlrev_b32 v5, 4, v2')
    e('v_add_u32 v4, v4, v5')
    e(f's_mul_i32 s52, s{sB}, 28')
    e('s_lshl_b32 s53, s57, 1')
    e('s_add_u32 s52, s52, s53')
    e('s_lshl_b32 s52, s52, 10')
    ns, st = L('cnostore'), L('cstat')
    e('s_cmp_ge_u32 s56, 14')
    e(f's_cbranch_scc1 {ns}')
    e(f's_add_u32 s53, s52, 0x{HC_OFF:x}')
    e(f's_add_u32 s54, s52, 0x{HR_OFF:x}')
    for nt in range(2):
        e(f'buffer_store_dwordx4 {vr(CP+nt*4,4)}, v4, {SWS}, s53 offen offset:{256*nt} sc1')
        e(f'buffer_store_dwordx4 {vr(HP+nt*4,4)}, v4, {SWS}, s54 offen offset:{256*nt} sc1')
    e.label(ns)
    for nt in range(2): xsum_groups(e, SQ + nt, 190)
    e('s_cmp_lt_u32 s56, 14')
    e(f's_cbranch_scc1 {st}')
    e(f'v_mov_b32 v{SQ}, 0')
    e(f'v_mov_b32 v{SQ+1}, 0')
    e.label(st)
    e(f's_lshl_b32 s52, s{sW}, 7')
    e('v_lshlrev_b32 v5, 2, v2')
    e('v_add_u32 v5, s52, v5')
    e.ds(f'ds_write_b32 v5, v{SQ} offset:28672')
    e.ds(f'ds_write_b32 v5, v{SQ+1} offset:28736')
    e.wait_ds_all()
    e.barrier()
    sk = L('st2skip')
    e(f's_cmp_lg_u32 s{sW}, 0')
    e(f's_cbranch_scc1 {sk}')
    e('v_and_b32 v5, 31, v1')
    e('v_lshlrev_b32 v5, 2, v5')
    for w in range(4): e(f'ds_read_b32 v{6+w}, v5 offset:{28672+128*w}')
    e('s_waitcnt lgkmcnt(0)')
    e('v_add_f32 v6, v6, v7')
    e('v_add_f32 v8, v8, v9')
    e('v_add_f32 v6, v6, v8')
    e(f's_lshl_b32 s52, s{sB}, 9')
    e(f's_lshl_b32 s53, s{sGRP}, 2')
    e('s_add_u32 s52, s52, s53')
    e(f's_add_u32 s52, s52, 0x{ST2_OFF:x}')
    e('v_lshlrev_b32 v5, 2, v5')
    e(f'buffer_store_dword v6, v5, {SWS}, s52 offen sc1')
    e.label(sk)
    stamp(e, 'C.stored')
    e.wait_vm_all()
    stamp(e, 'C.drained')
    signal(e, 2)

def w2reg(mi, s_):
    o = 2 * s_ + mi
    if o < 23: return vr(160 + 4 * o, 4), None
    if o < 31: return ar(224 + 4 * (o - 23), 4), None
    oo = o - 31
    return ar(((oo & 1) * 28 + (oo >> 1)) * 4, 4), (oo & 1, oo >> 1)

def phase_g(e):
    e.c('======== window 3 + G1')
    w13_trread(e, 1)
    e.wait_ds_all()
    stamp(e, 'W3.trread')
    e('v_lshlrev_b32 v4, 4, v1')
    e(f's_lshl_b32 s56, s{sC}, 3')
    e(f's_lshl_b32 s52, s{sW}, 1')
    e('s_add_u32 s56, s56, s52')
    e(f's_lshl_b32 s57, s{sR}, 2')
    e('s_and_b32 s58, s2, 7')
    e('s_lshr_b32 s59, s2, 3')
    e('s_mul_i32 s52, s59, 37')
    e('s_lshr_b32 s52, s52, 8')
    e('s_mul_i32 s53, s52, 7')
    e('s_sub_u32 s59, s59, s53')
    e('s_lshl_b32 s52, s52, 3')
    e('s_add_u32 s58, s58, s52')
    e(f's_mul_i32 s52, s{sW}, 28')
    e(f's_and_b32 s54, s{sW}, 1')
    for mi in range(2):
        e(f's_xor_b32 s53, s54, {mi}')
        e('s_lshl_b32 s55, s59, 1')
        e('s_add_u32 s53, s53, s55')
        e('s_mul_i32 s53, s53, 112')
        e('s_add_u32 s53, s53, s52')
        e('s_lshl_b32 s53, s53, 10')
        e(f's_add_u32 s{60+mi}, s53, 0x{W2_OFF:x}')
    def grp_off(dst, g):
        return [f's_add_u32 s{dst}, s59, {g}', f's_cmp_ge_u32 s{dst}, 7', f's_cselect_b32 s55, 7, 0',
                f's_sub_u32 s{dst}, s{dst}, s55', f's_lshl_b32 s{dst}, s{dst}, 12']
    def w2load(o):
        s_, mi = o >> 1, o & 1
        reg, dep = w2reg(mi, s_)
        pre = []
        if s_ % 4 == 0 and mi == 0:
            pre = grp_off(62, s_ // 4) + ['s_add_u32 s63, s61, s62', 's_add_u32 s62, s60, s62']
        return pre + [('vm', f'buffer_load_dwordx4 {reg}, v4, {SWS}, s{62+mi} offen offset:{(s_%4)*1024} sc1')]
    def idx(e):
        e('v_lshrrev_b32 v5, 2, v1')
        e('v_add_u32 v5, s57, v5')
        e('v_and_b32 v6, 7, v5')
        e('v_lshrrev_b32 v5, 3, v5')
        e('v_lshlrev_b32 v5, 5, v5')
        e('v_add_u32 v5, v5, v6')
        e('v_and_b32 v6, 3, v1')
        e('v_lshlrev_b32 v6, 3, v6')
        e('v_add_u32 v5, v5, v6')
        e('v_lshlrev_b32 v5, 6, v5')
    poll(e, 2, 16, idx)
    stamp(e, 'G1.go')
    ACC, BR, RRG, T = 64, 16, 48, 128
    ST = T
    dtok = {}
    e(f's_mul_i32 s88, s{sW}, 7168')
    def hc_groups(nt):
        gs = []
        for i in range(7):
            g = []
            if i == 0:
                g += [f's_add_u32 s89, s57, {nt}', 's_mul_i32 s89, s89, 28672', 's_add_u32 s89, s89, s88', f's_add_u32 s89, s89, 0x{HC_OFF:x}']
            if i == 4: g += ['s_add_u32 s89, s89, 4096']
            if i in (0, 4): g += [f's_add_u32 m0, s88, {nt*28672 + (4096 if i == 4 else 0)}']
            g.append(('vm', f'buffer_load_dwordx4 v4, {SWS}, s89 offen offset:{(i%4)*1024} sc1 lds', ('hc', nt)))
            gs.append(g)
        return gs
    def emit_op(op):
        if isinstance(op, tuple):
            t = e.vm(op[1])
            if len(op) > 2:
                if op[2][0] == 'hc': dtok[op[2][1]] = t
                if op[2][0] == 'st': dtok['st'] = t
            return t
        e(op); return None
    for g in hc_groups(0):
        for op in g: emit_op(op)
    e('v_and_b32 v5, 31, v1')
    e('v_lshlrev_b32 v5, 4, v5')
    e('s_lshl_b32 s54, s57, 9')
    e(f's_add_u32 s54, s54, 0x{ST2_OFF:x}')
    stok = [e.vm(f'buffer_load_dwordx4 {vr(ST+nt*4,4)}, v5, {SWS}, s54 offen offset:{nt*512} sc1') for nt in range(4)]
    e('v_add_u32 v6, 57344, v4')
    e.wait_vm(stok[-1])
    for nt in range(4):
        e(f'v_add_f32 v{ST+nt*4}, v{ST+nt*4}, v{ST+nt*4+1}')
        e(f'v_add_f32 v{ST+nt*4+2}, v{ST+nt*4+2}, v{ST+nt*4+3}')
        e(f'v_add_f32 v{ST+nt*4}, v{ST+nt*4}, v{ST+nt*4+2}')
        e(f'v_mov_b32 v7, {lit(1e-5)}')
        e(f'v_fmamk_f32 v{ST+nt*4}, v{ST+nt*4}, {lit(1.0/448)}, v7')
        e(f'v_rsq_f32 v{ST+nt*4}, v{ST+nt*4}')
        e(f'v_mul_f32 v{RRG+nt}, {lit(-1.4426950408889634)}, v{ST+nt*4}')
        e(f'v_mul_f32 v{RRG+4+nt}, v{ST+nt*4}, v{ST+nt*4}')
    def epi_ops(nt):
        ops = []
        for mi in range(2):
            a = ACC + ((nt & 1) * 2 + mi) * 16
            T0 = T + mi * 16
            for r in range(8): ops.append(f'v_mul_f32 v{T0+r}, v{a+r}, v{RRG+nt}')
            for r in range(8):
                ops.append(f'v_exp_f32 v{T0+r}, v{T0+r}')
                ops.append(f'v_mul_f32 v{T0+8+r}, v{a+r}, v{a+8+r}')
            for r in range(8):
                ops.append(f'v_add_f32 v{T0+r}, 1.0, v{T0+r}')
                ops.append(f'v_mul_f32 v{T0+8+r}, v{T0+8+r}, v{RRG+4+nt}')
            for r in range(8): ops.append(f'v_rcp_f32 v{T0+r}, v{T0+r}')
            for r in range(8): ops.append(f'v_mul_f32 v{T0+8+r}, v{T0+8+r}, v{T0+r}')
            P = 56 + mi * 4
            for i in range(4): ops.append(f'v_cvt_pk_bf16_f32 v{P+i}, v{T0+8+2*i}, v{T0+8+2*i+1}')
            ops.append(f's_add_u32 s53, s57, {nt}')
            ops.append('s_mul_i32 s53, s53, 112')
            ops.append('s_add_u32 s53, s53, s56')
            ops.append(f's_add_u32 s53, s53, {mi}')
            ops.append('s_lshl_b32 s53, s53, 10')
            ops.append(f's_add_u32 s53, s53, 0x{HM_OFF:x}')
            ops.append(('vm', f'buffer_store_dwordx4 {vr(P,4)}, v4, {SWS}, s53 offen sc1', ('store',)))
        return ops
    bg = {0: hc_groups(1) + hc_groups(2), 1: hc_groups(3) + [w2load(o) for o in range(0, 9)],
          2: [w2load(o) for o in range(9, 25)], 3: [w2load(o) for o in range(25, 31)]}
    last_store = None
    next_late = 31
    for nt in range(4):
        e.wait_vm(dtok[nt])
        e.barrier()
        if nt == 0: stamp(e, 'G1.t0')
        fill = epi_ops(nt - 1) if nt > 0 else []
        fi = 0; gi = 0
        btok = {}
        n = [0]
        def issue():
            kap = n[0]
            base = 'v4' if nt < 2 else 'v6'
            off = ((nt & 1) * 28 + kap) * 1024
            btok[kap] = e.ds(f'ds_read_b128 {vr(BR+(kap%8)*4,4)}, {base} offset:{off}')
            n[0] += 1
        for _ in range(5): issue()
        nm = 0
        G_ = bg[nt]
        for kap in range(28):
            e.wait_ds(btok[kap])
            for mi in range(2):
                a = ACC + ((nt & 1) * 2 + mi) * 16
                e(f'v_mfma_f32_32x32x16_bf16 {vr(a,16)}, {ar((mi*28+kap)*4,4)}, {vr(BR+(kap%8)*4,4)}, {"0" if kap == 0 else vr(a,16)}')
                nm += 1
                if mi == 0 and n[0] < 28: issue()
                span = 24 if nt == 3 else 56
                want = (len(G_) * nm + span - 1) // span
                while gi < min(want, len(G_)):
                    for op in G_[gi]: emit_op(op)
                    gi += 1
                if nt == 3 and gi >= len(G_) and nm % 4 == 0 and next_late < 43:
                    dep = w2reg(next_late & 1, next_late >> 1)[1]
                    if dep[1] * 2 + dep[0] < nm:
                        for op in w2load(next_late): emit_op(op)
                        next_late += 1
                if nm > 3:
                    want = (len(fill) * (nm - 3) + 49) // 50
                    while fi < min(want, len(fill)):
                        t = emit_op(fill[fi]); fi += 1
        while fi < len(fill):
            emit_op(fill[fi]); fi += 1
        stamp(e, f'G1.tile{nt}')
    for op in epi_ops(3):
        t = emit_op(op)
        if isinstance(op, tuple): last_store = t
    stamp(e, 'G1.stored')
    while next_late < 56:
        for op in w2load(next_late): emit_op(op)
        next_late += 1
    e.wait_vm(last_store)
    stamp(e, 'G1.drained')
    signal(e, 3)
    e.c('======== G2')
    ACC2, BR2, HRR, NB = 16, 80, 152, 9
    e('s_lshl_b32 s57, s58, 1')
    e(f's_mul_i32 s52, s{sW}, 28')
    e(f's_lshr_b32 s54, s{sW}, 1')
    for ni in range(2):
        e(f's_xor_b32 s53, s54, {ni}')
        e('s_add_u32 s53, s53, s57')
        e('s_mul_i32 s53, s53, 112')
        e('s_add_u32 s53, s53, s52')
        e('s_lshl_b32 s53, s53, 10')
        e(f's_add_u32 s{88+ni}, s53, 0x{HM_OFF:x}')
    e('s_add_u32 s56, s54, s57')
    e('s_mul_i32 s52, s56, 28')
    e(f's_and_b32 s60, s{sW}, 1')
    e('s_lshl_b32 s53, s59, 1')
    e('s_add_u32 s60, s60, s53')
    e('s_lshl_b32 s53, s60, 1')
    e('s_add_u32 s52, s52, s53')
    e('s_lshl_b32 s52, s52, 10')
    e(f's_add_u32 s52, s52, 0x{HR_OFF:x}')
    htok = [e.vm(f'buffer_load_dwordx4 {vr(HRR+4*gg,4)}, v4, {SWS}, s52 offen offset:{1024*gg} sc1') for gg in range(2)]
    def idx4(e):
        e('s_lshr_b32 s53, s58, 1')
        e('s_lshr_b32 s54, s53, 2')
        e('s_and_b32 s53, s53, 3')
        e('s_lshl_b32 s53, s53, 3')
        e('s_add_u32 s53, s53, s54')
        e('v_cmp_le_u32 vcc, 7, v1')
        e('v_mov_b32 v5, 0')
        e('v_mov_b32 v6, 1')
        e('v_cndmask_b32 v5, v5, v6, vcc')
        e('v_mul_u32_u24 v6, 7, v5')
        e('v_sub_u32 v6, v1, v6')
        e('v_lshlrev_b32 v6, 5, v6')
        e('v_lshlrev_b32 v5, 2, v5')
        e('v_add_u32 v5, v5, v6')
        e('v_add_u32 v5, s53, v5')
        e('v_lshlrev_b32 v5, 6, v5')
    poll(e, 3, 14, idx4)
    stamp(e, 'G2.go')
    tok = {}
    nl = [0]
    def issue2():
        i = nl[0]
        if i % 4 == 0:
            for op in grp_off(62, i // 4): e(op)
            e('s_add_u32 s63, s89, s62')
            e('s_add_u32 s62, s88, s62')
        o = (i % 4) * 1024
        slot = i % NB
        e.vm(f'buffer_load_dwordx4 {vr(BR2+slot*8,4)}, v4, {SWS}, s62 offen offset:{o} sc1')
        tok[i] = e.vm(f'buffer_load_dwordx4 {vr(BR2+slot*8+4,4)}, v4, {SWS}, s63 offen offset:{o} sc1')
        nl[0] += 1
    for _ in range(NB): issue2()
    for i in range(28):
        e.wait_vm(tok[i])
        if i == 0: stamp(e, 'G2.first')
        slot = i % NB
        for mi in range(2):
            for ni in range(2):
                a = ACC2 + (mi * 2 + ni) * 16
                e(f'v_mfma_f32_32x32x16_bf16 {vr(a,16)}, {w2reg(mi,i)[0]}, {vr(BR2+slot*8+ni*4,4)}, {"0" if i == 0 else vr(a,16)}')
        if nl[0] < 28: issue2()
    stamp(e, 'G2.mfma')
    for k, (mi, ni) in enumerate(((1, 0), (0, 1), (1, 1))):
        e(f's_xor_b32 s52, s{sW}, {k+1}')
        e('s_mul_i32 s52, s52, 12288')
        e(f'v_add_u32 v{5+k}, s52, v4')
    for k, (mi, ni) in enumerate(((1, 0), (0, 1), (1, 1))):
        a = ACC2 + (mi * 2 + ni) * 16
        for qd in range(4):
            e.ds(f'ds_write_b128 v{5+k}, {vr(a+qd*4,4)} offset:{k*4096 + qd*1024}')
    e.wait_ds_all()
    e.barrier()
    e(f's_mul_i32 s52, s{sW}, 12288')
    e('v_add_u32 v5, s52, v4')
    R0 = 80
    for k in range(3):
        for qd in range(4):
            e.ds(f'ds_read_b128 {vr(R0+k*16+qd*4,4)}, v5 offset:{k*4096 + qd*1024}')
    e.wait_ds_all()
    stamp(e, 'G2.red')
    for r in range(16):
        e(f'v_add_f32 v{R0+r}, v{R0+r}, v{R0+16+r}')
        e(f'v_add_f32 v{R0+32+r}, v{R0+32+r}, v{ACC2+r}')
    for r in range(16): e(f'v_add_f32 v{R0+r}, v{R0+r}, v{R0+32+r}')
    e('s_mov_b32 s52, 0xffff0000')
    PK = 32
    for i in range(8): e(f'v_cvt_pk_bf16_f32 v{PK+i}, v{R0+2*i}, v{R0+2*i+1}')
    for i in range(8):
        e(f'v_lshlrev_b32 v48, 16, v{PK+i}')
        e(f'v_and_b32 v49, s52, v{PK+i}')
        e(f'v_lshlrev_b32 v50, 16, v{HRR+i}')
        e(f'v_and_b32 v51, s52, v{HRR+i}')
        e('v_add_f32 v48, v48, v50')
        e('v_add_f32 v49, v49, v51')
        dst = {0: 40, 1: 41, 4: 42, 5: 43, 2: 44, 3: 45, 6: 46, 7: 47}[i]
        e(f'v_cvt_pk_bf16_f32 v{dst}, v48, v49')
    e('v_permlane32_swap_b32 v40, v42')
    e('v_permlane32_swap_b32 v41, v43')
    e('v_permlane32_swap_b32 v44, v46')
    e('v_permlane32_swap_b32 v45, v47')
    e('v_and_b32 v5, 31, v1')
    e('v_lshlrev_b32 v5, 6, v5')
    e('v_add_u32 v5, s56, v5')
    e('v_mul_u32_u24 v5, 896, v5')
    e('v_lshrrev_b32 v6, 5, v1')
    e('v_lshlrev_b32 v6, 4, v6')
    e('v_add_u32 v5, v5, v6')
    e('s_lshl_b32 s52, s60, 5')
    e(f'buffer_store_dwordx4 v[40:43], v5, {SOUT}, s52 offen')
    e(f'buffer_store_dwordx4 v[44:47], v5, {SOUT}, s52 offen offset:448')
    stamp(e, 'G2.end')

DBGOUT = False
def dbg_out(e):
    sk = L('dbo')
    e('s_waitcnt vmcnt(0)')
    e('s_memrealtime s[84:85]')
    e('s_memtime s[90:91]')
    e('s_waitcnt lgkmcnt(0)')
    e(f's_cmp_lg_u32 s{sW}, 0')
    e(f's_cbranch_scc1 {sk}')
    e('s_and_b32 s52, s2, 63')
    e('s_cmp_lg_u32 s52, 0')
    e(f's_cbranch_scc1 {sk}')
    e('s_lshr_b32 s52, s2, 6')
    e('s_lshl_b32 s52, s52, 4')
    e('s_add_u32 s52, s52, 16')
    e('s_sub_u32 s53, s84, s86')
    e('s_sub_u32 s54, s90, s92')
    e('v_mov_b32 v4, s53'); e('v_mov_b32 v5, s54'); e('v_mov_b32 v6, s86'); e('v_mov_b32 v7, s84')
    e('v_mov_b32 v8, 0')
    e('s_mov_b64 exec, 1')
    e(f'buffer_store_dwordx4 v[4:7], v8, {SDBG}, s52 offen sc1')
    e('s_mov_b64 exec, -1')
    e.label(sk)

def diag_dump(e):
    if DBGOUT: dbg_out(e)
    if not DIAG: return
    e.wait_vm_all()
    rstamp(e, 'rt_end')
    sk = L('dd')
    e(f's_cmp_lg_u32 s{sW}, 0')
    e(f's_cbranch_scc1 {sk}')
    e('s_lshl_b32 s52, s2, 8')
    e(f's_add_u32 s52, s52, 0x{DIAG_OFF:x}')
    e('v_lshlrev_b32 v4, 2, v1')
    e(f'buffer_store_dword v255, v4, {SWS}, s52 offen')
    e.label(sk)

def kernel():
    e = Emit()
    e.label(KN)
    e('s_cmp_ge_u32 s2, 256')
    e('s_cbranch_scc1 L_end')
    e('s_load_dwordx16 s[64:79], s[0:1], 0')
    e('s_load_dwordx4 s[80:83], s[0:1], 64')
    e('s_memrealtime s[86:87]')
    if DBGOUT: e('s_memtime s[92:93]')
    if DIAG: e('v_mov_b32 v255, 0')
    e('v_lshrrev_b32 v4, 6, v0')
    e('v_and_b32 v1, 63, v0')
    e(f'v_readfirstlane_b32 s{sW}, v4')
    e('v_and_b32 v2, 15, v0')
    e('v_bfe_u32 v3, v0, 4, 2')
    e(f's_and_b32 s{sB}, s2, 7')
    e('s_lshr_b32 s52, s2, 5')
    e('s_lshl_b32 s52, s52, 3')
    e(f's_add_u32 s{sB}, s{sB}, s52')
    e(f's_lshr_b32 s{sGRP}, s2, 3')
    e(f's_and_b32 s{sGRP}, s{sGRP}, 3')
    e(f's_and_b32 s{sR}, s2, 3')
    e(f's_lshl_b32 s{sR}, s{sR}, 2')
    e('s_lshr_b32 s52, s2, 3')
    e('s_and_b32 s53, s52, 3')
    e(f's_add_u32 s{sR}, s{sR}, s53')
    e(f's_bfe_u32 s{sC}, s2, 0x10002')
    e(f's_mul_i32 s{sC}, s{sC}, 7')
    e('s_lshr_b32 s52, s52, 2')
    e(f's_add_u32 s{sC}, s{sC}, s52')
    e(f's_getreg_b32 s{sREP}, hwreg(HW_REG_XCC_ID, 0, 3)')
    e(f's_lshl_b32 s{sREP}, s{sREP}, 14')
    e(f's_mov_b32 s{sNONCE}, 0')
    e('s_waitcnt lgkmcnt(0)')
    srd(e, S_X, 64, 1835008)
    srd(e, S_WS, 82, WS_SIZE)
    srd(e, S_WR, 66, 2048 * 450)
    srd(e, S_WI, 68, 2048 * 450)
    srd(e, S_W1, 72, 448 * 3584)
    srd(e, S_W3, 74, 448 * 3584)
    srd(e, S_W2, 76, 1792 * 896)
    srd(e, S_OUT, 78, 1835008)
    srd(e, S_DBG, 80, 256)
    if DIAG:
        STAMPS.append('rt_start'); _stamp_n[0] += 1
        e('v_writelane_b32 v255, s86, 0')
    stamp(e, 'start')
    sk = L('nononce')
    e(f's_or_b32 s52, s2, s{sW}')
    e('s_cmp_lg_u32 s52, 0')
    e(f's_cbranch_scc1 {sk}')
    e('s_or_b32 s52, s86, 1')
    e('v_mov_b32 v4, s52')
    e('v_mov_b32 v5, 0')
    e('s_mov_b64 exec, 1')
    e(f'buffer_store_dword v4, v5, {SDBG}, 0 offen sc1')
    e('s_mov_b64 exec, -1')
    e.label(sk)
    phase_a(e)
    p2l, joinl = L('p2'), L('join')
    e('s_cmp_ge_u32 s2, 224')
    e(f's_cbranch_scc1 {p2l}')
    sv_ds = (e.ds_issued, e.ds_done)
    phase_b(e)
    e(f's_branch {joinl}')
    e.label(p2l)
    nstamp = _stamp_n[0]
    phase_p2(e)
    e.label(joinl)
    signal(e, 1)
    e.vm_issued = 0; e.vm_done = 0
    phase_c(e)
    e('s_cmp_ge_u32 s2, 224')
    e('s_cbranch_scc1 L_fin')
    phase_g(e)
    e.label('L_fin')
    diag_dump(e)
    e.label('L_end')
    e('s_endpgm')
    return e.out

def build():
    hdr = open('cdna_kernels/' + NAME + '.s.ref').read().split('; Override launch')[0]
    body = kernel()
    body, nn = hazard_pass(body)
    print(f'; {len(body)} lines, {nn} nops inserted', file=sys.stderr)
    lines = [hdr.rstrip('\n'),
             f'; @launch grid=(256,1,1) block=(256,1,1) lds={LDS_BYTES}',
             '.amdgcn_target "amdgcn-amd-amdhsa--gfx950"', '.text', f'.globl {KN}', '.p2align 8', f'.type {KN},@function']
    for ln in body: lines.append(ln if ln.endswith(':') else '    ' + ln)
    lines += ['.section .rodata,"a"', '.p2align 6', f'.amdhsa_kernel {KN}',
              '  .amdhsa_next_free_vgpr 512', '  .amdhsa_next_free_sgpr 96', '  .amdhsa_accum_offset 256',
              '  .amdhsa_group_segment_fixed_size 0', '  .amdhsa_kernarg_size 80', '  .amdhsa_user_sgpr_count 2',
              '  .amdhsa_user_sgpr_kernarg_segment_ptr 1', '  .amdhsa_system_sgpr_workgroup_id_x 1',
              '  .amdhsa_float_denorm_mode_32 3', '.end_amdhsa_kernel']
    return '\n'.join(lines) + '\n'

if __name__ == '__main__':
    if '--dbgout' in sys.argv:
        DBGOUT = True; sys.argv.remove('--dbgout')
    if '--diag' in sys.argv:
        DIAG = True; sys.argv.remove('--diag')
    out = sys.argv[1] if len(sys.argv) > 1 else 'cdna_kernels/' + NAME + '.s'
    open(out, 'w').write(build())
    if DIAG:
        import json; json.dump(STAMPS, open(out + '.stamps.json', 'w'))
    print('written', out, file=sys.stderr)
```

```python
import re

REG_RE = re.compile(r'^(-|abs\()?([vas])(\d+|\[(\d+):(\d+)\])\)?$')

def parse_reg(tok):
    t = tok.strip()
    if t.startswith('-'): t = t[1:]
    if t.startswith('abs(') and t.endswith(')'): t = t[4:-1]
    if t.startswith('|') and t.endswith('|'): t = t[1:-1]
    if t == 'vcc': return ('s', 106, 107)
    if t == 'vcc_lo': return ('s', 106, 106)
    if t == 'vcc_hi': return ('s', 107, 107)
    if t == 'exec': return ('s', 126, 127)
    if t == 'exec_lo': return ('s', 126, 126)
    if t == 'exec_hi': return ('s', 127, 127)
    if t == 'm0': return ('s', 124, 124)
    m = re.match(r'^([vas])(\d+)$', t)
    if m: return (m.group(1), int(m.group(2)), int(m.group(2)))
    m = re.match(r'^([vas])\[(\d+):(\d+)\]$', t)
    if m: return (m.group(1), int(m.group(2)), int(m.group(3)))
    return None

def split_ops(s):
    s = s.split(';')[0].strip()
    parts = s.split(None, 1)
    op = parts[0]
    if len(parts) == 1: return op, [], ''
    rest = parts[1]
    extra = ''
    m = re.search(r'\s+(op_sel|op_sel_hi|neg_lo|neg_hi)\b', rest)
    if m:
        extra = rest[m.start():].strip(); rest = rest[:m.start()]
    toks = [t.strip() for t in rest.split(',')]
    last = toks[-1].split()
    mods = (' '.join(last[1:]) + ' ' + extra).strip()
    toks[-1] = last[0] if last else ''
    return op, toks, mods

TRANS = ('v_exp_f32', 'v_log_f32', 'v_rcp_f32', 'v_rsq_f32', 'v_sqrt_f32', 'v_sin_f32', 'v_cos_f32', 'v_rcp_iflag_f32')

def overlap(a, b):
    return a and b and a[0] == b[0] and a[1] <= b[2] and b[1] <= a[2]

class I:
    __slots__ = ('text', 'op', 'kind', 'wr', 'rd', 'passes', 'srcc', 'dst', 'mods', 'trans', 'states', 'sgpr_rd_const', 'dpp')
    def __init__(self, text):
        self.text = text
        op, toks, mods = split_ops(text)
        base = re.sub(r'_(e32|e64|dpp|sdwa)$', '', op)
        self.op = base; self.mods = mods
        self.wr = []; self.rd = []; self.passes = 0; self.srcc = None; self.dst = None
        self.trans = base in TRANS
        self.states = 1
        self.dpp = op.endswith('_dpp') or 'row_' in mods or 'quad_perm' in mods
        regs = [parse_reg(t) for t in toks]
        if base == 's_nop':
            self.kind = 'nop'; self.states = int(toks[0], 0) + 1
        elif base.startswith('v_mfma'):
            self.kind = 'mfma'
            self.passes = 8 if '32x32' in base else 4
            self.dst = regs[0]; self.wr = [regs[0]]
            self.rd = [r for r in regs[1:4] if r]; self.srcc = regs[3]
        elif base.startswith('v_cmpx'):
            self.kind = 'valu'; self.wr = [regs[0], ('s', 126, 127)]; self.rd = [r for r in regs[1:] if r]
        elif base.startswith('v_'):
            self.kind = 'valu'
            if base in ('v_permlane32_swap_b32', 'v_permlane16_swap_b32'):
                self.wr = [regs[0], regs[1]]; self.rd = [regs[0], regs[1]]
            elif base in ('v_add_co_u32', 'v_sub_co_u32', 'v_addc_co_u32', 'v_subb_co_u32'):
                self.wr = [regs[0], regs[1]]; self.rd = [r for r in regs[2:] if r]
            else:
                self.wr = [regs[0]]; self.rd = [r for r in regs[1:] if r]
                if base.startswith('v_fmac') or base.startswith('v_dot2c') or base.startswith('v_pk_fmac') or base == 'v_writelane_b32' or ('op_sel' in mods and not base.startswith('v_pk_')):
                    self.rd.append(regs[0])
                if base.startswith('v_cndmask') and len(toks) == 3: self.rd.append(('s', 106, 107))
        elif base.startswith('ds_'):
            self.kind = 'ds'
            if base.startswith('ds_read') or base.startswith('ds_bpermute') or base.startswith('ds_permute') or base.startswith('ds_swizzle'):
                self.wr = [regs[0]]; self.rd = [r for r in regs[1:] if r]
            else:
                self.rd = [r for r in regs if r]
        elif base.startswith('buffer_') or base.startswith('global_'):
            self.kind = 'vmem'
            islds = ' lds' in (' ' + mods) or '_lds_' in base
            if base in ('buffer_wbl2', 'buffer_inv'):
                pass
            elif 'load' in base and not islds:
                self.wr = [regs[0]]; self.rd = [r for r in regs[1:] if r]
            elif 'atomic' in base and 'sc0' in mods:
                self.wr = [regs[0]]; self.rd = [r for r in regs if r]
            else:
                self.rd = [r for r in regs if r]
            if islds: self.rd.append(('s', 124, 124))
        elif base.startswith('s_'):
            self.kind = 'salu'
            if base.startswith('s_cmp') or base.startswith('s_cbranch') or base in ('s_branch', 's_barrier', 's_waitcnt', 's_endpgm', 's_sleep', 's_setprio', 's_setpc_b64'):
                self.rd = [r for r in regs if r]
            else:
                self.wr = [regs[0]] if regs and regs[0] else []
                self.rd = [r for r in regs[1:] if r]
                if 'saveexec' in base: self.wr.append(('s', 126, 127))
        else:
            raise ValueError('unknown instr ' + text)

def need(prev, cur):
    n = 0
    def ov(As, Bs): return any(overlap(a, b) for a in As for b in Bs)
    vfile = lambda rs: [r for r in rs if r[0] in 'va']
    sfile = lambda rs: [r for r in rs if r[0] == 's']
    if prev.kind == 'valu':
        pw = vfile(prev.wr); ps = sfile(prev.wr)
        if cur.kind == 'mfma' and ov(pw, cur.rd): n = max(n, 2)
        if cur.kind == 'valu':
            if prev.trans and not cur.trans and ov(pw, cur.rd): n = max(n, 1)
            if prev.trans and cur.trans and ov(pw, cur.rd): n = max(n, 1)
            if cur.op.startswith('v_permlane') and ov(pw, cur.rd): n = max(n, 2)
            if cur.op in ('v_readlane_b32', 'v_readfirstlane_b32') and ov(pw, cur.rd): n = max(n, 1)
            if cur.dpp and ov(pw, cur.rd): n = max(n, 2)
            if ps and ov(ps, sfile(cur.rd)): n = max(n, 4 if cur.op in ('v_readlane_b32', 'v_writelane_b32') else 2)
            if any(r[1] == 126 for r in ps):
                if cur.dpp: n = max(n, 5)
                if cur.op.startswith('v_permlane') or cur.op.startswith('v_read') : n = max(n, 4)
        if cur.kind == 'vmem' and ps and ov(ps, sfile(cur.rd)): n = max(n, 5)
        if cur.kind == 'salu' and ps and ov(ps, sfile(cur.rd)): n = max(n, 2)
        if cur.kind == 'mfma' and any(r[1] == 126 for r in ps): n = max(n, 4)
        if prev.trans and cur.kind in ('ds', 'vmem') and ov(pw, cur.rd): n = max(n, 1)
    if prev.kind == 'mfma':
        p = prev.passes
        full = {2: 5, 4: 8, 8: 12, 16: 20}[p]
        if cur.kind == 'mfma':
            ab = [r for r in cur.rd if r is not cur.srcc]
            if cur.srcc and overlap(prev.dst, cur.srcc):
                if not (cur.srcc == prev.dst and cur.passes == p):
                    n = max(n, {2: 4, 4: 6, 8: 10, 16: 18}[p])
            abr = cur.rd[:2]
            if ov([prev.dst], abr): n = max(n, full)
            if overlap(prev.dst, cur.dst) and not (cur.srcc == prev.dst and cur.passes == p):
                n = max(n, full)
        elif cur.kind in ('valu', 'ds', 'vmem'):
            if ov([prev.dst], cur.rd) or ov([prev.dst], cur.wr): n = max(n, full)
            if cur.kind == 'valu' and prev.srcc and ov([prev.srcc], cur.wr):
                n = max(n, {2: 1, 4: 3, 8: 7, 16: 15}[p])
    if prev.kind == 'vmem' and 'store' in prev.op and ('x4' in prev.op or 'x3' in prev.op):
        if cur.kind in ('valu',) and ov(vfile(prev.rd), cur.wr): n = max(n, 2)
        elif cur.kind in ('ds', 'vmem', 'mfma') and ov(vfile(prev.rd), cur.wr): n = max(n, 1)
    if prev.kind == 'ds' and 'write' in prev.op and ('b128' in prev.op or 'b96' in prev.op):
        if cur.kind == 'valu' and ov(vfile(prev.rd), cur.wr): n = max(n, 1)
    if prev.kind == 'salu' and any(r[1] == 124 for r in prev.wr):
        if cur.kind == 'vmem' and any(r[1] == 124 for r in cur.rd): n = max(n, 1)
    return n

class Emit:
    def __init__(self):
        self.out = []
        self.vm_issued = 0; self.vm_done = 0
        self.ds_issued = 0; self.ds_done = 0
    def __call__(self, s):
        self.out.append(s)
    def raw(self, s): self.out.append(s)
    def label(self, l): self.out.append(l + ':')
    def c(self, s): self.out.append('; ' + s)
    def vm(self, s):
        if self.vm_issued - self.vm_done >= 63:
            self.wait_vm(self.vm_issued - 62)
        self.out.append(s); self.vm_issued += 1
        return self.vm_issued
    def wait_vm(self, tok):
        if tok <= self.vm_done: return
        n = self.vm_issued - tok
        assert 0 <= n <= 63, n
        self.out.append(f's_waitcnt vmcnt({n})'); self.vm_done = tok
    def wait_vm_all(self):
        self.out.append('s_waitcnt vmcnt(0)'); self.vm_done = self.vm_issued
    def ds(self, s):
        if self.ds_issued - self.ds_done >= 15:
            self.wait_ds(self.ds_issued - 14)
        self.out.append(s); self.ds_issued += 1
        return self.ds_issued
    def wait_ds(self, tok):
        if tok <= self.ds_done: return
        n = self.ds_issued - tok
        assert 0 <= n <= 15, n
        self.out.append(f's_waitcnt lgkmcnt({n})'); self.ds_done = tok
    def wait_ds_all(self):
        self.out.append('s_waitcnt lgkmcnt(0)'); self.ds_done = self.ds_issued
    def barrier(self):
        self.out.append('s_barrier')

def hazard_pass(lines):
    res = []
    hist = []
    saved = {}
    MAXAGE = 24
    nins = 0
    for ln in lines:
        s = ln.split(';')[0].strip()
        if not s or s.startswith('.') and not s.endswith(':') or s.startswith('//'):
            res.append(ln); continue
        if s.endswith(':'):
            lab = s[:-1]
            if lab in saved:
                for h in saved[lab]:
                    d = {id(x[0]): x for x in hist}
                    for it, age in h:
                        if id(it) in d: d[id(it)][1] = min(d[id(it)][1], age)
                        else: hist.append([it, age])
            res.append(ln); continue
        cur = I(s)
        req = 0
        for it, age in hist:
            k = need(it, cur)
            if k > age: req = max(req, k - age)
        while req > 0:
            k = min(req, 16)
            res.append(f's_nop {k-1}'); nins += 1
            for x in hist: x[1] += k
            req -= k
        res.append(ln)
        for x in hist: x[1] += cur.states
        hist = [x for x in hist if x[1] < MAXAGE]
        if cur.kind in ('valu', 'mfma', 'vmem', 'ds', 'salu'):
            hist.append([cur, 0])
        if cur.op.startswith('s_cbranch') or cur.op == 's_branch':
            lab = s.split()[1]
            saved.setdefault(lab, []).append([[it, a] for it, a in hist])
            if cur.op == 's_branch': hist = []
        if cur.op == 's_endpgm': hist = []
    return res, nins
```

```python
import sys, struct
from asmlib import Emit, hazard_pass

NAME = "sequential_preLN__spectral_gfnet__glu_gated_swiglu__prompt"
KN = NAME + "_kernel"

T1_OFF  = 0x000000
T2_OFF  = 0x200000
HC_OFF  = 0x400000
HR_OFF  = 0x600000
ST1_OFF = 0x800000
ST2_OFF = 0x810000
W13_OFF = 0x900000
W2_OFF  = 0xD00000
HM_OFF  = 0x1000000
FL_OFF  = 0x1800000
DIAG_OFF = 0x1A00000
WS_SIZE = 0x1C00000
LDS_STAGE = 32768
LDS_STATS = 114688
LDS_BYTES = 114688 + 8192
MAXSPIN = 100000

DIAG = False
OPT = dict(st1=3, st2=2, epi=2, post=4, w3=8)
def f2u(x): return struct.unpack('<I', struct.pack('<f', x))[0]
def lit(x): return '0x%08x' % f2u(x)
def vr(a, n=1): return f'v{a}' if n == 1 else f'v[{a}:{a+n-1}]'
def ar(a, n=1): return f'a{a}' if n == 1 else f'a[{a}:{a+n-1}]'

S_X, S_WS, S_WR, S_WI, S_W1, S_W3, S_W2, S_OUT, S_DBG = 8, 12, 16, 20, 24, 28, 32, 36, 40
SX, SWS, SWR, SWI, SW1, SW3, SW2, SOUT, SDBG = [f's[{a}:{a+3}]' for a in (8, 12, 16, 20, 24, 28, 32, 36, 40)]
sW, sB, sGRP, sNONCE, sREP = 44, 45, 46, 47, 48
sR, sC, sSPIN = 49, 50, 51

def srd(e, d, ptr, size):
    e(f's_mov_b32 s{d}, s{ptr}')
    e(f's_and_b32 s{d+1}, s{ptr+1}, 0xffff')
    e(f's_mov_b32 s{d+2}, 0x{size:x}')
    e(f's_mov_b32 s{d+3}, 0x20000')

_stamp_n = [0]
STAMPS = []
def stamp(e, name):
    if not DIAG: return
    i = _stamp_n[0]; _stamp_n[0] += 1; STAMPS.append(name)
    e('s_memtime s[84:85]')
    e('s_waitcnt lgkmcnt(0)')
    e(f'v_writelane_b32 v255, s84, {i}')
def rstamp(e, name):
    if not DIAG: return
    i = _stamp_n[0]; _stamp_n[0] += 1; STAMPS.append(name)
    e('s_memrealtime s[84:85]')
    e('s_waitcnt lgkmcnt(0)')
    e(f'v_writelane_b32 v255, s84, {i}')

def xsum_groups(e, v, tmp):
    e(f'v_mov_b32 v{tmp}, v{v}')
    e(f'v_permlane32_swap_b32 v{tmp}, v{v}')
    e(f'v_add_f32 v{v}, v{v}, v{tmp}')
    e(f'v_mov_b32 v{tmp}, v{v}')
    e(f'v_permlane16_swap_b32 v{tmp}, v{v}')
    e(f'v_add_f32 v{v}, v{v}, v{tmp}')

def rot8(em, co, si, co2, si2, cs, neg_sin):
    C = 'op_sel:[0,0] op_sel_hi:[1,0]'
    S3 = 'op_sel:[0,1,0] op_sel_hi:[1,1,1]'
    NEG = ' neg_lo:[0,1,0] neg_hi:[0,1,0]'
    for p in range(4):
        em(f'v_pk_mul_f32 v[{co2+2*p}:{co2+2*p+1}], v[{co+2*p}:{co+2*p+1}], v[{cs}:{cs+1}] {C}')
        em(f'v_pk_mul_f32 v[{si2+2*p}:{si2+2*p+1}], v[{si+2*p}:{si+2*p+1}], v[{cs}:{cs+1}] {C}')
    for p in range(4):
        em(f'v_pk_fma_f32 v[{co2+2*p}:{co2+2*p+1}], v[{si+2*p}:{si+2*p+1}], v[{cs}:{cs+1}], v[{co2+2*p}:{co2+2*p+1}] {S3}' + ('' if neg_sin else NEG))
        em(f'v_pk_fma_f32 v[{si2+2*p}:{si2+2*p+1}], v[{co+2*p}:{co+2*p+1}], v[{cs}:{cs+1}], v[{si2+2*p}:{si2+2*p+1}] {S3}' + (NEG if neg_sin else ''))

_lab = [0]
def L(p):
    _lab[0] += 1
    return f'L{p}_{_lab[0]}'

def signal(e, sync):
    e.barrier()
    skip = L('sig')
    e(f's_cmp_lg_u32 s{sW}, 0')
    e(f's_cbranch_scc1 {skip}')
    e(f's_lshl_b32 s52, s2, 6')
    e(f's_add_u32 s52, s52, 0x{FL_OFF + sync*0x40000:x}')
    e(f'v_mov_b32 v14, s{sNONCE}')
    e('v_lshlrev_b32 v15, 14, v1')
    e('s_mov_b64 exec, 0xff')
    e(f'buffer_store_dword v14, v15, {SWS}, s52 offen sc1')
    e('s_mov_b64 exec, -1')
    e.label(skip)

def poll(e, sync, nflags, idx_code):
    skip = L('pollskip'); loop = L('poll'); done = L('polldone')
    e(f's_cmp_lg_u32 s{sW}, 0')
    e(f's_cbranch_scc1 {skip}')
    idx_code(e)
    e(f's_add_u32 s52, s{sREP}, 0x{FL_OFF + sync*0x40000:x}')
    e(f's_mov_b32 s{sSPIN}, 0')
    if nflags < 64: e(f's_mov_b64 exec, 0x{(1 << nflags) - 1:x}')
    e.label(loop)
    nl = max(1, nflags // 64)
    for i in range(nl):
        if i: e(f's_add_u32 s53, s52, {i*64*64}')
        e(f'buffer_load_dword v{6+i}, v5, {SWS}, {"s53" if i else "s52"} offen sc1')
    e('s_waitcnt vmcnt(0)')
    for i in range(nl): e(f'v_xor_b32 v{6+i}, s{sNONCE}, v{6+i}')
    if nl == 4:
        e('v_or_b32 v6, v6, v7'); e('v_or_b32 v8, v8, v9'); e('v_or_b32 v6, v6, v8')
    e('v_cmp_ne_u32 vcc, 0, v6')
    e('s_nop 4')
    e(f's_cbranch_vccz {done}')
    e(f's_add_u32 s{sSPIN}, s{sSPIN}, 1')
    e(f's_cmp_lt_u32 s{sSPIN}, {MAXSPIN}')
    e(f's_cbranch_scc1 {loop}')
    e.label(done)
    e('s_mov_b64 exec, -1')
    e.label(skip)
    e.barrier()

def p1_addr(e, i, lds):
    e(f's_lshl_b32 s53, s{sW}, 2')
    e(f's_add_u32 s53, s53, {i}')
    e('s_cmp_ge_u32 s53, 7')
    e('s_cselect_b32 s54, 7, 0')
    e('s_sub_u32 s54, s53, s54')
    e('s_lshl_b32 s54, s54, 6')
    e('v_add_u32 v12, s54, v1')
    e('v_mul_u32_u24 v13, 4682, v12')
    e('v_lshrrev_b32 v13, 16, v13')
    e('v_mul_u32_u24 v14, 14, v13')
    e('v_sub_u32 v14, v12, v14')
    e('v_lshlrev_b32 v14, 4, v14')
    if not lds:
        e('v_lshrrev_b32 v15, 4, v13')
        e('v_mul_u32_u24 v15, 208, v15')
        e('v_add_u32 v15, v15, v13')
        e('v_mul_u32_u24 v15, 3584, v15')
    else:
        e('v_mul_u32_u24 v15, 288, v13')
    e('v_add_u32 v15, v15, v14')

def p1_loads(e):
    e('s_lshr_b32 s52, s2, 4')
    e('s_lshl_b32 s52, s52, 4')
    e('s_mul_i32 s52, s52, 3584')
    e('s_and_b32 s55, s2, 15')
    e('s_mul_i32 s55, s55, 224')
    e('s_add_u32 s52, s52, s55')
    e(f's_mov_b32 s94, s{S_W1+2}')
    e('s_mov_b32 s95, 0x20000')
    for i in range(4):
        p1_addr(e, i, False)
        e(f's_lshl_b32 s53, s{sW}, 2')
        e(f's_add_u32 s53, s53, {i}')
        e('s_cmp_ge_u32 s53, 7')
        e(f's_cselect_b32 s92, s{S_W3}, s{S_W1}')
        e(f's_cselect_b32 s93, s{S_W3+1}, s{S_W1+1}')
        if i >= 2:
            e('s_cmp_ge_u32 s53, 14')
            e('s_cselect_b32 s94, 0, s94')
        e.vm(f'buffer_load_dwordx4 {ar(4*i,4)}, v15, s[92:95], s52 offen')

def w_prefetch(e):
    e('s_lshl_b32 s52, s2, 12')
    e('v_lshlrev_b32 v12, 4, v0')
    e('v_add_u32 v12, s52, v12')
    e.vm(f'buffer_load_dwordx4 a[16:19], v12, {SWR}, 0 offen')
    e.vm(f'buffer_load_dwordx4 a[16:19], v12, {SWI}, 0 offen')
assert all(((i * 4682) >> 16) == i // 14 for i in range(512))

def p1_finish(e):
    RS, MS, BASE = 288, 9344, LDS_STAGE
    for i in range(4):
        p1_addr(e, i, True)
        e(f's_lshl_b32 s53, s{sW}, 2')
        e(f's_add_u32 s53, s53, {i}')
        ski = L('p1wi')
        if i >= 2:
            e('s_cmp_ge_u32 s53, 14')
            e(f's_cbranch_scc1 {ski}')
        e('s_cmp_ge_u32 s53, 7')
        e(f's_cselect_b32 s53, {MS}, 0')
        e(f's_add_u32 s53, s53, {BASE}')
        e('v_add_u32 v15, s53, v15')
        e(f'ds_write_b128 v15, {ar(4*i,4)}')
        if i >= 2: e.label(ski)
    e.wait_ds_all()
    e.barrier()
    e('v_and_b32 v4, 1, v3')
    e(f'v_mul_u32_u24 v4, {MS}, v4')
    e('v_lshrrev_b32 v5, 1, v3')
    e('v_lshlrev_b32 v5, 2, v5')
    e('v_lshrrev_b32 v6, 2, v2')
    e('v_add_u32 v5, v5, v6')
    e(f'v_mul_u32_u24 v5, {RS}, v5')
    e('v_add_u32 v4, v4, v5')
    e('v_and_b32 v6, 3, v2')
    e('v_lshlrev_b32 v6, 3, v6')
    e('v_add_u32 v4, v4, v6')
    e(f's_and_b32 s52, s{sW}, 1')
    e(f's_mul_i32 s52, s52, {8*RS}')
    e(f's_lshr_b32 s53, s{sW}, 1')
    e('s_lshl_b32 s53, s53, 5')
    e('s_add_u32 s52, s52, s53')
    e(f's_add_u32 s52, s52, {BASE}')
    e('v_add_u32 v4, s52, v4')
    R = 216
    for m in range(4):
        e.ds(f'ds_read_b64_tr_b16 {vr(R+4*m,2)}, v4 offset:{64*m}')
        e.ds(f'ds_read_b64_tr_b16 {vr(R+4*m+2,2)}, v4 offset:{64*m + 16*RS}')
    e('s_and_b32 s52, s2, 15')
    e('s_mul_i32 s52, s52, 7')
    e(f's_lshr_b32 s53, s{sW}, 1')
    e('s_add_u32 s52, s52, s53')
    e('s_mul_i32 s52, s52, 28')
    e('s_lshr_b32 s53, s2, 4')
    e('s_lshl_b32 s53, s53, 1')
    e('s_add_u32 s52, s52, s53')
    e(f's_and_b32 s53, s{sW}, 1')
    e('s_add_u32 s52, s52, s53')
    e('s_lshl_b32 s52, s52, 10')
    e(f's_add_u32 s52, s52, 0x{W13_OFF:x}')
    e('v_lshlrev_b32 v5, 4, v1')
    e.wait_ds_all()
    sk = L('p1s')
    for m in range(4):
        if m == 3:
            e(f's_cmp_ge_u32 s{sW}, 2')
            e(f's_cbranch_scc1 {sk}')
        e(f's_add_u32 s53, s52, {m*2*28*1024}')
        st_ = f'buffer_store_dwordx4 {vr(R+4*m,4)}, v5, {SWS}, s53 offen sc1'
        if m < 3: e.vm(st_)
        else: e(st_)
    e.label(sk)

def w13_load_groups():
    gs = []
    for s_ in range(28):
        for mi in range(2):
            g = []
            if s_ % 7 == 0 and mi == 0:
                g += [f's_add_u32 s90, s89, {s_//7}', 's_and_b32 s90, s90, 3', 's_mul_i32 s90, s90, 7168', 's_add_u32 s90, s90, s88',
                      's_add_u32 s91, s90, 28672']
            i = s_ % 7
            if i == 4 and mi == 0: g += ['s_add_u32 s90, s90, 4096', 's_add_u32 s91, s91, 4096']
            g.append(('vm', f'buffer_load_dwordx4 {ar((mi*28+s_)*4,4)}, v254, s[92:95], s{90+mi} offen offset:{(i%4)*1024} sc1'))
            gs.append(g)
    return gs

def w13_setup(e):
    e(f's_mov_b32 s92, s{S_WS}')
    e(f's_mov_b32 s93, s{S_WS+1}')
    e(f's_cmp_ge_u32 s{sC}, 14')
    e(f's_cselect_b32 s94, 0, s{S_WS+2}')
    e('s_mov_b32 s95, 0x20000')
    e(f's_lshl_b32 s88, s{sC}, 3')
    e(f's_lshl_b32 s52, s{sW}, 1')
    e('s_add_u32 s88, s88, s52')
    e('s_mul_i32 s88, s88, 28672')
    e(f's_add_u32 s88, s88, 0x{W13_OFF:x}')
    e(f's_and_b32 s89, s{sR}, 3')
    e('v_lshlrev_b32 v254, 4, v1')

def emit_groups(e, groups):
    last = None
    for g in groups:
        for op in g:
            if isinstance(op, tuple): last = e.vm(op[1])
            else: e(op)
    return last

DMA = {}
def emit_interleaved(e, main, groups, start=0):
    n, m = len(main), len(groups)
    gi = 0; last = None
    for k, ins in enumerate(main):
        e(ins)
        if k >= start:
            want = ((k - start + 1) * m) // max(1, n - start)
            while gi < want:
                for op in groups[gi]:
                    if isinstance(op, tuple): last = e.vm(op[1])
                    else: e(op)
                gi += 1
    while gi < m:
        for op in groups[gi]:
            if isinstance(op, tuple): last = e.vm(op[1])
            else: e(op)
        gi += 1
    return last

def w13_trread(e, half):
    e('v_and_b32 v4, 1, v3')
    e('v_lshrrev_b32 v5, 1, v3')
    e('v_lshrrev_b32 v6, 2, v2')
    e('v_and_b32 v7, 3, v2')
    e('v_mul_u32_u24 v8, 57344, v4')
    e('v_lshlrev_b32 v9, 2, v5')
    e('v_add_u32 v9, v9, v6')
    e('v_lshlrev_b32 v9, 8, v9')
    e('v_add_u32 v8, v8, v9')
    e('v_and_b32 v9, 1, v7')
    e('v_lshlrev_b32 v9, 3, v9')
    e('v_add_u32 v8, v8, v9')
    e(f'v_add_u32 v8, {LDS_STAGE}, v8')
    e('v_lshrrev_b32 v7, 1, v7')
    e(f's_lshl_b32 s52, s{sW}, 2')
    e('v_add_u32 v7, s52, v7')
    e('v_lshlrev_b32 v6, 1, v6')
    e('v_lshlrev_b32 v4, 3, v4')
    e('v_xor_b32 v6, v6, v4')
    for mi in range(2):
        e(f'v_add_u32 v9, {2*mi}, v7')
        e('v_xor_b32 v9, v9, v6')
        e('v_lshlrev_b32 v9, 4, v9')
        e(f'v_add_u32 v{10+mi}, v8, v9')
    for mi in range(2):
        for jl in range(7):
            for gg in range(2):
                kap = 14 * half + 2 * jl + gg
                a = (mi * 28 + kap) * 4
                off = (16 * jl + 8 * gg) * 256
                e.ds(f'ds_read_b64_tr_b16 {ar(a,2)}, v{10+mi} offset:{off}')
                e.ds(f'ds_read_b64_tr_b16 {ar(a+2,2)}, v{10+mi} offset:{off + 112*256}')

def phase_a(e):
    e.c('======== phase A')
    e(f's_lshl_b32 s56, s{sGRP}, 2')
    e(f's_add_u32 s56, s56, s{sW}')
    e('s_min_u32 s57, s56, 13')
    e(f's_lshr_b32 s52, s{sW}, 1')
    e('s_lshl_b32 s52, s52, 10')
    e(f's_add_u32 s52, s52, s{sB}')
    e('v_lshlrev_b32 v4, 6, v2')
    e('v_add_u32 v4, s52, v4')
    e('v_mul_u32_u24 v4, 896, v4')
    e('v_lshlrev_b32 v5, 4, v3')
    e('v_add_u32 v4, v4, v5')
    e(f's_and_b32 s52, s{sW}, 1')
    e('s_mul_i32 s52, s52, 448')
    e('v_add_u32 v4, s52, v4')
    TA, FP, ACC, X = 16, 72, 96, 128
    xs_tok = [e.vm(f'buffer_load_dwordx4 {vr(X+4*i,4)}, v4, {SX}, 0 offen offset:{64*i}') for i in range(7)]
    stamp(e, 'A.issued')
    e('s_cmp_lt_u32 s57, 7')
    e('s_cselect_b32 s52, 2, 1')
    e('s_cselect_b32 s53, 0, 7')
    e('s_sub_u32 s53, s57, s53')
    e('s_lshl_b32 s53, s53, 5')
    e('s_add_u32 s53, s53, s52')
    e('s_cmp_lt_u32 s57, 7')
    e(f's_cselect_b32 s58, {lit(1.0)}, {lit(-1.0)}')
    e('v_lshlrev_b32 v5, 1, v2')
    e('v_add_u32 v5, s53, v5')
    e('v_cvt_f32_u32 v5, v5')
    e(f'v_mul_f32 v5, {lit(1.0/448)}, v5')
    e('v_lshlrev_b32 v6, 3, v3')
    e('v_cvt_f32_u32 v6, v6')
    e('v_mul_f32 v6, v6, v5')
    TH, CO, SI = ACC, ACC + 8, ACC + 16
    CO2, SI2 = X + 32, X + 40
    e(f'v_mul_f32 v7, {lit(32.0)}, v5')
    for j in range(8):
        if j == 0: e(f'v_mov_b32 v{TH+j}, v6')
        else: e(f'v_fmamk_f32 v{TH+j}, v5, {lit(float(j))}, v6')
    e('v_cos_f32 v8, v7')
    e('v_sin_f32 v9, v7')
    for j in range(8): e(f'v_cos_f32 v{CO+j}, v{TH+j}')
    for j in range(8): e(f'v_sin_f32_e64 v{SI+j}, -v{TH+j}')
    cur = (CO, SI); oth = (CO2, SI2)
    for t in range(7):
        if t < 6: rot8(e, cur[0], cur[1], oth[0], oth[1], 8, True)
        for i in range(4): e(f'v_cvt_pk_bf16_f32 v{TA+(t*2+0)*4+i}, v{cur[0]+2*i}, v{cur[0]+2*i+1}')
        for i in range(4): e(f'v_cvt_pk_bf16_f32 v{TA+(t*2+1)*4+i}, v{cur[1]+2*i}, v{cur[1]+2*i+1}')
        cur, oth = oth, cur
    e('s_mov_b32 s52, 0x80008000')
    e(f'v_cvt_f32_u32 v7, s{sB}')
    e(f'v_mul_f32 v7, {lit(1.0/64)}, v7')
    e('v_lshlrev_b32 v8, 2, v3')
    e('v_cvt_f32_u32 v8, v8')
    e('v_add_f32 v8, v8, v7')
    for mt in range(2):
        e(f'v_add_u32 v9, {16*mt}, v2')
        e('v_cvt_f32_u32 v9, v9')
        e(f'v_mul_f32 v9, {lit(1.0/32)}, v9')
        e('v_mul_f32 v10, v9, v8')
        for j in range(8):
            cst = 16 * (j >> 2) + (j & 3)
            if cst == 0: e(f'v_mov_b32 v{TH+j}, v10')
            else: e(f'v_fmamk_f32 v{TH+j}, v9, {lit(float(cst))}, v10')
        for j in range(8): e(f'v_cos_f32 v{CO+j}, v{TH+j}')
        for j in range(8): e(f'v_sin_f32 v{SI+j}, v{TH+j}')
        for i in range(4): e(f'v_cvt_pk_bf16_f32 v{FP+mt*12+i}, v{CO+2*i}, v{CO+2*i+1}')
        for i in range(4): e(f'v_cvt_pk_bf16_f32 v{FP+mt*12+4+i}, v{SI+2*i}, v{SI+2*i+1}')
        for i in range(4): e(f'v_xor_b32 v{FP+mt*12+8+i}, s52, v{FP+mt*12+4+i}')
    p1_loads(e)
    stamp(e, 'A.constgen')
    e(f's_mul_i32 s52, s{sW}, 7168')
    e('v_lshlrev_b32 v11, 4, v1')
    e('v_add_u32 v4, s52, v11')
    e('v_mov_b32 v5, 0')
    e('v_mov_b32 v6, 0')
    e('s_mov_b32 s52, 0x3f803f80')
    for i in range(7):
        e.wait_vm(xs_tok[i])
        e.ds(f'ds_write_b128 v4, {vr(X+4*i,4)} offset:{1024*i}')
        for d in range(4):
            e(f'v_dot2_f32_bf16 v5, v{X+4*i+d}, s52, v5')
            e(f'v_dot2_f32_bf16 v6, v{X+4*i+d}, v{X+4*i+d}, v6')
    xsum_groups(e, 5, 7)
    xsum_groups(e, 6, 8)
    e(f's_lshl_b32 s52, s{sW}, 7')
    e('v_lshlrev_b32 v7, 3, v2')
    e('v_add_u32 v7, s52, v7')
    e('v_mov_b32 v8, v5')
    e('v_mov_b32 v9, v6')
    e.ds('ds_write_b64 v7, v[8:9] offset:28672')
    e.wait_ds_all()
    stamp(e, 'A.xstaged')
    e.barrier()
    e('v_mov_b32 v250, 0')
    nonce_tok = e.vm(f'buffer_load_dword v251, v250, {SDBG}, 0 offen sc1')
    e('v_and_b32 v4, 31, v1')
    e('v_lshrrev_b32 v5, 4, v4')
    e('v_lshlrev_b32 v5, 8, v5')
    e('v_lshlrev_b32 v6, 3, v2')
    e('v_add_u32 v5, v5, v6')
    t0 = e.ds('ds_read_b64 v[6:7], v5 offset:28672')
    t1 = e.ds('ds_read_b64 v[8:9], v5 offset:28800')
    xt = {}
    order = [(half, t, mt) for half in range(2) for t in range(7) for mt in range(2)]
    def xreg(mt, tt): return X + (mt * 14 + tt) * 4
    nread = [0]
    def issue_x():
        half, t, mt = order[nread[0]]
        tt = t + 7 * half
        xt[(half, t, mt)] = e.ds(f'ds_read_b128 {vr(xreg(mt,tt),4)}, v11 offset:{(mt*14+tt)*1024}')
        nread[0] += 1
    for _ in range(8): issue_x()
    e.wait_ds(t1)
    e('v_add_f32 v6, v6, v8')
    e('v_add_f32 v7, v7, v9')
    e(f'v_mul_f32 v6, {lit(1.0/448)}, v6')
    e(f'v_mul_f32 v7, {lit(1.0/448)}, v7')
    e('v_fma_f32 v7, -v6, v6, v7')
    e('v_max_f32 v7, 0, v7')
    e(f'v_add_f32 v7, {lit(1e-5)}, v7')
    e('v_rsq_f32 v7, v7')
    e(f's_lshl_b32 s52, s{sW}, 7')
    e('v_lshlrev_b32 v8, 2, v4')
    e('v_add_u32 v9, s52, v8')
    e.ds('ds_write_b32 v9, v7 offset:29184')
    nm = L('nomean')
    e(f's_or_b32 s52, s{sGRP}, s{sW}')
    e('s_cmp_lg_u32 s52, 0')
    e(f's_cbranch_scc1 {nm}')
    e(f's_lshl_b32 s52, s{sB}, 7')
    e(f's_add_u32 s52, s52, 0x{ST1_OFF:x}')
    e(f'buffer_store_dword v6, v8, {SWS}, s52 offen sc1')
    e.label(nm)
    e(f's_lshl_b32 s52, s{sW}, 7')
    e('v_lshlrev_b32 v9, 4, v3')
    e('v_add_u32 v9, s52, v9')
    RR = 240
    tr0 = e.ds(f'ds_read_b128 {vr(RR,4)}, v9 offset:29184')
    tr1 = e.ds(f'ds_read_b128 {vr(RR+4,4)}, v9 offset:29248')
    def acc(mt, c, half): return ACC + ((mt * 2 + c) * 2 + half) * 4
    for (half, t, mt) in order:
        if nread[0] < len(order): issue_x()
        e.wait_ds(xt[(half, t, mt)])
        tt = t + 7 * half
        for c in range(2):
            a = acc(mt, c, half)
            e(f'v_mfma_f32_16x16x32_bf16 {vr(a,4)}, {vr(xreg(mt,tt),4)}, {vr(TA+(t*2+c)*4,4)}, {"0" if t == 0 else vr(a,4)}')
    e.wait_ds(tr1)
    stamp(e, 'A.mfma')
    BF = X; TMP = X + 8
    for c in range(2):
        for mt in range(2):
            for r in range(4): e(f'v_fma_f32 v{TMP+mt*4+r}, v{acc(mt,c,1)+r}, s58, v{acc(mt,c,0)+r}')
            for r in range(4): e(f'v_mul_f32 v{TMP+mt*4+r}, v{TMP+mt*4+r}, v{RR+mt*4+r}')
        for mt in range(2):
            for i in range(2):
                e(f'v_cvt_pk_bf16_f32 v{BF+c*4+mt*2+i}, v{TMP+mt*4+2*i}, v{TMP+mt*4+2*i+1}')
    TT = X + 16
    for mt in range(2):
        C, Sp, Sn = FP + mt * 12, FP + mt * 12 + 4, FP + mt * 12 + 8
        e(f'v_mfma_f32_16x16x32_bf16 {vr(TT+mt*8,4)}, {vr(C,4)}, {vr(BF,4)}, 0')
        e(f'v_mfma_f32_16x16x32_bf16 {vr(TT+mt*8+4,4)}, {vr(Sn,4)}, {vr(BF,4)}, 0')
        e(f'v_mfma_f32_16x16x32_bf16 {vr(TT+mt*8,4)}, {vr(Sp,4)}, {vr(BF+4,4)}, {vr(TT+mt*8,4)}')
        e(f'v_mfma_f32_16x16x32_bf16 {vr(TT+mt*8+4,4)}, {vr(C,4)}, {vr(BF+4,4)}, {vr(TT+mt*8+4,4)}')
    e('s_mov_b32 s52, %d' % (4 * 57344))
    e('v_mul_lo_u32 v4, v3, s52')
    e('v_lshlrev_b32 v5, 2, v2')
    e('v_add_u32 v4, v4, v5')
    e('s_lshl_b32 s52, s56, 12')
    e(f's_lshl_b32 s53, s{sB}, 6')
    e('s_add_u32 s52, s52, s53')
    OUT = X + 40
    for mt in range(2):
        for r in range(4): e(f'v_cvt_pk_bf16_f32 v{OUT+mt*4+r}, v{TT+mt*8+r}, v{TT+mt*8+4+r}')
    ns = L('nostoreA')
    e('s_cmp_ge_u32 s56, 14')
    e(f's_cbranch_scc1 {ns}')
    for mt in range(2):
        for r in range(4):
            e(f's_add_u32 s53, s52, {T1_OFF + (16*mt+r)*57344}')
            e(f'buffer_store_dword v{OUT+mt*4+r}, v4, {SWS}, s53 offen sc1')
    e.label(ns)
    stamp(e, 'A.stored')
    e.wait_vm_all()
    sk, lp, dn = L('nsk'), L('nlp'), L('ndn')
    e(f's_cmp_lg_u32 s{sW}, 0')
    e(f's_cbranch_scc1 {sk}')
    e(f's_mov_b32 s{sSPIN}, 0')
    e.label(lp)
    e(f'v_readfirstlane_b32 s{sNONCE}, v251')
    e('s_nop 1')
    e(f's_cmp_lg_u32 s{sNONCE}, 0')
    e(f's_cbranch_scc1 {dn}')
    e(f'buffer_load_dword v251, v250, {SDBG}, 0 offen sc1')
    e('s_waitcnt vmcnt(0)')
    e(f's_add_u32 s{sSPIN}, s{sSPIN}, 1')
    e(f's_cmp_lt_u32 s{sSPIN}, {MAXSPIN}')
    e(f's_cbranch_scc1 {lp}')
    e.label(dn)
    e.label(sk)
    stamp(e, 'A.drained')
    signal(e, 0)

def phase_p2(e):
    e.c('======== P2 (w2 re-layout)')
    done = L('p2done')
    e('s_cmp_ge_u32 s2, 252')
    e(f's_cbranch_scc1 {done}')
    e('s_sub_u32 s56, s2, 224')
    e('s_waitcnt vmcnt(0)')
    e.barrier()
    e.vm_issued = e.vm_done = 0
    e('s_mul_i32 s52, s56, 57344')
    e('v_lshlrev_b32 v4, 4, v0')
    toks = []
    for i in range(14):
        e(f's_add_u32 s53, s52, {i*4096}')
        toks.append(e.vm(f'buffer_load_dwordx4 {vr(16+4*i,4)}, v4, {SW2}, s53 offen'))
    for i in range(14):
        e(f'v_add_u32 v5, {i*256}, v0')
        e('v_mul_u32_u24 v6, 18725, v5')
        e('v_lshrrev_b32 v6, 20, v6')
        e('v_lshlrev_b32 v6, 5, v6')
        e('v_lshlrev_b32 v5, 4, v5')
        e(f'v_add_u32 v{80+i}, v5, v6')
        e(f'v_add_u32 v{80+i}, {LDS_STAGE}, v{80+i}')
    for i in range(14):
        e.wait_vm(toks[i])
        e.ds(f'ds_write_b128 v{80+i}, {vr(16+4*i,4)}')
    e.wait_ds_all()
    e.barrier()
    e('v_lshrrev_b32 v4, 1, v3')
    e('v_lshlrev_b32 v4, 2, v4')
    e('v_lshrrev_b32 v5, 2, v2')
    e('v_add_u32 v4, v4, v5')
    e(f's_lshl_b32 s53, s{sW}, 4')
    e('v_add_u32 v4, s53, v4')
    e('v_mul_u32_u24 v4, 928, v4')
    e('v_and_b32 v5, 1, v3')
    e('v_lshlrev_b32 v5, 4, v5')
    e('v_add_u32 v4, v4, v5')
    e('v_and_b32 v5, 1, v2')
    e('v_lshlrev_b32 v5, 3, v5')
    e('v_add_u32 v4, v4, v5')
    e('v_bfe_u32 v5, v2, 1, 1')
    e('v_mul_u32_u24 v5, 448, v5')
    e('v_add_u32 v4, v4, v5')
    e(f'v_add_u32 v4, {LDS_STAGE}, v4')
    e('v_lshlrev_b32 v5, 4, v1')
    for j in range(14):
        R = 16 + 4 * j
        e.ds(f'ds_read_b64_tr_b16 {vr(R,2)}, v4 offset:{32*j}')
        e.ds(f'ds_read_b64_tr_b16 {vr(R+2,2)}, v4 offset:{32*j + 8*928}')
    e.wait_ds_all()
    e('s_lshl_b32 s53, s56, 2')
    e(f's_add_u32 s53, s53, s{sW}')
    e('s_lshl_b32 s53, s53, 10')
    e(f's_add_u32 s53, s53, 0x{W2_OFF:x}')
    for j in range(14):
        e(f's_add_u32 s54, s53, {j*112*1024}')
        e.vm(f'buffer_store_dwordx4 {vr(16+4*j,4)}, v5, {SWS}, s54 offen sc1')
    e.label(done)
    e.wait_vm_all()
assert all(((p * 18725) >> 20) == p // 56 for p in range(3584)), "magic /56"

def phase_b(e):
    e.c('======== window 1 + phase B')
    e('s_and_b32 s56, s2, 7')
    e('s_lshr_b32 s57, s2, 3')
    e('s_mul_i32 s52, s57, 37')
    e('s_lshr_b32 s52, s52, 8')
    e('s_mul_i32 s53, s52, 7')
    e('s_sub_u32 s53, s57, s53')
    e('s_lshl_b32 s52, s52, 3')
    e('s_add_u32 s56, s56, s52')
    e('s_lshl_b32 s53, s53, 1')
    e(f's_lshr_b32 s54, s{sW}, 1')
    e('s_add_u32 s57, s53, s54')
    e('s_lshr_b32 s59, s53, 2')
    e(f's_and_b32 s58, s{sW}, 1')
    FC, FS, FN = 16, 32, 48
    TIN, BF, WR, WI, XA, YR, YI, YF = 64, 80, 96, 104, 112, 128, 136, 144
    e('s_cmp_lt_u32 s57, 7')
    e('s_cselect_b32 s52, 2, 1')
    e('s_cselect_b32 s53, 0, 7')
    e('s_sub_u32 s53, s57, s53')
    e('s_lshl_b32 s53, s53, 5')
    e('s_add_u32 s53, s53, s52')
    e('v_lshlrev_b32 v6, 1, v2')
    e('v_add_u32 v6, s53, v6')
    e('v_lshlrev_b32 v6, 1, v6')
    e('v_lshlrev_b32 v7, 7, v3')
    e('s_lshl_b32 s52, s58, 10')
    e('s_add_u32 s52, s52, s56')
    e('v_add_u32 v7, s52, v7')
    e('v_mul_u32_u24 v7, 450, v7')
    e('v_add_u32 v6, v6, v7')
    wtok = {}
    for mtl in range(2):
        for r in range(4):
            e(f's_mov_b32 s52, {(16*mtl+r)*14400}')
            e.vm(f'buffer_load_short_d16_hi v{WR+mtl*4+r}, v6, {SWR}, s52 offen')
            wtok[(mtl, r)] = e.vm(f'buffer_load_short_d16_hi v{WI+mtl*4+r}, v6, {SWI}, s52 offen')
    p1_finish(e)
    stamp(e, 'W1.p1')
    CO, SI, TH = 160, 176, 192
    groups = []
    main = []
    em = main.append
    em('s_lshl_b32 s52, s58, 5')
    em('v_add_u32 v8, s52, v2')
    em('v_cvt_f32_u32 v8, v8')
    em(f'v_mul_f32 v8, {lit(1.0/64)}, v8')
    em('v_lshlrev_b32 v9, 2, v3')
    for tt in range(2):
        em(f's_xor_b32 s52, s58, {tt}')
        em('s_lshl_b32 s52, s52, 5')
        em('v_add_u32 v10, s52, v9')
        em('v_cvt_f32_u32 v10, v10')
        em('v_mul_f32 v10, v10, v8')
        for j in range(8):
            cst = 16 * (j >> 2) + (j & 3)
            if cst == 0: em(f'v_mov_b32 v{TH+j}, v10')
            else: em(f'v_fmamk_f32 v{TH+j}, v8, {lit(float(cst))}, v10')
        for j in range(8): em(f'v_cos_f32 v{CO+tt*8+j}, v{TH+j}')
        for j in range(8): em(f'v_sin_f32 v{SI+tt*8+j}, v{TH+j}')
    def rot(kind, t, j, mt):
        qt = (mt * (j & 3)) & 3
        c, s = f'v{CO+t*8+j}', f'v{SI+t*8+j}'
        if kind == 'C': return [c, '-' + s, '-' + c, s][qt]
        if kind == 'S': return [s, c, '-' + s, '-' + c][qt]
        if kind == 'N': return ['-' + s, '-' + c, s, c][qt]
    for kind, base in (('C', FC), ('S', FS), ('N', FN)):
        for mtl in range(2):
            for tt in range(2):
                for i in range(4):
                    em(f'v_cvt_pk_bf16_f32 v{base+(mtl*2+tt)*4+i}, {rot(kind,tt,2*i,mtl)}, {rot(kind,tt,2*i+1,mtl)}')
    emit_interleaved(e, main, groups)
    e('s_mul_i32 s60, s56, 14')
    e('s_add_u32 s60, s60, s57')
    e('s_lshl_b32 s60, s60, 12')
    e(f's_add_u32 s60, s60, 0x{T1_OFF:x}')
    e('v_lshlrev_b32 v11, 8, v3')
    e('v_lshlrev_b32 v10, 2, v2')
    e('v_add_u32 v11, v11, v10')
    stamp(e, 'W1.ready')
    def idx(e):
        e('v_and_b32 v5, 7, v1')
        e('v_lshrrev_b32 v6, 3, v1')
        e('v_lshlrev_b32 v6, 5, v6')
        e('v_add_u32 v5, v5, v6')
        e('s_lshl_b32 s53, s59, 3')
        e('v_add_u32 v5, s53, v5')
        e('v_lshlrev_b32 v5, 6, v5')
    poll(e, 0, 64, idx)
    stamp(e, 'B.go')
    tin = {}
    for tt in range(2):
        e(f's_xor_b32 s52, s58, {tt}')
        e('s_lshl_b32 s52, s52, 11')
        e('s_add_u32 s52, s52, s60')
        for j in range(8):
            off = (16 * (j >> 2) + (j & 3)) * 64
            tin[(tt, j)] = e.vm(f'buffer_load_dword v{TIN+tt*8+j}, v11, {SWS}, s52 offen offset:{off} sc1')
    e('s_mov_b32 s52, 0x05040100')
    e('s_mov_b32 s53, 0x07060302')
    for tt in range(2):
        e.wait_vm(tin[(tt, 7)])
        for i in range(4):
            e(f'v_perm_b32 v{BF+tt*4+i}, v{TIN+tt*8+2*i+1}, v{TIN+tt*8+2*i}, s52')
            e(f'v_perm_b32 v{BF+8+tt*4+i}, v{TIN+tt*8+2*i+1}, v{TIN+tt*8+2*i}, s53')
    stamp(e, 'B.loaded')
    def fr(base, mtl, tt): return vr(base + (mtl * 2 + tt) * 4, 4)
    def mm(d, a, b, first): e(f'v_mfma_f32_16x16x32_bf16 {vr(d,4)}, {a}, {vr(b,4)}, {"0" if first else vr(d,4)}')
    BRE = lambda t: BF + t * 4
    BIM = lambda t: BF + 8 + t * 4
    for step in range(4):
        for mtl in range(2):
            xr, xi = XA + mtl * 8, XA + mtl * 8 + 4
            tt = step & 1
            if step < 2:
                mm(xr, fr(FC, mtl, tt), BRE(tt), step == 0); mm(xi, fr(FN, mtl, tt), BRE(tt), step == 0)
            else:
                mm(xr, fr(FS, mtl, tt), BIM(tt), False); mm(xi, fr(FC, mtl, tt), BIM(tt), False)
    e.wait_vm(wtok[(1, 3)])
    for mtl in range(2):
        for r in range(4):
            xr, xi = XA + mtl * 8 + r, XA + mtl * 8 + 4 + r
            wr, wi = WR + mtl * 4 + r, WI + mtl * 4 + r
            e(f'v_mul_f32 v{YR+mtl*4+r}, v{xr}, v{wr}')
            e(f'v_mul_f32 v{YI+mtl*4+r}, v{xr}, v{wi}')
            e(f'v_fma_f32 v{YR+mtl*4+r}, -v{xi}, v{wi}, v{YR+mtl*4+r}')
            e(f'v_fma_f32 v{YI+mtl*4+r}, v{xi}, v{wr}, v{YI+mtl*4+r}')
    for c, src in ((0, YR), (1, YI)):
        for i in range(4):
            e(f'v_cvt_pk_bf16_f32 v{YF+c*8+i}, v{src+(i>>1)*4+2*(i&1)}, v{src+(i>>1)*4+2*(i&1)+1}')
    e('v_lshlrev_b32 v10, 4, v1')
    e(f's_lshl_b32 s52, s{sW}, 11')
    e('v_add_u32 v12, s52, v10')
    e(f's_xor_b32 s52, s{sW}, 1')
    e('s_lshl_b32 s52, s52, 11')
    e('v_add_u32 v13, s52, v10')
    e.ds(f'ds_write_b128 v12, {vr(YF,4)}')
    e.ds(f'ds_write_b128 v12, {vr(YF+8,4)} offset:1024')
    e.wait_ds_all()
    e.barrier()
    p0 = e.ds(f'ds_read_b128 {vr(YF+4,4)}, v13')
    p1_ = e.ds(f'ds_read_b128 {vr(YF+12,4)}, v13 offset:1024')
    YRE = lambda t: YF + t * 4
    YIM = lambda t: YF + 8 + t * 4
    for mtl in range(2):
        xr, xi = XA + mtl * 8, XA + mtl * 8 + 4
        mm(xr, fr(FC, mtl, 0), YRE(0), True);  mm(xi, fr(FS, mtl, 0), YRE(0), True)
        mm(xr, fr(FN, mtl, 0), YIM(0), False); mm(xi, fr(FC, mtl, 0), YIM(0), False)
    e.wait_ds(p1_)
    for mtl in range(2):
        xr, xi = XA + mtl * 8, XA + mtl * 8 + 4
        mm(xr, fr(FC, mtl, 1), YRE(1), False); mm(xi, fr(FS, mtl, 1), YRE(1), False)
        mm(xr, fr(FN, mtl, 1), YIM(1), False); mm(xi, fr(FC, mtl, 1), YIM(1), False)
    e('s_mov_b32 s52, %d' % (4 * 28672))
    e('v_mul_lo_u32 v4, v3, s52')
    e('v_lshlrev_b32 v5, 2, v2')
    e('v_add_u32 v4, v4, v5')
    e('s_lshl_b32 s52, s57, 11')
    e('s_lshl_b32 s53, s56, 6')
    e('s_add_u32 s52, s52, s53')
    e(f's_mul_i32 s53, s58, {32*28672}')
    e('s_add_u32 s52, s52, s53')
    last = None
    for mtl in range(2):
        for r in range(4): e(f'v_cvt_pk_bf16_f32 v{TIN+mtl*4+r}, v{XA+mtl*8+r}, v{XA+mtl*8+4+r}')
        for r in range(4):
            e(f's_add_u32 s53, s52, {T2_OFF + (16*mtl+r)*28672}')
            last = e.vm(f'buffer_store_dword v{TIN+mtl*4+r}, v4, {SWS}, s53 offen sc1')
    stamp(e, 'B.stored')
    e.wait_vm_all()
    stamp(e, 'B.drained')

def phase_c(e):
    e.c('======== window 2 + phase C')
    e(f's_lshl_b32 s56, s{sGRP}, 2')
    e(f's_add_u32 s56, s56, s{sW}')
    e('s_min_u32 s57, s56, 13')
    G, TC, AIN, VA, PA, XR = 16, 48, 104, 136, 152, 168
    MEAN = XR + 8
    e('v_lshlrev_b32 v5, 6, v2')
    e(f'v_add_u32 v5, s{sB}, v5')
    e('v_mul_u32_u24 v5, 896, v5')
    e('v_lshlrev_b32 v6, 3, v3')
    e('v_add_u32 v5, v5, v6')
    e('s_lshl_b32 s52, s57, 5')
    e('v_add_u32 v5, s52, v5')
    for nt in range(2):
        for pm in range(2):
            e(f's_mov_b32 s52, {nt*16*64*896}')
            e.vm(f'buffer_load_dwordx2 {vr(XR+(nt*2+pm)*2,2)}, v5, {SX}, s52 offen offset:{448*pm}')
    groups = []
    main = []
    em = main.append
    TH, CO, SI = 180, 188, 196
    cscale = 2.0 / (2048.0 * 448.0)
    em('v_cvt_f32_u32 v7, v3')
    for nt in range(2):
        em(f'v_add_u32 v8, {16*nt}, v2')
        em('v_lshlrev_b32 v8, 6, v8')
        em(f'v_add_u32 v8, s{sB}, v8')
        em('v_cvt_f32_u32 v8, v8')
        em(f'v_mul_f32 v8, {lit(1.0/2048)}, v8')
        em('v_mul_f32 v9, v7, v8')
        for t in range(2):
            for ii in range(4):
                cst = 16 * t + 4 * ii
                if cst == 0: em(f'v_mov_b32 v{TH+t*4+ii}, v9')
                else: em(f'v_fmamk_f32 v{TH+t*4+ii}, v8, {lit(float(cst))}, v9')
        for j in range(8): em(f'v_cos_f32 v{CO+j}, v{TH+j}')
        for j in range(8): em(f'v_sin_f32 v{SI+j}, v{TH+j}')
        for j in range(8): em(f'v_mul_f32 v{CO+j}, {lit(cscale)}, v{CO+j}')
        for j in range(8): em(f'v_mul_f32 v{SI+j}, {lit(cscale)}, v{SI+j}')
        for t in range(2):
            for ii in range(4):
                j = t * 4 + ii
                em(f'v_cvt_pk_bf16_f32 v{G+((0*2+t)*2+nt)*4+ii}, v{CO+j}, -v{SI+j}')
                em(f'v_cvt_pk_bf16_f32 v{G+((1*2+t)*2+nt)*4+ii}, v{SI+j}, v{CO+j}')
    em('s_lshl_b32 s52, s57, 4')
    em('v_add_u32 v8, s52, v2')
    em('v_cvt_f32_u32 v8, v8')
    em(f'v_mul_f32 v8, {lit(1.0/448)}, v8')
    em('v_lshlrev_b32 v9, 3, v3')
    em('v_cvt_f32_u32 v9, v9')
    em('v_mul_f32 v9, v9, v8')
    em('v_cmp_eq_u32 vcc, 3, v3')
    em('v_mov_b32 v10, 1.0')
    em('v_mov_b32 v11, 0.5')
    em('v_cndmask_b32 v10, v10, v11, vcc')
    CO2, SI2 = 204, 212
    em(f'v_mul_f32 v7, {lit(32.0)}, v8')
    for h in range(2):
        for j in range(4):
            cst = 2 * j + (2 if h == 0 else 1)
            em(f'v_fmamk_f32 v{TH+h*4+j}, v8, {lit(float(cst))}, v9')
    em('v_cos_f32 v12, v7')
    em('v_sin_f32 v13, v7')
    for j in range(8): em(f'v_cos_f32 v{CO+j}, v{TH+j}')
    for j in range(8): em(f'v_sin_f32_e64 v{SI+j}, -v{TH+j}')
    cur = (CO, SI); oth = (CO2, SI2)
    for kp in range(7):
        if kp < 6: rot8(em, cur[0], cur[1], oth[0], oth[1], 12, True)
        else:
            em(f'v_mul_f32 v{cur[0]+3}, v{cur[0]+3}, v10')
            em(f'v_mul_f32 v{cur[1]+3}, v{cur[1]+3}, v10')
        for h, kb in enumerate((kp, kp + 7)):
            em(f'v_cvt_pk_bf16_f32 v{TC+kb*4+0}, v{cur[0]+h*4+0}, v{cur[0]+h*4+1}')
            em(f'v_cvt_pk_bf16_f32 v{TC+kb*4+1}, v{cur[0]+h*4+2}, v{cur[0]+h*4+3}')
            em(f'v_cvt_pk_bf16_f32 v{TC+kb*4+2}, v{cur[1]+h*4+0}, v{cur[1]+h*4+1}')
            em(f'v_cvt_pk_bf16_f32 v{TC+kb*4+3}, v{cur[1]+h*4+2}, v{cur[1]+h*4+3}')
        cur, oth = oth, cur
    emit_interleaved(e, main, groups)
    e('v_lshlrev_b32 v12, 2, v1')
    stamp(e, 'W2.ready')
    def idx(e): e('v_lshlrev_b32 v5, 6, v1')
    poll(e, 1, 256, idx)
    stamp(e, 'C.go')
    w13_setup(e)
    WG = w13_load_groups()
    wgi = [0]
    def wload(n):
        for _ in range(n):
            if wgi[0] < len(WG):
                emit_groups(e, [WG[wgi[0]]]); wgi[0] += 1
    atok = {}
    for i in range(4):
        e(f's_add_u32 s52, s{sW}, {4*i}')
        e('s_min_u32 s52, s52, 13')
        e(f's_mul_i32 s53, s{sB}, 14')
        e('s_add_u32 s52, s52, s53')
        e('s_lshl_b32 s52, s52, 11')
        e(f's_add_u32 s52, s52, 0x{T2_OFF:x}')
        for t in range(2):
            for ii in range(4):
                atok[(i, t, ii)] = e.vm(f'buffer_load_dword v{AIN+i*8+t*4+ii}, v12, {SWS}, s52 offen offset:{(16*t+4*ii)*64} sc1')
    e('v_lshlrev_b32 v6, 2, v2')
    e(f's_lshl_b32 s52, s{sB}, 7')
    e(f's_add_u32 s52, s52, 0x{ST1_OFF:x}')
    mtok = [e.vm(f'buffer_load_dword v{MEAN+nt}, v6, {SWS}, s52 offen offset:{64*nt} sc1') for nt in range(2)]
    e('v_lshlrev_b32 v11, 4, v1')
    e(f's_lshl_b32 s52, s{sW}, 11')
    e('v_add_u32 v12, s52, v11')
    PK = 204
    for i in range(4):
        e.wait_vm(atok[(i, 1, 3)])
        if i == 0: stamp(e, 'C.loaded')
        for nt in range(2):
            for out in range(2):
                d = VA + (out * 2 + nt) * 4
                e(f'v_mfma_f32_16x16x32_bf16 {vr(d,4)}, {vr(AIN+i*8,4)}, {vr(G+((out*2+0)*2+nt)*4,4)}, 0')
        for nt in range(2):
            for out in range(2):
                d = VA + (out * 2 + nt) * 4
                e(f'v_mfma_f32_16x16x32_bf16 {vr(d,4)}, {vr(AIN+i*8+4,4)}, {vr(G+((out*2+1)*2+nt)*4,4)}, {vr(d,4)}')
        sk = L('skip3')
        if i == 3:
            e(f's_cmp_ge_u32 s{sW}, 2')
            e(f's_cbranch_scc1 {sk}')
        for nt in range(2):
            p = PK + nt * 4 + (i & 1) * 8
            vre, vim = VA + (0 * 2 + nt) * 4, VA + (1 * 2 + nt) * 4
            e(f'v_cvt_pk_bf16_f32 v{p+0}, v{vre+0}, v{vre+1}')
            e(f'v_cvt_pk_bf16_f32 v{p+1}, v{vre+2}, v{vre+3}')
            e(f'v_cvt_pk_bf16_f32 v{p+2}, v{vim+0}, v{vim+1}')
            e(f'v_cvt_pk_bf16_f32 v{p+3}, v{vim+2}, v{vim+3}')
            e.ds(f'ds_write_b128 v12, {vr(p,4)} offset:{(4*i*2+nt)*1024}')
        if i == 3: e.label(sk)
        wload(OPT['st1'])
    e.wait_ds_all()
    stamp(e, 'C.st1')
    e.barrier()
    VB = 220
    order = [(kb, nt) for kb in range(14) for nt in range(2)]
    tok = {}
    nread = [0]
    def issue():
        kb, nt = order[nread[0]]
        tok[nread[0]] = e.ds(f'ds_read_b128 {vr(VB+(nread[0]%8)*4,4)}, v11 offset:{(kb*2+nt)*1024}')
        nread[0] += 1
    for _ in range(7): issue()
    for idx_, (kb, nt) in enumerate(order):
        e.wait_ds(tok[idx_])
        par = 0 if kb < 7 else 1
        d = PA + (par * 2 + nt) * 4
        first = kb in (0, 7)
        e(f'v_mfma_f32_16x16x32_bf16 {vr(d,4)}, {vr(TC+kb*4,4)}, {vr(VB+(idx_%8)*4,4)}, {"0" if first else vr(d,4)}')
        if nread[0] < len(order): issue()
        if OPT['st2'] and idx_ % OPT['st2'] == OPT['st2'] - 1: wload(1)
    stamp(e, 'C.st2')
    e.wait_vm(mtok[1])
    H, HP, CP, SQ = 104, 120, 128, 180
    e('s_mov_b32 s52, 0xffff0000')
    for nt in range(2):
        pe, po = PA + nt * 4, PA + 8 + nt * 4
        for pm in range(2):
            xr = XR + (nt * 2 + pm) * 2
            for r in range(4):
                hv = H + (nt * 2 + pm) * 4 + r
                e(f'{"v_add_f32" if pm == 0 else "v_sub_f32"} v{hv}, v{pe+r}, v{po+r}')
                xv = 184 + r
                if r & 1: e(f'v_and_b32 v{xv}, s52, v{xr+(r>>1)}')
                else: e(f'v_lshlrev_b32 v{xv}, 16, v{xr+(r>>1)}')
            for r in range(4):
                hv = H + (nt * 2 + pm) * 4 + r
                e(f'v_add_f32 v{hv}, v{hv}, v{184+r}')
            for i in range(2):
                hv = H + (nt * 2 + pm) * 4 + 2 * i
                e(f'v_cvt_pk_bf16_f32 v{HP+nt*4+pm*2+i}, v{hv}, v{hv+1}')
        e(f'v_mov_b32 v{SQ+nt}, 0')
        for q in range(4):
            hp = HP + nt * 4 + q
            e(f'v_lshlrev_b32 v188, 16, v{hp}')
            e(f'v_and_b32 v189, s52, v{hp}')
            e(f'v_sub_f32 v188, v188, v{MEAN+nt}')
            e(f'v_sub_f32 v189, v189, v{MEAN+nt}')
            e(f'v_fma_f32 v{SQ+nt}, v188, v188, v{SQ+nt}')
            e(f'v_fma_f32 v{SQ+nt}, v189, v189, v{SQ+nt}')
            e(f'v_cvt_pk_bf16_f32 v{CP+nt*4+q}, v188, v189')
            wload(OPT['epi'])
    e('v_lshrrev_b32 v4, 1, v3')
    e('v_lshlrev_b32 v4, 10, v4')
    e('v_and_b32 v5, 1, v3')
    e('v_lshlrev_b32 v5, 9, v5')
    e('v_add_u32 v4, v4, v5')
    e('v_lshlrev_b32 v5, 4, v2')
    e('v_add_u32 v4, v4, v5')
    e(f's_mul_i32 s52, s{sB}, 28')
    e('s_lshl_b32 s53, s57, 1')
    e('s_add_u32 s52, s52, s53')
    e('s_lshl_b32 s52, s52, 10')
    ns, st = L('cnostore'), L('cstat')
    e('s_cmp_ge_u32 s56, 14')
    e(f's_cbranch_scc1 {ns}')
    e(f's_add_u32 s53, s52, 0x{HC_OFF:x}')
    e(f's_add_u32 s54, s52, 0x{HR_OFF:x}')
    for nt in range(2):
        e(f'buffer_store_dwordx4 {vr(CP+nt*4,4)}, v4, {SWS}, s53 offen offset:{256*nt} sc1')
        e(f'buffer_store_dwordx4 {vr(HP+nt*4,4)}, v4, {SWS}, s54 offen offset:{256*nt} sc1')
    e.label(ns)
    for nt in range(2): xsum_groups(e, SQ + nt, 190)
    e('s_cmp_lt_u32 s56, 14')
    e(f's_cbranch_scc1 {st}')
    e(f'v_mov_b32 v{SQ}, 0')
    e(f'v_mov_b32 v{SQ+1}, 0')
    e.label(st)
    e('v_cmp_le_u32 vcc, 16, v1')
    e(f'v_cndmask_b32 v{SQ}, v{SQ}, v{SQ+1}, vcc')
    e('v_lshlrev_b32 v5, 2, v1')
    e(f's_lshl_b32 s52, s{sB}, 11')
    e('s_lshl_b32 s53, s56, 7')
    e('s_add_u32 s52, s52, s53')
    e(f's_add_u32 s52, s52, 0x{ST2_OFF:x}')
    e('s_mov_b64 exec, 0xffffffff')
    last = e.vm(f'buffer_store_dword v{SQ}, v5, {SWS}, s52 offen sc1')
    e('s_mov_b64 exec, -1')
    stamp(e, 'C.stored')
    wload(OPT['post'])
    e.wait_vm(last)
    stamp(e, 'C.drained')
    signal(e, 2)
    global W13_PENDING
    W13_PENDING = (WG, wgi)

def w2reg(mi, s_):
    o = 2 * s_ + mi
    if o < 23: return vr(160 + 4 * o, 4), None
    if o < 31: return ar(224 + 4 * (o - 23), 4), None
    oo = o - 31
    return ar(((oo & 1) * 28 + (oo >> 1)) * 4, 4), (oo & 1, oo >> 1)

def phase_g(e):
    e.c('======== window 3 + G1')
    WG, wgi = W13_PENDING
    wtok = {}
    for _ in range(min(OPT['w3'], len(WG) - wgi[0])):
        wtok[wgi[0]] = emit_groups(e, [WG[wgi[0]]]); wgi[0] += 1
    e('v_lshlrev_b32 v4, 4, v1')
    e(f's_lshl_b32 s56, s{sC}, 3')
    e(f's_lshl_b32 s52, s{sW}, 1')
    e('s_add_u32 s56, s56, s52')
    e(f's_lshl_b32 s57, s{sR}, 2')
    e('s_and_b32 s58, s2, 7')
    e('s_lshr_b32 s59, s2, 3')
    e('s_mul_i32 s52, s59, 37')
    e('s_lshr_b32 s52, s52, 8')
    e('s_mul_i32 s53, s52, 7')
    e('s_sub_u32 s59, s59, s53')
    e('s_lshl_b32 s52, s52, 3')
    e('s_add_u32 s58, s58, s52')
    e(f's_mul_i32 s52, s{sW}, 28')
    e(f's_and_b32 s54, s{sW}, 1')
    for mi in range(2):
        e(f's_xor_b32 s53, s54, {mi}')
        e('s_lshl_b32 s55, s59, 1')
        e('s_add_u32 s53, s53, s55')
        e('s_mul_i32 s53, s53, 112')
        e('s_add_u32 s53, s53, s52')
        e('s_lshl_b32 s53, s53, 10')
        e(f's_add_u32 s{60+mi}, s53, 0x{W2_OFF:x}')
    def grp_off(dst, g):
        return [f's_add_u32 s{dst}, s59, {g}', f's_cmp_ge_u32 s{dst}, 7', f's_cselect_b32 s55, 7, 0',
                f's_sub_u32 s{dst}, s{dst}, s55', f's_lshl_b32 s{dst}, s{dst}, 12']
    def w2load(o):
        s_, mi = o >> 1, o & 1
        reg, dep = w2reg(mi, s_)
        pre = []
        if s_ % 4 == 0 and mi == 0:
            pre = grp_off(62, s_ // 4) + ['s_add_u32 s63, s61, s62', 's_add_u32 s62, s60, s62']
        return pre + [('vm', f'buffer_load_dwordx4 {reg}, v4, {SWS}, s{62+mi} offen offset:{(s_%4)*1024} sc1')]
    def idx(e):
        e('v_lshrrev_b32 v5, 2, v1')
        e('v_add_u32 v5, s57, v5')
        e('v_and_b32 v6, 7, v5')
        e('v_lshrrev_b32 v5, 3, v5')
        e('v_lshlrev_b32 v5, 5, v5')
        e('v_add_u32 v5, v5, v6')
        e('v_and_b32 v6, 3, v1')
        e('v_lshlrev_b32 v6, 3, v6')
        e('v_add_u32 v5, v5, v6')
        e('v_lshlrev_b32 v5, 6, v5')
    e(f's_cmp_ge_u32 s{sC}, 14')
    e('s_cbranch_scc1 L_g2only')
    poll(e, 2, 16, idx)
    stamp(e, 'G1.go')
    ACC, BR, RRG, T = 64, 16, 48, 128
    ST = T
    dtok = {}
    e(f's_mul_i32 s96, s{sW}, 7168')
    e(f's_add_u32 s98, s{sR}, s{sW}')
    e('s_and_b32 s98, s98, 3')
    e('s_mul_i32 s98, s98, 7168')
    def hc_groups(nt):
        gs = []
        for i in range(7):
            g = []
            if i == 0:
                g += [f's_add_u32 s97, s57, {nt}', 's_mul_i32 s97, s97, 28672', 's_add_u32 s97, s97, s98', f's_add_u32 s97, s97, 0x{HC_OFF:x}']
            if i == 4: g += ['s_add_u32 s97, s97, 4096']
            if i in (0, 4): g += [f's_add_u32 m0, s96, {nt*28672 + (4096 if i == 4 else 0)}']
            g.append(('vm', f'buffer_load_dwordx4 v4, {SWS}, s97 offen offset:{(i%4)*1024} sc1 lds', ('hc', nt)))
            gs.append(g)
        return gs
    STK = []
    def emit_op(op):
        if isinstance(op, tuple) and op[0] == 'ds':
            STK.append(e.ds(op[1])); return None
        if isinstance(op, tuple) and op[0] == 'dswait':
            e.wait_ds(STK[op[1] * 8 + 7]); return None
        if isinstance(op, tuple):
            t = e.vm(op[1])
            if len(op) > 2:
                if op[2][0] == 'hc': dtok[op[2][1]] = t
                if op[2][0] == 'st': dtok['st'] = t
            return t
        e(op); return None
    for g in hc_groups(0):
        for op in g: emit_op(op)
    e(f's_add_u32 s54, s57, s{sW}')
    e('s_lshl_b32 s54, s54, 11')
    e(f's_add_u32 s54, s54, 0x{ST2_OFF:x}')
    e(f's_lshl_b32 s55, s{sW}, 11')
    e(f's_add_u32 m0, s55, {LDS_STATS}')
    e.vm(f'buffer_load_dwordx4 v4, {SWS}, s54 offen sc1 lds')
    dtok[0] = e.vm(f'buffer_load_dwordx4 v4, {SWS}, s54 offen offset:1024 sc1 lds')
    while wgi[0] < len(WG):
        wtok[wgi[0]] = emit_groups(e, [WG[wgi[0]]]); wgi[0] += 1
    e('v_add_u32 v6, 57344, v4')
    e('v_and_b32 v5, 31, v1')
    e('v_lshlrev_b32 v5, 2, v5')
    e('v_lshrrev_b32 v7, 5, v1')
    e('v_lshlrev_b32 v7, 10, v7')
    e('v_add_u32 v5, v5, v7')
    e(f'v_add_u32 v5, {LDS_STATS}, v5')
    def stat_ops():
        ops = []
        for nt in range(4):
            b0 = ST + nt * 8
            for i in range(8): ops.append(('ds', f'ds_read_b32 v{b0+i}, v5 offset:{nt*2048 + i*128}'))
        for nt in range(4):
            b0 = ST + nt * 8
            ops.append(('dswait', nt))
            ops += [f'v_add_f32 v{b0}, v{b0}, v{b0+1}', f'v_add_f32 v{b0+2}, v{b0+2}, v{b0+3}', f'v_add_f32 v{b0+4}, v{b0+4}, v{b0+5}',
                    f'v_add_f32 v{b0+6}, v{b0+6}, v{b0+7}', f'v_add_f32 v{b0}, v{b0}, v{b0+2}', f'v_add_f32 v{b0+4}, v{b0+4}, v{b0+6}',
                    f'v_add_f32 v{b0}, v{b0}, v{b0+4}', f'v_mov_b32 v{b0+1}, v{b0}', f'v_mov_b32 v7, {lit(1e-5)}',
                    f'v_permlane32_swap_b32 v{b0+1}, v{b0}', f'v_add_f32 v{b0}, v{b0}, v{b0+1}',
                    f'v_fmamk_f32 v{b0}, v{b0}, {lit(1.0/448)}, v7', f'v_rsq_f32 v{b0}, v{b0}', 's_nop 0',
                    f'v_mul_f32 v{RRG+nt}, {lit(-1.4426950408889634)}, v{b0}', f'v_mul_f32 v{RRG+4+nt}, v{b0}, v{b0}']
        return ops
    def epi_ops(nt):
        ops = []
        for mi in range(2):
            a = ACC + ((nt & 1) * 2 + mi) * 16
            T0 = T + mi * 16
            for r in range(8): ops.append(f'v_mul_f32 v{T0+r}, v{a+r}, v{RRG+nt}')
            for r in range(8):
                ops.append(f'v_exp_f32 v{T0+r}, v{T0+r}')
                ops.append(f'v_mul_f32 v{T0+8+r}, v{a+r}, v{a+8+r}')
            for r in range(8):
                ops.append(f'v_add_f32 v{T0+r}, 1.0, v{T0+r}')
                ops.append(f'v_mul_f32 v{T0+8+r}, v{T0+8+r}, v{RRG+4+nt}')
            for r in range(8): ops.append(f'v_rcp_f32 v{T0+r}, v{T0+r}')
            for r in range(8): ops.append(f'v_mul_f32 v{T0+8+r}, v{T0+8+r}, v{T0+r}')
            P = 56 + mi * 4
            for i in range(4): ops.append(f'v_cvt_pk_bf16_f32 v{P+i}, v{T0+8+2*i}, v{T0+8+2*i+1}')
            ops.append(f's_add_u32 s53, s57, {nt}')
            ops.append('s_mul_i32 s53, s53, 112')
            ops.append('s_add_u32 s53, s53, s56')
            ops.append(f's_add_u32 s53, s53, {mi}')
            ops.append('s_lshl_b32 s53, s53, 10')
            ops.append(f's_add_u32 s53, s53, 0x{HM_OFF:x}')
            ops.append(('vm', f'buffer_store_dwordx4 {vr(P,4)}, v4, {SWS}, s53 offen sc1', ('store',)))
        return ops
    bg = {0: hc_groups(1) + hc_groups(2), 1: hc_groups(3) + [w2load(o) for o in range(0, 9)],
          2: [w2load(o) for o in range(9, 25)], 3: [w2load(o) for o in range(25, 31)]}
    last_store = None
    next_late = 31
    for nt in range(4):
        e.wait_vm(dtok[nt])
        e.barrier()
        if nt == 0: stamp(e, 'G1.t0')
        fill = epi_ops(nt - 1) if nt > 0 else stat_ops()
        sttok = []
        fi = 0; gi = 0
        btok = {}
        n = [0]
        def issue():
            kap = n[0]
            base = 'v4' if nt < 2 else 'v6'
            off = ((nt & 1) * 28 + kap) * 1024
            btok[kap] = e.ds(f'ds_read_b128 {vr(BR+(kap%8)*4,4)}, {base} offset:{off}')
            n[0] += 1
        for _ in range(5): issue()
        nm = 0
        G_ = bg[nt]
        for kap in range(28):
            e.wait_ds(btok[kap])
            for mi in range(2):
                a = ACC + ((nt & 1) * 2 + mi) * 16
                if nt == 0 and (kap * 2 + mi) in wtok: e.wait_vm(wtok[kap * 2 + mi])
                e(f'v_mfma_f32_32x32x16_bf16 {vr(a,16)}, {ar((mi*28+kap)*4,4)}, {vr(BR+(kap%8)*4,4)}, {"0" if kap == 0 else vr(a,16)}')
                nm += 1
                if mi == 0 and n[0] < 28: issue()
                span = 24 if nt == 3 else 56
                want = (len(G_) * nm + span - 1) // span
                while gi < min(want, len(G_)):
                    for op in G_[gi]: emit_op(op)
                    gi += 1
                if nt == 3 and gi >= len(G_) and nm % 4 == 0 and next_late < 43:
                    dep = w2reg(next_late & 1, next_late >> 1)[1]
                    if dep[1] * 2 + dep[0] < nm:
                        for op in w2load(next_late): emit_op(op)
                        next_late += 1
                if nm > 3:
                    want = (len(fill) * (nm - 3) + 49) // 50
                    while fi < min(want, len(fill)):
                        t = emit_op(fill[fi]); fi += 1
        while fi < len(fill):
            emit_op(fill[fi]); fi += 1
        stamp(e, f'G1.tile{nt}')
    for op in epi_ops(3):
        t = emit_op(op)
        if isinstance(op, tuple): last_store = t
    stamp(e, 'G1.stored')
    while next_late < 56:
        for op in w2load(next_late): emit_op(op)
        next_late += 1
    e.wait_vm(last_store)
    stamp(e, 'G1.drained')
    signal(e, 3)
    e('s_cmp_ge_u32 s2, 224')
    e('s_cbranch_scc1 L_fin')
    e('s_branch L_g2')
    e.label('L_g2only')
    e('s_cmp_ge_u32 s2, 224')
    e('s_cbranch_scc1 L_fin')
    sv = (e.vm_issued, e.vm_done)
    for o in range(56):
        for op in w2load(o): e(op[1] if isinstance(op, tuple) else op)
    e.label('L_g2')
    e.c('======== G2')
    ACC2, BR2, HRR, NB = 16, 80, 152, 9
    e('s_lshl_b32 s57, s58, 1')
    e(f's_mul_i32 s52, s{sW}, 28')
    e(f's_lshr_b32 s54, s{sW}, 1')
    for ni in range(2):
        e(f's_xor_b32 s53, s54, {ni}')
        e('s_add_u32 s53, s53, s57')
        e('s_mul_i32 s53, s53, 112')
        e('s_add_u32 s53, s53, s52')
        e('s_lshl_b32 s53, s53, 10')
        e(f's_add_u32 s{88+ni}, s53, 0x{HM_OFF:x}')
    e('s_add_u32 s56, s54, s57')
    e('s_mul_i32 s52, s56, 28')
    e(f's_and_b32 s60, s{sW}, 1')
    e('s_lshl_b32 s53, s59, 1')
    e('s_add_u32 s60, s60, s53')
    e('s_lshl_b32 s53, s60, 1')
    e('s_add_u32 s52, s52, s53')
    e('s_lshl_b32 s52, s52, 10')
    e(f's_add_u32 s52, s52, 0x{HR_OFF:x}')
    e('s_mov_b32 s61, s52')
    def idx4(e):
        e('s_lshr_b32 s53, s58, 1')
        e('s_lshl_b32 s53, s53, 3')
        e('v_lshrrev_b32 v5, 1, v1')
        e('v_and_b32 v6, 1, v1')
        e('v_lshlrev_b32 v6, 7, v6')
        e('v_add_u32 v5, v5, v6')
        e('v_add_u32 v5, s53, v5')
        e('v_lshlrev_b32 v5, 6, v5')
    poll(e, 3, 14, idx4)
    stamp(e, 'G2.go')
    tok = {}
    nl = [0]
    def issue2():
        i = nl[0]
        if i % 4 == 0:
            for op in grp_off(62, i // 4): e(op)
            e('s_add_u32 s63, s89, s62')
            e('s_add_u32 s62, s88, s62')
        o = (i % 4) * 1024
        slot = i % NB
        e.vm(f'buffer_load_dwordx4 {vr(BR2+slot*8,4)}, v4, {SWS}, s62 offen offset:{o} sc1')
        tok[i] = e.vm(f'buffer_load_dwordx4 {vr(BR2+slot*8+4,4)}, v4, {SWS}, s63 offen offset:{o} sc1')
        nl[0] += 1
    for _ in range(NB): issue2()
    htok = [e.vm(f'buffer_load_dwordx4 {vr(HRR+4*gg,4)}, v4, {SWS}, s61 offen offset:{1024*gg} sc1') for gg in range(2)]
    for i in range(28):
        e.wait_vm(tok[i])
        if i == 0: stamp(e, 'G2.first')
        slot = i % NB
        for mi in range(2):
            for ni in range(2):
                a = ACC2 + (mi * 2 + ni) * 16
                e(f'v_mfma_f32_32x32x16_bf16 {vr(a,16)}, {w2reg(mi,i)[0]}, {vr(BR2+slot*8+ni*4,4)}, {"0" if i == 0 else vr(a,16)}')
        if nl[0] < 28: issue2()
    stamp(e, 'G2.mfma')
    for k, (mi, ni) in enumerate(((1, 0), (0, 1), (1, 1))):
        e(f's_xor_b32 s52, s{sW}, {k+1}')
        e('s_mul_i32 s52, s52, 12288')
        e(f'v_add_u32 v{5+k}, s52, v4')
    for k, (mi, ni) in enumerate(((1, 0), (0, 1), (1, 1))):
        a = ACC2 + (mi * 2 + ni) * 16
        for qd in range(4):
            e.ds(f'ds_write_b128 v{5+k}, {vr(a+qd*4,4)} offset:{k*4096 + qd*1024}')
    e.wait_ds_all()
    e.barrier()
    e(f's_mul_i32 s52, s{sW}, 12288')
    e('v_add_u32 v5, s52, v4')
    R0 = 80
    for k in range(3):
        for qd in range(4):
            e.ds(f'ds_read_b128 {vr(R0+k*16+qd*4,4)}, v5 offset:{k*4096 + qd*1024}')
    e.wait_ds_all()
    stamp(e, 'G2.red')
    for r in range(16):
        e(f'v_add_f32 v{R0+r}, v{R0+r}, v{R0+16+r}')
        e(f'v_add_f32 v{R0+32+r}, v{R0+32+r}, v{ACC2+r}')
    for r in range(16): e(f'v_add_f32 v{R0+r}, v{R0+r}, v{R0+32+r}')
    e.wait_vm(htok[1])
    e('s_mov_b32 s52, 0xffff0000')
    PK = 32
    for i in range(8): e(f'v_cvt_pk_bf16_f32 v{PK+i}, v{R0+2*i}, v{R0+2*i+1}')
    for i in range(8):
        e(f'v_lshlrev_b32 v48, 16, v{PK+i}')
        e(f'v_and_b32 v49, s52, v{PK+i}')
        e(f'v_lshlrev_b32 v50, 16, v{HRR+i}')
        e(f'v_and_b32 v51, s52, v{HRR+i}')
        e('v_add_f32 v48, v48, v50')
        e('v_add_f32 v49, v49, v51')
        dst = {0: 40, 1: 41, 4: 42, 5: 43, 2: 44, 3: 45, 6: 46, 7: 47}[i]
        e(f'v_cvt_pk_bf16_f32 v{dst}, v48, v49')
    e('v_permlane32_swap_b32 v40, v42')
    e('v_permlane32_swap_b32 v41, v43')
    e('v_permlane32_swap_b32 v44, v46')
    e('v_permlane32_swap_b32 v45, v47')
    e('v_and_b32 v5, 31, v1')
    e('v_lshlrev_b32 v5, 6, v5')
    e('v_add_u32 v5, s56, v5')
    e('v_mul_u32_u24 v5, 896, v5')
    e('v_lshrrev_b32 v6, 5, v1')
    e('v_lshlrev_b32 v6, 4, v6')
    e('v_add_u32 v5, v5, v6')
    e('s_lshl_b32 s52, s60, 5')
    e(f'buffer_store_dwordx4 v[40:43], v5, {SOUT}, s52 offen')
    e(f'buffer_store_dwordx4 v[44:47], v5, {SOUT}, s52 offen offset:448')
    stamp(e, 'G2.end')

DBGOUT = False
def dbg_out(e):
    sk = L('dbo')
    e('s_waitcnt vmcnt(0)')
    e('s_memrealtime s[84:85]')
    e('s_memtime s[90:91]')
    e('s_waitcnt lgkmcnt(0)')
    e(f's_cmp_lg_u32 s{sW}, 0')
    e(f's_cbranch_scc1 {sk}')
    e('s_and_b32 s52, s2, 63')
    e('s_cmp_lg_u32 s52, 0')
    e(f's_cbranch_scc1 {sk}')
    e('s_lshr_b32 s52, s2, 6')
    e('s_lshl_b32 s52, s52, 4')
    e('s_add_u32 s52, s52, 16')
    e('s_sub_u32 s53, s84, s86')
    e('s_sub_u32 s54, s90, s82')
    e('v_mov_b32 v4, s53'); e('v_mov_b32 v5, s54'); e('v_mov_b32 v6, s86'); e('v_mov_b32 v7, s84')
    e('v_mov_b32 v8, 0')
    e('s_mov_b64 exec, 1')
    e(f'buffer_store_dwordx4 v[4:7], v8, {SDBG}, s52 offen sc1')
    e('s_mov_b64 exec, -1')
    e.label(sk)

def diag_dump(e):
    if DBGOUT: dbg_out(e)
    if not DIAG: return
    e.wait_vm_all()
    rstamp(e, 'rt_end')
    e('s_lshl_b32 s52, s2, 2')
    e(f's_add_u32 s52, s52, s{sW}')
    e('s_lshl_b32 s52, s52, 8')
    e(f's_add_u32 s52, s52, 0x{DIAG_OFF:x}')
    e('v_lshlrev_b32 v4, 2, v1')
    e(f'buffer_store_dword v255, v4, {SWS}, s52 offen')

def kernel():
    e = Emit()
    e.label(KN)
    e('s_cmp_ge_u32 s2, 256')
    e('s_cbranch_scc1 L_end')
    e('s_load_dwordx16 s[64:79], s[0:1], 0')
    e('s_load_dwordx4 s[80:83], s[0:1], 64')
    e('s_memrealtime s[86:87]')
    if DBGOUT: e('s_memtime s[82:83]')
    if DIAG: e('v_mov_b32 v255, 0')
    e('v_lshrrev_b32 v4, 6, v0')
    e('v_and_b32 v1, 63, v0')
    e(f'v_readfirstlane_b32 s{sW}, v4')
    e('v_and_b32 v2, 15, v0')
    e('v_bfe_u32 v3, v0, 4, 2')
    e(f's_and_b32 s{sB}, s2, 7')
    e('s_lshr_b32 s52, s2, 5')
    e('s_lshl_b32 s52, s52, 3')
    e(f's_add_u32 s{sB}, s{sB}, s52')
    e(f's_lshr_b32 s{sGRP}, s2, 3')
    e(f's_and_b32 s{sGRP}, s{sGRP}, 3')
    e('s_lshr_b32 s52, s2, 3')
    e(f's_and_b32 s{sR}, s52, 15')
    e('s_lshr_b32 s52, s52, 4')
    e(f's_and_b32 s{sC}, s2, 7')
    e(f's_lshl_b32 s{sC}, s{sC}, 1')
    e(f's_add_u32 s{sC}, s{sC}, s52')
    e(f's_getreg_b32 s{sREP}, hwreg(HW_REG_XCC_ID, 0, 3)')
    e(f's_lshl_b32 s{sREP}, s{sREP}, 14')
    e(f's_mov_b32 s{sNONCE}, 0')
    e('s_waitcnt lgkmcnt(0)')
    srd(e, S_X, 64, 1835008)
    srd(e, S_WS, 82, WS_SIZE)
    srd(e, S_WR, 66, 2048 * 450)
    srd(e, S_WI, 68, 2048 * 450)
    srd(e, S_W1, 72, 448 * 3584)
    srd(e, S_W3, 74, 448 * 3584)
    srd(e, S_W2, 76, 1792 * 896)
    srd(e, S_OUT, 78, 1835008)
    srd(e, S_DBG, 80, 256)
    e('s_cmp_ge_u32 s2, 224')
    e(f's_cselect_b32 s{S_W1+2}, 0, s{S_W1+2}')
    e(f's_cselect_b32 s{S_W3+2}, 0, s{S_W3+2}')
    if DIAG:
        STAMPS.append('rt_start'); _stamp_n[0] += 1
        e('v_writelane_b32 v255, s86, 0')
    stamp(e, 'start')
    sk = L('nononce')
    e(f's_or_b32 s52, s2, s{sW}')
    e('s_cmp_lg_u32 s52, 0')
    e(f's_cbranch_scc1 {sk}')
    e('s_or_b32 s52, s86, 1')
    e('v_mov_b32 v4, s52')
    e('v_mov_b32 v5, 0')
    e('s_mov_b64 exec, 1')
    e(f'buffer_store_dword v4, v5, {SDBG}, 0 offen sc1')
    e('s_mov_b64 exec, -1')
    e.label(sk)
    phase_a(e)
    p2l, joinl = L('p2'), L('join')
    e('s_cmp_ge_u32 s2, 224')
    e(f's_cbranch_scc1 {p2l}')
    sv_ds = (e.ds_issued, e.ds_done)
    phase_b(e)
    e(f's_branch {joinl}')
    e.label(p2l)
    nstamp = _stamp_n[0]
    phase_p2(e)
    e.label(joinl)
    signal(e, 1)
    e.vm_issued = 0; e.vm_done = 0
    phase_c(e)
    phase_g(e)
    e.label('L_fin')
    diag_dump(e)
    e.label('L_end')
    e('s_endpgm')
    return e.out

def build():
    hdr = open('cdna_kernels/' + NAME + '.s.ref').read().split('; Override launch')[0]
    body = kernel()
    body, nn = hazard_pass(body)
    print(f'; {len(body)} lines, {nn} nops inserted', file=sys.stderr)
    lines = [hdr.rstrip('\n'),
             f'; @launch grid=(256,1,1) block=(256,1,1) lds={LDS_BYTES}',
             '.amdgcn_target "amdgcn-amd-amdhsa--gfx950"', '.text', f'.globl {KN}', '.p2align 8', f'.type {KN},@function']
    for ln in body: lines.append(ln if ln.endswith(':') else '    ' + ln)
    lines += ['.section .rodata,"a"', '.p2align 6', f'.amdhsa_kernel {KN}',
              '  .amdhsa_next_free_vgpr 512', '  .amdhsa_next_free_sgpr 100', '  .amdhsa_accum_offset 256',
              '  .amdhsa_group_segment_fixed_size 0', '  .amdhsa_kernarg_size 80', '  .amdhsa_user_sgpr_count 2',
              '  .amdhsa_user_sgpr_kernarg_segment_ptr 1', '  .amdhsa_system_sgpr_workgroup_id_x 1',
              '  .amdhsa_float_denorm_mode_32 3', '.end_amdhsa_kernel']
    return '\n'.join(lines) + '\n'

if __name__ == '__main__':
    for a in list(sys.argv):
        if a.startswith('--opt='):
            for kv in a[6:].split(','):
                k, v = kv.split('='); OPT[k] = int(v)
            sys.argv.remove(a)
    if '--dbgout' in sys.argv:
        DBGOUT = True; sys.argv.remove('--dbgout')
    if '--diag' in sys.argv:
        DIAG = True; sys.argv.remove('--diag')
    out = sys.argv[1] if len(sys.argv) > 1 else 'cdna_kernels/' + NAME + '.s'
    open(out, 'w').write(build())
    if DIAG:
        import json; json.dump(STAMPS, open(out + '.stamps.json', 'w'))
    print('written', out, file=sys.stderr)
```

```python
import sys, struct
from asmlib import Emit, hazard_pass

NAME = "sequential_preLN__spectral_gfnet__glu_gated_swiglu__prompt"
KN = NAME + "_kernel"

T1_OFF  = 0x000000
T2_OFF  = 0x200000
HC_OFF  = 0x400000
HR_OFF  = 0x600000
ST1_OFF = 0x800000
ST2_OFF = 0x810000
W13_OFF = 0x900000
W2_OFF  = 0xD00000
HM_OFF  = 0x1000000
FL_OFF  = 0x1800000
DIAG_OFF = 0x1A00000
WS_SIZE = 0x1C00000
LDS_STAGE = 32768
LDS_STATS = 114688
LDS_BYTES = 114688 + 8192
MAXSPIN = 100000

DIAG = False
OPT = dict(st1=3, st2=2, epi=2, post=4, w3=8, cpf=0, outmod=0)
def f2u(x): return struct.unpack('<I', struct.pack('<f', x))[0]
def lit(x): return '0x%08x' % f2u(x)
def vr(a, n=1): return f'v{a}' if n == 1 else f'v[{a}:{a+n-1}]'
def ar(a, n=1): return f'a{a}' if n == 1 else f'a[{a}:{a+n-1}]'

S_X, S_WS, S_WR, S_WI, S_W1, S_W3, S_W2, S_OUT, S_DBG = 8, 12, 16, 20, 24, 28, 32, 36, 40
SX, SWS, SWR, SWI, SW1, SW3, SW2, SOUT, SDBG = [f's[{a}:{a+3}]' for a in (8, 12, 16, 20, 24, 28, 32, 36, 40)]
sW, sB, sGRP, sNONCE, sREP = 44, 45, 46, 47, 48
sR, sC, sSPIN = 49, 50, 51

def srd(e, d, ptr, size):
    e(f's_mov_b32 s{d}, s{ptr}')
    e(f's_and_b32 s{d+1}, s{ptr+1}, 0xffff')
    e(f's_mov_b32 s{d+2}, 0x{size:x}')
    e(f's_mov_b32 s{d+3}, 0x20000')

_stamp_n = [0]
STAMPS = []
def stamp(e, name):
    if not DIAG: return
    i = _stamp_n[0]; _stamp_n[0] += 1; STAMPS.append(name)
    e('s_memtime s[84:85]')
    e('s_waitcnt lgkmcnt(0)')
    e(f'v_writelane_b32 v255, s84, {i}')
def rstamp(e, name):
    if not DIAG: return
    i = _stamp_n[0]; _stamp_n[0] += 1; STAMPS.append(name)
    e('s_memrealtime s[84:85]')
    e('s_waitcnt lgkmcnt(0)')
    e(f'v_writelane_b32 v255, s84, {i}')

def xsum_groups(e, v, tmp):
    e(f'v_mov_b32 v{tmp}, v{v}')
    e(f'v_permlane32_swap_b32 v{tmp}, v{v}')
    e(f'v_add_f32 v{v}, v{v}, v{tmp}')
    e(f'v_mov_b32 v{tmp}, v{v}')
    e(f'v_permlane16_swap_b32 v{tmp}, v{v}')
    e(f'v_add_f32 v{v}, v{v}, v{tmp}')

def rot8(em, co, si, co2, si2, cs, neg_sin):
    C = 'op_sel:[0,0] op_sel_hi:[1,0]'
    S3 = 'op_sel:[0,1,0] op_sel_hi:[1,1,1]'
    NEG = ' neg_lo:[0,1,0] neg_hi:[0,1,0]'
    for p in range(4):
        em(f'v_pk_mul_f32 v[{co2+2*p}:{co2+2*p+1}], v[{co+2*p}:{co+2*p+1}], v[{cs}:{cs+1}] {C}')
        em(f'v_pk_mul_f32 v[{si2+2*p}:{si2+2*p+1}], v[{si+2*p}:{si+2*p+1}], v[{cs}:{cs+1}] {C}')
    for p in range(4):
        em(f'v_pk_fma_f32 v[{co2+2*p}:{co2+2*p+1}], v[{si+2*p}:{si+2*p+1}], v[{cs}:{cs+1}], v[{co2+2*p}:{co2+2*p+1}] {S3}' + ('' if neg_sin else NEG))
        em(f'v_pk_fma_f32 v[{si2+2*p}:{si2+2*p+1}], v[{co+2*p}:{co+2*p+1}], v[{cs}:{cs+1}], v[{si2+2*p}:{si2+2*p+1}] {S3}' + (NEG if neg_sin else ''))

_lab = [0]
def L(p):
    _lab[0] += 1
    return f'L{p}_{_lab[0]}'

def signal(e, sync):
    e.barrier()
    skip = L('sig')
    e(f's_cmp_lg_u32 s{sW}, 0')
    e(f's_cbranch_scc1 {skip}')
    e(f's_lshl_b32 s52, s2, 6')
    e(f's_add_u32 s52, s52, 0x{FL_OFF + sync*0x40000:x}')
    e(f'v_mov_b32 v14, s{sNONCE}')
    e('v_lshlrev_b32 v15, 14, v1')
    e('s_mov_b64 exec, 0xff')
    e(f'buffer_store_dword v14, v15, {SWS}, s52 offen sc1')
    e('s_mov_b64 exec, -1')
    e.label(skip)

def poll(e, sync, nflags, idx_code):
    skip = L('pollskip'); loop = L('poll'); done = L('polldone')
    e(f's_cmp_lg_u32 s{sW}, 0')
    e(f's_cbranch_scc1 {skip}')
    idx_code(e)
    e(f's_add_u32 s52, s{sREP}, 0x{FL_OFF + sync*0x40000:x}')
    e(f's_mov_b32 s{sSPIN}, 0')
    if nflags < 64: e(f's_mov_b64 exec, 0x{(1 << nflags) - 1:x}')
    e.label(loop)
    nl = max(1, nflags // 64)
    for i in range(nl):
        if i: e(f's_add_u32 s53, s52, {i*64*64}')
        e(f'buffer_load_dword v{6+i}, v5, {SWS}, {"s53" if i else "s52"} offen sc1')
    e('s_waitcnt vmcnt(0)')
    for i in range(nl): e(f'v_xor_b32 v{6+i}, s{sNONCE}, v{6+i}')
    if nl == 4:
        e('v_or_b32 v6, v6, v7'); e('v_or_b32 v8, v8, v9'); e('v_or_b32 v6, v6, v8')
    e('v_cmp_ne_u32 vcc, 0, v6')
    e('s_nop 4')
    e(f's_cbranch_vccz {done}')
    e(f's_add_u32 s{sSPIN}, s{sSPIN}, 1')
    e(f's_cmp_lt_u32 s{sSPIN}, {MAXSPIN}')
    e(f's_cbranch_scc1 {loop}')
    e.label(done)
    e('s_mov_b64 exec, -1')
    e.label(skip)
    e.barrier()

def p1_addr(e, i, lds):
    e(f's_lshl_b32 s53, s{sW}, 2')
    e(f's_add_u32 s53, s53, {i}')
    e('s_cmp_ge_u32 s53, 7')
    e('s_cselect_b32 s54, 7, 0')
    e('s_sub_u32 s54, s53, s54')
    e('s_lshl_b32 s54, s54, 6')
    e('v_add_u32 v12, s54, v1')
    e('v_mul_u32_u24 v13, 4682, v12')
    e('v_lshrrev_b32 v13, 16, v13')
    e('v_mul_u32_u24 v14, 14, v13')
    e('v_sub_u32 v14, v12, v14')
    e('v_lshlrev_b32 v14, 4, v14')
    if not lds:
        e('v_lshrrev_b32 v15, 4, v13')
        e('v_mul_u32_u24 v15, 208, v15')
        e('v_add_u32 v15, v15, v13')
        e('v_mul_u32_u24 v15, 3584, v15')
    else:
        e('v_mul_u32_u24 v15, 288, v13')
    e('v_add_u32 v15, v15, v14')

def p1_loads(e):
    e('s_lshr_b32 s52, s2, 4')
    e('s_lshl_b32 s52, s52, 4')
    e('s_mul_i32 s52, s52, 3584')
    e('s_and_b32 s55, s2, 15')
    e('s_mul_i32 s55, s55, 224')
    e('s_add_u32 s52, s52, s55')
    e(f's_mov_b32 s94, s{S_W1+2}')
    e('s_mov_b32 s95, 0x20000')
    for i in range(4):
        p1_addr(e, i, False)
        e(f's_lshl_b32 s53, s{sW}, 2')
        e(f's_add_u32 s53, s53, {i}')
        e('s_cmp_ge_u32 s53, 7')
        e(f's_cselect_b32 s92, s{S_W3}, s{S_W1}')
        e(f's_cselect_b32 s93, s{S_W3+1}, s{S_W1+1}')
        if i >= 2:
            e('s_cmp_ge_u32 s53, 14')
            e('s_cselect_b32 s94, 0, s94')
        e.vm(f'buffer_load_dwordx4 {ar(4*i,4)}, v15, s[92:95], s52 offen')

def w_prefetch(e):
    e('s_lshl_b32 s52, s2, 12')
    e('v_lshlrev_b32 v12, 4, v0')
    e('v_add_u32 v12, s52, v12')
    e.vm(f'buffer_load_dwordx4 a[16:19], v12, {SWR}, 0 offen')
    e.vm(f'buffer_load_dwordx4 a[16:19], v12, {SWI}, 0 offen')
assert all(((i * 4682) >> 16) == i // 14 for i in range(512))

def p1_finish(e):
    RS, MS, BASE = 288, 9344, LDS_STAGE
    for i in range(4):
        p1_addr(e, i, True)
        e(f's_lshl_b32 s53, s{sW}, 2')
        e(f's_add_u32 s53, s53, {i}')
        ski = L('p1wi')
        if i >= 2:
            e('s_cmp_ge_u32 s53, 14')
            e(f's_cbranch_scc1 {ski}')
        e('s_cmp_ge_u32 s53, 7')
        e(f's_cselect_b32 s53, {MS}, 0')
        e(f's_add_u32 s53, s53, {BASE}')
        e('v_add_u32 v15, s53, v15')
        e(f'ds_write_b128 v15, {ar(4*i,4)}')
        if i >= 2: e.label(ski)
    e.wait_ds_all()
    e.barrier()
    e('v_and_b32 v4, 1, v3')
    e(f'v_mul_u32_u24 v4, {MS}, v4')
    e('v_lshrrev_b32 v5, 1, v3')
    e('v_lshlrev_b32 v5, 2, v5')
    e('v_lshrrev_b32 v6, 2, v2')
    e('v_add_u32 v5, v5, v6')
    e(f'v_mul_u32_u24 v5, {RS}, v5')
    e('v_add_u32 v4, v4, v5')
    e('v_and_b32 v6, 3, v2')
    e('v_lshlrev_b32 v6, 3, v6')
    e('v_add_u32 v4, v4, v6')
    e(f's_and_b32 s52, s{sW}, 1')
    e(f's_mul_i32 s52, s52, {8*RS}')
    e(f's_lshr_b32 s53, s{sW}, 1')
    e('s_lshl_b32 s53, s53, 5')
    e('s_add_u32 s52, s52, s53')
    e(f's_add_u32 s52, s52, {BASE}')
    e('v_add_u32 v4, s52, v4')
    R = 216
    for m in range(4):
        e.ds(f'ds_read_b64_tr_b16 {vr(R+4*m,2)}, v4 offset:{64*m}')
        e.ds(f'ds_read_b64_tr_b16 {vr(R+4*m+2,2)}, v4 offset:{64*m + 16*RS}')
    e('s_and_b32 s52, s2, 15')
    e('s_mul_i32 s52, s52, 7')
    e(f's_lshr_b32 s53, s{sW}, 1')
    e('s_add_u32 s52, s52, s53')
    e('s_mul_i32 s52, s52, 28')
    e('s_lshr_b32 s53, s2, 4')
    e('s_lshl_b32 s53, s53, 1')
    e('s_add_u32 s52, s52, s53')
    e(f's_and_b32 s53, s{sW}, 1')
    e('s_add_u32 s52, s52, s53')
    e('s_lshl_b32 s52, s52, 10')
    e(f's_add_u32 s52, s52, 0x{W13_OFF:x}')
    e('v_lshlrev_b32 v5, 4, v1')
    e.wait_ds_all()
    sk = L('p1s')
    for m in range(4):
        if m == 3:
            e(f's_cmp_ge_u32 s{sW}, 2')
            e(f's_cbranch_scc1 {sk}')
        e(f's_add_u32 s53, s52, {m*2*28*1024}')
        st_ = f'buffer_store_dwordx4 {vr(R+4*m,4)}, v5, {SWS}, s53 offen sc1'
        if m < 3: e.vm(st_)
        else: e(st_)
    e.label(sk)

def w13_load_groups():
    gs = []
    for s_ in range(28):
        for mi in range(2):
            g = []
            if s_ % 7 == 0 and mi == 0:
                g += [f's_add_u32 s90, s89, {s_//7}', 's_and_b32 s90, s90, 3', 's_mul_i32 s90, s90, 7168', 's_add_u32 s90, s90, s88',
                      's_add_u32 s91, s90, 28672']
            i = s_ % 7
            if i == 4 and mi == 0: g += ['s_add_u32 s90, s90, 4096', 's_add_u32 s91, s91, 4096']
            g.append(('vm', f'buffer_load_dwordx4 {ar((mi*28+s_)*4,4)}, v254, s[92:95], s{90+mi} offen offset:{(i%4)*1024} sc1'))
            gs.append(g)
    return gs

def w13_setup(e):
    e(f's_mov_b32 s92, s{S_WS}')
    e(f's_mov_b32 s93, s{S_WS+1}')
    e(f's_cmp_ge_u32 s{sC}, 14')
    e(f's_cselect_b32 s94, 0, s{S_WS+2}')
    e('s_mov_b32 s95, 0x20000')
    e(f's_lshl_b32 s88, s{sC}, 3')
    e(f's_lshl_b32 s52, s{sW}, 1')
    e('s_add_u32 s88, s88, s52')
    e('s_mul_i32 s88, s88, 28672')
    e(f's_add_u32 s88, s88, 0x{W13_OFF:x}')
    e(f's_and_b32 s89, s{sR}, 3')
    e('v_lshlrev_b32 v254, 4, v1')

def emit_groups(e, groups):
    last = None
    for g in groups:
        for op in g:
            if isinstance(op, tuple): last = e.vm(op[1])
            else: e(op)
    return last

DMA = {}
def emit_interleaved(e, main, groups, start=0):
    n, m = len(main), len(groups)
    gi = 0; last = None
    for k, ins in enumerate(main):
        e(ins)
        if k >= start:
            want = ((k - start + 1) * m) // max(1, n - start)
            while gi < want:
                for op in groups[gi]:
                    if isinstance(op, tuple): last = e.vm(op[1])
                    else: e(op)
                gi += 1
    while gi < m:
        for op in groups[gi]:
            if isinstance(op, tuple): last = e.vm(op[1])
            else: e(op)
        gi += 1
    return last

def w13_trread(e, half):
    e('v_and_b32 v4, 1, v3')
    e('v_lshrrev_b32 v5, 1, v3')
    e('v_lshrrev_b32 v6, 2, v2')
    e('v_and_b32 v7, 3, v2')
    e('v_mul_u32_u24 v8, 57344, v4')
    e('v_lshlrev_b32 v9, 2, v5')
    e('v_add_u32 v9, v9, v6')
    e('v_lshlrev_b32 v9, 8, v9')
    e('v_add_u32 v8, v8, v9')
    e('v_and_b32 v9, 1, v7')
    e('v_lshlrev_b32 v9, 3, v9')
    e('v_add_u32 v8, v8, v9')
    e(f'v_add_u32 v8, {LDS_STAGE}, v8')
    e('v_lshrrev_b32 v7, 1, v7')
    e(f's_lshl_b32 s52, s{sW}, 2')
    e('v_add_u32 v7, s52, v7')
    e('v_lshlrev_b32 v6, 1, v6')
    e('v_lshlrev_b32 v4, 3, v4')
    e('v_xor_b32 v6, v6, v4')
    for mi in range(2):
        e(f'v_add_u32 v9, {2*mi}, v7')
        e('v_xor_b32 v9, v9, v6')
        e('v_lshlrev_b32 v9, 4, v9')
        e(f'v_add_u32 v{10+mi}, v8, v9')
    for mi in range(2):
        for jl in range(7):
            for gg in range(2):
                kap = 14 * half + 2 * jl + gg
                a = (mi * 28 + kap) * 4
                off = (16 * jl + 8 * gg) * 256
                e.ds(f'ds_read_b64_tr_b16 {ar(a,2)}, v{10+mi} offset:{off}')
                e.ds(f'ds_read_b64_tr_b16 {ar(a+2,2)}, v{10+mi} offset:{off + 112*256}')

def phase_a(e):
    e.c('======== phase A')
    e(f's_lshl_b32 s56, s{sGRP}, 2')
    e(f's_add_u32 s56, s56, s{sW}')
    e('s_min_u32 s57, s56, 13')
    e(f's_lshr_b32 s52, s{sW}, 1')
    e('s_lshl_b32 s52, s52, 10')
    e(f's_add_u32 s52, s52, s{sB}')
    e('v_lshlrev_b32 v4, 6, v2')
    e('v_add_u32 v4, s52, v4')
    e('v_mul_u32_u24 v4, 896, v4')
    e('v_lshlrev_b32 v5, 4, v3')
    e('v_add_u32 v4, v4, v5')
    e(f's_and_b32 s52, s{sW}, 1')
    e('s_mul_i32 s52, s52, 448')
    e('v_add_u32 v4, s52, v4')
    TA, FP, ACC, X = 16, 72, 96, 128
    xs_tok = [e.vm(f'buffer_load_dwordx4 {vr(X+4*i,4)}, v4, {SX}, 0 offen offset:{64*i}') for i in range(7)]
    if OPT['cpf']:
        sk = L('cpf')
        e(f's_cmp_lg_u32 s{sW}, {OPT["cpf"]-1}')
        e(f's_cbranch_scc1 {sk}')
        e('s_getpc_b64 s[52:53]')
        e.label('L_pc')
        e('s_lshr_b32 s54, s2, 3')
        e('s_lshl_b32 s54, s54, 10')
        e('s_cmp_ge_u32 s54, L_fin-L_pc-1024')
        e(f's_cbranch_scc1 {sk}')
        e('v_lshlrev_b32 v5, 4, v1')
        e('v_add_u32 v5, s54, v5')
        e('global_load_dwordx4 a[20:23], v5, s[52:53]')
        e.label(sk)
    stamp(e, 'A.issued')
    e('s_cmp_lt_u32 s57, 7')
    e('s_cselect_b32 s52, 2, 1')
    e('s_cselect_b32 s53, 0, 7')
    e('s_sub_u32 s53, s57, s53')
    e('s_lshl_b32 s53, s53, 5')
    e('s_add_u32 s53, s53, s52')
    e('s_cmp_lt_u32 s57, 7')
    e(f's_cselect_b32 s58, {lit(1.0)}, {lit(-1.0)}')
    e('v_lshlrev_b32 v5, 1, v2')
    e('v_add_u32 v5, s53, v5')
    e('v_cvt_f32_u32 v5, v5')
    e(f'v_mul_f32 v5, {lit(1.0/448)}, v5')
    e('v_lshlrev_b32 v6, 3, v3')
    e('v_cvt_f32_u32 v6, v6')
    e('v_mul_f32 v6, v6, v5')
    TH, CO, SI = ACC, ACC + 8, ACC + 16
    CO2, SI2 = X + 32, X + 40
    e(f'v_mul_f32 v7, {lit(32.0)}, v5')
    for j in range(8):
        if j == 0: e(f'v_mov_b32 v{TH+j}, v6')
        else: e(f'v_fmamk_f32 v{TH+j}, v5, {lit(float(j))}, v6')
    e('v_cos_f32 v8, v7')
    e('v_sin_f32 v9, v7')
    for j in range(8): e(f'v_cos_f32 v{CO+j}, v{TH+j}')
    for j in range(8): e(f'v_sin_f32_e64 v{SI+j}, -v{TH+j}')
    cur = (CO, SI); oth = (CO2, SI2)
    for t in range(7):
        if t < 6: rot8(e, cur[0], cur[1], oth[0], oth[1], 8, True)
        for i in range(4): e(f'v_cvt_pk_bf16_f32 v{TA+(t*2+0)*4+i}, v{cur[0]+2*i}, v{cur[0]+2*i+1}')
        for i in range(4): e(f'v_cvt_pk_bf16_f32 v{TA+(t*2+1)*4+i}, v{cur[1]+2*i}, v{cur[1]+2*i+1}')
        cur, oth = oth, cur
    e('s_mov_b32 s52, 0x80008000')
    e(f'v_cvt_f32_u32 v7, s{sB}')
    e(f'v_mul_f32 v7, {lit(1.0/64)}, v7')
    e('v_lshlrev_b32 v8, 2, v3')
    e('v_cvt_f32_u32 v8, v8')
    e('v_add_f32 v8, v8, v7')
    for mt in range(2):
        e(f'v_add_u32 v9, {16*mt}, v2')
        e('v_cvt_f32_u32 v9, v9')
        e(f'v_mul_f32 v9, {lit(1.0/32)}, v9')
        e('v_mul_f32 v10, v9, v8')
        for j in range(8):
            cst = 16 * (j >> 2) + (j & 3)
            if cst == 0: e(f'v_mov_b32 v{TH+j}, v10')
            else: e(f'v_fmamk_f32 v{TH+j}, v9, {lit(float(cst))}, v10')
        for j in range(8): e(f'v_cos_f32 v{CO+j}, v{TH+j}')
        for j in range(8): e(f'v_sin_f32 v{SI+j}, v{TH+j}')
        for i in range(4): e(f'v_cvt_pk_bf16_f32 v{FP+mt*12+i}, v{CO+2*i}, v{CO+2*i+1}')
        for i in range(4): e(f'v_cvt_pk_bf16_f32 v{FP+mt*12+4+i}, v{SI+2*i}, v{SI+2*i+1}')
        for i in range(4): e(f'v_xor_b32 v{FP+mt*12+8+i}, s52, v{FP+mt*12+4+i}')
    p1_loads(e)
    stamp(e, 'A.constgen')
    e(f's_mul_i32 s52, s{sW}, 7168')
    e('v_lshlrev_b32 v11, 4, v1')
    e('v_add_u32 v4, s52, v11')
    e('v_mov_b32 v5, 0')
    e('v_mov_b32 v6, 0')
    e('s_mov_b32 s52, 0x3f803f80')
    for i in range(7):
        e.wait_vm(xs_tok[i])
        e.ds(f'ds_write_b128 v4, {vr(X+4*i,4)} offset:{1024*i}')
        for d in range(4):
            e(f'v_dot2_f32_bf16 v5, v{X+4*i+d}, s52, v5')
            e(f'v_dot2_f32_bf16 v6, v{X+4*i+d}, v{X+4*i+d}, v6')
    xsum_groups(e, 5, 7)
    xsum_groups(e, 6, 8)
    e(f's_lshl_b32 s52, s{sW}, 7')
    e('v_lshlrev_b32 v7, 3, v2')
    e('v_add_u32 v7, s52, v7')
    e('v_mov_b32 v8, v5')
    e('v_mov_b32 v9, v6')
    e.ds('ds_write_b64 v7, v[8:9] offset:28672')
    e.wait_ds_all()
    stamp(e, 'A.xstaged')
    e.barrier()
    e('v_mov_b32 v250, 0')
    nonce_tok = e.vm(f'buffer_load_dword v251, v250, {SDBG}, 0 offen sc1')
    e('v_and_b32 v4, 31, v1')
    e('v_lshrrev_b32 v5, 4, v4')
    e('v_lshlrev_b32 v5, 8, v5')
    e('v_lshlrev_b32 v6, 3, v2')
    e('v_add_u32 v5, v5, v6')
    t0 = e.ds('ds_read_b64 v[6:7], v5 offset:28672')
    t1 = e.ds('ds_read_b64 v[8:9], v5 offset:28800')
    xt = {}
    order = [(half, t, mt) for half in range(2) for t in range(7) for mt in range(2)]
    def xreg(mt, tt): return X + (mt * 14 + tt) * 4
    nread = [0]
    def issue_x():
        half, t, mt = order[nread[0]]
        tt = t + 7 * half
        xt[(half, t, mt)] = e.ds(f'ds_read_b128 {vr(xreg(mt,tt),4)}, v11 offset:{(mt*14+tt)*1024}')
        nread[0] += 1
    for _ in range(8): issue_x()
    e.wait_ds(t1)
    e('v_add_f32 v6, v6, v8')
    e('v_add_f32 v7, v7, v9')
    e(f'v_mul_f32 v6, {lit(1.0/448)}, v6')
    e(f'v_mul_f32 v7, {lit(1.0/448)}, v7')
    e('v_fma_f32 v7, -v6, v6, v7')
    e('v_max_f32 v7, 0, v7')
    e(f'v_add_f32 v7, {lit(1e-5)}, v7')
    e('v_rsq_f32 v7, v7')
    e(f's_lshl_b32 s52, s{sW}, 7')
    e('v_lshlrev_b32 v8, 2, v4')
    e('v_add_u32 v9, s52, v8')
    e.ds('ds_write_b32 v9, v7 offset:29184')
    nm = L('nomean')
    e(f's_or_b32 s52, s{sGRP}, s{sW}')
    e('s_cmp_lg_u32 s52, 0')
    e(f's_cbranch_scc1 {nm}')
    e(f's_lshl_b32 s52, s{sB}, 7')
    e(f's_add_u32 s52, s52, 0x{ST1_OFF:x}')
    e(f'buffer_store_dword v6, v8, {SWS}, s52 offen sc1')
    e.label(nm)
    e(f's_lshl_b32 s52, s{sW}, 7')
    e('v_lshlrev_b32 v9, 4, v3')
    e('v_add_u32 v9, s52, v9')
    RR = 240
    tr0 = e.ds(f'ds_read_b128 {vr(RR,4)}, v9 offset:29184')
    tr1 = e.ds(f'ds_read_b128 {vr(RR+4,4)}, v9 offset:29248')
    def acc(mt, c, half): return ACC + ((mt * 2 + c) * 2 + half) * 4
    for (half, t, mt) in order:
        if nread[0] < len(order): issue_x()
        e.wait_ds(xt[(half, t, mt)])
        tt = t + 7 * half
        for c in range(2):
            a = acc(mt, c, half)
            e(f'v_mfma_f32_16x16x32_bf16 {vr(a,4)}, {vr(xreg(mt,tt),4)}, {vr(TA+(t*2+c)*4,4)}, {"0" if t == 0 else vr(a,4)}')
    e.wait_ds(tr1)
    stamp(e, 'A.mfma')
    BF = X; TMP = X + 8
    for c in range(2):
        for mt in range(2):
            for r in range(4): e(f'v_fma_f32 v{TMP+mt*4+r}, v{acc(mt,c,1)+r}, s58, v{acc(mt,c,0)+r}')
            for r in range(4): e(f'v_mul_f32 v{TMP+mt*4+r}, v{TMP+mt*4+r}, v{RR+mt*4+r}')
        for mt in range(2):
            for i in range(2):
                e(f'v_cvt_pk_bf16_f32 v{BF+c*4+mt*2+i}, v{TMP+mt*4+2*i}, v{TMP+mt*4+2*i+1}')
    TT = X + 16
    for mt in range(2):
        C, Sp, Sn = FP + mt * 12, FP + mt * 12 + 4, FP + mt * 12 + 8
        e(f'v_mfma_f32_16x16x32_bf16 {vr(TT+mt*8,4)}, {vr(C,4)}, {vr(BF,4)}, 0')
        e(f'v_mfma_f32_16x16x32_bf16 {vr(TT+mt*8+4,4)}, {vr(Sn,4)}, {vr(BF,4)}, 0')
        e(f'v_mfma_f32_16x16x32_bf16 {vr(TT+mt*8,4)}, {vr(Sp,4)}, {vr(BF+4,4)}, {vr(TT+mt*8,4)}')
        e(f'v_mfma_f32_16x16x32_bf16 {vr(TT+mt*8+4,4)}, {vr(C,4)}, {vr(BF+4,4)}, {vr(TT+mt*8+4,4)}')
    e('s_mov_b32 s52, %d' % (4 * 57344))
    e('v_mul_lo_u32 v4, v3, s52')
    e('v_lshlrev_b32 v5, 2, v2')
    e('v_add_u32 v4, v4, v5')
    e('s_lshl_b32 s52, s56, 12')
    e(f's_lshl_b32 s53, s{sB}, 6')
    e('s_add_u32 s52, s52, s53')
    OUT = X + 40
    for mt in range(2):
        for r in range(4): e(f'v_cvt_pk_bf16_f32 v{OUT+mt*4+r}, v{TT+mt*8+r}, v{TT+mt*8+4+r}')
    ns = L('nostoreA')
    e('s_cmp_ge_u32 s56, 14')
    e(f's_cbranch_scc1 {ns}')
    for mt in range(2):
        for r in range(4):
            e(f's_add_u32 s53, s52, {T1_OFF + (16*mt+r)*57344}')
            e(f'buffer_store_dword v{OUT+mt*4+r}, v4, {SWS}, s53 offen sc1')
    e.label(ns)
    stamp(e, 'A.stored')
    e.wait_vm_all()
    sk, lp, dn = L('nsk'), L('nlp'), L('ndn')
    e(f's_cmp_lg_u32 s{sW}, 0')
    e(f's_cbranch_scc1 {sk}')
    e(f's_mov_b32 s{sSPIN}, 0')
    e.label(lp)
    e(f'v_readfirstlane_b32 s{sNONCE}, v251')
    e('s_nop 1')
    e(f's_cmp_lg_u32 s{sNONCE}, 0')
    e(f's_cbranch_scc1 {dn}')
    e(f'buffer_load_dword v251, v250, {SDBG}, 0 offen sc1')
    e('s_waitcnt vmcnt(0)')
    e(f's_add_u32 s{sSPIN}, s{sSPIN}, 1')
    e(f's_cmp_lt_u32 s{sSPIN}, {MAXSPIN}')
    e(f's_cbranch_scc1 {lp}')
    e.label(dn)
    e.label(sk)
    stamp(e, 'A.drained')
    signal(e, 0)

def phase_p2(e):
    e.c('======== P2 (w2 re-layout)')
    done = L('p2done')
    e('s_cmp_ge_u32 s2, 252')
    e(f's_cbranch_scc1 {done}')
    e('s_sub_u32 s56, s2, 224')
    e('s_waitcnt vmcnt(0)')
    e.barrier()
    e.vm_issued = e.vm_done = 0
    e('s_mul_i32 s52, s56, 57344')
    e('v_lshlrev_b32 v4, 4, v0')
    toks = []
    for i in range(14):
        e(f's_add_u32 s53, s52, {i*4096}')
        toks.append(e.vm(f'buffer_load_dwordx4 {vr(16+4*i,4)}, v4, {SW2}, s53 offen'))
    for i in range(14):
        e(f'v_add_u32 v5, {i*256}, v0')
        e('v_mul_u32_u24 v6, 18725, v5')
        e('v_lshrrev_b32 v6, 20, v6')
        e('v_lshlrev_b32 v6, 5, v6')
        e('v_lshlrev_b32 v5, 4, v5')
        e(f'v_add_u32 v{80+i}, v5, v6')
        e(f'v_add_u32 v{80+i}, {LDS_STAGE}, v{80+i}')
    for i in range(14):
        e.wait_vm(toks[i])
        e.ds(f'ds_write_b128 v{80+i}, {vr(16+4*i,4)}')
    e.wait_ds_all()
    e.barrier()
    e('v_lshrrev_b32 v4, 1, v3')
    e('v_lshlrev_b32 v4, 2, v4')
    e('v_lshrrev_b32 v5, 2, v2')
    e('v_add_u32 v4, v4, v5')
    e(f's_lshl_b32 s53, s{sW}, 4')
    e('v_add_u32 v4, s53, v4')
    e('v_mul_u32_u24 v4, 928, v4')
    e('v_and_b32 v5, 1, v3')
    e('v_lshlrev_b32 v5, 4, v5')
    e('v_add_u32 v4, v4, v5')
    e('v_and_b32 v5, 1, v2')
    e('v_lshlrev_b32 v5, 3, v5')
    e('v_add_u32 v4, v4, v5')
    e('v_bfe_u32 v5, v2, 1, 1')
    e('v_mul_u32_u24 v5, 448, v5')
    e('v_add_u32 v4, v4, v5')
    e(f'v_add_u32 v4, {LDS_STAGE}, v4')
    e('v_lshlrev_b32 v5, 4, v1')
    for j in range(14):
        R = 16 + 4 * j
        e.ds(f'ds_read_b64_tr_b16 {vr(R,2)}, v4 offset:{32*j}')
        e.ds(f'ds_read_b64_tr_b16 {vr(R+2,2)}, v4 offset:{32*j + 8*928}')
    e.wait_ds_all()
    e('s_lshl_b32 s53, s56, 2')
    e(f's_add_u32 s53, s53, s{sW}')
    e('s_lshl_b32 s53, s53, 10')
    e(f's_add_u32 s53, s53, 0x{W2_OFF:x}')
    for j in range(14):
        e(f's_add_u32 s54, s53, {j*112*1024}')
        e.vm(f'buffer_store_dwordx4 {vr(16+4*j,4)}, v5, {SWS}, s54 offen sc1')
    e.label(done)
    e.wait_vm_all()
assert all(((p * 18725) >> 20) == p // 56 for p in range(3584)), "magic /56"

def phase_b(e):
    e.c('======== window 1 + phase B')
    e('s_and_b32 s56, s2, 7')
    e('s_lshr_b32 s57, s2, 3')
    e('s_mul_i32 s52, s57, 37')
    e('s_lshr_b32 s52, s52, 8')
    e('s_mul_i32 s53, s52, 7')
    e('s_sub_u32 s53, s57, s53')
    e('s_lshl_b32 s52, s52, 3')
    e('s_add_u32 s56, s56, s52')
    e('s_lshl_b32 s53, s53, 1')
    e(f's_lshr_b32 s54, s{sW}, 1')
    e('s_add_u32 s57, s53, s54')
    e('s_lshr_b32 s59, s53, 2')
    e(f's_and_b32 s58, s{sW}, 1')
    FC, FS, FN = 16, 32, 48
    TIN, BF, WR, WI, XA, YR, YI, YF = 64, 80, 96, 104, 112, 128, 136, 144
    e('s_cmp_lt_u32 s57, 7')
    e('s_cselect_b32 s52, 2, 1')
    e('s_cselect_b32 s53, 0, 7')
    e('s_sub_u32 s53, s57, s53')
    e('s_lshl_b32 s53, s53, 5')
    e('s_add_u32 s53, s53, s52')
    e('v_lshlrev_b32 v6, 1, v2')
    e('v_add_u32 v6, s53, v6')
    e('v_lshlrev_b32 v6, 1, v6')
    e('v_lshlrev_b32 v7, 7, v3')
    e('s_lshl_b32 s52, s58, 10')
    e('s_add_u32 s52, s52, s56')
    e('v_add_u32 v7, s52, v7')
    e('v_mul_u32_u24 v7, 450, v7')
    e('v_add_u32 v6, v6, v7')
    wtok = {}
    for mtl in range(2):
        for r in range(4):
            e(f's_mov_b32 s52, {(16*mtl+r)*14400}')
            e.vm(f'buffer_load_short_d16_hi v{WR+mtl*4+r}, v6, {SWR}, s52 offen')
            wtok[(mtl, r)] = e.vm(f'buffer_load_short_d16_hi v{WI+mtl*4+r}, v6, {SWI}, s52 offen')
    p1_finish(e)
    stamp(e, 'W1.p1')
    CO, SI, TH = 160, 176, 192
    groups = []
    main = []
    em = main.append
    em('s_lshl_b32 s52, s58, 5')
    em('v_add_u32 v8, s52, v2')
    em('v_cvt_f32_u32 v8, v8')
    em(f'v_mul_f32 v8, {lit(1.0/64)}, v8')
    em('v_lshlrev_b32 v9, 2, v3')
    for tt in range(2):
        em(f's_xor_b32 s52, s58, {tt}')
        em('s_lshl_b32 s52, s52, 5')
        em('v_add_u32 v10, s52, v9')
        em('v_cvt_f32_u32 v10, v10')
        em('v_mul_f32 v10, v10, v8')
        for j in range(8):
            cst = 16 * (j >> 2) + (j & 3)
            if cst == 0: em(f'v_mov_b32 v{TH+j}, v10')
            else: em(f'v_fmamk_f32 v{TH+j}, v8, {lit(float(cst))}, v10')
        for j in range(8): em(f'v_cos_f32 v{CO+tt*8+j}, v{TH+j}')
        for j in range(8): em(f'v_sin_f32 v{SI+tt*8+j}, v{TH+j}')
    def rot(kind, t, j, mt):
        qt = (mt * (j & 3)) & 3
        c, s = f'v{CO+t*8+j}', f'v{SI+t*8+j}'
        if kind == 'C': return [c, '-' + s, '-' + c, s][qt]
        if kind == 'S': return [s, c, '-' + s, '-' + c][qt]
        if kind == 'N': return ['-' + s, '-' + c, s, c][qt]
    for kind, base in (('C', FC), ('S', FS), ('N', FN)):
        for mtl in range(2):
            for tt in range(2):
                for i in range(4):
                    em(f'v_cvt_pk_bf16_f32 v{base+(mtl*2+tt)*4+i}, {rot(kind,tt,2*i,mtl)}, {rot(kind,tt,2*i+1,mtl)}')
    emit_interleaved(e, main, groups)
    e('s_mul_i32 s60, s56, 14')
    e('s_add_u32 s60, s60, s57')
    e('s_lshl_b32 s60, s60, 12')
    e(f's_add_u32 s60, s60, 0x{T1_OFF:x}')
    e('v_lshlrev_b32 v11, 8, v3')
    e('v_lshlrev_b32 v10, 2, v2')
    e('v_add_u32 v11, v11, v10')
    stamp(e, 'W1.ready')
    def idx(e):
        e('v_and_b32 v5, 7, v1')
        e('v_lshrrev_b32 v6, 3, v1')
        e('v_lshlrev_b32 v6, 5, v6')
        e('v_add_u32 v5, v5, v6')
        e('s_lshl_b32 s53, s59, 3')
        e('v_add_u32 v5, s53, v5')
        e('v_lshlrev_b32 v5, 6, v5')
    poll(e, 0, 64, idx)
    stamp(e, 'B.go')
    tin = {}
    for tt in range(2):
        e(f's_xor_b32 s52, s58, {tt}')
        e('s_lshl_b32 s52, s52, 11')
        e('s_add_u32 s52, s52, s60')
        for j in range(8):
            off = (16 * (j >> 2) + (j & 3)) * 64
            tin[(tt, j)] = e.vm(f'buffer_load_dword v{TIN+tt*8+j}, v11, {SWS}, s52 offen offset:{off} sc1')
    e('s_mov_b32 s52, 0x05040100')
    e('s_mov_b32 s53, 0x07060302')
    for tt in range(2):
        e.wait_vm(tin[(tt, 7)])
        for i in range(4):
            e(f'v_perm_b32 v{BF+tt*4+i}, v{TIN+tt*8+2*i+1}, v{TIN+tt*8+2*i}, s52')
            e(f'v_perm_b32 v{BF+8+tt*4+i}, v{TIN+tt*8+2*i+1}, v{TIN+tt*8+2*i}, s53')
    stamp(e, 'B.loaded')
    def fr(base, mtl, tt): return vr(base + (mtl * 2 + tt) * 4, 4)
    def mm(d, a, b, first): e(f'v_mfma_f32_16x16x32_bf16 {vr(d,4)}, {a}, {vr(b,4)}, {"0" if first else vr(d,4)}')
    BRE = lambda t: BF + t * 4
    BIM = lambda t: BF + 8 + t * 4
    for step in range(4):
        for mtl in range(2):
            xr, xi = XA + mtl * 8, XA + mtl * 8 + 4
            tt = step & 1
            if step < 2:
                mm(xr, fr(FC, mtl, tt), BRE(tt), step == 0); mm(xi, fr(FN, mtl, tt), BRE(tt), step == 0)
            else:
                mm(xr, fr(FS, mtl, tt), BIM(tt), False); mm(xi, fr(FC, mtl, tt), BIM(tt), False)
    e.wait_vm(wtok[(1, 3)])
    for mtl in range(2):
        for r in range(4):
            xr, xi = XA + mtl * 8 + r, XA + mtl * 8 + 4 + r
            wr, wi = WR + mtl * 4 + r, WI + mtl * 4 + r
            e(f'v_mul_f32 v{YR+mtl*4+r}, v{xr}, v{wr}')
            e(f'v_mul_f32 v{YI+mtl*4+r}, v{xr}, v{wi}')
            e(f'v_fma_f32 v{YR+mtl*4+r}, -v{xi}, v{wi}, v{YR+mtl*4+r}')
            e(f'v_fma_f32 v{YI+mtl*4+r}, v{xi}, v{wr}, v{YI+mtl*4+r}')
    for c, src in ((0, YR), (1, YI)):
        for i in range(4):
            e(f'v_cvt_pk_bf16_f32 v{YF+c*8+i}, v{src+(i>>1)*4+2*(i&1)}, v{src+(i>>1)*4+2*(i&1)+1}')
    e('v_lshlrev_b32 v10, 4, v1')
    e(f's_lshl_b32 s52, s{sW}, 11')
    e('v_add_u32 v12, s52, v10')
    e(f's_xor_b32 s52, s{sW}, 1')
    e('s_lshl_b32 s52, s52, 11')
    e('v_add_u32 v13, s52, v10')
    e.ds(f'ds_write_b128 v12, {vr(YF,4)}')
    e.ds(f'ds_write_b128 v12, {vr(YF+8,4)} offset:1024')
    e.wait_ds_all()
    e.barrier()
    p0 = e.ds(f'ds_read_b128 {vr(YF+4,4)}, v13')
    p1_ = e.ds(f'ds_read_b128 {vr(YF+12,4)}, v13 offset:1024')
    YRE = lambda t: YF + t * 4
    YIM = lambda t: YF + 8 + t * 4
    for mtl in range(2):
        xr, xi = XA + mtl * 8, XA + mtl * 8 + 4
        mm(xr, fr(FC, mtl, 0), YRE(0), True);  mm(xi, fr(FS, mtl, 0), YRE(0), True)
        mm(xr, fr(FN, mtl, 0), YIM(0), False); mm(xi, fr(FC, mtl, 0), YIM(0), False)
    e.wait_ds(p1_)
    for mtl in range(2):
        xr, xi = XA + mtl * 8, XA + mtl * 8 + 4
        mm(xr, fr(FC, mtl, 1), YRE(1), False); mm(xi, fr(FS, mtl, 1), YRE(1), False)
        mm(xr, fr(FN, mtl, 1), YIM(1), False); mm(xi, fr(FC, mtl, 1), YIM(1), False)
    e('s_mov_b32 s52, %d' % (4 * 28672))
    e('v_mul_lo_u32 v4, v3, s52')
    e('v_lshlrev_b32 v5, 2, v2')
    e('v_add_u32 v4, v4, v5')
    e('s_lshl_b32 s52, s57, 11')
    e('s_lshl_b32 s53, s56, 6')
    e('s_add_u32 s52, s52, s53')
    e(f's_mul_i32 s53, s58, {32*28672}')
    e('s_add_u32 s52, s52, s53')
    last = None
    for mtl in range(2):
        for r in range(4): e(f'v_cvt_pk_bf16_f32 v{TIN+mtl*4+r}, v{XA+mtl*8+r}, v{XA+mtl*8+4+r}')
        for r in range(4):
            e(f's_add_u32 s53, s52, {T2_OFF + (16*mtl+r)*28672}')
            last = e.vm(f'buffer_store_dword v{TIN+mtl*4+r}, v4, {SWS}, s53 offen sc1')
    stamp(e, 'B.stored')
    e.wait_vm_all()
    stamp(e, 'B.drained')

def phase_c(e):
    e.c('======== window 2 + phase C')
    e(f's_lshl_b32 s56, s{sGRP}, 2')
    e(f's_add_u32 s56, s56, s{sW}')
    e('s_min_u32 s57, s56, 13')
    G, TC, AIN, VA, PA, XR = 16, 48, 104, 136, 152, 168
    MEAN = XR + 8
    e('v_lshlrev_b32 v5, 6, v2')
    e(f'v_add_u32 v5, s{sB}, v5')
    e('v_mul_u32_u24 v5, 896, v5')
    e('v_lshlrev_b32 v6, 3, v3')
    e('v_add_u32 v5, v5, v6')
    e('s_lshl_b32 s52, s57, 5')
    e('v_add_u32 v5, s52, v5')
    for nt in range(2):
        for pm in range(2):
            e(f's_mov_b32 s52, {nt*16*64*896}')
            e.vm(f'buffer_load_dwordx2 {vr(XR+(nt*2+pm)*2,2)}, v5, {SX}, s52 offen offset:{448*pm}')
    groups = []
    main = []
    em = main.append
    TH, CO, SI = 180, 188, 196
    cscale = 2.0 / (2048.0 * 448.0)
    em('v_cvt_f32_u32 v7, v3')
    for nt in range(2):
        em(f'v_add_u32 v8, {16*nt}, v2')
        em('v_lshlrev_b32 v8, 6, v8')
        em(f'v_add_u32 v8, s{sB}, v8')
        em('v_cvt_f32_u32 v8, v8')
        em(f'v_mul_f32 v8, {lit(1.0/2048)}, v8')
        em('v_mul_f32 v9, v7, v8')
        for t in range(2):
            for ii in range(4):
                cst = 16 * t + 4 * ii
                if cst == 0: em(f'v_mov_b32 v{TH+t*4+ii}, v9')
                else: em(f'v_fmamk_f32 v{TH+t*4+ii}, v8, {lit(float(cst))}, v9')
        for j in range(8): em(f'v_cos_f32 v{CO+j}, v{TH+j}')
        for j in range(8): em(f'v_sin_f32 v{SI+j}, v{TH+j}')
        for j in range(8): em(f'v_mul_f32 v{CO+j}, {lit(cscale)}, v{CO+j}')
        for j in range(8): em(f'v_mul_f32 v{SI+j}, {lit(cscale)}, v{SI+j}')
        for t in range(2):
            for ii in range(4):
                j = t * 4 + ii
                em(f'v_cvt_pk_bf16_f32 v{G+((0*2+t)*2+nt)*4+ii}, v{CO+j}, -v{SI+j}')
                em(f'v_cvt_pk_bf16_f32 v{G+((1*2+t)*2+nt)*4+ii}, v{SI+j}, v{CO+j}')
    em('s_lshl_b32 s52, s57, 4')
    em('v_add_u32 v8, s52, v2')
    em('v_cvt_f32_u32 v8, v8')
    em(f'v_mul_f32 v8, {lit(1.0/448)}, v8')
    em('v_lshlrev_b32 v9, 3, v3')
    em('v_cvt_f32_u32 v9, v9')
    em('v_mul_f32 v9, v9, v8')
    em('v_cmp_eq_u32 vcc, 3, v3')
    em('v_mov_b32 v10, 1.0')
    em('v_mov_b32 v11, 0.5')
    em('v_cndmask_b32 v10, v10, v11, vcc')
    CO2, SI2 = 204, 212
    em(f'v_mul_f32 v7, {lit(32.0)}, v8')
    for h in range(2):
        for j in range(4):
            cst = 2 * j + (2 if h == 0 else 1)
            em(f'v_fmamk_f32 v{TH+h*4+j}, v8, {lit(float(cst))}, v9')
    em('v_cos_f32 v12, v7')
    em('v_sin_f32 v13, v7')
    for j in range(8): em(f'v_cos_f32 v{CO+j}, v{TH+j}')
    for j in range(8): em(f'v_sin_f32_e64 v{SI+j}, -v{TH+j}')
    cur = (CO, SI); oth = (CO2, SI2)
    for kp in range(7):
        if kp < 6: rot8(em, cur[0], cur[1], oth[0], oth[1], 12, True)
        else:
            em(f'v_mul_f32 v{cur[0]+3}, v{cur[0]+3}, v10')
            em(f'v_mul_f32 v{cur[1]+3}, v{cur[1]+3}, v10')
        for h, kb in enumerate((kp, kp + 7)):
            em(f'v_cvt_pk_bf16_f32 v{TC+kb*4+0}, v{cur[0]+h*4+0}, v{cur[0]+h*4+1}')
            em(f'v_cvt_pk_bf16_f32 v{TC+kb*4+1}, v{cur[0]+h*4+2}, v{cur[0]+h*4+3}')
            em(f'v_cvt_pk_bf16_f32 v{TC+kb*4+2}, v{cur[1]+h*4+0}, v{cur[1]+h*4+1}')
            em(f'v_cvt_pk_bf16_f32 v{TC+kb*4+3}, v{cur[1]+h*4+2}, v{cur[1]+h*4+3}')
        cur, oth = oth, cur
    emit_interleaved(e, main, groups)
    e('v_lshlrev_b32 v12, 2, v1')
    stamp(e, 'W2.ready')
    def idx(e): e('v_lshlrev_b32 v5, 6, v1')
    poll(e, 1, 256, idx)
    stamp(e, 'C.go')
    w13_setup(e)
    WG = w13_load_groups()
    wgi = [0]
    def wload(n):
        for _ in range(n):
            if wgi[0] < len(WG):
                emit_groups(e, [WG[wgi[0]]]); wgi[0] += 1
    atok = {}
    for i in range(4):
        e(f's_add_u32 s52, s{sW}, {4*i}')
        e('s_min_u32 s52, s52, 13')
        e(f's_mul_i32 s53, s{sB}, 14')
        e('s_add_u32 s52, s52, s53')
        e('s_lshl_b32 s52, s52, 11')
        e(f's_add_u32 s52, s52, 0x{T2_OFF:x}')
        for t in range(2):
            for ii in range(4):
                atok[(i, t, ii)] = e.vm(f'buffer_load_dword v{AIN+i*8+t*4+ii}, v12, {SWS}, s52 offen offset:{(16*t+4*ii)*64} sc1')
    e('v_lshlrev_b32 v6, 2, v2')
    e(f's_lshl_b32 s52, s{sB}, 7')
    e(f's_add_u32 s52, s52, 0x{ST1_OFF:x}')
    mtok = [e.vm(f'buffer_load_dword v{MEAN+nt}, v6, {SWS}, s52 offen offset:{64*nt} sc1') for nt in range(2)]
    e('v_lshlrev_b32 v11, 4, v1')
    e(f's_lshl_b32 s52, s{sW}, 11')
    e('v_add_u32 v12, s52, v11')
    PK = 204
    for i in range(4):
        e.wait_vm(atok[(i, 1, 3)])
        if i == 0: stamp(e, 'C.loaded')
        for nt in range(2):
            for out in range(2):
                d = VA + (out * 2 + nt) * 4
                e(f'v_mfma_f32_16x16x32_bf16 {vr(d,4)}, {vr(AIN+i*8,4)}, {vr(G+((out*2+0)*2+nt)*4,4)}, 0')
        for nt in range(2):
            for out in range(2):
                d = VA + (out * 2 + nt) * 4
                e(f'v_mfma_f32_16x16x32_bf16 {vr(d,4)}, {vr(AIN+i*8+4,4)}, {vr(G+((out*2+1)*2+nt)*4,4)}, {vr(d,4)}')
        sk = L('skip3')
        if i == 3:
            e(f's_cmp_ge_u32 s{sW}, 2')
            e(f's_cbranch_scc1 {sk}')
        for nt in range(2):
            p = PK + nt * 4 + (i & 1) * 8
            vre, vim = VA + (0 * 2 + nt) * 4, VA + (1 * 2 + nt) * 4
            e(f'v_cvt_pk_bf16_f32 v{p+0}, v{vre+0}, v{vre+1}')
            e(f'v_cvt_pk_bf16_f32 v{p+1}, v{vre+2}, v{vre+3}')
            e(f'v_cvt_pk_bf16_f32 v{p+2}, v{vim+0}, v{vim+1}')
            e(f'v_cvt_pk_bf16_f32 v{p+3}, v{vim+2}, v{vim+3}')
            e.ds(f'ds_write_b128 v12, {vr(p,4)} offset:{(4*i*2+nt)*1024}')
        if i == 3: e.label(sk)
        wload(OPT['st1'])
    e.wait_ds_all()
    stamp(e, 'C.st1')
    e.barrier()
    VB = 220
    order = [(kb, nt) for kb in range(14) for nt in range(2)]
    tok = {}
    nread = [0]
    def issue():
        kb, nt = order[nread[0]]
        tok[nread[0]] = e.ds(f'ds_read_b128 {vr(VB+(nread[0]%8)*4,4)}, v11 offset:{(kb*2+nt)*1024}')
        nread[0] += 1
    for _ in range(7): issue()
    for idx_, (kb, nt) in enumerate(order):
        e.wait_ds(tok[idx_])
        par = 0 if kb < 7 else 1
        d = PA + (par * 2 + nt) * 4
        first = kb in (0, 7)
        e(f'v_mfma_f32_16x16x32_bf16 {vr(d,4)}, {vr(TC+kb*4,4)}, {vr(VB+(idx_%8)*4,4)}, {"0" if first else vr(d,4)}')
        if nread[0] < len(order): issue()
        if OPT['st2'] and idx_ % OPT['st2'] == OPT['st2'] - 1: wload(1)
    stamp(e, 'C.st2')
    e.wait_vm(mtok[1])
    H, HP, CP, SQ = 104, 120, 128, 180
    e('s_mov_b32 s52, 0xffff0000')
    for nt in range(2):
        pe, po = PA + nt * 4, PA + 8 + nt * 4
        for pm in range(2):
            xr = XR + (nt * 2 + pm) * 2
            for r in range(4):
                hv = H + (nt * 2 + pm) * 4 + r
                e(f'{"v_add_f32" if pm == 0 else "v_sub_f32"} v{hv}, v{pe+r}, v{po+r}')
                xv = 184 + r
                if r & 1: e(f'v_and_b32 v{xv}, s52, v{xr+(r>>1)}')
                else: e(f'v_lshlrev_b32 v{xv}, 16, v{xr+(r>>1)}')
            for r in range(4):
                hv = H + (nt * 2 + pm) * 4 + r
                e(f'v_add_f32 v{hv}, v{hv}, v{184+r}')
            for i in range(2):
                hv = H + (nt * 2 + pm) * 4 + 2 * i
                e(f'v_cvt_pk_bf16_f32 v{HP+nt*4+pm*2+i}, v{hv}, v{hv+1}')
        e(f'v_mov_b32 v{SQ+nt}, 0')
        for q in range(4):
            hp = HP + nt * 4 + q
            e(f'v_lshlrev_b32 v188, 16, v{hp}')
            e(f'v_and_b32 v189, s52, v{hp}')
            e(f'v_sub_f32 v188, v188, v{MEAN+nt}')
            e(f'v_sub_f32 v189, v189, v{MEAN+nt}')
            e(f'v_fma_f32 v{SQ+nt}, v188, v188, v{SQ+nt}')
            e(f'v_fma_f32 v{SQ+nt}, v189, v189, v{SQ+nt}')
            e(f'v_cvt_pk_bf16_f32 v{CP+nt*4+q}, v188, v189')
            wload(OPT['epi'])
    e('v_lshrrev_b32 v4, 1, v3')
    e('v_lshlrev_b32 v4, 10, v4')
    e('v_and_b32 v5, 1, v3')
    e('v_lshlrev_b32 v5, 9, v5')
    e('v_add_u32 v4, v4, v5')
    e('v_lshlrev_b32 v5, 4, v2')
    e('v_add_u32 v4, v4, v5')
    e(f's_mul_i32 s52, s{sB}, 28')
    e('s_lshl_b32 s53, s57, 1')
    e('s_add_u32 s52, s52, s53')
    e('s_lshl_b32 s52, s52, 10')
    ns, st = L('cnostore'), L('cstat')
    e('s_cmp_ge_u32 s56, 14')
    e(f's_cbranch_scc1 {ns}')
    e(f's_add_u32 s53, s52, 0x{HC_OFF:x}')
    e(f's_add_u32 s54, s52, 0x{HR_OFF:x}')
    for nt in range(2):
        e(f'buffer_store_dwordx4 {vr(CP+nt*4,4)}, v4, {SWS}, s53 offen offset:{256*nt} sc1')
        e(f'buffer_store_dwordx4 {vr(HP+nt*4,4)}, v4, {SWS}, s54 offen offset:{256*nt} sc1')
    e.label(ns)
    for nt in range(2): xsum_groups(e, SQ + nt, 190)
    e('s_cmp_lt_u32 s56, 14')
    e(f's_cbranch_scc1 {st}')
    e(f'v_mov_b32 v{SQ}, 0')
    e(f'v_mov_b32 v{SQ+1}, 0')
    e.label(st)
    e('v_cmp_le_u32 vcc, 16, v1')
    e(f'v_cndmask_b32 v{SQ}, v{SQ}, v{SQ+1}, vcc')
    e('v_lshlrev_b32 v5, 2, v1')
    e(f's_lshl_b32 s52, s{sB}, 11')
    e('s_lshl_b32 s53, s56, 7')
    e('s_add_u32 s52, s52, s53')
    e(f's_add_u32 s52, s52, 0x{ST2_OFF:x}')
    e('s_mov_b64 exec, 0xffffffff')
    last = e.vm(f'buffer_store_dword v{SQ}, v5, {SWS}, s52 offen sc1')
    e('s_mov_b64 exec, -1')
    stamp(e, 'C.stored')
    wload(OPT['post'])
    e.wait_vm(last)
    stamp(e, 'C.drained')
    signal(e, 2)
    global W13_PENDING
    W13_PENDING = (WG, wgi)

def w2reg(mi, s_):
    o = 2 * s_ + mi
    if o < 23: return vr(160 + 4 * o, 4), None
    if o < 31: return ar(224 + 4 * (o - 23), 4), None
    oo = o - 31
    return ar(((oo & 1) * 28 + (oo >> 1)) * 4, 4), (oo & 1, oo >> 1)

def phase_g(e):
    e.c('======== window 3 + G1')
    WG, wgi = W13_PENDING
    wtok = {}
    for _ in range(min(OPT['w3'], len(WG) - wgi[0])):
        wtok[wgi[0]] = emit_groups(e, [WG[wgi[0]]]); wgi[0] += 1
    e('v_lshlrev_b32 v4, 4, v1')
    e(f's_lshl_b32 s56, s{sC}, 3')
    e(f's_lshl_b32 s52, s{sW}, 1')
    e('s_add_u32 s56, s56, s52')
    e(f's_lshl_b32 s57, s{sR}, 2')
    e('s_and_b32 s58, s2, 7')
    e('s_lshr_b32 s59, s2, 3')
    e('s_mul_i32 s52, s59, 37')
    e('s_lshr_b32 s52, s52, 8')
    e('s_mul_i32 s53, s52, 7')
    e('s_sub_u32 s59, s59, s53')
    e('s_lshl_b32 s52, s52, 3')
    e('s_add_u32 s58, s58, s52')
    e(f's_mul_i32 s52, s{sW}, 28')
    e(f's_and_b32 s54, s{sW}, 1')
    for mi in range(2):
        e(f's_xor_b32 s53, s54, {mi}')
        e('s_lshl_b32 s55, s59, 1')
        e('s_add_u32 s53, s53, s55')
        e('s_mul_i32 s53, s53, 112')
        e('s_add_u32 s53, s53, s52')
        e('s_lshl_b32 s53, s53, 10')
        e(f's_add_u32 s{60+mi}, s53, 0x{W2_OFF:x}')
    def grp_off(dst, g):
        return [f's_add_u32 s{dst}, s59, {g}', f's_cmp_ge_u32 s{dst}, 7', f's_cselect_b32 s55, 7, 0',
                f's_sub_u32 s{dst}, s{dst}, s55', f's_lshl_b32 s{dst}, s{dst}, 12']
    def w2load(o):
        s_, mi = o >> 1, o & 1
        reg, dep = w2reg(mi, s_)
        pre = []
        if s_ % 4 == 0 and mi == 0:
            pre = grp_off(62, s_ // 4) + ['s_add_u32 s63, s61, s62', 's_add_u32 s62, s60, s62']
        return pre + [('vm', f'buffer_load_dwordx4 {reg}, v4, {SWS}, s{62+mi} offen offset:{(s_%4)*1024} sc1')]
    def idx(e):
        e('v_lshrrev_b32 v5, 2, v1')
        e('v_add_u32 v5, s57, v5')
        e('v_and_b32 v6, 7, v5')
        e('v_lshrrev_b32 v5, 3, v5')
        e('v_lshlrev_b32 v5, 5, v5')
        e('v_add_u32 v5, v5, v6')
        e('v_and_b32 v6, 3, v1')
        e('v_lshlrev_b32 v6, 3, v6')
        e('v_add_u32 v5, v5, v6')
        e('v_lshlrev_b32 v5, 6, v5')
    e(f's_cmp_ge_u32 s{sC}, 14')
    e('s_cbranch_scc1 L_g2only')
    poll(e, 2, 16, idx)
    stamp(e, 'G1.go')
    ACC, BR, RRG, T = 64, 16, 48, 128
    ST = T
    dtok = {}
    e(f's_mul_i32 s96, s{sW}, 7168')
    e(f's_add_u32 s98, s{sR}, s{sW}')
    e('s_and_b32 s98, s98, 3')
    e('s_mul_i32 s98, s98, 7168')
    def hc_groups(nt):
        gs = []
        for i in range(7):
            g = []
            if i == 0:
                g += [f's_add_u32 s97, s57, {nt}', 's_mul_i32 s97, s97, 28672', 's_add_u32 s97, s97, s98', f's_add_u32 s97, s97, 0x{HC_OFF:x}']
            if i == 4: g += ['s_add_u32 s97, s97, 4096']
            if i in (0, 4): g += [f's_add_u32 m0, s96, {nt*28672 + (4096 if i == 4 else 0)}']
            g.append(('vm', f'buffer_load_dwordx4 v4, {SWS}, s97 offen offset:{(i%4)*1024} sc1 lds', ('hc', nt)))
            gs.append(g)
        return gs
    STK = []
    def emit_op(op):
        if isinstance(op, tuple) and op[0] == 'ds':
            STK.append(e.ds(op[1])); return None
        if isinstance(op, tuple) and op[0] == 'dswait':
            e.wait_ds(STK[op[1] * 8 + 7]); return None
        if isinstance(op, tuple):
            t = e.vm(op[1])
            if len(op) > 2:
                if op[2][0] == 'hc': dtok[op[2][1]] = t
                if op[2][0] == 'st': dtok['st'] = t
            return t
        e(op); return None
    for g in hc_groups(0):
        for op in g: emit_op(op)
    e(f's_add_u32 s54, s57, s{sW}')
    e('s_lshl_b32 s54, s54, 11')
    e(f's_add_u32 s54, s54, 0x{ST2_OFF:x}')
    e(f's_lshl_b32 s55, s{sW}, 11')
    e(f's_add_u32 m0, s55, {LDS_STATS}')
    e.vm(f'buffer_load_dwordx4 v4, {SWS}, s54 offen sc1 lds')
    dtok[0] = e.vm(f'buffer_load_dwordx4 v4, {SWS}, s54 offen offset:1024 sc1 lds')
    while wgi[0] < len(WG):
        wtok[wgi[0]] = emit_groups(e, [WG[wgi[0]]]); wgi[0] += 1
    e('v_add_u32 v6, 57344, v4')
    e('v_and_b32 v5, 31, v1')
    e('v_lshlrev_b32 v5, 2, v5')
    e('v_lshrrev_b32 v7, 5, v1')
    e('v_lshlrev_b32 v7, 10, v7')
    e('v_add_u32 v5, v5, v7')
    e(f'v_add_u32 v5, {LDS_STATS}, v5')
    def stat_ops():
        ops = []
        for nt in range(4):
            b0 = ST + nt * 8
            for i in range(8): ops.append(('ds', f'ds_read_b32 v{b0+i}, v5 offset:{nt*2048 + i*128}'))
        for nt in range(4):
            b0 = ST + nt * 8
            ops.append(('dswait', nt))
            ops += [f'v_add_f32 v{b0}, v{b0}, v{b0+1}', f'v_add_f32 v{b0+2}, v{b0+2}, v{b0+3}', f'v_add_f32 v{b0+4}, v{b0+4}, v{b0+5}',
                    f'v_add_f32 v{b0+6}, v{b0+6}, v{b0+7}', f'v_add_f32 v{b0}, v{b0}, v{b0+2}', f'v_add_f32 v{b0+4}, v{b0+4}, v{b0+6}',
                    f'v_add_f32 v{b0}, v{b0}, v{b0+4}', f'v_mov_b32 v{b0+1}, v{b0}', f'v_mov_b32 v7, {lit(1e-5)}',
                    f'v_permlane32_swap_b32 v{b0+1}, v{b0}', f'v_add_f32 v{b0}, v{b0}, v{b0+1}',
                    f'v_fmamk_f32 v{b0}, v{b0}, {lit(1.0/448)}, v7', f'v_rsq_f32 v{b0}, v{b0}', 's_nop 0',
                    f'v_mul_f32 v{RRG+nt}, {lit(-1.4426950408889634)}, v{b0}', f'v_mul_f32 v{RRG+4+nt}, v{b0}, v{b0}']
        return ops
    def epi_ops(nt):
        ops = []
        for mi in range(2):
            a = ACC + ((nt & 1) * 2 + mi) * 16
            T0 = T + mi * 16
            for r in range(8): ops.append(f'v_mul_f32 v{T0+r}, v{a+r}, v{RRG+nt}')
            for r in range(8):
                ops.append(f'v_exp_f32 v{T0+r}, v{T0+r}')
                ops.append(f'v_mul_f32 v{T0+8+r}, v{a+r}, v{a+8+r}')
            for r in range(8):
                ops.append(f'v_add_f32 v{T0+r}, 1.0, v{T0+r}')
                ops.append(f'v_mul_f32 v{T0+8+r}, v{T0+8+r}, v{RRG+4+nt}')
            for r in range(8): ops.append(f'v_rcp_f32 v{T0+r}, v{T0+r}')
            for r in range(8): ops.append(f'v_mul_f32 v{T0+8+r}, v{T0+8+r}, v{T0+r}')
            P = 56 + mi * 4
            for i in range(4): ops.append(f'v_cvt_pk_bf16_f32 v{P+i}, v{T0+8+2*i}, v{T0+8+2*i+1}')
            ops.append(f's_add_u32 s53, s57, {nt}')
            ops.append('s_mul_i32 s53, s53, 112')
            ops.append('s_add_u32 s53, s53, s56')
            ops.append(f's_add_u32 s53, s53, {mi}')
            ops.append('s_lshl_b32 s53, s53, 10')
            ops.append(f's_add_u32 s53, s53, 0x{HM_OFF:x}')
            ops.append(('vm', f'buffer_store_dwordx4 {vr(P,4)}, v4, {SWS}, s53 offen sc1', ('store',)))
        return ops
    bg = {0: hc_groups(1) + hc_groups(2), 1: hc_groups(3) + [w2load(o) for o in range(0, 9)],
          2: [w2load(o) for o in range(9, 25)], 3: [w2load(o) for o in range(25, 31)]}
    last_store = None
    next_late = 31
    for nt in range(4):
        e.wait_vm(dtok[nt])
        e.barrier()
        if nt == 0: stamp(e, 'G1.t0')
        fill = epi_ops(nt - 1) if nt > 0 else stat_ops()
        sttok = []
        fi = 0; gi = 0
        btok = {}
        n = [0]
        def issue():
            kap = n[0]
            base = 'v4' if nt < 2 else 'v6'
            off = ((nt & 1) * 28 + kap) * 1024
            btok[kap] = e.ds(f'ds_read_b128 {vr(BR+(kap%8)*4,4)}, {base} offset:{off}')
            n[0] += 1
        for _ in range(5): issue()
        nm = 0
        G_ = bg[nt]
        for kap in range(28):
            e.wait_ds(btok[kap])
            for mi in range(2):
                a = ACC + ((nt & 1) * 2 + mi) * 16
                if nt == 0 and (kap * 2 + mi) in wtok: e.wait_vm(wtok[kap * 2 + mi])
                e(f'v_mfma_f32_32x32x16_bf16 {vr(a,16)}, {ar((mi*28+kap)*4,4)}, {vr(BR+(kap%8)*4,4)}, {"0" if kap == 0 else vr(a,16)}')
                nm += 1
                if mi == 0 and n[0] < 28: issue()
                span = 24 if nt == 3 else 56
                want = (len(G_) * nm + span - 1) // span
                while gi < min(want, len(G_)):
                    for op in G_[gi]: emit_op(op)
                    gi += 1
                if nt == 3 and gi >= len(G_) and nm % 4 == 0 and next_late < 43:
                    dep = w2reg(next_late & 1, next_late >> 1)[1]
                    if dep[1] * 2 + dep[0] < nm:
                        for op in w2load(next_late): emit_op(op)
                        next_late += 1
                if nm > 3:
                    want = (len(fill) * (nm - 3) + 49) // 50
                    while fi < min(want, len(fill)):
                        t = emit_op(fill[fi]); fi += 1
        while fi < len(fill):
            emit_op(fill[fi]); fi += 1
        stamp(e, f'G1.tile{nt}')
    for op in epi_ops(3):
        t = emit_op(op)
        if isinstance(op, tuple): last_store = t
    stamp(e, 'G1.stored')
    while next_late < 56:
        for op in w2load(next_late): emit_op(op)
        next_late += 1
    e.wait_vm(last_store)
    stamp(e, 'G1.drained')
    signal(e, 3)
    e('s_cmp_ge_u32 s2, 224')
    e('s_cbranch_scc1 L_fin')
    e('s_branch L_g2')
    e.label('L_g2only')
    e('s_cmp_ge_u32 s2, 224')
    e('s_cbranch_scc1 L_fin')
    sv = (e.vm_issued, e.vm_done)
    for o in range(56):
        for op in w2load(o): e(op[1] if isinstance(op, tuple) else op)
    e.label('L_g2')
    e.c('======== G2')
    ACC2, BR2, HRR, NB = 16, 80, 152, 9
    e('s_lshl_b32 s57, s58, 1')
    e(f's_mul_i32 s52, s{sW}, 28')
    e(f's_lshr_b32 s54, s{sW}, 1')
    for ni in range(2):
        e(f's_xor_b32 s53, s54, {ni}')
        e('s_add_u32 s53, s53, s57')
        e('s_mul_i32 s53, s53, 112')
        e('s_add_u32 s53, s53, s52')
        e('s_lshl_b32 s53, s53, 10')
        e(f's_add_u32 s{88+ni}, s53, 0x{HM_OFF:x}')
    e('s_add_u32 s56, s54, s57')
    e('s_mul_i32 s52, s56, 28')
    e(f's_and_b32 s60, s{sW}, 1')
    e('s_lshl_b32 s53, s59, 1')
    e('s_add_u32 s60, s60, s53')
    e('s_lshl_b32 s53, s60, 1')
    e('s_add_u32 s52, s52, s53')
    e('s_lshl_b32 s52, s52, 10')
    e(f's_add_u32 s52, s52, 0x{HR_OFF:x}')
    e('s_mov_b32 s61, s52')
    def idx4(e):
        e('s_lshr_b32 s53, s58, 1')
        e('s_lshl_b32 s53, s53, 3')
        e('v_lshrrev_b32 v5, 1, v1')
        e('v_and_b32 v6, 1, v1')
        e('v_lshlrev_b32 v6, 7, v6')
        e('v_add_u32 v5, v5, v6')
        e('v_add_u32 v5, s53, v5')
        e('v_lshlrev_b32 v5, 6, v5')
    poll(e, 3, 14, idx4)
    stamp(e, 'G2.go')
    tok = {}
    nl = [0]
    def issue2():
        i = nl[0]
        if i % 4 == 0:
            for op in grp_off(62, i // 4): e(op)
            e('s_add_u32 s63, s89, s62')
            e('s_add_u32 s62, s88, s62')
        o = (i % 4) * 1024
        slot = i % NB
        e.vm(f'buffer_load_dwordx4 {vr(BR2+slot*8,4)}, v4, {SWS}, s62 offen offset:{o} sc1')
        tok[i] = e.vm(f'buffer_load_dwordx4 {vr(BR2+slot*8+4,4)}, v4, {SWS}, s63 offen offset:{o} sc1')
        nl[0] += 1
    for _ in range(NB): issue2()
    htok = [e.vm(f'buffer_load_dwordx4 {vr(HRR+4*gg,4)}, v4, {SWS}, s61 offen offset:{1024*gg} sc1') for gg in range(2)]
    for i in range(28):
        e.wait_vm(tok[i])
        if i == 0: stamp(e, 'G2.first')
        slot = i % NB
        for mi in range(2):
            for ni in range(2):
                a = ACC2 + (mi * 2 + ni) * 16
                e(f'v_mfma_f32_32x32x16_bf16 {vr(a,16)}, {w2reg(mi,i)[0]}, {vr(BR2+slot*8+ni*4,4)}, {"0" if i == 0 else vr(a,16)}')
        if nl[0] < 28: issue2()
    stamp(e, 'G2.mfma')
    for k, (mi, ni) in enumerate(((1, 0), (0, 1), (1, 1))):
        e(f's_xor_b32 s52, s{sW}, {k+1}')
        e('s_mul_i32 s52, s52, 12288')
        e(f'v_add_u32 v{5+k}, s52, v4')
    for k, (mi, ni) in enumerate(((1, 0), (0, 1), (1, 1))):
        a = ACC2 + (mi * 2 + ni) * 16
        for qd in range(4):
            e.ds(f'ds_write_b128 v{5+k}, {vr(a+qd*4,4)} offset:{k*4096 + qd*1024}')
    e.wait_ds_all()
    e.barrier()
    e(f's_mul_i32 s52, s{sW}, 12288')
    e('v_add_u32 v5, s52, v4')
    R0 = 80
    for k in range(3):
        for qd in range(4):
            e.ds(f'ds_read_b128 {vr(R0+k*16+qd*4,4)}, v5 offset:{k*4096 + qd*1024}')
    e.wait_ds_all()
    stamp(e, 'G2.red')
    for r in range(16):
        e(f'v_add_f32 v{R0+r}, v{R0+r}, v{R0+16+r}')
        e(f'v_add_f32 v{R0+32+r}, v{R0+32+r}, v{ACC2+r}')
    for r in range(16): e(f'v_add_f32 v{R0+r}, v{R0+r}, v{R0+32+r}')
    e.wait_vm(htok[1])
    e('s_mov_b32 s52, 0xffff0000')
    PK = 32
    for i in range(8): e(f'v_cvt_pk_bf16_f32 v{PK+i}, v{R0+2*i}, v{R0+2*i+1}')
    for i in range(8):
        e(f'v_lshlrev_b32 v48, 16, v{PK+i}')
        e(f'v_and_b32 v49, s52, v{PK+i}')
        e(f'v_lshlrev_b32 v50, 16, v{HRR+i}')
        e(f'v_and_b32 v51, s52, v{HRR+i}')
        e('v_add_f32 v48, v48, v50')
        e('v_add_f32 v49, v49, v51')
        dst = {0: 40, 1: 41, 4: 42, 5: 43, 2: 44, 3: 45, 6: 46, 7: 47}[i]
        e(f'v_cvt_pk_bf16_f32 v{dst}, v48, v49')
    e('v_permlane32_swap_b32 v40, v42')
    e('v_permlane32_swap_b32 v41, v43')
    e('v_permlane32_swap_b32 v44, v46')
    e('v_permlane32_swap_b32 v45, v47')
    e('v_and_b32 v5, 31, v1')
    e('v_lshlrev_b32 v5, 6, v5')
    e('v_add_u32 v5, s56, v5')
    e('v_mul_u32_u24 v5, 896, v5')
    e('v_lshrrev_b32 v6, 5, v1')
    e('v_lshlrev_b32 v6, 4, v6')
    e('v_add_u32 v5, v5, v6')
    e('s_lshl_b32 s52, s60, 5')
    om = ['', ' sc1', ' nt', ' sc0 sc1'][OPT['outmod']]
    e(f'buffer_store_dwordx4 v[40:43], v5, {SOUT}, s52 offen{om}')
    e(f'buffer_store_dwordx4 v[44:47], v5, {SOUT}, s52 offen offset:448{om}')
    stamp(e, 'G2.end')

DBGOUT = False
def dbg_out(e):
    sk = L('dbo')
    e('s_waitcnt vmcnt(0)')
    e('s_memrealtime s[84:85]')
    e('s_memtime s[90:91]')
    e('s_waitcnt lgkmcnt(0)')
    e(f's_cmp_lg_u32 s{sW}, 0')
    e(f's_cbranch_scc1 {sk}')
    e('s_and_b32 s52, s2, 63')
    e('s_cmp_lg_u32 s52, 0')
    e(f's_cbranch_scc1 {sk}')
    e('s_lshr_b32 s52, s2, 6')
    e('s_lshl_b32 s52, s52, 4')
    e('s_add_u32 s52, s52, 16')
    e('s_sub_u32 s53, s84, s86')
    e('s_sub_u32 s54, s90, s82')
    e('v_mov_b32 v4, s53'); e('v_mov_b32 v5, s54'); e('v_mov_b32 v6, s86'); e('v_mov_b32 v7, s84')
    e('v_mov_b32 v8, 0')
    e('s_mov_b64 exec, 1')
    e(f'buffer_store_dwordx4 v[4:7], v8, {SDBG}, s52 offen sc1')
    e('s_mov_b64 exec, -1')
    e.label(sk)

def diag_dump(e):
    if DBGOUT: dbg_out(e)
    if not DIAG: return
    e.wait_vm_all()
    rstamp(e, 'rt_end')
    e('s_lshl_b32 s52, s2, 2')
    e(f's_add_u32 s52, s52, s{sW}')
    e('s_lshl_b32 s52, s52, 8')
    e(f's_add_u32 s52, s52, 0x{DIAG_OFF:x}')
    e('v_lshlrev_b32 v4, 2, v1')
    e(f'buffer_store_dword v255, v4, {SWS}, s52 offen')

def kernel():
    e = Emit()
    e.label(KN)
    e('s_cmp_ge_u32 s2, 256')
    e('s_cbranch_scc1 L_end')
    e('s_load_dwordx16 s[64:79], s[0:1], 0')
    e('s_load_dwordx4 s[80:83], s[0:1], 64')
    e('s_memrealtime s[86:87]')
    if DBGOUT: e('s_memtime s[82:83]')
    if DIAG: e('v_mov_b32 v255, 0')
    e('v_lshrrev_b32 v4, 6, v0')
    e('v_and_b32 v1, 63, v0')
    e(f'v_readfirstlane_b32 s{sW}, v4')
    e('v_and_b32 v2, 15, v0')
    e('v_bfe_u32 v3, v0, 4, 2')
    e(f's_and_b32 s{sB}, s2, 7')
    e('s_lshr_b32 s52, s2, 5')
    e('s_lshl_b32 s52, s52, 3')
    e(f's_add_u32 s{sB}, s{sB}, s52')
    e(f's_lshr_b32 s{sGRP}, s2, 3')
    e(f's_and_b32 s{sGRP}, s{sGRP}, 3')
    e('s_lshr_b32 s52, s2, 3')
    e(f's_and_b32 s{sR}, s52, 15')
    e('s_lshr_b32 s52, s52, 4')
    e(f's_and_b32 s{sC}, s2, 7')
    e(f's_lshl_b32 s{sC}, s{sC}, 1')
    e(f's_add_u32 s{sC}, s{sC}, s52')
    e(f's_getreg_b32 s{sREP}, hwreg(HW_REG_XCC_ID, 0, 3)')
    e(f's_lshl_b32 s{sREP}, s{sREP}, 14')
    e(f's_mov_b32 s{sNONCE}, 0')
    e('s_waitcnt lgkmcnt(0)')
    srd(e, S_X, 64, 1835008)
    srd(e, S_WS, 82, WS_SIZE)
    srd(e, S_WR, 66, 2048 * 450)
    srd(e, S_WI, 68, 2048 * 450)
    srd(e, S_W1, 72, 448 * 3584)
    srd(e, S_W3, 74, 448 * 3584)
    srd(e, S_W2, 76, 1792 * 896)
    srd(e, S_OUT, 78, 1835008)
    srd(e, S_DBG, 80, 256)
    e('s_cmp_ge_u32 s2, 224')
    e(f's_cselect_b32 s{S_W1+2}, 0, s{S_W1+2}')
    e(f's_cselect_b32 s{S_W3+2}, 0, s{S_W3+2}')
    if DIAG:
        STAMPS.append('rt_start'); _stamp_n[0] += 1
        e('v_writelane_b32 v255, s86, 0')
    stamp(e, 'start')
    sk = L('nononce')
    e(f's_or_b32 s52, s2, s{sW}')
    e('s_cmp_lg_u32 s52, 0')
    e(f's_cbranch_scc1 {sk}')
    e('s_or_b32 s52, s86, 1')
    e('v_mov_b32 v4, s52')
    e('v_mov_b32 v5, 0')
    e('s_mov_b64 exec, 1')
    e(f'buffer_store_dword v4, v5, {SDBG}, 0 offen sc1')
    e('s_mov_b64 exec, -1')
    e.label(sk)
    phase_a(e)
    p2l, joinl = L('p2'), L('join')
    e('s_cmp_ge_u32 s2, 224')
    e(f's_cbranch_scc1 {p2l}')
    sv_ds = (e.ds_issued, e.ds_done)
    phase_b(e)
    e(f's_branch {joinl}')
    e.label(p2l)
    nstamp = _stamp_n[0]
    phase_p2(e)
    e.label(joinl)
    signal(e, 1)
    e.vm_issued = 0; e.vm_done = 0
    phase_c(e)
    phase_g(e)
    e.label('L_fin')
    diag_dump(e)
    e.label('L_end')
    e('s_endpgm')
    return e.out

def build():
    hdr = open('cdna_kernels/' + NAME + '.s.ref').read().split('; Override launch')[0]
    body = kernel()
    body, nn = hazard_pass(body)
    print(f'; {len(body)} lines, {nn} nops inserted', file=sys.stderr)
    lines = [hdr.rstrip('\n'),
             f'; @launch grid=(256,1,1) block=(256,1,1) lds={LDS_BYTES}',
             '.amdgcn_target "amdgcn-amd-amdhsa--gfx950"', '.text', f'.globl {KN}', '.p2align 8', f'.type {KN},@function']
    for ln in body: lines.append(ln if ln.endswith(':') else '    ' + ln)
    lines += ['.section .rodata,"a"', '.p2align 6', f'.amdhsa_kernel {KN}',
              '  .amdhsa_next_free_vgpr 512', '  .amdhsa_next_free_sgpr 100', '  .amdhsa_accum_offset 256',
              '  .amdhsa_group_segment_fixed_size 0', '  .amdhsa_kernarg_size 80', '  .amdhsa_user_sgpr_count 2',
              '  .amdhsa_user_sgpr_kernarg_segment_ptr 1', '  .amdhsa_system_sgpr_workgroup_id_x 1',
              '  .amdhsa_float_denorm_mode_32 3', '.end_amdhsa_kernel']
    return '\n'.join(lines) + '\n'

if __name__ == '__main__':
    for a in list(sys.argv):
        if a.startswith('--opt='):
            for kv in a[6:].split(','):
                k, v = kv.split('='); OPT[k] = int(v)
            sys.argv.remove(a)
    if '--dbgout' in sys.argv:
        DBGOUT = True; sys.argv.remove('--dbgout')
    if '--diag' in sys.argv:
        DIAG = True; sys.argv.remove('--diag')
    out = sys.argv[1] if len(sys.argv) > 1 else 'cdna_kernels/' + NAME + '.s'
    open(out, 'w').write(build())
    if DIAG:
        import json; json.dump(STAMPS, open(out + '.stamps.json', 'w'))
    print('written', out, file=sys.stderr)
```

```python
import sys, struct
from asmlib import Emit, hazard_pass

NAME = "sequential_preLN__spectral_gfnet__glu_gated_swiglu__prompt"
KN = NAME + "_kernel"

T1_OFF  = 0x000000
T2_OFF  = 0x200000
HC_OFF  = 0x400000
HR_OFF  = 0x600000
ST1_OFF = 0x800000
ST2_OFF = 0x810000
W13_OFF = 0x900000
W2_OFF  = 0xD00000
HM_OFF  = 0x1000000
FL_OFF  = 0x1800000
DIAG_OFF = 0x1A00000
WS_SIZE = 0x1C00000
LDS_STAGE = 32768
LDS_STATS = 114688
LDS_BYTES = 114688 + 8192
MAXSPIN = 100000

DIAG = False
OPT = dict(st1=3, st2=2, epi=2, post=4, w3=8, cpf=4, outmod=0, probe=0)
def f2u(x): return struct.unpack('<I', struct.pack('<f', x))[0]
def lit(x): return '0x%08x' % f2u(x)
def vr(a, n=1): return f'v{a}' if n == 1 else f'v[{a}:{a+n-1}]'
def ar(a, n=1): return f'a{a}' if n == 1 else f'a[{a}:{a+n-1}]'

S_X, S_WS, S_WR, S_WI, S_W1, S_W3, S_W2, S_OUT, S_DBG = 8, 12, 16, 20, 24, 28, 32, 36, 40
SX, SWS, SWR, SWI, SW1, SW3, SW2, SOUT, SDBG = [f's[{a}:{a+3}]' for a in (8, 12, 16, 20, 24, 28, 32, 36, 40)]
sW, sB, sGRP, sNONCE, sREP = 44, 45, 46, 47, 48
sR, sC, sSPIN = 49, 50, 51

def srd(e, d, ptr, size):
    e(f's_mov_b32 s{d}, s{ptr}')
    e(f's_and_b32 s{d+1}, s{ptr+1}, 0xffff')
    e(f's_mov_b32 s{d+2}, 0x{size:x}')
    e(f's_mov_b32 s{d+3}, 0x20000')

_stamp_n = [0]
STAMPS = []
def stamp(e, name):
    if not DIAG: return
    i = _stamp_n[0]; _stamp_n[0] += 1; STAMPS.append(name)
    e('s_memtime s[84:85]')
    e('s_waitcnt lgkmcnt(0)')
    e(f'v_writelane_b32 v255, s84, {i}')
def rstamp(e, name):
    if not DIAG: return
    i = _stamp_n[0]; _stamp_n[0] += 1; STAMPS.append(name)
    e('s_memrealtime s[84:85]')
    e('s_waitcnt lgkmcnt(0)')
    e(f'v_writelane_b32 v255, s84, {i}')

def xsum_groups(e, v, tmp):
    e(f'v_mov_b32 v{tmp}, v{v}')
    e(f'v_permlane32_swap_b32 v{tmp}, v{v}')
    e(f'v_add_f32 v{v}, v{v}, v{tmp}')
    e(f'v_mov_b32 v{tmp}, v{v}')
    e(f'v_permlane16_swap_b32 v{tmp}, v{v}')
    e(f'v_add_f32 v{v}, v{v}, v{tmp}')

def rot8(em, co, si, co2, si2, cs, neg_sin):
    C = 'op_sel:[0,0] op_sel_hi:[1,0]'
    S3 = 'op_sel:[0,1,0] op_sel_hi:[1,1,1]'
    NEG = ' neg_lo:[0,1,0] neg_hi:[0,1,0]'
    for p in range(4):
        em(f'v_pk_mul_f32 v[{co2+2*p}:{co2+2*p+1}], v[{co+2*p}:{co+2*p+1}], v[{cs}:{cs+1}] {C}')
        em(f'v_pk_mul_f32 v[{si2+2*p}:{si2+2*p+1}], v[{si+2*p}:{si+2*p+1}], v[{cs}:{cs+1}] {C}')
    for p in range(4):
        em(f'v_pk_fma_f32 v[{co2+2*p}:{co2+2*p+1}], v[{si+2*p}:{si+2*p+1}], v[{cs}:{cs+1}], v[{co2+2*p}:{co2+2*p+1}] {S3}' + ('' if neg_sin else NEG))
        em(f'v_pk_fma_f32 v[{si2+2*p}:{si2+2*p+1}], v[{co+2*p}:{co+2*p+1}], v[{cs}:{cs+1}], v[{si2+2*p}:{si2+2*p+1}] {S3}' + (NEG if neg_sin else ''))

_lab = [0]
def L(p):
    _lab[0] += 1
    return f'L{p}_{_lab[0]}'

def signal(e, sync):
    e.barrier()
    skip = L('sig')
    e(f's_cmp_lg_u32 s{sW}, 0')
    e(f's_cbranch_scc1 {skip}')
    e(f's_lshl_b32 s52, s2, 6')
    e(f's_add_u32 s52, s52, 0x{FL_OFF + sync*0x40000:x}')
    e(f'v_mov_b32 v14, s{sNONCE}')
    e('v_lshlrev_b32 v15, 14, v1')
    e('s_mov_b64 exec, 0xff')
    e(f'buffer_store_dword v14, v15, {SWS}, s52 offen sc1')
    e('s_mov_b64 exec, -1')
    e.label(skip)

def poll(e, sync, nflags, idx_code):
    skip = L('pollskip'); loop = L('poll'); done = L('polldone')
    e(f's_cmp_lg_u32 s{sW}, 0')
    e(f's_cbranch_scc1 {skip}')
    idx_code(e)
    e(f's_add_u32 s52, s{sREP}, 0x{FL_OFF + sync*0x40000:x}')
    e(f's_mov_b32 s{sSPIN}, 0')
    if nflags < 64: e(f's_mov_b64 exec, 0x{(1 << nflags) - 1:x}')
    e.label(loop)
    nl = max(1, nflags // 64)
    for i in range(nl):
        if i: e(f's_add_u32 s53, s52, {i*64*64}')
        e(f'buffer_load_dword v{6+i}, v5, {SWS}, {"s53" if i else "s52"} offen sc1')
    e('s_waitcnt vmcnt(0)')
    for i in range(nl): e(f'v_xor_b32 v{6+i}, s{sNONCE}, v{6+i}')
    if nl == 4:
        e('v_or_b32 v6, v6, v7'); e('v_or_b32 v8, v8, v9'); e('v_or_b32 v6, v6, v8')
    e('v_cmp_ne_u32 vcc, 0, v6')
    e('s_nop 4')
    e(f's_cbranch_vccz {done}')
    e(f's_add_u32 s{sSPIN}, s{sSPIN}, 1')
    e(f's_cmp_lt_u32 s{sSPIN}, {MAXSPIN}')
    e(f's_cbranch_scc1 {loop}')
    e.label(done)
    e('s_mov_b64 exec, -1')
    e.label(skip)
    e.barrier()

def p1_addr(e, i, lds):
    e(f's_lshl_b32 s53, s{sW}, 2')
    e(f's_add_u32 s53, s53, {i}')
    e('s_cmp_ge_u32 s53, 7')
    e('s_cselect_b32 s54, 7, 0')
    e('s_sub_u32 s54, s53, s54')
    e('s_lshl_b32 s54, s54, 6')
    e('v_add_u32 v12, s54, v1')
    e('v_mul_u32_u24 v13, 4682, v12')
    e('v_lshrrev_b32 v13, 16, v13')
    e('v_mul_u32_u24 v14, 14, v13')
    e('v_sub_u32 v14, v12, v14')
    e('v_lshlrev_b32 v14, 4, v14')
    if not lds:
        e('v_lshrrev_b32 v15, 4, v13')
        e('v_mul_u32_u24 v15, 208, v15')
        e('v_add_u32 v15, v15, v13')
        e('v_mul_u32_u24 v15, 3584, v15')
    else:
        e('v_mul_u32_u24 v15, 288, v13')
    e('v_add_u32 v15, v15, v14')

def p1_loads(e):
    e('s_lshr_b32 s52, s2, 4')
    e('s_lshl_b32 s52, s52, 4')
    e('s_mul_i32 s52, s52, 3584')
    e('s_and_b32 s55, s2, 15')
    e('s_mul_i32 s55, s55, 224')
    e('s_add_u32 s52, s52, s55')
    e(f's_mov_b32 s94, s{S_W1+2}')
    e('s_mov_b32 s95, 0x20000')
    for i in range(4):
        p1_addr(e, i, False)
        e(f's_lshl_b32 s53, s{sW}, 2')
        e(f's_add_u32 s53, s53, {i}')
        e('s_cmp_ge_u32 s53, 7')
        e(f's_cselect_b32 s92, s{S_W3}, s{S_W1}')
        e(f's_cselect_b32 s93, s{S_W3+1}, s{S_W1+1}')
        if i >= 2:
            e('s_cmp_ge_u32 s53, 14')
            e('s_cselect_b32 s94, 0, s94')
        e.vm(f'buffer_load_dwordx4 {ar(4*i,4)}, v15, s[92:95], s52 offen')

def w_prefetch(e):
    e('s_lshl_b32 s52, s2, 12')
    e('v_lshlrev_b32 v12, 4, v0')
    e('v_add_u32 v12, s52, v12')
    e.vm(f'buffer_load_dwordx4 a[16:19], v12, {SWR}, 0 offen')
    e.vm(f'buffer_load_dwordx4 a[16:19], v12, {SWI}, 0 offen')
assert all(((i * 4682) >> 16) == i // 14 for i in range(512))

def p1_finish(e):
    RS, MS, BASE = 288, 9344, LDS_STAGE
    for i in range(4):
        p1_addr(e, i, True)
        e(f's_lshl_b32 s53, s{sW}, 2')
        e(f's_add_u32 s53, s53, {i}')
        ski = L('p1wi')
        if i >= 2:
            e('s_cmp_ge_u32 s53, 14')
            e(f's_cbranch_scc1 {ski}')
        e('s_cmp_ge_u32 s53, 7')
        e(f's_cselect_b32 s53, {MS}, 0')
        e(f's_add_u32 s53, s53, {BASE}')
        e('v_add_u32 v15, s53, v15')
        e(f'ds_write_b128 v15, {ar(4*i,4)}')
        if i >= 2: e.label(ski)
    e.wait_ds_all()
    e.barrier()
    e('v_and_b32 v4, 1, v3')
    e(f'v_mul_u32_u24 v4, {MS}, v4')
    e('v_lshrrev_b32 v5, 1, v3')
    e('v_lshlrev_b32 v5, 2, v5')
    e('v_lshrrev_b32 v6, 2, v2')
    e('v_add_u32 v5, v5, v6')
    e(f'v_mul_u32_u24 v5, {RS}, v5')
    e('v_add_u32 v4, v4, v5')
    e('v_and_b32 v6, 3, v2')
    e('v_lshlrev_b32 v6, 3, v6')
    e('v_add_u32 v4, v4, v6')
    e(f's_and_b32 s52, s{sW}, 1')
    e(f's_mul_i32 s52, s52, {8*RS}')
    e(f's_lshr_b32 s53, s{sW}, 1')
    e('s_lshl_b32 s53, s53, 5')
    e('s_add_u32 s52, s52, s53')
    e(f's_add_u32 s52, s52, {BASE}')
    e('v_add_u32 v4, s52, v4')
    R = 216
    for m in range(4):
        e.ds(f'ds_read_b64_tr_b16 {vr(R+4*m,2)}, v4 offset:{64*m}')
        e.ds(f'ds_read_b64_tr_b16 {vr(R+4*m+2,2)}, v4 offset:{64*m + 16*RS}')
    e('s_and_b32 s52, s2, 15')
    e('s_mul_i32 s52, s52, 7')
    e(f's_lshr_b32 s53, s{sW}, 1')
    e('s_add_u32 s52, s52, s53')
    e('s_mul_i32 s52, s52, 28')
    e('s_lshr_b32 s53, s2, 4')
    e('s_lshl_b32 s53, s53, 1')
    e('s_add_u32 s52, s52, s53')
    e(f's_and_b32 s53, s{sW}, 1')
    e('s_add_u32 s52, s52, s53')
    e('s_lshl_b32 s52, s52, 10')
    e(f's_add_u32 s52, s52, 0x{W13_OFF:x}')
    e('v_lshlrev_b32 v5, 4, v1')
    e.wait_ds_all()
    sk = L('p1s')
    for m in range(4):
        if m == 3:
            e(f's_cmp_ge_u32 s{sW}, 2')
            e(f's_cbranch_scc1 {sk}')
        e(f's_add_u32 s53, s52, {m*2*28*1024}')
        st_ = f'buffer_store_dwordx4 {vr(R+4*m,4)}, v5, {SWS}, s53 offen sc1'
        if m < 3: e.vm(st_)
        else: e(st_)
    e.label(sk)

def w13_load_groups():
    gs = []
    for s_ in range(28):
        for mi in range(2):
            g = []
            if s_ % 7 == 0 and mi == 0:
                g += [f's_add_u32 s90, s89, {s_//7}', 's_and_b32 s90, s90, 3', 's_mul_i32 s90, s90, 7168', 's_add_u32 s90, s90, s88',
                      's_add_u32 s91, s90, 28672']
            i = s_ % 7
            if i == 4 and mi == 0: g += ['s_add_u32 s90, s90, 4096', 's_add_u32 s91, s91, 4096']
            g.append(('vm', f'buffer_load_dwordx4 {ar((mi*28+s_)*4,4)}, v254, s[92:95], s{90+mi} offen offset:{(i%4)*1024} sc1'))
            gs.append(g)
    return gs

def w13_setup(e):
    e(f's_mov_b32 s92, s{S_WS}')
    e(f's_mov_b32 s93, s{S_WS+1}')
    e(f's_cmp_ge_u32 s{sC}, 14')
    e(f's_cselect_b32 s94, 0, s{S_WS+2}')
    e('s_mov_b32 s95, 0x20000')
    e(f's_lshl_b32 s88, s{sC}, 3')
    e(f's_lshl_b32 s52, s{sW}, 1')
    e('s_add_u32 s88, s88, s52')
    e('s_mul_i32 s88, s88, 28672')
    e(f's_add_u32 s88, s88, 0x{W13_OFF:x}')
    e(f's_and_b32 s89, s{sR}, 3')
    e('v_lshlrev_b32 v254, 4, v1')

def emit_groups(e, groups):
    last = None
    for g in groups:
        for op in g:
            if isinstance(op, tuple): last = e.vm(op[1])
            else: e(op)
    return last

DMA = {}
def emit_interleaved(e, main, groups, start=0):
    n, m = len(main), len(groups)
    gi = 0; last = None
    for k, ins in enumerate(main):
        e(ins)
        if k >= start:
            want = ((k - start + 1) * m) // max(1, n - start)
            while gi < want:
                for op in groups[gi]:
                    if isinstance(op, tuple): last = e.vm(op[1])
                    else: e(op)
                gi += 1
    while gi < m:
        for op in groups[gi]:
            if isinstance(op, tuple): last = e.vm(op[1])
            else: e(op)
        gi += 1
    return last

def w13_trread(e, half):
    e('v_and_b32 v4, 1, v3')
    e('v_lshrrev_b32 v5, 1, v3')
    e('v_lshrrev_b32 v6, 2, v2')
    e('v_and_b32 v7, 3, v2')
    e('v_mul_u32_u24 v8, 57344, v4')
    e('v_lshlrev_b32 v9, 2, v5')
    e('v_add_u32 v9, v9, v6')
    e('v_lshlrev_b32 v9, 8, v9')
    e('v_add_u32 v8, v8, v9')
    e('v_and_b32 v9, 1, v7')
    e('v_lshlrev_b32 v9, 3, v9')
    e('v_add_u32 v8, v8, v9')
    e(f'v_add_u32 v8, {LDS_STAGE}, v8')
    e('v_lshrrev_b32 v7, 1, v7')
    e(f's_lshl_b32 s52, s{sW}, 2')
    e('v_add_u32 v7, s52, v7')
    e('v_lshlrev_b32 v6, 1, v6')
    e('v_lshlrev_b32 v4, 3, v4')
    e('v_xor_b32 v6, v6, v4')
    for mi in range(2):
        e(f'v_add_u32 v9, {2*mi}, v7')
        e('v_xor_b32 v9, v9, v6')
        e('v_lshlrev_b32 v9, 4, v9')
        e(f'v_add_u32 v{10+mi}, v8, v9')
    for mi in range(2):
        for jl in range(7):
            for gg in range(2):
                kap = 14 * half + 2 * jl + gg
                a = (mi * 28 + kap) * 4
                off = (16 * jl + 8 * gg) * 256
                e.ds(f'ds_read_b64_tr_b16 {ar(a,2)}, v{10+mi} offset:{off}')
                e.ds(f'ds_read_b64_tr_b16 {ar(a+2,2)}, v{10+mi} offset:{off + 112*256}')

def phase_a(e):
    e.c('======== phase A')
    e(f's_lshl_b32 s56, s{sGRP}, 2')
    e(f's_add_u32 s56, s56, s{sW}')
    e('s_min_u32 s57, s56, 13')
    e(f's_lshr_b32 s52, s{sW}, 1')
    e('s_lshl_b32 s52, s52, 10')
    e(f's_add_u32 s52, s52, s{sB}')
    e('v_lshlrev_b32 v4, 6, v2')
    e('v_add_u32 v4, s52, v4')
    e('v_mul_u32_u24 v4, 896, v4')
    e('v_lshlrev_b32 v5, 4, v3')
    e('v_add_u32 v4, v4, v5')
    e(f's_and_b32 s52, s{sW}, 1')
    e('s_mul_i32 s52, s52, 448')
    e('v_add_u32 v4, s52, v4')
    TA, FP, ACC, X = 16, 72, 96, 128
    xs_tok = [e.vm(f'buffer_load_dwordx4 {vr(X+4*i,4)}, v4, {SX}, 0 offen offset:{64*i}') for i in range(7)]
    if OPT['cpf']:
        sk = L('cpf')
        e(f's_cmp_lg_u32 s{sW}, {OPT["cpf"]-1}')
        e(f's_cbranch_scc1 {sk}')
        e('s_getpc_b64 s[52:53]')
        e.label('L_pc')
        e('s_lshr_b32 s54, s2, 3')
        e('s_lshl_b32 s54, s54, 10')
        e('s_cmp_ge_u32 s54, L_fin-L_pc-1024')
        e(f's_cbranch_scc1 {sk}')
        e('v_lshlrev_b32 v5, 4, v1')
        e('v_add_u32 v5, s54, v5')
        e('global_load_dwordx4 a[20:23], v5, s[52:53]')
        e.label(sk)
    stamp(e, 'A.issued')
    e('s_cmp_lt_u32 s57, 7')
    e('s_cselect_b32 s52, 2, 1')
    e('s_cselect_b32 s53, 0, 7')
    e('s_sub_u32 s53, s57, s53')
    e('s_lshl_b32 s53, s53, 5')
    e('s_add_u32 s53, s53, s52')
    e('s_cmp_lt_u32 s57, 7')
    e(f's_cselect_b32 s58, {lit(1.0)}, {lit(-1.0)}')
    e('v_lshlrev_b32 v5, 1, v2')
    e('v_add_u32 v5, s53, v5')
    e('v_cvt_f32_u32 v5, v5')
    e(f'v_mul_f32 v5, {lit(1.0/448)}, v5')
    e('v_lshlrev_b32 v6, 3, v3')
    e('v_cvt_f32_u32 v6, v6')
    e('v_mul_f32 v6, v6, v5')
    TH, CO, SI = ACC, ACC + 8, ACC + 16
    CO2, SI2 = X + 32, X + 40
    e(f'v_mul_f32 v7, {lit(32.0)}, v5')
    for j in range(8):
        if j == 0: e(f'v_mov_b32 v{TH+j}, v6')
        else: e(f'v_fmamk_f32 v{TH+j}, v5, {lit(float(j))}, v6')
    e('v_cos_f32 v8, v7')
    e('v_sin_f32 v9, v7')
    for j in range(8): e(f'v_cos_f32 v{CO+j}, v{TH+j}')
    for j in range(8): e(f'v_sin_f32_e64 v{SI+j}, -v{TH+j}')
    cur = (CO, SI); oth = (CO2, SI2)
    for t in range(7):
        if t < 6: rot8(e, cur[0], cur[1], oth[0], oth[1], 8, True)
        for i in range(4): e(f'v_cvt_pk_bf16_f32 v{TA+(t*2+0)*4+i}, v{cur[0]+2*i}, v{cur[0]+2*i+1}')
        for i in range(4): e(f'v_cvt_pk_bf16_f32 v{TA+(t*2+1)*4+i}, v{cur[1]+2*i}, v{cur[1]+2*i+1}')
        cur, oth = oth, cur
    e('s_mov_b32 s52, 0x80008000')
    e(f'v_cvt_f32_u32 v7, s{sB}')
    e(f'v_mul_f32 v7, {lit(1.0/64)}, v7')
    e('v_lshlrev_b32 v8, 2, v3')
    e('v_cvt_f32_u32 v8, v8')
    e('v_add_f32 v8, v8, v7')
    for mt in range(2):
        e(f'v_add_u32 v9, {16*mt}, v2')
        e('v_cvt_f32_u32 v9, v9')
        e(f'v_mul_f32 v9, {lit(1.0/32)}, v9')
        e('v_mul_f32 v10, v9, v8')
        for j in range(8):
            cst = 16 * (j >> 2) + (j & 3)
            if cst == 0: e(f'v_mov_b32 v{TH+j}, v10')
            else: e(f'v_fmamk_f32 v{TH+j}, v9, {lit(float(cst))}, v10')
        for j in range(8): e(f'v_cos_f32 v{CO+j}, v{TH+j}')
        for j in range(8): e(f'v_sin_f32 v{SI+j}, v{TH+j}')
        for i in range(4): e(f'v_cvt_pk_bf16_f32 v{FP+mt*12+i}, v{CO+2*i}, v{CO+2*i+1}')
        for i in range(4): e(f'v_cvt_pk_bf16_f32 v{FP+mt*12+4+i}, v{SI+2*i}, v{SI+2*i+1}')
        for i in range(4): e(f'v_xor_b32 v{FP+mt*12+8+i}, s52, v{FP+mt*12+4+i}')
    p1_loads(e)
    stamp(e, 'A.constgen')
    e(f's_mul_i32 s52, s{sW}, 7168')
    e('v_lshlrev_b32 v11, 4, v1')
    e('v_add_u32 v4, s52, v11')
    e('v_mov_b32 v5, 0')
    e('v_mov_b32 v6, 0')
    e('s_mov_b32 s52, 0x3f803f80')
    for i in range(7):
        e.wait_vm(xs_tok[i])
        e.ds(f'ds_write_b128 v4, {vr(X+4*i,4)} offset:{1024*i}')
        for d in range(4):
            e(f'v_dot2_f32_bf16 v5, v{X+4*i+d}, s52, v5')
            e(f'v_dot2_f32_bf16 v6, v{X+4*i+d}, v{X+4*i+d}, v6')
    xsum_groups(e, 5, 7)
    xsum_groups(e, 6, 8)
    e(f's_lshl_b32 s52, s{sW}, 7')
    e('v_lshlrev_b32 v7, 3, v2')
    e('v_add_u32 v7, s52, v7')
    e('v_mov_b32 v8, v5')
    e('v_mov_b32 v9, v6')
    e.ds('ds_write_b64 v7, v[8:9] offset:28672')
    e.wait_ds_all()
    stamp(e, 'A.xstaged')
    e.barrier()
    e('v_mov_b32 v250, 0')
    nonce_tok = e.vm(f'buffer_load_dword v251, v250, {SDBG}, 0 offen sc1')
    e('v_and_b32 v4, 31, v1')
    e('v_lshrrev_b32 v5, 4, v4')
    e('v_lshlrev_b32 v5, 8, v5')
    e('v_lshlrev_b32 v6, 3, v2')
    e('v_add_u32 v5, v5, v6')
    t0 = e.ds('ds_read_b64 v[6:7], v5 offset:28672')
    t1 = e.ds('ds_read_b64 v[8:9], v5 offset:28800')
    xt = {}
    order = [(half, t, mt) for half in range(2) for t in range(7) for mt in range(2)]
    def xreg(mt, tt): return X + (mt * 14 + tt) * 4
    nread = [0]
    def issue_x():
        half, t, mt = order[nread[0]]
        tt = t + 7 * half
        xt[(half, t, mt)] = e.ds(f'ds_read_b128 {vr(xreg(mt,tt),4)}, v11 offset:{(mt*14+tt)*1024}')
        nread[0] += 1
    for _ in range(8): issue_x()
    e.wait_ds(t1)
    e('v_add_f32 v6, v6, v8')
    e('v_add_f32 v7, v7, v9')
    e(f'v_mul_f32 v6, {lit(1.0/448)}, v6')
    e(f'v_mul_f32 v7, {lit(1.0/448)}, v7')
    e('v_fma_f32 v7, -v6, v6, v7')
    e('v_max_f32 v7, 0, v7')
    e(f'v_add_f32 v7, {lit(1e-5)}, v7')
    e('v_rsq_f32 v7, v7')
    e(f's_lshl_b32 s52, s{sW}, 7')
    e('v_lshlrev_b32 v8, 2, v4')
    e('v_add_u32 v9, s52, v8')
    e.ds('ds_write_b32 v9, v7 offset:29184')
    nm = L('nomean')
    e(f's_or_b32 s52, s{sGRP}, s{sW}')
    e('s_cmp_lg_u32 s52, 0')
    e(f's_cbranch_scc1 {nm}')
    e(f's_lshl_b32 s52, s{sB}, 7')
    e(f's_add_u32 s52, s52, 0x{ST1_OFF:x}')
    e(f'buffer_store_dword v6, v8, {SWS}, s52 offen sc1')
    e.label(nm)
    e(f's_lshl_b32 s52, s{sW}, 7')
    e('v_lshlrev_b32 v9, 4, v3')
    e('v_add_u32 v9, s52, v9')
    RR = 240
    tr0 = e.ds(f'ds_read_b128 {vr(RR,4)}, v9 offset:29184')
    tr1 = e.ds(f'ds_read_b128 {vr(RR+4,4)}, v9 offset:29248')
    def acc(mt, c, half): return ACC + ((mt * 2 + c) * 2 + half) * 4
    for (half, t, mt) in order:
        if nread[0] < len(order): issue_x()
        e.wait_ds(xt[(half, t, mt)])
        tt = t + 7 * half
        for c in range(2):
            a = acc(mt, c, half)
            e(f'v_mfma_f32_16x16x32_bf16 {vr(a,4)}, {vr(xreg(mt,tt),4)}, {vr(TA+(t*2+c)*4,4)}, {"0" if t == 0 else vr(a,4)}')
    e.wait_ds(tr1)
    stamp(e, 'A.mfma')
    BF = X; TMP = X + 8
    for c in range(2):
        for mt in range(2):
            for r in range(4): e(f'v_fma_f32 v{TMP+mt*4+r}, v{acc(mt,c,1)+r}, s58, v{acc(mt,c,0)+r}')
            for r in range(4): e(f'v_mul_f32 v{TMP+mt*4+r}, v{TMP+mt*4+r}, v{RR+mt*4+r}')
        for mt in range(2):
            for i in range(2):
                e(f'v_cvt_pk_bf16_f32 v{BF+c*4+mt*2+i}, v{TMP+mt*4+2*i}, v{TMP+mt*4+2*i+1}')
    TT = X + 16
    for mt in range(2):
        C, Sp, Sn = FP + mt * 12, FP + mt * 12 + 4, FP + mt * 12 + 8
        e(f'v_mfma_f32_16x16x32_bf16 {vr(TT+mt*8,4)}, {vr(C,4)}, {vr(BF,4)}, 0')
        e(f'v_mfma_f32_16x16x32_bf16 {vr(TT+mt*8+4,4)}, {vr(Sn,4)}, {vr(BF,4)}, 0')
        e(f'v_mfma_f32_16x16x32_bf16 {vr(TT+mt*8,4)}, {vr(Sp,4)}, {vr(BF+4,4)}, {vr(TT+mt*8,4)}')
        e(f'v_mfma_f32_16x16x32_bf16 {vr(TT+mt*8+4,4)}, {vr(C,4)}, {vr(BF+4,4)}, {vr(TT+mt*8+4,4)}')
    e('s_mov_b32 s52, %d' % (4 * 57344))
    e('v_mul_lo_u32 v4, v3, s52')
    e('v_lshlrev_b32 v5, 2, v2')
    e('v_add_u32 v4, v4, v5')
    e('s_lshl_b32 s52, s56, 12')
    e(f's_lshl_b32 s53, s{sB}, 6')
    e('s_add_u32 s52, s52, s53')
    OUT = X + 40
    for mt in range(2):
        for r in range(4): e(f'v_cvt_pk_bf16_f32 v{OUT+mt*4+r}, v{TT+mt*8+r}, v{TT+mt*8+4+r}')
    ns = L('nostoreA')
    e('s_cmp_ge_u32 s56, 14')
    e(f's_cbranch_scc1 {ns}')
    for mt in range(2):
        for r in range(4):
            e(f's_add_u32 s53, s52, {T1_OFF + (16*mt+r)*57344}')
            e(f'buffer_store_dword v{OUT+mt*4+r}, v4, {SWS}, s53 offen sc1')
    e.label(ns)
    stamp(e, 'A.stored')
    e.wait_vm_all()
    sk, lp, dn = L('nsk'), L('nlp'), L('ndn')
    e(f's_cmp_lg_u32 s{sW}, 0')
    e(f's_cbranch_scc1 {sk}')
    e(f's_mov_b32 s{sSPIN}, 0')
    e.label(lp)
    e(f'v_readfirstlane_b32 s{sNONCE}, v251')
    e('s_nop 1')
    e(f's_cmp_lg_u32 s{sNONCE}, 0')
    e(f's_cbranch_scc1 {dn}')
    e(f'buffer_load_dword v251, v250, {SDBG}, 0 offen sc1')
    e('s_waitcnt vmcnt(0)')
    e(f's_add_u32 s{sSPIN}, s{sSPIN}, 1')
    e(f's_cmp_lt_u32 s{sSPIN}, {MAXSPIN}')
    e(f's_cbranch_scc1 {lp}')
    e.label(dn)
    e.label(sk)
    stamp(e, 'A.drained')
    signal(e, 0)

def phase_p2(e):
    e.c('======== P2 (w2 re-layout)')
    done = L('p2done')
    e('s_cmp_ge_u32 s2, 252')
    e(f's_cbranch_scc1 {done}')
    e('s_sub_u32 s56, s2, 224')
    e('s_waitcnt vmcnt(0)')
    e.barrier()
    e.vm_issued = e.vm_done = 0
    e('s_mul_i32 s52, s56, 57344')
    e('v_lshlrev_b32 v4, 4, v0')
    toks = []
    for i in range(14):
        e(f's_add_u32 s53, s52, {i*4096}')
        toks.append(e.vm(f'buffer_load_dwordx4 {vr(16+4*i,4)}, v4, {SW2}, s53 offen'))
    for i in range(14):
        e(f'v_add_u32 v5, {i*256}, v0')
        e('v_mul_u32_u24 v6, 18725, v5')
        e('v_lshrrev_b32 v6, 20, v6')
        e('v_lshlrev_b32 v6, 5, v6')
        e('v_lshlrev_b32 v5, 4, v5')
        e(f'v_add_u32 v{80+i}, v5, v6')
        e(f'v_add_u32 v{80+i}, {LDS_STAGE}, v{80+i}')
    for i in range(14):
        e.wait_vm(toks[i])
        e.ds(f'ds_write_b128 v{80+i}, {vr(16+4*i,4)}')
    e.wait_ds_all()
    e.barrier()
    e('v_lshrrev_b32 v4, 1, v3')
    e('v_lshlrev_b32 v4, 2, v4')
    e('v_lshrrev_b32 v5, 2, v2')
    e('v_add_u32 v4, v4, v5')
    e(f's_lshl_b32 s53, s{sW}, 4')
    e('v_add_u32 v4, s53, v4')
    e('v_mul_u32_u24 v4, 928, v4')
    e('v_and_b32 v5, 1, v3')
    e('v_lshlrev_b32 v5, 4, v5')
    e('v_add_u32 v4, v4, v5')
    e('v_and_b32 v5, 1, v2')
    e('v_lshlrev_b32 v5, 3, v5')
    e('v_add_u32 v4, v4, v5')
    e('v_bfe_u32 v5, v2, 1, 1')
    e('v_mul_u32_u24 v5, 448, v5')
    e('v_add_u32 v4, v4, v5')
    e(f'v_add_u32 v4, {LDS_STAGE}, v4')
    e('v_lshlrev_b32 v5, 4, v1')
    for j in range(14):
        R = 16 + 4 * j
        e.ds(f'ds_read_b64_tr_b16 {vr(R,2)}, v4 offset:{32*j}')
        e.ds(f'ds_read_b64_tr_b16 {vr(R+2,2)}, v4 offset:{32*j + 8*928}')
    e.wait_ds_all()
    e('s_lshl_b32 s53, s56, 2')
    e(f's_add_u32 s53, s53, s{sW}')
    e('s_lshl_b32 s53, s53, 10')
    e(f's_add_u32 s53, s53, 0x{W2_OFF:x}')
    for j in range(14):
        e(f's_add_u32 s54, s53, {j*112*1024}')
        e.vm(f'buffer_store_dwordx4 {vr(16+4*j,4)}, v5, {SWS}, s54 offen sc1')
    e.label(done)
    e.wait_vm_all()
assert all(((p * 18725) >> 20) == p // 56 for p in range(3584)), "magic /56"

def phase_b(e):
    e.c('======== window 1 + phase B')
    e('s_and_b32 s56, s2, 7')
    e('s_lshr_b32 s57, s2, 3')
    e('s_mul_i32 s52, s57, 37')
    e('s_lshr_b32 s52, s52, 8')
    e('s_mul_i32 s53, s52, 7')
    e('s_sub_u32 s53, s57, s53')
    e('s_lshl_b32 s52, s52, 3')
    e('s_add_u32 s56, s56, s52')
    e('s_lshl_b32 s53, s53, 1')
    e(f's_lshr_b32 s54, s{sW}, 1')
    e('s_add_u32 s57, s53, s54')
    e('s_lshr_b32 s59, s53, 2')
    e(f's_and_b32 s58, s{sW}, 1')
    FC, FS, FN = 16, 32, 48
    TIN, BF, WR, WI, XA, YR, YI, YF = 64, 80, 96, 104, 112, 128, 136, 144
    e('s_cmp_lt_u32 s57, 7')
    e('s_cselect_b32 s52, 2, 1')
    e('s_cselect_b32 s53, 0, 7')
    e('s_sub_u32 s53, s57, s53')
    e('s_lshl_b32 s53, s53, 5')
    e('s_add_u32 s53, s53, s52')
    e('v_lshlrev_b32 v6, 1, v2')
    e('v_add_u32 v6, s53, v6')
    e('v_lshlrev_b32 v6, 1, v6')
    e('v_lshlrev_b32 v7, 7, v3')
    e('s_lshl_b32 s52, s58, 10')
    e('s_add_u32 s52, s52, s56')
    e('v_add_u32 v7, s52, v7')
    e('v_mul_u32_u24 v7, 450, v7')
    e('v_add_u32 v6, v6, v7')
    wtok = {}
    for mtl in range(2):
        for r in range(4):
            e(f's_mov_b32 s52, {(16*mtl+r)*14400}')
            e.vm(f'buffer_load_short_d16_hi v{WR+mtl*4+r}, v6, {SWR}, s52 offen')
            wtok[(mtl, r)] = e.vm(f'buffer_load_short_d16_hi v{WI+mtl*4+r}, v6, {SWI}, s52 offen')
    p1_finish(e)
    stamp(e, 'W1.p1')
    CO, SI, TH = 160, 176, 192
    groups = []
    main = []
    em = main.append
    em('s_lshl_b32 s52, s58, 5')
    em('v_add_u32 v8, s52, v2')
    em('v_cvt_f32_u32 v8, v8')
    em(f'v_mul_f32 v8, {lit(1.0/64)}, v8')
    em('v_lshlrev_b32 v9, 2, v3')
    for tt in range(2):
        em(f's_xor_b32 s52, s58, {tt}')
        em('s_lshl_b32 s52, s52, 5')
        em('v_add_u32 v10, s52, v9')
        em('v_cvt_f32_u32 v10, v10')
        em('v_mul_f32 v10, v10, v8')
        for j in range(8):
            cst = 16 * (j >> 2) + (j & 3)
            if cst == 0: em(f'v_mov_b32 v{TH+j}, v10')
            else: em(f'v_fmamk_f32 v{TH+j}, v8, {lit(float(cst))}, v10')
        for j in range(8): em(f'v_cos_f32 v{CO+tt*8+j}, v{TH+j}')
        for j in range(8): em(f'v_sin_f32 v{SI+tt*8+j}, v{TH+j}')
    def rot(kind, t, j, mt):
        qt = (mt * (j & 3)) & 3
        c, s = f'v{CO+t*8+j}', f'v{SI+t*8+j}'
        if kind == 'C': return [c, '-' + s, '-' + c, s][qt]
        if kind == 'S': return [s, c, '-' + s, '-' + c][qt]
        if kind == 'N': return ['-' + s, '-' + c, s, c][qt]
    for kind, base in (('C', FC), ('S', FS), ('N', FN)):
        for mtl in range(2):
            for tt in range(2):
                for i in range(4):
                    em(f'v_cvt_pk_bf16_f32 v{base+(mtl*2+tt)*4+i}, {rot(kind,tt,2*i,mtl)}, {rot(kind,tt,2*i+1,mtl)}')
    emit_interleaved(e, main, groups)
    e('s_mul_i32 s60, s56, 14')
    e('s_add_u32 s60, s60, s57')
    e('s_lshl_b32 s60, s60, 12')
    e(f's_add_u32 s60, s60, 0x{T1_OFF:x}')
    e('v_lshlrev_b32 v11, 8, v3')
    e('v_lshlrev_b32 v10, 2, v2')
    e('v_add_u32 v11, v11, v10')
    stamp(e, 'W1.ready')
    def idx(e):
        e('v_and_b32 v5, 7, v1')
        e('v_lshrrev_b32 v6, 3, v1')
        e('v_lshlrev_b32 v6, 5, v6')
        e('v_add_u32 v5, v5, v6')
        e('s_lshl_b32 s53, s59, 3')
        e('v_add_u32 v5, s53, v5')
        e('v_lshlrev_b32 v5, 6, v5')
    poll(e, 0, 64, idx)
    stamp(e, 'B.go')
    tin = {}
    for tt in range(2):
        e(f's_xor_b32 s52, s58, {tt}')
        e('s_lshl_b32 s52, s52, 11')
        e('s_add_u32 s52, s52, s60')
        for j in range(8):
            off = (16 * (j >> 2) + (j & 3)) * 64
            tin[(tt, j)] = e.vm(f'buffer_load_dword v{TIN+tt*8+j}, v11, {SWS}, s52 offen offset:{off} sc1')
    e('s_mov_b32 s52, 0x05040100')
    e('s_mov_b32 s53, 0x07060302')
    for tt in range(2):
        e.wait_vm(tin[(tt, 7)])
        for i in range(4):
            e(f'v_perm_b32 v{BF+tt*4+i}, v{TIN+tt*8+2*i+1}, v{TIN+tt*8+2*i}, s52')
            e(f'v_perm_b32 v{BF+8+tt*4+i}, v{TIN+tt*8+2*i+1}, v{TIN+tt*8+2*i}, s53')
    stamp(e, 'B.loaded')
    def fr(base, mtl, tt): return vr(base + (mtl * 2 + tt) * 4, 4)
    def mm(d, a, b, first): e(f'v_mfma_f32_16x16x32_bf16 {vr(d,4)}, {a}, {vr(b,4)}, {"0" if first else vr(d,4)}')
    BRE = lambda t: BF + t * 4
    BIM = lambda t: BF + 8 + t * 4
    for step in range(4):
        for mtl in range(2):
            xr, xi = XA + mtl * 8, XA + mtl * 8 + 4
            tt = step & 1
            if step < 2:
                mm(xr, fr(FC, mtl, tt), BRE(tt), step == 0); mm(xi, fr(FN, mtl, tt), BRE(tt), step == 0)
            else:
                mm(xr, fr(FS, mtl, tt), BIM(tt), False); mm(xi, fr(FC, mtl, tt), BIM(tt), False)
    e.wait_vm(wtok[(1, 3)])
    for mtl in range(2):
        for r in range(4):
            xr, xi = XA + mtl * 8 + r, XA + mtl * 8 + 4 + r
            wr, wi = WR + mtl * 4 + r, WI + mtl * 4 + r
            e(f'v_mul_f32 v{YR+mtl*4+r}, v{xr}, v{wr}')
            e(f'v_mul_f32 v{YI+mtl*4+r}, v{xr}, v{wi}')
            e(f'v_fma_f32 v{YR+mtl*4+r}, -v{xi}, v{wi}, v{YR+mtl*4+r}')
            e(f'v_fma_f32 v{YI+mtl*4+r}, v{xi}, v{wr}, v{YI+mtl*4+r}')
    for c, src in ((0, YR), (1, YI)):
        for i in range(4):
            e(f'v_cvt_pk_bf16_f32 v{YF+c*8+i}, v{src+(i>>1)*4+2*(i&1)}, v{src+(i>>1)*4+2*(i&1)+1}')
    e('v_lshlrev_b32 v10, 4, v1')
    e(f's_lshl_b32 s52, s{sW}, 11')
    e('v_add_u32 v12, s52, v10')
    e(f's_xor_b32 s52, s{sW}, 1')
    e('s_lshl_b32 s52, s52, 11')
    e('v_add_u32 v13, s52, v10')
    e.ds(f'ds_write_b128 v12, {vr(YF,4)}')
    e.ds(f'ds_write_b128 v12, {vr(YF+8,4)} offset:1024')
    e.wait_ds_all()
    e.barrier()
    p0 = e.ds(f'ds_read_b128 {vr(YF+4,4)}, v13')
    p1_ = e.ds(f'ds_read_b128 {vr(YF+12,4)}, v13 offset:1024')
    YRE = lambda t: YF + t * 4
    YIM = lambda t: YF + 8 + t * 4
    for mtl in range(2):
        xr, xi = XA + mtl * 8, XA + mtl * 8 + 4
        mm(xr, fr(FC, mtl, 0), YRE(0), True);  mm(xi, fr(FS, mtl, 0), YRE(0), True)
        mm(xr, fr(FN, mtl, 0), YIM(0), False); mm(xi, fr(FC, mtl, 0), YIM(0), False)
    e.wait_ds(p1_)
    for mtl in range(2):
        xr, xi = XA + mtl * 8, XA + mtl * 8 + 4
        mm(xr, fr(FC, mtl, 1), YRE(1), False); mm(xi, fr(FS, mtl, 1), YRE(1), False)
        mm(xr, fr(FN, mtl, 1), YIM(1), False); mm(xi, fr(FC, mtl, 1), YIM(1), False)
    e('s_mov_b32 s52, %d' % (4 * 28672))
    e('v_mul_lo_u32 v4, v3, s52')
    e('v_lshlrev_b32 v5, 2, v2')
    e('v_add_u32 v4, v4, v5')
    e('s_lshl_b32 s52, s57, 11')
    e('s_lshl_b32 s53, s56, 6')
    e('s_add_u32 s52, s52, s53')
    e(f's_mul_i32 s53, s58, {32*28672}')
    e('s_add_u32 s52, s52, s53')
    last = None
    for mtl in range(2):
        for r in range(4): e(f'v_cvt_pk_bf16_f32 v{TIN+mtl*4+r}, v{XA+mtl*8+r}, v{XA+mtl*8+4+r}')
        for r in range(4):
            e(f's_add_u32 s53, s52, {T2_OFF + (16*mtl+r)*28672}')
            last = e.vm(f'buffer_store_dword v{TIN+mtl*4+r}, v4, {SWS}, s53 offen sc1')
    stamp(e, 'B.stored')
    e.wait_vm_all()
    stamp(e, 'B.drained')

def phase_c(e):
    e.c('======== window 2 + phase C')
    e(f's_lshl_b32 s56, s{sGRP}, 2')
    e(f's_add_u32 s56, s56, s{sW}')
    e('s_min_u32 s57, s56, 13')
    G, TC, AIN, VA, PA, XR = 16, 48, 104, 136, 152, 168
    MEAN = XR + 8
    e('v_lshlrev_b32 v5, 6, v2')
    e(f'v_add_u32 v5, s{sB}, v5')
    e('v_mul_u32_u24 v5, 896, v5')
    e('v_lshlrev_b32 v6, 3, v3')
    e('v_add_u32 v5, v5, v6')
    e('s_lshl_b32 s52, s57, 5')
    e('v_add_u32 v5, s52, v5')
    for nt in range(2):
        for pm in range(2):
            e(f's_mov_b32 s52, {nt*16*64*896}')
            e.vm(f'buffer_load_dwordx2 {vr(XR+(nt*2+pm)*2,2)}, v5, {SX}, s52 offen offset:{448*pm}')
    groups = []
    main = []
    em = main.append
    TH, CO, SI = 180, 188, 196
    cscale = 2.0 / (2048.0 * 448.0)
    em('v_cvt_f32_u32 v7, v3')
    for nt in range(2):
        em(f'v_add_u32 v8, {16*nt}, v2')
        em('v_lshlrev_b32 v8, 6, v8')
        em(f'v_add_u32 v8, s{sB}, v8')
        em('v_cvt_f32_u32 v8, v8')
        em(f'v_mul_f32 v8, {lit(1.0/2048)}, v8')
        em('v_mul_f32 v9, v7, v8')
        for t in range(2):
            for ii in range(4):
                cst = 16 * t + 4 * ii
                if cst == 0: em(f'v_mov_b32 v{TH+t*4+ii}, v9')
                else: em(f'v_fmamk_f32 v{TH+t*4+ii}, v8, {lit(float(cst))}, v9')
        for j in range(8): em(f'v_cos_f32 v{CO+j}, v{TH+j}')
        for j in range(8): em(f'v_sin_f32 v{SI+j}, v{TH+j}')
        for j in range(8): em(f'v_mul_f32 v{CO+j}, {lit(cscale)}, v{CO+j}')
        for j in range(8): em(f'v_mul_f32 v{SI+j}, {lit(cscale)}, v{SI+j}')
        for t in range(2):
            for ii in range(4):
                j = t * 4 + ii
                em(f'v_cvt_pk_bf16_f32 v{G+((0*2+t)*2+nt)*4+ii}, v{CO+j}, -v{SI+j}')
                em(f'v_cvt_pk_bf16_f32 v{G+((1*2+t)*2+nt)*4+ii}, v{SI+j}, v{CO+j}')
    em('s_lshl_b32 s52, s57, 4')
    em('v_add_u32 v8, s52, v2')
    em('v_cvt_f32_u32 v8, v8')
    em(f'v_mul_f32 v8, {lit(1.0/448)}, v8')
    em('v_lshlrev_b32 v9, 3, v3')
    em('v_cvt_f32_u32 v9, v9')
    em('v_mul_f32 v9, v9, v8')
    em('v_cmp_eq_u32 vcc, 3, v3')
    em('v_mov_b32 v10, 1.0')
    em('v_mov_b32 v11, 0.5')
    em('v_cndmask_b32 v10, v10, v11, vcc')
    CO2, SI2 = 204, 212
    em(f'v_mul_f32 v7, {lit(32.0)}, v8')
    for h in range(2):
        for j in range(4):
            cst = 2 * j + (2 if h == 0 else 1)
            em(f'v_fmamk_f32 v{TH+h*4+j}, v8, {lit(float(cst))}, v9')
    em('v_cos_f32 v12, v7')
    em('v_sin_f32 v13, v7')
    for j in range(8): em(f'v_cos_f32 v{CO+j}, v{TH+j}')
    for j in range(8): em(f'v_sin_f32_e64 v{SI+j}, -v{TH+j}')
    cur = (CO, SI); oth = (CO2, SI2)
    for kp in range(7):
        if kp < 6: rot8(em, cur[0], cur[1], oth[0], oth[1], 12, True)
        else:
            em(f'v_mul_f32 v{cur[0]+3}, v{cur[0]+3}, v10')
            em(f'v_mul_f32 v{cur[1]+3}, v{cur[1]+3}, v10')
        for h, kb in enumerate((kp, kp + 7)):
            em(f'v_cvt_pk_bf16_f32 v{TC+kb*4+0}, v{cur[0]+h*4+0}, v{cur[0]+h*4+1}')
            em(f'v_cvt_pk_bf16_f32 v{TC+kb*4+1}, v{cur[0]+h*4+2}, v{cur[0]+h*4+3}')
            em(f'v_cvt_pk_bf16_f32 v{TC+kb*4+2}, v{cur[1]+h*4+0}, v{cur[1]+h*4+1}')
            em(f'v_cvt_pk_bf16_f32 v{TC+kb*4+3}, v{cur[1]+h*4+2}, v{cur[1]+h*4+3}')
        cur, oth = oth, cur
    emit_interleaved(e, main, groups)
    e('v_lshlrev_b32 v12, 2, v1')
    stamp(e, 'W2.ready')
    def idx(e): e('v_lshlrev_b32 v5, 6, v1')
    poll(e, 1, 256, idx)
    stamp(e, 'C.go')
    w13_setup(e)
    WG = w13_load_groups()
    wgi = [0]
    def wload(n):
        for _ in range(n):
            if wgi[0] < len(WG):
                emit_groups(e, [WG[wgi[0]]]); wgi[0] += 1
    atok = {}
    for i in range(4):
        e(f's_add_u32 s52, s{sW}, {4*i}')
        e('s_min_u32 s52, s52, 13')
        e(f's_mul_i32 s53, s{sB}, 14')
        e('s_add_u32 s52, s52, s53')
        e('s_lshl_b32 s52, s52, 11')
        e(f's_add_u32 s52, s52, 0x{T2_OFF:x}')
        for t in range(2):
            for ii in range(4):
                atok[(i, t, ii)] = e.vm(f'buffer_load_dword v{AIN+i*8+t*4+ii}, v12, {SWS}, s52 offen offset:{(16*t+4*ii)*64} sc1')
    e('v_lshlrev_b32 v6, 2, v2')
    e(f's_lshl_b32 s52, s{sB}, 7')
    e(f's_add_u32 s52, s52, 0x{ST1_OFF:x}')
    mtok = [e.vm(f'buffer_load_dword v{MEAN+nt}, v6, {SWS}, s52 offen offset:{64*nt} sc1') for nt in range(2)]
    e('v_lshlrev_b32 v11, 4, v1')
    e(f's_lshl_b32 s52, s{sW}, 11')
    e('v_add_u32 v12, s52, v11')
    PK = 204
    for i in range(4):
        e.wait_vm(atok[(i, 1, 3)])
        if i == 0: stamp(e, 'C.loaded')
        for nt in range(2):
            for out in range(2):
                d = VA + (out * 2 + nt) * 4
                e(f'v_mfma_f32_16x16x32_bf16 {vr(d,4)}, {vr(AIN+i*8,4)}, {vr(G+((out*2+0)*2+nt)*4,4)}, 0')
        for nt in range(2):
            for out in range(2):
                d = VA + (out * 2 + nt) * 4
                e(f'v_mfma_f32_16x16x32_bf16 {vr(d,4)}, {vr(AIN+i*8+4,4)}, {vr(G+((out*2+1)*2+nt)*4,4)}, {vr(d,4)}')
        sk = L('skip3')
        if i == 3:
            e(f's_cmp_ge_u32 s{sW}, 2')
            e(f's_cbranch_scc1 {sk}')
        for nt in range(2):
            p = PK + nt * 4 + (i & 1) * 8
            vre, vim = VA + (0 * 2 + nt) * 4, VA + (1 * 2 + nt) * 4
            e(f'v_cvt_pk_bf16_f32 v{p+0}, v{vre+0}, v{vre+1}')
            e(f'v_cvt_pk_bf16_f32 v{p+1}, v{vre+2}, v{vre+3}')
            e(f'v_cvt_pk_bf16_f32 v{p+2}, v{vim+0}, v{vim+1}')
            e(f'v_cvt_pk_bf16_f32 v{p+3}, v{vim+2}, v{vim+3}')
            e.ds(f'ds_write_b128 v12, {vr(p,4)} offset:{(4*i*2+nt)*1024}')
        if i == 3: e.label(sk)
        wload(OPT['st1'])
    e.wait_ds_all()
    stamp(e, 'C.st1')
    e.barrier()
    VB = 220
    order = [(kb, nt) for kb in range(14) for nt in range(2)]
    tok = {}
    nread = [0]
    def issue():
        kb, nt = order[nread[0]]
        tok[nread[0]] = e.ds(f'ds_read_b128 {vr(VB+(nread[0]%8)*4,4)}, v11 offset:{(kb*2+nt)*1024}')
        nread[0] += 1
    for _ in range(7): issue()
    for idx_, (kb, nt) in enumerate(order):
        e.wait_ds(tok[idx_])
        par = 0 if kb < 7 else 1
        d = PA + (par * 2 + nt) * 4
        first = kb in (0, 7)
        e(f'v_mfma_f32_16x16x32_bf16 {vr(d,4)}, {vr(TC+kb*4,4)}, {vr(VB+(idx_%8)*4,4)}, {"0" if first else vr(d,4)}')
        if nread[0] < len(order): issue()
        if OPT['st2'] and idx_ % OPT['st2'] == OPT['st2'] - 1: wload(1)
    stamp(e, 'C.st2')
    e.wait_vm(mtok[1])
    H, HP, CP, SQ = 104, 120, 128, 180
    e('s_mov_b32 s52, 0xffff0000')
    for nt in range(2):
        pe, po = PA + nt * 4, PA + 8 + nt * 4
        for pm in range(2):
            xr = XR + (nt * 2 + pm) * 2
            for r in range(4):
                hv = H + (nt * 2 + pm) * 4 + r
                e(f'{"v_add_f32" if pm == 0 else "v_sub_f32"} v{hv}, v{pe+r}, v{po+r}')
                xv = 184 + r
                if r & 1: e(f'v_and_b32 v{xv}, s52, v{xr+(r>>1)}')
                else: e(f'v_lshlrev_b32 v{xv}, 16, v{xr+(r>>1)}')
            for r in range(4):
                hv = H + (nt * 2 + pm) * 4 + r
                e(f'v_add_f32 v{hv}, v{hv}, v{184+r}')
            for i in range(2):
                hv = H + (nt * 2 + pm) * 4 + 2 * i
                e(f'v_cvt_pk_bf16_f32 v{HP+nt*4+pm*2+i}, v{hv}, v{hv+1}')
        e(f'v_mov_b32 v{SQ+nt}, 0')
        for q in range(4):
            hp = HP + nt * 4 + q
            e(f'v_lshlrev_b32 v188, 16, v{hp}')
            e(f'v_and_b32 v189, s52, v{hp}')
            e(f'v_sub_f32 v188, v188, v{MEAN+nt}')
            e(f'v_sub_f32 v189, v189, v{MEAN+nt}')
            e(f'v_fma_f32 v{SQ+nt}, v188, v188, v{SQ+nt}')
            e(f'v_fma_f32 v{SQ+nt}, v189, v189, v{SQ+nt}')
            e(f'v_cvt_pk_bf16_f32 v{CP+nt*4+q}, v188, v189')
            wload(OPT['epi'])
    e('v_lshrrev_b32 v4, 1, v3')
    e('v_lshlrev_b32 v4, 10, v4')
    e('v_and_b32 v5, 1, v3')
    e('v_lshlrev_b32 v5, 9, v5')
    e('v_add_u32 v4, v4, v5')
    e('v_lshlrev_b32 v5, 4, v2')
    e('v_add_u32 v4, v4, v5')
    e(f's_mul_i32 s52, s{sB}, 28')
    e('s_lshl_b32 s53, s57, 1')
    e('s_add_u32 s52, s52, s53')
    e('s_lshl_b32 s52, s52, 10')
    ns, st = L('cnostore'), L('cstat')
    e('s_cmp_ge_u32 s56, 14')
    e(f's_cbranch_scc1 {ns}')
    e(f's_add_u32 s53, s52, 0x{HC_OFF:x}')
    e(f's_add_u32 s54, s52, 0x{HR_OFF:x}')
    for nt in range(2):
        e(f'buffer_store_dwordx4 {vr(CP+nt*4,4)}, v4, {SWS}, s53 offen offset:{256*nt} sc1')
        e(f'buffer_store_dwordx4 {vr(HP+nt*4,4)}, v4, {SWS}, s54 offen offset:{256*nt} sc1')
    e.label(ns)
    for nt in range(2): xsum_groups(e, SQ + nt, 190)
    e('s_cmp_lt_u32 s56, 14')
    e(f's_cbranch_scc1 {st}')
    e(f'v_mov_b32 v{SQ}, 0')
    e(f'v_mov_b32 v{SQ+1}, 0')
    e.label(st)
    e('v_cmp_le_u32 vcc, 16, v1')
    e(f'v_cndmask_b32 v{SQ}, v{SQ}, v{SQ+1}, vcc')
    e('v_lshlrev_b32 v5, 2, v1')
    e(f's_lshl_b32 s52, s{sB}, 11')
    e('s_lshl_b32 s53, s56, 7')
    e('s_add_u32 s52, s52, s53')
    e(f's_add_u32 s52, s52, 0x{ST2_OFF:x}')
    e('s_mov_b64 exec, 0xffffffff')
    last = e.vm(f'buffer_store_dword v{SQ}, v5, {SWS}, s52 offen sc1')
    e('s_mov_b64 exec, -1')
    stamp(e, 'C.stored')
    wload(OPT['post'])
    e.wait_vm(last)
    stamp(e, 'C.drained')
    signal(e, 2)
    global W13_PENDING
    W13_PENDING = (WG, wgi)

def w2reg(mi, s_):
    o = 2 * s_ + mi
    if o < 23: return vr(160 + 4 * o, 4), None
    if o < 31: return ar(224 + 4 * (o - 23), 4), None
    oo = o - 31
    return ar(((oo & 1) * 28 + (oo >> 1)) * 4, 4), (oo & 1, oo >> 1)

def phase_g(e):
    e.c('======== window 3 + G1')
    WG, wgi = W13_PENDING
    wtok = {}
    for _ in range(min(OPT['w3'], len(WG) - wgi[0])):
        wtok[wgi[0]] = emit_groups(e, [WG[wgi[0]]]); wgi[0] += 1
    e('v_lshlrev_b32 v4, 4, v1')
    e(f's_lshl_b32 s56, s{sC}, 3')
    e(f's_lshl_b32 s52, s{sW}, 1')
    e('s_add_u32 s56, s56, s52')
    e(f's_lshl_b32 s57, s{sR}, 2')
    e('s_and_b32 s58, s2, 7')
    e('s_lshr_b32 s59, s2, 3')
    e('s_mul_i32 s52, s59, 37')
    e('s_lshr_b32 s52, s52, 8')
    e('s_mul_i32 s53, s52, 7')
    e('s_sub_u32 s59, s59, s53')
    e('s_lshl_b32 s52, s52, 3')
    e('s_add_u32 s58, s58, s52')
    e(f's_mul_i32 s52, s{sW}, 28')
    e(f's_and_b32 s54, s{sW}, 1')
    for mi in range(2):
        e(f's_xor_b32 s53, s54, {mi}')
        e('s_lshl_b32 s55, s59, 1')
        e('s_add_u32 s53, s53, s55')
        e('s_mul_i32 s53, s53, 112')
        e('s_add_u32 s53, s53, s52')
        e('s_lshl_b32 s53, s53, 10')
        e(f's_add_u32 s{60+mi}, s53, 0x{W2_OFF:x}')
    def grp_off(dst, g):
        return [f's_add_u32 s{dst}, s59, {g}', f's_cmp_ge_u32 s{dst}, 7', f's_cselect_b32 s55, 7, 0',
                f's_sub_u32 s{dst}, s{dst}, s55', f's_lshl_b32 s{dst}, s{dst}, 12']
    def w2load(o):
        s_, mi = o >> 1, o & 1
        reg, dep = w2reg(mi, s_)
        pre = []
        if s_ % 4 == 0 and mi == 0:
            pre = grp_off(62, s_ // 4) + ['s_add_u32 s63, s61, s62', 's_add_u32 s62, s60, s62']
        return pre + [('vm', f'buffer_load_dwordx4 {reg}, v4, {SWS}, s{62+mi} offen offset:{(s_%4)*1024} sc1')]
    def idx(e):
        e('v_lshrrev_b32 v5, 2, v1')
        e('v_add_u32 v5, s57, v5')
        e('v_and_b32 v6, 7, v5')
        e('v_lshrrev_b32 v5, 3, v5')
        e('v_lshlrev_b32 v5, 5, v5')
        e('v_add_u32 v5, v5, v6')
        e('v_and_b32 v6, 3, v1')
        e('v_lshlrev_b32 v6, 3, v6')
        e('v_add_u32 v5, v5, v6')
        e('v_lshlrev_b32 v5, 6, v5')
    e(f's_cmp_ge_u32 s{sC}, 14')
    e('s_cbranch_scc1 L_g2only')
    poll(e, 2, 16, idx)
    stamp(e, 'G1.go')
    ACC, BR, RRG, T = 64, 16, 48, 128
    ST = T
    dtok = {}
    e(f's_mul_i32 s96, s{sW}, 7168')
    e(f's_add_u32 s98, s{sR}, s{sW}')
    e('s_and_b32 s98, s98, 3')
    e('s_mul_i32 s98, s98, 7168')
    def hc_groups(nt):
        gs = []
        for i in range(7):
            g = []
            if i == 0:
                g += [f's_add_u32 s97, s57, {nt}', 's_mul_i32 s97, s97, 28672', 's_add_u32 s97, s97, s98', f's_add_u32 s97, s97, 0x{HC_OFF:x}']
            if i == 4: g += ['s_add_u32 s97, s97, 4096']
            if i in (0, 4): g += [f's_add_u32 m0, s96, {nt*28672 + (4096 if i == 4 else 0)}']
            g.append(('vm', f'buffer_load_dwordx4 v4, {SWS}, s97 offen offset:{(i%4)*1024} sc1 lds', ('hc', nt)))
            gs.append(g)
        return gs
    STK = []
    def emit_op(op):
        if isinstance(op, tuple) and op[0] == 'ds':
            STK.append(e.ds(op[1])); return None
        if isinstance(op, tuple) and op[0] == 'dswait':
            e.wait_ds(STK[op[1] * 8 + 7]); return None
        if isinstance(op, tuple):
            t = e.vm(op[1])
            if len(op) > 2:
                if op[2][0] == 'hc': dtok[op[2][1]] = t
                if op[2][0] == 'st': dtok['st'] = t
            return t
        e(op); return None
    for g in hc_groups(0):
        for op in g: emit_op(op)
    e(f's_add_u32 s54, s57, s{sW}')
    e('s_lshl_b32 s54, s54, 11')
    e(f's_add_u32 s54, s54, 0x{ST2_OFF:x}')
    e(f's_lshl_b32 s55, s{sW}, 11')
    e(f's_add_u32 m0, s55, {LDS_STATS}')
    e.vm(f'buffer_load_dwordx4 v4, {SWS}, s54 offen sc1 lds')
    dtok[0] = e.vm(f'buffer_load_dwordx4 v4, {SWS}, s54 offen offset:1024 sc1 lds')
    while wgi[0] < len(WG):
        wtok[wgi[0]] = emit_groups(e, [WG[wgi[0]]]); wgi[0] += 1
    e('v_add_u32 v6, 57344, v4')
    e('v_and_b32 v5, 31, v1')
    e('v_lshlrev_b32 v5, 2, v5')
    e('v_lshrrev_b32 v7, 5, v1')
    e('v_lshlrev_b32 v7, 10, v7')
    e('v_add_u32 v5, v5, v7')
    e(f'v_add_u32 v5, {LDS_STATS}, v5')
    def stat_ops():
        ops = []
        for nt in range(4):
            b0 = ST + nt * 8
            for i in range(8): ops.append(('ds', f'ds_read_b32 v{b0+i}, v5 offset:{nt*2048 + i*128}'))
        for nt in range(4):
            b0 = ST + nt * 8
            ops.append(('dswait', nt))
            ops += [f'v_add_f32 v{b0}, v{b0}, v{b0+1}', f'v_add_f32 v{b0+2}, v{b0+2}, v{b0+3}', f'v_add_f32 v{b0+4}, v{b0+4}, v{b0+5}',
                    f'v_add_f32 v{b0+6}, v{b0+6}, v{b0+7}', f'v_add_f32 v{b0}, v{b0}, v{b0+2}', f'v_add_f32 v{b0+4}, v{b0+4}, v{b0+6}',
                    f'v_add_f32 v{b0}, v{b0}, v{b0+4}', f'v_mov_b32 v{b0+1}, v{b0}', f'v_mov_b32 v7, {lit(1e-5)}',
                    f'v_permlane32_swap_b32 v{b0+1}, v{b0}', f'v_add_f32 v{b0}, v{b0}, v{b0+1}',
                    f'v_fmamk_f32 v{b0}, v{b0}, {lit(1.0/448)}, v7', f'v_rsq_f32 v{b0}, v{b0}', 's_nop 0',
                    f'v_mul_f32 v{RRG+nt}, {lit(-1.4426950408889634)}, v{b0}', f'v_mul_f32 v{RRG+4+nt}, v{b0}, v{b0}']
        return ops
    def epi_ops(nt):
        ops = []
        for mi in range(2):
            a = ACC + ((nt & 1) * 2 + mi) * 16
            T0 = T + mi * 16
            for r in range(8): ops.append(f'v_mul_f32 v{T0+r}, v{a+r}, v{RRG+nt}')
            for r in range(8):
                ops.append(f'v_exp_f32 v{T0+r}, v{T0+r}')
                ops.append(f'v_mul_f32 v{T0+8+r}, v{a+r}, v{a+8+r}')
            for r in range(8):
                ops.append(f'v_add_f32 v{T0+r}, 1.0, v{T0+r}')
                ops.append(f'v_mul_f32 v{T0+8+r}, v{T0+8+r}, v{RRG+4+nt}')
            for r in range(8): ops.append(f'v_rcp_f32 v{T0+r}, v{T0+r}')
            for r in range(8): ops.append(f'v_mul_f32 v{T0+8+r}, v{T0+8+r}, v{T0+r}')
            P = 56 + mi * 4
            for i in range(4): ops.append(f'v_cvt_pk_bf16_f32 v{P+i}, v{T0+8+2*i}, v{T0+8+2*i+1}')
            ops.append(f's_add_u32 s53, s57, {nt}')
            ops.append('s_mul_i32 s53, s53, 112')
            ops.append('s_add_u32 s53, s53, s56')
            ops.append(f's_add_u32 s53, s53, {mi}')
            ops.append('s_lshl_b32 s53, s53, 10')
            ops.append(f's_add_u32 s53, s53, 0x{HM_OFF:x}')
            ops.append(('vm', f'buffer_store_dwordx4 {vr(P,4)}, v4, {SWS}, s53 offen sc1', ('store',)))
        return ops
    bg = {0: hc_groups(1) + hc_groups(2), 1: hc_groups(3) + [w2load(o) for o in range(0, 9)],
          2: [w2load(o) for o in range(9, 25)], 3: [w2load(o) for o in range(25, 31)]}
    last_store = None
    next_late = 31
    for nt in range(4):
        e.wait_vm(dtok[nt])
        e.barrier()
        if nt == 0: stamp(e, 'G1.t0')
        fill = epi_ops(nt - 1) if nt > 0 else stat_ops()
        sttok = []
        fi = 0; gi = 0
        btok = {}
        n = [0]
        def issue():
            kap = n[0]
            base = 'v4' if nt < 2 else 'v6'
            off = ((nt & 1) * 28 + kap) * 1024
            btok[kap] = e.ds(f'ds_read_b128 {vr(BR+(kap%8)*4,4)}, {base} offset:{off}')
            n[0] += 1
        for _ in range(5): issue()
        nm = 0
        G_ = bg[nt]
        for kap in range(28):
            e.wait_ds(btok[kap])
            for mi in range(2):
                a = ACC + ((nt & 1) * 2 + mi) * 16
                if nt == 0 and (kap * 2 + mi) in wtok: e.wait_vm(wtok[kap * 2 + mi])
                e(f'v_mfma_f32_32x32x16_bf16 {vr(a,16)}, {ar((mi*28+kap)*4,4)}, {vr(BR+(kap%8)*4,4)}, {"0" if kap == 0 else vr(a,16)}')
                nm += 1
                if mi == 0 and n[0] < 28: issue()
                span = 24 if nt == 3 else 56
                want = (len(G_) * nm + span - 1) // span
                while gi < min(want, len(G_)):
                    for op in G_[gi]: emit_op(op)
                    gi += 1
                if nt == 3 and gi >= len(G_) and nm % 4 == 0 and next_late < 43:
                    dep = w2reg(next_late & 1, next_late >> 1)[1]
                    if dep[1] * 2 + dep[0] < nm:
                        for op in w2load(next_late): emit_op(op)
                        next_late += 1
                if nm > 3:
                    want = (len(fill) * (nm - 3) + 49) // 50
                    while fi < min(want, len(fill)):
                        t = emit_op(fill[fi]); fi += 1
        while fi < len(fill):
            emit_op(fill[fi]); fi += 1
        stamp(e, f'G1.tile{nt}')
    for op in epi_ops(3):
        t = emit_op(op)
        if isinstance(op, tuple): last_store = t
    stamp(e, 'G1.stored')
    while next_late < 56:
        for op in w2load(next_late): emit_op(op)
        next_late += 1
    e.wait_vm(last_store)
    stamp(e, 'G1.drained')
    signal(e, 3)
    e('s_cmp_ge_u32 s2, 224')
    e('s_cbranch_scc1 L_fin')
    e('s_branch L_g2')
    e.label('L_g2only')
    e('s_cmp_ge_u32 s2, 224')
    e('s_cbranch_scc1 L_fin')
    sv = (e.vm_issued, e.vm_done)
    for o in range(56):
        for op in w2load(o): e(op[1] if isinstance(op, tuple) else op)
    e.label('L_g2')
    e.c('======== G2')
    ACC2, BR2, HRR, NB = 16, 80, 152, 9
    e('s_lshl_b32 s57, s58, 1')
    e(f's_mul_i32 s52, s{sW}, 28')
    e(f's_lshr_b32 s54, s{sW}, 1')
    for ni in range(2):
        e(f's_xor_b32 s53, s54, {ni}')
        e('s_add_u32 s53, s53, s57')
        e('s_mul_i32 s53, s53, 112')
        e('s_add_u32 s53, s53, s52')
        e('s_lshl_b32 s53, s53, 10')
        e(f's_add_u32 s{88+ni}, s53, 0x{HM_OFF:x}')
    e('s_add_u32 s56, s54, s57')
    e('s_mul_i32 s52, s56, 28')
    e(f's_and_b32 s60, s{sW}, 1')
    e('s_lshl_b32 s53, s59, 1')
    e('s_add_u32 s60, s60, s53')
    e('s_lshl_b32 s53, s60, 1')
    e('s_add_u32 s52, s52, s53')
    e('s_lshl_b32 s52, s52, 10')
    e(f's_add_u32 s52, s52, 0x{HR_OFF:x}')
    e('s_mov_b32 s61, s52')
    def idx4(e):
        e('s_lshr_b32 s53, s58, 1')
        e('s_lshl_b32 s53, s53, 3')
        e('v_lshrrev_b32 v5, 1, v1')
        e('v_and_b32 v6, 1, v1')
        e('v_lshlrev_b32 v6, 7, v6')
        e('v_add_u32 v5, v5, v6')
        e('v_add_u32 v5, s53, v5')
        e('v_lshlrev_b32 v5, 6, v5')
    poll(e, 3, 14, idx4)
    stamp(e, 'G2.go')
    tok = {}
    nl = [0]
    def issue2():
        i = nl[0]
        if i % 4 == 0:
            for op in grp_off(62, i // 4): e(op)
            e('s_add_u32 s63, s89, s62')
            e('s_add_u32 s62, s88, s62')
        o = (i % 4) * 1024
        slot = i % NB
        e.vm(f'buffer_load_dwordx4 {vr(BR2+slot*8,4)}, v4, {SWS}, s62 offen offset:{o} sc1')
        tok[i] = e.vm(f'buffer_load_dwordx4 {vr(BR2+slot*8+4,4)}, v4, {SWS}, s63 offen offset:{o} sc1')
        nl[0] += 1
    for _ in range(NB): issue2()
    htok = [e.vm(f'buffer_load_dwordx4 {vr(HRR+4*gg,4)}, v4, {SWS}, s61 offen offset:{1024*gg} sc1') for gg in range(2)]
    for i in range(28):
        e.wait_vm(tok[i])
        if i == 0: stamp(e, 'G2.first')
        slot = i % NB
        for mi in range(2):
            for ni in range(2):
                a = ACC2 + (mi * 2 + ni) * 16
                e(f'v_mfma_f32_32x32x16_bf16 {vr(a,16)}, {w2reg(mi,i)[0]}, {vr(BR2+slot*8+ni*4,4)}, {"0" if i == 0 else vr(a,16)}')
        if nl[0] < 28: issue2()
    stamp(e, 'G2.mfma')
    for k, (mi, ni) in enumerate(((1, 0), (0, 1), (1, 1))):
        e(f's_xor_b32 s52, s{sW}, {k+1}')
        e('s_mul_i32 s52, s52, 12288')
        e(f'v_add_u32 v{5+k}, s52, v4')
    for k, (mi, ni) in enumerate(((1, 0), (0, 1), (1, 1))):
        a = ACC2 + (mi * 2 + ni) * 16
        for qd in range(4):
            e.ds(f'ds_write_b128 v{5+k}, {vr(a+qd*4,4)} offset:{k*4096 + qd*1024}')
    e.wait_ds_all()
    e.barrier()
    e(f's_mul_i32 s52, s{sW}, 12288')
    e('v_add_u32 v5, s52, v4')
    R0 = 80
    for k in range(3):
        for qd in range(4):
            e.ds(f'ds_read_b128 {vr(R0+k*16+qd*4,4)}, v5 offset:{k*4096 + qd*1024}')
    e.wait_ds_all()
    stamp(e, 'G2.red')
    for r in range(16):
        e(f'v_add_f32 v{R0+r}, v{R0+r}, v{R0+16+r}')
        e(f'v_add_f32 v{R0+32+r}, v{R0+32+r}, v{ACC2+r}')
    for r in range(16): e(f'v_add_f32 v{R0+r}, v{R0+r}, v{R0+32+r}')
    e.wait_vm(htok[1])
    e('s_mov_b32 s52, 0xffff0000')
    PK = 32
    for i in range(8): e(f'v_cvt_pk_bf16_f32 v{PK+i}, v{R0+2*i}, v{R0+2*i+1}')
    for i in range(8):
        e(f'v_lshlrev_b32 v48, 16, v{PK+i}')
        e(f'v_and_b32 v49, s52, v{PK+i}')
        e(f'v_lshlrev_b32 v50, 16, v{HRR+i}')
        e(f'v_and_b32 v51, s52, v{HRR+i}')
        e('v_add_f32 v48, v48, v50')
        e('v_add_f32 v49, v49, v51')
        dst = {0: 40, 1: 41, 4: 42, 5: 43, 2: 44, 3: 45, 6: 46, 7: 47}[i]
        e(f'v_cvt_pk_bf16_f32 v{dst}, v48, v49')
    e('v_permlane32_swap_b32 v40, v42')
    e('v_permlane32_swap_b32 v41, v43')
    e('v_permlane32_swap_b32 v44, v46')
    e('v_permlane32_swap_b32 v45, v47')
    e('v_and_b32 v5, 31, v1')
    e('v_lshlrev_b32 v5, 6, v5')
    e('v_add_u32 v5, s56, v5')
    e('v_mul_u32_u24 v5, 896, v5')
    e('v_lshrrev_b32 v6, 5, v1')
    e('v_lshlrev_b32 v6, 4, v6')
    e('v_add_u32 v5, v5, v6')
    e('s_lshl_b32 s52, s60, 5')
    om = ['', ' sc1', ' nt', ' sc0 sc1'][OPT['outmod']]
    e(f'buffer_store_dwordx4 v[40:43], v5, {SOUT}, s52 offen{om}')
    e(f'buffer_store_dwordx4 v[44:47], v5, {SOUT}, s52 offen offset:448{om}')
    stamp(e, 'G2.end')

DBGOUT = False
def dbg_out(e):
    sk = L('dbo')
    e('s_waitcnt vmcnt(0)')
    e('s_memrealtime s[84:85]')
    e('s_memtime s[90:91]')
    e('s_waitcnt lgkmcnt(0)')
    e(f's_cmp_lg_u32 s{sW}, 0')
    e(f's_cbranch_scc1 {sk}')
    e('s_and_b32 s52, s2, 63')
    e('s_cmp_lg_u32 s52, 0')
    e(f's_cbranch_scc1 {sk}')
    e('s_lshr_b32 s52, s2, 6')
    e('s_lshl_b32 s52, s52, 4')
    e('s_add_u32 s52, s52, 16')
    e('s_sub_u32 s53, s84, s86')
    e('s_sub_u32 s54, s90, s82')
    e('v_mov_b32 v4, s53'); e('v_mov_b32 v5, s54'); e('v_mov_b32 v6, s86'); e('v_mov_b32 v7, s84')
    e('v_mov_b32 v8, 0')
    e('s_mov_b64 exec, 1')
    e(f'buffer_store_dwordx4 v[4:7], v8, {SDBG}, s52 offen sc1')
    e('s_mov_b64 exec, -1')
    e.label(sk)

def probe(e):
    sk = L('prb'); lp = L('prl')
    e('s_cmp_lg_u32 s2, 0')
    e(f's_cbranch_scc1 {sk}')
    e('s_waitcnt vmcnt(0)')
    e('s_memrealtime s[84:85]')
    e('s_waitcnt lgkmcnt(0)')
    e('s_sub_u32 s84, s84, s86')
    e(f's_cmp_lt_u32 s84, {OPT["probe"]}')
    e(f's_cbranch_scc1 {sk}')
    e('s_mov_b32 s85, 0')
    e.label(lp)
    e('s_sleep 64')
    e('s_add_u32 s85, s85, 1')
    e('s_cmp_lt_u32 s85, 20')
    e(f's_cbranch_scc1 {lp}')
    e.label(sk)

def diag_dump(e):
    if OPT['probe']: probe(e)
    if DBGOUT: dbg_out(e)
    if not DIAG: return
    e.wait_vm_all()
    rstamp(e, 'rt_end')
    e('s_lshl_b32 s52, s2, 2')
    e(f's_add_u32 s52, s52, s{sW}')
    e('s_lshl_b32 s52, s52, 8')
    e(f's_add_u32 s52, s52, 0x{DIAG_OFF:x}')
    e('v_lshlrev_b32 v4, 2, v1')
    e(f'buffer_store_dword v255, v4, {SWS}, s52 offen')

def kernel():
    e = Emit()
    e.label(KN)
    e('s_cmp_ge_u32 s2, 256')
    e('s_cbranch_scc1 L_end')
    e('s_load_dwordx16 s[64:79], s[0:1], 0')
    e('s_load_dwordx4 s[80:83], s[0:1], 64')
    e('s_memrealtime s[86:87]')
    if DBGOUT: e('s_memtime s[82:83]')
    if DIAG: e('v_mov_b32 v255, 0')
    e('v_lshrrev_b32 v4, 6, v0')
    e('v_and_b32 v1, 63, v0')
    e(f'v_readfirstlane_b32 s{sW}, v4')
    e('v_and_b32 v2, 15, v0')
    e('v_bfe_u32 v3, v0, 4, 2')
    e(f's_and_b32 s{sB}, s2, 7')
    e('s_lshr_b32 s52, s2, 5')
    e('s_lshl_b32 s52, s52, 3')
    e(f's_add_u32 s{sB}, s{sB}, s52')
    e(f's_lshr_b32 s{sGRP}, s2, 3')
    e(f's_and_b32 s{sGRP}, s{sGRP}, 3')
    e('s_lshr_b32 s52, s2, 3')
    e(f's_and_b32 s{sR}, s52, 15')
    e('s_lshr_b32 s52, s52, 4')
    e(f's_and_b32 s{sC}, s2, 7')
    e(f's_lshl_b32 s{sC}, s{sC}, 1')
    e(f's_add_u32 s{sC}, s{sC}, s52')
    e(f's_getreg_b32 s{sREP}, hwreg(HW_REG_XCC_ID, 0, 3)')
    e(f's_lshl_b32 s{sREP}, s{sREP}, 14')
    e(f's_mov_b32 s{sNONCE}, 0')
    e('s_waitcnt lgkmcnt(0)')
    srd(e, S_X, 64, 1835008)
    srd(e, S_WS, 82, WS_SIZE)
    srd(e, S_WR, 66, 2048 * 450)
    srd(e, S_WI, 68, 2048 * 450)
    srd(e, S_W1, 72, 448 * 3584)
    srd(e, S_W3, 74, 448 * 3584)
    srd(e, S_W2, 76, 1792 * 896)
    srd(e, S_OUT, 78, 1835008)
    srd(e, S_DBG, 80, 256)
    e('s_cmp_ge_u32 s2, 224')
    e(f's_cselect_b32 s{S_W1+2}, 0, s{S_W1+2}')
    e(f's_cselect_b32 s{S_W3+2}, 0, s{S_W3+2}')
    if DIAG:
        STAMPS.append('rt_start'); _stamp_n[0] += 1
        e('v_writelane_b32 v255, s86, 0')
    stamp(e, 'start')
    sk = L('nononce')
    e(f's_or_b32 s52, s2, s{sW}')
    e('s_cmp_lg_u32 s52, 0')
    e(f's_cbranch_scc1 {sk}')
    e('s_or_b32 s52, s86, 1')
    e('v_mov_b32 v4, s52')
    e('v_mov_b32 v5, 0')
    e('s_mov_b64 exec, 1')
    e(f'buffer_store_dword v4, v5, {SDBG}, 0 offen sc1')
    e('s_mov_b64 exec, -1')
    e.label(sk)
    phase_a(e)
    p2l, joinl = L('p2'), L('join')
    e('s_cmp_ge_u32 s2, 224')
    e(f's_cbranch_scc1 {p2l}')
    sv_ds = (e.ds_issued, e.ds_done)
    phase_b(e)
    e(f's_branch {joinl}')
    e.label(p2l)
    nstamp = _stamp_n[0]
    phase_p2(e)
    e.label(joinl)
    signal(e, 1)
    e.vm_issued = 0; e.vm_done = 0
    phase_c(e)
    phase_g(e)
    e.label('L_fin')
    diag_dump(e)
    e.label('L_end')
    e('s_endpgm')
    return e.out

def build():
    hdr = open('cdna_kernels/' + NAME + '.s.ref').read().split('; Override launch')[0]
    body = kernel()
    body, nn = hazard_pass(body)
    print(f'; {len(body)} lines, {nn} nops inserted', file=sys.stderr)
    lines = [hdr.rstrip('\n'),
             f'; @launch grid=(256,1,1) block=(256,1,1) lds={LDS_BYTES}',
             '.amdgcn_target "amdgcn-amd-amdhsa--gfx950"', '.text', f'.globl {KN}', '.p2align 8', f'.type {KN},@function']
    for ln in body: lines.append(ln if ln.endswith(':') else '    ' + ln)
    lines += ['.section .rodata,"a"', '.p2align 6', f'.amdhsa_kernel {KN}',
              '  .amdhsa_next_free_vgpr 512', '  .amdhsa_next_free_sgpr 100', '  .amdhsa_accum_offset 256',
              '  .amdhsa_group_segment_fixed_size 0', '  .amdhsa_kernarg_size 80', '  .amdhsa_user_sgpr_count 2',
              '  .amdhsa_user_sgpr_kernarg_segment_ptr 1', '  .amdhsa_system_sgpr_workgroup_id_x 1',
              '  .amdhsa_float_denorm_mode_32 3', '.end_amdhsa_kernel']
    return '\n'.join(lines) + '\n'

if __name__ == '__main__':
    for a in list(sys.argv):
        if a.startswith('--opt='):
            for kv in a[6:].split(','):
                k, v = kv.split('='); OPT[k] = int(v)
            sys.argv.remove(a)
    if '--dbgout' in sys.argv:
        DBGOUT = True; sys.argv.remove('--dbgout')
    if '--diag' in sys.argv:
        DIAG = True; sys.argv.remove('--diag')
    out = sys.argv[1] if len(sys.argv) > 1 else 'cdna_kernels/' + NAME + '.s'
    open(out, 'w').write(build())
    if DIAG:
        import json; json.dump(STAMPS, open(out + '.stamps.json', 'w'))
    print('written', out, file=sys.stderr)
```

```python
import sys, struct
from asmlib import Emit, hazard_pass

NAME = "sequential_preLN__spectral_gfnet__glu_gated_swiglu__prompt"
KN = NAME + "_kernel"

T1_OFF  = 0x000000
T2_OFF  = 0x200000
HC_OFF  = 0x400000
HR_OFF  = 0x600000
ST1_OFF = 0x800000
ST2_OFF = 0x810000
W13_OFF = 0x900000
W2_OFF  = 0xD00000
HM_OFF  = 0x1000000
FL_OFF  = 0x1800000
DIAG_OFF = 0x1A00000
WS_SIZE = 0x1C00000
LDS_STAGE = 32768
LDS_STATS = 114688
LDS_BYTES = 114688 + 8192
MAXSPIN = 100000

DIAG = False
OPT = dict(st1=3, st2=2, epi=2, post=4, w3=8, cpf=4, outmod=0, probe=0, pdepth=1, g2rot=0, wsoff=0)
def f2u(x): return struct.unpack('<I', struct.pack('<f', x))[0]
def lit(x): return '0x%08x' % f2u(x)
def vr(a, n=1): return f'v{a}' if n == 1 else f'v[{a}:{a+n-1}]'
def ar(a, n=1): return f'a{a}' if n == 1 else f'a[{a}:{a+n-1}]'

S_X, S_WS, S_WR, S_WI, S_W1, S_W3, S_W2, S_OUT, S_DBG = 8, 12, 16, 20, 24, 28, 32, 36, 40
SX, SWS, SWR, SWI, SW1, SW3, SW2, SOUT, SDBG = [f's[{a}:{a+3}]' for a in (8, 12, 16, 20, 24, 28, 32, 36, 40)]
sW, sB, sGRP, sNONCE, sREP = 44, 45, 46, 47, 48
sR, sC, sSPIN = 49, 50, 51

def srd(e, d, ptr, size):
    e(f's_mov_b32 s{d}, s{ptr}')
    e(f's_and_b32 s{d+1}, s{ptr+1}, 0xffff')
    e(f's_mov_b32 s{d+2}, 0x{size:x}')
    e(f's_mov_b32 s{d+3}, 0x20000')

_stamp_n = [0]
STAMPS = []
def stamp(e, name):
    if not DIAG: return
    i = _stamp_n[0]; _stamp_n[0] += 1; STAMPS.append(name)
    e('s_memtime s[84:85]')
    e('s_waitcnt lgkmcnt(0)')
    e(f'v_writelane_b32 v255, s84, {i}')
def rstamp(e, name):
    if not DIAG: return
    i = _stamp_n[0]; _stamp_n[0] += 1; STAMPS.append(name)
    e('s_memrealtime s[84:85]')
    e('s_waitcnt lgkmcnt(0)')
    e(f'v_writelane_b32 v255, s84, {i}')

def xsum_groups(e, v, tmp):
    e(f'v_mov_b32 v{tmp}, v{v}')
    e(f'v_permlane32_swap_b32 v{tmp}, v{v}')
    e(f'v_add_f32 v{v}, v{v}, v{tmp}')
    e(f'v_mov_b32 v{tmp}, v{v}')
    e(f'v_permlane16_swap_b32 v{tmp}, v{v}')
    e(f'v_add_f32 v{v}, v{v}, v{tmp}')

def rot8(em, co, si, co2, si2, cs, neg_sin):
    C = 'op_sel:[0,0] op_sel_hi:[1,0]'
    S3 = 'op_sel:[0,1,0] op_sel_hi:[1,1,1]'
    NEG = ' neg_lo:[0,1,0] neg_hi:[0,1,0]'
    for p in range(4):
        em(f'v_pk_mul_f32 v[{co2+2*p}:{co2+2*p+1}], v[{co+2*p}:{co+2*p+1}], v[{cs}:{cs+1}] {C}')
        em(f'v_pk_mul_f32 v[{si2+2*p}:{si2+2*p+1}], v[{si+2*p}:{si+2*p+1}], v[{cs}:{cs+1}] {C}')
    for p in range(4):
        em(f'v_pk_fma_f32 v[{co2+2*p}:{co2+2*p+1}], v[{si+2*p}:{si+2*p+1}], v[{cs}:{cs+1}], v[{co2+2*p}:{co2+2*p+1}] {S3}' + ('' if neg_sin else NEG))
        em(f'v_pk_fma_f32 v[{si2+2*p}:{si2+2*p+1}], v[{co+2*p}:{co+2*p+1}], v[{cs}:{cs+1}], v[{si2+2*p}:{si2+2*p+1}] {S3}' + (NEG if neg_sin else ''))

_lab = [0]
def L(p):
    _lab[0] += 1
    return f'L{p}_{_lab[0]}'

def signal(e, sync):
    e.barrier()
    skip = L('sig')
    e(f's_cmp_lg_u32 s{sW}, 0')
    e(f's_cbranch_scc1 {skip}')
    e(f's_lshl_b32 s52, s2, 6')
    e(f's_add_u32 s52, s52, 0x{FL_OFF + sync*0x40000:x}')
    e(f'v_mov_b32 v14, s{sNONCE}')
    e('v_lshlrev_b32 v15, 14, v1')
    e('s_mov_b64 exec, 0xff')
    e(f'buffer_store_dword v14, v15, {SWS}, s52 offen sc1')
    e('s_mov_b64 exec, -1')
    e.label(skip)

def poll(e, sync, nflags, idx_code, preg=232):
    skip = L('pollskip'); loop = L('poll'); done = L('polldone')
    e(f's_cmp_lg_u32 s{sW}, 0')
    e(f's_cbranch_scc1 {skip}')
    idx_code(e)
    nl = max(1, nflags // 64)
    e(f's_add_u32 s52, s{sREP}, 0x{FL_OFF + sync*0x40000:x}')
    for i in range(1, nl): e(f's_add_u32 s{52+i}, s52, {i*64*64}')
    e(f's_mov_b32 s{sSPIN}, 0')
    if nflags <= 32: e(f's_mov_b64 exec, 0x{(1 << nflags) - 1:x}')
    elif nflags < 64: e(f's_mov_b32 exec_hi, 0x{(1 << (nflags - 32)) - 1:x}')
    D = OPT['pdepth']
    def issue(k):
        for i in range(nl): e(f'buffer_load_dword v{preg+k*nl+i}, v5, {SWS}, s{52+i} offen sc1')
    e('s_waitcnt vmcnt(0)') if D == 1 else None
    for k in range(D - 1): issue(k)
    e.label(loop)
    for k in range(D):
        issue((k + D - 1) % D)
        e(f's_waitcnt vmcnt({(D-1)*nl})')
        r = preg + k * nl
        e(f'v_xor_b32 v6, s{sNONCE}, v{r}')
        for i in range(1, nl):
            e(f'v_xor_b32 v7, s{sNONCE}, v{r+i}')
            e('v_or_b32 v6, v6, v7')
        e('v_cmp_ne_u32 vcc, 0, v6')
        e('s_nop 4')
        e(f's_cbranch_vccz {done}')
    e(f's_add_u32 s{sSPIN}, s{sSPIN}, 1')
    e(f's_cmp_lt_u32 s{sSPIN}, {MAXSPIN}')
    e(f's_cbranch_scc1 {loop}')
    e.label(done)
    e('s_mov_b64 exec, -1')
    e.label(skip)
    e.barrier()

def p1_addr(e, i):
    e(f's_lshl_b32 s53, s{sW}, 2')
    e(f's_add_u32 s53, s53, {i}')
    e('s_cmp_ge_u32 s53, 7')
    e('s_cselect_b32 s54, 7, 0')
    e(f's_cselect_b32 s55, {P1_MS}, 0')
    e('s_sub_u32 s54, s53, s54')
    e('s_lshl_b32 s54, s54, 6')
    e(f's_add_u32 s55, s55, {LDS_STAGE}')
    e('v_add_u32 v12, s54, v1')
    e('v_mul_u32_u24 v13, 4682, v12')
    e('v_lshrrev_b32 v13, 16, v13')
    e('v_mul_u32_u24 v14, 14, v13')
    e('v_sub_u32 v14, v12, v14')
    e('v_lshlrev_b32 v14, 4, v14')
    e(f'v_mul_u32_u24 v15, {P1_RS}, v13')
    e('v_add3_u32 v%d, v15, v14, s55' % P1LR[i])
    e('v_lshrrev_b32 v15, 4, v13')
    e('v_mul_u32_u24 v15, 208, v15')
    e('v_add_u32 v15, v15, v13')
    e('v_mul_u32_u24 v15, 3584, v15')
    e('v_add_u32 v15, v15, v14')

P1_RS, P1_MS = 288, 9344
P1LR = [252, 253, 254, 249]
def p1_loads(e):
    e('s_lshr_b32 s52, s2, 4')
    e('s_lshl_b32 s52, s52, 4')
    e('s_mul_i32 s52, s52, 3584')
    e('s_and_b32 s54, s2, 15')
    e('s_mul_i32 s54, s54, 224')
    e('s_add_u32 s52, s52, s54')
    e(f's_mov_b32 s94, s{S_W1+2}')
    e('s_mov_b32 s95, 0x20000')
    for i in range(4):
        p1_addr(e, i)
        e('s_cmp_ge_u32 s53, 7')
        e(f's_cselect_b32 s92, s{S_W3}, s{S_W1}')
        e(f's_cselect_b32 s93, s{S_W3+1}, s{S_W1+1}')
        if i >= 2:
            e('s_cmp_ge_u32 s53, 14')
            e('s_cselect_b32 s94, 0, s94')
        e.vm(f'buffer_load_dwordx4 {ar(4*i,4)}, v15, s[92:95], s52 offen')

def w_prefetch(e):
    e('s_lshl_b32 s52, s2, 12')
    e('v_lshlrev_b32 v12, 4, v0')
    e('v_add_u32 v12, s52, v12')
    e.vm(f'buffer_load_dwordx4 a[16:19], v12, {SWR}, 0 offen')
    e.vm(f'buffer_load_dwordx4 a[16:19], v12, {SWI}, 0 offen')
assert all(((i * 4682) >> 16) == i // 14 for i in range(512))

def p1_finish(e):
    RS, MS, BASE = 288, 9344, LDS_STAGE
    skw = L('p1w')
    for i in range(4):
        if i == 2:
            e(f's_cmp_ge_u32 s{sW}, 3')
            e(f's_cbranch_scc1 {skw}')
        e(f'ds_write_b128 v{P1LR[i]}, {ar(4*i,4)}')
    e.label(skw)
    e.wait_ds_all()
    e.barrier()
    e('v_and_b32 v4, 1, v3')
    e(f'v_mul_u32_u24 v4, {MS}, v4')
    e('v_lshrrev_b32 v5, 1, v3')
    e('v_lshlrev_b32 v5, 2, v5')
    e('v_lshrrev_b32 v6, 2, v2')
    e('v_add_u32 v5, v5, v6')
    e(f'v_mul_u32_u24 v5, {RS}, v5')
    e('v_add_u32 v4, v4, v5')
    e('v_and_b32 v6, 3, v2')
    e('v_lshlrev_b32 v6, 3, v6')
    e('v_add_u32 v4, v4, v6')
    e(f's_and_b32 s52, s{sW}, 1')
    e(f's_mul_i32 s52, s52, {8*RS}')
    e(f's_lshr_b32 s53, s{sW}, 1')
    e('s_lshl_b32 s53, s53, 5')
    e('s_add_u32 s52, s52, s53')
    e(f's_add_u32 s52, s52, {BASE}')
    e('v_add_u32 v4, s52, v4')
    R = 216
    for m in range(4):
        e.ds(f'ds_read_b64_tr_b16 {vr(R+4*m,2)}, v4 offset:{64*m}')
        e.ds(f'ds_read_b64_tr_b16 {vr(R+4*m+2,2)}, v4 offset:{64*m + 16*RS}')
    e('s_and_b32 s52, s2, 15')
    e('s_mul_i32 s52, s52, 7')
    e(f's_lshr_b32 s53, s{sW}, 1')
    e('s_add_u32 s52, s52, s53')
    e('s_mul_i32 s52, s52, 28')
    e('s_lshr_b32 s53, s2, 4')
    e('s_lshl_b32 s53, s53, 1')
    e('s_add_u32 s52, s52, s53')
    e(f's_and_b32 s53, s{sW}, 1')
    e('s_add_u32 s52, s52, s53')
    e('s_lshl_b32 s52, s52, 10')
    e(f's_add_u32 s52, s52, 0x{W13_OFF:x}')
    e('v_lshlrev_b32 v5, 4, v1')
    e.wait_ds_all()
    sk = L('p1s')
    for m in range(4):
        if m == 3:
            e(f's_cmp_ge_u32 s{sW}, 2')
            e(f's_cbranch_scc1 {sk}')
        e(f's_add_u32 s53, s52, {m*2*28*1024}')
        st_ = f'buffer_store_dwordx4 {vr(R+4*m,4)}, v5, {SWS}, s53 offen sc1'
        if m < 3: e.vm(st_)
        else: e(st_)
    e.label(sk)

def w13_load_groups():
    gs = []
    for s_ in range(28):
        for mi in range(2):
            g = []
            if s_ % 7 == 0 and mi == 0:
                g += [f's_add_u32 s90, s89, {s_//7}', 's_and_b32 s90, s90, 3', 's_mul_i32 s90, s90, 7168', 's_add_u32 s90, s90, s88',
                      's_add_u32 s91, s90, 28672']
            i = s_ % 7
            if i == 4 and mi == 0: g += ['s_add_u32 s90, s90, 4096', 's_add_u32 s91, s91, 4096']
            g.append(('vm', f'buffer_load_dwordx4 {ar((mi*28+s_)*4,4)}, v254, s[92:95], s{90+mi} offen offset:{(i%4)*1024} sc1'))
            gs.append(g)
    return gs

def w13_setup(e):
    e(f's_mov_b32 s92, s{S_WS}')
    e(f's_mov_b32 s93, s{S_WS+1}')
    e(f's_cmp_ge_u32 s{sC}, 14')
    e(f's_cselect_b32 s94, 0, s{S_WS+2}')
    e('s_mov_b32 s95, 0x20000')
    e(f's_lshl_b32 s88, s{sC}, 3')
    e(f's_lshl_b32 s52, s{sW}, 1')
    e('s_add_u32 s88, s88, s52')
    e('s_mul_i32 s88, s88, 28672')
    e(f's_add_u32 s88, s88, 0x{W13_OFF:x}')
    e(f's_and_b32 s89, s{sR}, 3')
    e('v_lshlrev_b32 v254, 4, v1')

def emit_groups(e, groups):
    last = None
    for g in groups:
        for op in g:
            if isinstance(op, tuple): last = e.vm(op[1])
            else: e(op)
    return last

DMA = {}
def emit_interleaved(e, main, groups, start=0):
    n, m = len(main), len(groups)
    gi = 0; last = None
    for k, ins in enumerate(main):
        e(ins)
        if k >= start:
            want = ((k - start + 1) * m) // max(1, n - start)
            while gi < want:
                for op in groups[gi]:
                    if isinstance(op, tuple): last = e.vm(op[1])
                    else: e(op)
                gi += 1
    while gi < m:
        for op in groups[gi]:
            if isinstance(op, tuple): last = e.vm(op[1])
            else: e(op)
        gi += 1
    return last

def w13_trread(e, half):
    e('v_and_b32 v4, 1, v3')
    e('v_lshrrev_b32 v5, 1, v3')
    e('v_lshrrev_b32 v6, 2, v2')
    e('v_and_b32 v7, 3, v2')
    e('v_mul_u32_u24 v8, 57344, v4')
    e('v_lshlrev_b32 v9, 2, v5')
    e('v_add_u32 v9, v9, v6')
    e('v_lshlrev_b32 v9, 8, v9')
    e('v_add_u32 v8, v8, v9')
    e('v_and_b32 v9, 1, v7')
    e('v_lshlrev_b32 v9, 3, v9')
    e('v_add_u32 v8, v8, v9')
    e(f'v_add_u32 v8, {LDS_STAGE}, v8')
    e('v_lshrrev_b32 v7, 1, v7')
    e(f's_lshl_b32 s52, s{sW}, 2')
    e('v_add_u32 v7, s52, v7')
    e('v_lshlrev_b32 v6, 1, v6')
    e('v_lshlrev_b32 v4, 3, v4')
    e('v_xor_b32 v6, v6, v4')
    for mi in range(2):
        e(f'v_add_u32 v9, {2*mi}, v7')
        e('v_xor_b32 v9, v9, v6')
        e('v_lshlrev_b32 v9, 4, v9')
        e(f'v_add_u32 v{10+mi}, v8, v9')
    for mi in range(2):
        for jl in range(7):
            for gg in range(2):
                kap = 14 * half + 2 * jl + gg
                a = (mi * 28 + kap) * 4
                off = (16 * jl + 8 * gg) * 256
                e.ds(f'ds_read_b64_tr_b16 {ar(a,2)}, v{10+mi} offset:{off}')
                e.ds(f'ds_read_b64_tr_b16 {ar(a+2,2)}, v{10+mi} offset:{off + 112*256}')

def phase_a(e):
    e.c('======== phase A')
    e(f's_lshl_b32 s56, s{sGRP}, 2')
    e(f's_add_u32 s56, s56, s{sW}')
    e('s_min_u32 s57, s56, 13')
    e(f's_lshr_b32 s52, s{sW}, 1')
    e('s_lshl_b32 s52, s52, 10')
    e(f's_add_u32 s52, s52, s{sB}')
    e('v_lshlrev_b32 v4, 6, v2')
    e('v_add_u32 v4, s52, v4')
    e('v_mul_u32_u24 v4, 896, v4')
    e('v_lshlrev_b32 v5, 4, v3')
    e('v_add_u32 v4, v4, v5')
    e(f's_and_b32 s52, s{sW}, 1')
    e('s_mul_i32 s52, s52, 448')
    e('v_add_u32 v4, s52, v4')
    TA, FP, ACC, X = 16, 72, 96, 128
    xs_tok = [e.vm(f'buffer_load_dwordx4 {vr(X+4*i,4)}, v4, {SX}, 0 offen offset:{64*i}') for i in range(7)]
    if OPT['cpf']:
        sk = L('cpf')
        e(f's_cmp_lg_u32 s{sW}, {OPT["cpf"]-1}')
        e(f's_cbranch_scc1 {sk}')
        e('s_getpc_b64 s[52:53]')
        e.label('L_pc')
        e('s_lshr_b32 s54, s2, 3')
        e('s_lshl_b32 s54, s54, 10')
        e('s_cmp_ge_u32 s54, L_fin-L_pc-1024')
        e(f's_cbranch_scc1 {sk}')
        e('v_lshlrev_b32 v5, 4, v1')
        e('v_add_u32 v5, s54, v5')
        e('global_load_dwordx4 a[20:23], v5, s[52:53]')
        e.label(sk)
    stamp(e, 'A.issued')
    e('s_cmp_lt_u32 s57, 7')
    e('s_cselect_b32 s52, 2, 1')
    e('s_cselect_b32 s53, 0, 7')
    e('s_sub_u32 s53, s57, s53')
    e('s_lshl_b32 s53, s53, 5')
    e('s_add_u32 s53, s53, s52')
    e('s_cmp_lt_u32 s57, 7')
    e(f's_cselect_b32 s58, {lit(1.0)}, {lit(-1.0)}')
    e('v_lshlrev_b32 v5, 1, v2')
    e('v_add_u32 v5, s53, v5')
    e('v_cvt_f32_u32 v5, v5')
    e(f'v_mul_f32 v5, {lit(1.0/448)}, v5')
    e('v_lshlrev_b32 v6, 3, v3')
    e('v_cvt_f32_u32 v6, v6')
    e('v_mul_f32 v6, v6, v5')
    TH, CO, SI = ACC, ACC + 8, ACC + 16
    CO2, SI2 = X + 32, X + 40
    e(f'v_mul_f32 v7, {lit(32.0)}, v5')
    for j in range(8):
        if j == 0: e(f'v_mov_b32 v{TH+j}, v6')
        else: e(f'v_fmamk_f32 v{TH+j}, v5, {lit(float(j))}, v6')
    e('v_cos_f32 v8, v7')
    e('v_sin_f32 v9, v7')
    for j in range(8): e(f'v_cos_f32 v{CO+j}, v{TH+j}')
    for j in range(8): e(f'v_sin_f32_e64 v{SI+j}, -v{TH+j}')
    cur = (CO, SI); oth = (CO2, SI2)
    for t in range(7):
        if t < 6: rot8(e, cur[0], cur[1], oth[0], oth[1], 8, True)
        for i in range(4): e(f'v_cvt_pk_bf16_f32 v{TA+(t*2+0)*4+i}, v{cur[0]+2*i}, v{cur[0]+2*i+1}')
        for i in range(4): e(f'v_cvt_pk_bf16_f32 v{TA+(t*2+1)*4+i}, v{cur[1]+2*i}, v{cur[1]+2*i+1}')
        cur, oth = oth, cur
    e('s_mov_b32 s52, 0x80008000')
    e(f'v_cvt_f32_u32 v7, s{sB}')
    e(f'v_mul_f32 v7, {lit(1.0/64)}, v7')
    e('v_lshlrev_b32 v8, 2, v3')
    e('v_cvt_f32_u32 v8, v8')
    e('v_add_f32 v8, v8, v7')
    for mt in range(2):
        e(f'v_add_u32 v9, {16*mt}, v2')
        e('v_cvt_f32_u32 v9, v9')
        e(f'v_mul_f32 v9, {lit(1.0/32)}, v9')
        e('v_mul_f32 v10, v9, v8')
        for j in range(8):
            cst = 16 * (j >> 2) + (j & 3)
            if cst == 0: e(f'v_mov_b32 v{TH+j}, v10')
            else: e(f'v_fmamk_f32 v{TH+j}, v9, {lit(float(cst))}, v10')
        for j in range(8): e(f'v_cos_f32 v{CO+j}, v{TH+j}')
        for j in range(8): e(f'v_sin_f32 v{SI+j}, v{TH+j}')
        for i in range(4): e(f'v_cvt_pk_bf16_f32 v{FP+mt*12+i}, v{CO+2*i}, v{CO+2*i+1}')
        for i in range(4): e(f'v_cvt_pk_bf16_f32 v{FP+mt*12+4+i}, v{SI+2*i}, v{SI+2*i+1}')
        for i in range(4): e(f'v_xor_b32 v{FP+mt*12+8+i}, s52, v{FP+mt*12+4+i}')
    p1_loads(e)
    stamp(e, 'A.constgen')
    e(f's_mul_i32 s52, s{sW}, 7168')
    e('v_lshlrev_b32 v11, 4, v1')
    e('v_add_u32 v4, s52, v11')
    e('v_mov_b32 v5, 0')
    e('v_mov_b32 v6, 0')
    e('s_mov_b32 s52, 0x3f803f80')
    for i in range(7):
        e.wait_vm(xs_tok[i])
        e.ds(f'ds_write_b128 v4, {vr(X+4*i,4)} offset:{1024*i}')
        for d in range(4):
            e(f'v_dot2_f32_bf16 v5, v{X+4*i+d}, s52, v5')
            e(f'v_dot2_f32_bf16 v6, v{X+4*i+d}, v{X+4*i+d}, v6')
    xsum_groups(e, 5, 7)
    xsum_groups(e, 6, 8)
    e(f's_lshl_b32 s52, s{sW}, 7')
    e('v_lshlrev_b32 v7, 3, v2')
    e('v_add_u32 v7, s52, v7')
    e('v_mov_b32 v8, v5')
    e('v_mov_b32 v9, v6')
    e.ds('ds_write_b64 v7, v[8:9] offset:28672')
    e.wait_ds_all()
    stamp(e, 'A.xstaged')
    e.barrier()
    e('v_mov_b32 v250, 0')
    nonce_tok = e.vm(f'buffer_load_dword v251, v250, {SDBG}, 0 offen sc1')
    e('v_and_b32 v4, 31, v1')
    e('v_lshrrev_b32 v5, 4, v4')
    e('v_lshlrev_b32 v5, 8, v5')
    e('v_lshlrev_b32 v6, 3, v2')
    e('v_add_u32 v5, v5, v6')
    t0 = e.ds('ds_read_b64 v[6:7], v5 offset:28672')
    t1 = e.ds('ds_read_b64 v[8:9], v5 offset:28800')
    xt = {}
    order = [(half, t, mt) for half in range(2) for t in range(7) for mt in range(2)]
    def xreg(mt, tt): return X + (mt * 14 + tt) * 4
    nread = [0]
    def issue_x():
        half, t, mt = order[nread[0]]
        tt = t + 7 * half
        xt[(half, t, mt)] = e.ds(f'ds_read_b128 {vr(xreg(mt,tt),4)}, v11 offset:{(mt*14+tt)*1024}')
        nread[0] += 1
    for _ in range(8): issue_x()
    e.wait_ds(t1)
    e('v_add_f32 v6, v6, v8')
    e('v_add_f32 v7, v7, v9')
    e(f'v_mul_f32 v6, {lit(1.0/448)}, v6')
    e(f'v_mul_f32 v7, {lit(1.0/448)}, v7')
    e('v_fma_f32 v7, -v6, v6, v7')
    e('v_max_f32 v7, 0, v7')
    e(f'v_add_f32 v7, {lit(1e-5)}, v7')
    e('v_rsq_f32 v7, v7')
    e(f's_lshl_b32 s52, s{sW}, 7')
    e('v_lshlrev_b32 v8, 2, v4')
    e('v_add_u32 v9, s52, v8')
    e.ds('ds_write_b32 v9, v7 offset:29184')
    nm = L('nomean')
    e(f's_or_b32 s52, s{sGRP}, s{sW}')
    e('s_cmp_lg_u32 s52, 0')
    e(f's_cbranch_scc1 {nm}')
    e(f's_lshl_b32 s52, s{sB}, 7')
    e(f's_add_u32 s52, s52, 0x{ST1_OFF:x}')
    e(f'buffer_store_dword v6, v8, {SWS}, s52 offen sc1')
    e.label(nm)
    e(f's_lshl_b32 s52, s{sW}, 7')
    e('v_lshlrev_b32 v9, 4, v3')
    e('v_add_u32 v9, s52, v9')
    RR = 240
    tr0 = e.ds(f'ds_read_b128 {vr(RR,4)}, v9 offset:29184')
    tr1 = e.ds(f'ds_read_b128 {vr(RR+4,4)}, v9 offset:29248')
    def acc(mt, c, half): return ACC + ((mt * 2 + c) * 2 + half) * 4
    for (half, t, mt) in order:
        if nread[0] < len(order): issue_x()
        e.wait_ds(xt[(half, t, mt)])
        tt = t + 7 * half
        for c in range(2):
            a = acc(mt, c, half)
            e(f'v_mfma_f32_16x16x32_bf16 {vr(a,4)}, {vr(xreg(mt,tt),4)}, {vr(TA+(t*2+c)*4,4)}, {"0" if t == 0 else vr(a,4)}')
    e.wait_ds(tr1)
    stamp(e, 'A.mfma')
    BF = X; TMP = X + 8
    for c in range(2):
        for mt in range(2):
            for r in range(4): e(f'v_fma_f32 v{TMP+mt*4+r}, v{acc(mt,c,1)+r}, s58, v{acc(mt,c,0)+r}')
            for r in range(4): e(f'v_mul_f32 v{TMP+mt*4+r}, v{TMP+mt*4+r}, v{RR+mt*4+r}')
        for mt in range(2):
            for i in range(2):
                e(f'v_cvt_pk_bf16_f32 v{BF+c*4+mt*2+i}, v{TMP+mt*4+2*i}, v{TMP+mt*4+2*i+1}')
    TT = X + 16
    for mt in range(2):
        C, Sp, Sn = FP + mt * 12, FP + mt * 12 + 4, FP + mt * 12 + 8
        e(f'v_mfma_f32_16x16x32_bf16 {vr(TT+mt*8,4)}, {vr(C,4)}, {vr(BF,4)}, 0')
        e(f'v_mfma_f32_16x16x32_bf16 {vr(TT+mt*8+4,4)}, {vr(Sn,4)}, {vr(BF,4)}, 0')
        e(f'v_mfma_f32_16x16x32_bf16 {vr(TT+mt*8,4)}, {vr(Sp,4)}, {vr(BF+4,4)}, {vr(TT+mt*8,4)}')
        e(f'v_mfma_f32_16x16x32_bf16 {vr(TT+mt*8+4,4)}, {vr(C,4)}, {vr(BF+4,4)}, {vr(TT+mt*8+4,4)}')
    e('s_mov_b32 s52, %d' % (4 * 57344))
    e('v_mul_lo_u32 v4, v3, s52')
    e('v_lshlrev_b32 v5, 2, v2')
    e('v_add_u32 v4, v4, v5')
    e('s_lshl_b32 s52, s56, 12')
    e(f's_lshl_b32 s53, s{sB}, 6')
    e('s_add_u32 s52, s52, s53')
    OUT = X + 40
    for mt in range(2):
        for r in range(4): e(f'v_cvt_pk_bf16_f32 v{OUT+mt*4+r}, v{TT+mt*8+r}, v{TT+mt*8+4+r}')
    ns = L('nostoreA')
    e('s_cmp_ge_u32 s56, 14')
    e(f's_cbranch_scc1 {ns}')
    for mt in range(2):
        for r in range(4):
            e(f's_add_u32 s53, s52, {T1_OFF + (16*mt+r)*57344}')
            e(f'buffer_store_dword v{OUT+mt*4+r}, v4, {SWS}, s53 offen sc1')
    e.label(ns)
    stamp(e, 'A.stored')
    e.wait_vm_all()
    sk, lp, dn = L('nsk'), L('nlp'), L('ndn')
    e(f's_cmp_lg_u32 s{sW}, 0')
    e(f's_cbranch_scc1 {sk}')
    e(f's_mov_b32 s{sSPIN}, 0')
    e.label(lp)
    e(f'v_readfirstlane_b32 s{sNONCE}, v251')
    e('s_nop 1')
    e(f's_cmp_lg_u32 s{sNONCE}, 0')
    e(f's_cbranch_scc1 {dn}')
    e(f'buffer_load_dword v251, v250, {SDBG}, 0 offen sc1')
    e('s_waitcnt vmcnt(0)')
    e(f's_add_u32 s{sSPIN}, s{sSPIN}, 1')
    e(f's_cmp_lt_u32 s{sSPIN}, {MAXSPIN}')
    e(f's_cbranch_scc1 {lp}')
    e.label(dn)
    e.label(sk)
    stamp(e, 'A.drained')
    signal(e, 0)

def phase_p2(e):
    e.c('======== P2 (w2 re-layout)')
    done = L('p2done')
    e('s_cmp_ge_u32 s2, 252')
    e(f's_cbranch_scc1 {done}')
    e('s_sub_u32 s56, s2, 224')
    e('s_waitcnt vmcnt(0)')
    e.barrier()
    e.vm_issued = e.vm_done = 0
    e('s_mul_i32 s52, s56, 57344')
    e('v_lshlrev_b32 v4, 4, v0')
    toks = []
    for i in range(14):
        e(f's_add_u32 s53, s52, {i*4096}')
        toks.append(e.vm(f'buffer_load_dwordx4 {vr(16+4*i,4)}, v4, {SW2}, s53 offen'))
    for i in range(14):
        e(f'v_add_u32 v5, {i*256}, v0')
        e('v_mul_u32_u24 v6, 18725, v5')
        e('v_lshrrev_b32 v6, 20, v6')
        e('v_lshlrev_b32 v6, 5, v6')
        e('v_lshlrev_b32 v5, 4, v5')
        e(f'v_add_u32 v{80+i}, v5, v6')
        e(f'v_add_u32 v{80+i}, {LDS_STAGE}, v{80+i}')
    stamp(e, 'P2.issued')
    for i in range(14):
        e.wait_vm(toks[i])
        e.ds(f'ds_write_b128 v{80+i}, {vr(16+4*i,4)}')
    e.wait_ds_all()
    stamp(e, 'P2.lds')
    e.barrier()
    e('v_lshrrev_b32 v4, 1, v3')
    e('v_lshlrev_b32 v4, 2, v4')
    e('v_lshrrev_b32 v5, 2, v2')
    e('v_add_u32 v4, v4, v5')
    e(f's_lshl_b32 s53, s{sW}, 4')
    e('v_add_u32 v4, s53, v4')
    e('v_mul_u32_u24 v4, 928, v4')
    e('v_and_b32 v5, 1, v3')
    e('v_lshlrev_b32 v5, 4, v5')
    e('v_add_u32 v4, v4, v5')
    e('v_and_b32 v5, 1, v2')
    e('v_lshlrev_b32 v5, 3, v5')
    e('v_add_u32 v4, v4, v5')
    e('v_bfe_u32 v5, v2, 1, 1')
    e('v_mul_u32_u24 v5, 448, v5')
    e('v_add_u32 v4, v4, v5')
    e(f'v_add_u32 v4, {LDS_STAGE}, v4')
    e('v_lshlrev_b32 v5, 4, v1')
    for j in range(14):
        R = 16 + 4 * j
        e.ds(f'ds_read_b64_tr_b16 {vr(R,2)}, v4 offset:{32*j}')
        e.ds(f'ds_read_b64_tr_b16 {vr(R+2,2)}, v4 offset:{32*j + 8*928}')
    e.wait_ds_all()
    e('s_lshl_b32 s53, s56, 2')
    e(f's_add_u32 s53, s53, s{sW}')
    e('s_lshl_b32 s53, s53, 10')
    e(f's_add_u32 s53, s53, 0x{W2_OFF:x}')
    for j in range(14):
        e(f's_add_u32 s54, s53, {j*112*1024}')
        e.vm(f'buffer_store_dwordx4 {vr(16+4*j,4)}, v5, {SWS}, s54 offen sc1')
    stamp(e, 'P2.stored')
    e.label(done)
    e.wait_vm_all()
    stamp(e, 'P2.drained')
assert all(((p * 18725) >> 20) == p // 56 for p in range(3584)), "magic /56"

def phase_b(e):
    e.c('======== window 1 + phase B')
    e('s_and_b32 s56, s2, 7')
    e('s_lshr_b32 s57, s2, 3')
    e('s_mul_i32 s52, s57, 37')
    e('s_lshr_b32 s52, s52, 8')
    e('s_mul_i32 s53, s52, 7')
    e('s_sub_u32 s53, s57, s53')
    e('s_lshl_b32 s52, s52, 3')
    e('s_add_u32 s56, s56, s52')
    e('s_lshl_b32 s53, s53, 1')
    e(f's_lshr_b32 s54, s{sW}, 1')
    e('s_add_u32 s57, s53, s54')
    e('s_lshr_b32 s59, s53, 2')
    e(f's_and_b32 s58, s{sW}, 1')
    FC, FS, FN = 16, 32, 48
    TIN, BF, WR, WI, XA, YR, YI, YF = 64, 80, 96, 104, 112, 128, 136, 144
    e('s_cmp_lt_u32 s57, 7')
    e('s_cselect_b32 s52, 2, 1')
    e('s_cselect_b32 s53, 0, 7')
    e('s_sub_u32 s53, s57, s53')
    e('s_lshl_b32 s53, s53, 5')
    e('s_add_u32 s53, s53, s52')
    e('v_lshlrev_b32 v6, 1, v2')
    e('v_add_u32 v6, s53, v6')
    e('v_lshlrev_b32 v6, 1, v6')
    e('v_lshlrev_b32 v7, 7, v3')
    e('s_lshl_b32 s52, s58, 10')
    e('s_add_u32 s52, s52, s56')
    e('v_add_u32 v7, s52, v7')
    e('v_mul_u32_u24 v7, 450, v7')
    e('v_add_u32 v6, v6, v7')
    wtok = {}
    for mtl in range(2):
        for r in range(4):
            e(f's_mov_b32 s52, {(16*mtl+r)*14400}')
            e.vm(f'buffer_load_short_d16_hi v{WR+mtl*4+r}, v6, {SWR}, s52 offen')
            wtok[(mtl, r)] = e.vm(f'buffer_load_short_d16_hi v{WI+mtl*4+r}, v6, {SWI}, s52 offen')
    CO, SI, TH = 160, 176, 192
    groups = []
    main = []
    em = main.append
    em('s_lshl_b32 s52, s58, 5')
    em('v_add_u32 v8, s52, v2')
    em('v_cvt_f32_u32 v8, v8')
    em(f'v_mul_f32 v8, {lit(1.0/64)}, v8')
    em('v_lshlrev_b32 v9, 2, v3')
    for tt in range(2):
        em(f's_xor_b32 s52, s58, {tt}')
        em('s_lshl_b32 s52, s52, 5')
        em('v_add_u32 v10, s52, v9')
        em('v_cvt_f32_u32 v10, v10')
        em('v_mul_f32 v10, v10, v8')
        for j in range(8):
            cst = 16 * (j >> 2) + (j & 3)
            if cst == 0: em(f'v_mov_b32 v{TH+j}, v10')
            else: em(f'v_fmamk_f32 v{TH+j}, v8, {lit(float(cst))}, v10')
        for j in range(8): em(f'v_cos_f32 v{CO+tt*8+j}, v{TH+j}')
        for j in range(8): em(f'v_sin_f32 v{SI+tt*8+j}, v{TH+j}')
    def rot(kind, t, j, mt):
        qt = (mt * (j & 3)) & 3
        c, s = f'v{CO+t*8+j}', f'v{SI+t*8+j}'
        if kind == 'C': return [c, '-' + s, '-' + c, s][qt]
        if kind == 'S': return [s, c, '-' + s, '-' + c][qt]
        if kind == 'N': return ['-' + s, '-' + c, s, c][qt]
    for kind, base in (('C', FC), ('S', FS), ('N', FN)):
        for mtl in range(2):
            for tt in range(2):
                for i in range(4):
                    em(f'v_cvt_pk_bf16_f32 v{base+(mtl*2+tt)*4+i}, {rot(kind,tt,2*i,mtl)}, {rot(kind,tt,2*i+1,mtl)}')
    emit_interleaved(e, main, groups)
    e('s_mul_i32 s60, s56, 14')
    e('s_add_u32 s60, s60, s57')
    e('s_lshl_b32 s60, s60, 12')
    e(f's_add_u32 s60, s60, 0x{T1_OFF:x}')
    e('v_lshlrev_b32 v11, 8, v3')
    e('v_lshlrev_b32 v10, 2, v2')
    e('v_add_u32 v11, v11, v10')
    stamp(e, 'W1.ready')
    def idx(e):
        e('v_and_b32 v5, 7, v1')
        e('v_lshrrev_b32 v6, 3, v1')
        e('v_lshlrev_b32 v6, 5, v6')
        e('v_add_u32 v5, v5, v6')
        e('s_lshl_b32 s53, s59, 3')
        e('v_add_u32 v5, s53, v5')
        e('v_lshlrev_b32 v5, 6, v5')
    poll(e, 0, 64, idx)
    stamp(e, 'B.go')
    tin = {}
    for tt in range(2):
        e(f's_xor_b32 s52, s58, {tt}')
        e('s_lshl_b32 s52, s52, 11')
        e('s_add_u32 s52, s52, s60')
        for j in range(8):
            off = (16 * (j >> 2) + (j & 3)) * 64
            tin[(tt, j)] = e.vm(f'buffer_load_dword v{TIN+tt*8+j}, v11, {SWS}, s52 offen offset:{off} sc1')
    p1_finish(e)
    stamp(e, 'B.p1')
    e('s_mov_b32 s52, 0x05040100')
    e('s_mov_b32 s53, 0x07060302')
    for tt in range(2):
        e.wait_vm(tin[(tt, 7)])
        for i in range(4):
            e(f'v_perm_b32 v{BF+tt*4+i}, v{TIN+tt*8+2*i+1}, v{TIN+tt*8+2*i}, s52')
            e(f'v_perm_b32 v{BF+8+tt*4+i}, v{TIN+tt*8+2*i+1}, v{TIN+tt*8+2*i}, s53')
    stamp(e, 'B.loaded')
    def fr(base, mtl, tt): return vr(base + (mtl * 2 + tt) * 4, 4)
    def mm(d, a, b, first): e(f'v_mfma_f32_16x16x32_bf16 {vr(d,4)}, {a}, {vr(b,4)}, {"0" if first else vr(d,4)}')
    BRE = lambda t: BF + t * 4
    BIM = lambda t: BF + 8 + t * 4
    for step in range(4):
        for mtl in range(2):
            xr, xi = XA + mtl * 8, XA + mtl * 8 + 4
            tt = step & 1
            if step < 2:
                mm(xr, fr(FC, mtl, tt), BRE(tt), step == 0); mm(xi, fr(FN, mtl, tt), BRE(tt), step == 0)
            else:
                mm(xr, fr(FS, mtl, tt), BIM(tt), False); mm(xi, fr(FC, mtl, tt), BIM(tt), False)
    e.wait_vm(wtok[(1, 3)])
    for mtl in range(2):
        for r in range(4):
            xr, xi = XA + mtl * 8 + r, XA + mtl * 8 + 4 + r
            wr, wi = WR + mtl * 4 + r, WI + mtl * 4 + r
            e(f'v_mul_f32 v{YR+mtl*4+r}, v{xr}, v{wr}')
            e(f'v_mul_f32 v{YI+mtl*4+r}, v{xr}, v{wi}')
            e(f'v_fma_f32 v{YR+mtl*4+r}, -v{xi}, v{wi}, v{YR+mtl*4+r}')
            e(f'v_fma_f32 v{YI+mtl*4+r}, v{xi}, v{wr}, v{YI+mtl*4+r}')
    for c, src in ((0, YR), (1, YI)):
        for i in range(4):
            e(f'v_cvt_pk_bf16_f32 v{YF+c*8+i}, v{src+(i>>1)*4+2*(i&1)}, v{src+(i>>1)*4+2*(i&1)+1}')
    e('v_lshlrev_b32 v10, 4, v1')
    e(f's_lshl_b32 s52, s{sW}, 11')
    e('v_add_u32 v12, s52, v10')
    e(f's_xor_b32 s52, s{sW}, 1')
    e('s_lshl_b32 s52, s52, 11')
    e('v_add_u32 v13, s52, v10')
    e.ds(f'ds_write_b128 v12, {vr(YF,4)}')
    e.ds(f'ds_write_b128 v12, {vr(YF+8,4)} offset:1024')
    e.wait_ds_all()
    e.barrier()
    p0 = e.ds(f'ds_read_b128 {vr(YF+4,4)}, v13')
    p1_ = e.ds(f'ds_read_b128 {vr(YF+12,4)}, v13 offset:1024')
    YRE = lambda t: YF + t * 4
    YIM = lambda t: YF + 8 + t * 4
    for mtl in range(2):
        xr, xi = XA + mtl * 8, XA + mtl * 8 + 4
        mm(xr, fr(FC, mtl, 0), YRE(0), True);  mm(xi, fr(FS, mtl, 0), YRE(0), True)
        mm(xr, fr(FN, mtl, 0), YIM(0), False); mm(xi, fr(FC, mtl, 0), YIM(0), False)
    e.wait_ds(p1_)
    for mtl in range(2):
        xr, xi = XA + mtl * 8, XA + mtl * 8 + 4
        mm(xr, fr(FC, mtl, 1), YRE(1), False); mm(xi, fr(FS, mtl, 1), YRE(1), False)
        mm(xr, fr(FN, mtl, 1), YIM(1), False); mm(xi, fr(FC, mtl, 1), YIM(1), False)
    e('s_mov_b32 s52, %d' % (4 * 28672))
    e('v_mul_lo_u32 v4, v3, s52')
    e('v_lshlrev_b32 v5, 2, v2')
    e('v_add_u32 v4, v4, v5')
    e('s_lshl_b32 s52, s57, 11')
    e('s_lshl_b32 s53, s56, 6')
    e('s_add_u32 s52, s52, s53')
    e(f's_mul_i32 s53, s58, {32*28672}')
    e('s_add_u32 s52, s52, s53')
    last = None
    for mtl in range(2):
        for r in range(4): e(f'v_cvt_pk_bf16_f32 v{TIN+mtl*4+r}, v{XA+mtl*8+r}, v{XA+mtl*8+4+r}')
        for r in range(4):
            e(f's_add_u32 s53, s52, {T2_OFF + (16*mtl+r)*28672}')
            last = e.vm(f'buffer_store_dword v{TIN+mtl*4+r}, v4, {SWS}, s53 offen sc1')
    stamp(e, 'B.stored')
    e.wait_vm_all()
    stamp(e, 'B.drained')

def phase_c(e):
    e.c('======== window 2 + phase C')
    e(f's_lshl_b32 s56, s{sGRP}, 2')
    e(f's_add_u32 s56, s56, s{sW}')
    e('s_min_u32 s57, s56, 13')
    G, TC, AIN, VA, PA, XR = 16, 48, 104, 136, 152, 168
    MEAN = XR + 8
    e('v_lshlrev_b32 v5, 6, v2')
    e(f'v_add_u32 v5, s{sB}, v5')
    e('v_mul_u32_u24 v5, 896, v5')
    e('v_lshlrev_b32 v6, 3, v3')
    e('v_add_u32 v5, v5, v6')
    e('s_lshl_b32 s52, s57, 5')
    e('v_add_u32 v5, s52, v5')
    for nt in range(2):
        for pm in range(2):
            e(f's_mov_b32 s52, {nt*16*64*896}')
            e.vm(f'buffer_load_dwordx2 {vr(XR+(nt*2+pm)*2,2)}, v5, {SX}, s52 offen offset:{448*pm}')
    groups = []
    main = []
    em = main.append
    TH, CO, SI = 180, 188, 196
    cscale = 2.0 / (2048.0 * 448.0)
    em('v_cvt_f32_u32 v7, v3')
    for nt in range(2):
        em(f'v_add_u32 v8, {16*nt}, v2')
        em('v_lshlrev_b32 v8, 6, v8')
        em(f'v_add_u32 v8, s{sB}, v8')
        em('v_cvt_f32_u32 v8, v8')
        em(f'v_mul_f32 v8, {lit(1.0/2048)}, v8')
        em('v_mul_f32 v9, v7, v8')
        for t in range(2):
            for ii in range(4):
                cst = 16 * t + 4 * ii
                if cst == 0: em(f'v_mov_b32 v{TH+t*4+ii}, v9')
                else: em(f'v_fmamk_f32 v{TH+t*4+ii}, v8, {lit(float(cst))}, v9')
        for j in range(8): em(f'v_cos_f32 v{CO+j}, v{TH+j}')
        for j in range(8): em(f'v_sin_f32 v{SI+j}, v{TH+j}')
        for j in range(8): em(f'v_mul_f32 v{CO+j}, {lit(cscale)}, v{CO+j}')
        for j in range(8): em(f'v_mul_f32 v{SI+j}, {lit(cscale)}, v{SI+j}')
        for t in range(2):
            for ii in range(4):
                j = t * 4 + ii
                em(f'v_cvt_pk_bf16_f32 v{G+((0*2+t)*2+nt)*4+ii}, v{CO+j}, -v{SI+j}')
                em(f'v_cvt_pk_bf16_f32 v{G+((1*2+t)*2+nt)*4+ii}, v{SI+j}, v{CO+j}')
    em('s_lshl_b32 s52, s57, 4')
    em('v_add_u32 v8, s52, v2')
    em('v_cvt_f32_u32 v8, v8')
    em(f'v_mul_f32 v8, {lit(1.0/448)}, v8')
    em('v_lshlrev_b32 v9, 3, v3')
    em('v_cvt_f32_u32 v9, v9')
    em('v_mul_f32 v9, v9, v8')
    em('v_cmp_eq_u32 vcc, 3, v3')
    em('v_mov_b32 v10, 1.0')
    em('v_mov_b32 v11, 0.5')
    em('v_cndmask_b32 v10, v10, v11, vcc')
    CO2, SI2 = 204, 212
    em(f'v_mul_f32 v7, {lit(32.0)}, v8')
    for h in range(2):
        for j in range(4):
            cst = 2 * j + (2 if h == 0 else 1)
            em(f'v_fmamk_f32 v{TH+h*4+j}, v8, {lit(float(cst))}, v9')
    em('v_cos_f32 v12, v7')
    em('v_sin_f32 v13, v7')
    for j in range(8): em(f'v_cos_f32 v{CO+j}, v{TH+j}')
    for j in range(8): em(f'v_sin_f32_e64 v{SI+j}, -v{TH+j}')
    cur = (CO, SI); oth = (CO2, SI2)
    for kp in range(7):
        if kp < 6: rot8(em, cur[0], cur[1], oth[0], oth[1], 12, True)
        else:
            em(f'v_mul_f32 v{cur[0]+3}, v{cur[0]+3}, v10')
            em(f'v_mul_f32 v{cur[1]+3}, v{cur[1]+3}, v10')
        for h, kb in enumerate((kp, kp + 7)):
            em(f'v_cvt_pk_bf16_f32 v{TC+kb*4+0}, v{cur[0]+h*4+0}, v{cur[0]+h*4+1}')
            em(f'v_cvt_pk_bf16_f32 v{TC+kb*4+1}, v{cur[0]+h*4+2}, v{cur[0]+h*4+3}')
            em(f'v_cvt_pk_bf16_f32 v{TC+kb*4+2}, v{cur[1]+h*4+0}, v{cur[1]+h*4+1}')
            em(f'v_cvt_pk_bf16_f32 v{TC+kb*4+3}, v{cur[1]+h*4+2}, v{cur[1]+h*4+3}')
        cur, oth = oth, cur
    emit_interleaved(e, main, groups)
    e('v_lshlrev_b32 v12, 2, v1')
    stamp(e, 'W2.ready')
    def idx(e): e('v_lshlrev_b32 v5, 6, v1')
    poll(e, 1, 256, idx)
    stamp(e, 'C.go')
    w13_setup(e)
    WG = w13_load_groups()
    wgi = [0]
    def wload(n):
        for _ in range(n):
            if wgi[0] < len(WG):
                emit_groups(e, [WG[wgi[0]]]); wgi[0] += 1
    atok = {}
    for i in range(4):
        e(f's_add_u32 s52, s{sW}, {4*i}')
        e('s_min_u32 s52, s52, 13')
        e(f's_mul_i32 s53, s{sB}, 14')
        e('s_add_u32 s52, s52, s53')
        e('s_lshl_b32 s52, s52, 11')
        e(f's_add_u32 s52, s52, 0x{T2_OFF:x}')
        for t in range(2):
            for ii in range(4):
                atok[(i, t, ii)] = e.vm(f'buffer_load_dword v{AIN+i*8+t*4+ii}, v12, {SWS}, s52 offen offset:{(16*t+4*ii)*64} sc1')
    e('v_lshlrev_b32 v6, 2, v2')
    e(f's_lshl_b32 s52, s{sB}, 7')
    e(f's_add_u32 s52, s52, 0x{ST1_OFF:x}')
    mtok = [e.vm(f'buffer_load_dword v{MEAN+nt}, v6, {SWS}, s52 offen offset:{64*nt} sc1') for nt in range(2)]
    e('v_lshlrev_b32 v11, 4, v1')
    e(f's_lshl_b32 s52, s{sW}, 11')
    e('v_add_u32 v12, s52, v11')
    PK = 204
    for i in range(4):
        e.wait_vm(atok[(i, 1, 3)])
        if i == 0: stamp(e, 'C.loaded')
        for nt in range(2):
            for out in range(2):
                d = VA + (out * 2 + nt) * 4
                e(f'v_mfma_f32_16x16x32_bf16 {vr(d,4)}, {vr(AIN+i*8,4)}, {vr(G+((out*2+0)*2+nt)*4,4)}, 0')
        for nt in range(2):
            for out in range(2):
                d = VA + (out * 2 + nt) * 4
                e(f'v_mfma_f32_16x16x32_bf16 {vr(d,4)}, {vr(AIN+i*8+4,4)}, {vr(G+((out*2+1)*2+nt)*4,4)}, {vr(d,4)}')
        sk = L('skip3')
        if i == 3:
            e(f's_cmp_ge_u32 s{sW}, 2')
            e(f's_cbranch_scc1 {sk}')
        for nt in range(2):
            p = PK + nt * 4 + (i & 1) * 8
            vre, vim = VA + (0 * 2 + nt) * 4, VA + (1 * 2 + nt) * 4
            e(f'v_cvt_pk_bf16_f32 v{p+0}, v{vre+0}, v{vre+1}')
            e(f'v_cvt_pk_bf16_f32 v{p+1}, v{vre+2}, v{vre+3}')
            e(f'v_cvt_pk_bf16_f32 v{p+2}, v{vim+0}, v{vim+1}')
            e(f'v_cvt_pk_bf16_f32 v{p+3}, v{vim+2}, v{vim+3}')
            e.ds(f'ds_write_b128 v12, {vr(p,4)} offset:{(4*i*2+nt)*1024}')
        if i == 3: e.label(sk)
        wload(OPT['st1'])
    e.wait_ds_all()
    stamp(e, 'C.st1')
    e.barrier()
    VB = 220
    order = [(kb, nt) for kb in range(14) for nt in range(2)]
    tok = {}
    nread = [0]
    def issue():
        kb, nt = order[nread[0]]
        tok[nread[0]] = e.ds(f'ds_read_b128 {vr(VB+(nread[0]%8)*4,4)}, v11 offset:{(kb*2+nt)*1024}')
        nread[0] += 1
    for _ in range(7): issue()
    for idx_, (kb, nt) in enumerate(order):
        e.wait_ds(tok[idx_])
        par = 0 if kb < 7 else 1
        d = PA + (par * 2 + nt) * 4
        first = kb in (0, 7)
        e(f'v_mfma_f32_16x16x32_bf16 {vr(d,4)}, {vr(TC+kb*4,4)}, {vr(VB+(idx_%8)*4,4)}, {"0" if first else vr(d,4)}')
        if nread[0] < len(order): issue()
        if OPT['st2'] and idx_ % OPT['st2'] == OPT['st2'] - 1: wload(1)
    stamp(e, 'C.st2')
    e.wait_vm(mtok[1])
    H, HP, CP, SQ = 104, 120, 128, 180
    e('s_mov_b32 s52, 0xffff0000')
    for nt in range(2):
        pe, po = PA + nt * 4, PA + 8 + nt * 4
        for pm in range(2):
            xr = XR + (nt * 2 + pm) * 2
            for r in range(4):
                hv = H + (nt * 2 + pm) * 4 + r
                e(f'{"v_add_f32" if pm == 0 else "v_sub_f32"} v{hv}, v{pe+r}, v{po+r}')
                xv = 184 + r
                if r & 1: e(f'v_and_b32 v{xv}, s52, v{xr+(r>>1)}')
                else: e(f'v_lshlrev_b32 v{xv}, 16, v{xr+(r>>1)}')
            for r in range(4):
                hv = H + (nt * 2 + pm) * 4 + r
                e(f'v_add_f32 v{hv}, v{hv}, v{184+r}')
            for i in range(2):
                hv = H + (nt * 2 + pm) * 4 + 2 * i
                e(f'v_cvt_pk_bf16_f32 v{HP+nt*4+pm*2+i}, v{hv}, v{hv+1}')
        e(f'v_mov_b32 v{SQ+nt}, 0')
        for q in range(4):
            hp = HP + nt * 4 + q
            e(f'v_lshlrev_b32 v188, 16, v{hp}')
            e(f'v_and_b32 v189, s52, v{hp}')
            e(f'v_sub_f32 v188, v188, v{MEAN+nt}')
            e(f'v_sub_f32 v189, v189, v{MEAN+nt}')
            e(f'v_fma_f32 v{SQ+nt}, v188, v188, v{SQ+nt}')
            e(f'v_fma_f32 v{SQ+nt}, v189, v189, v{SQ+nt}')
            e(f'v_cvt_pk_bf16_f32 v{CP+nt*4+q}, v188, v189')
            wload(OPT['epi'])
    e('v_lshrrev_b32 v4, 1, v3')
    e('v_lshlrev_b32 v4, 10, v4')
    e('v_and_b32 v5, 1, v3')
    e('v_lshlrev_b32 v5, 9, v5')
    e('v_add_u32 v4, v4, v5')
    e('v_lshlrev_b32 v5, 4, v2')
    e('v_add_u32 v4, v4, v5')
    e(f's_mul_i32 s52, s{sB}, 28')
    e('s_lshl_b32 s53, s57, 1')
    e('s_add_u32 s52, s52, s53')
    e('s_lshl_b32 s52, s52, 10')
    ns, st = L('cnostore'), L('cstat')
    e('s_cmp_ge_u32 s56, 14')
    e(f's_cbranch_scc1 {ns}')
    e(f's_add_u32 s53, s52, 0x{HC_OFF:x}')
    e(f's_add_u32 s54, s52, 0x{HR_OFF:x}')
    for nt in range(2):
        e(f'buffer_store_dwordx4 {vr(CP+nt*4,4)}, v4, {SWS}, s53 offen offset:{256*nt} sc1')
        e(f'buffer_store_dwordx4 {vr(HP+nt*4,4)}, v4, {SWS}, s54 offen offset:{256*nt} sc1')
    e.label(ns)
    for nt in range(2): xsum_groups(e, SQ + nt, 190)
    e('s_cmp_lt_u32 s56, 14')
    e(f's_cbranch_scc1 {st}')
    e(f'v_mov_b32 v{SQ}, 0')
    e(f'v_mov_b32 v{SQ+1}, 0')
    e.label(st)
    e('v_cmp_le_u32 vcc, 16, v1')
    e(f'v_cndmask_b32 v{SQ}, v{SQ}, v{SQ+1}, vcc')
    e('v_lshlrev_b32 v5, 2, v1')
    e(f's_lshl_b32 s52, s{sB}, 11')
    e('s_lshl_b32 s53, s56, 7')
    e('s_add_u32 s52, s52, s53')
    e(f's_add_u32 s52, s52, 0x{ST2_OFF:x}')
    e('s_mov_b64 exec, 0xffffffff')
    last = e.vm(f'buffer_store_dword v{SQ}, v5, {SWS}, s52 offen sc1')
    e('s_mov_b64 exec, -1')
    stamp(e, 'C.stored')
    wload(OPT['post'])
    e.wait_vm(last)
    stamp(e, 'C.drained')
    signal(e, 2)
    global W13_PENDING
    W13_PENDING = (WG, wgi)

def w2reg(mi, s_):
    o = 2 * s_ + mi
    if o < 23: return vr(160 + 4 * o, 4), None
    if o < 31: return ar(224 + 4 * (o - 23), 4), None
    oo = o - 31
    return ar(((oo & 1) * 28 + (oo >> 1)) * 4, 4), (oo & 1, oo >> 1)

def phase_g(e):
    e.c('======== window 3 + G1')
    WG, wgi = W13_PENDING
    wtok = {}
    for _ in range(min(OPT['w3'], len(WG) - wgi[0])):
        wtok[wgi[0]] = emit_groups(e, [WG[wgi[0]]]); wgi[0] += 1
    e('v_lshlrev_b32 v4, 4, v1')
    e(f's_lshl_b32 s56, s{sC}, 3')
    e(f's_lshl_b32 s52, s{sW}, 1')
    e('s_add_u32 s56, s56, s52')
    e(f's_lshl_b32 s57, s{sR}, 2')
    e('s_and_b32 s58, s2, 7')
    e('s_lshr_b32 s59, s2, 3')
    e('s_mul_i32 s52, s59, 37')
    e('s_lshr_b32 s52, s52, 8')
    e('s_mul_i32 s53, s52, 7')
    e('s_sub_u32 s59, s59, s53')
    e('s_lshl_b32 s52, s52, 3')
    e('s_add_u32 s58, s58, s52')
    e(f's_mul_i32 s52, s{sW}, 28')
    e(f's_and_b32 s54, s{sW}, 1')
    for mi in range(2):
        e(f's_xor_b32 s53, s54, {mi}')
        e('s_lshl_b32 s55, s59, 1')
        e('s_add_u32 s53, s53, s55')
        e('s_mul_i32 s53, s53, 112')
        e('s_add_u32 s53, s53, s52')
        e('s_lshl_b32 s53, s53, 10')
        e(f's_add_u32 s{60+mi}, s53, 0x{W2_OFF:x}')
    def grp_off(dst, g):
        if not OPT['g2rot']: return [f's_mov_b32 s{dst}, {g*4096}']
        return [f's_add_u32 s{dst}, s59, {g}', f's_cmp_ge_u32 s{dst}, 7', f's_cselect_b32 s55, 7, 0',
                f's_sub_u32 s{dst}, s{dst}, s55', f's_lshl_b32 s{dst}, s{dst}, 12']
    def w2load(o):
        s_, mi = o >> 1, o & 1
        reg, dep = w2reg(mi, s_)
        pre = []
        if s_ % 4 == 0 and mi == 0:
            pre = grp_off(62, s_ // 4) + ['s_add_u32 s63, s61, s62', 's_add_u32 s62, s60, s62']
        return pre + [('vm', f'buffer_load_dwordx4 {reg}, v4, {SWS}, s{62+mi} offen offset:{(s_%4)*1024} sc1')]
    def idx(e):
        e('v_lshrrev_b32 v5, 2, v1')
        e('v_add_u32 v5, s57, v5')
        e('v_and_b32 v6, 7, v5')
        e('v_lshrrev_b32 v5, 3, v5')
        e('v_lshlrev_b32 v5, 5, v5')
        e('v_add_u32 v5, v5, v6')
        e('v_and_b32 v6, 3, v1')
        e('v_lshlrev_b32 v6, 3, v6')
        e('v_add_u32 v5, v5, v6')
        e('v_lshlrev_b32 v5, 6, v5')
        idxw(e, 16)
    def idxw(e, first):
        e(f'v_add_u32 v6, {208 if first == 16 else 224}, v1')
        e('v_lshlrev_b32 v6, 6, v6')
        e(f'v_add_u32 v6, {2*0x40000}, v6')
        if first:
            e(f'v_cmp_le_u32 vcc, {first}, v1')
            e('v_cndmask_b32 v5, v5, v6, vcc')
        else:
            e('v_mov_b32 v5, v6')
    e(f's_cmp_ge_u32 s{sC}, 14')
    e('s_cbranch_scc1 L_g2only')
    poll(e, 2, 44, idx)
    stamp(e, 'G1.go')
    ACC, BR, RRG, T = 64, 16, 48, 128
    ST = T
    dtok = {}
    e(f's_mul_i32 s96, s{sW}, 7168')
    e(f's_add_u32 s98, s{sR}, s{sW}')
    e('s_and_b32 s98, s98, 3')
    e('s_mul_i32 s98, s98, 7168')
    def hc_groups(nt):
        gs = []
        for i in range(7):
            g = []
            if i == 0:
                g += [f's_add_u32 s97, s57, {nt}', 's_mul_i32 s97, s97, 28672', 's_add_u32 s97, s97, s98', f's_add_u32 s97, s97, 0x{HC_OFF:x}']
            if i == 4: g += ['s_add_u32 s97, s97, 4096']
            if i in (0, 4): g += [f's_add_u32 m0, s96, {nt*28672 + (4096 if i == 4 else 0)}']
            g.append(('vm', f'buffer_load_dwordx4 v4, {SWS}, s97 offen offset:{(i%4)*1024} sc1 lds', ('hc', nt)))
            gs.append(g)
        return gs
    STK = []
    def emit_op(op):
        if isinstance(op, tuple) and op[0] == 'ds':
            STK.append(e.ds(op[1])); return None
        if isinstance(op, tuple) and op[0] == 'dswait':
            e.wait_ds(STK[op[1] * 8 + 7]); return None
        if isinstance(op, tuple):
            t = e.vm(op[1])
            if len(op) > 2:
                if op[2][0] == 'hc': dtok[op[2][1]] = t
                if op[2][0] == 'st': dtok['st'] = t
            return t
        e(op); return None
    for g in hc_groups(0):
        for op in g: emit_op(op)
    e(f's_add_u32 s54, s57, s{sW}')
    e('s_lshl_b32 s54, s54, 11')
    e(f's_add_u32 s54, s54, 0x{ST2_OFF:x}')
    e(f's_lshl_b32 s55, s{sW}, 11')
    e(f's_add_u32 m0, s55, {LDS_STATS}')
    e.vm(f'buffer_load_dwordx4 v4, {SWS}, s54 offen sc1 lds')
    dtok[0] = e.vm(f'buffer_load_dwordx4 v4, {SWS}, s54 offen offset:1024 sc1 lds')
    while wgi[0] < len(WG):
        wtok[wgi[0]] = emit_groups(e, [WG[wgi[0]]]); wgi[0] += 1
    e('v_add_u32 v6, 57344, v4')
    e('v_and_b32 v5, 31, v1')
    e('v_lshlrev_b32 v5, 2, v5')
    e('v_lshrrev_b32 v7, 5, v1')
    e('v_lshlrev_b32 v7, 10, v7')
    e('v_add_u32 v5, v5, v7')
    e(f'v_add_u32 v5, {LDS_STATS}, v5')
    def stat_ops():
        ops = []
        for nt in range(4):
            b0 = ST + nt * 8
            for i in range(8): ops.append(('ds', f'ds_read_b32 v{b0+i}, v5 offset:{nt*2048 + i*128}'))
        for nt in range(4):
            b0 = ST + nt * 8
            ops.append(('dswait', nt))
            ops += [f'v_add_f32 v{b0}, v{b0}, v{b0+1}', f'v_add_f32 v{b0+2}, v{b0+2}, v{b0+3}', f'v_add_f32 v{b0+4}, v{b0+4}, v{b0+5}',
                    f'v_add_f32 v{b0+6}, v{b0+6}, v{b0+7}', f'v_add_f32 v{b0}, v{b0}, v{b0+2}', f'v_add_f32 v{b0+4}, v{b0+4}, v{b0+6}',
                    f'v_add_f32 v{b0}, v{b0}, v{b0+4}', f'v_mov_b32 v{b0+1}, v{b0}', f'v_mov_b32 v7, {lit(1e-5)}',
                    f'v_permlane32_swap_b32 v{b0+1}, v{b0}', f'v_add_f32 v{b0}, v{b0}, v{b0+1}',
                    f'v_fmamk_f32 v{RRG+4+nt}, v{b0}, {lit(1.0/448)}, v7', f'v_rsq_f32 v{b0}, v{RRG+4+nt}', 's_nop 0',
                    f'v_mul_f32 v{RRG+nt}, {lit(-1.4426950408889634)}, v{b0}']
        return ops
    def epi_half(nt, mi):
        ops = []
        a = ACC + ((nt & 1) * 2 + mi) * 16
        T0 = T + mi * 16
        for r in range(8): ops.append(f'v_mul_f32 v{T0+r}, v{a+r}, v{RRG+nt}')
        for r in range(8):
            ops.append(f'v_exp_f32 v{T0+r}, v{T0+r}')
            ops.append(f'v_mul_f32 v{T0+8+r}, v{a+r}, v{a+8+r}')
        for r in range(8): ops.append(f'v_fma_f32 v{T0+r}, v{T0+r}, v{RRG+4+nt}, v{RRG+4+nt}')
        for r in range(8): ops.append(f'v_rcp_f32 v{T0+r}, v{T0+r}')
        for r in range(8): ops.append(f'v_mul_f32 v{T0+8+r}, v{T0+8+r}, v{T0+r}')
        P = 56 + mi * 4
        for i in range(4): ops.append(f'v_cvt_pk_bf16_f32 v{P+i}, v{T0+8+2*i}, v{T0+8+2*i+1}')
        ops.append(f's_add_u32 s53, s99, {nt*112*1024 + mi*1024}')
        ops.append(('vm', f'buffer_store_dwordx4 {vr(P,4)}, v4, {SWS}, s53 offen sc1', ('store',)))
        return ops
    def epi_ops(nt): return epi_half(nt, 0) + epi_half(nt, 1)
    e('s_mul_i32 s99, s57, 112')
    e('s_add_u32 s99, s99, s56')
    e('s_lshl_b32 s99, s99, 10')
    e(f's_add_u32 s99, s99, 0x{HM_OFF:x}')
    bg = {0: hc_groups(1) + hc_groups(2), 1: hc_groups(3) + [w2load(o) for o in range(0, 9)],
          2: [w2load(o) for o in range(9, 25)], 3: [w2load(o) for o in range(25, 31)]}
    last_store = None
    next_late = 31
    for nt in range(4):
        e.wait_vm(dtok[nt])
        e.barrier()
        if nt == 0: stamp(e, 'G1.t0')
        fill = epi_ops(nt - 1) if nt > 0 else stat_ops()
        sttok = []
        fi = 0; gi = 0
        btok = {}
        n = [0]
        def issue():
            kap = n[0]
            base = 'v4' if nt < 2 else 'v6'
            off = ((nt & 1) * 28 + kap) * 1024
            btok[kap] = e.ds(f'ds_read_b128 {vr(BR+(kap%8)*4,4)}, {base} offset:{off}')
            n[0] += 1
        for _ in range(5): issue()
        nm = 0
        G_ = bg[nt]
        for kap in range(28):
            e.wait_ds(btok[kap])
            for mi in range(2):
                a = ACC + ((nt & 1) * 2 + mi) * 16
                if nt == 0 and (kap * 2 + mi) in wtok: e.wait_vm(wtok[kap * 2 + mi])
                e(f'v_mfma_f32_32x32x16_bf16 {vr(a,16)}, {ar((mi*28+kap)*4,4)}, {vr(BR+(kap%8)*4,4)}, {"0" if kap == 0 else vr(a,16)}')
                nm += 1
                if mi == 0 and n[0] < 28: issue()
                span = 24 if nt == 3 else 56
                want = (len(G_) * nm + span - 1) // span
                while gi < min(want, len(G_)):
                    for op in G_[gi]: emit_op(op)
                    gi += 1
                if nt == 3 and gi >= len(G_) and nm % 4 == 0 and next_late < 43:
                    dep = w2reg(next_late & 1, next_late >> 1)[1]
                    if dep[1] * 2 + dep[0] < nm:
                        for op in w2load(next_late): emit_op(op)
                        next_late += 1
                if nm > 3:
                    want = (len(fill) * (nm - 3) + 49) // 50
                    while fi < min(want, len(fill)):
                        t = emit_op(fill[fi]); fi += 1
        while fi < len(fill):
            emit_op(fill[fi]); fi += 1
        stamp(e, f'G1.tile{nt}')
    for op in epi_ops(3):
        t = emit_op(op)
        if isinstance(op, tuple): last_store = t
    stamp(e, 'G1.stored')
    while next_late < 56:
        for op in w2load(next_late): emit_op(op)
        next_late += 1
    e.wait_vm(last_store)
    stamp(e, 'G1.drained')
    signal(e, 3)
    e('s_cmp_ge_u32 s2, 224')
    e('s_cbranch_scc1 L_fin')
    e('s_branch L_g2')
    e.label('L_g2only')
    e('s_cmp_ge_u32 s2, 224')
    e('s_cbranch_scc1 L_fin')
    poll(e, 2, 28, lambda e_: idxw(e_, 0))
    for o in range(56):
        for op in w2load(o): e(op[1] if isinstance(op, tuple) else op)
    e.label('L_g2')
    e.c('======== G2')
    ACC2, BR2, HRR, NB = 16, 80, 152, 9
    e('s_lshl_b32 s57, s58, 1')
    e(f's_mul_i32 s52, s{sW}, 28')
    e(f's_lshr_b32 s54, s{sW}, 1')
    for ni in range(2):
        e(f's_xor_b32 s53, s54, {ni}')
        e('s_add_u32 s53, s53, s57')
        e('s_mul_i32 s53, s53, 112')
        e('s_add_u32 s53, s53, s52')
        e('s_lshl_b32 s53, s53, 10')
        e(f's_add_u32 s{88+ni}, s53, 0x{HM_OFF:x}')
    e('s_add_u32 s56, s54, s57')
    e('s_mul_i32 s52, s56, 28')
    e(f's_and_b32 s60, s{sW}, 1')
    e('s_lshl_b32 s53, s59, 1')
    e('s_add_u32 s60, s60, s53')
    e('s_lshl_b32 s53, s60, 1')
    e('s_add_u32 s52, s52, s53')
    e('s_lshl_b32 s52, s52, 10')
    e(f's_add_u32 s52, s52, 0x{HR_OFF:x}')
    e('s_mov_b32 s61, s52')
    def idx4(e):
        e('s_lshr_b32 s53, s58, 1')
        e('s_lshl_b32 s53, s53, 3')
        e('v_lshrrev_b32 v5, 1, v1')
        e('v_and_b32 v6, 1, v1')
        e('v_lshlrev_b32 v6, 7, v6')
        e('v_add_u32 v5, v5, v6')
        e('v_add_u32 v5, s53, v5')
        e('v_lshlrev_b32 v5, 6, v5')
    poll(e, 3, 14, idx4, preg=8)
    stamp(e, 'G2.go')
    tok = {}
    nl = [0]
    def issue2():
        i = nl[0]
        if i % 4 == 0:
            for op in grp_off(62, i // 4): e(op)
            e('s_add_u32 s63, s89, s62')
            e('s_add_u32 s62, s88, s62')
        o = (i % 4) * 1024
        slot = i % NB
        e.vm(f'buffer_load_dwordx4 {vr(BR2+slot*8,4)}, v4, {SWS}, s62 offen offset:{o} sc1')
        tok[i] = e.vm(f'buffer_load_dwordx4 {vr(BR2+slot*8+4,4)}, v4, {SWS}, s63 offen offset:{o} sc1')
        nl[0] += 1
    for _ in range(NB): issue2()
    htok = [e.vm(f'buffer_load_dwordx4 {vr(HRR+4*gg,4)}, v4, {SWS}, s61 offen offset:{1024*gg} sc1') for gg in range(2)]
    for i in range(28):
        e.wait_vm(tok[i])
        if i == 0: stamp(e, 'G2.first')
        slot = i % NB
        for mi in range(2):
            for ni in range(2):
                a = ACC2 + (mi * 2 + ni) * 16
                e(f'v_mfma_f32_32x32x16_bf16 {vr(a,16)}, {w2reg(mi,i)[0]}, {vr(BR2+slot*8+ni*4,4)}, {"0" if i == 0 else vr(a,16)}')
        if nl[0] < 28: issue2()
    stamp(e, 'G2.mfma')
    for k, (mi, ni) in enumerate(((1, 0), (0, 1), (1, 1))):
        e(f's_xor_b32 s52, s{sW}, {k+1}')
        e('s_mul_i32 s52, s52, 12288')
        e(f'v_add_u32 v{5+k}, s52, v4')
    for k, (mi, ni) in enumerate(((1, 0), (0, 1), (1, 1))):
        a = ACC2 + (mi * 2 + ni) * 16
        for qd in range(4):
            e.ds(f'ds_write_b128 v{5+k}, {vr(a+qd*4,4)} offset:{k*4096 + qd*1024}')
    e.wait_ds_all()
    e.barrier()
    e(f's_mul_i32 s52, s{sW}, 12288')
    e('v_add_u32 v5, s52, v4')
    R0 = 80
    for k in range(3):
        for qd in range(4):
            e.ds(f'ds_read_b128 {vr(R0+k*16+qd*4,4)}, v5 offset:{k*4096 + qd*1024}')
    e.wait_ds_all()
    stamp(e, 'G2.red')
    for r in range(16):
        e(f'v_add_f32 v{R0+r}, v{R0+r}, v{R0+16+r}')
        e(f'v_add_f32 v{R0+32+r}, v{R0+32+r}, v{ACC2+r}')
    for r in range(16): e(f'v_add_f32 v{R0+r}, v{R0+r}, v{R0+32+r}')
    e.wait_vm(htok[1])
    e('s_mov_b32 s52, 0xffff0000')
    PK = 32
    for i in range(8): e(f'v_cvt_pk_bf16_f32 v{PK+i}, v{R0+2*i}, v{R0+2*i+1}')
    for i in range(8):
        e(f'v_lshlrev_b32 v48, 16, v{PK+i}')
        e(f'v_and_b32 v49, s52, v{PK+i}')
        e(f'v_lshlrev_b32 v50, 16, v{HRR+i}')
        e(f'v_and_b32 v51, s52, v{HRR+i}')
        e('v_add_f32 v48, v48, v50')
        e('v_add_f32 v49, v49, v51')
        dst = {0: 40, 1: 41, 4: 42, 5: 43, 2: 44, 3: 45, 6: 46, 7: 47}[i]
        e(f'v_cvt_pk_bf16_f32 v{dst}, v48, v49')
    e('v_permlane32_swap_b32 v40, v42')
    e('v_permlane32_swap_b32 v41, v43')
    e('v_permlane32_swap_b32 v44, v46')
    e('v_permlane32_swap_b32 v45, v47')
    e('v_and_b32 v5, 31, v1')
    e('v_lshlrev_b32 v5, 6, v5')
    e('v_add_u32 v5, s56, v5')
    e('v_mul_u32_u24 v5, 896, v5')
    e('v_lshrrev_b32 v6, 5, v1')
    e('v_lshlrev_b32 v6, 4, v6')
    e('v_add_u32 v5, v5, v6')
    e('s_lshl_b32 s52, s60, 5')
    om = ['', ' sc1', ' nt', ' sc0 sc1'][OPT['outmod']]
    e(f'buffer_store_dwordx4 v[40:43], v5, {SOUT}, s52 offen{om}')
    e(f'buffer_store_dwordx4 v[44:47], v5, {SOUT}, s52 offen offset:448{om}')
    stamp(e, 'G2.end')

DBGOUT = False
def dbg_out(e):
    sk = L('dbo')
    e('s_waitcnt vmcnt(0)')
    e('s_memrealtime s[84:85]')
    e('s_memtime s[90:91]')
    e('s_waitcnt lgkmcnt(0)')
    e(f's_cmp_lg_u32 s{sW}, 0')
    e(f's_cbranch_scc1 {sk}')
    e('s_and_b32 s52, s2, 63')
    e('s_cmp_lg_u32 s52, 0')
    e(f's_cbranch_scc1 {sk}')
    e('s_lshr_b32 s52, s2, 6')
    e('s_lshl_b32 s52, s52, 4')
    e('s_add_u32 s52, s52, 16')
    e('s_sub_u32 s53, s84, s86')
    e('s_sub_u32 s54, s90, s82')
    e('v_mov_b32 v4, s53'); e('v_mov_b32 v5, s54'); e('v_mov_b32 v6, s86'); e('v_mov_b32 v7, s84')
    e('v_mov_b32 v8, 0')
    e('s_mov_b64 exec, 1')
    e(f'buffer_store_dwordx4 v[4:7], v8, {SDBG}, s52 offen sc1')
    e('s_mov_b64 exec, -1')
    e.label(sk)

def probe(e):
    sk = L('prb'); lp = L('prl')
    e('s_cmp_lg_u32 s2, 0')
    e(f's_cbranch_scc1 {sk}')
    e('s_waitcnt vmcnt(0)')
    e('s_memrealtime s[84:85]')
    e('s_waitcnt lgkmcnt(0)')
    e('s_sub_u32 s84, s84, s86')
    e(f's_cmp_lt_u32 s84, {OPT["probe"]}')
    e(f's_cbranch_scc1 {sk}')
    e('s_mov_b32 s85, 0')
    e.label(lp)
    e('s_sleep 64')
    e('s_add_u32 s85, s85, 1')
    e('s_cmp_lt_u32 s85, 20')
    e(f's_cbranch_scc1 {lp}')
    e.label(sk)

def diag_dump(e):
    if OPT['probe']: probe(e)
    if DBGOUT: dbg_out(e)
    if not DIAG: return
    e.wait_vm_all()
    rstamp(e, 'rt_end')
    e('s_lshl_b32 s52, s2, 2')
    e(f's_add_u32 s52, s52, s{sW}')
    e('s_lshl_b32 s52, s52, 8')
    e(f's_add_u32 s52, s52, 0x{DIAG_OFF:x}')
    e('v_lshlrev_b32 v4, 2, v1')
    e(f'buffer_store_dword v255, v4, {SWS}, s52 offen')

def kernel():
    e = Emit()
    e.label(KN)
    e('s_cmp_ge_u32 s2, 256')
    e('s_cbranch_scc1 L_end')
    e('s_load_dwordx16 s[64:79], s[0:1], 0')
    e('s_load_dwordx4 s[80:83], s[0:1], 64')
    e('s_memrealtime s[86:87]')
    if DBGOUT: e('s_memtime s[82:83]')
    if DIAG: e('v_mov_b32 v255, 0')
    e('v_lshrrev_b32 v4, 6, v0')
    e('v_and_b32 v1, 63, v0')
    e(f'v_readfirstlane_b32 s{sW}, v4')
    e('v_and_b32 v2, 15, v0')
    e('v_bfe_u32 v3, v0, 4, 2')
    e(f's_and_b32 s{sB}, s2, 7')
    e('s_lshr_b32 s52, s2, 5')
    e('s_lshl_b32 s52, s52, 3')
    e(f's_add_u32 s{sB}, s{sB}, s52')
    e(f's_lshr_b32 s{sGRP}, s2, 3')
    e(f's_and_b32 s{sGRP}, s{sGRP}, 3')
    e('s_lshr_b32 s52, s2, 3')
    e(f's_and_b32 s{sR}, s52, 15')
    e('s_lshr_b32 s52, s52, 4')
    e(f's_and_b32 s{sC}, s2, 7')
    e(f's_lshl_b32 s{sC}, s{sC}, 1')
    e(f's_add_u32 s{sC}, s{sC}, s52')
    e(f's_getreg_b32 s{sREP}, hwreg(HW_REG_XCC_ID, 0, 3)')
    e(f's_lshl_b32 s{sREP}, s{sREP}, 14')
    e(f's_mov_b32 s{sNONCE}, 0')
    e('s_waitcnt lgkmcnt(0)')
    srd(e, S_X, 64, 1835008)
    if OPT['wsoff']:
        e(f's_add_u32 s82, s82, 0x{OPT["wsoff"]*0x100000:x}')
        e('s_addc_u32 s83, s83, 0')
    srd(e, S_WS, 82, WS_SIZE)
    srd(e, S_WR, 66, 2048 * 450)
    srd(e, S_WI, 68, 2048 * 450)
    srd(e, S_W1, 72, 448 * 3584)
    srd(e, S_W3, 74, 448 * 3584)
    srd(e, S_W2, 76, 1792 * 896)
    srd(e, S_OUT, 78, 1835008)
    srd(e, S_DBG, 80, 256)
    e('s_cmp_ge_u32 s2, 224')
    e(f's_cselect_b32 s{S_W1+2}, 0, s{S_W1+2}')
    e(f's_cselect_b32 s{S_W3+2}, 0, s{S_W3+2}')
    if DIAG:
        STAMPS.append('rt_start'); _stamp_n[0] += 1
        e('v_writelane_b32 v255, s86, 0')
    stamp(e, 'start')
    sk = L('nononce')
    e(f's_or_b32 s52, s2, s{sW}')
    e('s_cmp_lg_u32 s52, 0')
    e(f's_cbranch_scc1 {sk}')
    e('s_or_b32 s52, s86, 1')
    e('v_mov_b32 v4, s52')
    e('v_mov_b32 v5, 0')
    e('s_mov_b64 exec, 1')
    e(f'buffer_store_dword v4, v5, {SDBG}, 0 offen sc1')
    e('s_mov_b64 exec, -1')
    e.label(sk)
    phase_a(e)
    p2l, joinl, join2 = L('p2'), L('join'), L('join')
    e('s_cmp_ge_u32 s2, 224')
    e(f's_cbranch_scc1 {p2l}')
    sv_ds = (e.ds_issued, e.ds_done)
    phase_b(e)
    e(f's_branch {joinl}')
    e.label(p2l)
    signal(e, 1)
    phase_p2(e)
    signal(e, 4)
    e(f's_branch {join2}')
    e.label(joinl)
    signal(e, 1)
    e.label(join2)
    e.vm_issued = 0; e.vm_done = 0
    phase_c(e)
    phase_g(e)
    e.label('L_fin')
    diag_dump(e)
    e.label('L_end')
    e('s_endpgm')
    return e.out

def build():
    hdr = open('cdna_kernels/' + NAME + '.s.ref').read().split('; Override launch')[0]
    body = kernel()
    body, nn = hazard_pass(body)
    print(f'; {len(body)} lines, {nn} nops inserted', file=sys.stderr)
    lines = [hdr.rstrip('\n'),
             f'; @launch grid=(256,1,1) block=(256,1,1) lds={LDS_BYTES}',
             '.amdgcn_target "amdgcn-amd-amdhsa--gfx950"', '.text', f'.globl {KN}', '.p2align 8', f'.type {KN},@function']
    for ln in body: lines.append(ln if ln.endswith(':') else '    ' + ln)
    lines += ['.section .rodata,"a"', '.p2align 6', f'.amdhsa_kernel {KN}',
              '  .amdhsa_next_free_vgpr 512', '  .amdhsa_next_free_sgpr 102', '  .amdhsa_accum_offset 256',
              '  .amdhsa_group_segment_fixed_size 0', '  .amdhsa_kernarg_size 80', '  .amdhsa_user_sgpr_count 2',
              '  .amdhsa_user_sgpr_kernarg_segment_ptr 1', '  .amdhsa_system_sgpr_workgroup_id_x 1',
              '  .amdhsa_float_denorm_mode_32 3', '.end_amdhsa_kernel']
    return '\n'.join(lines) + '\n'

if __name__ == '__main__':
    for a in list(sys.argv):
        if a.startswith('--opt='):
            for kv in a[6:].split(','):
                k, v = kv.split('='); OPT[k] = int(v)
            sys.argv.remove(a)
    if '--dbgout' in sys.argv:
        DBGOUT = True; sys.argv.remove('--dbgout')
    if '--diag' in sys.argv:
        DIAG = True; sys.argv.remove('--diag')
    out = sys.argv[1] if len(sys.argv) > 1 else 'cdna_kernels/' + NAME + '.s'
    open(out, 'w').write(build())
    if DIAG:
        import json; json.dump(STAMPS, open(out + '.stamps.json', 'w'))
    print('written', out, file=sys.stderr)
```

```python
import sys, struct
from asmlib import Emit, hazard_pass

NAME = "sequential_preLN__spectral_gfnet__glu_gated_swiglu__prompt"
KN = NAME + "_kernel"

T1_OFF  = 0x000000
T2_OFF  = 0x200000
HC_OFF  = 0x400000
HR_OFF  = 0x600000
ST1_OFF = 0x800000
ST2_OFF = 0x810000
W13_OFF = 0x900000
W2_OFF  = 0xD00000
HM_OFF  = 0x1000000
FL_OFF  = 0x1800000
DIAG_OFF = 0x1A00000
WS_SIZE = 0x1C00000
LDS_STAGE = 32768
LDS_STATS = 114688
LDS_BYTES = 114688 + 8192
MAXSPIN = 100000

DIAG = False
OPT = dict(st1=3, st2=2, epi=2, post=4, w3=8, cpf=4, outmod=0, probe=0, ppoint=0, pdepth=1, g2rot=0, wsoff=0)
def f2u(x): return struct.unpack('<I', struct.pack('<f', x))[0]
def lit(x): return '0x%08x' % f2u(x)
def vr(a, n=1): return f'v{a}' if n == 1 else f'v[{a}:{a+n-1}]'
def ar(a, n=1): return f'a{a}' if n == 1 else f'a[{a}:{a+n-1}]'

S_X, S_WS, S_WR, S_WI, S_W1, S_W3, S_W2, S_OUT, S_DBG = 8, 12, 16, 20, 24, 28, 32, 36, 40
SX, SWS, SWR, SWI, SW1, SW3, SW2, SOUT, SDBG = [f's[{a}:{a+3}]' for a in (8, 12, 16, 20, 24, 28, 32, 36, 40)]
sW, sB, sGRP, sNONCE, sREP = 44, 45, 46, 47, 48
sR, sC, sSPIN = 49, 50, 51

def srd(e, d, ptr, size):
    e(f's_mov_b32 s{d}, s{ptr}')
    e(f's_and_b32 s{d+1}, s{ptr+1}, 0xffff')
    e(f's_mov_b32 s{d+2}, 0x{size:x}')
    e(f's_mov_b32 s{d+3}, 0x20000')

_stamp_n = [0]
STAMPS = []
PPOINTS = {1: 'A.xstaged', 2: 'A.drained', 3: 'B.go', 4: 'C.go', 5: 'G1.go', 6: 'G2.go', 7: 'start'}
def stamp(e, name):
    if OPT['ppoint'] and PPOINTS[OPT['ppoint']] == name:
        e('s_memrealtime s[100:101]')
        e('s_waitcnt lgkmcnt(0)')
    if not DIAG: return
    i = _stamp_n[0]; _stamp_n[0] += 1; STAMPS.append(name)
    e('s_memtime s[84:85]')
    e('s_waitcnt lgkmcnt(0)')
    e(f'v_writelane_b32 v255, s84, {i}')
def rstamp(e, name):
    if not DIAG: return
    i = _stamp_n[0]; _stamp_n[0] += 1; STAMPS.append(name)
    e('s_memrealtime s[84:85]')
    e('s_waitcnt lgkmcnt(0)')
    e(f'v_writelane_b32 v255, s84, {i}')

def xsum_groups(e, v, tmp):
    e(f'v_mov_b32 v{tmp}, v{v}')
    e(f'v_permlane32_swap_b32 v{tmp}, v{v}')
    e(f'v_add_f32 v{v}, v{v}, v{tmp}')
    e(f'v_mov_b32 v{tmp}, v{v}')
    e(f'v_permlane16_swap_b32 v{tmp}, v{v}')
    e(f'v_add_f32 v{v}, v{v}, v{tmp}')

def rot8(em, co, si, co2, si2, cs, neg_sin):
    C = 'op_sel:[0,0] op_sel_hi:[1,0]'
    S3 = 'op_sel:[0,1,0] op_sel_hi:[1,1,1]'
    NEG = ' neg_lo:[0,1,0] neg_hi:[0,1,0]'
    for p in range(4):
        em(f'v_pk_mul_f32 v[{co2+2*p}:{co2+2*p+1}], v[{co+2*p}:{co+2*p+1}], v[{cs}:{cs+1}] {C}')
        em(f'v_pk_mul_f32 v[{si2+2*p}:{si2+2*p+1}], v[{si+2*p}:{si+2*p+1}], v[{cs}:{cs+1}] {C}')
    for p in range(4):
        em(f'v_pk_fma_f32 v[{co2+2*p}:{co2+2*p+1}], v[{si+2*p}:{si+2*p+1}], v[{cs}:{cs+1}], v[{co2+2*p}:{co2+2*p+1}] {S3}' + ('' if neg_sin else NEG))
        em(f'v_pk_fma_f32 v[{si2+2*p}:{si2+2*p+1}], v[{co+2*p}:{co+2*p+1}], v[{cs}:{cs+1}], v[{si2+2*p}:{si2+2*p+1}] {S3}' + (NEG if neg_sin else ''))

_lab = [0]
def L(p):
    _lab[0] += 1
    return f'L{p}_{_lab[0]}'

def signal(e, sync):
    e.barrier()
    skip = L('sig')
    e(f's_cmp_lg_u32 s{sW}, 0')
    e(f's_cbranch_scc1 {skip}')
    e(f's_lshl_b32 s52, s2, 6')
    e(f's_add_u32 s52, s52, 0x{FL_OFF + sync*0x40000:x}')
    e(f'v_mov_b32 v14, s{sNONCE}')
    e('v_lshlrev_b32 v15, 14, v1')
    e('s_mov_b64 exec, 0xff')
    e(f'buffer_store_dword v14, v15, {SWS}, s52 offen sc1')
    e('s_mov_b64 exec, -1')
    e.label(skip)

def poll(e, sync, nflags, idx_code, preg=232):
    skip = L('pollskip'); loop = L('poll'); done = L('polldone')
    e(f's_cmp_lg_u32 s{sW}, 0')
    e(f's_cbranch_scc1 {skip}')
    idx_code(e)
    nl = max(1, nflags // 64)
    e(f's_add_u32 s52, s{sREP}, 0x{FL_OFF + sync*0x40000:x}')
    for i in range(1, nl): e(f's_add_u32 s{52+i}, s52, {i*64*64}')
    e(f's_mov_b32 s{sSPIN}, 0')
    if nflags <= 32: e(f's_mov_b64 exec, 0x{(1 << nflags) - 1:x}')
    elif nflags < 64: e(f's_mov_b32 exec_hi, 0x{(1 << (nflags - 32)) - 1:x}')
    D = OPT['pdepth']
    def issue(k):
        for i in range(nl): e(f'buffer_load_dword v{preg+k*nl+i}, v5, {SWS}, s{52+i} offen sc1')
    e('s_waitcnt vmcnt(0)') if D == 1 else None
    for k in range(D - 1): issue(k)
    e.label(loop)
    for k in range(D):
        issue((k + D - 1) % D)
        e(f's_waitcnt vmcnt({(D-1)*nl})')
        r = preg + k * nl
        e(f'v_xor_b32 v6, s{sNONCE}, v{r}')
        for i in range(1, nl):
            e(f'v_xor_b32 v7, s{sNONCE}, v{r+i}')
            e('v_or_b32 v6, v6, v7')
        e('v_cmp_ne_u32 vcc, 0, v6')
        e('s_nop 4')
        e(f's_cbranch_vccz {done}')
    e(f's_add_u32 s{sSPIN}, s{sSPIN}, 1')
    e(f's_cmp_lt_u32 s{sSPIN}, {MAXSPIN}')
    e(f's_cbranch_scc1 {loop}')
    e.label(done)
    e('s_mov_b64 exec, -1')
    e.label(skip)
    e.barrier()

def p1_addr(e, i):
    e(f's_lshl_b32 s53, s{sW}, 2')
    e(f's_add_u32 s53, s53, {i}')
    e('s_cmp_ge_u32 s53, 7')
    e('s_cselect_b32 s54, 7, 0')
    e(f's_cselect_b32 s55, {P1_MS}, 0')
    e('s_sub_u32 s54, s53, s54')
    e('s_lshl_b32 s54, s54, 6')
    e(f's_add_u32 s55, s55, {LDS_STAGE}')
    e('v_add_u32 v12, s54, v1')
    e('v_mul_u32_u24 v13, 4682, v12')
    e('v_lshrrev_b32 v13, 16, v13')
    e('v_mul_u32_u24 v14, 14, v13')
    e('v_sub_u32 v14, v12, v14')
    e('v_lshlrev_b32 v14, 4, v14')
    e(f'v_mul_u32_u24 v15, {P1_RS}, v13')
    e('v_add3_u32 v%d, v15, v14, s55' % P1LR[i])
    e('v_lshrrev_b32 v15, 4, v13')
    e('v_mul_u32_u24 v15, 208, v15')
    e('v_add_u32 v15, v15, v13')
    e('v_mul_u32_u24 v15, 3584, v15')
    e('v_add_u32 v15, v15, v14')

P1_RS, P1_MS = 288, 9344
P1LR = [252, 253, 254, 249]
def p1_loads(e):
    e('s_lshr_b32 s52, s2, 4')
    e('s_lshl_b32 s52, s52, 4')
    e('s_mul_i32 s52, s52, 3584')
    e('s_and_b32 s54, s2, 15')
    e('s_mul_i32 s54, s54, 224')
    e('s_add_u32 s52, s52, s54')
    e(f's_mov_b32 s94, s{S_W1+2}')
    e('s_mov_b32 s95, 0x20000')
    for i in range(4):
        p1_addr(e, i)
        e('s_cmp_ge_u32 s53, 7')
        e(f's_cselect_b32 s92, s{S_W3}, s{S_W1}')
        e(f's_cselect_b32 s93, s{S_W3+1}, s{S_W1+1}')
        if i >= 2:
            e('s_cmp_ge_u32 s53, 14')
            e('s_cselect_b32 s94, 0, s94')
        e.vm(f'buffer_load_dwordx4 {ar(4*i,4)}, v15, s[92:95], s52 offen')

def w_prefetch(e):
    e('s_lshl_b32 s52, s2, 12')
    e('v_lshlrev_b32 v12, 4, v0')
    e('v_add_u32 v12, s52, v12')
    e.vm(f'buffer_load_dwordx4 a[16:19], v12, {SWR}, 0 offen')
    e.vm(f'buffer_load_dwordx4 a[16:19], v12, {SWI}, 0 offen')
assert all(((i * 4682) >> 16) == i // 14 for i in range(512))

def p1_finish(e):
    RS, MS, BASE = 288, 9344, LDS_STAGE
    skw = L('p1w')
    for i in range(4):
        if i == 2:
            e(f's_cmp_ge_u32 s{sW}, 3')
            e(f's_cbranch_scc1 {skw}')
        e(f'ds_write_b128 v{P1LR[i]}, {ar(4*i,4)}')
    e.label(skw)
    e.wait_ds_all()
    e.barrier()
    e('v_and_b32 v4, 1, v3')
    e(f'v_mul_u32_u24 v4, {MS}, v4')
    e('v_lshrrev_b32 v5, 1, v3')
    e('v_lshlrev_b32 v5, 2, v5')
    e('v_lshrrev_b32 v6, 2, v2')
    e('v_add_u32 v5, v5, v6')
    e(f'v_mul_u32_u24 v5, {RS}, v5')
    e('v_add_u32 v4, v4, v5')
    e('v_and_b32 v6, 3, v2')
    e('v_lshlrev_b32 v6, 3, v6')
    e('v_add_u32 v4, v4, v6')
    e(f's_and_b32 s52, s{sW}, 1')
    e(f's_mul_i32 s52, s52, {8*RS}')
    e(f's_lshr_b32 s53, s{sW}, 1')
    e('s_lshl_b32 s53, s53, 5')
    e('s_add_u32 s52, s52, s53')
    e(f's_add_u32 s52, s52, {BASE}')
    e('v_add_u32 v4, s52, v4')
    R = 216
    for m in range(4):
        e.ds(f'ds_read_b64_tr_b16 {vr(R+4*m,2)}, v4 offset:{64*m}')
        e.ds(f'ds_read_b64_tr_b16 {vr(R+4*m+2,2)}, v4 offset:{64*m + 16*RS}')
    e('s_and_b32 s52, s2, 15')
    e('s_mul_i32 s52, s52, 7')
    e(f's_lshr_b32 s53, s{sW}, 1')
    e('s_add_u32 s52, s52, s53')
    e('s_mul_i32 s52, s52, 28')
    e('s_lshr_b32 s53, s2, 4')
    e('s_lshl_b32 s53, s53, 1')
    e('s_add_u32 s52, s52, s53')
    e(f's_and_b32 s53, s{sW}, 1')
    e('s_add_u32 s52, s52, s53')
    e('s_lshl_b32 s52, s52, 10')
    e(f's_add_u32 s52, s52, 0x{W13_OFF:x}')
    e('v_lshlrev_b32 v5, 4, v1')
    e.wait_ds_all()
    sk = L('p1s')
    for m in range(4):
        if m == 3:
            e(f's_cmp_ge_u32 s{sW}, 2')
            e(f's_cbranch_scc1 {sk}')
        e(f's_add_u32 s53, s52, {m*2*28*1024}')
        st_ = f'buffer_store_dwordx4 {vr(R+4*m,4)}, v5, {SWS}, s53 offen sc1'
        if m < 3: e.vm(st_)
        else: e(st_)
    e.label(sk)

def w13_load_groups():
    gs = []
    for s_ in range(28):
        for mi in range(2):
            g = []
            if s_ % 7 == 0 and mi == 0:
                g += [f's_add_u32 s90, s89, {s_//7}', 's_and_b32 s90, s90, 3', 's_mul_i32 s90, s90, 7168', 's_add_u32 s90, s90, s88',
                      's_add_u32 s91, s90, 28672']
            i = s_ % 7
            if i == 4 and mi == 0: g += ['s_add_u32 s90, s90, 4096', 's_add_u32 s91, s91, 4096']
            g.append(('vm', f'buffer_load_dwordx4 {ar((mi*28+s_)*4,4)}, v254, s[92:95], s{90+mi} offen offset:{(i%4)*1024} sc1'))
            gs.append(g)
    return gs

def w13_setup(e):
    e(f's_mov_b32 s92, s{S_WS}')
    e(f's_mov_b32 s93, s{S_WS+1}')
    e(f's_cmp_ge_u32 s{sC}, 14')
    e(f's_cselect_b32 s94, 0, s{S_WS+2}')
    e('s_mov_b32 s95, 0x20000')
    e(f's_lshl_b32 s88, s{sC}, 3')
    e(f's_lshl_b32 s52, s{sW}, 1')
    e('s_add_u32 s88, s88, s52')
    e('s_mul_i32 s88, s88, 28672')
    e(f's_add_u32 s88, s88, 0x{W13_OFF:x}')
    e(f's_and_b32 s89, s{sR}, 3')
    e('v_lshlrev_b32 v254, 4, v1')

def emit_groups(e, groups):
    last = None
    for g in groups:
        for op in g:
            if isinstance(op, tuple): last = e.vm(op[1])
            else: e(op)
    return last

DMA = {}
def emit_interleaved(e, main, groups, start=0):
    n, m = len(main), len(groups)
    gi = 0; last = None
    for k, ins in enumerate(main):
        e(ins)
        if k >= start:
            want = ((k - start + 1) * m) // max(1, n - start)
            while gi < want:
                for op in groups[gi]:
                    if isinstance(op, tuple): last = e.vm(op[1])
                    else: e(op)
                gi += 1
    while gi < m:
        for op in groups[gi]:
            if isinstance(op, tuple): last = e.vm(op[1])
            else: e(op)
        gi += 1
    return last

def w13_trread(e, half):
    e('v_and_b32 v4, 1, v3')
    e('v_lshrrev_b32 v5, 1, v3')
    e('v_lshrrev_b32 v6, 2, v2')
    e('v_and_b32 v7, 3, v2')
    e('v_mul_u32_u24 v8, 57344, v4')
    e('v_lshlrev_b32 v9, 2, v5')
    e('v_add_u32 v9, v9, v6')
    e('v_lshlrev_b32 v9, 8, v9')
    e('v_add_u32 v8, v8, v9')
    e('v_and_b32 v9, 1, v7')
    e('v_lshlrev_b32 v9, 3, v9')
    e('v_add_u32 v8, v8, v9')
    e(f'v_add_u32 v8, {LDS_STAGE}, v8')
    e('v_lshrrev_b32 v7, 1, v7')
    e(f's_lshl_b32 s52, s{sW}, 2')
    e('v_add_u32 v7, s52, v7')
    e('v_lshlrev_b32 v6, 1, v6')
    e('v_lshlrev_b32 v4, 3, v4')
    e('v_xor_b32 v6, v6, v4')
    for mi in range(2):
        e(f'v_add_u32 v9, {2*mi}, v7')
        e('v_xor_b32 v9, v9, v6')
        e('v_lshlrev_b32 v9, 4, v9')
        e(f'v_add_u32 v{10+mi}, v8, v9')
    for mi in range(2):
        for jl in range(7):
            for gg in range(2):
                kap = 14 * half + 2 * jl + gg
                a = (mi * 28 + kap) * 4
                off = (16 * jl + 8 * gg) * 256
                e.ds(f'ds_read_b64_tr_b16 {ar(a,2)}, v{10+mi} offset:{off}')
                e.ds(f'ds_read_b64_tr_b16 {ar(a+2,2)}, v{10+mi} offset:{off + 112*256}')

def phase_a(e):
    e.c('======== phase A')
    e(f's_lshl_b32 s56, s{sGRP}, 2')
    e(f's_add_u32 s56, s56, s{sW}')
    e('s_min_u32 s57, s56, 13')
    e(f's_lshr_b32 s52, s{sW}, 1')
    e('s_lshl_b32 s52, s52, 10')
    e(f's_add_u32 s52, s52, s{sB}')
    e('v_lshlrev_b32 v4, 6, v2')
    e('v_add_u32 v4, s52, v4')
    e('v_mul_u32_u24 v4, 896, v4')
    e('v_lshlrev_b32 v5, 4, v3')
    e('v_add_u32 v4, v4, v5')
    e(f's_and_b32 s52, s{sW}, 1')
    e('s_mul_i32 s52, s52, 448')
    e('v_add_u32 v4, s52, v4')
    TA, FP, ACC, X = 16, 72, 96, 128
    xs_tok = [e.vm(f'buffer_load_dwordx4 {vr(X+4*i,4)}, v4, {SX}, 0 offen offset:{64*i}') for i in range(7)]
    if OPT['cpf']:
        sk = L('cpf')
        e(f's_cmp_lg_u32 s{sW}, {OPT["cpf"]-1}')
        e(f's_cbranch_scc1 {sk}')
        e('s_getpc_b64 s[52:53]')
        e.label('L_pc')
        e('s_lshr_b32 s54, s2, 3')
        e('s_lshl_b32 s54, s54, 10')
        e('s_cmp_ge_u32 s54, L_fin-L_pc-1024')
        e(f's_cbranch_scc1 {sk}')
        e('v_lshlrev_b32 v5, 4, v1')
        e('v_add_u32 v5, s54, v5')
        e('global_load_dwordx4 a[20:23], v5, s[52:53]')
        e.label(sk)
    stamp(e, 'A.issued')
    e('s_cmp_lt_u32 s57, 7')
    e('s_cselect_b32 s52, 2, 1')
    e('s_cselect_b32 s53, 0, 7')
    e('s_sub_u32 s53, s57, s53')
    e('s_lshl_b32 s53, s53, 5')
    e('s_add_u32 s53, s53, s52')
    e('s_cmp_lt_u32 s57, 7')
    e(f's_cselect_b32 s58, {lit(1.0)}, {lit(-1.0)}')
    e('v_lshlrev_b32 v5, 1, v2')
    e('v_add_u32 v5, s53, v5')
    e('v_cvt_f32_u32 v5, v5')
    e(f'v_mul_f32 v5, {lit(1.0/448)}, v5')
    e('v_lshlrev_b32 v6, 3, v3')
    e('v_cvt_f32_u32 v6, v6')
    e('v_mul_f32 v6, v6, v5')
    TH, CO, SI = ACC, ACC + 8, ACC + 16
    CO2, SI2 = X + 32, X + 40
    e(f'v_mul_f32 v7, {lit(32.0)}, v5')
    for j in range(8):
        if j == 0: e(f'v_mov_b32 v{TH+j}, v6')
        else: e(f'v_fmamk_f32 v{TH+j}, v5, {lit(float(j))}, v6')
    e('v_cos_f32 v8, v7')
    e('v_sin_f32 v9, v7')
    for j in range(8): e(f'v_cos_f32 v{CO+j}, v{TH+j}')
    for j in range(8): e(f'v_sin_f32_e64 v{SI+j}, -v{TH+j}')
    cur = (CO, SI); oth = (CO2, SI2)
    for t in range(7):
        if t < 6: rot8(e, cur[0], cur[1], oth[0], oth[1], 8, True)
        for i in range(4): e(f'v_cvt_pk_bf16_f32 v{TA+(t*2+0)*4+i}, v{cur[0]+2*i}, v{cur[0]+2*i+1}')
        for i in range(4): e(f'v_cvt_pk_bf16_f32 v{TA+(t*2+1)*4+i}, v{cur[1]+2*i}, v{cur[1]+2*i+1}')
        cur, oth = oth, cur
    e('s_mov_b32 s52, 0x80008000')
    e(f'v_cvt_f32_u32 v7, s{sB}')
    e(f'v_mul_f32 v7, {lit(1.0/64)}, v7')
    e('v_lshlrev_b32 v8, 2, v3')
    e('v_cvt_f32_u32 v8, v8')
    e('v_add_f32 v8, v8, v7')
    for mt in range(2):
        e(f'v_add_u32 v9, {16*mt}, v2')
        e('v_cvt_f32_u32 v9, v9')
        e(f'v_mul_f32 v9, {lit(1.0/32)}, v9')
        e('v_mul_f32 v10, v9, v8')
        for j in range(8):
            cst = 16 * (j >> 2) + (j & 3)
            if cst == 0: e(f'v_mov_b32 v{TH+j}, v10')
            else: e(f'v_fmamk_f32 v{TH+j}, v9, {lit(float(cst))}, v10')
        for j in range(8): e(f'v_cos_f32 v{CO+j}, v{TH+j}')
        for j in range(8): e(f'v_sin_f32 v{SI+j}, v{TH+j}')
        for i in range(4): e(f'v_cvt_pk_bf16_f32 v{FP+mt*12+i}, v{CO+2*i}, v{CO+2*i+1}')
        for i in range(4): e(f'v_cvt_pk_bf16_f32 v{FP+mt*12+4+i}, v{SI+2*i}, v{SI+2*i+1}')
        for i in range(4): e(f'v_xor_b32 v{FP+mt*12+8+i}, s52, v{FP+mt*12+4+i}')
    p1_loads(e)
    stamp(e, 'A.constgen')
    e(f's_mul_i32 s52, s{sW}, 7168')
    e('v_lshlrev_b32 v11, 4, v1')
    e('v_add_u32 v4, s52, v11')
    e('v_mov_b32 v5, 0')
    e('v_mov_b32 v6, 0')
    e('s_mov_b32 s52, 0x3f803f80')
    for i in range(7):
        e.wait_vm(xs_tok[i])
        e.ds(f'ds_write_b128 v4, {vr(X+4*i,4)} offset:{1024*i}')
        for d in range(4):
            e(f'v_dot2_f32_bf16 v5, v{X+4*i+d}, s52, v5')
            e(f'v_dot2_f32_bf16 v6, v{X+4*i+d}, v{X+4*i+d}, v6')
    xsum_groups(e, 5, 7)
    xsum_groups(e, 6, 8)
    e(f's_lshl_b32 s52, s{sW}, 7')
    e('v_lshlrev_b32 v7, 3, v2')
    e('v_add_u32 v7, s52, v7')
    e('v_mov_b32 v8, v5')
    e('v_mov_b32 v9, v6')
    e.ds('ds_write_b64 v7, v[8:9] offset:28672')
    e.wait_ds_all()
    stamp(e, 'A.xstaged')
    e.barrier()
    e('v_mov_b32 v250, 0')
    nonce_tok = e.vm(f'buffer_load_dword v251, v250, {SDBG}, 0 offen sc1')
    e('v_and_b32 v4, 31, v1')
    e('v_lshrrev_b32 v5, 4, v4')
    e('v_lshlrev_b32 v5, 8, v5')
    e('v_lshlrev_b32 v6, 3, v2')
    e('v_add_u32 v5, v5, v6')
    t0 = e.ds('ds_read_b64 v[6:7], v5 offset:28672')
    t1 = e.ds('ds_read_b64 v[8:9], v5 offset:28800')
    xt = {}
    order = [(half, t, mt) for half in range(2) for t in range(7) for mt in range(2)]
    def xreg(mt, tt): return X + (mt * 14 + tt) * 4
    nread = [0]
    def issue_x():
        half, t, mt = order[nread[0]]
        tt = t + 7 * half
        xt[(half, t, mt)] = e.ds(f'ds_read_b128 {vr(xreg(mt,tt),4)}, v11 offset:{(mt*14+tt)*1024}')
        nread[0] += 1
    for _ in range(8): issue_x()
    e.wait_ds(t1)
    e('v_add_f32 v6, v6, v8')
    e('v_add_f32 v7, v7, v9')
    e(f'v_mul_f32 v6, {lit(1.0/448)}, v6')
    e(f'v_mul_f32 v7, {lit(1.0/448)}, v7')
    e('v_fma_f32 v7, -v6, v6, v7')
    e('v_max_f32 v7, 0, v7')
    e(f'v_add_f32 v7, {lit(1e-5)}, v7')
    e('v_rsq_f32 v7, v7')
    e(f's_lshl_b32 s52, s{sW}, 7')
    e('v_lshlrev_b32 v8, 2, v4')
    e('v_add_u32 v9, s52, v8')
    e.ds('ds_write_b32 v9, v7 offset:29184')
    nm = L('nomean')
    e(f's_or_b32 s52, s{sGRP}, s{sW}')
    e('s_cmp_lg_u32 s52, 0')
    e(f's_cbranch_scc1 {nm}')
    e(f's_lshl_b32 s52, s{sB}, 7')
    e(f's_add_u32 s52, s52, 0x{ST1_OFF:x}')
    e(f'buffer_store_dword v6, v8, {SWS}, s52 offen sc1')
    e.label(nm)
    e(f's_lshl_b32 s52, s{sW}, 7')
    e('v_lshlrev_b32 v9, 4, v3')
    e('v_add_u32 v9, s52, v9')
    RR = 240
    tr0 = e.ds(f'ds_read_b128 {vr(RR,4)}, v9 offset:29184')
    tr1 = e.ds(f'ds_read_b128 {vr(RR+4,4)}, v9 offset:29248')
    def acc(mt, c, half): return ACC + ((mt * 2 + c) * 2 + half) * 4
    for (half, t, mt) in order:
        if nread[0] < len(order): issue_x()
        e.wait_ds(xt[(half, t, mt)])
        tt = t + 7 * half
        for c in range(2):
            a = acc(mt, c, half)
            e(f'v_mfma_f32_16x16x32_bf16 {vr(a,4)}, {vr(xreg(mt,tt),4)}, {vr(TA+(t*2+c)*4,4)}, {"0" if t == 0 else vr(a,4)}')
    e.wait_ds(tr1)
    stamp(e, 'A.mfma')
    BF = X; TMP = X + 8
    for c in range(2):
        for mt in range(2):
            for r in range(4): e(f'v_fma_f32 v{TMP+mt*4+r}, v{acc(mt,c,1)+r}, s58, v{acc(mt,c,0)+r}')
            for r in range(4): e(f'v_mul_f32 v{TMP+mt*4+r}, v{TMP+mt*4+r}, v{RR+mt*4+r}')
        for mt in range(2):
            for i in range(2):
                e(f'v_cvt_pk_bf16_f32 v{BF+c*4+mt*2+i}, v{TMP+mt*4+2*i}, v{TMP+mt*4+2*i+1}')
    TT = X + 16
    for mt in range(2):
        C, Sp, Sn = FP + mt * 12, FP + mt * 12 + 4, FP + mt * 12 + 8
        e(f'v_mfma_f32_16x16x32_bf16 {vr(TT+mt*8,4)}, {vr(C,4)}, {vr(BF,4)}, 0')
        e(f'v_mfma_f32_16x16x32_bf16 {vr(TT+mt*8+4,4)}, {vr(Sn,4)}, {vr(BF,4)}, 0')
        e(f'v_mfma_f32_16x16x32_bf16 {vr(TT+mt*8,4)}, {vr(Sp,4)}, {vr(BF+4,4)}, {vr(TT+mt*8,4)}')
        e(f'v_mfma_f32_16x16x32_bf16 {vr(TT+mt*8+4,4)}, {vr(C,4)}, {vr(BF+4,4)}, {vr(TT+mt*8+4,4)}')
    e('s_mov_b32 s52, %d' % (4 * 57344))
    e('v_mul_lo_u32 v4, v3, s52')
    e('v_lshlrev_b32 v5, 2, v2')
    e('v_add_u32 v4, v4, v5')
    e('s_lshl_b32 s52, s56, 12')
    e(f's_lshl_b32 s53, s{sB}, 6')
    e('s_add_u32 s52, s52, s53')
    OUT = X + 40
    for mt in range(2):
        for r in range(4): e(f'v_cvt_pk_bf16_f32 v{OUT+mt*4+r}, v{TT+mt*8+r}, v{TT+mt*8+4+r}')
    ns = L('nostoreA')
    e('s_cmp_ge_u32 s56, 14')
    e(f's_cbranch_scc1 {ns}')
    for mt in range(2):
        for r in range(4):
            e(f's_add_u32 s53, s52, {T1_OFF + (16*mt+r)*57344}')
            e(f'buffer_store_dword v{OUT+mt*4+r}, v4, {SWS}, s53 offen sc1')
    e.label(ns)
    stamp(e, 'A.stored')
    e.wait_vm_all()
    sk, lp, dn = L('nsk'), L('nlp'), L('ndn')
    e(f's_cmp_lg_u32 s{sW}, 0')
    e(f's_cbranch_scc1 {sk}')
    e(f's_mov_b32 s{sSPIN}, 0')
    e.label(lp)
    e(f'v_readfirstlane_b32 s{sNONCE}, v251')
    e('s_nop 1')
    e(f's_cmp_lg_u32 s{sNONCE}, 0')
    e(f's_cbranch_scc1 {dn}')
    e(f'buffer_load_dword v251, v250, {SDBG}, 0 offen sc1')
    e('s_waitcnt vmcnt(0)')
    e(f's_add_u32 s{sSPIN}, s{sSPIN}, 1')
    e(f's_cmp_lt_u32 s{sSPIN}, {MAXSPIN}')
    e(f's_cbranch_scc1 {lp}')
    e.label(dn)
    e.label(sk)
    stamp(e, 'A.drained')
    signal(e, 0)

def phase_p2(e):
    e.c('======== P2 (w2 re-layout)')
    done = L('p2done')
    e('s_cmp_ge_u32 s2, 252')
    e(f's_cbranch_scc1 {done}')
    e('s_sub_u32 s56, s2, 224')
    e('s_waitcnt vmcnt(0)')
    e.barrier()
    e.vm_issued = e.vm_done = 0
    e('s_mul_i32 s52, s56, 57344')
    e('v_lshlrev_b32 v4, 4, v0')
    toks = []
    for i in range(14):
        e(f's_add_u32 s53, s52, {i*4096}')
        toks.append(e.vm(f'buffer_load_dwordx4 {vr(16+4*i,4)}, v4, {SW2}, s53 offen'))
    for i in range(14):
        e(f'v_add_u32 v5, {i*256}, v0')
        e('v_mul_u32_u24 v6, 18725, v5')
        e('v_lshrrev_b32 v6, 20, v6')
        e('v_lshlrev_b32 v6, 5, v6')
        e('v_lshlrev_b32 v5, 4, v5')
        e(f'v_add_u32 v{80+i}, v5, v6')
        e(f'v_add_u32 v{80+i}, {LDS_STAGE}, v{80+i}')
    stamp(e, 'P2.issued')
    for i in range(14):
        e.wait_vm(toks[i])
        e.ds(f'ds_write_b128 v{80+i}, {vr(16+4*i,4)}')
    e.wait_ds_all()
    stamp(e, 'P2.lds')
    e.barrier()
    e('v_lshrrev_b32 v4, 1, v3')
    e('v_lshlrev_b32 v4, 2, v4')
    e('v_lshrrev_b32 v5, 2, v2')
    e('v_add_u32 v4, v4, v5')
    e(f's_lshl_b32 s53, s{sW}, 4')
    e('v_add_u32 v4, s53, v4')
    e('v_mul_u32_u24 v4, 928, v4')
    e('v_and_b32 v5, 1, v3')
    e('v_lshlrev_b32 v5, 4, v5')
    e('v_add_u32 v4, v4, v5')
    e('v_and_b32 v5, 1, v2')
    e('v_lshlrev_b32 v5, 3, v5')
    e('v_add_u32 v4, v4, v5')
    e('v_bfe_u32 v5, v2, 1, 1')
    e('v_mul_u32_u24 v5, 448, v5')
    e('v_add_u32 v4, v4, v5')
    e(f'v_add_u32 v4, {LDS_STAGE}, v4')
    e('v_lshlrev_b32 v5, 4, v1')
    for j in range(14):
        R = 16 + 4 * j
        e.ds(f'ds_read_b64_tr_b16 {vr(R,2)}, v4 offset:{32*j}')
        e.ds(f'ds_read_b64_tr_b16 {vr(R+2,2)}, v4 offset:{32*j + 8*928}')
    e.wait_ds_all()
    e('s_lshl_b32 s53, s56, 2')
    e(f's_add_u32 s53, s53, s{sW}')
    e('s_lshl_b32 s53, s53, 10')
    e(f's_add_u32 s53, s53, 0x{W2_OFF:x}')
    for j in range(14):
        e(f's_add_u32 s54, s53, {j*112*1024}')
        e.vm(f'buffer_store_dwordx4 {vr(16+4*j,4)}, v5, {SWS}, s54 offen sc1')
    stamp(e, 'P2.stored')
    e.label(done)
    e.wait_vm_all()
    stamp(e, 'P2.drained')
assert all(((p * 18725) >> 20) == p // 56 for p in range(3584)), "magic /56"

def phase_b(e):
    e.c('======== window 1 + phase B')
    e('s_and_b32 s56, s2, 7')
    e('s_lshr_b32 s57, s2, 3')
    e('s_mul_i32 s52, s57, 37')
    e('s_lshr_b32 s52, s52, 8')
    e('s_mul_i32 s53, s52, 7')
    e('s_sub_u32 s53, s57, s53')
    e('s_lshl_b32 s52, s52, 3')
    e('s_add_u32 s56, s56, s52')
    e('s_lshl_b32 s53, s53, 1')
    e(f's_lshr_b32 s54, s{sW}, 1')
    e('s_add_u32 s57, s53, s54')
    e('s_lshr_b32 s59, s53, 2')
    e(f's_and_b32 s58, s{sW}, 1')
    FC, FS, FN = 16, 32, 48
    TIN, BF, WR, WI, XA, YR, YI, YF = 64, 80, 96, 104, 112, 128, 136, 144
    e('s_cmp_lt_u32 s57, 7')
    e('s_cselect_b32 s52, 2, 1')
    e('s_cselect_b32 s53, 0, 7')
    e('s_sub_u32 s53, s57, s53')
    e('s_lshl_b32 s53, s53, 5')
    e('s_add_u32 s53, s53, s52')
    e('v_lshlrev_b32 v6, 1, v2')
    e('v_add_u32 v6, s53, v6')
    e('v_lshlrev_b32 v6, 1, v6')
    e('v_lshlrev_b32 v7, 7, v3')
    e('s_lshl_b32 s52, s58, 10')
    e('s_add_u32 s52, s52, s56')
    e('v_add_u32 v7, s52, v7')
    e('v_mul_u32_u24 v7, 450, v7')
    e('v_add_u32 v6, v6, v7')
    wtok = {}
    for mtl in range(2):
        for r in range(4):
            e(f's_mov_b32 s52, {(16*mtl+r)*14400}')
            e.vm(f'buffer_load_short_d16_hi v{WR+mtl*4+r}, v6, {SWR}, s52 offen')
            wtok[(mtl, r)] = e.vm(f'buffer_load_short_d16_hi v{WI+mtl*4+r}, v6, {SWI}, s52 offen')
    CO, SI, TH = 160, 176, 192
    groups = []
    main = []
    em = main.append
    em('s_lshl_b32 s52, s58, 5')
    em('v_add_u32 v8, s52, v2')
    em('v_cvt_f32_u32 v8, v8')
    em(f'v_mul_f32 v8, {lit(1.0/64)}, v8')
    em('v_lshlrev_b32 v9, 2, v3')
    for tt in range(2):
        em(f's_xor_b32 s52, s58, {tt}')
        em('s_lshl_b32 s52, s52, 5')
        em('v_add_u32 v10, s52, v9')
        em('v_cvt_f32_u32 v10, v10')
        em('v_mul_f32 v10, v10, v8')
        for j in range(8):
            cst = 16 * (j >> 2) + (j & 3)
            if cst == 0: em(f'v_mov_b32 v{TH+j}, v10')
            else: em(f'v_fmamk_f32 v{TH+j}, v8, {lit(float(cst))}, v10')
        for j in range(8): em(f'v_cos_f32 v{CO+tt*8+j}, v{TH+j}')
        for j in range(8): em(f'v_sin_f32 v{SI+tt*8+j}, v{TH+j}')
    def rot(kind, t, j, mt):
        qt = (mt * (j & 3)) & 3
        c, s = f'v{CO+t*8+j}', f'v{SI+t*8+j}'
        if kind == 'C': return [c, '-' + s, '-' + c, s][qt]
        if kind == 'S': return [s, c, '-' + s, '-' + c][qt]
        if kind == 'N': return ['-' + s, '-' + c, s, c][qt]
    for kind, base in (('C', FC), ('S', FS), ('N', FN)):
        for mtl in range(2):
            for tt in range(2):
                for i in range(4):
                    em(f'v_cvt_pk_bf16_f32 v{base+(mtl*2+tt)*4+i}, {rot(kind,tt,2*i,mtl)}, {rot(kind,tt,2*i+1,mtl)}')
    emit_interleaved(e, main, groups)
    e('s_mul_i32 s60, s56, 14')
    e('s_add_u32 s60, s60, s57')
    e('s_lshl_b32 s60, s60, 12')
    e(f's_add_u32 s60, s60, 0x{T1_OFF:x}')
    e('v_lshlrev_b32 v11, 8, v3')
    e('v_lshlrev_b32 v10, 2, v2')
    e('v_add_u32 v11, v11, v10')
    stamp(e, 'W1.ready')
    def idx(e):
        e('v_and_b32 v5, 7, v1')
        e('v_lshrrev_b32 v6, 3, v1')
        e('v_lshlrev_b32 v6, 5, v6')
        e('v_add_u32 v5, v5, v6')
        e('s_lshl_b32 s53, s59, 3')
        e('v_add_u32 v5, s53, v5')
        e('v_lshlrev_b32 v5, 6, v5')
    poll(e, 0, 64, idx)
    stamp(e, 'B.go')
    tin = {}
    for tt in range(2):
        e(f's_xor_b32 s52, s58, {tt}')
        e('s_lshl_b32 s52, s52, 11')
        e('s_add_u32 s52, s52, s60')
        for j in range(8):
            off = (16 * (j >> 2) + (j & 3)) * 64
            tin[(tt, j)] = e.vm(f'buffer_load_dword v{TIN+tt*8+j}, v11, {SWS}, s52 offen offset:{off} sc1')
    p1_finish(e)
    stamp(e, 'B.p1')
    e('s_mov_b32 s52, 0x05040100')
    e('s_mov_b32 s53, 0x07060302')
    for tt in range(2):
        e.wait_vm(tin[(tt, 7)])
        for i in range(4):
            e(f'v_perm_b32 v{BF+tt*4+i}, v{TIN+tt*8+2*i+1}, v{TIN+tt*8+2*i}, s52')
            e(f'v_perm_b32 v{BF+8+tt*4+i}, v{TIN+tt*8+2*i+1}, v{TIN+tt*8+2*i}, s53')
    stamp(e, 'B.loaded')
    def fr(base, mtl, tt): return vr(base + (mtl * 2 + tt) * 4, 4)
    def mm(d, a, b, first): e(f'v_mfma_f32_16x16x32_bf16 {vr(d,4)}, {a}, {vr(b,4)}, {"0" if first else vr(d,4)}')
    BRE = lambda t: BF + t * 4
    BIM = lambda t: BF + 8 + t * 4
    for step in range(4):
        for mtl in range(2):
            xr, xi = XA + mtl * 8, XA + mtl * 8 + 4
            tt = step & 1
            if step < 2:
                mm(xr, fr(FC, mtl, tt), BRE(tt), step == 0); mm(xi, fr(FN, mtl, tt), BRE(tt), step == 0)
            else:
                mm(xr, fr(FS, mtl, tt), BIM(tt), False); mm(xi, fr(FC, mtl, tt), BIM(tt), False)
    e.wait_vm(wtok[(1, 3)])
    for mtl in range(2):
        for r in range(4):
            xr, xi = XA + mtl * 8 + r, XA + mtl * 8 + 4 + r
            wr, wi = WR + mtl * 4 + r, WI + mtl * 4 + r
            e(f'v_mul_f32 v{YR+mtl*4+r}, v{xr}, v{wr}')
            e(f'v_mul_f32 v{YI+mtl*4+r}, v{xr}, v{wi}')
            e(f'v_fma_f32 v{YR+mtl*4+r}, -v{xi}, v{wi}, v{YR+mtl*4+r}')
            e(f'v_fma_f32 v{YI+mtl*4+r}, v{xi}, v{wr}, v{YI+mtl*4+r}')
    for c, src in ((0, YR), (1, YI)):
        for i in range(4):
            e(f'v_cvt_pk_bf16_f32 v{YF+c*8+i}, v{src+(i>>1)*4+2*(i&1)}, v{src+(i>>1)*4+2*(i&1)+1}')
    e('v_lshlrev_b32 v10, 4, v1')
    e(f's_lshl_b32 s52, s{sW}, 11')
    e('v_add_u32 v12, s52, v10')
    e(f's_xor_b32 s52, s{sW}, 1')
    e('s_lshl_b32 s52, s52, 11')
    e('v_add_u32 v13, s52, v10')
    e.ds(f'ds_write_b128 v12, {vr(YF,4)}')
    e.ds(f'ds_write_b128 v12, {vr(YF+8,4)} offset:1024')
    e.wait_ds_all()
    e.barrier()
    p0 = e.ds(f'ds_read_b128 {vr(YF+4,4)}, v13')
    p1_ = e.ds(f'ds_read_b128 {vr(YF+12,4)}, v13 offset:1024')
    YRE = lambda t: YF + t * 4
    YIM = lambda t: YF + 8 + t * 4
    for mtl in range(2):
        xr, xi = XA + mtl * 8, XA + mtl * 8 + 4
        mm(xr, fr(FC, mtl, 0), YRE(0), True);  mm(xi, fr(FS, mtl, 0), YRE(0), True)
        mm(xr, fr(FN, mtl, 0), YIM(0), False); mm(xi, fr(FC, mtl, 0), YIM(0), False)
    e.wait_ds(p1_)
    for mtl in range(2):
        xr, xi = XA + mtl * 8, XA + mtl * 8 + 4
        mm(xr, fr(FC, mtl, 1), YRE(1), False); mm(xi, fr(FS, mtl, 1), YRE(1), False)
        mm(xr, fr(FN, mtl, 1), YIM(1), False); mm(xi, fr(FC, mtl, 1), YIM(1), False)
    e('s_mov_b32 s52, %d' % (4 * 28672))
    e('v_mul_lo_u32 v4, v3, s52')
    e('v_lshlrev_b32 v5, 2, v2')
    e('v_add_u32 v4, v4, v5')
    e('s_lshl_b32 s52, s57, 11')
    e('s_lshl_b32 s53, s56, 6')
    e('s_add_u32 s52, s52, s53')
    e(f's_mul_i32 s53, s58, {32*28672}')
    e('s_add_u32 s52, s52, s53')
    last = None
    for mtl in range(2):
        for r in range(4): e(f'v_cvt_pk_bf16_f32 v{TIN+mtl*4+r}, v{XA+mtl*8+r}, v{XA+mtl*8+4+r}')
        for r in range(4):
            e(f's_add_u32 s53, s52, {T2_OFF + (16*mtl+r)*28672}')
            last = e.vm(f'buffer_store_dword v{TIN+mtl*4+r}, v4, {SWS}, s53 offen sc1')
    stamp(e, 'B.stored')
    e.wait_vm_all()
    stamp(e, 'B.drained')

def phase_c(e):
    e.c('======== window 2 + phase C')
    e(f's_lshl_b32 s56, s{sGRP}, 2')
    e(f's_add_u32 s56, s56, s{sW}')
    e('s_min_u32 s57, s56, 13')
    G, TC, AIN, VA, PA, XR = 16, 48, 104, 136, 152, 168
    MEAN = XR + 8
    e('v_lshlrev_b32 v5, 6, v2')
    e(f'v_add_u32 v5, s{sB}, v5')
    e('v_mul_u32_u24 v5, 896, v5')
    e('v_lshlrev_b32 v6, 3, v3')
    e('v_add_u32 v5, v5, v6')
    e('s_lshl_b32 s52, s57, 5')
    e('v_add_u32 v5, s52, v5')
    for nt in range(2):
        for pm in range(2):
            e(f's_mov_b32 s52, {nt*16*64*896}')
            e.vm(f'buffer_load_dwordx2 {vr(XR+(nt*2+pm)*2,2)}, v5, {SX}, s52 offen offset:{448*pm}')
    groups = []
    main = []
    em = main.append
    TH, CO, SI = 180, 188, 196
    cscale = 2.0 / (2048.0 * 448.0)
    em('v_cvt_f32_u32 v7, v3')
    for nt in range(2):
        em(f'v_add_u32 v8, {16*nt}, v2')
        em('v_lshlrev_b32 v8, 6, v8')
        em(f'v_add_u32 v8, s{sB}, v8')
        em('v_cvt_f32_u32 v8, v8')
        em(f'v_mul_f32 v8, {lit(1.0/2048)}, v8')
        em('v_mul_f32 v9, v7, v8')
        for t in range(2):
            for ii in range(4):
                cst = 16 * t + 4 * ii
                if cst == 0: em(f'v_mov_b32 v{TH+t*4+ii}, v9')
                else: em(f'v_fmamk_f32 v{TH+t*4+ii}, v8, {lit(float(cst))}, v9')
        for j in range(8): em(f'v_cos_f32 v{CO+j}, v{TH+j}')
        for j in range(8): em(f'v_sin_f32 v{SI+j}, v{TH+j}')
        for j in range(8): em(f'v_mul_f32 v{CO+j}, {lit(cscale)}, v{CO+j}')
        for j in range(8): em(f'v_mul_f32 v{SI+j}, {lit(cscale)}, v{SI+j}')
        for t in range(2):
            for ii in range(4):
                j = t * 4 + ii
                em(f'v_cvt_pk_bf16_f32 v{G+((0*2+t)*2+nt)*4+ii}, v{CO+j}, -v{SI+j}')
                em(f'v_cvt_pk_bf16_f32 v{G+((1*2+t)*2+nt)*4+ii}, v{SI+j}, v{CO+j}')
    em('s_lshl_b32 s52, s57, 4')
    em('v_add_u32 v8, s52, v2')
    em('v_cvt_f32_u32 v8, v8')
    em(f'v_mul_f32 v8, {lit(1.0/448)}, v8')
    em('v_lshlrev_b32 v9, 3, v3')
    em('v_cvt_f32_u32 v9, v9')
    em('v_mul_f32 v9, v9, v8')
    em('v_cmp_eq_u32 vcc, 3, v3')
    em('v_mov_b32 v10, 1.0')
    em('v_mov_b32 v11, 0.5')
    em('v_cndmask_b32 v10, v10, v11, vcc')
    CO2, SI2 = 204, 212
    em(f'v_mul_f32 v7, {lit(32.0)}, v8')
    for h in range(2):
        for j in range(4):
            cst = 2 * j + (2 if h == 0 else 1)
            em(f'v_fmamk_f32 v{TH+h*4+j}, v8, {lit(float(cst))}, v9')
    em('v_cos_f32 v12, v7')
    em('v_sin_f32 v13, v7')
    for j in range(8): em(f'v_cos_f32 v{CO+j}, v{TH+j}')
    for j in range(8): em(f'v_sin_f32_e64 v{SI+j}, -v{TH+j}')
    cur = (CO, SI); oth = (CO2, SI2)
    for kp in range(7):
        if kp < 6: rot8(em, cur[0], cur[1], oth[0], oth[1], 12, True)
        else:
            em(f'v_mul_f32 v{cur[0]+3}, v{cur[0]+3}, v10')
            em(f'v_mul_f32 v{cur[1]+3}, v{cur[1]+3}, v10')
        for h, kb in enumerate((kp, kp + 7)):
            em(f'v_cvt_pk_bf16_f32 v{TC+kb*4+0}, v{cur[0]+h*4+0}, v{cur[0]+h*4+1}')
            em(f'v_cvt_pk_bf16_f32 v{TC+kb*4+1}, v{cur[0]+h*4+2}, v{cur[0]+h*4+3}')
            em(f'v_cvt_pk_bf16_f32 v{TC+kb*4+2}, v{cur[1]+h*4+0}, v{cur[1]+h*4+1}')
            em(f'v_cvt_pk_bf16_f32 v{TC+kb*4+3}, v{cur[1]+h*4+2}, v{cur[1]+h*4+3}')
        cur, oth = oth, cur
    emit_interleaved(e, main, groups)
    e('v_lshlrev_b32 v12, 2, v1')
    stamp(e, 'W2.ready')
    def idx(e): e('v_lshlrev_b32 v5, 6, v1')
    poll(e, 1, 256, idx)
    stamp(e, 'C.go')
    w13_setup(e)
    WG = w13_load_groups()
    wgi = [0]
    def wload(n):
        for _ in range(n):
            if wgi[0] < len(WG):
                emit_groups(e, [WG[wgi[0]]]); wgi[0] += 1
    atok = {}
    for i in range(4):
        e(f's_add_u32 s52, s{sW}, {4*i}')
        e('s_min_u32 s52, s52, 13')
        e(f's_mul_i32 s53, s{sB}, 14')
        e('s_add_u32 s52, s52, s53')
        e('s_lshl_b32 s52, s52, 11')
        e(f's_add_u32 s52, s52, 0x{T2_OFF:x}')
        for t in range(2):
            for ii in range(4):
                atok[(i, t, ii)] = e.vm(f'buffer_load_dword v{AIN+i*8+t*4+ii}, v12, {SWS}, s52 offen offset:{(16*t+4*ii)*64} sc1')
    e('v_lshlrev_b32 v6, 2, v2')
    e(f's_lshl_b32 s52, s{sB}, 7')
    e(f's_add_u32 s52, s52, 0x{ST1_OFF:x}')
    mtok = [e.vm(f'buffer_load_dword v{MEAN+nt}, v6, {SWS}, s52 offen offset:{64*nt} sc1') for nt in range(2)]
    e('v_lshlrev_b32 v11, 4, v1')
    e(f's_lshl_b32 s52, s{sW}, 11')
    e('v_add_u32 v12, s52, v11')
    PK = 204
    for i in range(4):
        e.wait_vm(atok[(i, 1, 3)])
        if i == 0: stamp(e, 'C.loaded')
        for nt in range(2):
            for out in range(2):
                d = VA + (out * 2 + nt) * 4
                e(f'v_mfma_f32_16x16x32_bf16 {vr(d,4)}, {vr(AIN+i*8,4)}, {vr(G+((out*2+0)*2+nt)*4,4)}, 0')
        for nt in range(2):
            for out in range(2):
                d = VA + (out * 2 + nt) * 4
                e(f'v_mfma_f32_16x16x32_bf16 {vr(d,4)}, {vr(AIN+i*8+4,4)}, {vr(G+((out*2+1)*2+nt)*4,4)}, {vr(d,4)}')
        sk = L('skip3')
        if i == 3:
            e(f's_cmp_ge_u32 s{sW}, 2')
            e(f's_cbranch_scc1 {sk}')
        for nt in range(2):
            p = PK + nt * 4 + (i & 1) * 8
            vre, vim = VA + (0 * 2 + nt) * 4, VA + (1 * 2 + nt) * 4
            e(f'v_cvt_pk_bf16_f32 v{p+0}, v{vre+0}, v{vre+1}')
            e(f'v_cvt_pk_bf16_f32 v{p+1}, v{vre+2}, v{vre+3}')
            e(f'v_cvt_pk_bf16_f32 v{p+2}, v{vim+0}, v{vim+1}')
            e(f'v_cvt_pk_bf16_f32 v{p+3}, v{vim+2}, v{vim+3}')
            e.ds(f'ds_write_b128 v12, {vr(p,4)} offset:{(4*i*2+nt)*1024}')
        if i == 3: e.label(sk)
        wload(OPT['st1'])
    e.wait_ds_all()
    stamp(e, 'C.st1')
    e.barrier()
    VB = 220
    order = [(kb, nt) for kb in range(14) for nt in range(2)]
    tok = {}
    nread = [0]
    def issue():
        kb, nt = order[nread[0]]
        tok[nread[0]] = e.ds(f'ds_read_b128 {vr(VB+(nread[0]%8)*4,4)}, v11 offset:{(kb*2+nt)*1024}')
        nread[0] += 1
    for _ in range(7): issue()
    for idx_, (kb, nt) in enumerate(order):
        e.wait_ds(tok[idx_])
        par = 0 if kb < 7 else 1
        d = PA + (par * 2 + nt) * 4
        first = kb in (0, 7)
        e(f'v_mfma_f32_16x16x32_bf16 {vr(d,4)}, {vr(TC+kb*4,4)}, {vr(VB+(idx_%8)*4,4)}, {"0" if first else vr(d,4)}')
        if nread[0] < len(order): issue()
        if OPT['st2'] and idx_ % OPT['st2'] == OPT['st2'] - 1: wload(1)
    stamp(e, 'C.st2')
    e.wait_vm(mtok[1])
    H, HP, CP, SQ = 104, 120, 128, 180
    e('s_mov_b32 s52, 0xffff0000')
    for nt in range(2):
        pe, po = PA + nt * 4, PA + 8 + nt * 4
        for pm in range(2):
            xr = XR + (nt * 2 + pm) * 2
            for r in range(4):
                hv = H + (nt * 2 + pm) * 4 + r
                e(f'{"v_add_f32" if pm == 0 else "v_sub_f32"} v{hv}, v{pe+r}, v{po+r}')
                xv = 184 + r
                if r & 1: e(f'v_and_b32 v{xv}, s52, v{xr+(r>>1)}')
                else: e(f'v_lshlrev_b32 v{xv}, 16, v{xr+(r>>1)}')
            for r in range(4):
                hv = H + (nt * 2 + pm) * 4 + r
                e(f'v_add_f32 v{hv}, v{hv}, v{184+r}')
            for i in range(2):
                hv = H + (nt * 2 + pm) * 4 + 2 * i
                e(f'v_cvt_pk_bf16_f32 v{HP+nt*4+pm*2+i}, v{hv}, v{hv+1}')
        e(f'v_mov_b32 v{SQ+nt}, 0')
        for q in range(4):
            hp = HP + nt * 4 + q
            e(f'v_lshlrev_b32 v188, 16, v{hp}')
            e(f'v_and_b32 v189, s52, v{hp}')
            e(f'v_sub_f32 v188, v188, v{MEAN+nt}')
            e(f'v_sub_f32 v189, v189, v{MEAN+nt}')
            e(f'v_fma_f32 v{SQ+nt}, v188, v188, v{SQ+nt}')
            e(f'v_fma_f32 v{SQ+nt}, v189, v189, v{SQ+nt}')
            e(f'v_cvt_pk_bf16_f32 v{CP+nt*4+q}, v188, v189')
            wload(OPT['epi'])
    e('v_lshrrev_b32 v4, 1, v3')
    e('v_lshlrev_b32 v4, 10, v4')
    e('v_and_b32 v5, 1, v3')
    e('v_lshlrev_b32 v5, 9, v5')
    e('v_add_u32 v4, v4, v5')
    e('v_lshlrev_b32 v5, 4, v2')
    e('v_add_u32 v4, v4, v5')
    e(f's_mul_i32 s52, s{sB}, 28')
    e('s_lshl_b32 s53, s57, 1')
    e('s_add_u32 s52, s52, s53')
    e('s_lshl_b32 s52, s52, 10')
    ns, st = L('cnostore'), L('cstat')
    e('s_cmp_ge_u32 s56, 14')
    e(f's_cbranch_scc1 {ns}')
    e(f's_add_u32 s53, s52, 0x{HC_OFF:x}')
    e(f's_add_u32 s54, s52, 0x{HR_OFF:x}')
    for nt in range(2):
        e(f'buffer_store_dwordx4 {vr(CP+nt*4,4)}, v4, {SWS}, s53 offen offset:{256*nt} sc1')
        e(f'buffer_store_dwordx4 {vr(HP+nt*4,4)}, v4, {SWS}, s54 offen offset:{256*nt} sc1')
    e.label(ns)
    for nt in range(2): xsum_groups(e, SQ + nt, 190)
    e('s_cmp_lt_u32 s56, 14')
    e(f's_cbranch_scc1 {st}')
    e(f'v_mov_b32 v{SQ}, 0')
    e(f'v_mov_b32 v{SQ+1}, 0')
    e.label(st)
    e('v_cmp_le_u32 vcc, 16, v1')
    e(f'v_cndmask_b32 v{SQ}, v{SQ}, v{SQ+1}, vcc')
    e('v_lshlrev_b32 v5, 2, v1')
    e(f's_lshl_b32 s52, s{sB}, 11')
    e('s_lshl_b32 s53, s56, 7')
    e('s_add_u32 s52, s52, s53')
    e(f's_add_u32 s52, s52, 0x{ST2_OFF:x}')
    e('s_mov_b64 exec, 0xffffffff')
    last = e.vm(f'buffer_store_dword v{SQ}, v5, {SWS}, s52 offen sc1')
    e('s_mov_b64 exec, -1')
    stamp(e, 'C.stored')
    wload(OPT['post'])
    e.wait_vm(last)
    stamp(e, 'C.drained')
    signal(e, 2)
    global W13_PENDING
    W13_PENDING = (WG, wgi)

def w2reg(mi, s_):
    o = 2 * s_ + mi
    if o < 23: return vr(160 + 4 * o, 4), None
    if o < 31: return ar(224 + 4 * (o - 23), 4), None
    oo = o - 31
    return ar(((oo & 1) * 28 + (oo >> 1)) * 4, 4), (oo & 1, oo >> 1)

def phase_g(e):
    e.c('======== window 3 + G1')
    WG, wgi = W13_PENDING
    wtok = {}
    for _ in range(min(OPT['w3'], len(WG) - wgi[0])):
        wtok[wgi[0]] = emit_groups(e, [WG[wgi[0]]]); wgi[0] += 1
    e('v_lshlrev_b32 v4, 4, v1')
    e(f's_lshl_b32 s56, s{sC}, 3')
    e(f's_lshl_b32 s52, s{sW}, 1')
    e('s_add_u32 s56, s56, s52')
    e(f's_lshl_b32 s57, s{sR}, 2')
    e('s_and_b32 s58, s2, 7')
    e('s_lshr_b32 s59, s2, 3')
    e('s_mul_i32 s52, s59, 37')
    e('s_lshr_b32 s52, s52, 8')
    e('s_mul_i32 s53, s52, 7')
    e('s_sub_u32 s59, s59, s53')
    e('s_lshl_b32 s52, s52, 3')
    e('s_add_u32 s58, s58, s52')
    e(f's_mul_i32 s52, s{sW}, 28')
    e(f's_and_b32 s54, s{sW}, 1')
    for mi in range(2):
        e(f's_xor_b32 s53, s54, {mi}')
        e('s_lshl_b32 s55, s59, 1')
        e('s_add_u32 s53, s53, s55')
        e('s_mul_i32 s53, s53, 112')
        e('s_add_u32 s53, s53, s52')
        e('s_lshl_b32 s53, s53, 10')
        e(f's_add_u32 s{60+mi}, s53, 0x{W2_OFF:x}')
    def grp_off(dst, g):
        if not OPT['g2rot']: return [f's_mov_b32 s{dst}, {g*4096}']
        return [f's_add_u32 s{dst}, s59, {g}', f's_cmp_ge_u32 s{dst}, 7', f's_cselect_b32 s55, 7, 0',
                f's_sub_u32 s{dst}, s{dst}, s55', f's_lshl_b32 s{dst}, s{dst}, 12']
    def w2load(o):
        s_, mi = o >> 1, o & 1
        reg, dep = w2reg(mi, s_)
        pre = []
        if s_ % 4 == 0 and mi == 0:
            pre = grp_off(62, s_ // 4) + ['s_add_u32 s63, s61, s62', 's_add_u32 s62, s60, s62']
        return pre + [('vm', f'buffer_load_dwordx4 {reg}, v4, {SWS}, s{62+mi} offen offset:{(s_%4)*1024} sc1')]
    def idx(e):
        e('v_lshrrev_b32 v5, 2, v1')
        e('v_add_u32 v5, s57, v5')
        e('v_and_b32 v6, 7, v5')
        e('v_lshrrev_b32 v5, 3, v5')
        e('v_lshlrev_b32 v5, 5, v5')
        e('v_add_u32 v5, v5, v6')
        e('v_and_b32 v6, 3, v1')
        e('v_lshlrev_b32 v6, 3, v6')
        e('v_add_u32 v5, v5, v6')
        e('v_lshlrev_b32 v5, 6, v5')
        idxw(e, 16)
    def idxw(e, first):
        e(f'v_add_u32 v6, {208 if first == 16 else 224}, v1')
        e('v_lshlrev_b32 v6, 6, v6')
        e(f'v_add_u32 v6, {2*0x40000}, v6')
        if first:
            e(f'v_cmp_le_u32 vcc, {first}, v1')
            e('v_cndmask_b32 v5, v5, v6, vcc')
        else:
            e('v_mov_b32 v5, v6')
    e(f's_cmp_ge_u32 s{sC}, 14')
    e('s_cbranch_scc1 L_g2only')
    poll(e, 2, 44, idx)
    stamp(e, 'G1.go')
    ACC, BR, RRG, T = 64, 16, 48, 128
    ST = T
    dtok = {}
    e(f's_mul_i32 s96, s{sW}, 7168')
    e(f's_add_u32 s98, s{sR}, s{sW}')
    e('s_and_b32 s98, s98, 3')
    e('s_mul_i32 s98, s98, 7168')
    def hc_groups(nt):
        gs = []
        for i in range(7):
            g = []
            if i == 0:
                g += [f's_add_u32 s97, s57, {nt}', 's_mul_i32 s97, s97, 28672', 's_add_u32 s97, s97, s98', f's_add_u32 s97, s97, 0x{HC_OFF:x}']
            if i == 4: g += ['s_add_u32 s97, s97, 4096']
            if i in (0, 4): g += [f's_add_u32 m0, s96, {nt*28672 + (4096 if i == 4 else 0)}']
            g.append(('vm', f'buffer_load_dwordx4 v4, {SWS}, s97 offen offset:{(i%4)*1024} sc1 lds', ('hc', nt)))
            gs.append(g)
        return gs
    STK = []
    def emit_op(op):
        if isinstance(op, tuple) and op[0] == 'ds':
            STK.append(e.ds(op[1])); return None
        if isinstance(op, tuple) and op[0] == 'dswait':
            e.wait_ds(STK[op[1] * 8 + 7]); return None
        if isinstance(op, tuple):
            t = e.vm(op[1])
            if len(op) > 2:
                if op[2][0] == 'hc': dtok[op[2][1]] = t
                if op[2][0] == 'st': dtok['st'] = t
            return t
        e(op); return None
    for g in hc_groups(0):
        for op in g: emit_op(op)
    e(f's_add_u32 s54, s57, s{sW}')
    e('s_lshl_b32 s54, s54, 11')
    e(f's_add_u32 s54, s54, 0x{ST2_OFF:x}')
    e(f's_lshl_b32 s55, s{sW}, 11')
    e(f's_add_u32 m0, s55, {LDS_STATS}')
    e.vm(f'buffer_load_dwordx4 v4, {SWS}, s54 offen sc1 lds')
    dtok[0] = e.vm(f'buffer_load_dwordx4 v4, {SWS}, s54 offen offset:1024 sc1 lds')
    while wgi[0] < len(WG):
        wtok[wgi[0]] = emit_groups(e, [WG[wgi[0]]]); wgi[0] += 1
    e('v_add_u32 v6, 57344, v4')
    e('v_and_b32 v5, 31, v1')
    e('v_lshlrev_b32 v5, 2, v5')
    e('v_lshrrev_b32 v7, 5, v1')
    e('v_lshlrev_b32 v7, 10, v7')
    e('v_add_u32 v5, v5, v7')
    e(f'v_add_u32 v5, {LDS_STATS}, v5')
    def stat_ops():
        ops = []
        for nt in range(4):
            b0 = ST + nt * 8
            for i in range(8): ops.append(('ds', f'ds_read_b32 v{b0+i}, v5 offset:{nt*2048 + i*128}'))
        for nt in range(4):
            b0 = ST + nt * 8
            ops.append(('dswait', nt))
            ops += [f'v_add_f32 v{b0}, v{b0}, v{b0+1}', f'v_add_f32 v{b0+2}, v{b0+2}, v{b0+3}', f'v_add_f32 v{b0+4}, v{b0+4}, v{b0+5}',
                    f'v_add_f32 v{b0+6}, v{b0+6}, v{b0+7}', f'v_add_f32 v{b0}, v{b0}, v{b0+2}', f'v_add_f32 v{b0+4}, v{b0+4}, v{b0+6}',
                    f'v_add_f32 v{b0}, v{b0}, v{b0+4}', f'v_mov_b32 v{b0+1}, v{b0}', f'v_mov_b32 v7, {lit(1e-5)}',
                    f'v_permlane32_swap_b32 v{b0+1}, v{b0}', f'v_add_f32 v{b0}, v{b0}, v{b0+1}',
                    f'v_fmamk_f32 v{RRG+4+nt}, v{b0}, {lit(1.0/448)}, v7', f'v_rsq_f32 v{b0}, v{RRG+4+nt}', 's_nop 0',
                    f'v_mul_f32 v{RRG+nt}, {lit(-1.4426950408889634)}, v{b0}']
        return ops
    def epi_half(nt, mi):
        ops = []
        a = ACC + ((nt & 1) * 2 + mi) * 16
        T0 = T + mi * 16
        for r in range(8): ops.append(f'v_mul_f32 v{T0+r}, v{a+r}, v{RRG+nt}')
        for r in range(8):
            ops.append(f'v_exp_f32 v{T0+r}, v{T0+r}')
            ops.append(f'v_mul_f32 v{T0+8+r}, v{a+r}, v{a+8+r}')
        for r in range(8): ops.append(f'v_fma_f32 v{T0+r}, v{T0+r}, v{RRG+4+nt}, v{RRG+4+nt}')
        for r in range(8): ops.append(f'v_rcp_f32 v{T0+r}, v{T0+r}')
        for r in range(8): ops.append(f'v_mul_f32 v{T0+8+r}, v{T0+8+r}, v{T0+r}')
        P = 56 + mi * 4
        for i in range(4): ops.append(f'v_cvt_pk_bf16_f32 v{P+i}, v{T0+8+2*i}, v{T0+8+2*i+1}')
        ops.append(f's_add_u32 s53, s99, {nt*112*1024 + mi*1024}')
        ops.append(('vm', f'buffer_store_dwordx4 {vr(P,4)}, v4, {SWS}, s53 offen sc1', ('store',)))
        return ops
    def epi_ops(nt): return epi_half(nt, 0) + epi_half(nt, 1)
    e('s_mul_i32 s99, s57, 112')
    e('s_add_u32 s99, s99, s56')
    e('s_lshl_b32 s99, s99, 10')
    e(f's_add_u32 s99, s99, 0x{HM_OFF:x}')
    bg = {0: hc_groups(1) + hc_groups(2), 1: hc_groups(3) + [w2load(o) for o in range(0, 9)],
          2: [w2load(o) for o in range(9, 25)], 3: [w2load(o) for o in range(25, 31)]}
    last_store = None
    next_late = 31
    for nt in range(4):
        e.wait_vm(dtok[nt])
        e.barrier()
        if nt == 0: stamp(e, 'G1.t0')
        fill = epi_ops(nt - 1) if nt > 0 else stat_ops()
        sttok = []
        fi = 0; gi = 0
        btok = {}
        n = [0]
        def issue():
            kap = n[0]
            base = 'v4' if nt < 2 else 'v6'
            off = ((nt & 1) * 28 + kap) * 1024
            btok[kap] = e.ds(f'ds_read_b128 {vr(BR+(kap%8)*4,4)}, {base} offset:{off}')
            n[0] += 1
        for _ in range(5): issue()
        nm = 0
        G_ = bg[nt]
        for kap in range(28):
            e.wait_ds(btok[kap])
            for mi in range(2):
                a = ACC + ((nt & 1) * 2 + mi) * 16
                if nt == 0 and (kap * 2 + mi) in wtok: e.wait_vm(wtok[kap * 2 + mi])
                e(f'v_mfma_f32_32x32x16_bf16 {vr(a,16)}, {ar((mi*28+kap)*4,4)}, {vr(BR+(kap%8)*4,4)}, {"0" if kap == 0 else vr(a,16)}')
                nm += 1
                if mi == 0 and n[0] < 28: issue()
                span = 24 if nt == 3 else 56
                want = (len(G_) * nm + span - 1) // span
                while gi < min(want, len(G_)):
                    for op in G_[gi]: emit_op(op)
                    gi += 1
                if nt == 3 and gi >= len(G_) and nm % 4 == 0 and next_late < 43:
                    dep = w2reg(next_late & 1, next_late >> 1)[1]
                    if dep[1] * 2 + dep[0] < nm:
                        for op in w2load(next_late): emit_op(op)
                        next_late += 1
                if nm > 3:
                    want = (len(fill) * (nm - 3) + 49) // 50
                    while fi < min(want, len(fill)):
                        t = emit_op(fill[fi]); fi += 1
        while fi < len(fill):
            emit_op(fill[fi]); fi += 1
        stamp(e, f'G1.tile{nt}')
    for op in epi_ops(3):
        t = emit_op(op)
        if isinstance(op, tuple): last_store = t
    stamp(e, 'G1.stored')
    while next_late < 56:
        for op in w2load(next_late): emit_op(op)
        next_late += 1
    e.wait_vm(last_store)
    stamp(e, 'G1.drained')
    signal(e, 3)
    e('s_cmp_ge_u32 s2, 224')
    e('s_cbranch_scc1 L_fin')
    e('s_branch L_g2')
    e.label('L_g2only')
    e('s_cmp_ge_u32 s2, 224')
    e('s_cbranch_scc1 L_fin')
    poll(e, 2, 28, lambda e_: idxw(e_, 0))
    for o in range(56):
        for op in w2load(o): e(op[1] if isinstance(op, tuple) else op)
    e.label('L_g2')
    e.c('======== G2')
    ACC2, BR2, HRR, NB = 16, 80, 152, 9
    e('s_lshl_b32 s57, s58, 1')
    e(f's_mul_i32 s52, s{sW}, 28')
    e(f's_lshr_b32 s54, s{sW}, 1')
    for ni in range(2):
        e(f's_xor_b32 s53, s54, {ni}')
        e('s_add_u32 s53, s53, s57')
        e('s_mul_i32 s53, s53, 112')
        e('s_add_u32 s53, s53, s52')
        e('s_lshl_b32 s53, s53, 10')
        e(f's_add_u32 s{88+ni}, s53, 0x{HM_OFF:x}')
    e('s_add_u32 s56, s54, s57')
    e('s_mul_i32 s52, s56, 28')
    e(f's_and_b32 s60, s{sW}, 1')
    e('s_lshl_b32 s53, s59, 1')
    e('s_add_u32 s60, s60, s53')
    e('s_lshl_b32 s53, s60, 1')
    e('s_add_u32 s52, s52, s53')
    e('s_lshl_b32 s52, s52, 10')
    e(f's_add_u32 s52, s52, 0x{HR_OFF:x}')
    e('s_mov_b32 s61, s52')
    def idx4(e):
        e('s_lshr_b32 s53, s58, 1')
        e('s_lshl_b32 s53, s53, 3')
        e('v_lshrrev_b32 v5, 1, v1')
        e('v_and_b32 v6, 1, v1')
        e('v_lshlrev_b32 v6, 7, v6')
        e('v_add_u32 v5, v5, v6')
        e('v_add_u32 v5, s53, v5')
        e('v_lshlrev_b32 v5, 6, v5')
    poll(e, 3, 14, idx4, preg=8)
    stamp(e, 'G2.go')
    tok = {}
    nl = [0]
    def issue2():
        i = nl[0]
        if i % 4 == 0:
            for op in grp_off(62, i // 4): e(op)
            e('s_add_u32 s63, s89, s62')
            e('s_add_u32 s62, s88, s62')
        o = (i % 4) * 1024
        slot = i % NB
        e.vm(f'buffer_load_dwordx4 {vr(BR2+slot*8,4)}, v4, {SWS}, s62 offen offset:{o} sc1')
        tok[i] = e.vm(f'buffer_load_dwordx4 {vr(BR2+slot*8+4,4)}, v4, {SWS}, s63 offen offset:{o} sc1')
        nl[0] += 1
    for _ in range(NB): issue2()
    htok = [e.vm(f'buffer_load_dwordx4 {vr(HRR+4*gg,4)}, v4, {SWS}, s61 offen offset:{1024*gg} sc1') for gg in range(2)]
    for i in range(28):
        e.wait_vm(tok[i])
        if i == 0: stamp(e, 'G2.first')
        slot = i % NB
        for mi in range(2):
            for ni in range(2):
                a = ACC2 + (mi * 2 + ni) * 16
                e(f'v_mfma_f32_32x32x16_bf16 {vr(a,16)}, {w2reg(mi,i)[0]}, {vr(BR2+slot*8+ni*4,4)}, {"0" if i == 0 else vr(a,16)}')
        if nl[0] < 28: issue2()
    stamp(e, 'G2.mfma')
    for k, (mi, ni) in enumerate(((1, 0), (0, 1), (1, 1))):
        e(f's_xor_b32 s52, s{sW}, {k+1}')
        e('s_mul_i32 s52, s52, 12288')
        e(f'v_add_u32 v{5+k}, s52, v4')
    for k, (mi, ni) in enumerate(((1, 0), (0, 1), (1, 1))):
        a = ACC2 + (mi * 2 + ni) * 16
        for qd in range(4):
            e.ds(f'ds_write_b128 v{5+k}, {vr(a+qd*4,4)} offset:{k*4096 + qd*1024}')
    e.wait_ds_all()
    e.barrier()
    e(f's_mul_i32 s52, s{sW}, 12288')
    e('v_add_u32 v5, s52, v4')
    R0 = 80
    for k in range(3):
        for qd in range(4):
            e.ds(f'ds_read_b128 {vr(R0+k*16+qd*4,4)}, v5 offset:{k*4096 + qd*1024}')
    e.wait_ds_all()
    stamp(e, 'G2.red')
    for r in range(16):
        e(f'v_add_f32 v{R0+r}, v{R0+r}, v{R0+16+r}')
        e(f'v_add_f32 v{R0+32+r}, v{R0+32+r}, v{ACC2+r}')
    for r in range(16): e(f'v_add_f32 v{R0+r}, v{R0+r}, v{R0+32+r}')
    e.wait_vm(htok[1])
    e('s_mov_b32 s52, 0xffff0000')
    PK = 32
    for i in range(8): e(f'v_cvt_pk_bf16_f32 v{PK+i}, v{R0+2*i}, v{R0+2*i+1}')
    for i in range(8):
        e(f'v_lshlrev_b32 v48, 16, v{PK+i}')
        e(f'v_and_b32 v49, s52, v{PK+i}')
        e(f'v_lshlrev_b32 v50, 16, v{HRR+i}')
        e(f'v_and_b32 v51, s52, v{HRR+i}')
        e('v_add_f32 v48, v48, v50')
        e('v_add_f32 v49, v49, v51')
        dst = {0: 40, 1: 41, 4: 42, 5: 43, 2: 44, 3: 45, 6: 46, 7: 47}[i]
        e(f'v_cvt_pk_bf16_f32 v{dst}, v48, v49')
    e('v_permlane32_swap_b32 v40, v42')
    e('v_permlane32_swap_b32 v41, v43')
    e('v_permlane32_swap_b32 v44, v46')
    e('v_permlane32_swap_b32 v45, v47')
    e('v_and_b32 v5, 31, v1')
    e('v_lshlrev_b32 v5, 6, v5')
    e('v_add_u32 v5, s56, v5')
    e('v_mul_u32_u24 v5, 896, v5')
    e('v_lshrrev_b32 v6, 5, v1')
    e('v_lshlrev_b32 v6, 4, v6')
    e('v_add_u32 v5, v5, v6')
    e('s_lshl_b32 s52, s60, 5')
    om = ['', ' sc1', ' nt', ' sc0 sc1'][OPT['outmod']]
    e(f'buffer_store_dwordx4 v[40:43], v5, {SOUT}, s52 offen{om}')
    e(f'buffer_store_dwordx4 v[44:47], v5, {SOUT}, s52 offen offset:448{om}')
    stamp(e, 'G2.end')

DBGOUT = False
def dbg_out(e):
    sk = L('dbo')
    e('s_waitcnt vmcnt(0)')
    e('s_memrealtime s[84:85]')
    e('s_memtime s[90:91]')
    e('s_waitcnt lgkmcnt(0)')
    e(f's_cmp_lg_u32 s{sW}, 0')
    e(f's_cbranch_scc1 {sk}')
    e('s_and_b32 s52, s2, 63')
    e('s_cmp_lg_u32 s52, 0')
    e(f's_cbranch_scc1 {sk}')
    e('s_lshr_b32 s52, s2, 6')
    e('s_lshl_b32 s52, s52, 4')
    e('s_add_u32 s52, s52, 16')
    e('s_sub_u32 s53, s84, s86')
    e('s_sub_u32 s54, s90, s82')
    e('v_mov_b32 v4, s53'); e('v_mov_b32 v5, s54'); e('v_mov_b32 v6, s86'); e('v_mov_b32 v7, s84')
    e('v_mov_b32 v8, 0')
    e('s_mov_b64 exec, 1')
    e(f'buffer_store_dwordx4 v[4:7], v8, {SDBG}, s52 offen sc1')
    e('s_mov_b64 exec, -1')
    e.label(sk)

def probe(e):
    sk = L('prb'); lp = L('prl')
    e('s_cmp_lg_u32 s2, 0')
    e(f's_cbranch_scc1 {sk}')
    e('s_waitcnt vmcnt(0)')
    e('s_memrealtime s[84:85]')
    e('s_waitcnt lgkmcnt(0)')
    if OPT['ppoint']: e('s_mov_b32 s84, s100')
    e('s_sub_u32 s84, s84, s86')
    e(f's_cmp_lt_u32 s84, {OPT["probe"]}')
    e(f's_cbranch_scc1 {sk}')
    e('s_mov_b32 s85, 0')
    e.label(lp)
    e('s_sleep 64')
    e('s_add_u32 s85, s85, 1')
    e('s_cmp_lt_u32 s85, 20')
    e(f's_cbranch_scc1 {lp}')
    e.label(sk)

def diag_dump(e):
    if OPT['probe']: probe(e)
    if DBGOUT: dbg_out(e)
    if not DIAG: return
    e.wait_vm_all()
    rstamp(e, 'rt_end')
    e('s_lshl_b32 s52, s2, 2')
    e(f's_add_u32 s52, s52, s{sW}')
    e('s_lshl_b32 s52, s52, 8')
    e(f's_add_u32 s52, s52, 0x{DIAG_OFF:x}')
    e('v_lshlrev_b32 v4, 2, v1')
    e(f'buffer_store_dword v255, v4, {SWS}, s52 offen')

def kernel():
    e = Emit()
    e.label(KN)
    e('s_cmp_ge_u32 s2, 256')
    e('s_cbranch_scc1 L_end')
    e('s_load_dwordx16 s[64:79], s[0:1], 0')
    e('s_load_dwordx4 s[80:83], s[0:1], 64')
    e('s_memrealtime s[86:87]')
    if DBGOUT: e('s_memtime s[82:83]')
    if DIAG: e('v_mov_b32 v255, 0')
    e('v_lshrrev_b32 v4, 6, v0')
    e('v_and_b32 v1, 63, v0')
    e(f'v_readfirstlane_b32 s{sW}, v4')
    e('v_and_b32 v2, 15, v0')
    e('v_bfe_u32 v3, v0, 4, 2')
    e(f's_and_b32 s{sB}, s2, 7')
    e('s_lshr_b32 s52, s2, 5')
    e('s_lshl_b32 s52, s52, 3')
    e(f's_add_u32 s{sB}, s{sB}, s52')
    e(f's_lshr_b32 s{sGRP}, s2, 3')
    e(f's_and_b32 s{sGRP}, s{sGRP}, 3')
    e('s_lshr_b32 s52, s2, 3')
    e(f's_and_b32 s{sR}, s52, 15')
    e('s_lshr_b32 s52, s52, 4')
    e(f's_and_b32 s{sC}, s2, 7')
    e(f's_lshl_b32 s{sC}, s{sC}, 1')
    e(f's_add_u32 s{sC}, s{sC}, s52')
    e(f's_getreg_b32 s{sREP}, hwreg(HW_REG_XCC_ID, 0, 3)')
    e(f's_lshl_b32 s{sREP}, s{sREP}, 14')
    e(f's_mov_b32 s{sNONCE}, 0')
    e('s_waitcnt lgkmcnt(0)')
    srd(e, S_X, 64, 1835008)
    if OPT['wsoff']:
        e(f's_add_u32 s82, s82, 0x{OPT["wsoff"]*0x100000:x}')
        e('s_addc_u32 s83, s83, 0')
    srd(e, S_WS, 82, WS_SIZE)
    srd(e, S_WR, 66, 2048 * 450)
    srd(e, S_WI, 68, 2048 * 450)
    srd(e, S_W1, 72, 448 * 3584)
    srd(e, S_W3, 74, 448 * 3584)
    srd(e, S_W2, 76, 1792 * 896)
    srd(e, S_OUT, 78, 1835008)
    srd(e, S_DBG, 80, 256)
    e('s_cmp_ge_u32 s2, 224')
    e(f's_cselect_b32 s{S_W1+2}, 0, s{S_W1+2}')
    e(f's_cselect_b32 s{S_W3+2}, 0, s{S_W3+2}')
    if DIAG:
        STAMPS.append('rt_start'); _stamp_n[0] += 1
        e('v_writelane_b32 v255, s86, 0')
    stamp(e, 'start')
    sk = L('nononce')
    e(f's_or_b32 s52, s2, s{sW}')
    e('s_cmp_lg_u32 s52, 0')
    e(f's_cbranch_scc1 {sk}')
    e('s_or_b32 s52, s86, 1')
    e('v_mov_b32 v4, s52')
    e('v_mov_b32 v5, 0')
    e('s_mov_b64 exec, 1')
    e(f'buffer_store_dword v4, v5, {SDBG}, 0 offen sc1')
    e('s_mov_b64 exec, -1')
    e.label(sk)
    phase_a(e)
    p2l, joinl, join2 = L('p2'), L('join'), L('join')
    e('s_cmp_ge_u32 s2, 224')
    e(f's_cbranch_scc1 {p2l}')
    sv_ds = (e.ds_issued, e.ds_done)
    phase_b(e)
    e(f's_branch {joinl}')
    e.label(p2l)
    signal(e, 1)
    phase_p2(e)
    signal(e, 4)
    e(f's_branch {join2}')
    e.label(joinl)
    signal(e, 1)
    e.label(join2)
    e.vm_issued = 0; e.vm_done = 0
    phase_c(e)
    phase_g(e)
    e.label('L_fin')
    diag_dump(e)
    e.label('L_end')
    e('s_endpgm')
    return e.out

def build():
    hdr = open('cdna_kernels/' + NAME + '.s.ref').read().split('; Override launch')[0]
    body = kernel()
    body, nn = hazard_pass(body)
    print(f'; {len(body)} lines, {nn} nops inserted', file=sys.stderr)
    lines = [hdr.rstrip('\n'),
             f'; @launch grid=(256,1,1) block=(256,1,1) lds={LDS_BYTES}',
             '.amdgcn_target "amdgcn-amd-amdhsa--gfx950"', '.text', f'.globl {KN}', '.p2align 8', f'.type {KN},@function']
    for ln in body: lines.append(ln if ln.endswith(':') else '    ' + ln)
    lines += ['.section .rodata,"a"', '.p2align 6', f'.amdhsa_kernel {KN}',
              '  .amdhsa_next_free_vgpr 512', '  .amdhsa_next_free_sgpr 102', '  .amdhsa_accum_offset 256',
              '  .amdhsa_group_segment_fixed_size 0', '  .amdhsa_kernarg_size 80', '  .amdhsa_user_sgpr_count 2',
              '  .amdhsa_user_sgpr_kernarg_segment_ptr 1', '  .amdhsa_system_sgpr_workgroup_id_x 1',
              '  .amdhsa_float_denorm_mode_32 3', '.end_amdhsa_kernel']
    return '\n'.join(lines) + '\n'

if __name__ == '__main__':
    for a in list(sys.argv):
        if a.startswith('--opt='):
            for kv in a[6:].split(','):
                k, v = kv.split('='); OPT[k] = int(v)
            sys.argv.remove(a)
    if '--dbgout' in sys.argv:
        DBGOUT = True; sys.argv.remove('--dbgout')
    if '--diag' in sys.argv:
        DIAG = True; sys.argv.remove('--diag')
    out = sys.argv[1] if len(sys.argv) > 1 else 'cdna_kernels/' + NAME + '.s'
    open(out, 'w').write(build())
    if DIAG:
        import json; json.dump(STAMPS, open(out + '.stamps.json', 'w'))
    print('written', out, file=sys.stderr)
```

```python
import sys, struct
from asmlib import Emit, hazard_pass

NAME = "sequential_preLN__spectral_gfnet__glu_gated_swiglu__prompt"
KN = NAME + "_kernel"

T1_OFF  = 0x000000
T2_OFF  = 0x200000
HC_OFF  = 0x400000
HR_OFF  = 0x600000
ST1_OFF = 0x800000
ST2_OFF = 0x810000
W13_OFF = 0x900000
W2_OFF  = 0xD00000
HM_OFF  = 0x1000000
FL_OFF  = 0x1800000
DIAG_OFF = 0x1A00000
WS_SIZE = 0x1C00000
LDS_STAGE = 32768
LDS_STATS = 114688
LDS_BYTES = 114688 + 8192
MAXSPIN = 100000

DIAG = False
OPT = dict(st1=3, st2=2, epi=2, post=4, w3=8, cpf=4, outmod=0, probe=0, pdepth=1, g2rot=0, wsoff=0, eflag=16, epoll=46, fspan=40, w2t1=14, latesp=52, g2mode=1, lpoll=8)
def f2u(x): return struct.unpack('<I', struct.pack('<f', x))[0]
def lit(x): return '0x%08x' % f2u(x)
def vr(a, n=1): return f'v{a}' if n == 1 else f'v[{a}:{a+n-1}]'
def ar(a, n=1): return f'a{a}' if n == 1 else f'a[{a}:{a+n-1}]'

S_X, S_WS, S_WR, S_WI, S_W1, S_W3, S_W2, S_OUT, S_DBG = 8, 12, 16, 20, 24, 28, 32, 36, 40
SX, SWS, SWR, SWI, SW1, SW3, SW2, SOUT, SDBG = [f's[{a}:{a+3}]' for a in (8, 12, 16, 20, 24, 28, 32, 36, 40)]
sW, sB, sGRP, sNONCE, sREP = 44, 45, 46, 47, 48
sR, sC, sSPIN = 49, 50, 51

def srd(e, d, ptr, size):
    e(f's_mov_b32 s{d}, s{ptr}')
    e(f's_and_b32 s{d+1}, s{ptr+1}, 0xffff')
    e(f's_mov_b32 s{d+2}, 0x{size:x}')
    e(f's_mov_b32 s{d+3}, 0x20000')

_stamp_n = [0]
STAMPS = []
def stamp(e, name):
    if not DIAG: return
    i = _stamp_n[0]; _stamp_n[0] += 1; STAMPS.append(name)
    e('s_memtime s[84:85]')
    e('s_waitcnt lgkmcnt(0)')
    e(f'v_writelane_b32 v255, s84, {i}')
def rstamp(e, name):
    if not DIAG: return
    i = _stamp_n[0]; _stamp_n[0] += 1; STAMPS.append(name)
    e('s_memrealtime s[84:85]')
    e('s_waitcnt lgkmcnt(0)')
    e(f'v_writelane_b32 v255, s84, {i}')

def xsum_groups(e, v, tmp):
    e(f'v_mov_b32 v{tmp}, v{v}')
    e(f'v_permlane32_swap_b32 v{tmp}, v{v}')
    e(f'v_add_f32 v{v}, v{v}, v{tmp}')
    e(f'v_mov_b32 v{tmp}, v{v}')
    e(f'v_permlane16_swap_b32 v{tmp}, v{v}')
    e(f'v_add_f32 v{v}, v{v}, v{tmp}')

def rot8(em, co, si, co2, si2, cs, neg_sin):
    C = 'op_sel:[0,0] op_sel_hi:[1,0]'
    S3 = 'op_sel:[0,1,0] op_sel_hi:[1,1,1]'
    NEG = ' neg_lo:[0,1,0] neg_hi:[0,1,0]'
    for p in range(4):
        em(f'v_pk_mul_f32 v[{co2+2*p}:{co2+2*p+1}], v[{co+2*p}:{co+2*p+1}], v[{cs}:{cs+1}] {C}')
        em(f'v_pk_mul_f32 v[{si2+2*p}:{si2+2*p+1}], v[{si+2*p}:{si+2*p+1}], v[{cs}:{cs+1}] {C}')
    for p in range(4):
        em(f'v_pk_fma_f32 v[{co2+2*p}:{co2+2*p+1}], v[{si+2*p}:{si+2*p+1}], v[{cs}:{cs+1}], v[{co2+2*p}:{co2+2*p+1}] {S3}' + ('' if neg_sin else NEG))
        em(f'v_pk_fma_f32 v[{si2+2*p}:{si2+2*p+1}], v[{co+2*p}:{co+2*p+1}], v[{cs}:{cs+1}], v[{si2+2*p}:{si2+2*p+1}] {S3}' + (NEG if neg_sin else ''))

_lab = [0]
def L(p):
    _lab[0] += 1
    return f'L{p}_{_lab[0]}'

def signal(e, sync):
    e.barrier()
    skip = L('sig')
    e(f's_cmp_lg_u32 s{sW}, 0')
    e(f's_cbranch_scc1 {skip}')
    e(f's_lshl_b32 s52, s2, 6')
    e(f's_add_u32 s52, s52, 0x{FL_OFF + sync*0x40000:x}')
    e(f'v_mov_b32 v14, s{sNONCE}')
    e('v_lshlrev_b32 v15, 14, v1')
    e('s_mov_b64 exec, 0xff')
    e(f'buffer_store_dword v14, v15, {SWS}, s52 offen sc1')
    e('s_mov_b64 exec, -1')
    e.label(skip)

def flag_store(e, sync):
    skip = L('flg')
    e(f's_cmp_lg_u32 s{sW}, 0')
    e(f's_cbranch_scc1 {skip}')
    e(f's_lshl_b32 s52, s2, 6')
    e(f's_add_u32 s52, s52, 0x{FL_OFF + sync*0x40000:x}')
    e(f'v_mov_b32 v14, s{sNONCE}')
    e('v_lshlrev_b32 v15, 14, v1')
    e('s_mov_b64 exec, 0xff')
    e(f'buffer_store_dword v14, v15, {SWS}, s52 offen sc1')
    e('s_mov_b64 exec, -1')
    e.label(skip)

def poll(e, sync, nflags, idx_code, preg=232, bar=True):
    skip = L('pollskip'); loop = L('poll'); done = L('polldone')
    e(f's_cmp_lg_u32 s{sW}, 0')
    e(f's_cbranch_scc1 {skip}')
    idx_code(e)
    nl = max(1, nflags // 64)
    e(f's_add_u32 s52, s{sREP}, 0x{FL_OFF + sync*0x40000:x}')
    for i in range(1, nl): e(f's_add_u32 s{52+i}, s52, {i*64*64}')
    e(f's_mov_b32 s{sSPIN}, 0')
    if nflags <= 32: e(f's_mov_b64 exec, 0x{(1 << nflags) - 1:x}')
    elif nflags < 64: e(f's_mov_b32 exec_hi, 0x{(1 << (nflags - 32)) - 1:x}')
    D = OPT['pdepth']
    def issue(k):
        for i in range(nl): e(f'buffer_load_dword v{preg+k*nl+i}, v5, {SWS}, s{52+i} offen sc1')
    e('s_waitcnt vmcnt(0)') if D == 1 else None
    for k in range(D - 1): issue(k)
    e.label(loop)
    for k in range(D):
        issue((k + D - 1) % D)
        e(f's_waitcnt vmcnt({(D-1)*nl})')
        r = preg + k * nl
        e(f'v_xor_b32 v6, s{sNONCE}, v{r}')
        for i in range(1, nl):
            e(f'v_xor_b32 v7, s{sNONCE}, v{r+i}')
            e('v_or_b32 v6, v6, v7')
        e('v_cmp_ne_u32 vcc, 0, v6')
        e('s_nop 4')
        e(f's_cbranch_vccz {done}')
    e(f's_add_u32 s{sSPIN}, s{sSPIN}, 1')
    e(f's_cmp_lt_u32 s{sSPIN}, {MAXSPIN}')
    e(f's_cbranch_scc1 {loop}')
    e.label(done)
    e('s_mov_b64 exec, -1')
    e.label(skip)
    if bar: e.barrier()

def p1_addr(e, i):
    e(f's_lshl_b32 s53, s{sW}, 2')
    e(f's_add_u32 s53, s53, {i}')
    e('s_cmp_ge_u32 s53, 7')
    e('s_cselect_b32 s54, 7, 0')
    e(f's_cselect_b32 s55, {P1_MS}, 0')
    e('s_sub_u32 s54, s53, s54')
    e('s_lshl_b32 s54, s54, 6')
    e(f's_add_u32 s55, s55, {LDS_STAGE}')
    e('v_add_u32 v12, s54, v1')
    e('v_mul_u32_u24 v13, 4682, v12')
    e('v_lshrrev_b32 v13, 16, v13')
    e('v_mul_u32_u24 v14, 14, v13')
    e('v_sub_u32 v14, v12, v14')
    e('v_lshlrev_b32 v14, 4, v14')
    e(f'v_mul_u32_u24 v15, {P1_RS}, v13')
    e('v_add3_u32 v%d, v15, v14, s55' % P1LR[i])
    if i == 3: e('v_accvgpr_write_b32 a25, v10')
    e('v_lshrrev_b32 v15, 4, v13')
    e('v_mul_u32_u24 v15, 208, v15')
    e('v_add_u32 v15, v15, v13')
    e('v_mul_u32_u24 v15, 3584, v15')
    e('v_add_u32 v15, v15, v14')

P1_RS, P1_MS = 288, 9344
P1LR = [252, 253, 254, 10]
P2LR = [248, 11]
P2_RS, P2_BASE = 480, LDS_STAGE + 2 * 9344 + 64
def p1_loads(e):
    e('s_lshr_b32 s52, s2, 4')
    e('s_lshl_b32 s52, s52, 4')
    e('s_mul_i32 s52, s52, 3584')
    e('s_and_b32 s54, s2, 15')
    e('s_mul_i32 s54, s54, 224')
    e('s_add_u32 s52, s52, s54')
    e(f's_mov_b32 s94, s{S_W1+2}')
    e('s_mov_b32 s95, 0x20000')
    for i in range(4):
        p1_addr(e, i)
        e('s_cmp_ge_u32 s53, 7')
        e(f's_cselect_b32 s92, s{S_W3}, s{S_W1}')
        e(f's_cselect_b32 s93, s{S_W3+1}, s{S_W1+1}')
        if i >= 2:
            e('s_cmp_ge_u32 s53, 14')
            e('s_cselect_b32 s94, 0, s94')
        e.vm(f'buffer_load_dwordx4 {ar(4*i,4)}, v15, s[92:95], s52 offen')

def p2_loads(e):
    e('s_lshr_b32 s52, s2, 1')
    e('s_mul_i32 s52, s52, %d' % (16 * 896))
    e('s_and_b32 s53, s2, 1')
    e('s_mul_i32 s53, s53, 224')
    e('s_add_u32 s52, s52, s53')
    e(f's_mov_b32 s92, s{S_W2}')
    e(f's_mov_b32 s93, s{S_W2+1}')
    e('s_cmp_ge_u32 s2, 224')
    e(f's_cselect_b32 s94, 0, s{S_W2+2}')
    for i in range(2):
        e(f's_lshl_b32 s53, s{sW}, 1')
        e(f's_add_u32 s53, s53, {i}')
        e('s_lshl_b32 s54, s53, 6')
        e('v_add_u32 v12, s54, v1')
        e('v_mul_u32_u24 v13, 2341, v12')
        e('v_lshrrev_b32 v13, 16, v13')
        e('v_mul_u32_u24 v14, 28, v13')
        e('v_sub_u32 v14, v12, v14')
        e('v_cmp_le_u32 vcc, 14, v14')
        e('v_lshlrev_b32 v14, 4, v14')
        e(f'v_mul_u32_u24 v15, {P2_RS}, v13')
        e(f'v_add_u32 v15, v15, v14')
        e(f'v_add_u32 v15, {P2_BASE}, v15')
        e(f'v_accvgpr_write_b32 a{26 if i == 0 else 24}, v15')
        e('v_add_u32 v15, 224, v14')
        e('v_cndmask_b32 v14, v14, v15, vcc')
        e('v_mul_u32_u24 v15, 896, v13')
        e('v_add_u32 v15, v15, v14')
        if i == 1:
            e('s_cmp_ge_u32 s53, 7')
            e('s_cselect_b32 s94, 0, s94')
        e.vm(f'buffer_load_dwordx4 {ar(16+4*i,4)}, v15, s[92:95], s52 offen')
assert all(((i * 2341) >> 16) == i // 28 for i in range(512))

def w_prefetch(e):
    e('s_lshl_b32 s52, s2, 12')
    e('v_lshlrev_b32 v12, 4, v0')
    e('v_add_u32 v12, s52, v12')
    e.vm(f'buffer_load_dwordx4 a[16:19], v12, {SWR}, 0 offen')
    e.vm(f'buffer_load_dwordx4 a[16:19], v12, {SWI}, 0 offen')
assert all(((i * 4682) >> 16) == i // 14 for i in range(512))

def p1_finish(e, R=64):
    RS, MS, BASE = P1_RS, P1_MS, LDS_STAGE
    skw = L('p1w')
    for i in range(4):
        if i == 2:
            e(f's_cmp_ge_u32 s{sW}, 3')
            e(f's_cbranch_scc1 {skw}')
        if i == 3: e('v_accvgpr_read_b32 v10, a25')
        e(f'ds_write_b128 v{P1LR[i]}, {ar(4*i,4)}')
    e.label(skw)
    e.wait_ds_all()
    e.barrier()
    end = L('p1e')
    e(f's_cmp_eq_u32 s{sW}, 0')
    e(f's_cbranch_scc1 {end}')
    e('v_and_b32 v4, 1, v3')
    e(f'v_mul_u32_u24 v4, {MS}, v4')
    e('v_lshrrev_b32 v5, 1, v3')
    e('v_lshlrev_b32 v5, 2, v5')
    e('v_lshrrev_b32 v6, 2, v2')
    e('v_add_u32 v5, v5, v6')
    e(f'v_mul_u32_u24 v5, {RS}, v5')
    e('v_add_u32 v4, v4, v5')
    e('v_and_b32 v6, 3, v2')
    e('v_lshlrev_b32 v6, 3, v6')
    e('v_add_u32 v4, v4, v6')
    e(f'v_add_u32 v4, {BASE}, v4')
    e('s_and_b32 s54, s2, 15')
    e('s_mul_i32 s54, s54, %d' % (7 * 28))
    e('s_lshr_b32 s53, s2, 4')
    e('s_lshl_b32 s53, s53, 1')
    e('s_add_u32 s54, s54, s53')
    e('s_lshl_b32 s54, s54, 10')
    e(f's_add_u32 s54, s54, 0x{W13_OFF:x}')
    e('v_lshlrev_b32 v5, 4, v1')
    last = L('p1l')
    for m in range(5):
        e(f's_add_u32 s52, s{sW}, {3*m - 1}')
        if m == 4:
            e('s_cmp_ge_u32 s52, 14')
            e(f's_cbranch_scc1 {last}')
        e('s_and_b32 s53, s52, 1')
        e('s_lshr_b32 s52, s52, 1')
        e(f's_mul_i32 s55, s53, {8*RS}')
        e('s_lshl_b32 s61, s52, 5')
        e('s_add_u32 s55, s55, s61')
        e('v_add_u32 v6, s55, v4')
        e(f'ds_read_b64_tr_b16 {vr(R+4*m,2)}, v6')
        e(f'ds_read_b64_tr_b16 {vr(R+4*m+2,2)}, v6 offset:{16*RS}')
        e('s_mul_i32 s52, s52, 28')
        e('s_add_u32 s52, s52, s53')
        e('s_lshl_b32 s52, s52, 10')
        e(f's_add_u32 s{62+m if m < 2 else 86+m}, s52, s54')
    e.label(last)
    e('s_waitcnt lgkmcnt(0)')
    for m in range(4):
        e(f'buffer_store_dwordx4 {vr(R+4*m,4)}, v5, {SWS}, s{62+m if m < 2 else 86+m} offen sc1')
    e(f's_cmp_ge_u32 s{sW}, 3')
    e(f's_cbranch_scc1 {end}')
    e(f'buffer_store_dwordx4 {vr(R+16,4)}, v5, {SWS}, s90 offen sc1')
    e.label(end)

def p2_finish(e, R=128):
    skw2 = L('p2w')
    e('v_accvgpr_read_b32 v7, a26')
    e(f'ds_write_b128 v7, {ar(16,4)}')
    e(f's_cmp_ge_u32 s{sW}, 3')
    e(f's_cbranch_scc1 {skw2}')
    e('v_accvgpr_read_b32 v7, a24')
    e(f'ds_write_b128 v7, {ar(20,4)}')
    e.label(skw2)
    e.wait_ds_all()
    e.barrier()
    end = L('p2e')
    e(f's_cmp_eq_u32 s{sW}, 0')
    e(f's_cbranch_scc1 {end}')
    e('v_lshrrev_b32 v6, 1, v3')
    e('v_lshlrev_b32 v6, 2, v6')
    e('v_lshrrev_b32 v7, 2, v2')
    e('v_add_u32 v6, v6, v7')
    e(f'v_mul_u32_u24 v6, {P2_RS}, v6')
    e('v_and_b32 v7, 1, v3')
    e('v_lshlrev_b32 v7, 4, v7')
    e('v_add_u32 v6, v6, v7')
    e('v_and_b32 v7, 1, v2')
    e('v_lshlrev_b32 v7, 3, v7')
    e('v_add_u32 v6, v6, v7')
    e('v_bfe_u32 v7, v2, 1, 1')
    e('v_mul_u32_u24 v7, 224, v7')
    e('v_add_u32 v6, v6, v7')
    e(f's_sub_u32 s55, s{sW}, 1')
    e('s_lshl_b32 s52, s55, 5')
    e(f's_add_u32 s52, s52, {P2_BASE}')
    e('v_add_u32 v6, s52, v6')
    e('s_and_b32 s54, s2, 1')
    e('s_mul_i32 s54, s54, 7')
    e('s_add_u32 s54, s54, s55')
    e('s_mul_i32 s54, s54, 112')
    e('s_lshr_b32 s53, s2, 1')
    e('s_add_u32 s54, s54, s53')
    e('s_lshl_b32 s54, s54, 10')
    e(f's_add_u32 s54, s54, 0x{W2_OFF:x}')
    e('v_lshlrev_b32 v5, 4, v1')
    for m in range(3):
        e(f'ds_read_b64_tr_b16 {vr(R+4*m,2)}, v6 offset:{96*m}')
        e(f'ds_read_b64_tr_b16 {vr(R+4*m+2,2)}, v6 offset:{96*m + 8*P2_RS}')
    e('s_waitcnt lgkmcnt(0)')
    for m in range(3):
        if m == 2:
            e(f's_cmp_ge_u32 s{sW}, 2')
            e(f's_cbranch_scc1 {end}')
        e(f's_add_u32 s53, s54, {3*m*112*1024}')
        e(f'buffer_store_dwordx4 {vr(R+4*m,4)}, v5, {SWS}, s53 offen sc1')
    e.label(end)

def w13_load_groups():
    gs = []
    for s_ in range(28):
        for mi in range(2):
            g = []
            if s_ % 7 == 0 and mi == 0:
                g += [f's_add_u32 s90, s89, {s_//7}', 's_and_b32 s90, s90, 3', 's_mul_i32 s90, s90, 7168', 's_add_u32 s90, s90, s88',
                      's_add_u32 s91, s90, 28672']
            i = s_ % 7
            if i == 4 and mi == 0: g += ['s_add_u32 s90, s90, 4096', 's_add_u32 s91, s91, 4096']
            g.append(('vm', f'buffer_load_dwordx4 {ar((mi*28+s_)*4,4)}, v254, s[92:95], s{90+mi} offen offset:{(i%4)*1024} sc1'))
            gs.append(g)
    return gs

def w13_setup(e):
    e(f's_mov_b32 s92, s{S_WS}')
    e(f's_mov_b32 s93, s{S_WS+1}')
    e(f's_cmp_ge_u32 s{sC}, 14')
    e(f's_cselect_b32 s94, 0, s{S_WS+2}')
    e('s_mov_b32 s95, 0x20000')
    e(f's_lshl_b32 s88, s{sC}, 3')
    e(f's_lshl_b32 s52, s{sW}, 1')
    e('s_add_u32 s88, s88, s52')
    e('s_mul_i32 s88, s88, 28672')
    e(f's_add_u32 s88, s88, 0x{W13_OFF:x}')
    e(f's_and_b32 s89, s{sR}, 3')
    e('v_lshlrev_b32 v254, 4, v1')

def emit_groups(e, groups):
    last = None
    for g in groups:
        for op in g:
            if isinstance(op, tuple): last = e.vm(op[1])
            else: e(op)
    return last

DMA = {}
def emit_interleaved(e, main, groups, start=0):
    n, m = len(main), len(groups)
    gi = 0; last = None
    for k, ins in enumerate(main):
        e(ins)
        if k >= start:
            want = ((k - start + 1) * m) // max(1, n - start)
            while gi < want:
                for op in groups[gi]:
                    if isinstance(op, tuple): last = e.vm(op[1])
                    else: e(op)
                gi += 1
    while gi < m:
        for op in groups[gi]:
            if isinstance(op, tuple): last = e.vm(op[1])
            else: e(op)
        gi += 1
    return last

def w13_trread(e, half):
    e('v_and_b32 v4, 1, v3')
    e('v_lshrrev_b32 v5, 1, v3')
    e('v_lshrrev_b32 v6, 2, v2')
    e('v_and_b32 v7, 3, v2')
    e('v_mul_u32_u24 v8, 57344, v4')
    e('v_lshlrev_b32 v9, 2, v5')
    e('v_add_u32 v9, v9, v6')
    e('v_lshlrev_b32 v9, 8, v9')
    e('v_add_u32 v8, v8, v9')
    e('v_and_b32 v9, 1, v7')
    e('v_lshlrev_b32 v9, 3, v9')
    e('v_add_u32 v8, v8, v9')
    e(f'v_add_u32 v8, {LDS_STAGE}, v8')
    e('v_lshrrev_b32 v7, 1, v7')
    e(f's_lshl_b32 s52, s{sW}, 2')
    e('v_add_u32 v7, s52, v7')
    e('v_lshlrev_b32 v6, 1, v6')
    e('v_lshlrev_b32 v4, 3, v4')
    e('v_xor_b32 v6, v6, v4')
    for mi in range(2):
        e(f'v_add_u32 v9, {2*mi}, v7')
        e('v_xor_b32 v9, v9, v6')
        e('v_lshlrev_b32 v9, 4, v9')
        e(f'v_add_u32 v{10+mi}, v8, v9')
    for mi in range(2):
        for jl in range(7):
            for gg in range(2):
                kap = 14 * half + 2 * jl + gg
                a = (mi * 28 + kap) * 4
                off = (16 * jl + 8 * gg) * 256
                e.ds(f'ds_read_b64_tr_b16 {ar(a,2)}, v{10+mi} offset:{off}')
                e.ds(f'ds_read_b64_tr_b16 {ar(a+2,2)}, v{10+mi} offset:{off + 112*256}')

C_G, C_TC = 220, 160
def gen_G(e):
    G = C_G
    TH, CO, SI = 112, 120, 128
    cscale = 2.0 / (2048.0 * 448.0)
    e('v_cvt_f32_u32 v7, v3')
    for nt in range(2):
        e(f'v_add_u32 v8, {16*nt}, v2')
        e('v_lshlrev_b32 v8, 6, v8')
        e(f'v_add_u32 v8, s{sB}, v8')
        e('v_cvt_f32_u32 v8, v8')
        e(f'v_mul_f32 v8, {lit(1.0/2048)}, v8')
        e('v_mul_f32 v9, v7, v8')
        for t in range(2):
            for ii in range(4):
                cst = 16 * t + 4 * ii
                if cst == 0: e(f'v_mov_b32 v{TH+t*4+ii}, v9')
                else: e(f'v_fmamk_f32 v{TH+t*4+ii}, v8, {lit(float(cst))}, v9')
        for j in range(8): e(f'v_cos_f32 v{CO+j}, v{TH+j}')
        for j in range(8): e(f'v_sin_f32 v{SI+j}, v{TH+j}')
        for j in range(8): e(f'v_mul_f32 v{CO+j}, {lit(cscale)}, v{CO+j}')
        for j in range(8): e(f'v_mul_f32 v{SI+j}, {lit(cscale)}, v{SI+j}')
        for t in range(2):
            for ii in range(4):
                j = t * 4 + ii
                e(f'v_cvt_pk_bf16_f32 v{G+((0*2+t)*2+nt)*4+ii}, v{CO+j}, -v{SI+j}')
                e(f'v_cvt_pk_bf16_f32 v{G+((1*2+t)*2+nt)*4+ii}, v{SI+j}, v{CO+j}')

def gen_TC(e):
    TC = C_TC
    TH, CO, SI, CO2, SI2 = 112, 120, 128, 136, 144
    e(f's_lshl_b32 s61, s{sGRP}, 2')
    e(f's_add_u32 s61, s61, s{sW}')
    e('s_min_u32 s61, s61, 13')
    e('s_lshl_b32 s61, s61, 4')
    e('v_add_u32 v8, s61, v2')
    e('v_cvt_f32_u32 v8, v8')
    e(f'v_mul_f32 v8, {lit(1.0/448)}, v8')
    e('v_lshlrev_b32 v9, 3, v3')
    e('v_cvt_f32_u32 v9, v9')
    e('v_mul_f32 v9, v9, v8')
    e('v_cmp_eq_u32 vcc, 3, v3')
    e('v_mov_b32 v10, 1.0')
    e('v_mov_b32 v7, 0.5')
    e('v_cndmask_b32 v10, v10, v7, vcc')
    e(f'v_mul_f32 v7, {lit(32.0)}, v8')
    for h in range(2):
        for j in range(4):
            cst = 2 * j + (2 if h == 0 else 1)
            e(f'v_fmamk_f32 v{TH+h*4+j}, v8, {lit(float(cst))}, v9')
    e('v_cos_f32 v12, v7')
    e('v_sin_f32 v13, v7')
    for j in range(8): e(f'v_cos_f32 v{CO+j}, v{TH+j}')
    for j in range(8): e(f'v_sin_f32_e64 v{SI+j}, -v{TH+j}')
    cur = (CO, SI); oth = (CO2, SI2)
    for kp in range(7):
        if kp < 6: rot8(e, cur[0], cur[1], oth[0], oth[1], 12, True)
        else:
            e(f'v_mul_f32 v{cur[0]+3}, v{cur[0]+3}, v10')
            e(f'v_mul_f32 v{cur[1]+3}, v{cur[1]+3}, v10')
        for h, kb in enumerate((kp, kp + 7)):
            e(f'v_cvt_pk_bf16_f32 v{TC+kb*4+0}, v{cur[0]+h*4+0}, v{cur[0]+h*4+1}')
            e(f'v_cvt_pk_bf16_f32 v{TC+kb*4+1}, v{cur[0]+h*4+2}, v{cur[0]+h*4+3}')
            e(f'v_cvt_pk_bf16_f32 v{TC+kb*4+2}, v{cur[1]+h*4+0}, v{cur[1]+h*4+1}')
            e(f'v_cvt_pk_bf16_f32 v{TC+kb*4+3}, v{cur[1]+h*4+2}, v{cur[1]+h*4+3}')
        cur, oth = oth, cur

def phase_a(e):
    e.c('======== phase A')
    e(f's_lshl_b32 s56, s{sGRP}, 2')
    e(f's_add_u32 s56, s56, s{sW}')
    e('s_min_u32 s57, s56, 13')
    e(f's_lshr_b32 s52, s{sW}, 1')
    e('s_lshl_b32 s52, s52, 10')
    e(f's_add_u32 s52, s52, s{sB}')
    e('v_lshlrev_b32 v4, 6, v2')
    e('v_add_u32 v4, s52, v4')
    e('v_mul_u32_u24 v4, 896, v4')
    e('v_lshlrev_b32 v5, 4, v3')
    e('v_add_u32 v4, v4, v5')
    e(f's_and_b32 s52, s{sW}, 1')
    e('s_mul_i32 s52, s52, 448')
    e('v_add_u32 v4, s52, v4')
    TA, FP, ACC, X = 16, 72, 96, 128
    xs_tok = [e.vm(f'buffer_load_dwordx4 {vr(X+4*i,4)}, v4, {SX}, 0 offen offset:{64*i}') for i in range(7)]
    if OPT['cpf']:
        sk = L('cpf')
        e(f's_cmp_lg_u32 s{sW}, {OPT["cpf"]-1}')
        e(f's_cbranch_scc1 {sk}')
        e('s_getpc_b64 s[52:53]')
        e.label('L_pc')
        e('s_lshr_b32 s54, s2, 3')
        e('s_lshl_b32 s54, s54, 10')
        e('s_cmp_ge_u32 s54, L_fin-L_pc-1024')
        e(f's_cbranch_scc1 {sk}')
        e('v_lshlrev_b32 v5, 4, v1')
        e('v_add_u32 v5, s54, v5')
        e('global_load_dwordx4 a[28:31], v5, s[52:53]')
        e.label(sk)
    stamp(e, 'A.issued')
    e('s_cmp_lt_u32 s57, 7')
    e('s_cselect_b32 s52, 2, 1')
    e('s_cselect_b32 s53, 0, 7')
    e('s_sub_u32 s53, s57, s53')
    e('s_lshl_b32 s53, s53, 5')
    e('s_add_u32 s53, s53, s52')
    e('s_cmp_lt_u32 s57, 7')
    e(f's_cselect_b32 s58, {lit(1.0)}, {lit(-1.0)}')
    e('v_lshlrev_b32 v5, 1, v2')
    e('v_add_u32 v5, s53, v5')
    e('v_cvt_f32_u32 v5, v5')
    e(f'v_mul_f32 v5, {lit(1.0/448)}, v5')
    e('v_lshlrev_b32 v6, 3, v3')
    e('v_cvt_f32_u32 v6, v6')
    e('v_mul_f32 v6, v6, v5')
    TH, CO, SI = ACC, ACC + 8, ACC + 16
    CO2, SI2 = X + 32, X + 40
    e(f'v_mul_f32 v7, {lit(32.0)}, v5')
    for j in range(8):
        if j == 0: e(f'v_mov_b32 v{TH+j}, v6')
        else: e(f'v_fmamk_f32 v{TH+j}, v5, {lit(float(j))}, v6')
    e('v_cos_f32 v8, v7')
    e('v_sin_f32 v9, v7')
    for j in range(8): e(f'v_cos_f32 v{CO+j}, v{TH+j}')
    for j in range(8): e(f'v_sin_f32_e64 v{SI+j}, -v{TH+j}')
    cur = (CO, SI); oth = (CO2, SI2)
    for t in range(7):
        if t < 6: rot8(e, cur[0], cur[1], oth[0], oth[1], 8, True)
        for i in range(4): e(f'v_cvt_pk_bf16_f32 v{TA+(t*2+0)*4+i}, v{cur[0]+2*i}, v{cur[0]+2*i+1}')
        for i in range(4): e(f'v_cvt_pk_bf16_f32 v{TA+(t*2+1)*4+i}, v{cur[1]+2*i}, v{cur[1]+2*i+1}')
        cur, oth = oth, cur
    e('s_mov_b32 s52, 0x80008000')
    e(f'v_cvt_f32_u32 v7, s{sB}')
    e(f'v_mul_f32 v7, {lit(1.0/64)}, v7')
    e('v_lshlrev_b32 v8, 2, v3')
    e('v_cvt_f32_u32 v8, v8')
    e('v_add_f32 v8, v8, v7')
    for mt in range(2):
        e(f'v_add_u32 v9, {16*mt}, v2')
        e('v_cvt_f32_u32 v9, v9')
        e(f'v_mul_f32 v9, {lit(1.0/32)}, v9')
        e('v_mul_f32 v10, v9, v8')
        for j in range(8):
            cst = 16 * (j >> 2) + (j & 3)
            if cst == 0: e(f'v_mov_b32 v{TH+j}, v10')
            else: e(f'v_fmamk_f32 v{TH+j}, v9, {lit(float(cst))}, v10')
        for j in range(8): e(f'v_cos_f32 v{CO+j}, v{TH+j}')
        for j in range(8): e(f'v_sin_f32 v{SI+j}, v{TH+j}')
        for i in range(4): e(f'v_cvt_pk_bf16_f32 v{FP+mt*12+i}, v{CO+2*i}, v{CO+2*i+1}')
        for i in range(4): e(f'v_cvt_pk_bf16_f32 v{FP+mt*12+4+i}, v{SI+2*i}, v{SI+2*i+1}')
        for i in range(4): e(f'v_xor_b32 v{FP+mt*12+8+i}, s52, v{FP+mt*12+4+i}')
    p1_loads(e)
    stamp(e, 'A.constgen')
    e(f's_mul_i32 s52, s{sW}, 7168')
    e('v_lshlrev_b32 v11, 4, v1')
    e('v_add_u32 v4, s52, v11')
    e('v_mov_b32 v5, 0')
    e('v_mov_b32 v6, 0')
    e('s_mov_b32 s52, 0x3f803f80')
    for i in range(7):
        e.wait_vm(xs_tok[i])
        e.ds(f'ds_write_b128 v4, {vr(X+4*i,4)} offset:{1024*i}')
        for d in range(4):
            e(f'v_dot2_f32_bf16 v5, v{X+4*i+d}, s52, v5')
            e(f'v_dot2_f32_bf16 v6, v{X+4*i+d}, v{X+4*i+d}, v6')
    xsum_groups(e, 5, 7)
    xsum_groups(e, 6, 8)
    e(f's_lshl_b32 s52, s{sW}, 7')
    e('v_lshlrev_b32 v7, 3, v2')
    e('v_add_u32 v7, s52, v7')
    e('v_mov_b32 v8, v5')
    e('v_mov_b32 v9, v6')
    e.ds('ds_write_b64 v7, v[8:9] offset:28672')
    e.wait_ds_all()
    stamp(e, 'A.xstaged')
    e.barrier()
    e('v_mov_b32 v250, 0')
    nonce_tok = e.vm(f'buffer_load_dword v251, v250, {SDBG}, 0 offen sc1')
    e('v_and_b32 v4, 31, v1')
    e('v_lshrrev_b32 v5, 4, v4')
    e('v_lshlrev_b32 v5, 8, v5')
    e('v_lshlrev_b32 v6, 3, v2')
    e('v_add_u32 v5, v5, v6')
    t0 = e.ds('ds_read_b64 v[6:7], v5 offset:28672')
    t1 = e.ds('ds_read_b64 v[8:9], v5 offset:28800')
    xt = {}
    order = [(half, t, mt) for half in range(2) for t in range(7) for mt in range(2)]
    def xreg(mt, tt): return X + (mt * 14 + tt) * 4
    nread = [0]
    def issue_x():
        half, t, mt = order[nread[0]]
        tt = t + 7 * half
        xt[(half, t, mt)] = e.ds(f'ds_read_b128 {vr(xreg(mt,tt),4)}, v11 offset:{(mt*14+tt)*1024}')
        nread[0] += 1
    for _ in range(8): issue_x()
    e.wait_ds(t1)
    e('v_add_f32 v6, v6, v8')
    e('v_add_f32 v7, v7, v9')
    e(f'v_mul_f32 v6, {lit(1.0/448)}, v6')
    e(f'v_mul_f32 v7, {lit(1.0/448)}, v7')
    e('v_fma_f32 v7, -v6, v6, v7')
    e('v_max_f32 v7, 0, v7')
    e(f'v_add_f32 v7, {lit(1e-5)}, v7')
    e('v_rsq_f32 v7, v7')
    e(f's_lshl_b32 s52, s{sW}, 7')
    e('v_lshlrev_b32 v8, 2, v4')
    e('v_add_u32 v9, s52, v8')
    e.ds('ds_write_b32 v9, v7 offset:29184')
    nm = L('nomean')
    e(f's_or_b32 s52, s{sGRP}, s{sW}')
    e('s_cmp_lg_u32 s52, 0')
    e(f's_cbranch_scc1 {nm}')
    e(f's_lshl_b32 s52, s{sB}, 7')
    e(f's_add_u32 s52, s52, 0x{ST1_OFF:x}')
    e(f'buffer_store_dword v6, v8, {SWS}, s52 offen sc1')
    e.label(nm)
    e(f's_lshl_b32 s52, s{sW}, 7')
    e('v_lshlrev_b32 v9, 4, v3')
    e('v_add_u32 v9, s52, v9')
    RR = 240
    tr0 = e.ds(f'ds_read_b128 {vr(RR,4)}, v9 offset:29184')
    tr1 = e.ds(f'ds_read_b128 {vr(RR+4,4)}, v9 offset:29248')
    def acc(mt, c, half): return ACC + ((mt * 2 + c) * 2 + half) * 4
    for (half, t, mt) in order:
        if nread[0] < len(order): issue_x()
        e.wait_ds(xt[(half, t, mt)])
        tt = t + 7 * half
        for c in range(2):
            a = acc(mt, c, half)
            e(f'v_mfma_f32_16x16x32_bf16 {vr(a,4)}, {vr(xreg(mt,tt),4)}, {vr(TA+(t*2+c)*4,4)}, {"0" if t == 0 else vr(a,4)}')
    e.wait_ds(tr1)
    stamp(e, 'A.mfma')
    BF = X; TMP = X + 8
    for c in range(2):
        for mt in range(2):
            for r in range(4): e(f'v_fma_f32 v{TMP+mt*4+r}, v{acc(mt,c,1)+r}, s58, v{acc(mt,c,0)+r}')
            for r in range(4): e(f'v_mul_f32 v{TMP+mt*4+r}, v{TMP+mt*4+r}, v{RR+mt*4+r}')
        for mt in range(2):
            for i in range(2):
                e(f'v_cvt_pk_bf16_f32 v{BF+c*4+mt*2+i}, v{TMP+mt*4+2*i}, v{TMP+mt*4+2*i+1}')
    TT = X + 16
    for mt in range(2):
        C, Sp, Sn = FP + mt * 12, FP + mt * 12 + 4, FP + mt * 12 + 8
        e(f'v_mfma_f32_16x16x32_bf16 {vr(TT+mt*8,4)}, {vr(C,4)}, {vr(BF,4)}, 0')
        e(f'v_mfma_f32_16x16x32_bf16 {vr(TT+mt*8+4,4)}, {vr(Sn,4)}, {vr(BF,4)}, 0')
        e(f'v_mfma_f32_16x16x32_bf16 {vr(TT+mt*8,4)}, {vr(Sp,4)}, {vr(BF+4,4)}, {vr(TT+mt*8,4)}')
        e(f'v_mfma_f32_16x16x32_bf16 {vr(TT+mt*8+4,4)}, {vr(C,4)}, {vr(BF+4,4)}, {vr(TT+mt*8+4,4)}')
    e('s_mov_b32 s52, %d' % (4 * 57344))
    e('v_mul_lo_u32 v4, v3, s52')
    e('v_lshlrev_b32 v5, 2, v2')
    e('v_add_u32 v4, v4, v5')
    e('s_lshl_b32 s52, s56, 12')
    e(f's_lshl_b32 s53, s{sB}, 6')
    e('s_add_u32 s52, s52, s53')
    OUT = X + 40
    for mt in range(2):
        for r in range(4): e(f'v_cvt_pk_bf16_f32 v{OUT+mt*4+r}, v{TT+mt*8+r}, v{TT+mt*8+4+r}')
    ns = L('nostoreA')
    e('s_cmp_ge_u32 s56, 14')
    e(f's_cbranch_scc1 {ns}')
    for mt in range(2):
        for r in range(4):
            e(f's_add_u32 s53, s52, {T1_OFF + (16*mt+r)*57344}')
            e(f'buffer_store_dword v{OUT+mt*4+r}, v4, {SWS}, s53 offen sc1')
    e.label(ns)
    stamp(e, 'A.stored')
    e.wait_vm_all()
    sk, lp, dn = L('nsk'), L('nlp'), L('ndn')
    e(f's_cmp_lg_u32 s{sW}, 0')
    e(f's_cbranch_scc1 {sk}')
    e(f's_mov_b32 s{sSPIN}, 0')
    e.label(lp)
    e(f'v_readfirstlane_b32 s{sNONCE}, v251')
    e('s_nop 1')
    e(f's_cmp_lg_u32 s{sNONCE}, 0')
    e(f's_cbranch_scc1 {dn}')
    e(f'buffer_load_dword v251, v250, {SDBG}, 0 offen sc1')
    e('s_waitcnt vmcnt(0)')
    e(f's_add_u32 s{sSPIN}, s{sSPIN}, 1')
    e(f's_cmp_lt_u32 s{sSPIN}, {MAXSPIN}')
    e(f's_cbranch_scc1 {lp}')
    e.label(dn)
    e.label(sk)
    stamp(e, 'A.drained')
    skn = L('nb')
    e(f's_cmp_lg_u32 s{sW}, 0')
    e(f's_cbranch_scc1 {skn}')
    e(f'v_mov_b32 v14, s{sNONCE}')
    e('v_mov_b32 v15, 29696')
    e('ds_write_b32 v15, v14')
    e('s_waitcnt lgkmcnt(0)')
    e.label(skn)
    signal(e, 0)
    e('v_mov_b32 v15, 29696')
    e('ds_read_b32 v14, v15')
    e('s_waitcnt lgkmcnt(0)')
    e(f'v_readfirstlane_b32 s{sNONCE}, v14')

def phase_p2(e):
    e.c('======== P2 (w2 re-layout)')
    done = L('p2done'); nojob = L('p2none')
    e('s_cmp_ge_u32 s2, 252')
    e(f's_cbranch_scc1 {nojob}')
    e('s_sub_u32 s56, s2, 224')
    e('s_waitcnt vmcnt(0)')
    e.barrier()
    e.vm_issued = e.vm_done = 0
    e('s_mul_i32 s52, s56, 57344')
    e('v_lshlrev_b32 v4, 4, v0')
    toks = []
    for i in range(14):
        e(f's_add_u32 s53, s52, {i*4096}')
        toks.append(e.vm(f'buffer_load_dwordx4 {vr(16+4*i,4)}, v4, {SW2}, s53 offen'))
    for i in range(14):
        e(f'v_add_u32 v5, {i*256}, v0')
        e('v_mul_u32_u24 v6, 18725, v5')
        e('v_lshrrev_b32 v6, 20, v6')
        e('v_lshlrev_b32 v6, 5, v6')
        e('v_lshlrev_b32 v5, 4, v5')
        e(f'v_add_u32 v{80+i}, v5, v6')
        e(f'v_add_u32 v{80+i}, {LDS_STAGE}, v{80+i}')
    stamp(e, 'P2.issued')
    gen_TC(e)
    gen_G(e)
    for i in range(14):
        e.wait_vm(toks[i])
        e.ds(f'ds_write_b128 v{80+i}, {vr(16+4*i,4)}')
    e.wait_ds_all()
    stamp(e, 'P2.lds')
    e.barrier()
    e('v_lshrrev_b32 v4, 1, v3')
    e('v_lshlrev_b32 v4, 2, v4')
    e('v_lshrrev_b32 v5, 2, v2')
    e('v_add_u32 v4, v4, v5')
    e(f's_lshl_b32 s53, s{sW}, 4')
    e('v_add_u32 v4, s53, v4')
    e('v_mul_u32_u24 v4, 928, v4')
    e('v_and_b32 v5, 1, v3')
    e('v_lshlrev_b32 v5, 4, v5')
    e('v_add_u32 v4, v4, v5')
    e('v_and_b32 v5, 1, v2')
    e('v_lshlrev_b32 v5, 3, v5')
    e('v_add_u32 v4, v4, v5')
    e('v_bfe_u32 v5, v2, 1, 1')
    e('v_mul_u32_u24 v5, 448, v5')
    e('v_add_u32 v4, v4, v5')
    e(f'v_add_u32 v4, {LDS_STAGE}, v4')
    e('v_lshlrev_b32 v5, 4, v1')
    for j in range(14):
        R = 16 + 4 * j
        e.ds(f'ds_read_b64_tr_b16 {vr(R,2)}, v4 offset:{32*j}')
        e.ds(f'ds_read_b64_tr_b16 {vr(R+2,2)}, v4 offset:{32*j + 8*928}')
    e.wait_ds_all()
    e('s_lshl_b32 s53, s56, 2')
    e(f's_add_u32 s53, s53, s{sW}')
    e('s_lshl_b32 s53, s53, 10')
    e(f's_add_u32 s53, s53, 0x{W2_OFF:x}')
    for j in range(14):
        e(f's_add_u32 s54, s53, {j*112*1024}')
        e.vm(f'buffer_store_dwordx4 {vr(16+4*j,4)}, v5, {SWS}, s54 offen sc1')
    stamp(e, 'P2.stored')
    e(f's_branch {done}')
    e.label(nojob)
    gen_TC(e)
    gen_G(e)
    e.label(done)
    e.wait_vm_all()
    stamp(e, 'P2.drained')
assert all(((p * 18725) >> 20) == p // 56 for p in range(3584)), "magic /56"

def phase_b(e):
    e.c('======== window 1 + phase B')
    e('s_and_b32 s56, s2, 7')
    e('s_lshr_b32 s57, s2, 3')
    e('s_mul_i32 s52, s57, 37')
    e('s_lshr_b32 s52, s52, 8')
    e('s_mul_i32 s53, s52, 7')
    e('s_sub_u32 s53, s57, s53')
    e('s_lshl_b32 s52, s52, 3')
    e('s_add_u32 s56, s56, s52')
    e('s_lshl_b32 s53, s53, 1')
    e(f's_lshr_b32 s54, s{sW}, 1')
    e('s_add_u32 s57, s53, s54')
    e('s_lshr_b32 s59, s53, 2')
    e(f's_and_b32 s58, s{sW}, 1')
    FC, FS, FN = 16, 32, 48
    TIN, BF, WR, WI, XA, YR, YI, YF = 64, 80, 96, 104, 112, 128, 136, 144
    e('s_cmp_lt_u32 s57, 7')
    e('s_cselect_b32 s52, 2, 1')
    e('s_cselect_b32 s53, 0, 7')
    e('s_sub_u32 s53, s57, s53')
    e('s_lshl_b32 s53, s53, 5')
    e('s_add_u32 s53, s53, s52')
    e('v_lshlrev_b32 v6, 1, v2')
    e('v_add_u32 v6, s53, v6')
    e('v_lshlrev_b32 v6, 1, v6')
    e('v_lshlrev_b32 v7, 7, v3')
    e('s_lshl_b32 s52, s58, 10')
    e('s_add_u32 s52, s52, s56')
    e('v_add_u32 v7, s52, v7')
    e('v_mul_u32_u24 v7, 450, v7')
    e('v_add_u32 v6, v6, v7')
    wtok = {}
    for mtl in range(2):
        for r in range(4):
            e(f's_mov_b32 s52, {(16*mtl+r)*14400}')
            e.vm(f'buffer_load_short_d16_hi v{WR+mtl*4+r}, v6, {SWR}, s52 offen')
            wtok[(mtl, r)] = e.vm(f'buffer_load_short_d16_hi v{WI+mtl*4+r}, v6, {SWI}, s52 offen')
    CO, SI, TH = 160, 176, 192
    groups = []
    main = []
    em = main.append
    em('s_lshl_b32 s52, s58, 5')
    em('v_add_u32 v8, s52, v2')
    em('v_cvt_f32_u32 v8, v8')
    em(f'v_mul_f32 v8, {lit(1.0/64)}, v8')
    em('v_lshlrev_b32 v9, 2, v3')
    for tt in range(2):
        em(f's_xor_b32 s52, s58, {tt}')
        em('s_lshl_b32 s52, s52, 5')
        em('v_add_u32 v10, s52, v9')
        em('v_cvt_f32_u32 v10, v10')
        em('v_mul_f32 v10, v10, v8')
        for j in range(8):
            cst = 16 * (j >> 2) + (j & 3)
            if cst == 0: em(f'v_mov_b32 v{TH+j}, v10')
            else: em(f'v_fmamk_f32 v{TH+j}, v8, {lit(float(cst))}, v10')
        for j in range(8): em(f'v_cos_f32 v{CO+tt*8+j}, v{TH+j}')
        for j in range(8): em(f'v_sin_f32 v{SI+tt*8+j}, v{TH+j}')
    def rot(kind, t, j, mt):
        qt = (mt * (j & 3)) & 3
        c, s = f'v{CO+t*8+j}', f'v{SI+t*8+j}'
        if kind == 'C': return [c, '-' + s, '-' + c, s][qt]
        if kind == 'S': return [s, c, '-' + s, '-' + c][qt]
        if kind == 'N': return ['-' + s, '-' + c, s, c][qt]
    for kind, base in (('C', FC), ('S', FS), ('N', FN)):
        for mtl in range(2):
            for tt in range(2):
                for i in range(4):
                    em(f'v_cvt_pk_bf16_f32 v{base+(mtl*2+tt)*4+i}, {rot(kind,tt,2*i,mtl)}, {rot(kind,tt,2*i+1,mtl)}')
    emit_interleaved(e, main, groups)
    p1_finish(e)
    stamp(e, 'W1.p1')
    e('s_mul_i32 s60, s56, 14')
    e('s_add_u32 s60, s60, s57')
    e('s_lshl_b32 s60, s60, 12')
    e(f's_add_u32 s60, s60, 0x{T1_OFF:x}')
    e('v_lshlrev_b32 v11, 8, v3')
    e('v_lshlrev_b32 v10, 2, v2')
    e('v_add_u32 v11, v11, v10')
    stamp(e, 'W1.ready')
    def idx(e):
        e('v_and_b32 v5, 7, v1')
        e('v_lshrrev_b32 v6, 3, v1')
        e('v_lshlrev_b32 v6, 5, v6')
        e('v_add_u32 v5, v5, v6')
        e('s_lshl_b32 s53, s59, 3')
        e('v_add_u32 v5, s53, v5')
        e('v_lshlrev_b32 v5, 6, v5')
    poll(e, 0, 64, idx)
    stamp(e, 'B.go')
    tin = {}
    for tt in range(2):
        e(f's_xor_b32 s52, s58, {tt}')
        e('s_lshl_b32 s52, s52, 11')
        e('s_add_u32 s52, s52, s60')
        for j in range(8):
            off = (16 * (j >> 2) + (j & 3)) * 64
            tin[(tt, j)] = e.vm(f'buffer_load_dword v{TIN+tt*8+j}, v11, {SWS}, s52 offen offset:{off} sc1')
    gen_G(e)
    e('s_mov_b32 s52, 0x05040100')
    e('s_mov_b32 s53, 0x07060302')
    for tt in range(2):
        e.wait_vm(tin[(tt, 7)])
        for i in range(4):
            e(f'v_perm_b32 v{BF+tt*4+i}, v{TIN+tt*8+2*i+1}, v{TIN+tt*8+2*i}, s52')
            e(f'v_perm_b32 v{BF+8+tt*4+i}, v{TIN+tt*8+2*i+1}, v{TIN+tt*8+2*i}, s53')
    stamp(e, 'B.loaded')
    def fr(base, mtl, tt): return vr(base + (mtl * 2 + tt) * 4, 4)
    def mm(d, a, b, first): e(f'v_mfma_f32_16x16x32_bf16 {vr(d,4)}, {a}, {vr(b,4)}, {"0" if first else vr(d,4)}')
    BRE = lambda t: BF + t * 4
    BIM = lambda t: BF + 8 + t * 4
    for step in range(4):
        for mtl in range(2):
            xr, xi = XA + mtl * 8, XA + mtl * 8 + 4
            tt = step & 1
            if step < 2:
                mm(xr, fr(FC, mtl, tt), BRE(tt), step == 0); mm(xi, fr(FN, mtl, tt), BRE(tt), step == 0)
            else:
                mm(xr, fr(FS, mtl, tt), BIM(tt), False); mm(xi, fr(FC, mtl, tt), BIM(tt), False)
    e.wait_vm(wtok[(1, 3)])
    for mtl in range(2):
        for r in range(4):
            xr, xi = XA + mtl * 8 + r, XA + mtl * 8 + 4 + r
            wr, wi = WR + mtl * 4 + r, WI + mtl * 4 + r
            e(f'v_mul_f32 v{YR+mtl*4+r}, v{xr}, v{wr}')
            e(f'v_mul_f32 v{YI+mtl*4+r}, v{xr}, v{wi}')
            e(f'v_fma_f32 v{YR+mtl*4+r}, -v{xi}, v{wi}, v{YR+mtl*4+r}')
            e(f'v_fma_f32 v{YI+mtl*4+r}, v{xi}, v{wr}, v{YI+mtl*4+r}')
    for c, src in ((0, YR), (1, YI)):
        for i in range(4):
            e(f'v_cvt_pk_bf16_f32 v{YF+c*8+i}, v{src+(i>>1)*4+2*(i&1)}, v{src+(i>>1)*4+2*(i&1)+1}')
    e('v_lshlrev_b32 v10, 4, v1')
    e(f's_lshl_b32 s52, s{sW}, 11')
    e('v_add_u32 v12, s52, v10')
    e(f's_xor_b32 s52, s{sW}, 1')
    e('s_lshl_b32 s52, s52, 11')
    e('v_add_u32 v13, s52, v10')
    e.ds(f'ds_write_b128 v12, {vr(YF,4)}')
    e.ds(f'ds_write_b128 v12, {vr(YF+8,4)} offset:1024')
    e.wait_ds_all()
    e.barrier()
    p0 = e.ds(f'ds_read_b128 {vr(YF+4,4)}, v13')
    p1_ = e.ds(f'ds_read_b128 {vr(YF+12,4)}, v13 offset:1024')
    YRE = lambda t: YF + t * 4
    YIM = lambda t: YF + 8 + t * 4
    for mtl in range(2):
        xr, xi = XA + mtl * 8, XA + mtl * 8 + 4
        mm(xr, fr(FC, mtl, 0), YRE(0), True);  mm(xi, fr(FS, mtl, 0), YRE(0), True)
        mm(xr, fr(FN, mtl, 0), YIM(0), False); mm(xi, fr(FC, mtl, 0), YIM(0), False)
    e.wait_ds(p1_)
    for mtl in range(2):
        xr, xi = XA + mtl * 8, XA + mtl * 8 + 4
        mm(xr, fr(FC, mtl, 1), YRE(1), False); mm(xi, fr(FS, mtl, 1), YRE(1), False)
        mm(xr, fr(FN, mtl, 1), YIM(1), False); mm(xi, fr(FC, mtl, 1), YIM(1), False)
    e('s_mov_b32 s52, %d' % (4 * 28672))
    e('v_mul_lo_u32 v4, v3, s52')
    e('v_lshlrev_b32 v5, 2, v2')
    e('v_add_u32 v4, v4, v5')
    e('s_lshl_b32 s52, s57, 11')
    e('s_lshl_b32 s53, s56, 6')
    e('s_add_u32 s52, s52, s53')
    e(f's_mul_i32 s53, s58, {32*28672}')
    e('s_add_u32 s52, s52, s53')
    last = None
    for mtl in range(2):
        for r in range(4): e(f'v_cvt_pk_bf16_f32 v{TIN+mtl*4+r}, v{XA+mtl*8+r}, v{XA+mtl*8+4+r}')
        for r in range(4):
            e(f's_add_u32 s53, s52, {T2_OFF + (16*mtl+r)*28672}')
            last = e.vm(f'buffer_store_dword v{TIN+mtl*4+r}, v4, {SWS}, s53 offen sc1')
    stamp(e, 'B.stored')
    e.wait_vm_all()
    stamp(e, 'B.drained')

def phase_c(e):
    e.c('======== window 2 + phase C')
    e(f's_lshl_b32 s56, s{sGRP}, 2')
    e(f's_add_u32 s56, s56, s{sW}')
    e('s_min_u32 s57, s56, 13')
    G, TC, AIN, VA, PA, XR = C_G, C_TC, 104, 136, 48, 64
    MEAN = XR + 8
    e('v_lshlrev_b32 v5, 6, v2')
    e(f'v_add_u32 v5, s{sB}, v5')
    e('v_mul_u32_u24 v5, 896, v5')
    e('v_lshlrev_b32 v6, 3, v3')
    e('v_add_u32 v5, v5, v6')
    e('s_lshl_b32 s52, s57, 5')
    e('v_add_u32 v5, s52, v5')
    for nt in range(2):
        for pm in range(2):
            e(f's_mov_b32 s52, {nt*16*64*896}')
            e.vm(f'buffer_load_dwordx2 {vr(XR+(nt*2+pm)*2,2)}, v5, {SX}, s52 offen offset:{448*pm}')
    e('v_lshlrev_b32 v12, 2, v1')
    stamp(e, 'W2.ready')
    def idx(e): e('v_lshlrev_b32 v5, 6, v1')
    poll(e, 1, 256, idx, preg=16)
    stamp(e, 'C.go')
    w13_setup(e)
    WG = w13_load_groups()
    wgi = [0]
    def wload(n):
        for _ in range(n):
            if wgi[0] < len(WG):
                emit_groups(e, [WG[wgi[0]]]); wgi[0] += 1
    atok = {}
    for i in range(4):
        e(f's_add_u32 s52, s{sW}, {4*i}')
        e('s_min_u32 s52, s52, 13')
        e(f's_mul_i32 s53, s{sB}, 14')
        e('s_add_u32 s52, s52, s53')
        e('s_lshl_b32 s52, s52, 11')
        e(f's_add_u32 s52, s52, 0x{T2_OFF:x}')
        for t in range(2):
            for ii in range(4):
                atok[(i, t, ii)] = e.vm(f'buffer_load_dword v{AIN+i*8+t*4+ii}, v12, {SWS}, s52 offen offset:{(16*t+4*ii)*64} sc1')
    e('v_lshlrev_b32 v6, 2, v2')
    e(f's_lshl_b32 s52, s{sB}, 7')
    e(f's_add_u32 s52, s52, 0x{ST1_OFF:x}')
    mtok = [e.vm(f'buffer_load_dword v{MEAN+nt}, v6, {SWS}, s52 offen offset:{64*nt} sc1') for nt in range(2)]
    e('v_lshlrev_b32 v11, 4, v1')
    e(f's_lshl_b32 s52, s{sW}, 11')
    e('v_add_u32 v12, s52, v11')
    PK = 76
    for i in range(4):
        e.wait_vm(atok[(i, 1, 3)])
        if i == 0: stamp(e, 'C.loaded')
        for nt in range(2):
            for out in range(2):
                d = VA + (out * 2 + nt) * 4
                e(f'v_mfma_f32_16x16x32_bf16 {vr(d,4)}, {vr(AIN+i*8,4)}, {vr(G+((out*2+0)*2+nt)*4,4)}, 0')
        for nt in range(2):
            for out in range(2):
                d = VA + (out * 2 + nt) * 4
                e(f'v_mfma_f32_16x16x32_bf16 {vr(d,4)}, {vr(AIN+i*8+4,4)}, {vr(G+((out*2+1)*2+nt)*4,4)}, {vr(d,4)}')
        sk = L('skip3')
        if i == 3:
            e(f's_cmp_ge_u32 s{sW}, 2')
            e(f's_cbranch_scc1 {sk}')
        for nt in range(2):
            p = PK + nt * 4 + (i & 1) * 8
            vre, vim = VA + (0 * 2 + nt) * 4, VA + (1 * 2 + nt) * 4
            e(f'v_cvt_pk_bf16_f32 v{p+0}, v{vre+0}, v{vre+1}')
            e(f'v_cvt_pk_bf16_f32 v{p+1}, v{vre+2}, v{vre+3}')
            e(f'v_cvt_pk_bf16_f32 v{p+2}, v{vim+0}, v{vim+1}')
            e(f'v_cvt_pk_bf16_f32 v{p+3}, v{vim+2}, v{vim+3}')
            e.ds(f'ds_write_b128 v12, {vr(p,4)} offset:{(4*i*2+nt)*1024}')
        if i == 3: e.label(sk)
        wload(OPT['st1'])
    e.wait_ds_all()
    stamp(e, 'C.st1')
    e.barrier()
    VB = 16
    order = [(kb, nt) for kb in range(14) for nt in range(2)]
    tok = {}
    nread = [0]
    def issue():
        kb, nt = order[nread[0]]
        tok[nread[0]] = e.ds(f'ds_read_b128 {vr(VB+(nread[0]%8)*4,4)}, v11 offset:{(kb*2+nt)*1024}')
        nread[0] += 1
    for _ in range(7): issue()
    for idx_, (kb, nt) in enumerate(order):
        e.wait_ds(tok[idx_])
        par = 0 if kb < 7 else 1
        d = PA + (par * 2 + nt) * 4
        first = kb in (0, 7)
        e(f'v_mfma_f32_16x16x32_bf16 {vr(d,4)}, {vr(TC+kb*4,4)}, {vr(VB+(idx_%8)*4,4)}, {"0" if first else vr(d,4)}')
        if nread[0] < len(order): issue()
        if OPT['st2'] and idx_ % OPT['st2'] == OPT['st2'] - 1: wload(1)
    stamp(e, 'C.st2')
    e.wait_vm(mtok[1])
    H, HP, CP, SQ = 104, 120, 128, 92
    e('s_mov_b32 s52, 0xffff0000')
    for nt in range(2):
        pe, po = PA + nt * 4, PA + 8 + nt * 4
        for pm in range(2):
            xr = XR + (nt * 2 + pm) * 2
            for r in range(4):
                hv = H + (nt * 2 + pm) * 4 + r
                e(f'{"v_add_f32" if pm == 0 else "v_sub_f32"} v{hv}, v{pe+r}, v{po+r}')
                xv = 96 + r
                if r & 1: e(f'v_and_b32 v{xv}, s52, v{xr+(r>>1)}')
                else: e(f'v_lshlrev_b32 v{xv}, 16, v{xr+(r>>1)}')
            for r in range(4):
                hv = H + (nt * 2 + pm) * 4 + r
                e(f'v_add_f32 v{hv}, v{hv}, v{96+r}')
            for i in range(2):
                hv = H + (nt * 2 + pm) * 4 + 2 * i
                e(f'v_cvt_pk_bf16_f32 v{HP+nt*4+pm*2+i}, v{hv}, v{hv+1}')
        e(f'v_mov_b32 v{SQ+nt}, 0')
        for q in range(4):
            hp = HP + nt * 4 + q
            e(f'v_lshlrev_b32 v100, 16, v{hp}')
            e(f'v_and_b32 v101, s52, v{hp}')
            e(f'v_sub_f32 v100, v100, v{MEAN+nt}')
            e(f'v_sub_f32 v101, v101, v{MEAN+nt}')
            e(f'v_fma_f32 v{SQ+nt}, v100, v100, v{SQ+nt}')
            e(f'v_fma_f32 v{SQ+nt}, v101, v101, v{SQ+nt}')
            e(f'v_cvt_pk_bf16_f32 v{CP+nt*4+q}, v100, v101')
            wload(OPT['epi'])
    e('v_lshrrev_b32 v4, 1, v3')
    e('v_lshlrev_b32 v4, 10, v4')
    e('v_and_b32 v5, 1, v3')
    e('v_lshlrev_b32 v5, 9, v5')
    e('v_add_u32 v4, v4, v5')
    e('v_lshlrev_b32 v5, 4, v2')
    e('v_add_u32 v4, v4, v5')
    e(f's_mul_i32 s52, s{sB}, 28')
    e('s_lshl_b32 s53, s57, 1')
    e('s_add_u32 s52, s52, s53')
    e('s_lshl_b32 s52, s52, 10')
    ns, st = L('cnostore'), L('cstat')
    e('s_cmp_ge_u32 s56, 14')
    e(f's_cbranch_scc1 {ns}')
    e(f's_add_u32 s53, s52, 0x{HC_OFF:x}')
    e(f's_add_u32 s54, s52, 0x{HR_OFF:x}')
    for nt in range(2):
        e(f'buffer_store_dwordx4 {vr(CP+nt*4,4)}, v4, {SWS}, s53 offen offset:{256*nt} sc1')
        e(f'buffer_store_dwordx4 {vr(HP+nt*4,4)}, v4, {SWS}, s54 offen offset:{256*nt} sc1')
    e.label(ns)
    for nt in range(2): xsum_groups(e, SQ + nt, 102)
    e('s_cmp_lt_u32 s56, 14')
    e(f's_cbranch_scc1 {st}')
    e(f'v_mov_b32 v{SQ}, 0')
    e(f'v_mov_b32 v{SQ+1}, 0')
    e.label(st)
    e('v_cmp_le_u32 vcc, 16, v1')
    e(f'v_cndmask_b32 v{SQ}, v{SQ}, v{SQ+1}, vcc')
    e('v_lshlrev_b32 v5, 2, v1')
    e(f's_lshl_b32 s52, s{sB}, 11')
    e('s_lshl_b32 s53, s56, 7')
    e('s_add_u32 s52, s52, s53')
    e(f's_add_u32 s52, s52, 0x{ST2_OFF:x}')
    e('s_mov_b64 exec, 0xffffffff')
    last = e.vm(f'buffer_store_dword v{SQ}, v5, {SWS}, s52 offen sc1')
    e('s_mov_b64 exec, -1')
    stamp(e, 'C.stored')
    wload(OPT['post'])
    e.wait_vm(last)
    stamp(e, 'C.drained')
    signal(e, 2)
    global W13_PENDING
    W13_PENDING = (WG, wgi)

NV, NE = 27, 35
def w2reg(mi, s_):
    o = 2 * s_ + mi
    if o < NV: return vr(144 + 4 * o, 4), None
    if o < NE: return ar(224 + 4 * (o - NV), 4), None
    oo = o - NE
    return ar(((oo & 1) * 28 + (oo >> 1)) * 4, 4), (oo & 1, oo >> 1)

def phase_g(e):
    e.c('======== window 3 + G1')
    WG, wgi = W13_PENDING
    wtok = {}
    for _ in range(min(OPT['w3'], len(WG) - wgi[0])):
        wtok[wgi[0]] = emit_groups(e, [WG[wgi[0]]]); wgi[0] += 1
    e('v_lshlrev_b32 v4, 4, v1')
    e(f's_lshl_b32 s56, s{sC}, 3')
    e(f's_lshl_b32 s52, s{sW}, 1')
    e('s_add_u32 s56, s56, s52')
    e(f's_lshl_b32 s57, s{sR}, 2')
    e('s_and_b32 s58, s2, 7')
    e('s_lshr_b32 s59, s2, 3')
    e('s_mul_i32 s52, s59, 37')
    e('s_lshr_b32 s52, s52, 8')
    e('s_mul_i32 s53, s52, 7')
    e('s_sub_u32 s59, s59, s53')
    e('s_lshl_b32 s52, s52, 3')
    e('s_add_u32 s58, s58, s52')
    e(f's_mul_i32 s52, s{sW}, 28')
    e(f's_and_b32 s54, s{sW}, 1')
    for mi in range(2):
        e(f's_xor_b32 s53, s54, {mi}')
        e('s_lshl_b32 s55, s59, 1')
        e('s_add_u32 s53, s53, s55')
        e('s_mul_i32 s53, s53, 112')
        e('s_add_u32 s53, s53, s52')
        e('s_lshl_b32 s53, s53, 10')
        e(f's_add_u32 s{60+mi}, s53, 0x{W2_OFF:x}')
    e(f's_lshr_b32 s53, s{sW}, 1')
    e('s_lshl_b32 s53, s53, 4')
    e('v_xor_b32 v10, s53, v1')
    e('v_lshlrev_b32 v10, 4, v10')
    e('v_min_u32 v8, 13, v1')
    e('v_lshrrev_b32 v9, 1, v8')
    e('v_and_b32 v8, 1, v8')
    e('v_lshlrev_b32 v8, 7, v8')
    e('v_add_u32 v8, v8, v9')
    e('s_lshr_b32 s53, s58, 1')
    e('s_lshl_b32 s53, s53, 3')
    e('v_add_u32 v8, s53, v8')
    e('v_lshlrev_b32 v8, 6, v8')
    def grp_off(dst, g):
        if not OPT['g2rot']: return [f's_mov_b32 s{dst}, {g*4096}']
        return [f's_add_u32 s{dst}, s59, {g}', f's_cmp_ge_u32 s{dst}, 7', f's_cselect_b32 s55, 7, 0',
                f's_sub_u32 s{dst}, s{dst}, s55', f's_lshl_b32 s{dst}, s{dst}, 12']
    def w2load(o):
        s_, mi = o >> 1, o & 1
        reg, dep = w2reg(mi, s_)
        pre = []
        if s_ % 4 == 0 and mi == 0:
            pre = grp_off(62, s_ // 4) + ['s_add_u32 s63, s61, s62', 's_add_u32 s62, s60, s62']
        return pre + [('vm', f'buffer_load_dwordx4 {reg}, v10, {SWS}, s{62+mi} offen offset:{(s_%4)*1024} sc1')]
    def idx(e):
        e('v_lshrrev_b32 v5, 2, v1')
        e('v_add_u32 v5, s57, v5')
        e('v_and_b32 v6, 7, v5')
        e('v_lshrrev_b32 v5, 3, v5')
        e('v_lshlrev_b32 v5, 5, v5')
        e('v_add_u32 v5, v5, v6')
        e('v_and_b32 v6, 3, v1')
        e('v_lshlrev_b32 v6, 3, v6')
        e('v_add_u32 v5, v5, v6')
        e('v_lshlrev_b32 v5, 6, v5')
        idxw(e, 16)
    def idxw(e, first):
        e(f'v_add_u32 v6, {208 if first == 16 else 224}, v1')
        e('v_lshlrev_b32 v6, 6, v6')
        e(f'v_add_u32 v6, {2*0x40000}, v6')
        if first:
            e(f'v_cmp_le_u32 vcc, {first}, v1')
            e('v_cndmask_b32 v5, v5, v6, vcc')
        else:
            e('v_mov_b32 v5, v6')
    e(f's_cmp_ge_u32 s{sC}, 14')
    e('s_cbranch_scc1 L_g2only')
    poll(e, 2, 44, idx)
    stamp(e, 'G1.go')
    ACC, BR, RRG, T = 64, 16, 48, 128
    ST = 208
    dtok = {}
    e(f's_mul_i32 s96, s{sW}, 7168')
    e(f's_add_u32 s98, s{sR}, s{sW}')
    e('s_and_b32 s98, s98, 3')
    e('s_mul_i32 s98, s98, 7168')
    def hc_groups(nt):
        gs = []
        for i in range(7):
            g = []
            if i == 0:
                g += [f's_add_u32 s97, s57, {nt}', 's_mul_i32 s97, s97, 28672', 's_add_u32 s97, s97, s98', f's_add_u32 s97, s97, 0x{HC_OFF:x}']
            if i == 4: g += ['s_add_u32 s97, s97, 4096']
            if i in (0, 4): g += [f's_add_u32 m0, s96, {nt*28672 + (4096 if i == 4 else 0)}']
            g.append(('vm', f'buffer_load_dwordx4 v4, {SWS}, s97 offen offset:{(i%4)*1024} sc1 lds', ('hc', nt)))
            gs.append(g)
        return gs
    STK = []; STORES = []
    def emit_op(op):
        if isinstance(op, tuple) and op[0] == 'ds':
            STK.append(e.ds(op[1])); return None
        if isinstance(op, tuple) and op[0] == 'dswait':
            e.wait_ds(STK[op[1] * 8 + 7]); return None
        if isinstance(op, tuple):
            t = e.vm(op[1])
            if len(op) > 2:
                if op[2][0] == 'store': STORES.append(t)
                if op[2][0] == 'hc': dtok[op[2][1]] = t
                if op[2][0] == 'st': dtok['st'] = t
            return t
        e(op); return None
    for g in hc_groups(0):
        for op in g: emit_op(op)
    e(f's_add_u32 s54, s57, s{sW}')
    e('s_lshl_b32 s54, s54, 11')
    e(f's_add_u32 s54, s54, 0x{ST2_OFF:x}')
    e(f's_lshl_b32 s55, s{sW}, 11')
    e(f's_add_u32 m0, s55, {LDS_STATS}')
    e.vm(f'buffer_load_dwordx4 v4, {SWS}, s54 offen sc1 lds')
    dtok[0] = e.vm(f'buffer_load_dwordx4 v4, {SWS}, s54 offen offset:1024 sc1 lds')
    while wgi[0] < len(WG):
        wtok[wgi[0]] = emit_groups(e, [WG[wgi[0]]]); wgi[0] += 1
    e('v_add_u32 v6, 57344, v4')
    e('v_and_b32 v5, 31, v1')
    e('v_lshlrev_b32 v5, 2, v5')
    e('v_lshrrev_b32 v7, 5, v1')
    e('v_lshlrev_b32 v7, 10, v7')
    e('v_add_u32 v5, v5, v7')
    e(f'v_add_u32 v5, {LDS_STATS}, v5')
    def stat_ops():
        ops = []
        for nt in range(4):
            b0 = ST + nt * 8
            for i in range(8): ops.append(('ds', f'ds_read_b32 v{b0+i}, v5 offset:{nt*2048 + i*128}'))
        for nt in range(4):
            b0 = ST + nt * 8
            ops.append(('dswait', nt))
            ops += [f'v_add_f32 v{b0}, v{b0}, v{b0+1}', f'v_add_f32 v{b0+2}, v{b0+2}, v{b0+3}', f'v_add_f32 v{b0+4}, v{b0+4}, v{b0+5}',
                    f'v_add_f32 v{b0+6}, v{b0+6}, v{b0+7}', f'v_add_f32 v{b0}, v{b0}, v{b0+2}', f'v_add_f32 v{b0+4}, v{b0+4}, v{b0+6}',
                    f'v_add_f32 v{b0}, v{b0}, v{b0+4}', f'v_mov_b32 v{b0+1}, v{b0}', f'v_mov_b32 v7, {lit(1e-5)}',
                    f'v_permlane32_swap_b32 v{b0+1}, v{b0}', f'v_add_f32 v{b0}, v{b0}, v{b0+1}',
                    f'v_fmamk_f32 v{RRG+4+nt}, v{b0}, {lit(1.0/448)}, v7', f'v_rsq_f32 v{b0}, v{RRG+4+nt}', 's_nop 0',
                    f'v_mul_f32 v{RRG+nt}, {lit(-1.4426950408889634)}, v{b0}']
        return ops
    def epi_half(nt, mi):
        ops = []
        a = ACC + ((nt & 1) * 2 + mi) * 16
        T0 = T
        for r in range(8): ops.append(f'v_mul_f32 v{T0+r}, v{a+r}, v{RRG+nt}')
        for r in range(8):
            ops.append(f'v_exp_f32 v{T0+r}, v{T0+r}')
            ops.append(f'v_mul_f32 v{T0+8+r}, v{a+r}, v{a+8+r}')
        for r in range(8): ops.append(f'v_fma_f32 v{T0+r}, v{T0+r}, v{RRG+4+nt}, v{RRG+4+nt}')
        for r in range(8): ops.append(f'v_rcp_f32 v{T0+r}, v{T0+r}')
        for r in range(8): ops.append(f'v_mul_f32 v{T0+8+r}, v{T0+8+r}, v{T0+r}')
        P = 56 + mi * 4
        for i in range(4): ops.append(f'v_cvt_pk_bf16_f32 v{P+i}, v{T0+8+2*i}, v{T0+8+2*i+1}')
        ops.append(f's_add_u32 s53, s99, {nt*112*1024 + mi*1024}')
        ops.append(('vm', f'buffer_store_dwordx4 {vr(P,4)}, v4, {SWS}, s53 offen sc1', ('store',)))
        return ops
    def epi_ops(nt): return epi_half(nt, 0) + epi_half(nt, 1)
    e('s_mul_i32 s99, s57, 112')
    e('s_add_u32 s99, s99, s56')
    e('s_lshl_b32 s99, s99, 10')
    e(f's_add_u32 s99, s99, 0x{HM_OFF:x}')
    n1 = OPT['w2t1']
    bg = {0: hc_groups(1) + hc_groups(2), 1: hc_groups(3) + [w2load(o) for o in range(0, n1)],
          2: [w2load(o) for o in range(n1, NE)], 3: []}
    last_store = None
    next_late = NE
    def g2_bases(em):
        em('s_lshr_b32 s52, s58, 1')
        em('s_lshl_b32 s52, s52, 2')
        em('s_and_b32 s53, s58, 1')
        em('s_add_u32 s100, s52, s53')
        em('s_sub_u32 s101, s52, s53')
        em('s_add_u32 s101, s101, 3')
        em(f's_mul_i32 s52, s{sW}, 28')
        for k in range(2):
            em(f's_mul_i32 s53, s{100+k}, 112')
            em('s_add_u32 s53, s53, s52')
            em('s_lshl_b32 s53, s53, 10')
            em(f's_add_u32 s{88+k}, s53, 0x{HM_OFF:x}')
    g2_bases(e)
    RING = 64
    rtok = {}
    def ring_load(ph, i):
        if i % 4 == 0: e(f's_add_u32 s90, s{88+ph}, {i*1024}')
        rtok[(ph, i)] = e.vm(f'buffer_load_dwordx4 {vr(RING+(i%8)*4,4)}, v4, {SWS}, s90 offen offset:{(i%4)*1024} sc1')
    def early_check(tok_):
        dn, lp = L('ec'), L('ec')
        e(f's_mov_b32 s{sSPIN}, 0')
        e.label(lp)
        if tok_ is None:
            e(f'buffer_load_dword v9, v8, {SWS}, s91 offen sc1')
            e('s_waitcnt vmcnt(0)')
        e(f'v_cmp_ne_u32 vcc, s{sNONCE}, v9')
        e('s_nop 4')
        e(f's_cbranch_vccz {dn}')
        if tok_ is not None:
            e(f'buffer_load_dword v9, v8, {SWS}, s91 offen sc1')
            e('s_waitcnt vmcnt(0)')
        e(f's_add_u32 s{sSPIN}, s{sSPIN}, 1')
        e(f's_cmp_lt_u32 s{sSPIN}, {MAXSPIN}')
        e(f's_cbranch_scc1 {lp}')
        e.label(dn)
    etok = None
    for nt in range(4):
        e.wait_vm(dtok[nt])
        e.barrier()
        if nt == 0: stamp(e, 'G1.t0')
        fill = epi_ops(nt - 1) if nt > 0 else stat_ops()
        sttok = []
        fi = 0; gi = 0
        btok = {}
        n = [0]
        def issue():
            kap = n[0]
            base = 'v4' if nt < 2 else 'v6'
            off = ((nt & 1) * 28 + kap) * 1024
            btok[kap] = e.ds(f'ds_read_b128 {vr(BR+(kap%8)*4,4)}, {base} offset:{off}')
            n[0] += 1
        for _ in range(5): issue()
        nm = 0
        G_ = bg[nt]
        for kap in range(28):
            e.wait_ds(btok[kap])
            for mi in range(2):
                a = ACC + ((nt & 1) * 2 + mi) * 16
                if nt == 0 and (kap * 2 + mi) in wtok: e.wait_vm(wtok[kap * 2 + mi])
                e(f'v_mfma_f32_32x32x16_bf16 {vr(a,16)}, {ar((mi*28+kap)*4,4)}, {vr(BR+(kap%8)*4,4)}, {"0" if kap == 0 else vr(a,16)}')
                nm += 1
                if mi == 0 and n[0] < 28: issue()
                span = 24 if nt == 3 else 56
                want = (len(G_) * nm + span - 1) // span
                while gi < min(want, len(G_)):
                    for op in G_[gi]: emit_op(op)
                    gi += 1
                if nt == 3 and gi >= len(G_) and nm * 21 >= (next_late - NE + 1) * OPT['latesp'] and next_late < 56:
                    dep = w2reg(next_late & 1, next_late >> 1)[1]
                    if dep[1] * 2 + dep[0] < nm:
                        for op in w2load(next_late): emit_op(op)
                        next_late += 1
                if nt == 3 and nm == OPT['eflag']:
                    e.wait_vm(STORES[3])
                    e.barrier()
                    flag_store(e, 5)
                if nm > 3:
                    fs = OPT['fspan'] if nt == 2 else 50
                    want = (len(fill) * (nm - 3) + fs - 1) // fs
                    while fi < min(want, len(fill)):
                        t = emit_op(fill[fi]); fi += 1
        while fi < len(fill):
            emit_op(fill[fi]); fi += 1
        stamp(e, f'G1.tile{nt}')
    for op in epi_ops(3):
        t = emit_op(op)
        if isinstance(op, tuple): last_store = t
    stamp(e, 'G1.stored')
    assert next_late == 56
    skr, skr2 = L('nog2'), L('nog2')
    e('s_cmp_ge_u32 s2, 224')
    e(f's_cbranch_scc1 {skr}')
    e(f's_add_u32 s91, s{sREP}, 0x{FL_OFF + 5*0x40000:x}')
    e(f'buffer_load_dword v9, v8, {SWS}, s91 offen sc1')
    e.label(skr)
    e('s_waitcnt vmcnt(0)')
    e.vm_done = e.vm_issued
    stamp(e, 'G1.drained')
    signal(e, 3)
    e('s_cmp_ge_u32 s2, 224')
    e('s_cbranch_scc1 L_fin')
    early_check(0)
    e('s_branch L_g2')
    e.label('L_g2only')
    e('s_cmp_ge_u32 s2, 224')
    e('s_cbranch_scc1 L_fin')
    poll(e, 2, 28, lambda e_: idxw(e_, 0))
    for o in range(56):
        for op in w2load(o): e(op[1] if isinstance(op, tuple) else op)
    g2_bases(e)
    e(f's_add_u32 s91, s{sREP}, 0x{FL_OFF + 5*0x40000:x}')
    early_check(None)
    e.label('L_g2')
    for i in range(8): ring_load(0, i)
    e.c('======== G2')
    ACC2, R0, HRR = 16, 96, 140
    e(f's_and_b32 s60, s{sW}, 1')
    e('s_lshl_b32 s53, s59, 1')
    e('s_add_u32 s60, s60, s53')
    e(f's_lshr_b32 s61, s{sW}, 1')
    for k in range(3):
        e(f's_xor_b32 s52, s{sW}, {k+1}')
        e('s_mul_i32 s52, s52, 6144')
        e(f'v_add_u32 v{11+k}, s52, v4')
    e(f's_mul_i32 s52, s{sW}, 6144')
    e('v_add_u32 v133, s52, v4')
    e('v_and_b32 v5, 31, v1')
    e('v_mul_u32_u24 v5, %d, v5' % (64 * 896))
    e('v_lshrrev_b32 v6, 5, v1')
    e('v_mul_u32_u24 v6, 448, v6')
    e('v_add_u32 v132, v5, v6')
    HR_ = {0: 140, 1: 136}
    def accreg(ph, mi, off=0, n=16):
        return vr(ACC2 + mi * 16 + off, n) if ph == 0 else ar(80 + mi * 16 + off, n)
    def hr_load(ph):
        e(f's_mul_i32 s52, s{100+ph}, 28')
        e('s_lshl_b32 s53, s60, 1')
        e('s_add_u32 s52, s52, s53')
        e('s_add_u32 s52, s52, s61')
        e('s_lshl_b32 s52, s52, 10')
        e(f's_add_u32 s52, s52, 0x{HR_OFF:x}')
        return e.vm(f'buffer_load_dwordx4 {vr(HR_[ph],4)}, v4, {SWS}, s52 offen sc1')
    def tail_ops(ph, htok):
        ops = []
        for k, (mi, rh) in enumerate(((1, 0), (0, 1), (1, 1))):
            for qd in range(2):
                ops.append(('ds', f'ds_write_b128 v{11+k}, {accreg(ph, mi, rh*8 + qd*4, 4)} offset:{ph*24576 + k*2048 + qd*1024}'))
        ops.append(('dswaitall',))
        ops.append('s_barrier')
        for k in range(3):
            for qd in range(2):
                ops.append(('ds', f'ds_read_b128 {vr(R0+k*8+qd*4,4)}, v133 offset:{ph*24576 + k*2048 + qd*1024}'))
        if ph == 1:
            for r in range(8): ops.append(f'v_accvgpr_read_b32 v{ACC2+r}, a{80+r}')
        ops.append(('dswaitall',))
        for r in range(8):
            ops.append(f'v_add_f32 v{R0+r}, v{R0+r}, v{R0+8+r}')
            ops.append(f'v_add_f32 v{R0+16+r}, v{R0+16+r}, v{ACC2+r}')
        for r in range(8): ops.append(f'v_add_f32 v{R0+r}, v{R0+r}, v{R0+16+r}')
        ops.append(('vmwait', htok))
        PK, O = 120, 124
        for i in range(4): ops.append(f'v_cvt_pk_bf16_f32 v{PK+i}, v{R0+2*i}, v{R0+2*i+1}')
        for i in range(4):
            ops += [f'v_lshlrev_b32 v128, 16, v{PK+i}', f'v_and_b32 v129, s87, v{PK+i}', f'v_lshlrev_b32 v130, 16, v{HR_[ph]+i}',
                    f'v_and_b32 v131, s87, v{HR_[ph]+i}', 'v_add_f32 v128, v128, v130', 'v_add_f32 v129, v129, v131',
                    f'v_cvt_pk_bf16_f32 v{O+i}, v128, v129']
        ops += [f'v_permlane32_swap_b32 v{O}, v{O+2}', f'v_permlane32_swap_b32 v{O+1}, v{O+3}']
        ops += ['s_lshl_b32 s52, s60, 5', 's_lshl_b32 s53, s61, 4', 's_add_u32 s52, s52, s53', f's_mul_i32 s53, s{100+ph}, 896', 's_add_u32 s52, s52, s53']
        om = ['', ' sc1', ' nt', ' sc0 sc1'][OPT['outmod']]
        ops.append(('vm', f'buffer_store_dwordx4 {vr(O,4)}, v132, {SOUT}, s52 offen{om}'))
        return ops
    def run_op(op):
        if isinstance(op, tuple):
            if op[0] == 'ds': e.ds(op[1])
            elif op[0] == 'dswaitall': e.wait_ds_all()
            elif op[0] == 'vmwait': e.wait_vm(op[1])
            elif op[0] == 'vm': e.vm(op[1])
        else: e(op)
    e('s_mov_b32 s87, 0xffff0000')
    htok = {0: hr_load(0)}
    fill = []; fi = 0
    def rl(tau):
        ph_, i_ = divmod(tau, 28)
        if i_ % 4 == 0: e(f's_add_u32 s90, s{88+ph_}, {i_*1024}')
        rtok[tau] = e.vm(f'buffer_load_dwordx4 {vr(RING+(tau%8)*4,4)}, v4, {SWS}, s90 offen offset:{(i_%4)*1024} sc1')
    for i in range(8): rtok[i] = rtok[(0, i)]
    for tau in range(56):
        ph, i = divmod(tau, 28)
        e.wait_vm(rtok[tau])
        if tau == 0: stamp(e, 'G2.first')
        for mi in range(2):
            e(f'v_mfma_f32_32x32x16_bf16 {accreg(ph, mi)}, {w2reg(mi,i)[0]}, {vr(RING+(tau%8)*4,4)}, {"0" if i == 0 else accreg(ph, mi)}')
        if tau == OPT['lpoll']:
            e(f's_add_u32 s91, s{sREP}, 0x{FL_OFF + 3*0x40000:x}')
            ltok = e.vm(f'buffer_load_dword v9, v8, {SWS}, s91 offen sc1')
        if tau + 8 == 28:
            e.wait_vm(ltok)
            early_check(ltok)
            stamp(e, 'G2.go')
        if tau + 8 < 56: rl(tau + 8)
        if tau == 28:
            htok[1] = hr_load(1)
            fill = tail_ops(0, htok[0])
        if tau == 27: stamp(e, 'G2.mfma0')
        if tau > 28:
            want = (len(fill) * (tau - 28) + 23) // 24
            while fi < min(want, len(fill)):
                run_op(fill[fi]); fi += 1
    while fi < len(fill):
        run_op(fill[fi]); fi += 1
    stamp(e, 'G2.mfma1')
    for op in tail_ops(1, htok[1]): run_op(op)
    stamp(e, 'G2.end')

DBGOUT = False
def dbg_out(e):
    sk = L('dbo')
    e('s_waitcnt vmcnt(0)')
    e('s_memrealtime s[84:85]')
    e('s_memtime s[90:91]')
    e('s_waitcnt lgkmcnt(0)')
    e(f's_cmp_lg_u32 s{sW}, 0')
    e(f's_cbranch_scc1 {sk}')
    e('s_and_b32 s52, s2, 63')
    e('s_cmp_lg_u32 s52, 0')
    e(f's_cbranch_scc1 {sk}')
    e('s_lshr_b32 s52, s2, 6')
    e('s_lshl_b32 s52, s52, 4')
    e('s_add_u32 s52, s52, 16')
    e('s_sub_u32 s53, s84, s86')
    e('s_sub_u32 s54, s90, s82')
    e('v_mov_b32 v4, s53'); e('v_mov_b32 v5, s54'); e('v_mov_b32 v6, s86'); e('v_mov_b32 v7, s84')
    e('v_mov_b32 v8, 0')
    e('s_mov_b64 exec, 1')
    e(f'buffer_store_dwordx4 v[4:7], v8, {SDBG}, s52 offen sc1')
    e('s_mov_b64 exec, -1')
    e.label(sk)

def probe(e):
    sk = L('prb'); lp = L('prl')
    e('s_cmp_lg_u32 s2, 0')
    e(f's_cbranch_scc1 {sk}')
    e('s_waitcnt vmcnt(0)')
    e('s_memrealtime s[84:85]')
    e('s_waitcnt lgkmcnt(0)')
    e('s_sub_u32 s84, s84, s86')
    e(f's_cmp_lt_u32 s84, {OPT["probe"]}')
    e(f's_cbranch_scc1 {sk}')
    e('s_mov_b32 s85, 0')
    e.label(lp)
    e('s_sleep 64')
    e('s_add_u32 s85, s85, 1')
    e('s_cmp_lt_u32 s85, 20')
    e(f's_cbranch_scc1 {lp}')
    e.label(sk)

def diag_dump(e):
    if OPT['probe']: probe(e)
    if DBGOUT: dbg_out(e)
    if not DIAG: return
    e.wait_vm_all()
    rstamp(e, 'rt_end')
    e('s_lshl_b32 s52, s2, 2')
    e(f's_add_u32 s52, s52, s{sW}')
    e('s_lshl_b32 s52, s52, 8')
    e(f's_add_u32 s52, s52, 0x{DIAG_OFF:x}')
    e('v_lshlrev_b32 v4, 2, v1')
    e(f'buffer_store_dword v255, v4, {SWS}, s52 offen')

def kernel():
    e = Emit()
    e.label(KN)
    e('s_cmp_ge_u32 s2, 256')
    e('s_cbranch_scc1 L_end')
    e('s_load_dwordx16 s[64:79], s[0:1], 0')
    e('s_load_dwordx4 s[80:83], s[0:1], 64')
    e('s_memrealtime s[86:87]')
    if DBGOUT: e('s_memtime s[82:83]')
    if DIAG: e('v_mov_b32 v255, 0')
    e('v_lshrrev_b32 v4, 6, v0')
    e('v_and_b32 v1, 63, v0')
    e(f'v_readfirstlane_b32 s{sW}, v4')
    e('v_and_b32 v2, 15, v0')
    e('v_bfe_u32 v3, v0, 4, 2')
    e(f's_and_b32 s{sB}, s2, 7')
    e('s_lshr_b32 s52, s2, 5')
    e('s_lshl_b32 s52, s52, 3')
    e(f's_add_u32 s{sB}, s{sB}, s52')
    e(f's_lshr_b32 s{sGRP}, s2, 3')
    e(f's_and_b32 s{sGRP}, s{sGRP}, 3')
    e('s_lshr_b32 s52, s2, 3')
    e(f's_and_b32 s{sR}, s52, 15')
    e('s_lshr_b32 s52, s52, 4')
    e(f's_and_b32 s{sC}, s2, 7')
    e(f's_lshl_b32 s{sC}, s{sC}, 1')
    e(f's_add_u32 s{sC}, s{sC}, s52')
    e(f's_getreg_b32 s{sREP}, hwreg(HW_REG_XCC_ID, 0, 3)')
    e(f's_lshl_b32 s{sREP}, s{sREP}, 14')
    e(f's_mov_b32 s{sNONCE}, 0')
    e('s_waitcnt lgkmcnt(0)')
    srd(e, S_X, 64, 1835008)
    if OPT['wsoff']:
        e(f's_add_u32 s82, s82, 0x{OPT["wsoff"]*0x100000:x}')
        e('s_addc_u32 s83, s83, 0')
    srd(e, S_WS, 82, WS_SIZE)
    srd(e, S_WR, 66, 2048 * 450)
    srd(e, S_WI, 68, 2048 * 450)
    srd(e, S_W1, 72, 448 * 3584)
    srd(e, S_W3, 74, 448 * 3584)
    srd(e, S_W2, 76, 1792 * 896)
    srd(e, S_OUT, 78, 1835008)
    srd(e, S_DBG, 80, 256)
    e('s_cmp_ge_u32 s2, 224')
    e(f's_cselect_b32 s{S_W1+2}, 0, s{S_W1+2}')
    e(f's_cselect_b32 s{S_W3+2}, 0, s{S_W3+2}')
    if DIAG:
        STAMPS.append('rt_start'); _stamp_n[0] += 1
        e('v_writelane_b32 v255, s86, 0')
    stamp(e, 'start')
    sk = L('nononce')
    e(f's_or_b32 s52, s2, s{sW}')
    e('s_cmp_lg_u32 s52, 0')
    e(f's_cbranch_scc1 {sk}')
    e('s_or_b32 s52, s86, 1')
    e('v_mov_b32 v4, s52')
    e('v_mov_b32 v5, 0')
    e('s_mov_b64 exec, 1')
    e(f'buffer_store_dword v4, v5, {SDBG}, 0 offen sc1')
    e('s_mov_b64 exec, -1')
    e.label(sk)
    phase_a(e)
    p2l, joinl, join2 = L('p2'), L('join'), L('join')
    e('s_cmp_ge_u32 s2, 224')
    e(f's_cbranch_scc1 {p2l}')
    sv_ds = (e.ds_issued, e.ds_done)
    phase_b(e)
    e(f's_branch {joinl}')
    e.label(p2l)
    signal(e, 1)
    phase_p2(e)
    signal(e, 4)
    e(f's_branch {join2}')
    e.label(joinl)
    signal(e, 1)
    gen_TC(e)
    e.label(join2)
    e.vm_issued = 0; e.vm_done = 0
    phase_c(e)
    phase_g(e)
    e.label('L_fin')
    diag_dump(e)
    e.label('L_end')
    e('s_endpgm')
    return e.out

def build():
    hdr = open('cdna_kernels/' + NAME + '.s.ref').read().split('; Override launch')[0]
    body = kernel()
    body, nn = hazard_pass(body)
    print(f'; {len(body)} lines, {nn} nops inserted', file=sys.stderr)
    lines = [hdr.rstrip('\n'),
             f'; @launch grid=(256,1,1) block=(256,1,1) lds={LDS_BYTES}',
             '.amdgcn_target "amdgcn-amd-amdhsa--gfx950"', '.text', f'.globl {KN}', '.p2align 8', f'.type {KN},@function']
    for ln in body: lines.append(ln if ln.endswith(':') else '    ' + ln)
    lines += ['.section .rodata,"a"', '.p2align 6', f'.amdhsa_kernel {KN}',
              '  .amdhsa_next_free_vgpr 512', '  .amdhsa_next_free_sgpr 102', '  .amdhsa_accum_offset 256',
              '  .amdhsa_group_segment_fixed_size 0', '  .amdhsa_kernarg_size 80', '  .amdhsa_user_sgpr_count 2',
              '  .amdhsa_user_sgpr_kernarg_segment_ptr 1', '  .amdhsa_system_sgpr_workgroup_id_x 1',
              '  .amdhsa_float_denorm_mode_32 3', '.end_amdhsa_kernel']
    return '\n'.join(lines) + '\n'

if __name__ == '__main__':
    for a in list(sys.argv):
        if a.startswith('--opt='):
            for kv in a[6:].split(','):
                k, v = kv.split('='); OPT[k] = int(v)
            sys.argv.remove(a)
    if '--dbgout' in sys.argv:
        DBGOUT = True; sys.argv.remove('--dbgout')
    if '--diag' in sys.argv:
        DIAG = True; sys.argv.remove('--diag')
    out = sys.argv[1] if len(sys.argv) > 1 else 'cdna_kernels/' + NAME + '.s'
    open(out, 'w').write(build())
    if DIAG:
        import json; json.dump(STAMPS, open(out + '.stamps.json', 'w'))
    print('written', out, file=sys.stderr)
```

```python
import sys, struct
from asmlib import Emit, hazard_pass

NAME = "sequential_preLN__spectral_gfnet__glu_gated_swiglu__prompt"
KN = NAME + "_kernel"

T1_OFF  = 0x000000
T2_OFF  = 0x200000
HC_OFF  = 0x400000
HR_OFF  = 0x600000
ST1_OFF = 0x800000
ST2_OFF = 0x810000
W13_OFF = 0x900000
W2_OFF  = 0xD00000
HM_OFF  = 0x1000000
FL_OFF  = 0x1800000
DIAG_OFF = 0x1A00000
WS_SIZE = 0x1C00000
LDS_STAGE = 32768
LDS_STATS = 114688
LDS_BYTES = 114688 + 8192
MAXSPIN = 100000

DIAG = False
OPT = dict(st1=3, st2=2, epi=2, post=4, w3=8, cpf=4, outmod=0, probe=0, pdepth=1, g2rot=0, wsoff=0, eflag=16, epoll=46, fspan=40, w2t1=14, latesp=52, g2mode=1, lpoll=8, p1slot=0)
def f2u(x): return struct.unpack('<I', struct.pack('<f', x))[0]
def lit(x): return '0x%08x' % f2u(x)
def vr(a, n=1): return f'v{a}' if n == 1 else f'v[{a}:{a+n-1}]'
def ar(a, n=1): return f'a{a}' if n == 1 else f'a[{a}:{a+n-1}]'

S_X, S_WS, S_WR, S_WI, S_W1, S_W3, S_W2, S_OUT, S_DBG = 8, 12, 16, 20, 24, 28, 32, 36, 40
SX, SWS, SWR, SWI, SW1, SW3, SW2, SOUT, SDBG = [f's[{a}:{a+3}]' for a in (8, 12, 16, 20, 24, 28, 32, 36, 40)]
sW, sB, sGRP, sNONCE, sREP = 44, 45, 46, 47, 48
sR, sC, sSPIN = 49, 50, 51

def srd(e, d, ptr, size):
    e(f's_mov_b32 s{d}, s{ptr}')
    e(f's_and_b32 s{d+1}, s{ptr+1}, 0xffff')
    e(f's_mov_b32 s{d+2}, 0x{size:x}')
    e(f's_mov_b32 s{d+3}, 0x20000')

_stamp_n = [0]
STAMPS = []
def stamp(e, name):
    if not DIAG: return
    i = _stamp_n[0]; _stamp_n[0] += 1; STAMPS.append(name)
    e('s_memtime s[84:85]')
    e('s_waitcnt lgkmcnt(0)')
    e(f'v_writelane_b32 v255, s84, {i}')
def rstamp(e, name):
    if not DIAG: return
    i = _stamp_n[0]; _stamp_n[0] += 1; STAMPS.append(name)
    e('s_memrealtime s[84:85]')
    e('s_waitcnt lgkmcnt(0)')
    e(f'v_writelane_b32 v255, s84, {i}')

def xsum_groups(e, v, tmp):
    e(f'v_mov_b32 v{tmp}, v{v}')
    e(f'v_permlane32_swap_b32 v{tmp}, v{v}')
    e(f'v_add_f32 v{v}, v{v}, v{tmp}')
    e(f'v_mov_b32 v{tmp}, v{v}')
    e(f'v_permlane16_swap_b32 v{tmp}, v{v}')
    e(f'v_add_f32 v{v}, v{v}, v{tmp}')

def rot8(em, co, si, co2, si2, cs, neg_sin):
    C = 'op_sel:[0,0] op_sel_hi:[1,0]'
    S3 = 'op_sel:[0,1,0] op_sel_hi:[1,1,1]'
    NEG = ' neg_lo:[0,1,0] neg_hi:[0,1,0]'
    for p in range(4):
        em(f'v_pk_mul_f32 v[{co2+2*p}:{co2+2*p+1}], v[{co+2*p}:{co+2*p+1}], v[{cs}:{cs+1}] {C}')
        em(f'v_pk_mul_f32 v[{si2+2*p}:{si2+2*p+1}], v[{si+2*p}:{si+2*p+1}], v[{cs}:{cs+1}] {C}')
    for p in range(4):
        em(f'v_pk_fma_f32 v[{co2+2*p}:{co2+2*p+1}], v[{si+2*p}:{si+2*p+1}], v[{cs}:{cs+1}], v[{co2+2*p}:{co2+2*p+1}] {S3}' + ('' if neg_sin else NEG))
        em(f'v_pk_fma_f32 v[{si2+2*p}:{si2+2*p+1}], v[{co+2*p}:{co+2*p+1}], v[{cs}:{cs+1}], v[{si2+2*p}:{si2+2*p+1}] {S3}' + (NEG if neg_sin else ''))

_lab = [0]
def L(p):
    _lab[0] += 1
    return f'L{p}_{_lab[0]}'

def signal(e, sync):
    e.barrier()
    skip = L('sig')
    e(f's_cmp_lg_u32 s{sW}, 0')
    e(f's_cbranch_scc1 {skip}')
    e(f's_lshl_b32 s52, s2, 6')
    e(f's_add_u32 s52, s52, 0x{FL_OFF + sync*0x40000:x}')
    e(f'v_mov_b32 v14, s{sNONCE}')
    e('v_lshlrev_b32 v15, 14, v1')
    e('s_mov_b64 exec, 0xff')
    e(f'buffer_store_dword v14, v15, {SWS}, s52 offen sc1')
    e('s_mov_b64 exec, -1')
    e.label(skip)

def flag_store(e, sync):
    skip = L('flg')
    e(f's_cmp_lg_u32 s{sW}, 0')
    e(f's_cbranch_scc1 {skip}')
    e(f's_lshl_b32 s52, s2, 6')
    e(f's_add_u32 s52, s52, 0x{FL_OFF + sync*0x40000:x}')
    e(f'v_mov_b32 v14, s{sNONCE}')
    e('v_lshlrev_b32 v15, 14, v1')
    e('s_mov_b64 exec, 0xff')
    e(f'buffer_store_dword v14, v15, {SWS}, s52 offen sc1')
    e('s_mov_b64 exec, -1')
    e.label(skip)

def poll(e, sync, nflags, idx_code, preg=232, bar=True):
    skip = L('pollskip'); loop = L('poll'); done = L('polldone')
    e(f's_cmp_lg_u32 s{sW}, 0')
    e(f's_cbranch_scc1 {skip}')
    idx_code(e)
    nl = max(1, nflags // 64)
    e(f's_add_u32 s52, s{sREP}, 0x{FL_OFF + sync*0x40000:x}')
    for i in range(1, nl): e(f's_add_u32 s{52+i}, s52, {i*64*64}')
    e(f's_mov_b32 s{sSPIN}, 0')
    if nflags <= 32: e(f's_mov_b64 exec, 0x{(1 << nflags) - 1:x}')
    elif nflags < 64: e(f's_mov_b32 exec_hi, 0x{(1 << (nflags - 32)) - 1:x}')
    D = OPT['pdepth']
    def issue(k):
        for i in range(nl): e(f'buffer_load_dword v{preg+k*nl+i}, v5, {SWS}, s{52+i} offen sc1')
    e('s_waitcnt vmcnt(0)') if D == 1 else None
    for k in range(D - 1): issue(k)
    e.label(loop)
    for k in range(D):
        issue((k + D - 1) % D)
        e(f's_waitcnt vmcnt({(D-1)*nl})')
        r = preg + k * nl
        e(f'v_xor_b32 v6, s{sNONCE}, v{r}')
        for i in range(1, nl):
            e(f'v_xor_b32 v7, s{sNONCE}, v{r+i}')
            e('v_or_b32 v6, v6, v7')
        e('v_cmp_ne_u32 vcc, 0, v6')
        e('s_nop 4')
        e(f's_cbranch_vccz {done}')
    e(f's_add_u32 s{sSPIN}, s{sSPIN}, 1')
    e(f's_cmp_lt_u32 s{sSPIN}, {MAXSPIN}')
    e(f's_cbranch_scc1 {loop}')
    e.label(done)
    e('s_mov_b64 exec, -1')
    e.label(skip)
    if bar: e.barrier()

def p1_addr(e, i):
    e(f's_lshl_b32 s53, s{sW}, 2')
    e(f's_add_u32 s53, s53, {i}')
    e('s_cmp_ge_u32 s53, 7')
    e('s_cselect_b32 s54, 7, 0')
    e(f's_cselect_b32 s55, {P1_MS}, 0')
    e('s_sub_u32 s54, s53, s54')
    e('s_lshl_b32 s54, s54, 6')
    e(f's_add_u32 s55, s55, {LDS_STAGE}')
    e('v_add_u32 v12, s54, v1')
    e('v_mul_u32_u24 v13, 4682, v12')
    e('v_lshrrev_b32 v13, 16, v13')
    e('v_mul_u32_u24 v14, 14, v13')
    e('v_sub_u32 v14, v12, v14')
    e('v_lshlrev_b32 v14, 4, v14')
    e(f'v_mul_u32_u24 v15, {P1_RS}, v13')
    e('v_add3_u32 v%d, v15, v14, s55' % P1LR[i])
    if i == 3: e('v_accvgpr_write_b32 a25, v10')
    e('v_lshrrev_b32 v15, 4, v13')
    e('v_mul_u32_u24 v15, 208, v15')
    e('v_add_u32 v15, v15, v13')
    e('v_mul_u32_u24 v15, 3584, v15')
    e('v_add_u32 v15, v15, v14')

P1_RS, P1_MS = 288, 9344
P1LR = [252, 253, 254, 10]
P2LR = [248, 11]
P2_RS, P2_BASE = 480, LDS_STAGE + 2 * 9344 + 64
def p1_loads(e):
    e('s_lshr_b32 s52, s2, 4')
    e('s_lshl_b32 s52, s52, 4')
    e('s_mul_i32 s52, s52, 3584')
    e('s_and_b32 s54, s2, 15')
    e('s_mul_i32 s54, s54, 224')
    e('s_add_u32 s52, s52, s54')
    e(f's_mov_b32 s94, s{S_W1+2}')
    e('s_mov_b32 s95, 0x20000')
    for i in range(4):
        p1_addr(e, i)
        e('s_cmp_ge_u32 s53, 7')
        e(f's_cselect_b32 s92, s{S_W3}, s{S_W1}')
        e(f's_cselect_b32 s93, s{S_W3+1}, s{S_W1+1}')
        if i >= 2:
            e('s_cmp_ge_u32 s53, 14')
            e('s_cselect_b32 s94, 0, s94')
        e.vm(f'buffer_load_dwordx4 {ar(4*i,4)}, v15, s[92:95], s52 offen')

def p2_loads(e):
    e('s_lshr_b32 s52, s2, 1')
    e('s_mul_i32 s52, s52, %d' % (16 * 896))
    e('s_and_b32 s53, s2, 1')
    e('s_mul_i32 s53, s53, 224')
    e('s_add_u32 s52, s52, s53')
    e(f's_mov_b32 s92, s{S_W2}')
    e(f's_mov_b32 s93, s{S_W2+1}')
    e('s_cmp_ge_u32 s2, 224')
    e(f's_cselect_b32 s94, 0, s{S_W2+2}')
    for i in range(2):
        e(f's_lshl_b32 s53, s{sW}, 1')
        e(f's_add_u32 s53, s53, {i}')
        e('s_lshl_b32 s54, s53, 6')
        e('v_add_u32 v12, s54, v1')
        e('v_mul_u32_u24 v13, 2341, v12')
        e('v_lshrrev_b32 v13, 16, v13')
        e('v_mul_u32_u24 v14, 28, v13')
        e('v_sub_u32 v14, v12, v14')
        e('v_cmp_le_u32 vcc, 14, v14')
        e('v_lshlrev_b32 v14, 4, v14')
        e(f'v_mul_u32_u24 v15, {P2_RS}, v13')
        e(f'v_add_u32 v15, v15, v14')
        e(f'v_add_u32 v15, {P2_BASE}, v15')
        e(f'v_accvgpr_write_b32 a{26 if i == 0 else 24}, v15')
        e('v_add_u32 v15, 224, v14')
        e('v_cndmask_b32 v14, v14, v15, vcc')
        e('v_mul_u32_u24 v15, 896, v13')
        e('v_add_u32 v15, v15, v14')
        if i == 1:
            e('s_cmp_ge_u32 s53, 7')
            e('s_cselect_b32 s94, 0, s94')
        e.vm(f'buffer_load_dwordx4 {ar(16+4*i,4)}, v15, s[92:95], s52 offen')
assert all(((i * 2341) >> 16) == i // 28 for i in range(512))

def w_prefetch(e):
    e('s_lshl_b32 s52, s2, 12')
    e('v_lshlrev_b32 v12, 4, v0')
    e('v_add_u32 v12, s52, v12')
    e.vm(f'buffer_load_dwordx4 a[16:19], v12, {SWR}, 0 offen')
    e.vm(f'buffer_load_dwordx4 a[16:19], v12, {SWI}, 0 offen')
assert all(((i * 4682) >> 16) == i // 14 for i in range(512))

def p1_finish(e, R=64):
    RS, MS, BASE = P1_RS, P1_MS, LDS_STAGE
    skw = L('p1w')
    for i in range(4):
        if i == 2:
            e(f's_cmp_ge_u32 s{sW}, 3')
            e(f's_cbranch_scc1 {skw}')
        if i == 3: e('v_accvgpr_read_b32 v10, a25')
        e(f'ds_write_b128 v{P1LR[i]}, {ar(4*i,4)}')
    e.label(skw)
    e.wait_ds_all()
    e.barrier()
    end = L('p1e')
    e(f's_cmp_eq_u32 s{sW}, 0')
    e(f's_cbranch_scc1 {end}')
    e('v_and_b32 v4, 1, v3')
    e(f'v_mul_u32_u24 v4, {MS}, v4')
    e('v_lshrrev_b32 v5, 1, v3')
    e('v_lshlrev_b32 v5, 2, v5')
    e('v_lshrrev_b32 v6, 2, v2')
    e('v_add_u32 v5, v5, v6')
    e(f'v_mul_u32_u24 v5, {RS}, v5')
    e('v_add_u32 v4, v4, v5')
    e('v_and_b32 v6, 3, v2')
    e('v_lshlrev_b32 v6, 3, v6')
    e('v_add_u32 v4, v4, v6')
    e(f'v_add_u32 v4, {BASE}, v4')
    e('s_and_b32 s54, s2, 15')
    e('s_mul_i32 s54, s54, %d' % (7 * 28))
    e('s_lshr_b32 s53, s2, 4')
    e('s_lshl_b32 s53, s53, 1')
    e('s_add_u32 s54, s54, s53')
    e('s_lshl_b32 s54, s54, 10')
    e(f's_add_u32 s54, s54, 0x{W13_OFF:x}')
    e('v_lshlrev_b32 v5, 4, v1')
    last = L('p1l')
    for m in range(5):
        e(f's_add_u32 s52, s{sW}, {3*m - 1}')
        if m == 4:
            e('s_cmp_ge_u32 s52, 14')
            e(f's_cbranch_scc1 {last}')
        e('s_and_b32 s53, s52, 1')
        e('s_lshr_b32 s52, s52, 1')
        e(f's_mul_i32 s55, s53, {8*RS}')
        e('s_lshl_b32 s61, s52, 5')
        e('s_add_u32 s55, s55, s61')
        e('v_add_u32 v6, s55, v4')
        e(f'ds_read_b64_tr_b16 {vr(R+4*m,2)}, v6')
        e(f'ds_read_b64_tr_b16 {vr(R+4*m+2,2)}, v6 offset:{16*RS}')
        e('s_mul_i32 s52, s52, 28')
        e('s_add_u32 s52, s52, s53')
        e('s_lshl_b32 s52, s52, 10')
        e(f's_add_u32 s{62+m if m < 2 else 86+m}, s52, s54')
    e.label(last)
    e('s_waitcnt lgkmcnt(0)')
    for m in range(4):
        e(f'buffer_store_dwordx4 {vr(R+4*m,4)}, v5, {SWS}, s{62+m if m < 2 else 86+m} offen sc1')
    e(f's_cmp_ge_u32 s{sW}, 3')
    e(f's_cbranch_scc1 {end}')
    e(f'buffer_store_dwordx4 {vr(R+16,4)}, v5, {SWS}, s90 offen sc1')
    e.label(end)

def p2_finish(e, R=128):
    skw2 = L('p2w')
    e('v_accvgpr_read_b32 v7, a26')
    e(f'ds_write_b128 v7, {ar(16,4)}')
    e(f's_cmp_ge_u32 s{sW}, 3')
    e(f's_cbranch_scc1 {skw2}')
    e('v_accvgpr_read_b32 v7, a24')
    e(f'ds_write_b128 v7, {ar(20,4)}')
    e.label(skw2)
    e.wait_ds_all()
    e.barrier()
    end = L('p2e')
    e(f's_cmp_eq_u32 s{sW}, 0')
    e(f's_cbranch_scc1 {end}')
    e('v_lshrrev_b32 v6, 1, v3')
    e('v_lshlrev_b32 v6, 2, v6')
    e('v_lshrrev_b32 v7, 2, v2')
    e('v_add_u32 v6, v6, v7')
    e(f'v_mul_u32_u24 v6, {P2_RS}, v6')
    e('v_and_b32 v7, 1, v3')
    e('v_lshlrev_b32 v7, 4, v7')
    e('v_add_u32 v6, v6, v7')
    e('v_and_b32 v7, 1, v2')
    e('v_lshlrev_b32 v7, 3, v7')
    e('v_add_u32 v6, v6, v7')
    e('v_bfe_u32 v7, v2, 1, 1')
    e('v_mul_u32_u24 v7, 224, v7')
    e('v_add_u32 v6, v6, v7')
    e(f's_sub_u32 s55, s{sW}, 1')
    e('s_lshl_b32 s52, s55, 5')
    e(f's_add_u32 s52, s52, {P2_BASE}')
    e('v_add_u32 v6, s52, v6')
    e('s_and_b32 s54, s2, 1')
    e('s_mul_i32 s54, s54, 7')
    e('s_add_u32 s54, s54, s55')
    e('s_mul_i32 s54, s54, 112')
    e('s_lshr_b32 s53, s2, 1')
    e('s_add_u32 s54, s54, s53')
    e('s_lshl_b32 s54, s54, 10')
    e(f's_add_u32 s54, s54, 0x{W2_OFF:x}')
    e('v_lshlrev_b32 v5, 4, v1')
    for m in range(3):
        e(f'ds_read_b64_tr_b16 {vr(R+4*m,2)}, v6 offset:{96*m}')
        e(f'ds_read_b64_tr_b16 {vr(R+4*m+2,2)}, v6 offset:{96*m + 8*P2_RS}')
    e('s_waitcnt lgkmcnt(0)')
    for m in range(3):
        if m == 2:
            e(f's_cmp_ge_u32 s{sW}, 2')
            e(f's_cbranch_scc1 {end}')
        e(f's_add_u32 s53, s54, {3*m*112*1024}')
        e(f'buffer_store_dwordx4 {vr(R+4*m,4)}, v5, {SWS}, s53 offen sc1')
    e.label(end)

def w13_load_groups():
    gs = []
    for s_ in range(28):
        for mi in range(2):
            g = []
            if s_ % 7 == 0 and mi == 0:
                g += [f's_add_u32 s90, s89, {s_//7}', 's_and_b32 s90, s90, 3', 's_mul_i32 s90, s90, 7168', 's_add_u32 s90, s90, s88',
                      's_add_u32 s91, s90, 28672']
            i = s_ % 7
            if i == 4 and mi == 0: g += ['s_add_u32 s90, s90, 4096', 's_add_u32 s91, s91, 4096']
            g.append(('vm', f'buffer_load_dwordx4 {ar((mi*28+s_)*4,4)}, v254, s[92:95], s{90+mi} offen offset:{(i%4)*1024} sc1'))
            gs.append(g)
    return gs

def w13_setup(e):
    e(f's_mov_b32 s92, s{S_WS}')
    e(f's_mov_b32 s93, s{S_WS+1}')
    e(f's_cmp_ge_u32 s{sC}, 14')
    e(f's_cselect_b32 s94, 0, s{S_WS+2}')
    e('s_mov_b32 s95, 0x20000')
    e(f's_lshl_b32 s88, s{sC}, 3')
    e(f's_lshl_b32 s52, s{sW}, 1')
    e('s_add_u32 s88, s88, s52')
    e('s_mul_i32 s88, s88, 28672')
    e(f's_add_u32 s88, s88, 0x{W13_OFF:x}')
    e(f's_and_b32 s89, s{sR}, 3')
    e('v_lshlrev_b32 v254, 4, v1')

def emit_groups(e, groups):
    last = None
    for g in groups:
        for op in g:
            if isinstance(op, tuple): last = e.vm(op[1])
            else: e(op)
    return last

DMA = {}
def emit_interleaved(e, main, groups, start=0):
    n, m = len(main), len(groups)
    gi = 0; last = None
    for k, ins in enumerate(main):
        e(ins)
        if k >= start:
            want = ((k - start + 1) * m) // max(1, n - start)
            while gi < want:
                for op in groups[gi]:
                    if isinstance(op, tuple): last = e.vm(op[1])
                    else: e(op)
                gi += 1
    while gi < m:
        for op in groups[gi]:
            if isinstance(op, tuple): last = e.vm(op[1])
            else: e(op)
        gi += 1
    return last

def w13_trread(e, half):
    e('v_and_b32 v4, 1, v3')
    e('v_lshrrev_b32 v5, 1, v3')
    e('v_lshrrev_b32 v6, 2, v2')
    e('v_and_b32 v7, 3, v2')
    e('v_mul_u32_u24 v8, 57344, v4')
    e('v_lshlrev_b32 v9, 2, v5')
    e('v_add_u32 v9, v9, v6')
    e('v_lshlrev_b32 v9, 8, v9')
    e('v_add_u32 v8, v8, v9')
    e('v_and_b32 v9, 1, v7')
    e('v_lshlrev_b32 v9, 3, v9')
    e('v_add_u32 v8, v8, v9')
    e(f'v_add_u32 v8, {LDS_STAGE}, v8')
    e('v_lshrrev_b32 v7, 1, v7')
    e(f's_lshl_b32 s52, s{sW}, 2')
    e('v_add_u32 v7, s52, v7')
    e('v_lshlrev_b32 v6, 1, v6')
    e('v_lshlrev_b32 v4, 3, v4')
    e('v_xor_b32 v6, v6, v4')
    for mi in range(2):
        e(f'v_add_u32 v9, {2*mi}, v7')
        e('v_xor_b32 v9, v9, v6')
        e('v_lshlrev_b32 v9, 4, v9')
        e(f'v_add_u32 v{10+mi}, v8, v9')
    for mi in range(2):
        for jl in range(7):
            for gg in range(2):
                kap = 14 * half + 2 * jl + gg
                a = (mi * 28 + kap) * 4
                off = (16 * jl + 8 * gg) * 256
                e.ds(f'ds_read_b64_tr_b16 {ar(a,2)}, v{10+mi} offset:{off}')
                e.ds(f'ds_read_b64_tr_b16 {ar(a+2,2)}, v{10+mi} offset:{off + 112*256}')

C_G, C_TC = 220, 160
def gen_G(e):
    G = C_G
    TH, CO, SI = 112, 120, 128
    cscale = 2.0 / (2048.0 * 448.0)
    e('v_cvt_f32_u32 v7, v3')
    for nt in range(2):
        e(f'v_add_u32 v8, {16*nt}, v2')
        e('v_lshlrev_b32 v8, 6, v8')
        e(f'v_add_u32 v8, s{sB}, v8')
        e('v_cvt_f32_u32 v8, v8')
        e(f'v_mul_f32 v8, {lit(1.0/2048)}, v8')
        e('v_mul_f32 v9, v7, v8')
        for t in range(2):
            for ii in range(4):
                cst = 16 * t + 4 * ii
                if cst == 0: e(f'v_mov_b32 v{TH+t*4+ii}, v9')
                else: e(f'v_fmamk_f32 v{TH+t*4+ii}, v8, {lit(float(cst))}, v9')
        for j in range(8): e(f'v_cos_f32 v{CO+j}, v{TH+j}')
        for j in range(8): e(f'v_sin_f32 v{SI+j}, v{TH+j}')
        for j in range(8): e(f'v_mul_f32 v{CO+j}, {lit(cscale)}, v{CO+j}')
        for j in range(8): e(f'v_mul_f32 v{SI+j}, {lit(cscale)}, v{SI+j}')
        for t in range(2):
            for ii in range(4):
                j = t * 4 + ii
                e(f'v_cvt_pk_bf16_f32 v{G+((0*2+t)*2+nt)*4+ii}, v{CO+j}, -v{SI+j}')
                e(f'v_cvt_pk_bf16_f32 v{G+((1*2+t)*2+nt)*4+ii}, v{SI+j}, v{CO+j}')

def gen_TC(e):
    TC = C_TC
    TH, CO, SI, CO2, SI2 = 112, 120, 128, 136, 144
    e(f's_lshl_b32 s61, s{sGRP}, 2')
    e(f's_add_u32 s61, s61, s{sW}')
    e('s_min_u32 s61, s61, 13')
    e('s_lshl_b32 s61, s61, 4')
    e('v_add_u32 v8, s61, v2')
    e('v_cvt_f32_u32 v8, v8')
    e(f'v_mul_f32 v8, {lit(1.0/448)}, v8')
    e('v_lshlrev_b32 v9, 3, v3')
    e('v_cvt_f32_u32 v9, v9')
    e('v_mul_f32 v9, v9, v8')
    e('v_cmp_eq_u32 vcc, 3, v3')
    e('v_mov_b32 v10, 1.0')
    e('v_mov_b32 v7, 0.5')
    e('v_cndmask_b32 v10, v10, v7, vcc')
    e(f'v_mul_f32 v7, {lit(32.0)}, v8')
    for h in range(2):
        for j in range(4):
            cst = 2 * j + (2 if h == 0 else 1)
            e(f'v_fmamk_f32 v{TH+h*4+j}, v8, {lit(float(cst))}, v9')
    e('v_cos_f32 v12, v7')
    e('v_sin_f32 v13, v7')
    for j in range(8): e(f'v_cos_f32 v{CO+j}, v{TH+j}')
    for j in range(8): e(f'v_sin_f32_e64 v{SI+j}, -v{TH+j}')
    cur = (CO, SI); oth = (CO2, SI2)
    for kp in range(7):
        if kp < 6: rot8(e, cur[0], cur[1], oth[0], oth[1], 12, True)
        else:
            e(f'v_mul_f32 v{cur[0]+3}, v{cur[0]+3}, v10')
            e(f'v_mul_f32 v{cur[1]+3}, v{cur[1]+3}, v10')
        for h, kb in enumerate((kp, kp + 7)):
            e(f'v_cvt_pk_bf16_f32 v{TC+kb*4+0}, v{cur[0]+h*4+0}, v{cur[0]+h*4+1}')
            e(f'v_cvt_pk_bf16_f32 v{TC+kb*4+1}, v{cur[0]+h*4+2}, v{cur[0]+h*4+3}')
            e(f'v_cvt_pk_bf16_f32 v{TC+kb*4+2}, v{cur[1]+h*4+0}, v{cur[1]+h*4+1}')
            e(f'v_cvt_pk_bf16_f32 v{TC+kb*4+3}, v{cur[1]+h*4+2}, v{cur[1]+h*4+3}')
        cur, oth = oth, cur

def phase_a(e):
    e.c('======== phase A')
    e(f's_lshl_b32 s56, s{sGRP}, 2')
    e(f's_add_u32 s56, s56, s{sW}')
    e('s_min_u32 s57, s56, 13')
    e(f's_lshr_b32 s52, s{sW}, 1')
    e('s_lshl_b32 s52, s52, 10')
    e(f's_add_u32 s52, s52, s{sB}')
    e('v_lshlrev_b32 v4, 6, v2')
    e('v_add_u32 v4, s52, v4')
    e('v_mul_u32_u24 v4, 896, v4')
    e('v_lshlrev_b32 v5, 4, v3')
    e('v_add_u32 v4, v4, v5')
    e(f's_and_b32 s52, s{sW}, 1')
    e('s_mul_i32 s52, s52, 448')
    e('v_add_u32 v4, s52, v4')
    TA, FP, ACC, X = 16, 72, 96, 128
    xs_tok = [e.vm(f'buffer_load_dwordx4 {vr(X+4*i,4)}, v4, {SX}, 0 offen offset:{64*i}') for i in range(7)]
    if OPT['cpf']:
        sk = L('cpf')
        e(f's_cmp_lg_u32 s{sW}, {OPT["cpf"]-1}')
        e(f's_cbranch_scc1 {sk}')
        e('s_getpc_b64 s[52:53]')
        e.label('L_pc')
        e('s_lshr_b32 s54, s2, 3')
        e('s_lshl_b32 s54, s54, 10')
        e('s_cmp_ge_u32 s54, L_fin-L_pc-1024')
        e(f's_cbranch_scc1 {sk}')
        e('v_lshlrev_b32 v5, 4, v1')
        e('v_add_u32 v5, s54, v5')
        e('global_load_dwordx4 a[28:31], v5, s[52:53]')
        e.label(sk)
    stamp(e, 'A.issued')
    e('s_cmp_lt_u32 s57, 7')
    e('s_cselect_b32 s52, 2, 1')
    e('s_cselect_b32 s53, 0, 7')
    e('s_sub_u32 s53, s57, s53')
    e('s_lshl_b32 s53, s53, 5')
    e('s_add_u32 s53, s53, s52')
    e('s_cmp_lt_u32 s57, 7')
    e(f's_cselect_b32 s58, {lit(1.0)}, {lit(-1.0)}')
    e('v_lshlrev_b32 v5, 1, v2')
    e('v_add_u32 v5, s53, v5')
    e('v_cvt_f32_u32 v5, v5')
    e(f'v_mul_f32 v5, {lit(1.0/448)}, v5')
    e('v_lshlrev_b32 v6, 3, v3')
    e('v_cvt_f32_u32 v6, v6')
    e('v_mul_f32 v6, v6, v5')
    TH, CO, SI = ACC, ACC + 8, ACC + 16
    CO2, SI2 = X + 32, X + 40
    e(f'v_mul_f32 v7, {lit(32.0)}, v5')
    for j in range(8):
        if j == 0: e(f'v_mov_b32 v{TH+j}, v6')
        else: e(f'v_fmamk_f32 v{TH+j}, v5, {lit(float(j))}, v6')
    e('v_cos_f32 v8, v7')
    e('v_sin_f32 v9, v7')
    for j in range(8): e(f'v_cos_f32 v{CO+j}, v{TH+j}')
    for j in range(8): e(f'v_sin_f32_e64 v{SI+j}, -v{TH+j}')
    cur = (CO, SI); oth = (CO2, SI2)
    for t in range(7):
        if t < 6: rot8(e, cur[0], cur[1], oth[0], oth[1], 8, True)
        for i in range(4): e(f'v_cvt_pk_bf16_f32 v{TA+(t*2+0)*4+i}, v{cur[0]+2*i}, v{cur[0]+2*i+1}')
        for i in range(4): e(f'v_cvt_pk_bf16_f32 v{TA+(t*2+1)*4+i}, v{cur[1]+2*i}, v{cur[1]+2*i+1}')
        cur, oth = oth, cur
    e('s_mov_b32 s52, 0x80008000')
    e(f'v_cvt_f32_u32 v7, s{sB}')
    e(f'v_mul_f32 v7, {lit(1.0/64)}, v7')
    e('v_lshlrev_b32 v8, 2, v3')
    e('v_cvt_f32_u32 v8, v8')
    e('v_add_f32 v8, v8, v7')
    for mt in range(2):
        e(f'v_add_u32 v9, {16*mt}, v2')
        e('v_cvt_f32_u32 v9, v9')
        e(f'v_mul_f32 v9, {lit(1.0/32)}, v9')
        e('v_mul_f32 v10, v9, v8')
        for j in range(8):
            cst = 16 * (j >> 2) + (j & 3)
            if cst == 0: e(f'v_mov_b32 v{TH+j}, v10')
            else: e(f'v_fmamk_f32 v{TH+j}, v9, {lit(float(cst))}, v10')
        for j in range(8): e(f'v_cos_f32 v{CO+j}, v{TH+j}')
        for j in range(8): e(f'v_sin_f32 v{SI+j}, v{TH+j}')
        for i in range(4): e(f'v_cvt_pk_bf16_f32 v{FP+mt*12+i}, v{CO+2*i}, v{CO+2*i+1}')
        for i in range(4): e(f'v_cvt_pk_bf16_f32 v{FP+mt*12+4+i}, v{SI+2*i}, v{SI+2*i+1}')
        for i in range(4): e(f'v_xor_b32 v{FP+mt*12+8+i}, s52, v{FP+mt*12+4+i}')
    p1_loads(e)
    stamp(e, 'A.constgen')
    e(f's_mul_i32 s52, s{sW}, 7168')
    e('v_lshlrev_b32 v11, 4, v1')
    e('v_add_u32 v4, s52, v11')
    e('v_mov_b32 v5, 0')
    e('v_mov_b32 v6, 0')
    e('s_mov_b32 s52, 0x3f803f80')
    for i in range(7):
        e.wait_vm(xs_tok[i])
        e.ds(f'ds_write_b128 v4, {vr(X+4*i,4)} offset:{1024*i}')
        for d in range(4):
            e(f'v_dot2_f32_bf16 v5, v{X+4*i+d}, s52, v5')
            e(f'v_dot2_f32_bf16 v6, v{X+4*i+d}, v{X+4*i+d}, v6')
    xsum_groups(e, 5, 7)
    xsum_groups(e, 6, 8)
    e(f's_lshl_b32 s52, s{sW}, 7')
    e('v_lshlrev_b32 v7, 3, v2')
    e('v_add_u32 v7, s52, v7')
    e('v_mov_b32 v8, v5')
    e('v_mov_b32 v9, v6')
    e.ds('ds_write_b64 v7, v[8:9] offset:28672')
    e.wait_ds_all()
    stamp(e, 'A.xstaged')
    e.barrier()
    e('v_mov_b32 v250, 0')
    nonce_tok = e.vm(f'buffer_load_dword v251, v250, {SDBG}, 0 offen sc1')
    e('v_and_b32 v4, 31, v1')
    e('v_lshrrev_b32 v5, 4, v4')
    e('v_lshlrev_b32 v5, 8, v5')
    e('v_lshlrev_b32 v6, 3, v2')
    e('v_add_u32 v5, v5, v6')
    t0 = e.ds('ds_read_b64 v[6:7], v5 offset:28672')
    t1 = e.ds('ds_read_b64 v[8:9], v5 offset:28800')
    xt = {}
    order = [(half, t, mt) for half in range(2) for t in range(7) for mt in range(2)]
    def xreg(mt, tt): return X + (mt * 14 + tt) * 4
    nread = [0]
    def issue_x():
        half, t, mt = order[nread[0]]
        tt = t + 7 * half
        xt[(half, t, mt)] = e.ds(f'ds_read_b128 {vr(xreg(mt,tt),4)}, v11 offset:{(mt*14+tt)*1024}')
        nread[0] += 1
    for _ in range(8): issue_x()
    e.wait_ds(t1)
    e('v_add_f32 v6, v6, v8')
    e('v_add_f32 v7, v7, v9')
    e(f'v_mul_f32 v6, {lit(1.0/448)}, v6')
    e(f'v_mul_f32 v7, {lit(1.0/448)}, v7')
    e('v_fma_f32 v7, -v6, v6, v7')
    e('v_max_f32 v7, 0, v7')
    e(f'v_add_f32 v7, {lit(1e-5)}, v7')
    e('v_rsq_f32 v7, v7')
    e(f's_lshl_b32 s52, s{sW}, 7')
    e('v_lshlrev_b32 v8, 2, v4')
    e('v_add_u32 v9, s52, v8')
    e.ds('ds_write_b32 v9, v7 offset:29184')
    nm = L('nomean')
    e(f's_or_b32 s52, s{sGRP}, s{sW}')
    e('s_cmp_lg_u32 s52, 0')
    e(f's_cbranch_scc1 {nm}')
    e(f's_lshl_b32 s52, s{sB}, 7')
    e(f's_add_u32 s52, s52, 0x{ST1_OFF:x}')
    e(f'buffer_store_dword v6, v8, {SWS}, s52 offen sc1')
    e.label(nm)
    e(f's_lshl_b32 s52, s{sW}, 7')
    e('v_lshlrev_b32 v9, 4, v3')
    e('v_add_u32 v9, s52, v9')
    RR = 240
    tr0 = e.ds(f'ds_read_b128 {vr(RR,4)}, v9 offset:29184')
    tr1 = e.ds(f'ds_read_b128 {vr(RR+4,4)}, v9 offset:29248')
    def acc(mt, c, half): return ACC + ((mt * 2 + c) * 2 + half) * 4
    for (half, t, mt) in order:
        if nread[0] < len(order): issue_x()
        e.wait_ds(xt[(half, t, mt)])
        tt = t + 7 * half
        for c in range(2):
            a = acc(mt, c, half)
            e(f'v_mfma_f32_16x16x32_bf16 {vr(a,4)}, {vr(xreg(mt,tt),4)}, {vr(TA+(t*2+c)*4,4)}, {"0" if t == 0 else vr(a,4)}')
    e.wait_ds(tr1)
    stamp(e, 'A.mfma')
    BF = X; TMP = X + 8
    for c in range(2):
        for mt in range(2):
            for r in range(4): e(f'v_fma_f32 v{TMP+mt*4+r}, v{acc(mt,c,1)+r}, s58, v{acc(mt,c,0)+r}')
            for r in range(4): e(f'v_mul_f32 v{TMP+mt*4+r}, v{TMP+mt*4+r}, v{RR+mt*4+r}')
        for mt in range(2):
            for i in range(2):
                e(f'v_cvt_pk_bf16_f32 v{BF+c*4+mt*2+i}, v{TMP+mt*4+2*i}, v{TMP+mt*4+2*i+1}')
    TT = X + 16
    for mt in range(2):
        C, Sp, Sn = FP + mt * 12, FP + mt * 12 + 4, FP + mt * 12 + 8
        e(f'v_mfma_f32_16x16x32_bf16 {vr(TT+mt*8,4)}, {vr(C,4)}, {vr(BF,4)}, 0')
        e(f'v_mfma_f32_16x16x32_bf16 {vr(TT+mt*8+4,4)}, {vr(Sn,4)}, {vr(BF,4)}, 0')
        e(f'v_mfma_f32_16x16x32_bf16 {vr(TT+mt*8,4)}, {vr(Sp,4)}, {vr(BF+4,4)}, {vr(TT+mt*8,4)}')
        e(f'v_mfma_f32_16x16x32_bf16 {vr(TT+mt*8+4,4)}, {vr(C,4)}, {vr(BF+4,4)}, {vr(TT+mt*8+4,4)}')
    e('s_mov_b32 s52, %d' % (4 * 57344))
    e('v_mul_lo_u32 v4, v3, s52')
    e('v_lshlrev_b32 v5, 2, v2')
    e('v_add_u32 v4, v4, v5')
    e('s_lshl_b32 s52, s56, 12')
    e(f's_lshl_b32 s53, s{sB}, 6')
    e('s_add_u32 s52, s52, s53')
    OUT = X + 40
    for mt in range(2):
        for r in range(4): e(f'v_cvt_pk_bf16_f32 v{OUT+mt*4+r}, v{TT+mt*8+r}, v{TT+mt*8+4+r}')
    ns = L('nostoreA')
    e('s_cmp_ge_u32 s56, 14')
    e(f's_cbranch_scc1 {ns}')
    for mt in range(2):
        for r in range(4):
            e(f's_add_u32 s53, s52, {T1_OFF + (16*mt+r)*57344}')
            e(f'buffer_store_dword v{OUT+mt*4+r}, v4, {SWS}, s53 offen sc1')
    e.label(ns)
    stamp(e, 'A.stored')
    e.wait_vm_all()
    sk, lp, dn = L('nsk'), L('nlp'), L('ndn')
    e(f's_cmp_lg_u32 s{sW}, 0')
    e(f's_cbranch_scc1 {sk}')
    e(f's_mov_b32 s{sSPIN}, 0')
    e.label(lp)
    e(f'v_readfirstlane_b32 s{sNONCE}, v251')
    e('s_nop 1')
    e(f's_cmp_lg_u32 s{sNONCE}, 0')
    e(f's_cbranch_scc1 {dn}')
    e(f'buffer_load_dword v251, v250, {SDBG}, 0 offen sc1')
    e('s_waitcnt vmcnt(0)')
    e(f's_add_u32 s{sSPIN}, s{sSPIN}, 1')
    e(f's_cmp_lt_u32 s{sSPIN}, {MAXSPIN}')
    e(f's_cbranch_scc1 {lp}')
    e.label(dn)
    e.label(sk)
    stamp(e, 'A.drained')
    skn = L('nb')
    e(f's_cmp_lg_u32 s{sW}, 0')
    e(f's_cbranch_scc1 {skn}')
    e(f'v_mov_b32 v14, s{sNONCE}')
    e('v_mov_b32 v15, 29696')
    e('ds_write_b32 v15, v14')
    e('s_waitcnt lgkmcnt(0)')
    e.label(skn)
    signal(e, 0)
    e('v_mov_b32 v15, 29696')
    e('ds_read_b32 v14, v15')
    e('s_waitcnt lgkmcnt(0)')
    e(f'v_readfirstlane_b32 s{sNONCE}, v14')

def phase_p2(e):
    e.c('======== P2 (w2 re-layout)')
    done = L('p2done'); nojob = L('p2none')
    e('s_cmp_ge_u32 s2, 252')
    e(f's_cbranch_scc1 {nojob}')
    e('s_sub_u32 s56, s2, 224')
    e('s_waitcnt vmcnt(0)')
    e.barrier()
    e.vm_issued = e.vm_done = 0
    e('s_mul_i32 s52, s56, 57344')
    e('v_lshlrev_b32 v4, 4, v0')
    toks = []
    for i in range(14):
        e(f's_add_u32 s53, s52, {i*4096}')
        toks.append(e.vm(f'buffer_load_dwordx4 {vr(16+4*i,4)}, v4, {SW2}, s53 offen'))
    for i in range(14):
        e(f'v_add_u32 v5, {i*256}, v0')
        e('v_mul_u32_u24 v6, 18725, v5')
        e('v_lshrrev_b32 v6, 20, v6')
        e('v_lshlrev_b32 v6, 5, v6')
        e('v_lshlrev_b32 v5, 4, v5')
        e(f'v_add_u32 v{80+i}, v5, v6')
        e(f'v_add_u32 v{80+i}, {LDS_STAGE}, v{80+i}')
    stamp(e, 'P2.issued')
    gen_TC(e)
    gen_G(e)
    for i in range(14):
        e.wait_vm(toks[i])
        e.ds(f'ds_write_b128 v{80+i}, {vr(16+4*i,4)}')
    e.wait_ds_all()
    stamp(e, 'P2.lds')
    e.barrier()
    e('v_lshrrev_b32 v4, 1, v3')
    e('v_lshlrev_b32 v4, 2, v4')
    e('v_lshrrev_b32 v5, 2, v2')
    e('v_add_u32 v4, v4, v5')
    e(f's_lshl_b32 s53, s{sW}, 4')
    e('v_add_u32 v4, s53, v4')
    e('v_mul_u32_u24 v4, 928, v4')
    e('v_and_b32 v5, 1, v3')
    e('v_lshlrev_b32 v5, 4, v5')
    e('v_add_u32 v4, v4, v5')
    e('v_and_b32 v5, 1, v2')
    e('v_lshlrev_b32 v5, 3, v5')
    e('v_add_u32 v4, v4, v5')
    e('v_bfe_u32 v5, v2, 1, 1')
    e('v_mul_u32_u24 v5, 448, v5')
    e('v_add_u32 v4, v4, v5')
    e(f'v_add_u32 v4, {LDS_STAGE}, v4')
    e('v_lshlrev_b32 v5, 4, v1')
    for j in range(14):
        R = 16 + 4 * j
        e.ds(f'ds_read_b64_tr_b16 {vr(R,2)}, v4 offset:{32*j}')
        e.ds(f'ds_read_b64_tr_b16 {vr(R+2,2)}, v4 offset:{32*j + 8*928}')
    e.wait_ds_all()
    e('s_lshl_b32 s53, s56, 2')
    e(f's_add_u32 s53, s53, s{sW}')
    e('s_lshl_b32 s53, s53, 10')
    e(f's_add_u32 s53, s53, 0x{W2_OFF:x}')
    for j in range(14):
        e(f's_add_u32 s54, s53, {j*112*1024}')
        e.vm(f'buffer_store_dwordx4 {vr(16+4*j,4)}, v5, {SWS}, s54 offen sc1')
    stamp(e, 'P2.stored')
    e(f's_branch {done}')
    e.label(nojob)
    gen_TC(e)
    gen_G(e)
    e.label(done)
    e.wait_vm_all()
    stamp(e, 'P2.drained')
assert all(((p * 18725) >> 20) == p // 56 for p in range(3584)), "magic /56"

def phase_b(e):
    e.c('======== window 1 + phase B')
    e('s_and_b32 s56, s2, 7')
    e('s_lshr_b32 s57, s2, 3')
    e('s_mul_i32 s52, s57, 37')
    e('s_lshr_b32 s52, s52, 8')
    e('s_mul_i32 s53, s52, 7')
    e('s_sub_u32 s53, s57, s53')
    e('s_lshl_b32 s52, s52, 3')
    e('s_add_u32 s56, s56, s52')
    e('s_lshl_b32 s53, s53, 1')
    e(f's_lshr_b32 s54, s{sW}, 1')
    e('s_add_u32 s57, s53, s54')
    e('s_lshr_b32 s59, s53, 2')
    e(f's_and_b32 s58, s{sW}, 1')
    FC, FS, FN = 16, 32, 48
    TIN, BF, WR, WI, XA, YR, YI, YF = 64, 80, 96, 104, 112, 128, 136, 144
    e('s_cmp_lt_u32 s57, 7')
    e('s_cselect_b32 s52, 2, 1')
    e('s_cselect_b32 s53, 0, 7')
    e('s_sub_u32 s53, s57, s53')
    e('s_lshl_b32 s53, s53, 5')
    e('s_add_u32 s53, s53, s52')
    e('v_lshlrev_b32 v6, 1, v2')
    e('v_add_u32 v6, s53, v6')
    e('v_lshlrev_b32 v6, 1, v6')
    e('v_lshlrev_b32 v7, 7, v3')
    e('s_lshl_b32 s52, s58, 10')
    e('s_add_u32 s52, s52, s56')
    e('v_add_u32 v7, s52, v7')
    e('v_mul_u32_u24 v7, 450, v7')
    e('v_add_u32 v6, v6, v7')
    wtok = {}
    for mtl in range(2):
        for r in range(4):
            e(f's_mov_b32 s52, {(16*mtl+r)*14400}')
            e.vm(f'buffer_load_short_d16_hi v{WR+mtl*4+r}, v6, {SWR}, s52 offen')
            wtok[(mtl, r)] = e.vm(f'buffer_load_short_d16_hi v{WI+mtl*4+r}, v6, {SWI}, s52 offen')
    CO, SI, TH = 160, 176, 192
    groups = []
    main = []
    em = main.append
    em('s_lshl_b32 s52, s58, 5')
    em('v_add_u32 v8, s52, v2')
    em('v_cvt_f32_u32 v8, v8')
    em(f'v_mul_f32 v8, {lit(1.0/64)}, v8')
    em('v_lshlrev_b32 v9, 2, v3')
    for tt in range(2):
        em(f's_xor_b32 s52, s58, {tt}')
        em('s_lshl_b32 s52, s52, 5')
        em('v_add_u32 v10, s52, v9')
        em('v_cvt_f32_u32 v10, v10')
        em('v_mul_f32 v10, v10, v8')
        for j in range(8):
            cst = 16 * (j >> 2) + (j & 3)
            if cst == 0: em(f'v_mov_b32 v{TH+j}, v10')
            else: em(f'v_fmamk_f32 v{TH+j}, v8, {lit(float(cst))}, v10')
        for j in range(8): em(f'v_cos_f32 v{CO+tt*8+j}, v{TH+j}')
        for j in range(8): em(f'v_sin_f32 v{SI+tt*8+j}, v{TH+j}')
    def rot(kind, t, j, mt):
        qt = (mt * (j & 3)) & 3
        c, s = f'v{CO+t*8+j}', f'v{SI+t*8+j}'
        if kind == 'C': return [c, '-' + s, '-' + c, s][qt]
        if kind == 'S': return [s, c, '-' + s, '-' + c][qt]
        if kind == 'N': return ['-' + s, '-' + c, s, c][qt]
    for kind, base in (('C', FC), ('S', FS), ('N', FN)):
        for mtl in range(2):
            for tt in range(2):
                for i in range(4):
                    em(f'v_cvt_pk_bf16_f32 v{base+(mtl*2+tt)*4+i}, {rot(kind,tt,2*i,mtl)}, {rot(kind,tt,2*i+1,mtl)}')
    emit_interleaved(e, main, groups)
    if not OPT['p1slot']: p1_finish(e)
    stamp(e, 'W1.p1')
    e('s_mul_i32 s60, s56, 14')
    e('s_add_u32 s60, s60, s57')
    e('s_lshl_b32 s60, s60, 12')
    e(f's_add_u32 s60, s60, 0x{T1_OFF:x}')
    e('v_lshlrev_b32 v11, 8, v3')
    e('v_lshlrev_b32 v10, 2, v2')
    e('v_add_u32 v11, v11, v10')
    stamp(e, 'W1.ready')
    def idx(e):
        e('v_and_b32 v5, 7, v1')
        e('v_lshrrev_b32 v6, 3, v1')
        e('v_lshlrev_b32 v6, 5, v6')
        e('v_add_u32 v5, v5, v6')
        e('s_lshl_b32 s53, s59, 3')
        e('v_add_u32 v5, s53, v5')
        e('v_lshlrev_b32 v5, 6, v5')
    poll(e, 0, 64, idx)
    stamp(e, 'B.go')
    tin = {}
    for tt in range(2):
        e(f's_xor_b32 s52, s58, {tt}')
        e('s_lshl_b32 s52, s52, 11')
        e('s_add_u32 s52, s52, s60')
        for j in range(8):
            off = (16 * (j >> 2) + (j & 3)) * 64
            tin[(tt, j)] = e.vm(f'buffer_load_dword v{TIN+tt*8+j}, v11, {SWS}, s52 offen offset:{off} sc1')
    if OPT['p1slot']: p1_finish(e, R=112)
    else: gen_G(e)
    e('s_mov_b32 s52, 0x05040100')
    e('s_mov_b32 s53, 0x07060302')
    for tt in range(2):
        e.wait_vm(tin[(tt, 7)])
        for i in range(4):
            e(f'v_perm_b32 v{BF+tt*4+i}, v{TIN+tt*8+2*i+1}, v{TIN+tt*8+2*i}, s52')
            e(f'v_perm_b32 v{BF+8+tt*4+i}, v{TIN+tt*8+2*i+1}, v{TIN+tt*8+2*i}, s53')
    stamp(e, 'B.loaded')
    def fr(base, mtl, tt): return vr(base + (mtl * 2 + tt) * 4, 4)
    def mm(d, a, b, first): e(f'v_mfma_f32_16x16x32_bf16 {vr(d,4)}, {a}, {vr(b,4)}, {"0" if first else vr(d,4)}')
    BRE = lambda t: BF + t * 4
    BIM = lambda t: BF + 8 + t * 4
    for step in range(4):
        for mtl in range(2):
            xr, xi = XA + mtl * 8, XA + mtl * 8 + 4
            tt = step & 1
            if step < 2:
                mm(xr, fr(FC, mtl, tt), BRE(tt), step == 0); mm(xi, fr(FN, mtl, tt), BRE(tt), step == 0)
            else:
                mm(xr, fr(FS, mtl, tt), BIM(tt), False); mm(xi, fr(FC, mtl, tt), BIM(tt), False)
    e.wait_vm(wtok[(1, 3)])
    for mtl in range(2):
        for r in range(4):
            xr, xi = XA + mtl * 8 + r, XA + mtl * 8 + 4 + r
            wr, wi = WR + mtl * 4 + r, WI + mtl * 4 + r
            e(f'v_mul_f32 v{YR+mtl*4+r}, v{xr}, v{wr}')
            e(f'v_mul_f32 v{YI+mtl*4+r}, v{xr}, v{wi}')
            e(f'v_fma_f32 v{YR+mtl*4+r}, -v{xi}, v{wi}, v{YR+mtl*4+r}')
            e(f'v_fma_f32 v{YI+mtl*4+r}, v{xi}, v{wr}, v{YI+mtl*4+r}')
    for c, src in ((0, YR), (1, YI)):
        for i in range(4):
            e(f'v_cvt_pk_bf16_f32 v{YF+c*8+i}, v{src+(i>>1)*4+2*(i&1)}, v{src+(i>>1)*4+2*(i&1)+1}')
    e('v_lshlrev_b32 v10, 4, v1')
    e(f's_lshl_b32 s52, s{sW}, 11')
    e('v_add_u32 v12, s52, v10')
    e(f's_xor_b32 s52, s{sW}, 1')
    e('s_lshl_b32 s52, s52, 11')
    e('v_add_u32 v13, s52, v10')
    e.ds(f'ds_write_b128 v12, {vr(YF,4)}')
    e.ds(f'ds_write_b128 v12, {vr(YF+8,4)} offset:1024')
    e.wait_ds_all()
    e.barrier()
    p0 = e.ds(f'ds_read_b128 {vr(YF+4,4)}, v13')
    p1_ = e.ds(f'ds_read_b128 {vr(YF+12,4)}, v13 offset:1024')
    YRE = lambda t: YF + t * 4
    YIM = lambda t: YF + 8 + t * 4
    for mtl in range(2):
        xr, xi = XA + mtl * 8, XA + mtl * 8 + 4
        mm(xr, fr(FC, mtl, 0), YRE(0), True);  mm(xi, fr(FS, mtl, 0), YRE(0), True)
        mm(xr, fr(FN, mtl, 0), YIM(0), False); mm(xi, fr(FC, mtl, 0), YIM(0), False)
    e.wait_ds(p1_)
    for mtl in range(2):
        xr, xi = XA + mtl * 8, XA + mtl * 8 + 4
        mm(xr, fr(FC, mtl, 1), YRE(1), False); mm(xi, fr(FS, mtl, 1), YRE(1), False)
        mm(xr, fr(FN, mtl, 1), YIM(1), False); mm(xi, fr(FC, mtl, 1), YIM(1), False)
    e('s_mov_b32 s52, %d' % (4 * 28672))
    e('v_mul_lo_u32 v4, v3, s52')
    e('v_lshlrev_b32 v5, 2, v2')
    e('v_add_u32 v4, v4, v5')
    e('s_lshl_b32 s52, s57, 11')
    e('s_lshl_b32 s53, s56, 6')
    e('s_add_u32 s52, s52, s53')
    e(f's_mul_i32 s53, s58, {32*28672}')
    e('s_add_u32 s52, s52, s53')
    last = None
    for mtl in range(2):
        for r in range(4): e(f'v_cvt_pk_bf16_f32 v{TIN+mtl*4+r}, v{XA+mtl*8+r}, v{XA+mtl*8+4+r}')
        for r in range(4):
            e(f's_add_u32 s53, s52, {T2_OFF + (16*mtl+r)*28672}')
            last = e.vm(f'buffer_store_dword v{TIN+mtl*4+r}, v4, {SWS}, s53 offen sc1')
    stamp(e, 'B.stored')
    e.wait_vm_all()
    stamp(e, 'B.drained')

def phase_c(e):
    e.c('======== window 2 + phase C')
    e(f's_lshl_b32 s56, s{sGRP}, 2')
    e(f's_add_u32 s56, s56, s{sW}')
    e('s_min_u32 s57, s56, 13')
    G, TC, AIN, VA, PA, XR = C_G, C_TC, 104, 136, 48, 64
    MEAN = XR + 8
    e('v_lshlrev_b32 v5, 6, v2')
    e(f'v_add_u32 v5, s{sB}, v5')
    e('v_mul_u32_u24 v5, 896, v5')
    e('v_lshlrev_b32 v6, 3, v3')
    e('v_add_u32 v5, v5, v6')
    e('s_lshl_b32 s52, s57, 5')
    e('v_add_u32 v5, s52, v5')
    for nt in range(2):
        for pm in range(2):
            e(f's_mov_b32 s52, {nt*16*64*896}')
            e.vm(f'buffer_load_dwordx2 {vr(XR+(nt*2+pm)*2,2)}, v5, {SX}, s52 offen offset:{448*pm}')
    e('v_lshlrev_b32 v12, 2, v1')
    stamp(e, 'W2.ready')
    def idx(e): e('v_lshlrev_b32 v5, 6, v1')
    poll(e, 1, 256, idx, preg=16)
    stamp(e, 'C.go')
    w13_setup(e)
    WG = w13_load_groups()
    wgi = [0]
    def wload(n):
        for _ in range(n):
            if wgi[0] < len(WG):
                emit_groups(e, [WG[wgi[0]]]); wgi[0] += 1
    atok = {}
    for i in range(4):
        e(f's_add_u32 s52, s{sW}, {4*i}')
        e('s_min_u32 s52, s52, 13')
        e(f's_mul_i32 s53, s{sB}, 14')
        e('s_add_u32 s52, s52, s53')
        e('s_lshl_b32 s52, s52, 11')
        e(f's_add_u32 s52, s52, 0x{T2_OFF:x}')
        for t in range(2):
            for ii in range(4):
                atok[(i, t, ii)] = e.vm(f'buffer_load_dword v{AIN+i*8+t*4+ii}, v12, {SWS}, s52 offen offset:{(16*t+4*ii)*64} sc1')
    e('v_lshlrev_b32 v6, 2, v2')
    e(f's_lshl_b32 s52, s{sB}, 7')
    e(f's_add_u32 s52, s52, 0x{ST1_OFF:x}')
    mtok = [e.vm(f'buffer_load_dword v{MEAN+nt}, v6, {SWS}, s52 offen offset:{64*nt} sc1') for nt in range(2)]
    e('v_lshlrev_b32 v11, 4, v1')
    e(f's_lshl_b32 s52, s{sW}, 11')
    e('v_add_u32 v12, s52, v11')
    PK = 76
    for i in range(4):
        e.wait_vm(atok[(i, 1, 3)])
        if i == 0: stamp(e, 'C.loaded')
        for nt in range(2):
            for out in range(2):
                d = VA + (out * 2 + nt) * 4
                e(f'v_mfma_f32_16x16x32_bf16 {vr(d,4)}, {vr(AIN+i*8,4)}, {vr(G+((out*2+0)*2+nt)*4,4)}, 0')
        for nt in range(2):
            for out in range(2):
                d = VA + (out * 2 + nt) * 4
                e(f'v_mfma_f32_16x16x32_bf16 {vr(d,4)}, {vr(AIN+i*8+4,4)}, {vr(G+((out*2+1)*2+nt)*4,4)}, {vr(d,4)}')
        sk = L('skip3')
        if i == 3:
            e(f's_cmp_ge_u32 s{sW}, 2')
            e(f's_cbranch_scc1 {sk}')
        for nt in range(2):
            p = PK + nt * 4 + (i & 1) * 8
            vre, vim = VA + (0 * 2 + nt) * 4, VA + (1 * 2 + nt) * 4
            e(f'v_cvt_pk_bf16_f32 v{p+0}, v{vre+0}, v{vre+1}')
            e(f'v_cvt_pk_bf16_f32 v{p+1}, v{vre+2}, v{vre+3}')
            e(f'v_cvt_pk_bf16_f32 v{p+2}, v{vim+0}, v{vim+1}')
            e(f'v_cvt_pk_bf16_f32 v{p+3}, v{vim+2}, v{vim+3}')
            e.ds(f'ds_write_b128 v12, {vr(p,4)} offset:{(4*i*2+nt)*1024}')
        if i == 3: e.label(sk)
        wload(OPT['st1'])
    e.wait_ds_all()
    stamp(e, 'C.st1')
    e.barrier()
    VB = 16
    order = [(kb, nt) for kb in range(14) for nt in range(2)]
    tok = {}
    nread = [0]
    def issue():
        kb, nt = order[nread[0]]
        tok[nread[0]] = e.ds(f'ds_read_b128 {vr(VB+(nread[0]%8)*4,4)}, v11 offset:{(kb*2+nt)*1024}')
        nread[0] += 1
    for _ in range(7): issue()
    for idx_, (kb, nt) in enumerate(order):
        e.wait_ds(tok[idx_])
        par = 0 if kb < 7 else 1
        d = PA + (par * 2 + nt) * 4
        first = kb in (0, 7)
        e(f'v_mfma_f32_16x16x32_bf16 {vr(d,4)}, {vr(TC+kb*4,4)}, {vr(VB+(idx_%8)*4,4)}, {"0" if first else vr(d,4)}')
        if nread[0] < len(order): issue()
        if OPT['st2'] and idx_ % OPT['st2'] == OPT['st2'] - 1: wload(1)
    stamp(e, 'C.st2')
    e.wait_vm(mtok[1])
    H, HP, CP, SQ = 104, 120, 128, 92
    e('s_mov_b32 s52, 0xffff0000')
    for nt in range(2):
        pe, po = PA + nt * 4, PA + 8 + nt * 4
        for pm in range(2):
            xr = XR + (nt * 2 + pm) * 2
            for r in range(4):
                hv = H + (nt * 2 + pm) * 4 + r
                e(f'{"v_add_f32" if pm == 0 else "v_sub_f32"} v{hv}, v{pe+r}, v{po+r}')
                xv = 96 + r
                if r & 1: e(f'v_and_b32 v{xv}, s52, v{xr+(r>>1)}')
                else: e(f'v_lshlrev_b32 v{xv}, 16, v{xr+(r>>1)}')
            for r in range(4):
                hv = H + (nt * 2 + pm) * 4 + r
                e(f'v_add_f32 v{hv}, v{hv}, v{96+r}')
            for i in range(2):
                hv = H + (nt * 2 + pm) * 4 + 2 * i
                e(f'v_cvt_pk_bf16_f32 v{HP+nt*4+pm*2+i}, v{hv}, v{hv+1}')
        e(f'v_mov_b32 v{SQ+nt}, 0')
        for q in range(4):
            hp = HP + nt * 4 + q
            e(f'v_lshlrev_b32 v100, 16, v{hp}')
            e(f'v_and_b32 v101, s52, v{hp}')
            e(f'v_sub_f32 v100, v100, v{MEAN+nt}')
            e(f'v_sub_f32 v101, v101, v{MEAN+nt}')
            e(f'v_fma_f32 v{SQ+nt}, v100, v100, v{SQ+nt}')
            e(f'v_fma_f32 v{SQ+nt}, v101, v101, v{SQ+nt}')
            e(f'v_cvt_pk_bf16_f32 v{CP+nt*4+q}, v100, v101')
            wload(OPT['epi'])
    e('v_lshrrev_b32 v4, 1, v3')
    e('v_lshlrev_b32 v4, 10, v4')
    e('v_and_b32 v5, 1, v3')
    e('v_lshlrev_b32 v5, 9, v5')
    e('v_add_u32 v4, v4, v5')
    e('v_lshlrev_b32 v5, 4, v2')
    e('v_add_u32 v4, v4, v5')
    e(f's_mul_i32 s52, s{sB}, 28')
    e('s_lshl_b32 s53, s57, 1')
    e('s_add_u32 s52, s52, s53')
    e('s_lshl_b32 s52, s52, 10')
    ns, st = L('cnostore'), L('cstat')
    e('s_cmp_ge_u32 s56, 14')
    e(f's_cbranch_scc1 {ns}')
    e(f's_add_u32 s53, s52, 0x{HC_OFF:x}')
    e(f's_add_u32 s54, s52, 0x{HR_OFF:x}')
    for nt in range(2):
        e(f'buffer_store_dwordx4 {vr(CP+nt*4,4)}, v4, {SWS}, s53 offen offset:{256*nt} sc1')
        e(f'buffer_store_dwordx4 {vr(HP+nt*4,4)}, v4, {SWS}, s54 offen offset:{256*nt} sc1')
    e.label(ns)
    for nt in range(2): xsum_groups(e, SQ + nt, 102)
    e('s_cmp_lt_u32 s56, 14')
    e(f's_cbranch_scc1 {st}')
    e(f'v_mov_b32 v{SQ}, 0')
    e(f'v_mov_b32 v{SQ+1}, 0')
    e.label(st)
    e('v_cmp_le_u32 vcc, 16, v1')
    e(f'v_cndmask_b32 v{SQ}, v{SQ}, v{SQ+1}, vcc')
    e('v_lshlrev_b32 v5, 2, v1')
    e(f's_lshl_b32 s52, s{sB}, 11')
    e('s_lshl_b32 s53, s56, 7')
    e('s_add_u32 s52, s52, s53')
    e(f's_add_u32 s52, s52, 0x{ST2_OFF:x}')
    e('s_mov_b64 exec, 0xffffffff')
    last = e.vm(f'buffer_store_dword v{SQ}, v5, {SWS}, s52 offen sc1')
    e('s_mov_b64 exec, -1')
    stamp(e, 'C.stored')
    wload(OPT['post'])
    e.wait_vm(last)
    stamp(e, 'C.drained')
    signal(e, 2)
    global W13_PENDING
    W13_PENDING = (WG, wgi)

NV, NE = 27, 35
def w2reg(mi, s_):
    o = 2 * s_ + mi
    if o < NV: return vr(144 + 4 * o, 4), None
    if o < NE: return ar(224 + 4 * (o - NV), 4), None
    oo = o - NE
    return ar(((oo & 1) * 28 + (oo >> 1)) * 4, 4), (oo & 1, oo >> 1)

def phase_g(e):
    e.c('======== window 3 + G1')
    WG, wgi = W13_PENDING
    wtok = {}
    for _ in range(min(OPT['w3'], len(WG) - wgi[0])):
        wtok[wgi[0]] = emit_groups(e, [WG[wgi[0]]]); wgi[0] += 1
    e('v_lshlrev_b32 v4, 4, v1')
    e(f's_lshl_b32 s56, s{sC}, 3')
    e(f's_lshl_b32 s52, s{sW}, 1')
    e('s_add_u32 s56, s56, s52')
    e(f's_lshl_b32 s57, s{sR}, 2')
    e('s_and_b32 s58, s2, 7')
    e('s_lshr_b32 s59, s2, 3')
    e('s_mul_i32 s52, s59, 37')
    e('s_lshr_b32 s52, s52, 8')
    e('s_mul_i32 s53, s52, 7')
    e('s_sub_u32 s59, s59, s53')
    e('s_lshl_b32 s52, s52, 3')
    e('s_add_u32 s58, s58, s52')
    e(f's_mul_i32 s52, s{sW}, 28')
    e(f's_and_b32 s54, s{sW}, 1')
    for mi in range(2):
        e(f's_xor_b32 s53, s54, {mi}')
        e('s_lshl_b32 s55, s59, 1')
        e('s_add_u32 s53, s53, s55')
        e('s_mul_i32 s53, s53, 112')
        e('s_add_u32 s53, s53, s52')
        e('s_lshl_b32 s53, s53, 10')
        e(f's_add_u32 s{60+mi}, s53, 0x{W2_OFF:x}')
    e(f's_lshr_b32 s53, s{sW}, 1')
    e('s_lshl_b32 s53, s53, 4')
    e('v_xor_b32 v10, s53, v1')
    e('v_lshlrev_b32 v10, 4, v10')
    e('v_min_u32 v8, 13, v1')
    e('v_lshrrev_b32 v9, 1, v8')
    e('v_and_b32 v8, 1, v8')
    e('v_lshlrev_b32 v8, 7, v8')
    e('v_add_u32 v8, v8, v9')
    e('s_lshr_b32 s53, s58, 1')
    e('s_lshl_b32 s53, s53, 3')
    e('v_add_u32 v8, s53, v8')
    e('v_lshlrev_b32 v8, 6, v8')
    def grp_off(dst, g):
        if not OPT['g2rot']: return [f's_mov_b32 s{dst}, {g*4096}']
        return [f's_add_u32 s{dst}, s59, {g}', f's_cmp_ge_u32 s{dst}, 7', f's_cselect_b32 s55, 7, 0',
                f's_sub_u32 s{dst}, s{dst}, s55', f's_lshl_b32 s{dst}, s{dst}, 12']
    def w2load(o):
        s_, mi = o >> 1, o & 1
        reg, dep = w2reg(mi, s_)
        pre = []
        if s_ % 4 == 0 and mi == 0:
            pre = grp_off(62, s_ // 4) + ['s_add_u32 s63, s61, s62', 's_add_u32 s62, s60, s62']
        return pre + [('vm', f'buffer_load_dwordx4 {reg}, v10, {SWS}, s{62+mi} offen offset:{(s_%4)*1024} sc1')]
    def idx(e):
        e('v_lshrrev_b32 v5, 2, v1')
        e('v_add_u32 v5, s57, v5')
        e('v_and_b32 v6, 7, v5')
        e('v_lshrrev_b32 v5, 3, v5')
        e('v_lshlrev_b32 v5, 5, v5')
        e('v_add_u32 v5, v5, v6')
        e('v_and_b32 v6, 3, v1')
        e('v_lshlrev_b32 v6, 3, v6')
        e('v_add_u32 v5, v5, v6')
        e('v_lshlrev_b32 v5, 6, v5')
        idxw(e, 16)
    def idxw(e, first):
        e(f'v_add_u32 v6, {208 if first == 16 else 224}, v1')
        e('v_lshlrev_b32 v6, 6, v6')
        e(f'v_add_u32 v6, {2*0x40000}, v6')
        if first:
            e(f'v_cmp_le_u32 vcc, {first}, v1')
            e('v_cndmask_b32 v5, v5, v6, vcc')
        else:
            e('v_mov_b32 v5, v6')
    e(f's_cmp_ge_u32 s{sC}, 14')
    e('s_cbranch_scc1 L_g2only')
    poll(e, 2, 44, idx)
    stamp(e, 'G1.go')
    ACC, BR, RRG, T = 64, 16, 48, 128
    ST = 208
    dtok = {}
    e(f's_mul_i32 s96, s{sW}, 7168')
    e(f's_add_u32 s98, s{sR}, s{sW}')
    e('s_and_b32 s98, s98, 3')
    e('s_mul_i32 s98, s98, 7168')
    def hc_groups(nt):
        gs = []
        for i in range(7):
            g = []
            if i == 0:
                g += [f's_add_u32 s97, s57, {nt}', 's_mul_i32 s97, s97, 28672', 's_add_u32 s97, s97, s98', f's_add_u32 s97, s97, 0x{HC_OFF:x}']
            if i == 4: g += ['s_add_u32 s97, s97, 4096']
            if i in (0, 4): g += [f's_add_u32 m0, s96, {nt*28672 + (4096 if i == 4 else 0)}']
            g.append(('vm', f'buffer_load_dwordx4 v4, {SWS}, s97 offen offset:{(i%4)*1024} sc1 lds', ('hc', nt)))
            gs.append(g)
        return gs
    STK = []; STORES = []
    def emit_op(op):
        if isinstance(op, tuple) and op[0] == 'ds':
            STK.append(e.ds(op[1])); return None
        if isinstance(op, tuple) and op[0] == 'dswait':
            e.wait_ds(STK[op[1] * 8 + 7]); return None
        if isinstance(op, tuple):
            t = e.vm(op[1])
            if len(op) > 2:
                if op[2][0] == 'store': STORES.append(t)
                if op[2][0] == 'hc': dtok[op[2][1]] = t
                if op[2][0] == 'st': dtok['st'] = t
            return t
        e(op); return None
    for g in hc_groups(0):
        for op in g: emit_op(op)
    e(f's_add_u32 s54, s57, s{sW}')
    e('s_lshl_b32 s54, s54, 11')
    e(f's_add_u32 s54, s54, 0x{ST2_OFF:x}')
    e(f's_lshl_b32 s55, s{sW}, 11')
    e(f's_add_u32 m0, s55, {LDS_STATS}')
    e.vm(f'buffer_load_dwordx4 v4, {SWS}, s54 offen sc1 lds')
    dtok[0] = e.vm(f'buffer_load_dwordx4 v4, {SWS}, s54 offen offset:1024 sc1 lds')
    while wgi[0] < len(WG):
        wtok[wgi[0]] = emit_groups(e, [WG[wgi[0]]]); wgi[0] += 1
    e('v_add_u32 v6, 57344, v4')
    e('v_and_b32 v5, 31, v1')
    e('v_lshlrev_b32 v5, 2, v5')
    e('v_lshrrev_b32 v7, 5, v1')
    e('v_lshlrev_b32 v7, 10, v7')
    e('v_add_u32 v5, v5, v7')
    e(f'v_add_u32 v5, {LDS_STATS}, v5')
    def stat_ops():
        ops = []
        for nt in range(4):
            b0 = ST + nt * 8
            for i in range(8): ops.append(('ds', f'ds_read_b32 v{b0+i}, v5 offset:{nt*2048 + i*128}'))
        for nt in range(4):
            b0 = ST + nt * 8
            ops.append(('dswait', nt))
            ops += [f'v_add_f32 v{b0}, v{b0}, v{b0+1}', f'v_add_f32 v{b0+2}, v{b0+2}, v{b0+3}', f'v_add_f32 v{b0+4}, v{b0+4}, v{b0+5}',
                    f'v_add_f32 v{b0+6}, v{b0+6}, v{b0+7}', f'v_add_f32 v{b0}, v{b0}, v{b0+2}', f'v_add_f32 v{b0+4}, v{b0+4}, v{b0+6}',
                    f'v_add_f32 v{b0}, v{b0}, v{b0+4}', f'v_mov_b32 v{b0+1}, v{b0}', f'v_mov_b32 v7, {lit(1e-5)}',
                    f'v_permlane32_swap_b32 v{b0+1}, v{b0}', f'v_add_f32 v{b0}, v{b0}, v{b0+1}',
                    f'v_fmamk_f32 v{RRG+4+nt}, v{b0}, {lit(1.0/448)}, v7', f'v_rsq_f32 v{b0}, v{RRG+4+nt}', 's_nop 0',
                    f'v_mul_f32 v{RRG+nt}, {lit(-1.4426950408889634)}, v{b0}']
        return ops
    def epi_half(nt, mi):
        ops = []
        a = ACC + ((nt & 1) * 2 + mi) * 16
        T0 = T
        for r in range(8): ops.append(f'v_mul_f32 v{T0+r}, v{a+r}, v{RRG+nt}')
        for r in range(8):
            ops.append(f'v_exp_f32 v{T0+r}, v{T0+r}')
            ops.append(f'v_mul_f32 v{T0+8+r}, v{a+r}, v{a+8+r}')
        for r in range(8): ops.append(f'v_fma_f32 v{T0+r}, v{T0+r}, v{RRG+4+nt}, v{RRG+4+nt}')
        for r in range(8): ops.append(f'v_rcp_f32 v{T0+r}, v{T0+r}')
        for r in range(8): ops.append(f'v_mul_f32 v{T0+8+r}, v{T0+8+r}, v{T0+r}')
        P = 56 + mi * 4
        for i in range(4): ops.append(f'v_cvt_pk_bf16_f32 v{P+i}, v{T0+8+2*i}, v{T0+8+2*i+1}')
        ops.append(f's_add_u32 s53, s99, {nt*112*1024 + mi*1024}')
        ops.append(('vm', f'buffer_store_dwordx4 {vr(P,4)}, v4, {SWS}, s53 offen sc1', ('store',)))
        return ops
    def epi_ops(nt): return epi_half(nt, 0) + epi_half(nt, 1)
    e('s_mul_i32 s99, s57, 112')
    e('s_add_u32 s99, s99, s56')
    e('s_lshl_b32 s99, s99, 10')
    e(f's_add_u32 s99, s99, 0x{HM_OFF:x}')
    n1 = OPT['w2t1']
    bg = {0: hc_groups(1) + hc_groups(2), 1: hc_groups(3) + [w2load(o) for o in range(0, n1)],
          2: [w2load(o) for o in range(n1, NE)], 3: []}
    last_store = None
    next_late = NE
    def g2_bases(em):
        em('s_lshr_b32 s52, s58, 1')
        em('s_lshl_b32 s52, s52, 2')
        em('s_and_b32 s53, s58, 1')
        em('s_add_u32 s100, s52, s53')
        em('s_sub_u32 s101, s52, s53')
        em('s_add_u32 s101, s101, 3')
        em(f's_mul_i32 s52, s{sW}, 28')
        for k in range(2):
            em(f's_mul_i32 s53, s{100+k}, 112')
            em('s_add_u32 s53, s53, s52')
            em('s_lshl_b32 s53, s53, 10')
            em(f's_add_u32 s{88+k}, s53, 0x{HM_OFF:x}')
    g2_bases(e)
    RING = 64
    rtok = {}
    def ring_load(ph, i):
        if i % 4 == 0: e(f's_add_u32 s90, s{88+ph}, {i*1024}')
        rtok[(ph, i)] = e.vm(f'buffer_load_dwordx4 {vr(RING+(i%8)*4,4)}, v4, {SWS}, s90 offen offset:{(i%4)*1024} sc1')
    def early_check(tok_):
        dn, lp = L('ec'), L('ec')
        e(f's_mov_b32 s{sSPIN}, 0')
        e.label(lp)
        if tok_ is None:
            e(f'buffer_load_dword v9, v8, {SWS}, s91 offen sc1')
            e('s_waitcnt vmcnt(0)')
        e(f'v_cmp_ne_u32 vcc, s{sNONCE}, v9')
        e('s_nop 4')
        e(f's_cbranch_vccz {dn}')
        if tok_ is not None:
            e(f'buffer_load_dword v9, v8, {SWS}, s91 offen sc1')
            e('s_waitcnt vmcnt(0)')
        e(f's_add_u32 s{sSPIN}, s{sSPIN}, 1')
        e(f's_cmp_lt_u32 s{sSPIN}, {MAXSPIN}')
        e(f's_cbranch_scc1 {lp}')
        e.label(dn)
    etok = None
    for nt in range(4):
        e.wait_vm(dtok[nt])
        e.barrier()
        if nt == 0: stamp(e, 'G1.t0')
        fill = epi_ops(nt - 1) if nt > 0 else stat_ops()
        sttok = []
        fi = 0; gi = 0
        btok = {}
        n = [0]
        def issue():
            kap = n[0]
            base = 'v4' if nt < 2 else 'v6'
            off = ((nt & 1) * 28 + kap) * 1024
            btok[kap] = e.ds(f'ds_read_b128 {vr(BR+(kap%8)*4,4)}, {base} offset:{off}')
            n[0] += 1
        for _ in range(5): issue()
        nm = 0
        G_ = bg[nt]
        for kap in range(28):
            e.wait_ds(btok[kap])
            for mi in range(2):
                a = ACC + ((nt & 1) * 2 + mi) * 16
                if nt == 0 and (kap * 2 + mi) in wtok: e.wait_vm(wtok[kap * 2 + mi])
                e(f'v_mfma_f32_32x32x16_bf16 {vr(a,16)}, {ar((mi*28+kap)*4,4)}, {vr(BR+(kap%8)*4,4)}, {"0" if kap == 0 else vr(a,16)}')
                nm += 1
                if mi == 0 and n[0] < 28: issue()
                span = 24 if nt == 3 else 56
                want = (len(G_) * nm + span - 1) // span
                while gi < min(want, len(G_)):
                    for op in G_[gi]: emit_op(op)
                    gi += 1
                if nt == 3 and gi >= len(G_) and nm * 21 >= (next_late - NE + 1) * OPT['latesp'] and next_late < 56:
                    dep = w2reg(next_late & 1, next_late >> 1)[1]
                    if dep[1] * 2 + dep[0] < nm:
                        for op in w2load(next_late): emit_op(op)
                        next_late += 1
                if nt == 3 and nm == OPT['eflag']:
                    e.wait_vm(STORES[3])
                    e.barrier()
                    flag_store(e, 5)
                if nm > 3:
                    fs = OPT['fspan'] if nt == 2 else 50
                    want = (len(fill) * (nm - 3) + fs - 1) // fs
                    while fi < min(want, len(fill)):
                        t = emit_op(fill[fi]); fi += 1
        while fi < len(fill):
            emit_op(fill[fi]); fi += 1
        stamp(e, f'G1.tile{nt}')
    for op in epi_ops(3):
        t = emit_op(op)
        if isinstance(op, tuple): last_store = t
    stamp(e, 'G1.stored')
    assert next_late == 56
    skr, skr2 = L('nog2'), L('nog2')
    e('s_cmp_ge_u32 s2, 224')
    e(f's_cbranch_scc1 {skr}')
    e(f's_add_u32 s91, s{sREP}, 0x{FL_OFF + 5*0x40000:x}')
    e(f'buffer_load_dword v9, v8, {SWS}, s91 offen sc1')
    e.label(skr)
    e('s_waitcnt vmcnt(0)')
    e.vm_done = e.vm_issued
    stamp(e, 'G1.drained')
    signal(e, 3)
    e('s_cmp_ge_u32 s2, 224')
    e('s_cbranch_scc1 L_fin')
    early_check(0)
    e('s_branch L_g2')
    e.label('L_g2only')
    e('s_cmp_ge_u32 s2, 224')
    e('s_cbranch_scc1 L_fin')
    poll(e, 2, 28, lambda e_: idxw(e_, 0))
    for o in range(56):
        for op in w2load(o): e(op[1] if isinstance(op, tuple) else op)
    g2_bases(e)
    e(f's_add_u32 s91, s{sREP}, 0x{FL_OFF + 5*0x40000:x}')
    early_check(None)
    e.label('L_g2')
    for i in range(8): ring_load(0, i)
    e.c('======== G2')
    ACC2, R0, HRR = 16, 96, 140
    e(f's_and_b32 s60, s{sW}, 1')
    e('s_lshl_b32 s53, s59, 1')
    e('s_add_u32 s60, s60, s53')
    e(f's_lshr_b32 s61, s{sW}, 1')
    for k in range(3):
        e(f's_xor_b32 s52, s{sW}, {k+1}')
        e('s_mul_i32 s52, s52, 6144')
        e(f'v_add_u32 v{11+k}, s52, v4')
    e(f's_mul_i32 s52, s{sW}, 6144')
    e('v_add_u32 v133, s52, v4')
    e('v_and_b32 v5, 31, v1')
    e('v_mul_u32_u24 v5, %d, v5' % (64 * 896))
    e('v_lshrrev_b32 v6, 5, v1')
    e('v_mul_u32_u24 v6, 448, v6')
    e('v_add_u32 v132, v5, v6')
    HR_ = {0: 140, 1: 136}
    def accreg(ph, mi, off=0, n=16):
        return vr(ACC2 + mi * 16 + off, n) if ph == 0 else ar(80 + mi * 16 + off, n)
    def hr_load(ph):
        e(f's_mul_i32 s52, s{100+ph}, 28')
        e('s_lshl_b32 s53, s60, 1')
        e('s_add_u32 s52, s52, s53')
        e('s_add_u32 s52, s52, s61')
        e('s_lshl_b32 s52, s52, 10')
        e(f's_add_u32 s52, s52, 0x{HR_OFF:x}')
        return e.vm(f'buffer_load_dwordx4 {vr(HR_[ph],4)}, v4, {SWS}, s52 offen sc1')
    def tail_ops(ph, htok):
        ops = []
        for k, (mi, rh) in enumerate(((1, 0), (0, 1), (1, 1))):
            for qd in range(2):
                ops.append(('ds', f'ds_write_b128 v{11+k}, {accreg(ph, mi, rh*8 + qd*4, 4)} offset:{ph*24576 + k*2048 + qd*1024}'))
        ops.append(('dswaitall',))
        ops.append('s_barrier')
        for k in range(3):
            for qd in range(2):
                ops.append(('ds', f'ds_read_b128 {vr(R0+k*8+qd*4,4)}, v133 offset:{ph*24576 + k*2048 + qd*1024}'))
        if ph == 1:
            for r in range(8): ops.append(f'v_accvgpr_read_b32 v{ACC2+r}, a{80+r}')
        ops.append(('dswaitall',))
        for r in range(8):
            ops.append(f'v_add_f32 v{R0+r}, v{R0+r}, v{R0+8+r}')
            ops.append(f'v_add_f32 v{R0+16+r}, v{R0+16+r}, v{ACC2+r}')
        for r in range(8): ops.append(f'v_add_f32 v{R0+r}, v{R0+r}, v{R0+16+r}')
        ops.append(('vmwait', htok))
        PK, O = 120, 124
        for i in range(4): ops.append(f'v_cvt_pk_bf16_f32 v{PK+i}, v{R0+2*i}, v{R0+2*i+1}')
        for i in range(4):
            ops += [f'v_lshlrev_b32 v128, 16, v{PK+i}', f'v_and_b32 v129, s87, v{PK+i}', f'v_lshlrev_b32 v130, 16, v{HR_[ph]+i}',
                    f'v_and_b32 v131, s87, v{HR_[ph]+i}', 'v_add_f32 v128, v128, v130', 'v_add_f32 v129, v129, v131',
                    f'v_cvt_pk_bf16_f32 v{O+i}, v128, v129']
        ops += [f'v_permlane32_swap_b32 v{O}, v{O+2}', f'v_permlane32_swap_b32 v{O+1}, v{O+3}']
        ops += ['s_lshl_b32 s52, s60, 5', 's_lshl_b32 s53, s61, 4', 's_add_u32 s52, s52, s53', f's_mul_i32 s53, s{100+ph}, 896', 's_add_u32 s52, s52, s53']
        om = ['', ' sc1', ' nt', ' sc0 sc1'][OPT['outmod']]
        ops.append(('vm', f'buffer_store_dwordx4 {vr(O,4)}, v132, {SOUT}, s52 offen{om}'))
        return ops
    def run_op(op):
        if isinstance(op, tuple):
            if op[0] == 'ds': e.ds(op[1])
            elif op[0] == 'dswaitall': e.wait_ds_all()
            elif op[0] == 'vmwait': e.wait_vm(op[1])
            elif op[0] == 'vm': e.vm(op[1])
        else: e(op)
    e('s_mov_b32 s87, 0xffff0000')
    htok = {0: hr_load(0)}
    fill = []; fi = 0
    def rl(tau):
        ph_, i_ = divmod(tau, 28)
        if i_ % 4 == 0: e(f's_add_u32 s90, s{88+ph_}, {i_*1024}')
        rtok[tau] = e.vm(f'buffer_load_dwordx4 {vr(RING+(tau%8)*4,4)}, v4, {SWS}, s90 offen offset:{(i_%4)*1024} sc1')
    for i in range(8): rtok[i] = rtok[(0, i)]
    for tau in range(56):
        ph, i = divmod(tau, 28)
        e.wait_vm(rtok[tau])
        if tau == 0: stamp(e, 'G2.first')
        for mi in range(2):
            e(f'v_mfma_f32_32x32x16_bf16 {accreg(ph, mi)}, {w2reg(mi,i)[0]}, {vr(RING+(tau%8)*4,4)}, {"0" if i == 0 else accreg(ph, mi)}')
        if tau == OPT['lpoll']:
            e(f's_add_u32 s91, s{sREP}, 0x{FL_OFF + 3*0x40000:x}')
            ltok = e.vm(f'buffer_load_dword v9, v8, {SWS}, s91 offen sc1')
        if tau + 8 == 28:
            e.wait_vm(ltok)
            early_check(ltok)
            stamp(e, 'G2.go')
        if tau + 8 < 56: rl(tau + 8)
        if tau == 28:
            htok[1] = hr_load(1)
            fill = tail_ops(0, htok[0])
        if tau == 27: stamp(e, 'G2.mfma0')
        if tau > 28:
            want = (len(fill) * (tau - 28) + 23) // 24
            while fi < min(want, len(fill)):
                run_op(fill[fi]); fi += 1
    while fi < len(fill):
        run_op(fill[fi]); fi += 1
    stamp(e, 'G2.mfma1')
    for op in tail_ops(1, htok[1]): run_op(op)
    stamp(e, 'G2.end')

DBGOUT = False
def dbg_out(e):
    sk = L('dbo')
    e('s_waitcnt vmcnt(0)')
    e('s_memrealtime s[84:85]')
    e('s_memtime s[90:91]')
    e('s_waitcnt lgkmcnt(0)')
    e(f's_cmp_lg_u32 s{sW}, 0')
    e(f's_cbranch_scc1 {sk}')
    e('s_and_b32 s52, s2, 63')
    e('s_cmp_lg_u32 s52, 0')
    e(f's_cbranch_scc1 {sk}')
    e('s_lshr_b32 s52, s2, 6')
    e('s_lshl_b32 s52, s52, 4')
    e('s_add_u32 s52, s52, 16')
    e('s_sub_u32 s53, s84, s86')
    e('s_sub_u32 s54, s90, s82')
    e('v_mov_b32 v4, s53'); e('v_mov_b32 v5, s54'); e('v_mov_b32 v6, s86'); e('v_mov_b32 v7, s84')
    e('v_mov_b32 v8, 0')
    e('s_mov_b64 exec, 1')
    e(f'buffer_store_dwordx4 v[4:7], v8, {SDBG}, s52 offen sc1')
    e('s_mov_b64 exec, -1')
    e.label(sk)

def probe(e):
    sk = L('prb'); lp = L('prl')
    e('s_cmp_lg_u32 s2, 0')
    e(f's_cbranch_scc1 {sk}')
    e('s_waitcnt vmcnt(0)')
    e('s_memrealtime s[84:85]')
    e('s_waitcnt lgkmcnt(0)')
    e('s_sub_u32 s84, s84, s86')
    e(f's_cmp_lt_u32 s84, {OPT["probe"]}')
    e(f's_cbranch_scc1 {sk}')
    e('s_mov_b32 s85, 0')
    e.label(lp)
    e('s_sleep 64')
    e('s_add_u32 s85, s85, 1')
    e('s_cmp_lt_u32 s85, 20')
    e(f's_cbranch_scc1 {lp}')
    e.label(sk)

def diag_dump(e):
    if OPT['probe']: probe(e)
    if DBGOUT: dbg_out(e)
    if not DIAG: return
    e.wait_vm_all()
    rstamp(e, 'rt_end')
    e('s_lshl_b32 s52, s2, 2')
    e(f's_add_u32 s52, s52, s{sW}')
    e('s_lshl_b32 s52, s52, 8')
    e(f's_add_u32 s52, s52, 0x{DIAG_OFF:x}')
    e('v_lshlrev_b32 v4, 2, v1')
    e(f'buffer_store_dword v255, v4, {SWS}, s52 offen')

def kernel():
    e = Emit()
    e.label(KN)
    e('s_cmp_ge_u32 s2, 256')
    e('s_cbranch_scc1 L_end')
    e('s_load_dwordx16 s[64:79], s[0:1], 0')
    e('s_load_dwordx4 s[80:83], s[0:1], 64')
    e('s_memrealtime s[86:87]')
    if DBGOUT: e('s_memtime s[82:83]')
    if DIAG: e('v_mov_b32 v255, 0')
    e('v_lshrrev_b32 v4, 6, v0')
    e('v_and_b32 v1, 63, v0')
    e(f'v_readfirstlane_b32 s{sW}, v4')
    e('v_and_b32 v2, 15, v0')
    e('v_bfe_u32 v3, v0, 4, 2')
    e(f's_and_b32 s{sB}, s2, 7')
    e('s_lshr_b32 s52, s2, 5')
    e('s_lshl_b32 s52, s52, 3')
    e(f's_add_u32 s{sB}, s{sB}, s52')
    e(f's_lshr_b32 s{sGRP}, s2, 3')
    e(f's_and_b32 s{sGRP}, s{sGRP}, 3')
    e('s_lshr_b32 s52, s2, 3')
    e(f's_and_b32 s{sR}, s52, 15')
    e('s_lshr_b32 s52, s52, 4')
    e(f's_and_b32 s{sC}, s2, 7')
    e(f's_lshl_b32 s{sC}, s{sC}, 1')
    e(f's_add_u32 s{sC}, s{sC}, s52')
    e(f's_getreg_b32 s{sREP}, hwreg(HW_REG_XCC_ID, 0, 3)')
    e(f's_lshl_b32 s{sREP}, s{sREP}, 14')
    e(f's_mov_b32 s{sNONCE}, 0')
    e('s_waitcnt lgkmcnt(0)')
    srd(e, S_X, 64, 1835008)
    if OPT['wsoff']:
        e(f's_add_u32 s82, s82, 0x{OPT["wsoff"]*0x100000:x}')
        e('s_addc_u32 s83, s83, 0')
    srd(e, S_WS, 82, WS_SIZE)
    srd(e, S_WR, 66, 2048 * 450)
    srd(e, S_WI, 68, 2048 * 450)
    srd(e, S_W1, 72, 448 * 3584)
    srd(e, S_W3, 74, 448 * 3584)
    srd(e, S_W2, 76, 1792 * 896)
    srd(e, S_OUT, 78, 1835008)
    srd(e, S_DBG, 80, 256)
    e('s_cmp_ge_u32 s2, 224')
    e(f's_cselect_b32 s{S_W1+2}, 0, s{S_W1+2}')
    e(f's_cselect_b32 s{S_W3+2}, 0, s{S_W3+2}')
    if DIAG:
        STAMPS.append('rt_start'); _stamp_n[0] += 1
        e('v_writelane_b32 v255, s86, 0')
    stamp(e, 'start')
    sk = L('nononce')
    e(f's_or_b32 s52, s2, s{sW}')
    e('s_cmp_lg_u32 s52, 0')
    e(f's_cbranch_scc1 {sk}')
    e('s_or_b32 s52, s86, 1')
    e('v_mov_b32 v4, s52')
    e('v_mov_b32 v5, 0')
    e('s_mov_b64 exec, 1')
    e(f'buffer_store_dword v4, v5, {SDBG}, 0 offen sc1')
    e('s_mov_b64 exec, -1')
    e.label(sk)
    phase_a(e)
    p2l, joinl, join2 = L('p2'), L('join'), L('join')
    e('s_cmp_ge_u32 s2, 224')
    e(f's_cbranch_scc1 {p2l}')
    sv_ds = (e.ds_issued, e.ds_done)
    phase_b(e)
    e(f's_branch {joinl}')
    e.label(p2l)
    signal(e, 1)
    phase_p2(e)
    signal(e, 4)
    e(f's_branch {join2}')
    e.label(joinl)
    signal(e, 1)
    gen_TC(e)
    if OPT['p1slot']: gen_G(e)
    e.label(join2)
    e.vm_issued = 0; e.vm_done = 0
    phase_c(e)
    phase_g(e)
    e.label('L_fin')
    diag_dump(e)
    e.label('L_end')
    e('s_endpgm')
    return e.out

def build():
    hdr = open('cdna_kernels/' + NAME + '.s.ref').read().split('; Override launch')[0]
    body = kernel()
    body, nn = hazard_pass(body)
    print(f'; {len(body)} lines, {nn} nops inserted', file=sys.stderr)
    lines = [hdr.rstrip('\n'),
             f'; @launch grid=(256,1,1) block=(256,1,1) lds={LDS_BYTES}',
             '.amdgcn_target "amdgcn-amd-amdhsa--gfx950"', '.text', f'.globl {KN}', '.p2align 8', f'.type {KN},@function']
    for ln in body: lines.append(ln if ln.endswith(':') else '    ' + ln)
    lines += ['.section .rodata,"a"', '.p2align 6', f'.amdhsa_kernel {KN}',
              '  .amdhsa_next_free_vgpr 512', '  .amdhsa_next_free_sgpr 102', '  .amdhsa_accum_offset 256',
              '  .amdhsa_group_segment_fixed_size 0', '  .amdhsa_kernarg_size 80', '  .amdhsa_user_sgpr_count 2',
              '  .amdhsa_user_sgpr_kernarg_segment_ptr 1', '  .amdhsa_system_sgpr_workgroup_id_x 1',
              '  .amdhsa_float_denorm_mode_32 3', '.end_amdhsa_kernel']
    return '\n'.join(lines) + '\n'

if __name__ == '__main__':
    for a in list(sys.argv):
        if a.startswith('--opt='):
            for kv in a[6:].split(','):
                k, v = kv.split('='); OPT[k] = int(v)
            sys.argv.remove(a)
    if '--dbgout' in sys.argv:
        DBGOUT = True; sys.argv.remove('--dbgout')
    if '--diag' in sys.argv:
        DIAG = True; sys.argv.remove('--diag')
    out = sys.argv[1] if len(sys.argv) > 1 else 'cdna_kernels/' + NAME + '.s'
    open(out, 'w').write(build())
    if DIAG:
        import json; json.dump(STAMPS, open(out + '.stamps.json', 'w'))
    print('written', out, file=sys.stderr)
```

```python
import sys, struct
from asmlib import Emit, hazard_pass

NAME = "sequential_preLN__spectral_gfnet__glu_gated_swiglu__prompt"
KN = NAME + "_kernel"

T1_OFF  = 0x000000
T2_OFF  = 0x200000
HC_OFF  = 0x400000
HR_OFF  = 0x600000
ST1_OFF = 0x800000
ST2_OFF = 0x810000
W13_OFF = 0x900000
W2_OFF  = 0xD00000
HM_OFF  = 0x1000000
FL_OFF  = 0x1800000
DIAG_OFF = 0x1A00000
WS_SIZE = 0x1C00000
LDS_STAGE = 32768
LDS_STATS = 114688
LDS_BYTES = 114688 + 8192
MAXSPIN = 100000

DIAG = False
OPT = dict(st1=3, st2=2, epi=2, post=4, w3=8, cpf=4, outmod=0, probe=0, pdepth=1, g2rot=0, wsoff=0, eflag=16, epoll=46, fspan=40, w2t1=14, latesp=52, g2mode=1, lpoll=8, p1slot=0)
def f2u(x): return struct.unpack('<I', struct.pack('<f', x))[0]
def lit(x): return '0x%08x' % f2u(x)
def vr(a, n=1): return f'v{a}' if n == 1 else f'v[{a}:{a+n-1}]'
def ar(a, n=1): return f'a{a}' if n == 1 else f'a[{a}:{a+n-1}]'

S_X, S_WS, S_WR, S_WI, S_W1, S_W3, S_W2, S_OUT, S_DBG = 8, 12, 16, 20, 24, 28, 32, 36, 40
SX, SWS, SWR, SWI, SW1, SW3, SW2, SOUT, SDBG = [f's[{a}:{a+3}]' for a in (8, 12, 16, 20, 24, 28, 32, 36, 40)]
sW, sB, sGRP, sNONCE, sREP = 44, 45, 46, 47, 48
sR, sC, sSPIN = 49, 50, 51

def srd(e, d, ptr, size):
    e(f's_mov_b32 s{d}, s{ptr}')
    e(f's_and_b32 s{d+1}, s{ptr+1}, 0xffff')
    e(f's_mov_b32 s{d+2}, 0x{size:x}')
    e(f's_mov_b32 s{d+3}, 0x20000')

_stamp_n = [0]
STAMPS = []
def stamp(e, name):
    if not DIAG: return
    i = _stamp_n[0]; _stamp_n[0] += 1; STAMPS.append(name)
    e('s_memtime s[84:85]')
    e('s_waitcnt lgkmcnt(0)')
    e(f'v_writelane_b32 v255, s84, {i}')
def rstamp(e, name):
    if not DIAG: return
    i = _stamp_n[0]; _stamp_n[0] += 1; STAMPS.append(name)
    e('s_memrealtime s[84:85]')
    e('s_waitcnt lgkmcnt(0)')
    e(f'v_writelane_b32 v255, s84, {i}')

def xsum_groups(e, v, tmp):
    e(f'v_mov_b32 v{tmp}, v{v}')
    e(f'v_permlane32_swap_b32 v{tmp}, v{v}')
    e(f'v_add_f32 v{v}, v{v}, v{tmp}')
    e(f'v_mov_b32 v{tmp}, v{v}')
    e(f'v_permlane16_swap_b32 v{tmp}, v{v}')
    e(f'v_add_f32 v{v}, v{v}, v{tmp}')

def rot8(em, co, si, co2, si2, cs, neg_sin):
    C = 'op_sel:[0,0] op_sel_hi:[1,0]'
    S3 = 'op_sel:[0,1,0] op_sel_hi:[1,1,1]'
    NEG = ' neg_lo:[0,1,0] neg_hi:[0,1,0]'
    for p in range(4):
        em(f'v_pk_mul_f32 v[{co2+2*p}:{co2+2*p+1}], v[{co+2*p}:{co+2*p+1}], v[{cs}:{cs+1}] {C}')
        em(f'v_pk_mul_f32 v[{si2+2*p}:{si2+2*p+1}], v[{si+2*p}:{si+2*p+1}], v[{cs}:{cs+1}] {C}')
    for p in range(4):
        em(f'v_pk_fma_f32 v[{co2+2*p}:{co2+2*p+1}], v[{si+2*p}:{si+2*p+1}], v[{cs}:{cs+1}], v[{co2+2*p}:{co2+2*p+1}] {S3}' + ('' if neg_sin else NEG))
        em(f'v_pk_fma_f32 v[{si2+2*p}:{si2+2*p+1}], v[{co+2*p}:{co+2*p+1}], v[{cs}:{cs+1}], v[{si2+2*p}:{si2+2*p+1}] {S3}' + (NEG if neg_sin else ''))

_lab = [0]
def L(p):
    _lab[0] += 1
    return f'L{p}_{_lab[0]}'

def signal(e, sync):
    e.barrier()
    skip = L('sig')
    e(f's_cmp_lg_u32 s{sW}, 0')
    e(f's_cbranch_scc1 {skip}')
    e(f's_lshl_b32 s52, s2, 6')
    e(f's_add_u32 s52, s52, 0x{FL_OFF + sync*0x40000:x}')
    e(f'v_mov_b32 v14, s{sNONCE}')
    e('v_lshlrev_b32 v15, 14, v1')
    e('s_mov_b64 exec, 0xff')
    e(f'buffer_store_dword v14, v15, {SWS}, s52 offen sc1')
    e('s_mov_b64 exec, -1')
    e.label(skip)

def flag_store(e, sync):
    skip = L('flg')
    e(f's_cmp_lg_u32 s{sW}, 0')
    e(f's_cbranch_scc1 {skip}')
    e(f's_lshl_b32 s52, s2, 6')
    e(f's_add_u32 s52, s52, 0x{FL_OFF + sync*0x40000:x}')
    e(f'v_mov_b32 v14, s{sNONCE}')
    e('v_lshlrev_b32 v15, 14, v1')
    e('s_mov_b64 exec, 0xff')
    e(f'buffer_store_dword v14, v15, {SWS}, s52 offen sc1')
    e('s_mov_b64 exec, -1')
    e.label(skip)

def poll(e, sync, nflags, idx_code, preg=232, bar=True):
    skip = L('pollskip'); loop = L('poll'); done = L('polldone')
    e(f's_cmp_lg_u32 s{sW}, 0')
    e(f's_cbranch_scc1 {skip}')
    idx_code(e)
    nl = max(1, nflags // 64)
    e(f's_add_u32 s52, s{sREP}, 0x{FL_OFF + sync*0x40000:x}')
    for i in range(1, nl): e(f's_add_u32 s{52+i}, s52, {i*64*64}')
    e(f's_mov_b32 s{sSPIN}, 0')
    if nflags <= 32: e(f's_mov_b64 exec, 0x{(1 << nflags) - 1:x}')
    elif nflags < 64: e(f's_mov_b32 exec_hi, 0x{(1 << (nflags - 32)) - 1:x}')
    D = OPT['pdepth']
    def issue(k):
        for i in range(nl): e(f'buffer_load_dword v{preg+k*nl+i}, v5, {SWS}, s{52+i} offen sc1')
    e('s_waitcnt vmcnt(0)') if D == 1 else None
    for k in range(D - 1): issue(k)
    e.label(loop)
    for k in range(D):
        issue((k + D - 1) % D)
        e(f's_waitcnt vmcnt({(D-1)*nl})')
        r = preg + k * nl
        e(f'v_xor_b32 v6, s{sNONCE}, v{r}')
        for i in range(1, nl):
            e(f'v_xor_b32 v7, s{sNONCE}, v{r+i}')
            e('v_or_b32 v6, v6, v7')
        e('v_cmp_ne_u32 vcc, 0, v6')
        e('s_nop 4')
        e(f's_cbranch_vccz {done}')
    e(f's_add_u32 s{sSPIN}, s{sSPIN}, 1')
    e(f's_cmp_lt_u32 s{sSPIN}, {MAXSPIN}')
    e(f's_cbranch_scc1 {loop}')
    e.label(done)
    e('s_mov_b64 exec, -1')
    e.label(skip)
    if bar: e.barrier()

def p1_addr(e, i):
    e(f's_lshl_b32 s53, s{sW}, 2')
    e(f's_add_u32 s53, s53, {i}')
    e('s_cmp_ge_u32 s53, 7')
    e('s_cselect_b32 s54, 7, 0')
    e(f's_cselect_b32 s55, {P1_MS}, 0')
    e('s_sub_u32 s54, s53, s54')
    e('s_lshl_b32 s54, s54, 6')
    e(f's_add_u32 s55, s55, {LDS_STAGE}')
    e('v_add_u32 v12, s54, v1')
    e('v_mul_u32_u24 v13, 4682, v12')
    e('v_lshrrev_b32 v13, 16, v13')
    e('v_mul_u32_u24 v14, 14, v13')
    e('v_sub_u32 v14, v12, v14')
    e('v_lshlrev_b32 v14, 4, v14')
    e(f'v_mul_u32_u24 v15, {P1_RS}, v13')
    e('v_add3_u32 v%d, v15, v14, s55' % P1LR[i])
    if i == 3: e('v_accvgpr_write_b32 a25, v10')
    e('v_lshrrev_b32 v15, 4, v13')
    e('v_mul_u32_u24 v15, 208, v15')
    e('v_add_u32 v15, v15, v13')
    e('v_mul_u32_u24 v15, 3584, v15')
    e('v_add_u32 v15, v15, v14')

P1_RS, P1_MS = 288, 9344
P1LR = [252, 253, 254, 10]
P2LR = [248, 11]
P2_RS, P2_BASE = 480, LDS_STAGE + 2 * 9344 + 64
def p1_loads(e):
    e('s_lshr_b32 s52, s2, 4')
    e('s_lshl_b32 s52, s52, 4')
    e('s_mul_i32 s52, s52, 3584')
    e('s_and_b32 s54, s2, 15')
    e('s_mul_i32 s54, s54, 224')
    e('s_add_u32 s52, s52, s54')
    e(f's_mov_b32 s94, s{S_W1+2}')
    e('s_mov_b32 s95, 0x20000')
    for i in range(4):
        p1_addr(e, i)
        e('s_cmp_ge_u32 s53, 7')
        e(f's_cselect_b32 s92, s{S_W3}, s{S_W1}')
        e(f's_cselect_b32 s93, s{S_W3+1}, s{S_W1+1}')
        if i >= 2:
            e('s_cmp_ge_u32 s53, 14')
            e('s_cselect_b32 s94, 0, s94')
        e.vm(f'buffer_load_dwordx4 {ar(4*i,4)}, v15, s[92:95], s52 offen')

def p2_loads(e):
    e('s_lshr_b32 s52, s2, 1')
    e('s_mul_i32 s52, s52, %d' % (16 * 896))
    e('s_and_b32 s53, s2, 1')
    e('s_mul_i32 s53, s53, 224')
    e('s_add_u32 s52, s52, s53')
    e(f's_mov_b32 s92, s{S_W2}')
    e(f's_mov_b32 s93, s{S_W2+1}')
    e('s_cmp_ge_u32 s2, 224')
    e(f's_cselect_b32 s94, 0, s{S_W2+2}')
    for i in range(2):
        e(f's_lshl_b32 s53, s{sW}, 1')
        e(f's_add_u32 s53, s53, {i}')
        e('s_lshl_b32 s54, s53, 6')
        e('v_add_u32 v12, s54, v1')
        e('v_mul_u32_u24 v13, 2341, v12')
        e('v_lshrrev_b32 v13, 16, v13')
        e('v_mul_u32_u24 v14, 28, v13')
        e('v_sub_u32 v14, v12, v14')
        e('v_cmp_le_u32 vcc, 14, v14')
        e('v_lshlrev_b32 v14, 4, v14')
        e(f'v_mul_u32_u24 v15, {P2_RS}, v13')
        e(f'v_add_u32 v15, v15, v14')
        e(f'v_add_u32 v15, {P2_BASE}, v15')
        e(f'v_accvgpr_write_b32 a{26 if i == 0 else 24}, v15')
        e('v_add_u32 v15, 224, v14')
        e('v_cndmask_b32 v14, v14, v15, vcc')
        e('v_mul_u32_u24 v15, 896, v13')
        e('v_add_u32 v15, v15, v14')
        if i == 1:
            e('s_cmp_ge_u32 s53, 7')
            e('s_cselect_b32 s94, 0, s94')
        e.vm(f'buffer_load_dwordx4 {ar(16+4*i,4)}, v15, s[92:95], s52 offen')
assert all(((i * 2341) >> 16) == i // 28 for i in range(512))

def w_prefetch(e):
    e('s_lshl_b32 s52, s2, 12')
    e('v_lshlrev_b32 v12, 4, v0')
    e('v_add_u32 v12, s52, v12')
    e.vm(f'buffer_load_dwordx4 a[16:19], v12, {SWR}, 0 offen')
    e.vm(f'buffer_load_dwordx4 a[16:19], v12, {SWI}, 0 offen')
assert all(((i * 4682) >> 16) == i // 14 for i in range(512))

def p1_finish(e, R=64):
    RS, MS, BASE = P1_RS, P1_MS, LDS_STAGE
    skw = L('p1w')
    for i in range(4):
        if i == 2:
            e(f's_cmp_ge_u32 s{sW}, 3')
            e(f's_cbranch_scc1 {skw}')
        if i == 3: e('v_accvgpr_read_b32 v10, a25')
        e(f'ds_write_b128 v{P1LR[i]}, {ar(4*i,4)}')
    e.label(skw)
    e.wait_ds_all()
    e.barrier()
    end = L('p1e')
    e(f's_cmp_eq_u32 s{sW}, 0')
    e(f's_cbranch_scc1 {end}')
    e('v_and_b32 v4, 1, v3')
    e(f'v_mul_u32_u24 v4, {MS}, v4')
    e('v_lshrrev_b32 v5, 1, v3')
    e('v_lshlrev_b32 v5, 2, v5')
    e('v_lshrrev_b32 v6, 2, v2')
    e('v_add_u32 v5, v5, v6')
    e(f'v_mul_u32_u24 v5, {RS}, v5')
    e('v_add_u32 v4, v4, v5')
    e('v_and_b32 v6, 3, v2')
    e('v_lshlrev_b32 v6, 3, v6')
    e('v_add_u32 v4, v4, v6')
    e(f'v_add_u32 v4, {BASE}, v4')
    e('s_and_b32 s54, s2, 15')
    e('s_mul_i32 s54, s54, %d' % (7 * 28))
    e('s_lshr_b32 s53, s2, 4')
    e('s_lshl_b32 s53, s53, 1')
    e('s_add_u32 s54, s54, s53')
    e('s_lshl_b32 s54, s54, 10')
    e(f's_add_u32 s54, s54, 0x{W13_OFF:x}')
    e('v_lshlrev_b32 v5, 4, v1')
    last = L('p1l')
    for m in range(5):
        e(f's_add_u32 s52, s{sW}, {3*m - 1}')
        if m == 4:
            e('s_cmp_ge_u32 s52, 14')
            e(f's_cbranch_scc1 {last}')
        e('s_and_b32 s53, s52, 1')
        e('s_lshr_b32 s52, s52, 1')
        e(f's_mul_i32 s55, s53, {8*RS}')
        e('s_lshl_b32 s61, s52, 5')
        e('s_add_u32 s55, s55, s61')
        e('v_add_u32 v6, s55, v4')
        e(f'ds_read_b64_tr_b16 {vr(R+4*m,2)}, v6')
        e(f'ds_read_b64_tr_b16 {vr(R+4*m+2,2)}, v6 offset:{16*RS}')
        e('s_mul_i32 s52, s52, 28')
        e('s_add_u32 s52, s52, s53')
        e('s_lshl_b32 s52, s52, 10')
        e(f's_add_u32 s{62+m if m < 2 else 86+m}, s52, s54')
    e.label(last)
    e('s_waitcnt lgkmcnt(0)')
    for m in range(4):
        e(f'buffer_store_dwordx4 {vr(R+4*m,4)}, v5, {SWS}, s{62+m if m < 2 else 86+m} offen sc1')
    e(f's_cmp_ge_u32 s{sW}, 3')
    e(f's_cbranch_scc1 {end}')
    e(f'buffer_store_dwordx4 {vr(R+16,4)}, v5, {SWS}, s90 offen sc1')
    e.label(end)

def p2_finish(e, R=128):
    skw2 = L('p2w')
    e('v_accvgpr_read_b32 v7, a26')
    e(f'ds_write_b128 v7, {ar(16,4)}')
    e(f's_cmp_ge_u32 s{sW}, 3')
    e(f's_cbranch_scc1 {skw2}')
    e('v_accvgpr_read_b32 v7, a24')
    e(f'ds_write_b128 v7, {ar(20,4)}')
    e.label(skw2)
    e.wait_ds_all()
    e.barrier()
    end = L('p2e')
    e(f's_cmp_eq_u32 s{sW}, 0')
    e(f's_cbranch_scc1 {end}')
    e('v_lshrrev_b32 v6, 1, v3')
    e('v_lshlrev_b32 v6, 2, v6')
    e('v_lshrrev_b32 v7, 2, v2')
    e('v_add_u32 v6, v6, v7')
    e(f'v_mul_u32_u24 v6, {P2_RS}, v6')
    e('v_and_b32 v7, 1, v3')
    e('v_lshlrev_b32 v7, 4, v7')
    e('v_add_u32 v6, v6, v7')
    e('v_and_b32 v7, 1, v2')
    e('v_lshlrev_b32 v7, 3, v7')
    e('v_add_u32 v6, v6, v7')
    e('v_bfe_u32 v7, v2, 1, 1')
    e('v_mul_u32_u24 v7, 224, v7')
    e('v_add_u32 v6, v6, v7')
    e(f's_sub_u32 s55, s{sW}, 1')
    e('s_lshl_b32 s52, s55, 5')
    e(f's_add_u32 s52, s52, {P2_BASE}')
    e('v_add_u32 v6, s52, v6')
    e('s_and_b32 s54, s2, 1')
    e('s_mul_i32 s54, s54, 7')
    e('s_add_u32 s54, s54, s55')
    e('s_mul_i32 s54, s54, 112')
    e('s_lshr_b32 s53, s2, 1')
    e('s_add_u32 s54, s54, s53')
    e('s_lshl_b32 s54, s54, 10')
    e(f's_add_u32 s54, s54, 0x{W2_OFF:x}')
    e('v_lshlrev_b32 v5, 4, v1')
    for m in range(3):
        e(f'ds_read_b64_tr_b16 {vr(R+4*m,2)}, v6 offset:{96*m}')
        e(f'ds_read_b64_tr_b16 {vr(R+4*m+2,2)}, v6 offset:{96*m + 8*P2_RS}')
    e('s_waitcnt lgkmcnt(0)')
    for m in range(3):
        if m == 2:
            e(f's_cmp_ge_u32 s{sW}, 2')
            e(f's_cbranch_scc1 {end}')
        e(f's_add_u32 s53, s54, {3*m*112*1024}')
        e(f'buffer_store_dwordx4 {vr(R+4*m,4)}, v5, {SWS}, s53 offen sc1')
    e.label(end)

def w13_load_groups():
    gs = []
    for s_ in range(28):
        for mi in range(2):
            g = []
            if s_ % 7 == 0 and mi == 0:
                g += [f's_add_u32 s90, s89, {s_//7}', 's_and_b32 s90, s90, 3', 's_mul_i32 s90, s90, 7168', 's_add_u32 s90, s90, s88',
                      's_add_u32 s91, s90, 28672']
            i = s_ % 7
            if i == 4 and mi == 0: g += ['s_add_u32 s90, s90, 4096', 's_add_u32 s91, s91, 4096']
            g.append(('vm', f'buffer_load_dwordx4 {ar((mi*28+s_)*4,4)}, v254, s[92:95], s{90+mi} offen offset:{(i%4)*1024} sc1'))
            gs.append(g)
    return gs

def w13_setup(e):
    e(f's_mov_b32 s92, s{S_WS}')
    e(f's_mov_b32 s93, s{S_WS+1}')
    e(f's_cmp_ge_u32 s{sC}, 14')
    e(f's_cselect_b32 s94, 0, s{S_WS+2}')
    e('s_mov_b32 s95, 0x20000')
    e(f's_lshl_b32 s88, s{sC}, 3')
    e(f's_lshl_b32 s52, s{sW}, 1')
    e('s_add_u32 s88, s88, s52')
    e('s_mul_i32 s88, s88, 28672')
    e(f's_add_u32 s88, s88, 0x{W13_OFF:x}')
    e(f's_and_b32 s89, s{sR}, 3')
    e('v_lshlrev_b32 v254, 4, v1')

def emit_groups(e, groups):
    last = None
    for g in groups:
        for op in g:
            if isinstance(op, tuple): last = e.vm(op[1])
            else: e(op)
    return last

DMA = {}
def emit_interleaved(e, main, groups, start=0):
    n, m = len(main), len(groups)
    gi = 0; last = None
    for k, ins in enumerate(main):
        e(ins)
        if k >= start:
            want = ((k - start + 1) * m) // max(1, n - start)
            while gi < want:
                for op in groups[gi]:
                    if isinstance(op, tuple): last = e.vm(op[1])
                    else: e(op)
                gi += 1
    while gi < m:
        for op in groups[gi]:
            if isinstance(op, tuple): last = e.vm(op[1])
            else: e(op)
        gi += 1
    return last

def w13_trread(e, half):
    e('v_and_b32 v4, 1, v3')
    e('v_lshrrev_b32 v5, 1, v3')
    e('v_lshrrev_b32 v6, 2, v2')
    e('v_and_b32 v7, 3, v2')
    e('v_mul_u32_u24 v8, 57344, v4')
    e('v_lshlrev_b32 v9, 2, v5')
    e('v_add_u32 v9, v9, v6')
    e('v_lshlrev_b32 v9, 8, v9')
    e('v_add_u32 v8, v8, v9')
    e('v_and_b32 v9, 1, v7')
    e('v_lshlrev_b32 v9, 3, v9')
    e('v_add_u32 v8, v8, v9')
    e(f'v_add_u32 v8, {LDS_STAGE}, v8')
    e('v_lshrrev_b32 v7, 1, v7')
    e(f's_lshl_b32 s52, s{sW}, 2')
    e('v_add_u32 v7, s52, v7')
    e('v_lshlrev_b32 v6, 1, v6')
    e('v_lshlrev_b32 v4, 3, v4')
    e('v_xor_b32 v6, v6, v4')
    for mi in range(2):
        e(f'v_add_u32 v9, {2*mi}, v7')
        e('v_xor_b32 v9, v9, v6')
        e('v_lshlrev_b32 v9, 4, v9')
        e(f'v_add_u32 v{10+mi}, v8, v9')
    for mi in range(2):
        for jl in range(7):
            for gg in range(2):
                kap = 14 * half + 2 * jl + gg
                a = (mi * 28 + kap) * 4
                off = (16 * jl + 8 * gg) * 256
                e.ds(f'ds_read_b64_tr_b16 {ar(a,2)}, v{10+mi} offset:{off}')
                e.ds(f'ds_read_b64_tr_b16 {ar(a+2,2)}, v{10+mi} offset:{off + 112*256}')

C_G, C_TC = 220, 160
def gen_G(e):
    G = C_G
    TH, CO, SI = 112, 120, 128
    cscale = 2.0 / (2048.0 * 448.0)
    e('v_cvt_f32_u32 v7, v3')
    for nt in range(2):
        e(f'v_add_u32 v8, {16*nt}, v2')
        e('v_lshlrev_b32 v8, 6, v8')
        e(f'v_add_u32 v8, s{sB}, v8')
        e('v_cvt_f32_u32 v8, v8')
        e(f'v_mul_f32 v8, {lit(1.0/2048)}, v8')
        e('v_mul_f32 v9, v7, v8')
        for t in range(2):
            for ii in range(4):
                cst = 16 * t + 4 * ii
                if cst == 0: e(f'v_mov_b32 v{TH+t*4+ii}, v9')
                else: e(f'v_fmamk_f32 v{TH+t*4+ii}, v8, {lit(float(cst))}, v9')
        for j in range(8): e(f'v_cos_f32 v{CO+j}, v{TH+j}')
        for j in range(8): e(f'v_sin_f32 v{SI+j}, v{TH+j}')
        for j in range(8): e(f'v_mul_f32 v{CO+j}, {lit(cscale)}, v{CO+j}')
        for j in range(8): e(f'v_mul_f32 v{SI+j}, {lit(cscale)}, v{SI+j}')
        for t in range(2):
            for ii in range(4):
                j = t * 4 + ii
                e(f'v_cvt_pk_bf16_f32 v{G+((0*2+t)*2+nt)*4+ii}, v{CO+j}, -v{SI+j}')
                e(f'v_cvt_pk_bf16_f32 v{G+((1*2+t)*2+nt)*4+ii}, v{SI+j}, v{CO+j}')

def gen_TC(e):
    TC = C_TC
    TH, CO, SI, CO2, SI2 = 112, 120, 128, 136, 144
    e(f's_lshl_b32 s61, s{sGRP}, 2')
    e(f's_add_u32 s61, s61, s{sW}')
    e('s_min_u32 s61, s61, 13')
    e('s_lshl_b32 s61, s61, 4')
    e('v_add_u32 v8, s61, v2')
    e('v_cvt_f32_u32 v8, v8')
    e(f'v_mul_f32 v8, {lit(1.0/448)}, v8')
    e('v_lshlrev_b32 v9, 3, v3')
    e('v_cvt_f32_u32 v9, v9')
    e('v_mul_f32 v9, v9, v8')
    e('v_cmp_eq_u32 vcc, 3, v3')
    e('v_mov_b32 v10, 1.0')
    e('v_mov_b32 v7, 0.5')
    e('v_cndmask_b32 v10, v10, v7, vcc')
    e(f'v_mul_f32 v7, {lit(32.0)}, v8')
    for h in range(2):
        for j in range(4):
            cst = 2 * j + (2 if h == 0 else 1)
            e(f'v_fmamk_f32 v{TH+h*4+j}, v8, {lit(float(cst))}, v9')
    e('v_cos_f32 v12, v7')
    e('v_sin_f32 v13, v7')
    for j in range(8): e(f'v_cos_f32 v{CO+j}, v{TH+j}')
    for j in range(8): e(f'v_sin_f32_e64 v{SI+j}, -v{TH+j}')
    cur = (CO, SI); oth = (CO2, SI2)
    for kp in range(7):
        if kp < 6: rot8(e, cur[0], cur[1], oth[0], oth[1], 12, True)
        else:
            e(f'v_mul_f32 v{cur[0]+3}, v{cur[0]+3}, v10')
            e(f'v_mul_f32 v{cur[1]+3}, v{cur[1]+3}, v10')
        for h, kb in enumerate((kp, kp + 7)):
            e(f'v_cvt_pk_bf16_f32 v{TC+kb*4+0}, v{cur[0]+h*4+0}, v{cur[0]+h*4+1}')
            e(f'v_cvt_pk_bf16_f32 v{TC+kb*4+1}, v{cur[0]+h*4+2}, v{cur[0]+h*4+3}')
            e(f'v_cvt_pk_bf16_f32 v{TC+kb*4+2}, v{cur[1]+h*4+0}, v{cur[1]+h*4+1}')
            e(f'v_cvt_pk_bf16_f32 v{TC+kb*4+3}, v{cur[1]+h*4+2}, v{cur[1]+h*4+3}')
        cur, oth = oth, cur

def code_prefetch_wave(e):
    sk = L('cpf')
    e(f's_cmp_lg_u32 s{sW}, {OPT["cpf"]-1}')
    e(f's_cbranch_scc1 {sk}')
    e('s_getpc_b64 s[52:53]')
    e.label('L_pc')
    e('s_lshr_b32 s54, s2, 3')
    e('s_lshl_b32 s54, s54, 10')
    e('s_cmp_ge_u32 s54, L_fin-L_pc-1024')
    e(f's_cbranch_scc1 {sk}')
    e('v_lshlrev_b32 v5, 4, v1')
    e('v_add_u32 v5, s54, v5')
    e('global_load_dwordx4 a[28:31], v5, s[52:53]')
    e.label(sk)

def code_prefetch_entry(e):
    sk = L('cpf')
    e('s_getpc_b64 s[52:53]')
    e.label('L_pc')
    e('s_lshr_b32 s54, s2, 3')
    e('s_lshl_b32 s54, s54, 10')
    e('s_cmp_ge_u32 s54, L_fin-L_pc-1024')
    e(f's_cbranch_scc1 {sk}')
    e('v_lshlrev_b32 v5, 2, v0')
    e('v_add_u32 v5, s54, v5')
    e('global_load_dword a28, v5, s[52:53]')
    e.label(sk)

def phase_a(e):
    e.c('======== phase A')
    e(f's_lshl_b32 s56, s{sGRP}, 2')
    e(f's_add_u32 s56, s56, s{sW}')
    e('s_min_u32 s57, s56, 13')
    e(f's_lshr_b32 s52, s{sW}, 1')
    e('s_lshl_b32 s52, s52, 10')
    e(f's_add_u32 s52, s52, s{sB}')
    e('v_lshlrev_b32 v4, 6, v2')
    e('v_add_u32 v4, s52, v4')
    e('v_mul_u32_u24 v4, 896, v4')
    e('v_lshlrev_b32 v5, 4, v3')
    e('v_add_u32 v4, v4, v5')
    e(f's_and_b32 s52, s{sW}, 1')
    e('s_mul_i32 s52, s52, 448')
    e('v_add_u32 v4, s52, v4')
    TA, FP, ACC, X = 16, 72, 96, 128
    xs_tok = [e.vm(f'buffer_load_dwordx4 {vr(X+4*i,4)}, v4, {SX}, 0 offen offset:{64*i}') for i in range(7)]
    if OPT['cpf'] in (1, 2, 3, 4): code_prefetch_wave(e)
    stamp(e, 'A.issued')
    e('s_cmp_lt_u32 s57, 7')
    e('s_cselect_b32 s52, 2, 1')
    e('s_cselect_b32 s53, 0, 7')
    e('s_sub_u32 s53, s57, s53')
    e('s_lshl_b32 s53, s53, 5')
    e('s_add_u32 s53, s53, s52')
    e('s_cmp_lt_u32 s57, 7')
    e(f's_cselect_b32 s58, {lit(1.0)}, {lit(-1.0)}')
    e('v_lshlrev_b32 v5, 1, v2')
    e('v_add_u32 v5, s53, v5')
    e('v_cvt_f32_u32 v5, v5')
    e(f'v_mul_f32 v5, {lit(1.0/448)}, v5')
    e('v_lshlrev_b32 v6, 3, v3')
    e('v_cvt_f32_u32 v6, v6')
    e('v_mul_f32 v6, v6, v5')
    TH, CO, SI = ACC, ACC + 8, ACC + 16
    CO2, SI2 = X + 32, X + 40
    e(f'v_mul_f32 v7, {lit(32.0)}, v5')
    for j in range(8):
        if j == 0: e(f'v_mov_b32 v{TH+j}, v6')
        else: e(f'v_fmamk_f32 v{TH+j}, v5, {lit(float(j))}, v6')
    e('v_cos_f32 v8, v7')
    e('v_sin_f32 v9, v7')
    for j in range(8): e(f'v_cos_f32 v{CO+j}, v{TH+j}')
    for j in range(8): e(f'v_sin_f32_e64 v{SI+j}, -v{TH+j}')
    cur = (CO, SI); oth = (CO2, SI2)
    for t in range(7):
        if t < 6: rot8(e, cur[0], cur[1], oth[0], oth[1], 8, True)
        for i in range(4): e(f'v_cvt_pk_bf16_f32 v{TA+(t*2+0)*4+i}, v{cur[0]+2*i}, v{cur[0]+2*i+1}')
        for i in range(4): e(f'v_cvt_pk_bf16_f32 v{TA+(t*2+1)*4+i}, v{cur[1]+2*i}, v{cur[1]+2*i+1}')
        cur, oth = oth, cur
    e('s_mov_b32 s52, 0x80008000')
    e(f'v_cvt_f32_u32 v7, s{sB}')
    e(f'v_mul_f32 v7, {lit(1.0/64)}, v7')
    e('v_lshlrev_b32 v8, 2, v3')
    e('v_cvt_f32_u32 v8, v8')
    e('v_add_f32 v8, v8, v7')
    for mt in range(2):
        e(f'v_add_u32 v9, {16*mt}, v2')
        e('v_cvt_f32_u32 v9, v9')
        e(f'v_mul_f32 v9, {lit(1.0/32)}, v9')
        e('v_mul_f32 v10, v9, v8')
        for j in range(8):
            cst = 16 * (j >> 2) + (j & 3)
            if cst == 0: e(f'v_mov_b32 v{TH+j}, v10')
            else: e(f'v_fmamk_f32 v{TH+j}, v9, {lit(float(cst))}, v10')
        for j in range(8): e(f'v_cos_f32 v{CO+j}, v{TH+j}')
        for j in range(8): e(f'v_sin_f32 v{SI+j}, v{TH+j}')
        for i in range(4): e(f'v_cvt_pk_bf16_f32 v{FP+mt*12+i}, v{CO+2*i}, v{CO+2*i+1}')
        for i in range(4): e(f'v_cvt_pk_bf16_f32 v{FP+mt*12+4+i}, v{SI+2*i}, v{SI+2*i+1}')
        for i in range(4): e(f'v_xor_b32 v{FP+mt*12+8+i}, s52, v{FP+mt*12+4+i}')
    p1_loads(e)
    stamp(e, 'A.constgen')
    e(f's_mul_i32 s52, s{sW}, 7168')
    e('v_lshlrev_b32 v11, 4, v1')
    e('v_add_u32 v4, s52, v11')
    e('v_mov_b32 v5, 0')
    e('v_mov_b32 v6, 0')
    e('s_mov_b32 s52, 0x3f803f80')
    for i in range(7):
        e.wait_vm(xs_tok[i])
        e.ds(f'ds_write_b128 v4, {vr(X+4*i,4)} offset:{1024*i}')
        for d in range(4):
            e(f'v_dot2_f32_bf16 v5, v{X+4*i+d}, s52, v5')
            e(f'v_dot2_f32_bf16 v6, v{X+4*i+d}, v{X+4*i+d}, v6')
    xsum_groups(e, 5, 7)
    xsum_groups(e, 6, 8)
    e(f's_lshl_b32 s52, s{sW}, 7')
    e('v_lshlrev_b32 v7, 3, v2')
    e('v_add_u32 v7, s52, v7')
    e('v_mov_b32 v8, v5')
    e('v_mov_b32 v9, v6')
    e.ds('ds_write_b64 v7, v[8:9] offset:28672')
    e.wait_ds_all()
    stamp(e, 'A.xstaged')
    e.barrier()
    e('v_mov_b32 v250, 0')
    nonce_tok = e.vm(f'buffer_load_dword v251, v250, {SDBG}, 0 offen sc1')
    e('v_and_b32 v4, 31, v1')
    e('v_lshrrev_b32 v5, 4, v4')
    e('v_lshlrev_b32 v5, 8, v5')
    e('v_lshlrev_b32 v6, 3, v2')
    e('v_add_u32 v5, v5, v6')
    t0 = e.ds('ds_read_b64 v[6:7], v5 offset:28672')
    t1 = e.ds('ds_read_b64 v[8:9], v5 offset:28800')
    xt = {}
    order = [(half, t, mt) for half in range(2) for t in range(7) for mt in range(2)]
    def xreg(mt, tt): return X + (mt * 14 + tt) * 4
    nread = [0]
    def issue_x():
        half, t, mt = order[nread[0]]
        tt = t + 7 * half
        xt[(half, t, mt)] = e.ds(f'ds_read_b128 {vr(xreg(mt,tt),4)}, v11 offset:{(mt*14+tt)*1024}')
        nread[0] += 1
    for _ in range(8): issue_x()
    e.wait_ds(t1)
    e('v_add_f32 v6, v6, v8')
    e('v_add_f32 v7, v7, v9')
    e(f'v_mul_f32 v6, {lit(1.0/448)}, v6')
    e(f'v_mul_f32 v7, {lit(1.0/448)}, v7')
    e('v_fma_f32 v7, -v6, v6, v7')
    e('v_max_f32 v7, 0, v7')
    e(f'v_add_f32 v7, {lit(1e-5)}, v7')
    e('v_rsq_f32 v7, v7')
    e(f's_lshl_b32 s52, s{sW}, 7')
    e('v_lshlrev_b32 v8, 2, v4')
    e('v_add_u32 v9, s52, v8')
    e.ds('ds_write_b32 v9, v7 offset:29184')
    nm = L('nomean')
    e(f's_or_b32 s52, s{sGRP}, s{sW}')
    e('s_cmp_lg_u32 s52, 0')
    e(f's_cbranch_scc1 {nm}')
    e(f's_lshl_b32 s52, s{sB}, 7')
    e(f's_add_u32 s52, s52, 0x{ST1_OFF:x}')
    e(f'buffer_store_dword v6, v8, {SWS}, s52 offen sc1')
    e.label(nm)
    e(f's_lshl_b32 s52, s{sW}, 7')
    e('v_lshlrev_b32 v9, 4, v3')
    e('v_add_u32 v9, s52, v9')
    RR = 240
    tr0 = e.ds(f'ds_read_b128 {vr(RR,4)}, v9 offset:29184')
    tr1 = e.ds(f'ds_read_b128 {vr(RR+4,4)}, v9 offset:29248')
    def acc(mt, c, half): return ACC + ((mt * 2 + c) * 2 + half) * 4
    for (half, t, mt) in order:
        if nread[0] < len(order): issue_x()
        e.wait_ds(xt[(half, t, mt)])
        tt = t + 7 * half
        for c in range(2):
            a = acc(mt, c, half)
            e(f'v_mfma_f32_16x16x32_bf16 {vr(a,4)}, {vr(xreg(mt,tt),4)}, {vr(TA+(t*2+c)*4,4)}, {"0" if t == 0 else vr(a,4)}')
    e.wait_ds(tr1)
    stamp(e, 'A.mfma')
    BF = X; TMP = X + 8
    for c in range(2):
        for mt in range(2):
            for r in range(4): e(f'v_fma_f32 v{TMP+mt*4+r}, v{acc(mt,c,1)+r}, s58, v{acc(mt,c,0)+r}')
            for r in range(4): e(f'v_mul_f32 v{TMP+mt*4+r}, v{TMP+mt*4+r}, v{RR+mt*4+r}')
        for mt in range(2):
            for i in range(2):
                e(f'v_cvt_pk_bf16_f32 v{BF+c*4+mt*2+i}, v{TMP+mt*4+2*i}, v{TMP+mt*4+2*i+1}')
    TT = X + 16
    for mt in range(2):
        C, Sp, Sn = FP + mt * 12, FP + mt * 12 + 4, FP + mt * 12 + 8
        e(f'v_mfma_f32_16x16x32_bf16 {vr(TT+mt*8,4)}, {vr(C,4)}, {vr(BF,4)}, 0')
        e(f'v_mfma_f32_16x16x32_bf16 {vr(TT+mt*8+4,4)}, {vr(Sn,4)}, {vr(BF,4)}, 0')
        e(f'v_mfma_f32_16x16x32_bf16 {vr(TT+mt*8,4)}, {vr(Sp,4)}, {vr(BF+4,4)}, {vr(TT+mt*8,4)}')
        e(f'v_mfma_f32_16x16x32_bf16 {vr(TT+mt*8+4,4)}, {vr(C,4)}, {vr(BF+4,4)}, {vr(TT+mt*8+4,4)}')
    e('s_mov_b32 s52, %d' % (4 * 57344))
    e('v_mul_lo_u32 v4, v3, s52')
    e('v_lshlrev_b32 v5, 2, v2')
    e('v_add_u32 v4, v4, v5')
    e('s_lshl_b32 s52, s56, 12')
    e(f's_lshl_b32 s53, s{sB}, 6')
    e('s_add_u32 s52, s52, s53')
    OUT = X + 40
    for mt in range(2):
        for r in range(4): e(f'v_cvt_pk_bf16_f32 v{OUT+mt*4+r}, v{TT+mt*8+r}, v{TT+mt*8+4+r}')
    ns = L('nostoreA')
    e('s_cmp_ge_u32 s56, 14')
    e(f's_cbranch_scc1 {ns}')
    for mt in range(2):
        for r in range(4):
            e(f's_add_u32 s53, s52, {T1_OFF + (16*mt+r)*57344}')
            e(f'buffer_store_dword v{OUT+mt*4+r}, v4, {SWS}, s53 offen sc1')
    e.label(ns)
    stamp(e, 'A.stored')
    e.wait_vm_all()
    sk, lp, dn = L('nsk'), L('nlp'), L('ndn')
    e(f's_cmp_lg_u32 s{sW}, 0')
    e(f's_cbranch_scc1 {sk}')
    e(f's_mov_b32 s{sSPIN}, 0')
    e.label(lp)
    e(f'v_readfirstlane_b32 s{sNONCE}, v251')
    e('s_nop 1')
    e(f's_cmp_lg_u32 s{sNONCE}, 0')
    e(f's_cbranch_scc1 {dn}')
    e(f'buffer_load_dword v251, v250, {SDBG}, 0 offen sc1')
    e('s_waitcnt vmcnt(0)')
    e(f's_add_u32 s{sSPIN}, s{sSPIN}, 1')
    e(f's_cmp_lt_u32 s{sSPIN}, {MAXSPIN}')
    e(f's_cbranch_scc1 {lp}')
    e.label(dn)
    e.label(sk)
    stamp(e, 'A.drained')
    skn = L('nb')
    e(f's_cmp_lg_u32 s{sW}, 0')
    e(f's_cbranch_scc1 {skn}')
    e(f'v_mov_b32 v14, s{sNONCE}')
    e('v_mov_b32 v15, 29696')
    e('ds_write_b32 v15, v14')
    e('s_waitcnt lgkmcnt(0)')
    e.label(skn)
    signal(e, 0)
    e('v_mov_b32 v15, 29696')
    e('ds_read_b32 v14, v15')
    e('s_waitcnt lgkmcnt(0)')
    e(f'v_readfirstlane_b32 s{sNONCE}, v14')

def phase_p2(e):
    e.c('======== P2 (w2 re-layout)')
    done = L('p2done'); nojob = L('p2none')
    e('s_cmp_ge_u32 s2, 252')
    e(f's_cbranch_scc1 {nojob}')
    e('s_sub_u32 s56, s2, 224')
    e('s_waitcnt vmcnt(0)')
    e.barrier()
    e.vm_issued = e.vm_done = 0
    e('s_mul_i32 s52, s56, 57344')
    e('v_lshlrev_b32 v4, 4, v0')
    toks = []
    for i in range(14):
        e(f's_add_u32 s53, s52, {i*4096}')
        toks.append(e.vm(f'buffer_load_dwordx4 {vr(16+4*i,4)}, v4, {SW2}, s53 offen'))
    for i in range(14):
        e(f'v_add_u32 v5, {i*256}, v0')
        e('v_mul_u32_u24 v6, 18725, v5')
        e('v_lshrrev_b32 v6, 20, v6')
        e('v_lshlrev_b32 v6, 5, v6')
        e('v_lshlrev_b32 v5, 4, v5')
        e(f'v_add_u32 v{80+i}, v5, v6')
        e(f'v_add_u32 v{80+i}, {LDS_STAGE}, v{80+i}')
    stamp(e, 'P2.issued')
    gen_TC(e)
    gen_G(e)
    for i in range(14):
        e.wait_vm(toks[i])
        e.ds(f'ds_write_b128 v{80+i}, {vr(16+4*i,4)}')
    e.wait_ds_all()
    stamp(e, 'P2.lds')
    e.barrier()
    e('v_lshrrev_b32 v4, 1, v3')
    e('v_lshlrev_b32 v4, 2, v4')
    e('v_lshrrev_b32 v5, 2, v2')
    e('v_add_u32 v4, v4, v5')
    e(f's_lshl_b32 s53, s{sW}, 4')
    e('v_add_u32 v4, s53, v4')
    e('v_mul_u32_u24 v4, 928, v4')
    e('v_and_b32 v5, 1, v3')
    e('v_lshlrev_b32 v5, 4, v5')
    e('v_add_u32 v4, v4, v5')
    e('v_and_b32 v5, 1, v2')
    e('v_lshlrev_b32 v5, 3, v5')
    e('v_add_u32 v4, v4, v5')
    e('v_bfe_u32 v5, v2, 1, 1')
    e('v_mul_u32_u24 v5, 448, v5')
    e('v_add_u32 v4, v4, v5')
    e(f'v_add_u32 v4, {LDS_STAGE}, v4')
    e('v_lshlrev_b32 v5, 4, v1')
    for j in range(14):
        R = 16 + 4 * j
        e.ds(f'ds_read_b64_tr_b16 {vr(R,2)}, v4 offset:{32*j}')
        e.ds(f'ds_read_b64_tr_b16 {vr(R+2,2)}, v4 offset:{32*j + 8*928}')
    e.wait_ds_all()
    e('s_lshl_b32 s53, s56, 2')
    e(f's_add_u32 s53, s53, s{sW}')
    e('s_lshl_b32 s53, s53, 10')
    e(f's_add_u32 s53, s53, 0x{W2_OFF:x}')
    for j in range(14):
        e(f's_add_u32 s54, s53, {j*112*1024}')
        e.vm(f'buffer_store_dwordx4 {vr(16+4*j,4)}, v5, {SWS}, s54 offen sc1')
    stamp(e, 'P2.stored')
    e(f's_branch {done}')
    e.label(nojob)
    gen_TC(e)
    gen_G(e)
    e.label(done)
    e.wait_vm_all()
    stamp(e, 'P2.drained')
assert all(((p * 18725) >> 20) == p // 56 for p in range(3584)), "magic /56"

def phase_b(e):
    e.c('======== window 1 + phase B')
    e('s_and_b32 s56, s2, 7')
    e('s_lshr_b32 s57, s2, 3')
    e('s_mul_i32 s52, s57, 37')
    e('s_lshr_b32 s52, s52, 8')
    e('s_mul_i32 s53, s52, 7')
    e('s_sub_u32 s53, s57, s53')
    e('s_lshl_b32 s52, s52, 3')
    e('s_add_u32 s56, s56, s52')
    e('s_lshl_b32 s53, s53, 1')
    e(f's_lshr_b32 s54, s{sW}, 1')
    e('s_add_u32 s57, s53, s54')
    e('s_lshr_b32 s59, s53, 2')
    e(f's_and_b32 s58, s{sW}, 1')
    FC, FS, FN = 16, 32, 48
    TIN, BF, WR, WI, XA, YR, YI, YF = 64, 80, 96, 104, 112, 128, 136, 144
    e('s_cmp_lt_u32 s57, 7')
    e('s_cselect_b32 s52, 2, 1')
    e('s_cselect_b32 s53, 0, 7')
    e('s_sub_u32 s53, s57, s53')
    e('s_lshl_b32 s53, s53, 5')
    e('s_add_u32 s53, s53, s52')
    e('v_lshlrev_b32 v6, 1, v2')
    e('v_add_u32 v6, s53, v6')
    e('v_lshlrev_b32 v6, 1, v6')
    e('v_lshlrev_b32 v7, 7, v3')
    e('s_lshl_b32 s52, s58, 10')
    e('s_add_u32 s52, s52, s56')
    e('v_add_u32 v7, s52, v7')
    e('v_mul_u32_u24 v7, 450, v7')
    e('v_add_u32 v6, v6, v7')
    wtok = {}
    for mtl in range(2):
        for r in range(4):
            e(f's_mov_b32 s52, {(16*mtl+r)*14400}')
            e.vm(f'buffer_load_short_d16_hi v{WR+mtl*4+r}, v6, {SWR}, s52 offen')
            wtok[(mtl, r)] = e.vm(f'buffer_load_short_d16_hi v{WI+mtl*4+r}, v6, {SWI}, s52 offen')
    CO, SI, TH = 160, 176, 192
    groups = []
    main = []
    em = main.append
    em('s_lshl_b32 s52, s58, 5')
    em('v_add_u32 v8, s52, v2')
    em('v_cvt_f32_u32 v8, v8')
    em(f'v_mul_f32 v8, {lit(1.0/64)}, v8')
    em('v_lshlrev_b32 v9, 2, v3')
    for tt in range(2):
        em(f's_xor_b32 s52, s58, {tt}')
        em('s_lshl_b32 s52, s52, 5')
        em('v_add_u32 v10, s52, v9')
        em('v_cvt_f32_u32 v10, v10')
        em('v_mul_f32 v10, v10, v8')
        for j in range(8):
            cst = 16 * (j >> 2) + (j & 3)
            if cst == 0: em(f'v_mov_b32 v{TH+j}, v10')
            else: em(f'v_fmamk_f32 v{TH+j}, v8, {lit(float(cst))}, v10')
        for j in range(8): em(f'v_cos_f32 v{CO+tt*8+j}, v{TH+j}')
        for j in range(8): em(f'v_sin_f32 v{SI+tt*8+j}, v{TH+j}')
    def rot(kind, t, j, mt):
        qt = (mt * (j & 3)) & 3
        c, s = f'v{CO+t*8+j}', f'v{SI+t*8+j}'
        if kind == 'C': return [c, '-' + s, '-' + c, s][qt]
        if kind == 'S': return [s, c, '-' + s, '-' + c][qt]
        if kind == 'N': return ['-' + s, '-' + c, s, c][qt]
    for kind, base in (('C', FC), ('S', FS), ('N', FN)):
        for mtl in range(2):
            for tt in range(2):
                for i in range(4):
                    em(f'v_cvt_pk_bf16_f32 v{base+(mtl*2+tt)*4+i}, {rot(kind,tt,2*i,mtl)}, {rot(kind,tt,2*i+1,mtl)}')
    emit_interleaved(e, main, groups)
    if not OPT['p1slot']: p1_finish(e)
    stamp(e, 'W1.p1')
    e('s_mul_i32 s60, s56, 14')
    e('s_add_u32 s60, s60, s57')
    e('s_lshl_b32 s60, s60, 12')
    e(f's_add_u32 s60, s60, 0x{T1_OFF:x}')
    e('v_lshlrev_b32 v11, 8, v3')
    e('v_lshlrev_b32 v10, 2, v2')
    e('v_add_u32 v11, v11, v10')
    stamp(e, 'W1.ready')
    def idx(e):
        e('v_and_b32 v5, 7, v1')
        e('v_lshrrev_b32 v6, 3, v1')
        e('v_lshlrev_b32 v6, 5, v6')
        e('v_add_u32 v5, v5, v6')
        e('s_lshl_b32 s53, s59, 3')
        e('v_add_u32 v5, s53, v5')
        e('v_lshlrev_b32 v5, 6, v5')
    poll(e, 0, 64, idx)
    stamp(e, 'B.go')
    tin = {}
    for tt in range(2):
        e(f's_xor_b32 s52, s58, {tt}')
        e('s_lshl_b32 s52, s52, 11')
        e('s_add_u32 s52, s52, s60')
        for j in range(8):
            off = (16 * (j >> 2) + (j & 3)) * 64
            tin[(tt, j)] = e.vm(f'buffer_load_dword v{TIN+tt*8+j}, v11, {SWS}, s52 offen offset:{off} sc1')
    if OPT['p1slot']: p1_finish(e, R=112)
    else: gen_G(e)
    e('s_mov_b32 s52, 0x05040100')
    e('s_mov_b32 s53, 0x07060302')
    for tt in range(2):
        e.wait_vm(tin[(tt, 7)])
        for i in range(4):
            e(f'v_perm_b32 v{BF+tt*4+i}, v{TIN+tt*8+2*i+1}, v{TIN+tt*8+2*i}, s52')
            e(f'v_perm_b32 v{BF+8+tt*4+i}, v{TIN+tt*8+2*i+1}, v{TIN+tt*8+2*i}, s53')
    stamp(e, 'B.loaded')
    def fr(base, mtl, tt): return vr(base + (mtl * 2 + tt) * 4, 4)
    def mm(d, a, b, first): e(f'v_mfma_f32_16x16x32_bf16 {vr(d,4)}, {a}, {vr(b,4)}, {"0" if first else vr(d,4)}')
    BRE = lambda t: BF + t * 4
    BIM = lambda t: BF + 8 + t * 4
    for step in range(4):
        for mtl in range(2):
            xr, xi = XA + mtl * 8, XA + mtl * 8 + 4
            tt = step & 1
            if step < 2:
                mm(xr, fr(FC, mtl, tt), BRE(tt), step == 0); mm(xi, fr(FN, mtl, tt), BRE(tt), step == 0)
            else:
                mm(xr, fr(FS, mtl, tt), BIM(tt), False); mm(xi, fr(FC, mtl, tt), BIM(tt), False)
    e.wait_vm(wtok[(1, 3)])
    for mtl in range(2):
        for r in range(4):
            xr, xi = XA + mtl * 8 + r, XA + mtl * 8 + 4 + r
            wr, wi = WR + mtl * 4 + r, WI + mtl * 4 + r
            e(f'v_mul_f32 v{YR+mtl*4+r}, v{xr}, v{wr}')
            e(f'v_mul_f32 v{YI+mtl*4+r}, v{xr}, v{wi}')
            e(f'v_fma_f32 v{YR+mtl*4+r}, -v{xi}, v{wi}, v{YR+mtl*4+r}')
            e(f'v_fma_f32 v{YI+mtl*4+r}, v{xi}, v{wr}, v{YI+mtl*4+r}')
    for c, src in ((0, YR), (1, YI)):
        for i in range(4):
            e(f'v_cvt_pk_bf16_f32 v{YF+c*8+i}, v{src+(i>>1)*4+2*(i&1)}, v{src+(i>>1)*4+2*(i&1)+1}')
    e('v_lshlrev_b32 v10, 4, v1')
    e(f's_lshl_b32 s52, s{sW}, 11')
    e('v_add_u32 v12, s52, v10')
    e(f's_xor_b32 s52, s{sW}, 1')
    e('s_lshl_b32 s52, s52, 11')
    e('v_add_u32 v13, s52, v10')
    e.ds(f'ds_write_b128 v12, {vr(YF,4)}')
    e.ds(f'ds_write_b128 v12, {vr(YF+8,4)} offset:1024')
    e.wait_ds_all()
    e.barrier()
    p0 = e.ds(f'ds_read_b128 {vr(YF+4,4)}, v13')
    p1_ = e.ds(f'ds_read_b128 {vr(YF+12,4)}, v13 offset:1024')
    YRE = lambda t: YF + t * 4
    YIM = lambda t: YF + 8 + t * 4
    for mtl in range(2):
        xr, xi = XA + mtl * 8, XA + mtl * 8 + 4
        mm(xr, fr(FC, mtl, 0), YRE(0), True);  mm(xi, fr(FS, mtl, 0), YRE(0), True)
        mm(xr, fr(FN, mtl, 0), YIM(0), False); mm(xi, fr(FC, mtl, 0), YIM(0), False)
    e.wait_ds(p1_)
    for mtl in range(2):
        xr, xi = XA + mtl * 8, XA + mtl * 8 + 4
        mm(xr, fr(FC, mtl, 1), YRE(1), False); mm(xi, fr(FS, mtl, 1), YRE(1), False)
        mm(xr, fr(FN, mtl, 1), YIM(1), False); mm(xi, fr(FC, mtl, 1), YIM(1), False)
    e('s_mov_b32 s52, %d' % (4 * 28672))
    e('v_mul_lo_u32 v4, v3, s52')
    e('v_lshlrev_b32 v5, 2, v2')
    e('v_add_u32 v4, v4, v5')
    e('s_lshl_b32 s52, s57, 11')
    e('s_lshl_b32 s53, s56, 6')
    e('s_add_u32 s52, s52, s53')
    e(f's_mul_i32 s53, s58, {32*28672}')
    e('s_add_u32 s52, s52, s53')
    last = None
    for mtl in range(2):
        for r in range(4): e(f'v_cvt_pk_bf16_f32 v{TIN+mtl*4+r}, v{XA+mtl*8+r}, v{XA+mtl*8+4+r}')
        for r in range(4):
            e(f's_add_u32 s53, s52, {T2_OFF + (16*mtl+r)*28672}')
            last = e.vm(f'buffer_store_dword v{TIN+mtl*4+r}, v4, {SWS}, s53 offen sc1')
    stamp(e, 'B.stored')
    e.wait_vm_all()
    stamp(e, 'B.drained')

def phase_c(e):
    e.c('======== window 2 + phase C')
    e(f's_lshl_b32 s56, s{sGRP}, 2')
    e(f's_add_u32 s56, s56, s{sW}')
    e('s_min_u32 s57, s56, 13')
    G, TC, AIN, VA, PA, XR = C_G, C_TC, 104, 136, 48, 64
    MEAN = XR + 8
    e('v_lshlrev_b32 v5, 6, v2')
    e(f'v_add_u32 v5, s{sB}, v5')
    e('v_mul_u32_u24 v5, 896, v5')
    e('v_lshlrev_b32 v6, 3, v3')
    e('v_add_u32 v5, v5, v6')
    e('s_lshl_b32 s52, s57, 5')
    e('v_add_u32 v5, s52, v5')
    for nt in range(2):
        for pm in range(2):
            e(f's_mov_b32 s52, {nt*16*64*896}')
            e.vm(f'buffer_load_dwordx2 {vr(XR+(nt*2+pm)*2,2)}, v5, {SX}, s52 offen offset:{448*pm}')
    e('v_lshlrev_b32 v12, 2, v1')
    stamp(e, 'W2.ready')
    def idx(e): e('v_lshlrev_b32 v5, 6, v1')
    poll(e, 1, 256, idx, preg=16)
    stamp(e, 'C.go')
    w13_setup(e)
    WG = w13_load_groups()
    wgi = [0]
    def wload(n):
        for _ in range(n):
            if wgi[0] < len(WG):
                emit_groups(e, [WG[wgi[0]]]); wgi[0] += 1
    atok = {}
    for i in range(4):
        e(f's_add_u32 s52, s{sW}, {4*i}')
        e('s_min_u32 s52, s52, 13')
        e(f's_mul_i32 s53, s{sB}, 14')
        e('s_add_u32 s52, s52, s53')
        e('s_lshl_b32 s52, s52, 11')
        e(f's_add_u32 s52, s52, 0x{T2_OFF:x}')
        for t in range(2):
            for ii in range(4):
                atok[(i, t, ii)] = e.vm(f'buffer_load_dword v{AIN+i*8+t*4+ii}, v12, {SWS}, s52 offen offset:{(16*t+4*ii)*64} sc1')
    e('v_lshlrev_b32 v6, 2, v2')
    e(f's_lshl_b32 s52, s{sB}, 7')
    e(f's_add_u32 s52, s52, 0x{ST1_OFF:x}')
    mtok = [e.vm(f'buffer_load_dword v{MEAN+nt}, v6, {SWS}, s52 offen offset:{64*nt} sc1') for nt in range(2)]
    e('v_lshlrev_b32 v11, 4, v1')
    e(f's_lshl_b32 s52, s{sW}, 11')
    e('v_add_u32 v12, s52, v11')
    PK = 76
    for i in range(4):
        e.wait_vm(atok[(i, 1, 3)])
        if i == 0: stamp(e, 'C.loaded')
        for nt in range(2):
            for out in range(2):
                d = VA + (out * 2 + nt) * 4
                e(f'v_mfma_f32_16x16x32_bf16 {vr(d,4)}, {vr(AIN+i*8,4)}, {vr(G+((out*2+0)*2+nt)*4,4)}, 0')
        for nt in range(2):
            for out in range(2):
                d = VA + (out * 2 + nt) * 4
                e(f'v_mfma_f32_16x16x32_bf16 {vr(d,4)}, {vr(AIN+i*8+4,4)}, {vr(G+((out*2+1)*2+nt)*4,4)}, {vr(d,4)}')
        sk = L('skip3')
        if i == 3:
            e(f's_cmp_ge_u32 s{sW}, 2')
            e(f's_cbranch_scc1 {sk}')
        for nt in range(2):
            p = PK + nt * 4 + (i & 1) * 8
            vre, vim = VA + (0 * 2 + nt) * 4, VA + (1 * 2 + nt) * 4
            e(f'v_cvt_pk_bf16_f32 v{p+0}, v{vre+0}, v{vre+1}')
            e(f'v_cvt_pk_bf16_f32 v{p+1}, v{vre+2}, v{vre+3}')
            e(f'v_cvt_pk_bf16_f32 v{p+2}, v{vim+0}, v{vim+1}')
            e(f'v_cvt_pk_bf16_f32 v{p+3}, v{vim+2}, v{vim+3}')
            e.ds(f'ds_write_b128 v12, {vr(p,4)} offset:{(4*i*2+nt)*1024}')
        if i == 3: e.label(sk)
        wload(OPT['st1'])
    e.wait_ds_all()
    stamp(e, 'C.st1')
    e.barrier()
    VB = 16
    order = [(kb, nt) for kb in range(14) for nt in range(2)]
    tok = {}
    nread = [0]
    def issue():
        kb, nt = order[nread[0]]
        tok[nread[0]] = e.ds(f'ds_read_b128 {vr(VB+(nread[0]%8)*4,4)}, v11 offset:{(kb*2+nt)*1024}')
        nread[0] += 1
    for _ in range(7): issue()
    for idx_, (kb, nt) in enumerate(order):
        e.wait_ds(tok[idx_])
        par = 0 if kb < 7 else 1
        d = PA + (par * 2 + nt) * 4
        first = kb in (0, 7)
        e(f'v_mfma_f32_16x16x32_bf16 {vr(d,4)}, {vr(TC+kb*4,4)}, {vr(VB+(idx_%8)*4,4)}, {"0" if first else vr(d,4)}')
        if nread[0] < len(order): issue()
        if OPT['st2'] and idx_ % OPT['st2'] == OPT['st2'] - 1: wload(1)
    stamp(e, 'C.st2')
    e.wait_vm(mtok[1])
    H, HP, CP, SQ = 104, 120, 128, 92
    e('s_mov_b32 s52, 0xffff0000')
    for nt in range(2):
        pe, po = PA + nt * 4, PA + 8 + nt * 4
        for pm in range(2):
            xr = XR + (nt * 2 + pm) * 2
            for r in range(4):
                hv = H + (nt * 2 + pm) * 4 + r
                e(f'{"v_add_f32" if pm == 0 else "v_sub_f32"} v{hv}, v{pe+r}, v{po+r}')
                xv = 96 + r
                if r & 1: e(f'v_and_b32 v{xv}, s52, v{xr+(r>>1)}')
                else: e(f'v_lshlrev_b32 v{xv}, 16, v{xr+(r>>1)}')
            for r in range(4):
                hv = H + (nt * 2 + pm) * 4 + r
                e(f'v_add_f32 v{hv}, v{hv}, v{96+r}')
            for i in range(2):
                hv = H + (nt * 2 + pm) * 4 + 2 * i
                e(f'v_cvt_pk_bf16_f32 v{HP+nt*4+pm*2+i}, v{hv}, v{hv+1}')
        e(f'v_mov_b32 v{SQ+nt}, 0')
        for q in range(4):
            hp = HP + nt * 4 + q
            e(f'v_lshlrev_b32 v100, 16, v{hp}')
            e(f'v_and_b32 v101, s52, v{hp}')
            e(f'v_sub_f32 v100, v100, v{MEAN+nt}')
            e(f'v_sub_f32 v101, v101, v{MEAN+nt}')
            e(f'v_fma_f32 v{SQ+nt}, v100, v100, v{SQ+nt}')
            e(f'v_fma_f32 v{SQ+nt}, v101, v101, v{SQ+nt}')
            e(f'v_cvt_pk_bf16_f32 v{CP+nt*4+q}, v100, v101')
            wload(OPT['epi'])
    e('v_lshrrev_b32 v4, 1, v3')
    e('v_lshlrev_b32 v4, 10, v4')
    e('v_and_b32 v5, 1, v3')
    e('v_lshlrev_b32 v5, 9, v5')
    e('v_add_u32 v4, v4, v5')
    e('v_lshlrev_b32 v5, 4, v2')
    e('v_add_u32 v4, v4, v5')
    e(f's_mul_i32 s52, s{sB}, 28')
    e('s_lshl_b32 s53, s57, 1')
    e('s_add_u32 s52, s52, s53')
    e('s_lshl_b32 s52, s52, 10')
    ns, st = L('cnostore'), L('cstat')
    e('s_cmp_ge_u32 s56, 14')
    e(f's_cbranch_scc1 {ns}')
    e(f's_add_u32 s53, s52, 0x{HC_OFF:x}')
    e(f's_add_u32 s54, s52, 0x{HR_OFF:x}')
    for nt in range(2):
        e(f'buffer_store_dwordx4 {vr(CP+nt*4,4)}, v4, {SWS}, s53 offen offset:{256*nt} sc1')
        e(f'buffer_store_dwordx4 {vr(HP+nt*4,4)}, v4, {SWS}, s54 offen offset:{256*nt} sc1')
    e.label(ns)
    for nt in range(2): xsum_groups(e, SQ + nt, 102)
    e('s_cmp_lt_u32 s56, 14')
    e(f's_cbranch_scc1 {st}')
    e(f'v_mov_b32 v{SQ}, 0')
    e(f'v_mov_b32 v{SQ+1}, 0')
    e.label(st)
    e('v_cmp_le_u32 vcc, 16, v1')
    e(f'v_cndmask_b32 v{SQ}, v{SQ}, v{SQ+1}, vcc')
    e('v_lshlrev_b32 v5, 2, v1')
    e(f's_lshl_b32 s52, s{sB}, 11')
    e('s_lshl_b32 s53, s56, 7')
    e('s_add_u32 s52, s52, s53')
    e(f's_add_u32 s52, s52, 0x{ST2_OFF:x}')
    e('s_mov_b64 exec, 0xffffffff')
    last = e.vm(f'buffer_store_dword v{SQ}, v5, {SWS}, s52 offen sc1')
    e('s_mov_b64 exec, -1')
    stamp(e, 'C.stored')
    wload(OPT['post'])
    e.wait_vm(last)
    stamp(e, 'C.drained')
    signal(e, 2)
    global W13_PENDING
    W13_PENDING = (WG, wgi)

NV, NE = 27, 35
def w2reg(mi, s_):
    o = 2 * s_ + mi
    if o < NV: return vr(144 + 4 * o, 4), None
    if o < NE: return ar(224 + 4 * (o - NV), 4), None
    oo = o - NE
    return ar(((oo & 1) * 28 + (oo >> 1)) * 4, 4), (oo & 1, oo >> 1)

def phase_g(e):
    e.c('======== window 3 + G1')
    WG, wgi = W13_PENDING
    wtok = {}
    for _ in range(min(OPT['w3'], len(WG) - wgi[0])):
        wtok[wgi[0]] = emit_groups(e, [WG[wgi[0]]]); wgi[0] += 1
    e('v_lshlrev_b32 v4, 4, v1')
    e(f's_lshl_b32 s56, s{sC}, 3')
    e(f's_lshl_b32 s52, s{sW}, 1')
    e('s_add_u32 s56, s56, s52')
    e(f's_lshl_b32 s57, s{sR}, 2')
    e('s_and_b32 s58, s2, 7')
    e('s_lshr_b32 s59, s2, 3')
    e('s_mul_i32 s52, s59, 37')
    e('s_lshr_b32 s52, s52, 8')
    e('s_mul_i32 s53, s52, 7')
    e('s_sub_u32 s59, s59, s53')
    e('s_lshl_b32 s52, s52, 3')
    e('s_add_u32 s58, s58, s52')
    e(f's_mul_i32 s52, s{sW}, 28')
    e(f's_and_b32 s54, s{sW}, 1')
    for mi in range(2):
        e(f's_xor_b32 s53, s54, {mi}')
        e('s_lshl_b32 s55, s59, 1')
        e('s_add_u32 s53, s53, s55')
        e('s_mul_i32 s53, s53, 112')
        e('s_add_u32 s53, s53, s52')
        e('s_lshl_b32 s53, s53, 10')
        e(f's_add_u32 s{60+mi}, s53, 0x{W2_OFF:x}')
    e(f's_lshr_b32 s53, s{sW}, 1')
    e('s_lshl_b32 s53, s53, 4')
    e('v_xor_b32 v10, s53, v1')
    e('v_lshlrev_b32 v10, 4, v10')
    e('v_min_u32 v8, 13, v1')
    e('v_lshrrev_b32 v9, 1, v8')
    e('v_and_b32 v8, 1, v8')
    e('v_lshlrev_b32 v8, 7, v8')
    e('v_add_u32 v8, v8, v9')
    e('s_lshr_b32 s53, s58, 1')
    e('s_lshl_b32 s53, s53, 3')
    e('v_add_u32 v8, s53, v8')
    e('v_lshlrev_b32 v8, 6, v8')
    def grp_off(dst, g):
        if not OPT['g2rot']: return [f's_mov_b32 s{dst}, {g*4096}']
        return [f's_add_u32 s{dst}, s59, {g}', f's_cmp_ge_u32 s{dst}, 7', f's_cselect_b32 s55, 7, 0',
                f's_sub_u32 s{dst}, s{dst}, s55', f's_lshl_b32 s{dst}, s{dst}, 12']
    def w2load(o):
        s_, mi = o >> 1, o & 1
        reg, dep = w2reg(mi, s_)
        pre = []
        if s_ % 4 == 0 and mi == 0:
            pre = grp_off(62, s_ // 4) + ['s_add_u32 s63, s61, s62', 's_add_u32 s62, s60, s62']
        return pre + [('vm', f'buffer_load_dwordx4 {reg}, v10, {SWS}, s{62+mi} offen offset:{(s_%4)*1024} sc1')]
    def idx(e):
        e('v_lshrrev_b32 v5, 2, v1')
        e('v_add_u32 v5, s57, v5')
        e('v_and_b32 v6, 7, v5')
        e('v_lshrrev_b32 v5, 3, v5')
        e('v_lshlrev_b32 v5, 5, v5')
        e('v_add_u32 v5, v5, v6')
        e('v_and_b32 v6, 3, v1')
        e('v_lshlrev_b32 v6, 3, v6')
        e('v_add_u32 v5, v5, v6')
        e('v_lshlrev_b32 v5, 6, v5')
        idxw(e, 16)
    def idxw(e, first):
        e(f'v_add_u32 v6, {208 if first == 16 else 224}, v1')
        e('v_lshlrev_b32 v6, 6, v6')
        e(f'v_add_u32 v6, {2*0x40000}, v6')
        if first:
            e(f'v_cmp_le_u32 vcc, {first}, v1')
            e('v_cndmask_b32 v5, v5, v6, vcc')
        else:
            e('v_mov_b32 v5, v6')
    e(f's_cmp_ge_u32 s{sC}, 14')
    e('s_cbranch_scc1 L_g2only')
    poll(e, 2, 44, idx)
    stamp(e, 'G1.go')
    ACC, BR, RRG, T = 64, 16, 48, 128
    ST = 208
    dtok = {}
    e(f's_mul_i32 s96, s{sW}, 7168')
    e(f's_add_u32 s98, s{sR}, s{sW}')
    e('s_and_b32 s98, s98, 3')
    e('s_mul_i32 s98, s98, 7168')
    def hc_groups(nt):
        gs = []
        for i in range(7):
            g = []
            if i == 0:
                g += [f's_add_u32 s97, s57, {nt}', 's_mul_i32 s97, s97, 28672', 's_add_u32 s97, s97, s98', f's_add_u32 s97, s97, 0x{HC_OFF:x}']
            if i == 4: g += ['s_add_u32 s97, s97, 4096']
            if i in (0, 4): g += [f's_add_u32 m0, s96, {nt*28672 + (4096 if i == 4 else 0)}']
            g.append(('vm', f'buffer_load_dwordx4 v4, {SWS}, s97 offen offset:{(i%4)*1024} sc1 lds', ('hc', nt)))
            gs.append(g)
        return gs
    STK = []; STORES = []
    def emit_op(op):
        if isinstance(op, tuple) and op[0] == 'ds':
            STK.append(e.ds(op[1])); return None
        if isinstance(op, tuple) and op[0] == 'dswait':
            e.wait_ds(STK[op[1] * 8 + 7]); return None
        if isinstance(op, tuple):
            t = e.vm(op[1])
            if len(op) > 2:
                if op[2][0] == 'store': STORES.append(t)
                if op[2][0] == 'hc': dtok[op[2][1]] = t
                if op[2][0] == 'st': dtok['st'] = t
            return t
        e(op); return None
    for g in hc_groups(0):
        for op in g: emit_op(op)
    e(f's_add_u32 s54, s57, s{sW}')
    e('s_lshl_b32 s54, s54, 11')
    e(f's_add_u32 s54, s54, 0x{ST2_OFF:x}')
    e(f's_lshl_b32 s55, s{sW}, 11')
    e(f's_add_u32 m0, s55, {LDS_STATS}')
    e.vm(f'buffer_load_dwordx4 v4, {SWS}, s54 offen sc1 lds')
    dtok[0] = e.vm(f'buffer_load_dwordx4 v4, {SWS}, s54 offen offset:1024 sc1 lds')
    while wgi[0] < len(WG):
        wtok[wgi[0]] = emit_groups(e, [WG[wgi[0]]]); wgi[0] += 1
    e('v_add_u32 v6, 57344, v4')
    e('v_and_b32 v5, 31, v1')
    e('v_lshlrev_b32 v5, 2, v5')
    e('v_lshrrev_b32 v7, 5, v1')
    e('v_lshlrev_b32 v7, 10, v7')
    e('v_add_u32 v5, v5, v7')
    e(f'v_add_u32 v5, {LDS_STATS}, v5')
    def stat_ops():
        ops = []
        for nt in range(4):
            b0 = ST + nt * 8
            for i in range(8): ops.append(('ds', f'ds_read_b32 v{b0+i}, v5 offset:{nt*2048 + i*128}'))
        for nt in range(4):
            b0 = ST + nt * 8
            ops.append(('dswait', nt))
            ops += [f'v_add_f32 v{b0}, v{b0}, v{b0+1}', f'v_add_f32 v{b0+2}, v{b0+2}, v{b0+3}', f'v_add_f32 v{b0+4}, v{b0+4}, v{b0+5}',
                    f'v_add_f32 v{b0+6}, v{b0+6}, v{b0+7}', f'v_add_f32 v{b0}, v{b0}, v{b0+2}', f'v_add_f32 v{b0+4}, v{b0+4}, v{b0+6}',
                    f'v_add_f32 v{b0}, v{b0}, v{b0+4}', f'v_mov_b32 v{b0+1}, v{b0}', f'v_mov_b32 v7, {lit(1e-5)}',
                    f'v_permlane32_swap_b32 v{b0+1}, v{b0}', f'v_add_f32 v{b0}, v{b0}, v{b0+1}',
                    f'v_fmamk_f32 v{RRG+4+nt}, v{b0}, {lit(1.0/448)}, v7', f'v_rsq_f32 v{b0}, v{RRG+4+nt}', 's_nop 0',
                    f'v_mul_f32 v{RRG+nt}, {lit(-1.4426950408889634)}, v{b0}']
        return ops
    def epi_half(nt, mi):
        ops = []
        a = ACC + ((nt & 1) * 2 + mi) * 16
        T0 = T
        for r in range(8): ops.append(f'v_mul_f32 v{T0+r}, v{a+r}, v{RRG+nt}')
        for r in range(8):
            ops.append(f'v_exp_f32 v{T0+r}, v{T0+r}')
            ops.append(f'v_mul_f32 v{T0+8+r}, v{a+r}, v{a+8+r}')
        for r in range(8): ops.append(f'v_fma_f32 v{T0+r}, v{T0+r}, v{RRG+4+nt}, v{RRG+4+nt}')
        for r in range(8): ops.append(f'v_rcp_f32 v{T0+r}, v{T0+r}')
        for r in range(8): ops.append(f'v_mul_f32 v{T0+8+r}, v{T0+8+r}, v{T0+r}')
        P = 56 + mi * 4
        for i in range(4): ops.append(f'v_cvt_pk_bf16_f32 v{P+i}, v{T0+8+2*i}, v{T0+8+2*i+1}')
        ops.append(f's_add_u32 s53, s99, {nt*112*1024 + mi*1024}')
        ops.append(('vm', f'buffer_store_dwordx4 {vr(P,4)}, v4, {SWS}, s53 offen sc1', ('store',)))
        return ops
    def epi_ops(nt): return epi_half(nt, 0) + epi_half(nt, 1)
    e('s_mul_i32 s99, s57, 112')
    e('s_add_u32 s99, s99, s56')
    e('s_lshl_b32 s99, s99, 10')
    e(f's_add_u32 s99, s99, 0x{HM_OFF:x}')
    n1 = OPT['w2t1']
    bg = {0: hc_groups(1) + hc_groups(2), 1: hc_groups(3) + [w2load(o) for o in range(0, n1)],
          2: [w2load(o) for o in range(n1, NE)], 3: []}
    last_store = None
    next_late = NE
    def g2_bases(em):
        em('s_lshr_b32 s52, s58, 1')
        em('s_lshl_b32 s52, s52, 2')
        em('s_and_b32 s53, s58, 1')
        em('s_add_u32 s100, s52, s53')
        em('s_sub_u32 s101, s52, s53')
        em('s_add_u32 s101, s101, 3')
        em(f's_mul_i32 s52, s{sW}, 28')
        for k in range(2):
            em(f's_mul_i32 s53, s{100+k}, 112')
            em('s_add_u32 s53, s53, s52')
            em('s_lshl_b32 s53, s53, 10')
            em(f's_add_u32 s{88+k}, s53, 0x{HM_OFF:x}')
    g2_bases(e)
    RING = 64
    rtok = {}
    def ring_load(ph, i):
        if i % 4 == 0: e(f's_add_u32 s90, s{88+ph}, {i*1024}')
        rtok[(ph, i)] = e.vm(f'buffer_load_dwordx4 {vr(RING+(i%8)*4,4)}, v4, {SWS}, s90 offen offset:{(i%4)*1024} sc1')
    def early_check(tok_):
        dn, lp = L('ec'), L('ec')
        e(f's_mov_b32 s{sSPIN}, 0')
        e.label(lp)
        if tok_ is None:
            e(f'buffer_load_dword v9, v8, {SWS}, s91 offen sc1')
            e('s_waitcnt vmcnt(0)')
        e(f'v_cmp_ne_u32 vcc, s{sNONCE}, v9')
        e('s_nop 4')
        e(f's_cbranch_vccz {dn}')
        if tok_ is not None:
            e(f'buffer_load_dword v9, v8, {SWS}, s91 offen sc1')
            e('s_waitcnt vmcnt(0)')
        e(f's_add_u32 s{sSPIN}, s{sSPIN}, 1')
        e(f's_cmp_lt_u32 s{sSPIN}, {MAXSPIN}')
        e(f's_cbranch_scc1 {lp}')
        e.label(dn)
    etok = None
    for nt in range(4):
        e.wait_vm(dtok[nt])
        e.barrier()
        if nt == 0: stamp(e, 'G1.t0')
        fill = epi_ops(nt - 1) if nt > 0 else stat_ops()
        sttok = []
        fi = 0; gi = 0
        btok = {}
        n = [0]
        def issue():
            kap = n[0]
            base = 'v4' if nt < 2 else 'v6'
            off = ((nt & 1) * 28 + kap) * 1024
            btok[kap] = e.ds(f'ds_read_b128 {vr(BR+(kap%8)*4,4)}, {base} offset:{off}')
            n[0] += 1
        for _ in range(5): issue()
        nm = 0
        G_ = bg[nt]
        for kap in range(28):
            e.wait_ds(btok[kap])
            for mi in range(2):
                a = ACC + ((nt & 1) * 2 + mi) * 16
                if nt == 0 and (kap * 2 + mi) in wtok: e.wait_vm(wtok[kap * 2 + mi])
                e(f'v_mfma_f32_32x32x16_bf16 {vr(a,16)}, {ar((mi*28+kap)*4,4)}, {vr(BR+(kap%8)*4,4)}, {"0" if kap == 0 else vr(a,16)}')
                nm += 1
                if mi == 0 and n[0] < 28: issue()
                span = 24 if nt == 3 else 56
                want = (len(G_) * nm + span - 1) // span
                while gi < min(want, len(G_)):
                    for op in G_[gi]: emit_op(op)
                    gi += 1
                if nt == 3 and gi >= len(G_) and nm * 21 >= (next_late - NE + 1) * OPT['latesp'] and next_late < 56:
                    dep = w2reg(next_late & 1, next_late >> 1)[1]
                    if dep[1] * 2 + dep[0] < nm:
                        for op in w2load(next_late): emit_op(op)
                        next_late += 1
                if nt == 3 and nm == OPT['eflag']:
                    e.wait_vm(STORES[3])
                    e.barrier()
                    flag_store(e, 5)
                if nm > 3:
                    fs = OPT['fspan'] if nt == 2 else 50
                    want = (len(fill) * (nm - 3) + fs - 1) // fs
                    while fi < min(want, len(fill)):
                        t = emit_op(fill[fi]); fi += 1
        while fi < len(fill):
            emit_op(fill[fi]); fi += 1
        stamp(e, f'G1.tile{nt}')
    for op in epi_ops(3):
        t = emit_op(op)
        if isinstance(op, tuple): last_store = t
    stamp(e, 'G1.stored')
    assert next_late == 56
    skr, skr2 = L('nog2'), L('nog2')
    e('s_cmp_ge_u32 s2, 224')
    e(f's_cbranch_scc1 {skr}')
    e(f's_add_u32 s91, s{sREP}, 0x{FL_OFF + 5*0x40000:x}')
    e(f'buffer_load_dword v9, v8, {SWS}, s91 offen sc1')
    e.label(skr)
    e('s_waitcnt vmcnt(0)')
    e.vm_done = e.vm_issued
    stamp(e, 'G1.drained')
    signal(e, 3)
    e('s_cmp_ge_u32 s2, 224')
    e('s_cbranch_scc1 L_fin')
    early_check(0)
    e('s_branch L_g2')
    e.label('L_g2only')
    e('s_cmp_ge_u32 s2, 224')
    e('s_cbranch_scc1 L_fin')
    poll(e, 2, 28, lambda e_: idxw(e_, 0))
    for o in range(56):
        for op in w2load(o): e(op[1] if isinstance(op, tuple) else op)
    g2_bases(e)
    e(f's_add_u32 s91, s{sREP}, 0x{FL_OFF + 5*0x40000:x}')
    early_check(None)
    e.label('L_g2')
    for i in range(8): ring_load(0, i)
    e.c('======== G2')
    ACC2, R0, HRR = 16, 96, 140
    e(f's_and_b32 s60, s{sW}, 1')
    e('s_lshl_b32 s53, s59, 1')
    e('s_add_u32 s60, s60, s53')
    e(f's_lshr_b32 s61, s{sW}, 1')
    for k in range(3):
        e(f's_xor_b32 s52, s{sW}, {k+1}')
        e('s_mul_i32 s52, s52, 6144')
        e(f'v_add_u32 v{11+k}, s52, v4')
    e(f's_mul_i32 s52, s{sW}, 6144')
    e('v_add_u32 v133, s52, v4')
    e('v_and_b32 v5, 31, v1')
    e('v_mul_u32_u24 v5, %d, v5' % (64 * 896))
    e('v_lshrrev_b32 v6, 5, v1')
    e('v_mul_u32_u24 v6, 448, v6')
    e('v_add_u32 v132, v5, v6')
    HR_ = {0: 140, 1: 136}
    def accreg(ph, mi, off=0, n=16):
        return vr(ACC2 + mi * 16 + off, n) if ph == 0 else ar(80 + mi * 16 + off, n)
    def hr_load(ph):
        e(f's_mul_i32 s52, s{100+ph}, 28')
        e('s_lshl_b32 s53, s60, 1')
        e('s_add_u32 s52, s52, s53')
        e('s_add_u32 s52, s52, s61')
        e('s_lshl_b32 s52, s52, 10')
        e(f's_add_u32 s52, s52, 0x{HR_OFF:x}')
        return e.vm(f'buffer_load_dwordx4 {vr(HR_[ph],4)}, v4, {SWS}, s52 offen sc1')
    def tail_ops(ph, htok):
        ops = []
        for k, (mi, rh) in enumerate(((1, 0), (0, 1), (1, 1))):
            for qd in range(2):
                ops.append(('ds', f'ds_write_b128 v{11+k}, {accreg(ph, mi, rh*8 + qd*4, 4)} offset:{ph*24576 + k*2048 + qd*1024}'))
        ops.append(('dswaitall',))
        ops.append('s_barrier')
        for k in range(3):
            for qd in range(2):
                ops.append(('ds', f'ds_read_b128 {vr(R0+k*8+qd*4,4)}, v133 offset:{ph*24576 + k*2048 + qd*1024}'))
        if ph == 1:
            for r in range(8): ops.append(f'v_accvgpr_read_b32 v{ACC2+r}, a{80+r}')
        ops.append(('dswaitall',))
        for r in range(8):
            ops.append(f'v_add_f32 v{R0+r}, v{R0+r}, v{R0+8+r}')
            ops.append(f'v_add_f32 v{R0+16+r}, v{R0+16+r}, v{ACC2+r}')
        for r in range(8): ops.append(f'v_add_f32 v{R0+r}, v{R0+r}, v{R0+16+r}')
        ops.append(('vmwait', htok))
        PK, O = 120, 124
        for i in range(4): ops.append(f'v_cvt_pk_bf16_f32 v{PK+i}, v{R0+2*i}, v{R0+2*i+1}')
        for i in range(4):
            ops += [f'v_lshlrev_b32 v128, 16, v{PK+i}', f'v_and_b32 v129, s87, v{PK+i}', f'v_lshlrev_b32 v130, 16, v{HR_[ph]+i}',
                    f'v_and_b32 v131, s87, v{HR_[ph]+i}', 'v_add_f32 v128, v128, v130', 'v_add_f32 v129, v129, v131',
                    f'v_cvt_pk_bf16_f32 v{O+i}, v128, v129']
        ops += [f'v_permlane32_swap_b32 v{O}, v{O+2}', f'v_permlane32_swap_b32 v{O+1}, v{O+3}']
        ops += ['s_lshl_b32 s52, s60, 5', 's_lshl_b32 s53, s61, 4', 's_add_u32 s52, s52, s53', f's_mul_i32 s53, s{100+ph}, 896', 's_add_u32 s52, s52, s53']
        om = ['', ' sc1', ' nt', ' sc0 sc1'][OPT['outmod']]
        ops.append(('vm', f'buffer_store_dwordx4 {vr(O,4)}, v132, {SOUT}, s52 offen{om}'))
        return ops
    def run_op(op):
        if isinstance(op, tuple):
            if op[0] == 'ds': e.ds(op[1])
            elif op[0] == 'dswaitall': e.wait_ds_all()
            elif op[0] == 'vmwait': e.wait_vm(op[1])
            elif op[0] == 'vm': e.vm(op[1])
        else: e(op)
    e('s_mov_b32 s87, 0xffff0000')
    htok = {0: hr_load(0)}
    fill = []; fi = 0
    def rl(tau):
        ph_, i_ = divmod(tau, 28)
        if i_ % 4 == 0: e(f's_add_u32 s90, s{88+ph_}, {i_*1024}')
        rtok[tau] = e.vm(f'buffer_load_dwordx4 {vr(RING+(tau%8)*4,4)}, v4, {SWS}, s90 offen offset:{(i_%4)*1024} sc1')
    for i in range(8): rtok[i] = rtok[(0, i)]
    for tau in range(56):
        ph, i = divmod(tau, 28)
        e.wait_vm(rtok[tau])
        if tau == 0: stamp(e, 'G2.first')
        for mi in range(2):
            e(f'v_mfma_f32_32x32x16_bf16 {accreg(ph, mi)}, {w2reg(mi,i)[0]}, {vr(RING+(tau%8)*4,4)}, {"0" if i == 0 else accreg(ph, mi)}')
        if tau == OPT['lpoll']:
            e(f's_add_u32 s91, s{sREP}, 0x{FL_OFF + 3*0x40000:x}')
            ltok = e.vm(f'buffer_load_dword v9, v8, {SWS}, s91 offen sc1')
        if tau + 8 == 28:
            e.wait_vm(ltok)
            early_check(ltok)
            stamp(e, 'G2.go')
        if tau + 8 < 56: rl(tau + 8)
        if tau == 28:
            htok[1] = hr_load(1)
            fill = tail_ops(0, htok[0])
        if tau == 27: stamp(e, 'G2.mfma0')
        if tau > 28:
            want = (len(fill) * (tau - 28) + 23) // 24
            while fi < min(want, len(fill)):
                run_op(fill[fi]); fi += 1
    while fi < len(fill):
        run_op(fill[fi]); fi += 1
    stamp(e, 'G2.mfma1')
    for op in tail_ops(1, htok[1]): run_op(op)
    stamp(e, 'G2.end')

DBGOUT = False
def dbg_out(e):
    sk = L('dbo')
    e('s_waitcnt vmcnt(0)')
    e('s_memrealtime s[84:85]')
    e('s_memtime s[90:91]')
    e('s_waitcnt lgkmcnt(0)')
    e(f's_cmp_lg_u32 s{sW}, 0')
    e(f's_cbranch_scc1 {sk}')
    e('s_and_b32 s52, s2, 63')
    e('s_cmp_lg_u32 s52, 0')
    e(f's_cbranch_scc1 {sk}')
    e('s_lshr_b32 s52, s2, 6')
    e('s_lshl_b32 s52, s52, 4')
    e('s_add_u32 s52, s52, 16')
    e('s_sub_u32 s53, s84, s86')
    e('s_sub_u32 s54, s90, s82')
    e('v_mov_b32 v4, s53'); e('v_mov_b32 v5, s54'); e('v_mov_b32 v6, s86'); e('v_mov_b32 v7, s84')
    e('v_mov_b32 v8, 0')
    e('s_mov_b64 exec, 1')
    e(f'buffer_store_dwordx4 v[4:7], v8, {SDBG}, s52 offen sc1')
    e('s_mov_b64 exec, -1')
    e.label(sk)

def probe(e):
    sk = L('prb'); lp = L('prl')
    e('s_cmp_lg_u32 s2, 0')
    e(f's_cbranch_scc1 {sk}')
    e('s_waitcnt vmcnt(0)')
    e('s_memrealtime s[84:85]')
    e('s_waitcnt lgkmcnt(0)')
    e('s_sub_u32 s84, s84, s86')
    e(f's_cmp_lt_u32 s84, {OPT["probe"]}')
    e(f's_cbranch_scc1 {sk}')
    e('s_mov_b32 s85, 0')
    e.label(lp)
    e('s_sleep 64')
    e('s_add_u32 s85, s85, 1')
    e('s_cmp_lt_u32 s85, 20')
    e(f's_cbranch_scc1 {lp}')
    e.label(sk)

def diag_dump(e):
    if OPT['probe']: probe(e)
    if DBGOUT: dbg_out(e)
    if not DIAG: return
    e.wait_vm_all()
    rstamp(e, 'rt_end')
    e('s_lshl_b32 s52, s2, 2')
    e(f's_add_u32 s52, s52, s{sW}')
    e('s_lshl_b32 s52, s52, 8')
    e(f's_add_u32 s52, s52, 0x{DIAG_OFF:x}')
    e('v_lshlrev_b32 v4, 2, v1')
    e(f'buffer_store_dword v255, v4, {SWS}, s52 offen')

def kernel():
    e = Emit()
    e.label(KN)
    e('s_cmp_ge_u32 s2, 256')
    e('s_cbranch_scc1 L_end')
    e('s_load_dwordx16 s[64:79], s[0:1], 0')
    e('s_load_dwordx4 s[80:83], s[0:1], 64')
    e('s_memrealtime s[86:87]')
    if OPT['cpf'] == 5: code_prefetch_entry(e)
    if DBGOUT: e('s_memtime s[82:83]')
    if DIAG: e('v_mov_b32 v255, 0')
    e('v_lshrrev_b32 v4, 6, v0')
    e('v_and_b32 v1, 63, v0')
    e(f'v_readfirstlane_b32 s{sW}, v4')
    e('v_and_b32 v2, 15, v0')
    e('v_bfe_u32 v3, v0, 4, 2')
    e(f's_and_b32 s{sB}, s2, 7')
    e('s_lshr_b32 s52, s2, 5')
    e('s_lshl_b32 s52, s52, 3')
    e(f's_add_u32 s{sB}, s{sB}, s52')
    e(f's_lshr_b32 s{sGRP}, s2, 3')
    e(f's_and_b32 s{sGRP}, s{sGRP}, 3')
    e('s_lshr_b32 s52, s2, 3')
    e(f's_and_b32 s{sR}, s52, 15')
    e('s_lshr_b32 s52, s52, 4')
    e(f's_and_b32 s{sC}, s2, 7')
    e(f's_lshl_b32 s{sC}, s{sC}, 1')
    e(f's_add_u32 s{sC}, s{sC}, s52')
    e(f's_getreg_b32 s{sREP}, hwreg(HW_REG_XCC_ID, 0, 3)')
    e(f's_lshl_b32 s{sREP}, s{sREP}, 14')
    e(f's_mov_b32 s{sNONCE}, 0')
    e('s_waitcnt lgkmcnt(0)')
    srd(e, S_X, 64, 1835008)
    if OPT['wsoff']:
        e(f's_add_u32 s82, s82, 0x{OPT["wsoff"]*0x100000:x}')
        e('s_addc_u32 s83, s83, 0')
    srd(e, S_WS, 82, WS_SIZE)
    srd(e, S_WR, 66, 2048 * 450)
    srd(e, S_WI, 68, 2048 * 450)
    srd(e, S_W1, 72, 448 * 3584)
    srd(e, S_W3, 74, 448 * 3584)
    srd(e, S_W2, 76, 1792 * 896)
    srd(e, S_OUT, 78, 1835008)
    srd(e, S_DBG, 80, 256)
    e('s_cmp_ge_u32 s2, 224')
    e(f's_cselect_b32 s{S_W1+2}, 0, s{S_W1+2}')
    e(f's_cselect_b32 s{S_W3+2}, 0, s{S_W3+2}')
    if DIAG:
        STAMPS.append('rt_start'); _stamp_n[0] += 1
        e('v_writelane_b32 v255, s86, 0')
    stamp(e, 'start')
    sk = L('nononce')
    e(f's_or_b32 s52, s2, s{sW}')
    e('s_cmp_lg_u32 s52, 0')
    e(f's_cbranch_scc1 {sk}')
    e('s_or_b32 s52, s86, 1')
    e('v_mov_b32 v4, s52')
    e('v_mov_b32 v5, 0')
    e('s_mov_b64 exec, 1')
    e(f'buffer_store_dword v4, v5, {SDBG}, 0 offen sc1')
    e('s_mov_b64 exec, -1')
    e.label(sk)
    phase_a(e)
    p2l, joinl, join2 = L('p2'), L('join'), L('join')
    e('s_cmp_ge_u32 s2, 224')
    e(f's_cbranch_scc1 {p2l}')
    sv_ds = (e.ds_issued, e.ds_done)
    phase_b(e)
    e(f's_branch {joinl}')
    e.label(p2l)
    signal(e, 1)
    phase_p2(e)
    signal(e, 4)
    e(f's_branch {join2}')
    e.label(joinl)
    signal(e, 1)
    gen_TC(e)
    if OPT['p1slot']: gen_G(e)
    e.label(join2)
    e.vm_issued = 0; e.vm_done = 0
    phase_c(e)
    phase_g(e)
    e.label('L_fin')
    diag_dump(e)
    e.label('L_end')
    e('s_endpgm')
    return e.out

def build():
    hdr = open('cdna_kernels/' + NAME + '.s.ref').read().split('; Override launch')[0]
    body = kernel()
    body, nn = hazard_pass(body)
    print(f'; {len(body)} lines, {nn} nops inserted', file=sys.stderr)
    lines = [hdr.rstrip('\n'),
             f'; @launch grid=(256,1,1) block=(256,1,1) lds={LDS_BYTES}',
             '.amdgcn_target "amdgcn-amd-amdhsa--gfx950"', '.text', f'.globl {KN}', '.p2align 8', f'.type {KN},@function']
    for ln in body: lines.append(ln if ln.endswith(':') else '    ' + ln)
    lines += ['.section .rodata,"a"', '.p2align 6', f'.amdhsa_kernel {KN}',
              '  .amdhsa_next_free_vgpr 512', '  .amdhsa_next_free_sgpr 102', '  .amdhsa_accum_offset 256',
              '  .amdhsa_group_segment_fixed_size 0', '  .amdhsa_kernarg_size 80', '  .amdhsa_user_sgpr_count 2',
              '  .amdhsa_user_sgpr_kernarg_segment_ptr 1', '  .amdhsa_system_sgpr_workgroup_id_x 1',
              '  .amdhsa_float_denorm_mode_32 3', '.end_amdhsa_kernel']
    return '\n'.join(lines) + '\n'

if __name__ == '__main__':
    for a in list(sys.argv):
        if a.startswith('--opt='):
            for kv in a[6:].split(','):
                k, v = kv.split('='); OPT[k] = int(v)
            sys.argv.remove(a)
    if '--dbgout' in sys.argv:
        DBGOUT = True; sys.argv.remove('--dbgout')
    if '--diag' in sys.argv:
        DIAG = True; sys.argv.remove('--diag')
    out = sys.argv[1] if len(sys.argv) > 1 else 'cdna_kernels/' + NAME + '.s'
    open(out, 'w').write(build())
    if DIAG:
        import json; json.dump(STAMPS, open(out + '.stamps.json', 'w'))
    print('written', out, file=sys.stderr)
```

```python
import sys, struct
from asmlib import Emit, hazard_pass

NAME = "sequential_preLN__spectral_gfnet__glu_gated_swiglu__prompt"
KN = NAME + "_kernel"

T1_OFF  = 0x000000
T2_OFF  = 0x200000
HC_OFF  = 0x400000
HR_OFF  = 0x600000
ST1_OFF = 0x800000
ST2_OFF = 0x810000
W13_OFF = 0x900000
W2_OFF  = 0xD00000
HM_OFF  = 0x1000000
FL_OFF  = 0x1800000
DIAG_OFF = 0x1A00000
WS_SIZE = 0x1C00000
LDS_STAGE = 32768
LDS_STATS = 114688
LDS_BYTES = 114688 + 8192
MAXSPIN = 100000

DIAG = False
OPT = dict(st1=3, st2=6, epi=1, post=8, w3=16, cpf=5, outmod=0, probe=0, pdepth=1, g2rot=0, wsoff=0, eflag=16, epoll=46, fspan=40, w2t1=14, latesp=52, g2mode=1, lpoll=8, p1slot=0, early=0, wpf=1)
def f2u(x): return struct.unpack('<I', struct.pack('<f', x))[0]
def lit(x): return '0x%08x' % f2u(x)
def vr(a, n=1): return f'v{a}' if n == 1 else f'v[{a}:{a+n-1}]'
def ar(a, n=1): return f'a{a}' if n == 1 else f'a[{a}:{a+n-1}]'

S_X, S_WS, S_WR, S_WI, S_W1, S_W3, S_W2, S_OUT, S_DBG = 8, 12, 16, 20, 24, 28, 32, 36, 40
SX, SWS, SWR, SWI, SW1, SW3, SW2, SOUT, SDBG = [f's[{a}:{a+3}]' for a in (8, 12, 16, 20, 24, 28, 32, 36, 40)]
sW, sB, sGRP, sNONCE, sREP = 44, 45, 46, 47, 48
sR, sC, sSPIN = 49, 50, 51

def srd(e, d, ptr, size):
    e(f's_mov_b32 s{d}, s{ptr}')
    e(f's_and_b32 s{d+1}, s{ptr+1}, 0xffff')
    e(f's_mov_b32 s{d+2}, 0x{size:x}')
    e(f's_mov_b32 s{d+3}, 0x20000')

_stamp_n = [0]
STAMPS = []
def stamp(e, name):
    if not DIAG: return
    i = _stamp_n[0]; _stamp_n[0] += 1; STAMPS.append(name)
    e('s_memtime s[84:85]')
    e('s_waitcnt lgkmcnt(0)')
    e(f'v_writelane_b32 v255, s84, {i}')
def rstamp(e, name):
    if not DIAG: return
    i = _stamp_n[0]; _stamp_n[0] += 1; STAMPS.append(name)
    e('s_memrealtime s[84:85]')
    e('s_waitcnt lgkmcnt(0)')
    e(f'v_writelane_b32 v255, s84, {i}')

def xsum_groups(e, v, tmp):
    e(f'v_mov_b32 v{tmp}, v{v}')
    e(f'v_permlane32_swap_b32 v{tmp}, v{v}')
    e(f'v_add_f32 v{v}, v{v}, v{tmp}')
    e(f'v_mov_b32 v{tmp}, v{v}')
    e(f'v_permlane16_swap_b32 v{tmp}, v{v}')
    e(f'v_add_f32 v{v}, v{v}, v{tmp}')

def rot8(em, co, si, co2, si2, cs, neg_sin):
    C = 'op_sel:[0,0] op_sel_hi:[1,0]'
    S3 = 'op_sel:[0,1,0] op_sel_hi:[1,1,1]'
    NEG = ' neg_lo:[0,1,0] neg_hi:[0,1,0]'
    for p in range(4):
        em(f'v_pk_mul_f32 v[{co2+2*p}:{co2+2*p+1}], v[{co+2*p}:{co+2*p+1}], v[{cs}:{cs+1}] {C}')
        em(f'v_pk_mul_f32 v[{si2+2*p}:{si2+2*p+1}], v[{si+2*p}:{si+2*p+1}], v[{cs}:{cs+1}] {C}')
    for p in range(4):
        em(f'v_pk_fma_f32 v[{co2+2*p}:{co2+2*p+1}], v[{si+2*p}:{si+2*p+1}], v[{cs}:{cs+1}], v[{co2+2*p}:{co2+2*p+1}] {S3}' + ('' if neg_sin else NEG))
        em(f'v_pk_fma_f32 v[{si2+2*p}:{si2+2*p+1}], v[{co+2*p}:{co+2*p+1}], v[{cs}:{cs+1}], v[{si2+2*p}:{si2+2*p+1}] {S3}' + (NEG if neg_sin else ''))

_lab = [0]
def L(p):
    _lab[0] += 1
    return f'L{p}_{_lab[0]}'

def signal(e, sync):
    e.barrier()
    skip = L('sig')
    e(f's_cmp_lg_u32 s{sW}, 0')
    e(f's_cbranch_scc1 {skip}')
    e(f's_lshl_b32 s52, s2, 6')
    e(f's_add_u32 s52, s52, 0x{FL_OFF + sync*0x40000:x}')
    e(f'v_mov_b32 v14, s{sNONCE}')
    e('v_lshlrev_b32 v15, 14, v1')
    e('s_mov_b64 exec, 0xff')
    e(f'buffer_store_dword v14, v15, {SWS}, s52 offen sc1')
    e('s_mov_b64 exec, -1')
    e.label(skip)

def flag_store(e, sync):
    skip = L('flg')
    e(f's_cmp_lg_u32 s{sW}, 0')
    e(f's_cbranch_scc1 {skip}')
    e(f's_lshl_b32 s52, s2, 6')
    e(f's_add_u32 s52, s52, 0x{FL_OFF + sync*0x40000:x}')
    e(f'v_mov_b32 v14, s{sNONCE}')
    e('v_lshlrev_b32 v15, 14, v1')
    e('s_mov_b64 exec, 0xff')
    e(f'buffer_store_dword v14, v15, {SWS}, s52 offen sc1')
    e('s_mov_b64 exec, -1')
    e.label(skip)

def poll(e, sync, nflags, idx_code, preg=232, bar=True):
    skip = L('pollskip'); loop = L('poll'); done = L('polldone')
    e(f's_cmp_lg_u32 s{sW}, 0')
    e(f's_cbranch_scc1 {skip}')
    idx_code(e)
    nl = max(1, nflags // 64)
    e(f's_add_u32 s52, s{sREP}, 0x{FL_OFF + sync*0x40000:x}')
    for i in range(1, nl): e(f's_add_u32 s{52+i}, s52, {i*64*64}')
    e(f's_mov_b32 s{sSPIN}, 0')
    if nflags <= 32: e(f's_mov_b64 exec, 0x{(1 << nflags) - 1:x}')
    elif nflags < 64: e(f's_mov_b32 exec_hi, 0x{(1 << (nflags - 32)) - 1:x}')
    D = OPT['pdepth']
    def issue(k):
        for i in range(nl): e(f'buffer_load_dword v{preg+k*nl+i}, v5, {SWS}, s{52+i} offen sc1')
    e('s_waitcnt vmcnt(0)') if D == 1 else None
    for k in range(D - 1): issue(k)
    e.label(loop)
    for k in range(D):
        issue((k + D - 1) % D)
        e(f's_waitcnt vmcnt({(D-1)*nl})')
        r = preg + k * nl
        e(f'v_xor_b32 v6, s{sNONCE}, v{r}')
        for i in range(1, nl):
            e(f'v_xor_b32 v7, s{sNONCE}, v{r+i}')
            e('v_or_b32 v6, v6, v7')
        e('v_cmp_ne_u32 vcc, 0, v6')
        e('s_nop 4')
        e(f's_cbranch_vccz {done}')
    e(f's_add_u32 s{sSPIN}, s{sSPIN}, 1')
    e(f's_cmp_lt_u32 s{sSPIN}, {MAXSPIN}')
    e(f's_cbranch_scc1 {loop}')
    e.label(done)
    e('s_mov_b64 exec, -1')
    e.label(skip)
    if bar: e.barrier()

def p1_addr(e, i):
    e(f's_lshl_b32 s53, s{sW}, 2')
    e(f's_add_u32 s53, s53, {i}')
    e('s_cmp_ge_u32 s53, 7')
    e('s_cselect_b32 s54, 7, 0')
    e(f's_cselect_b32 s55, {P1_MS}, 0')
    e('s_sub_u32 s54, s53, s54')
    e('s_lshl_b32 s54, s54, 6')
    e(f's_add_u32 s55, s55, {LDS_STAGE}')
    e('v_add_u32 v12, s54, v1')
    e('v_mul_u32_u24 v13, 4682, v12')
    e('v_lshrrev_b32 v13, 16, v13')
    e('v_mul_u32_u24 v14, 14, v13')
    e('v_sub_u32 v14, v12, v14')
    e('v_lshlrev_b32 v14, 4, v14')
    e(f'v_mul_u32_u24 v15, {P1_RS}, v13')
    e('v_add3_u32 v%d, v15, v14, s55' % P1LR[i])
    if i == 3: e('v_accvgpr_write_b32 a25, v10')
    e('v_lshrrev_b32 v15, 4, v13')
    e('v_mul_u32_u24 v15, 208, v15')
    e('v_add_u32 v15, v15, v13')
    e('v_mul_u32_u24 v15, 3584, v15')
    e('v_add_u32 v15, v15, v14')

P1_RS, P1_MS = 288, 9344
P1LR = [252, 253, 254, 10]
P2LR = [248, 11]
P2_RS, P2_BASE = 480, LDS_STAGE + 2 * 9344 + 64
def p1_loads(e):
    e('s_lshr_b32 s52, s2, 4')
    e('s_lshl_b32 s52, s52, 4')
    e('s_mul_i32 s52, s52, 3584')
    e('s_and_b32 s54, s2, 15')
    e('s_mul_i32 s54, s54, 224')
    e('s_add_u32 s52, s52, s54')
    e(f's_mov_b32 s94, s{S_W1+2}')
    e('s_mov_b32 s95, 0x20000')
    for i in range(4):
        p1_addr(e, i)
        e('s_cmp_ge_u32 s53, 7')
        e(f's_cselect_b32 s92, s{S_W3}, s{S_W1}')
        e(f's_cselect_b32 s93, s{S_W3+1}, s{S_W1+1}')
        if i >= 2:
            e('s_cmp_ge_u32 s53, 14')
            e('s_cselect_b32 s94, 0, s94')
        e.vm(f'buffer_load_dwordx4 {ar(4*i,4)}, v15, s[92:95], s52 offen')

def p2_loads(e):
    e('s_lshr_b32 s52, s2, 1')
    e('s_mul_i32 s52, s52, %d' % (16 * 896))
    e('s_and_b32 s53, s2, 1')
    e('s_mul_i32 s53, s53, 224')
    e('s_add_u32 s52, s52, s53')
    e(f's_mov_b32 s92, s{S_W2}')
    e(f's_mov_b32 s93, s{S_W2+1}')
    e('s_cmp_ge_u32 s2, 224')
    e(f's_cselect_b32 s94, 0, s{S_W2+2}')
    for i in range(2):
        e(f's_lshl_b32 s53, s{sW}, 1')
        e(f's_add_u32 s53, s53, {i}')
        e('s_lshl_b32 s54, s53, 6')
        e('v_add_u32 v12, s54, v1')
        e('v_mul_u32_u24 v13, 2341, v12')
        e('v_lshrrev_b32 v13, 16, v13')
        e('v_mul_u32_u24 v14, 28, v13')
        e('v_sub_u32 v14, v12, v14')
        e('v_cmp_le_u32 vcc, 14, v14')
        e('v_lshlrev_b32 v14, 4, v14')
        e(f'v_mul_u32_u24 v15, {P2_RS}, v13')
        e(f'v_add_u32 v15, v15, v14')
        e(f'v_add_u32 v15, {P2_BASE}, v15')
        e(f'v_accvgpr_write_b32 a{26 if i == 0 else 24}, v15')
        e('v_add_u32 v15, 224, v14')
        e('v_cndmask_b32 v14, v14, v15, vcc')
        e('v_mul_u32_u24 v15, 896, v13')
        e('v_add_u32 v15, v15, v14')
        if i == 1:
            e('s_cmp_ge_u32 s53, 7')
            e('s_cselect_b32 s94, 0, s94')
        e.vm(f'buffer_load_dwordx4 {ar(16+4*i,4)}, v15, s[92:95], s52 offen')
assert all(((i * 2341) >> 16) == i // 28 for i in range(512))

def w_prefetch(e):
    e('s_lshl_b32 s52, s2, 12')
    e('v_lshlrev_b32 v12, 4, v0')
    e('v_add_u32 v12, s52, v12')
    e.vm(f'buffer_load_dwordx4 a[32:35], v12, {SWR}, 0 offen')
    e.vm(f'buffer_load_dwordx4 a[32:35], v12, {SWI}, 0 offen')
assert all(((i * 4682) >> 16) == i // 14 for i in range(512))

def p1_finish(e, R=64):
    RS, MS, BASE = P1_RS, P1_MS, LDS_STAGE
    skw = L('p1w')
    for i in range(4):
        if i == 2:
            e(f's_cmp_ge_u32 s{sW}, 3')
            e(f's_cbranch_scc1 {skw}')
        if i == 3: e('v_accvgpr_read_b32 v10, a25')
        e(f'ds_write_b128 v{P1LR[i]}, {ar(4*i,4)}')
    e.label(skw)
    e.wait_ds_all()
    e.barrier()
    end = L('p1e')
    e(f's_cmp_eq_u32 s{sW}, 0')
    e(f's_cbranch_scc1 {end}')
    e('v_and_b32 v4, 1, v3')
    e(f'v_mul_u32_u24 v4, {MS}, v4')
    e('v_lshrrev_b32 v5, 1, v3')
    e('v_lshlrev_b32 v5, 2, v5')
    e('v_lshrrev_b32 v6, 2, v2')
    e('v_add_u32 v5, v5, v6')
    e(f'v_mul_u32_u24 v5, {RS}, v5')
    e('v_add_u32 v4, v4, v5')
    e('v_and_b32 v6, 3, v2')
    e('v_lshlrev_b32 v6, 3, v6')
    e('v_add_u32 v4, v4, v6')
    e(f'v_add_u32 v4, {BASE}, v4')
    e('s_and_b32 s54, s2, 15')
    e('s_mul_i32 s54, s54, %d' % (7 * 28))
    e('s_lshr_b32 s53, s2, 4')
    e('s_lshl_b32 s53, s53, 1')
    e('s_add_u32 s54, s54, s53')
    e('s_lshl_b32 s54, s54, 10')
    e(f's_add_u32 s54, s54, 0x{W13_OFF:x}')
    e('v_lshlrev_b32 v5, 4, v1')
    last = L('p1l')
    for m in range(5):
        e(f's_add_u32 s52, s{sW}, {3*m - 1}')
        if m == 4:
            e('s_cmp_ge_u32 s52, 14')
            e(f's_cbranch_scc1 {last}')
        e('s_and_b32 s53, s52, 1')
        e('s_lshr_b32 s52, s52, 1')
        e(f's_mul_i32 s55, s53, {8*RS}')
        e('s_lshl_b32 s61, s52, 5')
        e('s_add_u32 s55, s55, s61')
        e('v_add_u32 v6, s55, v4')
        e(f'ds_read_b64_tr_b16 {vr(R+4*m,2)}, v6')
        e(f'ds_read_b64_tr_b16 {vr(R+4*m+2,2)}, v6 offset:{16*RS}')
        e('s_mul_i32 s52, s52, 28')
        e('s_add_u32 s52, s52, s53')
        e('s_lshl_b32 s52, s52, 10')
        e(f's_add_u32 s{62+m if m < 2 else 86+m}, s52, s54')
    e.label(last)
    e('s_waitcnt lgkmcnt(0)')
    for m in range(4):
        e(f'buffer_store_dwordx4 {vr(R+4*m,4)}, v5, {SWS}, s{62+m if m < 2 else 86+m} offen sc1')
    e(f's_cmp_ge_u32 s{sW}, 3')
    e(f's_cbranch_scc1 {end}')
    e(f'buffer_store_dwordx4 {vr(R+16,4)}, v5, {SWS}, s90 offen sc1')
    e.label(end)

def p2_finish(e, R=128):
    skw2 = L('p2w')
    e('v_accvgpr_read_b32 v7, a26')
    e(f'ds_write_b128 v7, {ar(16,4)}')
    e(f's_cmp_ge_u32 s{sW}, 3')
    e(f's_cbranch_scc1 {skw2}')
    e('v_accvgpr_read_b32 v7, a24')
    e(f'ds_write_b128 v7, {ar(20,4)}')
    e.label(skw2)
    e.wait_ds_all()
    e.barrier()
    end = L('p2e')
    e(f's_cmp_eq_u32 s{sW}, 0')
    e(f's_cbranch_scc1 {end}')
    e('v_lshrrev_b32 v6, 1, v3')
    e('v_lshlrev_b32 v6, 2, v6')
    e('v_lshrrev_b32 v7, 2, v2')
    e('v_add_u32 v6, v6, v7')
    e(f'v_mul_u32_u24 v6, {P2_RS}, v6')
    e('v_and_b32 v7, 1, v3')
    e('v_lshlrev_b32 v7, 4, v7')
    e('v_add_u32 v6, v6, v7')
    e('v_and_b32 v7, 1, v2')
    e('v_lshlrev_b32 v7, 3, v7')
    e('v_add_u32 v6, v6, v7')
    e('v_bfe_u32 v7, v2, 1, 1')
    e('v_mul_u32_u24 v7, 224, v7')
    e('v_add_u32 v6, v6, v7')
    e(f's_sub_u32 s55, s{sW}, 1')
    e('s_lshl_b32 s52, s55, 5')
    e(f's_add_u32 s52, s52, {P2_BASE}')
    e('v_add_u32 v6, s52, v6')
    e('s_and_b32 s54, s2, 1')
    e('s_mul_i32 s54, s54, 7')
    e('s_add_u32 s54, s54, s55')
    e('s_mul_i32 s54, s54, 112')
    e('s_lshr_b32 s53, s2, 1')
    e('s_add_u32 s54, s54, s53')
    e('s_lshl_b32 s54, s54, 10')
    e(f's_add_u32 s54, s54, 0x{W2_OFF:x}')
    e('v_lshlrev_b32 v5, 4, v1')
    for m in range(3):
        e(f'ds_read_b64_tr_b16 {vr(R+4*m,2)}, v6 offset:{96*m}')
        e(f'ds_read_b64_tr_b16 {vr(R+4*m+2,2)}, v6 offset:{96*m + 8*P2_RS}')
    e('s_waitcnt lgkmcnt(0)')
    for m in range(3):
        if m == 2:
            e(f's_cmp_ge_u32 s{sW}, 2')
            e(f's_cbranch_scc1 {end}')
        e(f's_add_u32 s53, s54, {3*m*112*1024}')
        e(f'buffer_store_dwordx4 {vr(R+4*m,4)}, v5, {SWS}, s53 offen sc1')
    e.label(end)

def w13_load_groups():
    gs = []
    for s_ in range(28):
        for mi in range(2):
            g = []
            if s_ % 7 == 0 and mi == 0:
                g += [f's_add_u32 s90, s89, {s_//7}', 's_and_b32 s90, s90, 3', 's_mul_i32 s90, s90, 7168', 's_add_u32 s90, s90, s88',
                      's_add_u32 s91, s90, 28672']
            i = s_ % 7
            if i == 4 and mi == 0: g += ['s_add_u32 s90, s90, 4096', 's_add_u32 s91, s91, 4096']
            g.append(('vm', f'buffer_load_dwordx4 {ar((mi*28+s_)*4,4)}, v254, s[92:95], s{90+mi} offen offset:{(i%4)*1024} sc1'))
            gs.append(g)
    return gs

def w13_setup(e):
    e(f's_mov_b32 s92, s{S_WS}')
    e(f's_mov_b32 s93, s{S_WS+1}')
    e(f's_cmp_ge_u32 s{sC}, 14')
    e(f's_cselect_b32 s94, 0, s{S_WS+2}')
    e('s_mov_b32 s95, 0x20000')
    e(f's_lshl_b32 s88, s{sC}, 3')
    e(f's_lshl_b32 s52, s{sW}, 1')
    e('s_add_u32 s88, s88, s52')
    e('s_mul_i32 s88, s88, 28672')
    e(f's_add_u32 s88, s88, 0x{W13_OFF:x}')
    e(f's_and_b32 s89, s{sR}, 3')
    e('v_lshlrev_b32 v254, 4, v1')

def emit_groups(e, groups):
    last = None
    for g in groups:
        for op in g:
            if isinstance(op, tuple): last = e.vm(op[1])
            else: e(op)
    return last

DMA = {}
def emit_interleaved(e, main, groups, start=0):
    n, m = len(main), len(groups)
    gi = 0; last = None
    for k, ins in enumerate(main):
        e(ins)
        if k >= start:
            want = ((k - start + 1) * m) // max(1, n - start)
            while gi < want:
                for op in groups[gi]:
                    if isinstance(op, tuple): last = e.vm(op[1])
                    else: e(op)
                gi += 1
    while gi < m:
        for op in groups[gi]:
            if isinstance(op, tuple): last = e.vm(op[1])
            else: e(op)
        gi += 1
    return last

def w13_trread(e, half):
    e('v_and_b32 v4, 1, v3')
    e('v_lshrrev_b32 v5, 1, v3')
    e('v_lshrrev_b32 v6, 2, v2')
    e('v_and_b32 v7, 3, v2')
    e('v_mul_u32_u24 v8, 57344, v4')
    e('v_lshlrev_b32 v9, 2, v5')
    e('v_add_u32 v9, v9, v6')
    e('v_lshlrev_b32 v9, 8, v9')
    e('v_add_u32 v8, v8, v9')
    e('v_and_b32 v9, 1, v7')
    e('v_lshlrev_b32 v9, 3, v9')
    e('v_add_u32 v8, v8, v9')
    e(f'v_add_u32 v8, {LDS_STAGE}, v8')
    e('v_lshrrev_b32 v7, 1, v7')
    e(f's_lshl_b32 s52, s{sW}, 2')
    e('v_add_u32 v7, s52, v7')
    e('v_lshlrev_b32 v6, 1, v6')
    e('v_lshlrev_b32 v4, 3, v4')
    e('v_xor_b32 v6, v6, v4')
    for mi in range(2):
        e(f'v_add_u32 v9, {2*mi}, v7')
        e('v_xor_b32 v9, v9, v6')
        e('v_lshlrev_b32 v9, 4, v9')
        e(f'v_add_u32 v{10+mi}, v8, v9')
    for mi in range(2):
        for jl in range(7):
            for gg in range(2):
                kap = 14 * half + 2 * jl + gg
                a = (mi * 28 + kap) * 4
                off = (16 * jl + 8 * gg) * 256
                e.ds(f'ds_read_b64_tr_b16 {ar(a,2)}, v{10+mi} offset:{off}')
                e.ds(f'ds_read_b64_tr_b16 {ar(a+2,2)}, v{10+mi} offset:{off + 112*256}')

C_G, C_TC = 220, 160
def gen_G(e):
    G = C_G
    TH, CO, SI = 112, 120, 128
    cscale = 2.0 / (2048.0 * 448.0)
    e('v_cvt_f32_u32 v7, v3')
    for nt in range(2):
        e(f'v_add_u32 v8, {16*nt}, v2')
        e('v_lshlrev_b32 v8, 6, v8')
        e(f'v_add_u32 v8, s{sB}, v8')
        e('v_cvt_f32_u32 v8, v8')
        e(f'v_mul_f32 v8, {lit(1.0/2048)}, v8')
        e('v_mul_f32 v9, v7, v8')
        for t in range(2):
            for ii in range(4):
                cst = 16 * t + 4 * ii
                if cst == 0: e(f'v_mov_b32 v{TH+t*4+ii}, v9')
                else: e(f'v_fmamk_f32 v{TH+t*4+ii}, v8, {lit(float(cst))}, v9')
        for j in range(8): e(f'v_cos_f32 v{CO+j}, v{TH+j}')
        for j in range(8): e(f'v_sin_f32 v{SI+j}, v{TH+j}')
        for j in range(8): e(f'v_mul_f32 v{CO+j}, {lit(cscale)}, v{CO+j}')
        for j in range(8): e(f'v_mul_f32 v{SI+j}, {lit(cscale)}, v{SI+j}')
        for t in range(2):
            for ii in range(4):
                j = t * 4 + ii
                e(f'v_cvt_pk_bf16_f32 v{G+((0*2+t)*2+nt)*4+ii}, v{CO+j}, -v{SI+j}')
                e(f'v_cvt_pk_bf16_f32 v{G+((1*2+t)*2+nt)*4+ii}, v{SI+j}, v{CO+j}')

def gen_TC(e):
    TC = C_TC
    TH, CO, SI, CO2, SI2 = 112, 120, 128, 136, 144
    e(f's_lshl_b32 s61, s{sGRP}, 2')
    e(f's_add_u32 s61, s61, s{sW}')
    e('s_min_u32 s61, s61, 13')
    e('s_lshl_b32 s61, s61, 4')
    e('v_add_u32 v8, s61, v2')
    e('v_cvt_f32_u32 v8, v8')
    e(f'v_mul_f32 v8, {lit(1.0/448)}, v8')
    e('v_lshlrev_b32 v9, 3, v3')
    e('v_cvt_f32_u32 v9, v9')
    e('v_mul_f32 v9, v9, v8')
    e('v_cmp_eq_u32 vcc, 3, v3')
    e('v_mov_b32 v10, 1.0')
    e('v_mov_b32 v7, 0.5')
    e('v_cndmask_b32 v10, v10, v7, vcc')
    e(f'v_mul_f32 v7, {lit(32.0)}, v8')
    for h in range(2):
        for j in range(4):
            cst = 2 * j + (2 if h == 0 else 1)
            e(f'v_fmamk_f32 v{TH+h*4+j}, v8, {lit(float(cst))}, v9')
    e('v_cos_f32 v12, v7')
    e('v_sin_f32 v13, v7')
    for j in range(8): e(f'v_cos_f32 v{CO+j}, v{TH+j}')
    for j in range(8): e(f'v_sin_f32_e64 v{SI+j}, -v{TH+j}')
    cur = (CO, SI); oth = (CO2, SI2)
    for kp in range(7):
        if kp < 6: rot8(e, cur[0], cur[1], oth[0], oth[1], 12, True)
        else:
            e(f'v_mul_f32 v{cur[0]+3}, v{cur[0]+3}, v10')
            e(f'v_mul_f32 v{cur[1]+3}, v{cur[1]+3}, v10')
        for h, kb in enumerate((kp, kp + 7)):
            e(f'v_cvt_pk_bf16_f32 v{TC+kb*4+0}, v{cur[0]+h*4+0}, v{cur[0]+h*4+1}')
            e(f'v_cvt_pk_bf16_f32 v{TC+kb*4+1}, v{cur[0]+h*4+2}, v{cur[0]+h*4+3}')
            e(f'v_cvt_pk_bf16_f32 v{TC+kb*4+2}, v{cur[1]+h*4+0}, v{cur[1]+h*4+1}')
            e(f'v_cvt_pk_bf16_f32 v{TC+kb*4+3}, v{cur[1]+h*4+2}, v{cur[1]+h*4+3}')
        cur, oth = oth, cur

def code_prefetch_wave(e):
    sk = L('cpf')
    e(f's_cmp_lg_u32 s{sW}, {OPT["cpf"]-1}')
    e(f's_cbranch_scc1 {sk}')
    e('s_getpc_b64 s[52:53]')
    e.label('L_pc')
    e('s_lshr_b32 s54, s2, 3')
    e('s_lshl_b32 s54, s54, 10')
    e('s_cmp_ge_u32 s54, L_fin-L_pc-1024')
    e(f's_cbranch_scc1 {sk}')
    e('v_lshlrev_b32 v5, 4, v1')
    e('v_add_u32 v5, s54, v5')
    e('global_load_dwordx4 a[28:31], v5, s[52:53]')
    e.label(sk)

def code_prefetch_entry(e):
    sk = L('cpf')
    e('s_getpc_b64 s[52:53]')
    e.label('L_pc')
    e('s_lshr_b32 s54, s2, 3')
    e('s_lshl_b32 s54, s54, 10')
    e('s_cmp_ge_u32 s54, L_fin-L_pc-1024')
    e(f's_cbranch_scc1 {sk}')
    e('v_lshlrev_b32 v5, 2, v0')
    e('v_add_u32 v5, s54, v5')
    e('global_load_dword a28, v5, s[52:53]')
    e.label(sk)

A_TA, A_FP, A_ACC, A_X = 16, 72, 96, 128
def phase_a_pre(e):
    e.c('======== phase A (before the kernel arguments arrive)')
    TA, FP, ACC, X = A_TA, A_FP, A_ACC, A_X
    e(f's_lshl_b32 s56, s{sGRP}, 2')
    e(f's_add_u32 s56, s56, s{sW}')
    e('s_min_u32 s57, s56, 13')
    e(f's_lshr_b32 s52, s{sW}, 1')
    e('s_lshl_b32 s52, s52, 10')
    e(f's_add_u32 s52, s52, s{sB}')
    e('v_lshlrev_b32 v4, 6, v2')
    e('v_add_u32 v4, s52, v4')
    e('v_mul_u32_u24 v4, 896, v4')
    e('v_lshlrev_b32 v11, 4, v3')
    e('v_add_u32 v4, v4, v11')
    e(f's_and_b32 s52, s{sW}, 1')
    e('s_mul_i32 s52, s52, 448')
    e('v_add_u32 v4, s52, v4')
    if OPT['early']: gen_TA(e)

def gen_TA(e):
    TA, FP, ACC, X = A_TA, A_FP, A_ACC, A_X
    e('s_cmp_lt_u32 s57, 7')
    e('s_cselect_b32 s52, 2, 1')
    e('s_cselect_b32 s53, 0, 7')
    e('s_sub_u32 s53, s57, s53')
    e('s_lshl_b32 s53, s53, 5')
    e('s_add_u32 s53, s53, s52')
    e('s_cmp_lt_u32 s57, 7')
    e(f's_cselect_b32 s58, {lit(1.0)}, {lit(-1.0)}')
    e('v_lshlrev_b32 v5, 1, v2')
    e('v_add_u32 v5, s53, v5')
    e('v_cvt_f32_u32 v5, v5')
    e(f'v_mul_f32 v5, {lit(1.0/448)}, v5')
    e('v_lshlrev_b32 v6, 3, v3')
    e('v_cvt_f32_u32 v6, v6')
    e('v_mul_f32 v6, v6, v5')
    TH, CO, SI = ACC, ACC + 8, ACC + 16
    CO2, SI2 = X + 32, X + 40
    e(f'v_mul_f32 v7, {lit(32.0)}, v5')
    for j in range(8):
        if j == 0: e(f'v_mov_b32 v{TH+j}, v6')
        else: e(f'v_fmamk_f32 v{TH+j}, v5, {lit(float(j))}, v6')
    e('v_cos_f32 v8, v7')
    e('v_sin_f32 v9, v7')
    for j in range(8): e(f'v_cos_f32 v{CO+j}, v{TH+j}')
    for j in range(8): e(f'v_sin_f32_e64 v{SI+j}, -v{TH+j}')
    cur = (CO, SI); oth = (CO2, SI2)
    for t in range(7):
        if t < 6: rot8(e, cur[0], cur[1], oth[0], oth[1], 8, True)
        for i in range(4): e(f'v_cvt_pk_bf16_f32 v{TA+(t*2+0)*4+i}, v{cur[0]+2*i}, v{cur[0]+2*i+1}')
        for i in range(4): e(f'v_cvt_pk_bf16_f32 v{TA+(t*2+1)*4+i}, v{cur[1]+2*i}, v{cur[1]+2*i+1}')
        cur, oth = oth, cur

XS_TOK = []
def phase_a_loads(e):
    X = A_X
    XS_TOK[:] = [e.vm(f'buffer_load_dwordx4 {vr(X+4*i,4)}, v4, {SX}, 0 offen offset:{64*i}') for i in range(7)]

def phase_a(e):
    e.c('======== phase A')
    TA, FP, ACC, X = A_TA, A_FP, A_ACC, A_X
    xs_tok = XS_TOK
    TH, CO, SI = ACC, ACC + 8, ACC + 16
    stamp(e, 'A.issued')
    if not OPT['early']: gen_TA(e)
    e('s_mov_b32 s52, 0x80008000')
    e(f'v_cvt_f32_u32 v7, s{sB}')
    e(f'v_mul_f32 v7, {lit(1.0/64)}, v7')
    e('v_lshlrev_b32 v8, 2, v3')
    e('v_cvt_f32_u32 v8, v8')
    e('v_add_f32 v8, v8, v7')
    for mt in range(2):
        e(f'v_add_u32 v9, {16*mt}, v2')
        e('v_cvt_f32_u32 v9, v9')
        e(f'v_mul_f32 v9, {lit(1.0/32)}, v9')
        e('v_mul_f32 v10, v9, v8')
        for j in range(8):
            cst = 16 * (j >> 2) + (j & 3)
            if cst == 0: e(f'v_mov_b32 v{TH+j}, v10')
            else: e(f'v_fmamk_f32 v{TH+j}, v9, {lit(float(cst))}, v10')
        for j in range(8): e(f'v_cos_f32 v{CO+j}, v{TH+j}')
        for j in range(8): e(f'v_sin_f32 v{SI+j}, v{TH+j}')
        for i in range(4): e(f'v_cvt_pk_bf16_f32 v{FP+mt*12+i}, v{CO+2*i}, v{CO+2*i+1}')
        for i in range(4): e(f'v_cvt_pk_bf16_f32 v{FP+mt*12+4+i}, v{SI+2*i}, v{SI+2*i+1}')
        for i in range(4): e(f'v_xor_b32 v{FP+mt*12+8+i}, s52, v{FP+mt*12+4+i}')
    if OPT['wpf'] == 2: w_prefetch(e)
    p1_loads(e)
    if OPT['wpf'] == 3: w_prefetch(e)
    stamp(e, 'A.constgen')
    e(f's_mul_i32 s52, s{sW}, 7168')
    e('v_lshlrev_b32 v11, 4, v1')
    e('v_add_u32 v4, s52, v11')
    e('v_mov_b32 v5, 0')
    e('v_mov_b32 v6, 0')
    e('s_mov_b32 s52, 0x3f803f80')
    for i in range(7):
        e.wait_vm(xs_tok[i])
        e.ds(f'ds_write_b128 v4, {vr(X+4*i,4)} offset:{1024*i}')
        for d in range(4):
            e(f'v_dot2_f32_bf16 v5, v{X+4*i+d}, s52, v5')
            e(f'v_dot2_f32_bf16 v6, v{X+4*i+d}, v{X+4*i+d}, v6')
    xsum_groups(e, 5, 7)
    xsum_groups(e, 6, 8)
    e(f's_lshl_b32 s52, s{sW}, 7')
    e('v_lshlrev_b32 v7, 3, v2')
    e('v_add_u32 v7, s52, v7')
    e('v_mov_b32 v8, v5')
    e('v_mov_b32 v9, v6')
    e.ds('ds_write_b64 v7, v[8:9] offset:28672')
    e.wait_ds_all()
    stamp(e, 'A.xstaged')
    e.barrier()
    if OPT['wpf'] == 1: w_prefetch(e)
    e('v_mov_b32 v250, 0')
    nonce_tok = e.vm(f'buffer_load_dword v251, v250, {SDBG}, 0 offen sc1')
    e('v_and_b32 v4, 31, v1')
    e('v_lshrrev_b32 v5, 4, v4')
    e('v_lshlrev_b32 v5, 8, v5')
    e('v_lshlrev_b32 v6, 3, v2')
    e('v_add_u32 v5, v5, v6')
    t0 = e.ds('ds_read_b64 v[6:7], v5 offset:28672')
    t1 = e.ds('ds_read_b64 v[8:9], v5 offset:28800')
    xt = {}
    order = [(half, t, mt) for half in range(2) for t in range(7) for mt in range(2)]
    def xreg(mt, tt): return X + (mt * 14 + tt) * 4
    nread = [0]
    def issue_x():
        half, t, mt = order[nread[0]]
        tt = t + 7 * half
        xt[(half, t, mt)] = e.ds(f'ds_read_b128 {vr(xreg(mt,tt),4)}, v11 offset:{(mt*14+tt)*1024}')
        nread[0] += 1
    for _ in range(8): issue_x()
    e.wait_ds(t1)
    e('v_add_f32 v6, v6, v8')
    e('v_add_f32 v7, v7, v9')
    e(f'v_mul_f32 v6, {lit(1.0/448)}, v6')
    e(f'v_mul_f32 v7, {lit(1.0/448)}, v7')
    e('v_fma_f32 v7, -v6, v6, v7')
    e('v_max_f32 v7, 0, v7')
    e(f'v_add_f32 v7, {lit(1e-5)}, v7')
    e('v_rsq_f32 v7, v7')
    e(f's_lshl_b32 s52, s{sW}, 7')
    e('v_lshlrev_b32 v8, 2, v4')
    e('v_add_u32 v9, s52, v8')
    e.ds('ds_write_b32 v9, v7 offset:29184')
    nm = L('nomean')
    e(f's_or_b32 s52, s{sGRP}, s{sW}')
    e('s_cmp_lg_u32 s52, 0')
    e(f's_cbranch_scc1 {nm}')
    e(f's_lshl_b32 s52, s{sB}, 7')
    e(f's_add_u32 s52, s52, 0x{ST1_OFF:x}')
    e(f'buffer_store_dword v6, v8, {SWS}, s52 offen sc1')
    e.label(nm)
    e(f's_lshl_b32 s52, s{sW}, 7')
    e('v_lshlrev_b32 v9, 4, v3')
    e('v_add_u32 v9, s52, v9')
    RR = 240
    tr0 = e.ds(f'ds_read_b128 {vr(RR,4)}, v9 offset:29184')
    tr1 = e.ds(f'ds_read_b128 {vr(RR+4,4)}, v9 offset:29248')
    def acc(mt, c, half): return ACC + ((mt * 2 + c) * 2 + half) * 4
    for (half, t, mt) in order:
        if nread[0] < len(order): issue_x()
        e.wait_ds(xt[(half, t, mt)])
        tt = t + 7 * half
        for c in range(2):
            a = acc(mt, c, half)
            e(f'v_mfma_f32_16x16x32_bf16 {vr(a,4)}, {vr(xreg(mt,tt),4)}, {vr(TA+(t*2+c)*4,4)}, {"0" if t == 0 else vr(a,4)}')
    e.wait_ds(tr1)
    stamp(e, 'A.mfma')
    BF = X; TMP = X + 8
    for c in range(2):
        for mt in range(2):
            for r in range(4): e(f'v_fma_f32 v{TMP+mt*4+r}, v{acc(mt,c,1)+r}, s58, v{acc(mt,c,0)+r}')
            for r in range(4): e(f'v_mul_f32 v{TMP+mt*4+r}, v{TMP+mt*4+r}, v{RR+mt*4+r}')
        for mt in range(2):
            for i in range(2):
                e(f'v_cvt_pk_bf16_f32 v{BF+c*4+mt*2+i}, v{TMP+mt*4+2*i}, v{TMP+mt*4+2*i+1}')
    TT = X + 16
    for mt in range(2):
        C, Sp, Sn = FP + mt * 12, FP + mt * 12 + 4, FP + mt * 12 + 8
        e(f'v_mfma_f32_16x16x32_bf16 {vr(TT+mt*8,4)}, {vr(C,4)}, {vr(BF,4)}, 0')
        e(f'v_mfma_f32_16x16x32_bf16 {vr(TT+mt*8+4,4)}, {vr(Sn,4)}, {vr(BF,4)}, 0')
        e(f'v_mfma_f32_16x16x32_bf16 {vr(TT+mt*8,4)}, {vr(Sp,4)}, {vr(BF+4,4)}, {vr(TT+mt*8,4)}')
        e(f'v_mfma_f32_16x16x32_bf16 {vr(TT+mt*8+4,4)}, {vr(C,4)}, {vr(BF+4,4)}, {vr(TT+mt*8+4,4)}')
    e('s_mov_b32 s52, %d' % (4 * 57344))
    e('v_mul_lo_u32 v4, v3, s52')
    e('v_lshlrev_b32 v5, 2, v2')
    e('v_add_u32 v4, v4, v5')
    e('s_lshl_b32 s52, s56, 12')
    e(f's_lshl_b32 s53, s{sB}, 6')
    e('s_add_u32 s52, s52, s53')
    OUT = X + 40
    for mt in range(2):
        for r in range(4): e(f'v_cvt_pk_bf16_f32 v{OUT+mt*4+r}, v{TT+mt*8+r}, v{TT+mt*8+4+r}')
    ns = L('nostoreA')
    e('s_cmp_ge_u32 s56, 14')
    e(f's_cbranch_scc1 {ns}')
    for mt in range(2):
        for r in range(4):
            e(f's_add_u32 s53, s52, {T1_OFF + (16*mt+r)*57344}')
            e(f'buffer_store_dword v{OUT+mt*4+r}, v4, {SWS}, s53 offen sc1')
    e.label(ns)
    stamp(e, 'A.stored')
    e.wait_vm_all()
    sk, lp, dn = L('nsk'), L('nlp'), L('ndn')
    e(f's_cmp_lg_u32 s{sW}, 0')
    e(f's_cbranch_scc1 {sk}')
    e(f's_mov_b32 s{sSPIN}, 0')
    e.label(lp)
    e(f'v_readfirstlane_b32 s{sNONCE}, v251')
    e('s_nop 1')
    e(f's_cmp_lg_u32 s{sNONCE}, 0')
    e(f's_cbranch_scc1 {dn}')
    e(f'buffer_load_dword v251, v250, {SDBG}, 0 offen sc1')
    e('s_waitcnt vmcnt(0)')
    e(f's_add_u32 s{sSPIN}, s{sSPIN}, 1')
    e(f's_cmp_lt_u32 s{sSPIN}, {MAXSPIN}')
    e(f's_cbranch_scc1 {lp}')
    e.label(dn)
    e.label(sk)
    stamp(e, 'A.drained')
    skn = L('nb')
    e(f's_cmp_lg_u32 s{sW}, 0')
    e(f's_cbranch_scc1 {skn}')
    e(f'v_mov_b32 v14, s{sNONCE}')
    e('v_mov_b32 v15, 29696')
    e('ds_write_b32 v15, v14')
    e('s_waitcnt lgkmcnt(0)')
    e.label(skn)
    signal(e, 0)
    e('v_mov_b32 v15, 29696')
    e('ds_read_b32 v14, v15')
    e('s_waitcnt lgkmcnt(0)')
    e(f'v_readfirstlane_b32 s{sNONCE}, v14')

def phase_p2(e):
    e.c('======== P2 (w2 re-layout)')
    done = L('p2done'); nojob = L('p2none')
    e('s_cmp_ge_u32 s2, 252')
    e(f's_cbranch_scc1 {nojob}')
    e('s_sub_u32 s56, s2, 224')
    e('s_waitcnt vmcnt(0)')
    e.barrier()
    e.vm_issued = e.vm_done = 0
    e('s_mul_i32 s52, s56, 57344')
    e('v_lshlrev_b32 v4, 4, v0')
    toks = []
    for i in range(14):
        e(f's_add_u32 s53, s52, {i*4096}')
        toks.append(e.vm(f'buffer_load_dwordx4 {vr(16+4*i,4)}, v4, {SW2}, s53 offen'))
    for i in range(14):
        e(f'v_add_u32 v5, {i*256}, v0')
        e('v_mul_u32_u24 v6, 18725, v5')
        e('v_lshrrev_b32 v6, 20, v6')
        e('v_lshlrev_b32 v6, 5, v6')
        e('v_lshlrev_b32 v5, 4, v5')
        e(f'v_add_u32 v{80+i}, v5, v6')
        e(f'v_add_u32 v{80+i}, {LDS_STAGE}, v{80+i}')
    stamp(e, 'P2.issued')
    gen_TC(e)
    gen_G(e)
    for i in range(14):
        e.wait_vm(toks[i])
        e.ds(f'ds_write_b128 v{80+i}, {vr(16+4*i,4)}')
    e.wait_ds_all()
    stamp(e, 'P2.lds')
    e.barrier()
    e('v_lshrrev_b32 v4, 1, v3')
    e('v_lshlrev_b32 v4, 2, v4')
    e('v_lshrrev_b32 v5, 2, v2')
    e('v_add_u32 v4, v4, v5')
    e(f's_lshl_b32 s53, s{sW}, 4')
    e('v_add_u32 v4, s53, v4')
    e('v_mul_u32_u24 v4, 928, v4')
    e('v_and_b32 v5, 1, v3')
    e('v_lshlrev_b32 v5, 4, v5')
    e('v_add_u32 v4, v4, v5')
    e('v_and_b32 v5, 1, v2')
    e('v_lshlrev_b32 v5, 3, v5')
    e('v_add_u32 v4, v4, v5')
    e('v_bfe_u32 v5, v2, 1, 1')
    e('v_mul_u32_u24 v5, 448, v5')
    e('v_add_u32 v4, v4, v5')
    e(f'v_add_u32 v4, {LDS_STAGE}, v4')
    e('v_lshlrev_b32 v5, 4, v1')
    for j in range(14):
        R = 16 + 4 * j
        e.ds(f'ds_read_b64_tr_b16 {vr(R,2)}, v4 offset:{32*j}')
        e.ds(f'ds_read_b64_tr_b16 {vr(R+2,2)}, v4 offset:{32*j + 8*928}')
    e.wait_ds_all()
    e('s_lshl_b32 s53, s56, 2')
    e(f's_add_u32 s53, s53, s{sW}')
    e('s_lshl_b32 s53, s53, 10')
    e(f's_add_u32 s53, s53, 0x{W2_OFF:x}')
    for j in range(14):
        e(f's_add_u32 s54, s53, {j*112*1024}')
        e.vm(f'buffer_store_dwordx4 {vr(16+4*j,4)}, v5, {SWS}, s54 offen sc1')
    stamp(e, 'P2.stored')
    e(f's_branch {done}')
    e.label(nojob)
    gen_TC(e)
    gen_G(e)
    e.label(done)
    e.wait_vm_all()
    stamp(e, 'P2.drained')
assert all(((p * 18725) >> 20) == p // 56 for p in range(3584)), "magic /56"

def phase_b(e):
    e.c('======== window 1 + phase B')
    e('s_and_b32 s56, s2, 7')
    e('s_lshr_b32 s57, s2, 3')
    e('s_mul_i32 s52, s57, 37')
    e('s_lshr_b32 s52, s52, 8')
    e('s_mul_i32 s53, s52, 7')
    e('s_sub_u32 s53, s57, s53')
    e('s_lshl_b32 s52, s52, 3')
    e('s_add_u32 s56, s56, s52')
    e('s_lshl_b32 s53, s53, 1')
    e(f's_lshr_b32 s54, s{sW}, 1')
    e('s_add_u32 s57, s53, s54')
    e('s_lshr_b32 s59, s53, 2')
    e(f's_and_b32 s58, s{sW}, 1')
    FC, FS, FN = 16, 32, 48
    TIN, BF, WR, WI, XA, YR, YI, YF = 64, 80, 96, 104, 112, 128, 136, 144
    e('s_cmp_lt_u32 s57, 7')
    e('s_cselect_b32 s52, 2, 1')
    e('s_cselect_b32 s53, 0, 7')
    e('s_sub_u32 s53, s57, s53')
    e('s_lshl_b32 s53, s53, 5')
    e('s_add_u32 s53, s53, s52')
    e('v_lshlrev_b32 v6, 1, v2')
    e('v_add_u32 v6, s53, v6')
    e('v_lshlrev_b32 v6, 1, v6')
    e('v_lshlrev_b32 v7, 7, v3')
    e('s_lshl_b32 s52, s58, 10')
    e('s_add_u32 s52, s52, s56')
    e('v_add_u32 v7, s52, v7')
    e('v_mul_u32_u24 v7, 450, v7')
    e('v_add_u32 v6, v6, v7')
    wtok = {}
    for mtl in range(2):
        for r in range(4):
            e(f's_mov_b32 s52, {(16*mtl+r)*14400}')
            e.vm(f'buffer_load_short_d16_hi v{WR+mtl*4+r}, v6, {SWR}, s52 offen')
            wtok[(mtl, r)] = e.vm(f'buffer_load_short_d16_hi v{WI+mtl*4+r}, v6, {SWI}, s52 offen')
    CO, SI, TH = 160, 176, 192
    groups = []
    main = []
    em = main.append
    em('s_lshl_b32 s52, s58, 5')
    em('v_add_u32 v8, s52, v2')
    em('v_cvt_f32_u32 v8, v8')
    em(f'v_mul_f32 v8, {lit(1.0/64)}, v8')
    em('v_lshlrev_b32 v9, 2, v3')
    for tt in range(2):
        em(f's_xor_b32 s52, s58, {tt}')
        em('s_lshl_b32 s52, s52, 5')
        em('v_add_u32 v10, s52, v9')
        em('v_cvt_f32_u32 v10, v10')
        em('v_mul_f32 v10, v10, v8')
        for j in range(8):
            cst = 16 * (j >> 2) + (j & 3)
            if cst == 0: em(f'v_mov_b32 v{TH+j}, v10')
            else: em(f'v_fmamk_f32 v{TH+j}, v8, {lit(float(cst))}, v10')
        for j in range(8): em(f'v_cos_f32 v{CO+tt*8+j}, v{TH+j}')
        for j in range(8): em(f'v_sin_f32 v{SI+tt*8+j}, v{TH+j}')
    def rot(kind, t, j, mt):
        qt = (mt * (j & 3)) & 3
        c, s = f'v{CO+t*8+j}', f'v{SI+t*8+j}'
        if kind == 'C': return [c, '-' + s, '-' + c, s][qt]
        if kind == 'S': return [s, c, '-' + s, '-' + c][qt]
        if kind == 'N': return ['-' + s, '-' + c, s, c][qt]
    for kind, base in (('C', FC), ('S', FS), ('N', FN)):
        for mtl in range(2):
            for tt in range(2):
                for i in range(4):
                    em(f'v_cvt_pk_bf16_f32 v{base+(mtl*2+tt)*4+i}, {rot(kind,tt,2*i,mtl)}, {rot(kind,tt,2*i+1,mtl)}')
    emit_interleaved(e, main, groups)
    if not OPT['p1slot']: p1_finish(e)
    stamp(e, 'W1.p1')
    e('s_mul_i32 s60, s56, 14')
    e('s_add_u32 s60, s60, s57')
    e('s_lshl_b32 s60, s60, 12')
    e(f's_add_u32 s60, s60, 0x{T1_OFF:x}')
    e('v_lshlrev_b32 v11, 8, v3')
    e('v_lshlrev_b32 v10, 2, v2')
    e('v_add_u32 v11, v11, v10')
    stamp(e, 'W1.ready')
    def idx(e):
        e('v_and_b32 v5, 7, v1')
        e('v_lshrrev_b32 v6, 3, v1')
        e('v_lshlrev_b32 v6, 5, v6')
        e('v_add_u32 v5, v5, v6')
        e('s_lshl_b32 s53, s59, 3')
        e('v_add_u32 v5, s53, v5')
        e('v_lshlrev_b32 v5, 6, v5')
    poll(e, 0, 64, idx)
    stamp(e, 'B.go')
    tin = {}
    for tt in range(2):
        e(f's_xor_b32 s52, s58, {tt}')
        e('s_lshl_b32 s52, s52, 11')
        e('s_add_u32 s52, s52, s60')
        for j in range(8):
            off = (16 * (j >> 2) + (j & 3)) * 64
            tin[(tt, j)] = e.vm(f'buffer_load_dword v{TIN+tt*8+j}, v11, {SWS}, s52 offen offset:{off} sc1')
    if OPT['p1slot']: p1_finish(e, R=112)
    else: gen_G(e)
    e('s_mov_b32 s52, 0x05040100')
    e('s_mov_b32 s53, 0x07060302')
    for tt in range(2):
        e.wait_vm(tin[(tt, 7)])
        for i in range(4):
            e(f'v_perm_b32 v{BF+tt*4+i}, v{TIN+tt*8+2*i+1}, v{TIN+tt*8+2*i}, s52')
            e(f'v_perm_b32 v{BF+8+tt*4+i}, v{TIN+tt*8+2*i+1}, v{TIN+tt*8+2*i}, s53')
    stamp(e, 'B.loaded')
    def fr(base, mtl, tt): return vr(base + (mtl * 2 + tt) * 4, 4)
    def mm(d, a, b, first): e(f'v_mfma_f32_16x16x32_bf16 {vr(d,4)}, {a}, {vr(b,4)}, {"0" if first else vr(d,4)}')
    BRE = lambda t: BF + t * 4
    BIM = lambda t: BF + 8 + t * 4
    for step in range(4):
        for mtl in range(2):
            xr, xi = XA + mtl * 8, XA + mtl * 8 + 4
            tt = step & 1
            if step < 2:
                mm(xr, fr(FC, mtl, tt), BRE(tt), step == 0); mm(xi, fr(FN, mtl, tt), BRE(tt), step == 0)
            else:
                mm(xr, fr(FS, mtl, tt), BIM(tt), False); mm(xi, fr(FC, mtl, tt), BIM(tt), False)
    e.wait_vm(wtok[(1, 3)])
    for mtl in range(2):
        for r in range(4):
            xr, xi = XA + mtl * 8 + r, XA + mtl * 8 + 4 + r
            wr, wi = WR + mtl * 4 + r, WI + mtl * 4 + r
            e(f'v_mul_f32 v{YR+mtl*4+r}, v{xr}, v{wr}')
            e(f'v_mul_f32 v{YI+mtl*4+r}, v{xr}, v{wi}')
            e(f'v_fma_f32 v{YR+mtl*4+r}, -v{xi}, v{wi}, v{YR+mtl*4+r}')
            e(f'v_fma_f32 v{YI+mtl*4+r}, v{xi}, v{wr}, v{YI+mtl*4+r}')
    for c, src in ((0, YR), (1, YI)):
        for i in range(4):
            e(f'v_cvt_pk_bf16_f32 v{YF+c*8+i}, v{src+(i>>1)*4+2*(i&1)}, v{src+(i>>1)*4+2*(i&1)+1}')
    e('v_lshlrev_b32 v10, 4, v1')
    e(f's_lshl_b32 s52, s{sW}, 11')
    e('v_add_u32 v12, s52, v10')
    e(f's_xor_b32 s52, s{sW}, 1')
    e('s_lshl_b32 s52, s52, 11')
    e('v_add_u32 v13, s52, v10')
    e.ds(f'ds_write_b128 v12, {vr(YF,4)}')
    e.ds(f'ds_write_b128 v12, {vr(YF+8,4)} offset:1024')
    e.wait_ds_all()
    e.barrier()
    p0 = e.ds(f'ds_read_b128 {vr(YF+4,4)}, v13')
    p1_ = e.ds(f'ds_read_b128 {vr(YF+12,4)}, v13 offset:1024')
    YRE = lambda t: YF + t * 4
    YIM = lambda t: YF + 8 + t * 4
    for mtl in range(2):
        xr, xi = XA + mtl * 8, XA + mtl * 8 + 4
        mm(xr, fr(FC, mtl, 0), YRE(0), True);  mm(xi, fr(FS, mtl, 0), YRE(0), True)
        mm(xr, fr(FN, mtl, 0), YIM(0), False); mm(xi, fr(FC, mtl, 0), YIM(0), False)
    e.wait_ds(p1_)
    for mtl in range(2):
        xr, xi = XA + mtl * 8, XA + mtl * 8 + 4
        mm(xr, fr(FC, mtl, 1), YRE(1), False); mm(xi, fr(FS, mtl, 1), YRE(1), False)
        mm(xr, fr(FN, mtl, 1), YIM(1), False); mm(xi, fr(FC, mtl, 1), YIM(1), False)
    e('s_mov_b32 s52, %d' % (4 * 28672))
    e('v_mul_lo_u32 v4, v3, s52')
    e('v_lshlrev_b32 v5, 2, v2')
    e('v_add_u32 v4, v4, v5')
    e('s_lshl_b32 s52, s57, 11')
    e('s_lshl_b32 s53, s56, 6')
    e('s_add_u32 s52, s52, s53')
    e(f's_mul_i32 s53, s58, {32*28672}')
    e('s_add_u32 s52, s52, s53')
    last = None
    for mtl in range(2):
        for r in range(4): e(f'v_cvt_pk_bf16_f32 v{TIN+mtl*4+r}, v{XA+mtl*8+r}, v{XA+mtl*8+4+r}')
        for r in range(4):
            e(f's_add_u32 s53, s52, {T2_OFF + (16*mtl+r)*28672}')
            last = e.vm(f'buffer_store_dword v{TIN+mtl*4+r}, v4, {SWS}, s53 offen sc1')
    stamp(e, 'B.stored')
    e.wait_vm_all()
    stamp(e, 'B.drained')

def phase_c(e):
    e.c('======== window 2 + phase C')
    e(f's_lshl_b32 s56, s{sGRP}, 2')
    e(f's_add_u32 s56, s56, s{sW}')
    e('s_min_u32 s57, s56, 13')
    G, TC, AIN, VA, PA, XR = C_G, C_TC, 104, 136, 48, 64
    MEAN = XR + 8
    e('v_lshlrev_b32 v5, 6, v2')
    e(f'v_add_u32 v5, s{sB}, v5')
    e('v_mul_u32_u24 v5, 896, v5')
    e('v_lshlrev_b32 v6, 3, v3')
    e('v_add_u32 v5, v5, v6')
    e('s_lshl_b32 s52, s57, 5')
    e('v_add_u32 v5, s52, v5')
    for nt in range(2):
        for pm in range(2):
            e(f's_mov_b32 s52, {nt*16*64*896}')
            e.vm(f'buffer_load_dwordx2 {vr(XR+(nt*2+pm)*2,2)}, v5, {SX}, s52 offen offset:{448*pm}')
    e('v_lshlrev_b32 v12, 2, v1')
    stamp(e, 'W2.ready')
    def idx(e): e('v_lshlrev_b32 v5, 6, v1')
    poll(e, 1, 256, idx, preg=16)
    stamp(e, 'C.go')
    w13_setup(e)
    WG = w13_load_groups()
    wgi = [0]
    def wload(n):
        for _ in range(n):
            if wgi[0] < len(WG):
                emit_groups(e, [WG[wgi[0]]]); wgi[0] += 1
    atok = {}
    for i in range(4):
        e(f's_add_u32 s52, s{sW}, {4*i}')
        e('s_min_u32 s52, s52, 13')
        e(f's_mul_i32 s53, s{sB}, 14')
        e('s_add_u32 s52, s52, s53')
        e('s_lshl_b32 s52, s52, 11')
        e(f's_add_u32 s52, s52, 0x{T2_OFF:x}')
        for t in range(2):
            for ii in range(4):
                atok[(i, t, ii)] = e.vm(f'buffer_load_dword v{AIN+i*8+t*4+ii}, v12, {SWS}, s52 offen offset:{(16*t+4*ii)*64} sc1')
    e('v_lshlrev_b32 v6, 2, v2')
    e(f's_lshl_b32 s52, s{sB}, 7')
    e(f's_add_u32 s52, s52, 0x{ST1_OFF:x}')
    mtok = [e.vm(f'buffer_load_dword v{MEAN+nt}, v6, {SWS}, s52 offen offset:{64*nt} sc1') for nt in range(2)]
    e('v_lshlrev_b32 v11, 4, v1')
    e(f's_lshl_b32 s52, s{sW}, 11')
    e('v_add_u32 v12, s52, v11')
    PK = 76
    for i in range(4):
        e.wait_vm(atok[(i, 1, 3)])
        if i == 0: stamp(e, 'C.loaded')
        for nt in range(2):
            for out in range(2):
                d = VA + (out * 2 + nt) * 4
                e(f'v_mfma_f32_16x16x32_bf16 {vr(d,4)}, {vr(AIN+i*8,4)}, {vr(G+((out*2+0)*2+nt)*4,4)}, 0')
        for nt in range(2):
            for out in range(2):
                d = VA + (out * 2 + nt) * 4
                e(f'v_mfma_f32_16x16x32_bf16 {vr(d,4)}, {vr(AIN+i*8+4,4)}, {vr(G+((out*2+1)*2+nt)*4,4)}, {vr(d,4)}')
        sk = L('skip3')
        if i == 3:
            e(f's_cmp_ge_u32 s{sW}, 2')
            e(f's_cbranch_scc1 {sk}')
        for nt in range(2):
            p = PK + nt * 4 + (i & 1) * 8
            vre, vim = VA + (0 * 2 + nt) * 4, VA + (1 * 2 + nt) * 4
            e(f'v_cvt_pk_bf16_f32 v{p+0}, v{vre+0}, v{vre+1}')
            e(f'v_cvt_pk_bf16_f32 v{p+1}, v{vre+2}, v{vre+3}')
            e(f'v_cvt_pk_bf16_f32 v{p+2}, v{vim+0}, v{vim+1}')
            e(f'v_cvt_pk_bf16_f32 v{p+3}, v{vim+2}, v{vim+3}')
            e.ds(f'ds_write_b128 v12, {vr(p,4)} offset:{(4*i*2+nt)*1024}')
        if i == 3: e.label(sk)
        wload(OPT['st1'])
    e.wait_ds_all()
    stamp(e, 'C.st1')
    e.barrier()
    VB = 16
    order = [(kb, nt) for kb in range(14) for nt in range(2)]
    tok = {}
    nread = [0]
    def issue():
        kb, nt = order[nread[0]]
        tok[nread[0]] = e.ds(f'ds_read_b128 {vr(VB+(nread[0]%8)*4,4)}, v11 offset:{(kb*2+nt)*1024}')
        nread[0] += 1
    for _ in range(7): issue()
    for idx_, (kb, nt) in enumerate(order):
        e.wait_ds(tok[idx_])
        par = 0 if kb < 7 else 1
        d = PA + (par * 2 + nt) * 4
        first = kb in (0, 7)
        e(f'v_mfma_f32_16x16x32_bf16 {vr(d,4)}, {vr(TC+kb*4,4)}, {vr(VB+(idx_%8)*4,4)}, {"0" if first else vr(d,4)}')
        if nread[0] < len(order): issue()
        if OPT['st2'] and idx_ % OPT['st2'] == OPT['st2'] - 1: wload(1)
    stamp(e, 'C.st2')
    e.wait_vm(mtok[1])
    H, HP, CP, SQ = 104, 120, 128, 92
    e('s_mov_b32 s52, 0xffff0000')
    for nt in range(2):
        pe, po = PA + nt * 4, PA + 8 + nt * 4
        for pm in range(2):
            xr = XR + (nt * 2 + pm) * 2
            for r in range(4):
                hv = H + (nt * 2 + pm) * 4 + r
                e(f'{"v_add_f32" if pm == 0 else "v_sub_f32"} v{hv}, v{pe+r}, v{po+r}')
                xv = 96 + r
                if r & 1: e(f'v_and_b32 v{xv}, s52, v{xr+(r>>1)}')
                else: e(f'v_lshlrev_b32 v{xv}, 16, v{xr+(r>>1)}')
            for r in range(4):
                hv = H + (nt * 2 + pm) * 4 + r
                e(f'v_add_f32 v{hv}, v{hv}, v{96+r}')
            for i in range(2):
                hv = H + (nt * 2 + pm) * 4 + 2 * i
                e(f'v_cvt_pk_bf16_f32 v{HP+nt*4+pm*2+i}, v{hv}, v{hv+1}')
        e(f'v_mov_b32 v{SQ+nt}, 0')
        for q in range(4):
            hp = HP + nt * 4 + q
            e(f'v_lshlrev_b32 v100, 16, v{hp}')
            e(f'v_and_b32 v101, s52, v{hp}')
            e(f'v_sub_f32 v100, v100, v{MEAN+nt}')
            e(f'v_sub_f32 v101, v101, v{MEAN+nt}')
            e(f'v_fma_f32 v{SQ+nt}, v100, v100, v{SQ+nt}')
            e(f'v_fma_f32 v{SQ+nt}, v101, v101, v{SQ+nt}')
            e(f'v_cvt_pk_bf16_f32 v{CP+nt*4+q}, v100, v101')
            wload(OPT['epi'])
    e('v_lshrrev_b32 v4, 1, v3')
    e('v_lshlrev_b32 v4, 10, v4')
    e('v_and_b32 v5, 1, v3')
    e('v_lshlrev_b32 v5, 9, v5')
    e('v_add_u32 v4, v4, v5')
    e('v_lshlrev_b32 v5, 4, v2')
    e('v_add_u32 v4, v4, v5')
    e(f's_mul_i32 s52, s{sB}, 28')
    e('s_lshl_b32 s53, s57, 1')
    e('s_add_u32 s52, s52, s53')
    e('s_lshl_b32 s52, s52, 10')
    ns, st = L('cnostore'), L('cstat')
    e('s_cmp_ge_u32 s56, 14')
    e(f's_cbranch_scc1 {ns}')
    e(f's_add_u32 s53, s52, 0x{HC_OFF:x}')
    e(f's_add_u32 s54, s52, 0x{HR_OFF:x}')
    for nt in range(2):
        e(f'buffer_store_dwordx4 {vr(CP+nt*4,4)}, v4, {SWS}, s53 offen offset:{256*nt} sc1')
        e(f'buffer_store_dwordx4 {vr(HP+nt*4,4)}, v4, {SWS}, s54 offen offset:{256*nt} sc1')
    e.label(ns)
    for nt in range(2): xsum_groups(e, SQ + nt, 102)
    e('s_cmp_lt_u32 s56, 14')
    e(f's_cbranch_scc1 {st}')
    e(f'v_mov_b32 v{SQ}, 0')
    e(f'v_mov_b32 v{SQ+1}, 0')
    e.label(st)
    e('v_cmp_le_u32 vcc, 16, v1')
    e(f'v_cndmask_b32 v{SQ}, v{SQ}, v{SQ+1}, vcc')
    e('v_lshlrev_b32 v5, 2, v1')
    e(f's_lshl_b32 s52, s{sB}, 11')
    e('s_lshl_b32 s53, s56, 7')
    e('s_add_u32 s52, s52, s53')
    e(f's_add_u32 s52, s52, 0x{ST2_OFF:x}')
    e('s_mov_b64 exec, 0xffffffff')
    last = e.vm(f'buffer_store_dword v{SQ}, v5, {SWS}, s52 offen sc1')
    e('s_mov_b64 exec, -1')
    stamp(e, 'C.stored')
    wload(OPT['post'])
    e.wait_vm(last)
    stamp(e, 'C.drained')
    signal(e, 2)
    global W13_PENDING
    W13_PENDING = (WG, wgi)

NV, NE = 27, 35
def w2reg(mi, s_):
    o = 2 * s_ + mi
    if o < NV: return vr(144 + 4 * o, 4), None
    if o < NE: return ar(224 + 4 * (o - NV), 4), None
    oo = o - NE
    return ar(((oo & 1) * 28 + (oo >> 1)) * 4, 4), (oo & 1, oo >> 1)

def phase_g(e):
    e.c('======== window 3 + G1')
    WG, wgi = W13_PENDING
    wtok = {}
    for _ in range(min(OPT['w3'], len(WG) - wgi[0])):
        wtok[wgi[0]] = emit_groups(e, [WG[wgi[0]]]); wgi[0] += 1
    e('v_lshlrev_b32 v4, 4, v1')
    e(f's_lshl_b32 s56, s{sC}, 3')
    e(f's_lshl_b32 s52, s{sW}, 1')
    e('s_add_u32 s56, s56, s52')
    e(f's_lshl_b32 s57, s{sR}, 2')
    e('s_and_b32 s58, s2, 7')
    e('s_lshr_b32 s59, s2, 3')
    e('s_mul_i32 s52, s59, 37')
    e('s_lshr_b32 s52, s52, 8')
    e('s_mul_i32 s53, s52, 7')
    e('s_sub_u32 s59, s59, s53')
    e('s_lshl_b32 s52, s52, 3')
    e('s_add_u32 s58, s58, s52')
    e(f's_mul_i32 s52, s{sW}, 28')
    e(f's_and_b32 s54, s{sW}, 1')
    for mi in range(2):
        e(f's_xor_b32 s53, s54, {mi}')
        e('s_lshl_b32 s55, s59, 1')
        e('s_add_u32 s53, s53, s55')
        e('s_mul_i32 s53, s53, 112')
        e('s_add_u32 s53, s53, s52')
        e('s_lshl_b32 s53, s53, 10')
        e(f's_add_u32 s{60+mi}, s53, 0x{W2_OFF:x}')
    e(f's_lshr_b32 s53, s{sW}, 1')
    e('s_lshl_b32 s53, s53, 4')
    e('v_xor_b32 v10, s53, v1')
    e('v_lshlrev_b32 v10, 4, v10')
    e('v_min_u32 v8, 13, v1')
    e('v_lshrrev_b32 v9, 1, v8')
    e('v_and_b32 v8, 1, v8')
    e('v_lshlrev_b32 v8, 7, v8')
    e('v_add_u32 v8, v8, v9')
    e('s_lshr_b32 s53, s58, 1')
    e('s_lshl_b32 s53, s53, 3')
    e('v_add_u32 v8, s53, v8')
    e('v_lshlrev_b32 v8, 6, v8')
    def grp_off(dst, g):
        if not OPT['g2rot']: return [f's_mov_b32 s{dst}, {g*4096}']
        return [f's_add_u32 s{dst}, s59, {g}', f's_cmp_ge_u32 s{dst}, 7', f's_cselect_b32 s55, 7, 0',
                f's_sub_u32 s{dst}, s{dst}, s55', f's_lshl_b32 s{dst}, s{dst}, 12']
    def w2load(o):
        s_, mi = o >> 1, o & 1
        reg, dep = w2reg(mi, s_)
        pre = []
        if s_ % 4 == 0 and mi == 0:
            pre = grp_off(62, s_ // 4) + ['s_add_u32 s63, s61, s62', 's_add_u32 s62, s60, s62']
        return pre + [('vm', f'buffer_load_dwordx4 {reg}, v10, {SWS}, s{62+mi} offen offset:{(s_%4)*1024} sc1')]
    def idx(e):
        e('v_lshrrev_b32 v5, 2, v1')
        e('v_add_u32 v5, s57, v5')
        e('v_and_b32 v6, 7, v5')
        e('v_lshrrev_b32 v5, 3, v5')
        e('v_lshlrev_b32 v5, 5, v5')
        e('v_add_u32 v5, v5, v6')
        e('v_and_b32 v6, 3, v1')
        e('v_lshlrev_b32 v6, 3, v6')
        e('v_add_u32 v5, v5, v6')
        e('v_lshlrev_b32 v5, 6, v5')
        idxw(e, 16)
    def idxw(e, first):
        e(f'v_add_u32 v6, {208 if first == 16 else 224}, v1')
        e('v_lshlrev_b32 v6, 6, v6')
        e(f'v_add_u32 v6, {2*0x40000}, v6')
        if first:
            e(f'v_cmp_le_u32 vcc, {first}, v1')
            e('v_cndmask_b32 v5, v5, v6, vcc')
        else:
            e('v_mov_b32 v5, v6')
    e(f's_cmp_ge_u32 s{sC}, 14')
    e('s_cbranch_scc1 L_g2only')
    poll(e, 2, 44, idx)
    stamp(e, 'G1.go')
    ACC, BR, RRG, T = 64, 16, 48, 128
    ST = 208
    dtok = {}
    e(f's_mul_i32 s96, s{sW}, 7168')
    e(f's_add_u32 s98, s{sR}, s{sW}')
    e('s_and_b32 s98, s98, 3')
    e('s_mul_i32 s98, s98, 7168')
    def hc_groups(nt):
        gs = []
        for i in range(7):
            g = []
            if i == 0:
                g += [f's_add_u32 s97, s57, {nt}', 's_mul_i32 s97, s97, 28672', 's_add_u32 s97, s97, s98', f's_add_u32 s97, s97, 0x{HC_OFF:x}']
            if i == 4: g += ['s_add_u32 s97, s97, 4096']
            if i in (0, 4): g += [f's_add_u32 m0, s96, {nt*28672 + (4096 if i == 4 else 0)}']
            g.append(('vm', f'buffer_load_dwordx4 v4, {SWS}, s97 offen offset:{(i%4)*1024} sc1 lds', ('hc', nt)))
            gs.append(g)
        return gs
    STK = []; STORES = []
    def emit_op(op):
        if isinstance(op, tuple) and op[0] == 'ds':
            STK.append(e.ds(op[1])); return None
        if isinstance(op, tuple) and op[0] == 'dswait':
            e.wait_ds(STK[op[1] * 8 + 7]); return None
        if isinstance(op, tuple):
            t = e.vm(op[1])
            if len(op) > 2:
                if op[2][0] == 'store': STORES.append(t)
                if op[2][0] == 'hc': dtok[op[2][1]] = t
                if op[2][0] == 'st': dtok['st'] = t
            return t
        e(op); return None
    for g in hc_groups(0):
        for op in g: emit_op(op)
    e(f's_add_u32 s54, s57, s{sW}')
    e('s_lshl_b32 s54, s54, 11')
    e(f's_add_u32 s54, s54, 0x{ST2_OFF:x}')
    e(f's_lshl_b32 s55, s{sW}, 11')
    e(f's_add_u32 m0, s55, {LDS_STATS}')
    e.vm(f'buffer_load_dwordx4 v4, {SWS}, s54 offen sc1 lds')
    dtok[0] = e.vm(f'buffer_load_dwordx4 v4, {SWS}, s54 offen offset:1024 sc1 lds')
    while wgi[0] < len(WG):
        wtok[wgi[0]] = emit_groups(e, [WG[wgi[0]]]); wgi[0] += 1
    e('v_add_u32 v6, 57344, v4')
    e('v_and_b32 v5, 31, v1')
    e('v_lshlrev_b32 v5, 2, v5')
    e('v_lshrrev_b32 v7, 5, v1')
    e('v_lshlrev_b32 v7, 10, v7')
    e('v_add_u32 v5, v5, v7')
    e(f'v_add_u32 v5, {LDS_STATS}, v5')
    def stat_ops():
        ops = []
        for nt in range(4):
            b0 = ST + nt * 8
            for i in range(8): ops.append(('ds', f'ds_read_b32 v{b0+i}, v5 offset:{nt*2048 + i*128}'))
        for nt in range(4):
            b0 = ST + nt * 8
            ops.append(('dswait', nt))
            ops += [f'v_add_f32 v{b0}, v{b0}, v{b0+1}', f'v_add_f32 v{b0+2}, v{b0+2}, v{b0+3}', f'v_add_f32 v{b0+4}, v{b0+4}, v{b0+5}',
                    f'v_add_f32 v{b0+6}, v{b0+6}, v{b0+7}', f'v_add_f32 v{b0}, v{b0}, v{b0+2}', f'v_add_f32 v{b0+4}, v{b0+4}, v{b0+6}',
                    f'v_add_f32 v{b0}, v{b0}, v{b0+4}', f'v_mov_b32 v{b0+1}, v{b0}', f'v_mov_b32 v7, {lit(1e-5)}',
                    f'v_permlane32_swap_b32 v{b0+1}, v{b0}', f'v_add_f32 v{b0}, v{b0}, v{b0+1}',
                    f'v_fmamk_f32 v{RRG+4+nt}, v{b0}, {lit(1.0/448)}, v7', f'v_rsq_f32 v{b0}, v{RRG+4+nt}', 's_nop 0',
                    f'v_mul_f32 v{RRG+nt}, {lit(-1.4426950408889634)}, v{b0}']
        return ops
    def epi_half(nt, mi):
        ops = []
        a = ACC + ((nt & 1) * 2 + mi) * 16
        T0 = T
        for r in range(8): ops.append(f'v_mul_f32 v{T0+r}, v{a+r}, v{RRG+nt}')
        for r in range(8):
            ops.append(f'v_exp_f32 v{T0+r}, v{T0+r}')
            ops.append(f'v_mul_f32 v{T0+8+r}, v{a+r}, v{a+8+r}')
        for r in range(8): ops.append(f'v_fma_f32 v{T0+r}, v{T0+r}, v{RRG+4+nt}, v{RRG+4+nt}')
        for r in range(8): ops.append(f'v_rcp_f32 v{T0+r}, v{T0+r}')
        for r in range(8): ops.append(f'v_mul_f32 v{T0+8+r}, v{T0+8+r}, v{T0+r}')
        P = 56 + mi * 4
        for i in range(4): ops.append(f'v_cvt_pk_bf16_f32 v{P+i}, v{T0+8+2*i}, v{T0+8+2*i+1}')
        ops.append(f's_add_u32 s53, s99, {nt*112*1024 + mi*1024}')
        ops.append(('vm', f'buffer_store_dwordx4 {vr(P,4)}, v4, {SWS}, s53 offen sc1', ('store',)))
        return ops
    def epi_ops(nt): return epi_half(nt, 0) + epi_half(nt, 1)
    e('s_mul_i32 s99, s57, 112')
    e('s_add_u32 s99, s99, s56')
    e('s_lshl_b32 s99, s99, 10')
    e(f's_add_u32 s99, s99, 0x{HM_OFF:x}')
    n1 = OPT['w2t1']
    bg = {0: hc_groups(1) + hc_groups(2), 1: hc_groups(3) + [w2load(o) for o in range(0, n1)],
          2: [w2load(o) for o in range(n1, NE)], 3: []}
    last_store = None
    next_late = NE
    def g2_bases(em):
        em('s_lshr_b32 s52, s58, 1')
        em('s_lshl_b32 s52, s52, 2')
        em('s_and_b32 s53, s58, 1')
        em('s_add_u32 s100, s52, s53')
        em('s_sub_u32 s101, s52, s53')
        em('s_add_u32 s101, s101, 3')
        em(f's_mul_i32 s52, s{sW}, 28')
        for k in range(2):
            em(f's_mul_i32 s53, s{100+k}, 112')
            em('s_add_u32 s53, s53, s52')
            em('s_lshl_b32 s53, s53, 10')
            em(f's_add_u32 s{88+k}, s53, 0x{HM_OFF:x}')
    g2_bases(e)
    RING = 64
    rtok = {}
    def ring_load(ph, i):
        if i % 4 == 0: e(f's_add_u32 s90, s{88+ph}, {i*1024}')
        rtok[(ph, i)] = e.vm(f'buffer_load_dwordx4 {vr(RING+(i%8)*4,4)}, v4, {SWS}, s90 offen offset:{(i%4)*1024} sc1')
    def early_check(tok_):
        dn, lp = L('ec'), L('ec')
        e(f's_mov_b32 s{sSPIN}, 0')
        e.label(lp)
        if tok_ is None:
            e(f'buffer_load_dword v9, v8, {SWS}, s91 offen sc1')
            e('s_waitcnt vmcnt(0)')
        e(f'v_cmp_ne_u32 vcc, s{sNONCE}, v9')
        e('s_nop 4')
        e(f's_cbranch_vccz {dn}')
        if tok_ is not None:
            e(f'buffer_load_dword v9, v8, {SWS}, s91 offen sc1')
            e('s_waitcnt vmcnt(0)')
        e(f's_add_u32 s{sSPIN}, s{sSPIN}, 1')
        e(f's_cmp_lt_u32 s{sSPIN}, {MAXSPIN}')
        e(f's_cbranch_scc1 {lp}')
        e.label(dn)
    etok = None
    for nt in range(4):
        e.wait_vm(dtok[nt])
        e.barrier()
        if nt == 0: stamp(e, 'G1.t0')
        fill = epi_ops(nt - 1) if nt > 0 else stat_ops()
        sttok = []
        fi = 0; gi = 0
        btok = {}
        n = [0]
        def issue():
            kap = n[0]
            base = 'v4' if nt < 2 else 'v6'
            off = ((nt & 1) * 28 + kap) * 1024
            btok[kap] = e.ds(f'ds_read_b128 {vr(BR+(kap%8)*4,4)}, {base} offset:{off}')
            n[0] += 1
        for _ in range(5): issue()
        nm = 0
        G_ = bg[nt]
        for kap in range(28):
            e.wait_ds(btok[kap])
            for mi in range(2):
                a = ACC + ((nt & 1) * 2 + mi) * 16
                if nt == 0 and (kap * 2 + mi) in wtok: e.wait_vm(wtok[kap * 2 + mi])
                e(f'v_mfma_f32_32x32x16_bf16 {vr(a,16)}, {ar((mi*28+kap)*4,4)}, {vr(BR+(kap%8)*4,4)}, {"0" if kap == 0 else vr(a,16)}')
                nm += 1
                if mi == 0 and n[0] < 28: issue()
                span = 24 if nt == 3 else 56
                want = (len(G_) * nm + span - 1) // span
                while gi < min(want, len(G_)):
                    for op in G_[gi]: emit_op(op)
                    gi += 1
                if nt == 3 and gi >= len(G_) and nm * 21 >= (next_late - NE + 1) * OPT['latesp'] and next_late < 56:
                    dep = w2reg(next_late & 1, next_late >> 1)[1]
                    if dep[1] * 2 + dep[0] < nm:
                        for op in w2load(next_late): emit_op(op)
                        next_late += 1
                if nt == 3 and nm == OPT['eflag']:
                    e.wait_vm(STORES[3])
                    e.barrier()
                    flag_store(e, 5)
                if nm > 3:
                    fs = OPT['fspan'] if nt == 2 else 50
                    want = (len(fill) * (nm - 3) + fs - 1) // fs
                    while fi < min(want, len(fill)):
                        t = emit_op(fill[fi]); fi += 1
        while fi < len(fill):
            emit_op(fill[fi]); fi += 1
        stamp(e, f'G1.tile{nt}')
    for op in epi_ops(3):
        t = emit_op(op)
        if isinstance(op, tuple): last_store = t
    stamp(e, 'G1.stored')
    assert next_late == 56
    skr, skr2 = L('nog2'), L('nog2')
    e('s_cmp_ge_u32 s2, 224')
    e(f's_cbranch_scc1 {skr}')
    e(f's_add_u32 s91, s{sREP}, 0x{FL_OFF + 5*0x40000:x}')
    e(f'buffer_load_dword v9, v8, {SWS}, s91 offen sc1')
    e.label(skr)
    e('s_waitcnt vmcnt(0)')
    e.vm_done = e.vm_issued
    stamp(e, 'G1.drained')
    signal(e, 3)
    e('s_cmp_ge_u32 s2, 224')
    e('s_cbranch_scc1 L_fin')
    early_check(0)
    e('s_branch L_g2')
    e.label('L_g2only')
    e('s_cmp_ge_u32 s2, 224')
    e('s_cbranch_scc1 L_fin')
    poll(e, 2, 28, lambda e_: idxw(e_, 0))
    for o in range(56):
        for op in w2load(o): e(op[1] if isinstance(op, tuple) else op)
    g2_bases(e)
    e(f's_add_u32 s91, s{sREP}, 0x{FL_OFF + 5*0x40000:x}')
    early_check(None)
    e.label('L_g2')
    for i in range(8): ring_load(0, i)
    e.c('======== G2')
    ACC2, R0, HRR = 16, 96, 140
    e(f's_and_b32 s60, s{sW}, 1')
    e('s_lshl_b32 s53, s59, 1')
    e('s_add_u32 s60, s60, s53')
    e(f's_lshr_b32 s61, s{sW}, 1')
    for k in range(3):
        e(f's_xor_b32 s52, s{sW}, {k+1}')
        e('s_mul_i32 s52, s52, 6144')
        e(f'v_add_u32 v{11+k}, s52, v4')
    e(f's_mul_i32 s52, s{sW}, 6144')
    e('v_add_u32 v133, s52, v4')
    e('v_and_b32 v5, 31, v1')
    e('v_mul_u32_u24 v5, %d, v5' % (64 * 896))
    e('v_lshrrev_b32 v6, 5, v1')
    e('v_mul_u32_u24 v6, 448, v6')
    e('v_add_u32 v132, v5, v6')
    HR_ = {0: 140, 1: 136}
    def accreg(ph, mi, off=0, n=16):
        return vr(ACC2 + mi * 16 + off, n) if ph == 0 else ar(80 + mi * 16 + off, n)
    def hr_load(ph):
        e(f's_mul_i32 s52, s{100+ph}, 28')
        e('s_lshl_b32 s53, s60, 1')
        e('s_add_u32 s52, s52, s53')
        e('s_add_u32 s52, s52, s61')
        e('s_lshl_b32 s52, s52, 10')
        e(f's_add_u32 s52, s52, 0x{HR_OFF:x}')
        return e.vm(f'buffer_load_dwordx4 {vr(HR_[ph],4)}, v4, {SWS}, s52 offen sc1')
    def tail_ops(ph, htok):
        ops = []
        for k, (mi, rh) in enumerate(((1, 0), (0, 1), (1, 1))):
            for qd in range(2):
                ops.append(('ds', f'ds_write_b128 v{11+k}, {accreg(ph, mi, rh*8 + qd*4, 4)} offset:{ph*24576 + k*2048 + qd*1024}'))
        ops.append(('dswaitall',))
        ops.append('s_barrier')
        for k in range(3):
            for qd in range(2):
                ops.append(('ds', f'ds_read_b128 {vr(R0+k*8+qd*4,4)}, v133 offset:{ph*24576 + k*2048 + qd*1024}'))
        if ph == 1:
            for r in range(8): ops.append(f'v_accvgpr_read_b32 v{ACC2+r}, a{80+r}')
        ops.append(('dswaitall',))
        for r in range(8):
            ops.append(f'v_add_f32 v{R0+r}, v{R0+r}, v{R0+8+r}')
            ops.append(f'v_add_f32 v{R0+16+r}, v{R0+16+r}, v{ACC2+r}')
        for r in range(8): ops.append(f'v_add_f32 v{R0+r}, v{R0+r}, v{R0+16+r}')
        ops.append(('vmwait', htok))
        PK, O = 120, 124
        for i in range(4): ops.append(f'v_cvt_pk_bf16_f32 v{PK+i}, v{R0+2*i}, v{R0+2*i+1}')
        for i in range(4):
            ops += [f'v_lshlrev_b32 v128, 16, v{PK+i}', f'v_and_b32 v129, s87, v{PK+i}', f'v_lshlrev_b32 v130, 16, v{HR_[ph]+i}',
                    f'v_and_b32 v131, s87, v{HR_[ph]+i}', 'v_add_f32 v128, v128, v130', 'v_add_f32 v129, v129, v131',
                    f'v_cvt_pk_bf16_f32 v{O+i}, v128, v129']
        ops += [f'v_permlane32_swap_b32 v{O}, v{O+2}', f'v_permlane32_swap_b32 v{O+1}, v{O+3}']
        ops += ['s_lshl_b32 s52, s60, 5', 's_lshl_b32 s53, s61, 4', 's_add_u32 s52, s52, s53', f's_mul_i32 s53, s{100+ph}, 896', 's_add_u32 s52, s52, s53']
        om = ['', ' sc1', ' nt', ' sc0 sc1'][OPT['outmod']]
        ops.append(('vm', f'buffer_store_dwordx4 {vr(O,4)}, v132, {SOUT}, s52 offen{om}'))
        return ops
    def run_op(op):
        if isinstance(op, tuple):
            if op[0] == 'ds': e.ds(op[1])
            elif op[0] == 'dswaitall': e.wait_ds_all()
            elif op[0] == 'vmwait': e.wait_vm(op[1])
            elif op[0] == 'vm': e.vm(op[1])
        else: e(op)
    e('s_mov_b32 s87, 0xffff0000')
    htok = {0: hr_load(0)}
    fill = []; fi = 0
    def rl(tau):
        ph_, i_ = divmod(tau, 28)
        if i_ % 4 == 0: e(f's_add_u32 s90, s{88+ph_}, {i_*1024}')
        rtok[tau] = e.vm(f'buffer_load_dwordx4 {vr(RING+(tau%8)*4,4)}, v4, {SWS}, s90 offen offset:{(i_%4)*1024} sc1')
    for i in range(8): rtok[i] = rtok[(0, i)]
    for tau in range(56):
        ph, i = divmod(tau, 28)
        e.wait_vm(rtok[tau])
        if tau == 0: stamp(e, 'G2.first')
        for mi in range(2):
            e(f'v_mfma_f32_32x32x16_bf16 {accreg(ph, mi)}, {w2reg(mi,i)[0]}, {vr(RING+(tau%8)*4,4)}, {"0" if i == 0 else accreg(ph, mi)}')
        if tau == OPT['lpoll']:
            e(f's_add_u32 s91, s{sREP}, 0x{FL_OFF + 3*0x40000:x}')
            ltok = e.vm(f'buffer_load_dword v9, v8, {SWS}, s91 offen sc1')
        if tau + 8 == 28:
            e.wait_vm(ltok)
            early_check(ltok)
            stamp(e, 'G2.go')
        if tau + 8 < 56: rl(tau + 8)
        if tau == 28:
            htok[1] = hr_load(1)
            fill = tail_ops(0, htok[0])
        if tau == 27: stamp(e, 'G2.mfma0')
        if tau > 28:
            want = (len(fill) * (tau - 28) + 23) // 24
            while fi < min(want, len(fill)):
                run_op(fill[fi]); fi += 1
    while fi < len(fill):
        run_op(fill[fi]); fi += 1
    stamp(e, 'G2.mfma1')
    for op in tail_ops(1, htok[1]): run_op(op)
    stamp(e, 'G2.end')

DBGOUT = False
def dbg_out(e):
    sk = L('dbo')
    e('s_waitcnt vmcnt(0)')
    e('s_memrealtime s[84:85]')
    e('s_memtime s[90:91]')
    e('s_waitcnt lgkmcnt(0)')
    e(f's_cmp_lg_u32 s{sW}, 0')
    e(f's_cbranch_scc1 {sk}')
    e('s_and_b32 s52, s2, 63')
    e('s_cmp_lg_u32 s52, 0')
    e(f's_cbranch_scc1 {sk}')
    e('s_lshr_b32 s52, s2, 6')
    e('s_lshl_b32 s52, s52, 4')
    e('s_add_u32 s52, s52, 16')
    e('s_sub_u32 s53, s84, s86')
    e('s_sub_u32 s54, s90, s82')
    e('v_mov_b32 v4, s53'); e('v_mov_b32 v5, s54'); e('v_mov_b32 v6, s86'); e('v_mov_b32 v7, s84')
    e('v_mov_b32 v8, 0')
    e('s_mov_b64 exec, 1')
    e(f'buffer_store_dwordx4 v[4:7], v8, {SDBG}, s52 offen sc1')
    e('s_mov_b64 exec, -1')
    e.label(sk)

def probe(e):
    sk = L('prb'); lp = L('prl')
    e('s_cmp_lg_u32 s2, 0')
    e(f's_cbranch_scc1 {sk}')
    e('s_waitcnt vmcnt(0)')
    e('s_memrealtime s[84:85]')
    e('s_waitcnt lgkmcnt(0)')
    e('s_sub_u32 s84, s84, s86')
    e(f's_cmp_lt_u32 s84, {OPT["probe"]}')
    e(f's_cbranch_scc1 {sk}')
    e('s_mov_b32 s85, 0')
    e.label(lp)
    e('s_sleep 64')
    e('s_add_u32 s85, s85, 1')
    e('s_cmp_lt_u32 s85, 20')
    e(f's_cbranch_scc1 {lp}')
    e.label(sk)

def diag_dump(e):
    if OPT['probe']: probe(e)
    if DBGOUT: dbg_out(e)
    if not DIAG: return
    e.wait_vm_all()
    rstamp(e, 'rt_end')
    e('s_lshl_b32 s52, s2, 2')
    e(f's_add_u32 s52, s52, s{sW}')
    e('s_lshl_b32 s52, s52, 8')
    e(f's_add_u32 s52, s52, 0x{DIAG_OFF:x}')
    e('v_lshlrev_b32 v4, 2, v1')
    e(f'buffer_store_dword v255, v4, {SWS}, s52 offen')

def kernel():
    e = Emit()
    e.label(KN)
    e('s_cmp_ge_u32 s2, 256')
    e('s_cbranch_scc1 L_end')
    e('s_load_dwordx16 s[64:79], s[0:1], 0')
    e('s_load_dwordx4 s[80:83], s[0:1], 64')
    e('s_memrealtime s[86:87]')
    if OPT['cpf'] == 5: code_prefetch_entry(e)
    if DBGOUT: e('s_memtime s[82:83]')
    if DIAG: e('v_mov_b32 v255, 0')
    e('v_lshrrev_b32 v4, 6, v0')
    e('v_and_b32 v1, 63, v0')
    e(f'v_readfirstlane_b32 s{sW}, v4')
    e('v_and_b32 v2, 15, v0')
    e('v_bfe_u32 v3, v0, 4, 2')
    e(f's_and_b32 s{sB}, s2, 7')
    e('s_lshr_b32 s52, s2, 5')
    e('s_lshl_b32 s52, s52, 3')
    e(f's_add_u32 s{sB}, s{sB}, s52')
    e(f's_lshr_b32 s{sGRP}, s2, 3')
    e(f's_and_b32 s{sGRP}, s{sGRP}, 3')
    e('s_lshr_b32 s52, s2, 3')
    e(f's_and_b32 s{sR}, s52, 15')
    e('s_lshr_b32 s52, s52, 4')
    e(f's_and_b32 s{sC}, s2, 7')
    e(f's_lshl_b32 s{sC}, s{sC}, 1')
    e(f's_add_u32 s{sC}, s{sC}, s52')
    e(f's_getreg_b32 s{sREP}, hwreg(HW_REG_XCC_ID, 0, 3)')
    e(f's_lshl_b32 s{sREP}, s{sREP}, 14')
    e(f's_mov_b32 s{sNONCE}, 0')
    phase_a_pre(e)
    e('s_waitcnt lgkmcnt(0)')
    srd(e, S_X, 64, 1835008)
    phase_a_loads(e)
    if OPT['wsoff']:
        e(f's_add_u32 s82, s82, 0x{OPT["wsoff"]*0x100000:x}')
        e('s_addc_u32 s83, s83, 0')
    srd(e, S_WS, 82, WS_SIZE)
    srd(e, S_WR, 66, 2048 * 450)
    srd(e, S_WI, 68, 2048 * 450)
    srd(e, S_W1, 72, 448 * 3584)
    srd(e, S_W3, 74, 448 * 3584)
    srd(e, S_W2, 76, 1792 * 896)
    srd(e, S_OUT, 78, 1835008)
    srd(e, S_DBG, 80, 256)
    e('s_cmp_ge_u32 s2, 224')
    e(f's_cselect_b32 s{S_W1+2}, 0, s{S_W1+2}')
    e(f's_cselect_b32 s{S_W3+2}, 0, s{S_W3+2}')
    if DIAG:
        STAMPS.append('rt_start'); _stamp_n[0] += 1
        e('v_writelane_b32 v255, s86, 0')
    stamp(e, 'start')
    sk = L('nononce')
    e(f's_or_b32 s52, s2, s{sW}')
    e('s_cmp_lg_u32 s52, 0')
    e(f's_cbranch_scc1 {sk}')
    e('s_or_b32 s52, s86, 1')
    e('v_mov_b32 v4, s52')
    e('v_mov_b32 v5, 0')
    e('s_mov_b64 exec, 1')
    e(f'buffer_store_dword v4, v5, {SDBG}, 0 offen sc1')
    e('s_mov_b64 exec, -1')
    e.label(sk)
    phase_a(e)
    p2l, joinl, join2 = L('p2'), L('join'), L('join')
    e('s_cmp_ge_u32 s2, 224')
    e(f's_cbranch_scc1 {p2l}')
    sv_ds = (e.ds_issued, e.ds_done)
    phase_b(e)
    e(f's_branch {joinl}')
    e.label(p2l)
    signal(e, 1)
    phase_p2(e)
    signal(e, 4)
    e(f's_branch {join2}')
    e.label(joinl)
    signal(e, 1)
    gen_TC(e)
    if OPT['p1slot']: gen_G(e)
    e.label(join2)
    e.vm_issued = 0; e.vm_done = 0
    phase_c(e)
    phase_g(e)
    e.label('L_fin')
    diag_dump(e)
    e.label('L_end')
    e('s_endpgm')
    return e.out

def build():
    hdr = open('cdna_kernels/' + NAME + '.s.ref').read().split('; Override launch')[0]
    body = kernel()
    body, nn = hazard_pass(body)
    print(f'; {len(body)} lines, {nn} nops inserted', file=sys.stderr)
    lines = [hdr.rstrip('\n'),
             f'; @launch grid=(256,1,1) block=(256,1,1) lds={LDS_BYTES}',
             '.amdgcn_target "amdgcn-amd-amdhsa--gfx950"', '.text', f'.globl {KN}', '.p2align 8', f'.type {KN},@function']
    for ln in body: lines.append(ln if ln.endswith(':') else '    ' + ln)
    lines += ['.section .rodata,"a"', '.p2align 6', f'.amdhsa_kernel {KN}',
              '  .amdhsa_next_free_vgpr 512', '  .amdhsa_next_free_sgpr 102', '  .amdhsa_accum_offset 256',
              '  .amdhsa_group_segment_fixed_size 0', '  .amdhsa_kernarg_size 80', '  .amdhsa_user_sgpr_count 2',
              '  .amdhsa_user_sgpr_kernarg_segment_ptr 1', '  .amdhsa_system_sgpr_workgroup_id_x 1',
              '  .amdhsa_float_denorm_mode_32 3', '.end_amdhsa_kernel']
    return '\n'.join(lines) + '\n'

if __name__ == '__main__':
    for a in list(sys.argv):
        if a.startswith('--opt='):
            for kv in a[6:].split(','):
                k, v = kv.split('='); OPT[k] = int(v)
            sys.argv.remove(a)
    if '--dbgout' in sys.argv:
        DBGOUT = True; sys.argv.remove('--dbgout')
    if '--diag' in sys.argv:
        DIAG = True; sys.argv.remove('--diag')
    out = sys.argv[1] if len(sys.argv) > 1 else 'cdna_kernels/' + NAME + '.s'
    open(out, 'w').write(build())
    if DIAG:
        import json; json.dump(STAMPS, open(out + '.stamps.json', 'w'))
    print('written', out, file=sys.stderr)
```

```python
import sys, struct
from asmlib import Emit, hazard_pass

NAME = "sequential_preLN__spectral_gfnet__glu_gated_swiglu__prompt"
KN = NAME + "_kernel"

T1_OFF  = 0x000000
T2_OFF  = 0x200000
HC_OFF  = 0x400000
HR_OFF  = 0x600000
ST1_OFF = 0x800000
ST2_OFF = 0x810000
W13_OFF = 0x900000
W2_OFF  = 0xD00000
HM_OFF  = 0x1000000
FL_OFF  = 0x1800000
DIAG_OFF = 0x1A00000
WS_SIZE = 0x1C00000
LDS_STAGE = 32768
LDS_STATS = 114688
LDS_BYTES = 114688 + 8192
MAXSPIN = 100000

DIAG = False
OPT = dict(st1=3, st2=6, epi=1, post=8, w3=16, cpf=5, outmod=0, probe=0, pdepth=1, g2rot=0, wsoff=0, eflag=16, epoll=46, fspan=40, w2t1=14, latesp=52, g2mode=1, lpoll=8, p1slot=0, early=0, wpf=1, p2mode=0, w2pf=0, p2park=1)
def f2u(x): return struct.unpack('<I', struct.pack('<f', x))[0]
def lit(x): return '0x%08x' % f2u(x)
def vr(a, n=1): return f'v{a}' if n == 1 else f'v[{a}:{a+n-1}]'
def ar(a, n=1): return f'a{a}' if n == 1 else f'a[{a}:{a+n-1}]'

S_X, S_WS, S_WR, S_WI, S_W1, S_W3, S_W2, S_OUT, S_DBG = 8, 12, 16, 20, 24, 28, 32, 36, 40
SX, SWS, SWR, SWI, SW1, SW3, SW2, SOUT, SDBG = [f's[{a}:{a+3}]' for a in (8, 12, 16, 20, 24, 28, 32, 36, 40)]
sW, sB, sGRP, sNONCE, sREP = 44, 45, 46, 47, 48
sR, sC, sSPIN = 49, 50, 51

def srd(e, d, ptr, size):
    e(f's_mov_b32 s{d}, s{ptr}')
    e(f's_and_b32 s{d+1}, s{ptr+1}, 0xffff')
    e(f's_mov_b32 s{d+2}, 0x{size:x}')
    e(f's_mov_b32 s{d+3}, 0x20000')

_stamp_n = [0]
STAMPS = []
def stamp(e, name):
    if not DIAG: return
    i = _stamp_n[0]; _stamp_n[0] += 1; STAMPS.append(name)
    e('s_memtime s[84:85]')
    e('s_waitcnt lgkmcnt(0)')
    e(f'v_writelane_b32 v255, s84, {i}')
def rstamp(e, name):
    if not DIAG: return
    i = _stamp_n[0]; _stamp_n[0] += 1; STAMPS.append(name)
    e('s_memrealtime s[84:85]')
    e('s_waitcnt lgkmcnt(0)')
    e(f'v_writelane_b32 v255, s84, {i}')

def xsum_groups(e, v, tmp):
    e(f'v_mov_b32 v{tmp}, v{v}')
    e(f'v_permlane32_swap_b32 v{tmp}, v{v}')
    e(f'v_add_f32 v{v}, v{v}, v{tmp}')
    e(f'v_mov_b32 v{tmp}, v{v}')
    e(f'v_permlane16_swap_b32 v{tmp}, v{v}')
    e(f'v_add_f32 v{v}, v{v}, v{tmp}')

def rot8(em, co, si, co2, si2, cs, neg_sin):
    C = 'op_sel:[0,0] op_sel_hi:[1,0]'
    S3 = 'op_sel:[0,1,0] op_sel_hi:[1,1,1]'
    NEG = ' neg_lo:[0,1,0] neg_hi:[0,1,0]'
    for p in range(4):
        em(f'v_pk_mul_f32 v[{co2+2*p}:{co2+2*p+1}], v[{co+2*p}:{co+2*p+1}], v[{cs}:{cs+1}] {C}')
        em(f'v_pk_mul_f32 v[{si2+2*p}:{si2+2*p+1}], v[{si+2*p}:{si+2*p+1}], v[{cs}:{cs+1}] {C}')
    for p in range(4):
        em(f'v_pk_fma_f32 v[{co2+2*p}:{co2+2*p+1}], v[{si+2*p}:{si+2*p+1}], v[{cs}:{cs+1}], v[{co2+2*p}:{co2+2*p+1}] {S3}' + ('' if neg_sin else NEG))
        em(f'v_pk_fma_f32 v[{si2+2*p}:{si2+2*p+1}], v[{co+2*p}:{co+2*p+1}], v[{cs}:{cs+1}], v[{si2+2*p}:{si2+2*p+1}] {S3}' + (NEG if neg_sin else ''))

_lab = [0]
def L(p):
    _lab[0] += 1
    return f'L{p}_{_lab[0]}'

def signal(e, sync):
    e.barrier()
    skip = L('sig')
    e(f's_cmp_lg_u32 s{sW}, 0')
    e(f's_cbranch_scc1 {skip}')
    e(f's_lshl_b32 s52, s2, 6')
    e(f's_add_u32 s52, s52, 0x{FL_OFF + sync*0x40000:x}')
    e(f'v_mov_b32 v14, s{sNONCE}')
    e('v_lshlrev_b32 v15, 14, v1')
    e('s_mov_b64 exec, 0xff')
    e(f'buffer_store_dword v14, v15, {SWS}, s52 offen sc1')
    e('s_mov_b64 exec, -1')
    e.label(skip)

def flag_store(e, sync):
    skip = L('flg')
    e(f's_cmp_lg_u32 s{sW}, 0')
    e(f's_cbranch_scc1 {skip}')
    e(f's_lshl_b32 s52, s2, 6')
    e(f's_add_u32 s52, s52, 0x{FL_OFF + sync*0x40000:x}')
    e(f'v_mov_b32 v14, s{sNONCE}')
    e('v_lshlrev_b32 v15, 14, v1')
    e('s_mov_b64 exec, 0xff')
    e(f'buffer_store_dword v14, v15, {SWS}, s52 offen sc1')
    e('s_mov_b64 exec, -1')
    e.label(skip)

def poll(e, sync, nflags, idx_code, preg=232, bar=True):
    skip = L('pollskip'); loop = L('poll'); done = L('polldone')
    e(f's_cmp_lg_u32 s{sW}, 0')
    e(f's_cbranch_scc1 {skip}')
    idx_code(e)
    nl = max(1, nflags // 64)
    e(f's_add_u32 s52, s{sREP}, 0x{FL_OFF + sync*0x40000:x}')
    for i in range(1, nl): e(f's_add_u32 s{52+i}, s52, {i*64*64}')
    e(f's_mov_b32 s{sSPIN}, 0')
    if nflags <= 32: e(f's_mov_b64 exec, 0x{(1 << nflags) - 1:x}')
    elif nflags < 64: e(f's_mov_b32 exec_hi, 0x{(1 << (nflags - 32)) - 1:x}')
    D = OPT['pdepth']
    def issue(k):
        for i in range(nl): e(f'buffer_load_dword v{preg+k*nl+i}, v5, {SWS}, s{52+i} offen sc1')
    e('s_waitcnt vmcnt(0)') if D == 1 else None
    for k in range(D - 1): issue(k)
    e.label(loop)
    for k in range(D):
        issue((k + D - 1) % D)
        e(f's_waitcnt vmcnt({(D-1)*nl})')
        r = preg + k * nl
        e(f'v_xor_b32 v6, s{sNONCE}, v{r}')
        for i in range(1, nl):
            e(f'v_xor_b32 v7, s{sNONCE}, v{r+i}')
            e('v_or_b32 v6, v6, v7')
        e('v_cmp_ne_u32 vcc, 0, v6')
        e('s_nop 4')
        e(f's_cbranch_vccz {done}')
    e(f's_add_u32 s{sSPIN}, s{sSPIN}, 1')
    e(f's_cmp_lt_u32 s{sSPIN}, {MAXSPIN}')
    e(f's_cbranch_scc1 {loop}')
    e.label(done)
    e('s_mov_b64 exec, -1')
    e.label(skip)
    if bar: e.barrier()

def p1_addr(e, i):
    e(f's_lshl_b32 s53, s{sW}, 2')
    e(f's_add_u32 s53, s53, {i}')
    e('s_cmp_ge_u32 s53, 7')
    e('s_cselect_b32 s54, 7, 0')
    e(f's_cselect_b32 s55, {P1_MS}, 0')
    e('s_sub_u32 s54, s53, s54')
    e('s_lshl_b32 s54, s54, 6')
    e(f's_add_u32 s55, s55, {LDS_STAGE}')
    e('v_add_u32 v12, s54, v1')
    e('v_mul_u32_u24 v13, 4682, v12')
    e('v_lshrrev_b32 v13, 16, v13')
    e('v_mul_u32_u24 v14, 14, v13')
    e('v_sub_u32 v14, v12, v14')
    e('v_lshlrev_b32 v14, 4, v14')
    e(f'v_mul_u32_u24 v15, {P1_RS}, v13')
    e('v_add3_u32 v%d, v15, v14, s55' % P1LR[i])
    if i == 3: e('v_accvgpr_write_b32 a25, v10')
    e('v_lshrrev_b32 v15, 4, v13')
    e('v_mul_u32_u24 v15, 208, v15')
    e('v_add_u32 v15, v15, v13')
    e('v_mul_u32_u24 v15, 3584, v15')
    e('v_add_u32 v15, v15, v14')

P1_RS, P1_MS = 288, 9344
P1LR = [252, 253, 254, 10]
P2LR = [248, 11]
P2_RS, P2_BASE = 480, LDS_STAGE + 2 * 9344 + 64
def p1_loads(e):
    e('s_lshr_b32 s52, s2, 4')
    e('s_lshl_b32 s52, s52, 4')
    e('s_mul_i32 s52, s52, 3584')
    e('s_and_b32 s54, s2, 15')
    e('s_mul_i32 s54, s54, 224')
    e('s_add_u32 s52, s52, s54')
    e(f's_mov_b32 s94, s{S_W1+2}')
    e('s_mov_b32 s95, 0x20000')
    for i in range(4):
        p1_addr(e, i)
        e('s_cmp_ge_u32 s53, 7')
        e(f's_cselect_b32 s92, s{S_W3}, s{S_W1}')
        e(f's_cselect_b32 s93, s{S_W3+1}, s{S_W1+1}')
        if i >= 2:
            e('s_cmp_ge_u32 s53, 14')
            e('s_cselect_b32 s94, 0, s94')
        e.vm(f'buffer_load_dwordx4 {ar(4*i,4)}, v15, s[92:95], s52 offen')

def p2_loads(e):
    e('s_lshr_b32 s52, s2, 1')
    e('s_mul_i32 s52, s52, %d' % (16 * 896))
    e('s_and_b32 s53, s2, 1')
    e('s_mul_i32 s53, s53, 224')
    e('s_add_u32 s52, s52, s53')
    e(f's_mov_b32 s92, s{S_W2}')
    e(f's_mov_b32 s93, s{S_W2+1}')
    e('s_cmp_ge_u32 s2, 224')
    e(f's_cselect_b32 s94, 0, s{S_W2+2}')
    for i in range(2):
        e(f's_lshl_b32 s53, s{sW}, 1')
        e(f's_add_u32 s53, s53, {i}')
        e('s_lshl_b32 s54, s53, 6')
        e('v_add_u32 v12, s54, v1')
        e('v_mul_u32_u24 v13, 2341, v12')
        e('v_lshrrev_b32 v13, 16, v13')
        e('v_mul_u32_u24 v14, 28, v13')
        e('v_sub_u32 v14, v12, v14')
        e('v_cmp_le_u32 vcc, 14, v14')
        e('v_lshlrev_b32 v14, 4, v14')
        e(f'v_mul_u32_u24 v15, {P2_RS}, v13')
        e(f'v_add_u32 v15, v15, v14')
        e(f'v_add_u32 v15, {P2_BASE}, v15')
        e(f'v_accvgpr_write_b32 a{26 if i == 0 else 24}, v15')
        e('v_add_u32 v15, 224, v14')
        e('v_cndmask_b32 v14, v14, v15, vcc')
        e('v_mul_u32_u24 v15, 896, v13')
        e('v_add_u32 v15, v15, v14')
        if i == 1:
            e('s_cmp_ge_u32 s53, 7')
            e('s_cselect_b32 s94, 0, s94')
        e.vm(f'buffer_load_dwordx4 {ar(16+4*i,4)}, v15, s[92:95], s52 offen')
assert all(((i * 2341) >> 16) == i // 28 for i in range(512))

def w_prefetch(e):
    e('s_lshl_b32 s52, s2, 12')
    e('v_lshlrev_b32 v12, 4, v0')
    e('v_add_u32 v12, s52, v12')
    e.vm(f'buffer_load_dwordx4 a[32:35], v12, {SWR}, 0 offen')
    e.vm(f'buffer_load_dwordx4 a[32:35], v12, {SWI}, 0 offen')
    if OPT['w2pf']:
        e.vm(f'buffer_load_dwordx4 a[32:35], v12, {SW2}, 0 offen')
        e('s_mov_b32 s52, 0x100000')
        e.vm(f'buffer_load_dwordx4 a[32:35], v12, {SW2}, s52 offen')
assert all(((i * 4682) >> 16) == i // 14 for i in range(512))

def p1_finish(e, R=64):
    RS, MS, BASE = P1_RS, P1_MS, LDS_STAGE
    skw = L('p1w')
    for i in range(4):
        if i == 2:
            e(f's_cmp_ge_u32 s{sW}, 3')
            e(f's_cbranch_scc1 {skw}')
        if i == 3: e('v_accvgpr_read_b32 v10, a25')
        e(f'ds_write_b128 v{P1LR[i]}, {ar(4*i,4)}')
    e.label(skw)
    e.wait_ds_all()
    e.barrier()
    end = L('p1e')
    e(f's_cmp_eq_u32 s{sW}, 0')
    e(f's_cbranch_scc1 {end}')
    e('v_and_b32 v4, 1, v3')
    e(f'v_mul_u32_u24 v4, {MS}, v4')
    e('v_lshrrev_b32 v5, 1, v3')
    e('v_lshlrev_b32 v5, 2, v5')
    e('v_lshrrev_b32 v6, 2, v2')
    e('v_add_u32 v5, v5, v6')
    e(f'v_mul_u32_u24 v5, {RS}, v5')
    e('v_add_u32 v4, v4, v5')
    e('v_and_b32 v6, 3, v2')
    e('v_lshlrev_b32 v6, 3, v6')
    e('v_add_u32 v4, v4, v6')
    e(f'v_add_u32 v4, {BASE}, v4')
    e('s_and_b32 s54, s2, 15')
    e('s_mul_i32 s54, s54, %d' % (7 * 28))
    e('s_lshr_b32 s53, s2, 4')
    e('s_lshl_b32 s53, s53, 1')
    e('s_add_u32 s54, s54, s53')
    e('s_lshl_b32 s54, s54, 10')
    e(f's_add_u32 s54, s54, 0x{W13_OFF:x}')
    e('v_lshlrev_b32 v5, 4, v1')
    last = L('p1l')
    for m in range(5):
        e(f's_add_u32 s52, s{sW}, {3*m - 1}')
        if m == 4:
            e('s_cmp_ge_u32 s52, 14')
            e(f's_cbranch_scc1 {last}')
        e('s_and_b32 s53, s52, 1')
        e('s_lshr_b32 s52, s52, 1')
        e(f's_mul_i32 s55, s53, {8*RS}')
        e('s_lshl_b32 s61, s52, 5')
        e('s_add_u32 s55, s55, s61')
        e('v_add_u32 v6, s55, v4')
        e(f'ds_read_b64_tr_b16 {vr(R+4*m,2)}, v6')
        e(f'ds_read_b64_tr_b16 {vr(R+4*m+2,2)}, v6 offset:{16*RS}')
        e('s_mul_i32 s52, s52, 28')
        e('s_add_u32 s52, s52, s53')
        e('s_lshl_b32 s52, s52, 10')
        e(f's_add_u32 s{62+m if m < 2 else 86+m}, s52, s54')
    e.label(last)
    e('s_waitcnt lgkmcnt(0)')
    for m in range(4):
        e(f'buffer_store_dwordx4 {vr(R+4*m,4)}, v5, {SWS}, s{62+m if m < 2 else 86+m} offen sc1')
    e(f's_cmp_ge_u32 s{sW}, 3')
    e(f's_cbranch_scc1 {end}')
    e(f'buffer_store_dwordx4 {vr(R+16,4)}, v5, {SWS}, s90 offen sc1')
    e.label(end)

def p2_finish(e, R=128):
    skw2 = L('p2w')
    e('v_accvgpr_read_b32 v7, a26')
    e(f'ds_write_b128 v7, {ar(16,4)}')
    e(f's_cmp_ge_u32 s{sW}, 3')
    e(f's_cbranch_scc1 {skw2}')
    e('v_accvgpr_read_b32 v7, a24')
    e(f'ds_write_b128 v7, {ar(20,4)}')
    e.label(skw2)
    e.wait_ds_all()
    e.barrier()
    end = L('p2e')
    e(f's_cmp_eq_u32 s{sW}, 0')
    e(f's_cbranch_scc1 {end}')
    e('v_lshrrev_b32 v6, 1, v3')
    e('v_lshlrev_b32 v6, 2, v6')
    e('v_lshrrev_b32 v7, 2, v2')
    e('v_add_u32 v6, v6, v7')
    e(f'v_mul_u32_u24 v6, {P2_RS}, v6')
    e('v_and_b32 v7, 1, v3')
    e('v_lshlrev_b32 v7, 4, v7')
    e('v_add_u32 v6, v6, v7')
    e('v_and_b32 v7, 1, v2')
    e('v_lshlrev_b32 v7, 3, v7')
    e('v_add_u32 v6, v6, v7')
    e('v_bfe_u32 v7, v2, 1, 1')
    e('v_mul_u32_u24 v7, 224, v7')
    e('v_add_u32 v6, v6, v7')
    e(f's_sub_u32 s55, s{sW}, 1')
    e('s_lshl_b32 s52, s55, 5')
    e(f's_add_u32 s52, s52, {P2_BASE}')
    e('v_add_u32 v6, s52, v6')
    e('s_and_b32 s54, s2, 1')
    e('s_mul_i32 s54, s54, 7')
    e('s_add_u32 s54, s54, s55')
    e('s_mul_i32 s54, s54, 112')
    e('s_lshr_b32 s53, s2, 1')
    e('s_add_u32 s54, s54, s53')
    e('s_lshl_b32 s54, s54, 10')
    e(f's_add_u32 s54, s54, 0x{W2_OFF:x}')
    e('v_lshlrev_b32 v5, 4, v1')
    for m in range(3):
        e(f'ds_read_b64_tr_b16 {vr(R+4*m,2)}, v6 offset:{96*m}')
        e(f'ds_read_b64_tr_b16 {vr(R+4*m+2,2)}, v6 offset:{96*m + 8*P2_RS}')
    e('s_waitcnt lgkmcnt(0)')
    for m in range(3):
        if m == 2:
            e(f's_cmp_ge_u32 s{sW}, 2')
            e(f's_cbranch_scc1 {end}')
        e(f's_add_u32 s53, s54, {3*m*112*1024}')
        e(f'buffer_store_dwordx4 {vr(R+4*m,4)}, v5, {SWS}, s53 offen sc1')
    e.label(end)

def w13_load_groups():
    gs = []
    for s_ in range(28):
        for mi in range(2):
            g = []
            if s_ % 7 == 0 and mi == 0:
                g += [f's_add_u32 s90, s89, {s_//7}', 's_and_b32 s90, s90, 3', 's_mul_i32 s90, s90, 7168', 's_add_u32 s90, s90, s88',
                      's_add_u32 s91, s90, 28672']
            i = s_ % 7
            if i == 4 and mi == 0: g += ['s_add_u32 s90, s90, 4096', 's_add_u32 s91, s91, 4096']
            g.append(('vm', f'buffer_load_dwordx4 {ar((mi*28+s_)*4,4)}, v254, s[92:95], s{90+mi} offen offset:{(i%4)*1024} sc1'))
            gs.append(g)
    return gs

def w13_setup(e):
    e(f's_mov_b32 s92, s{S_WS}')
    e(f's_mov_b32 s93, s{S_WS+1}')
    e(f's_cmp_ge_u32 s{sC}, 14')
    e(f's_cselect_b32 s94, 0, s{S_WS+2}')
    e('s_mov_b32 s95, 0x20000')
    e(f's_lshl_b32 s88, s{sC}, 3')
    e(f's_lshl_b32 s52, s{sW}, 1')
    e('s_add_u32 s88, s88, s52')
    e('s_mul_i32 s88, s88, 28672')
    e(f's_add_u32 s88, s88, 0x{W13_OFF:x}')
    e(f's_and_b32 s89, s{sR}, 3')
    e('v_lshlrev_b32 v254, 4, v1')

def emit_groups(e, groups):
    last = None
    for g in groups:
        for op in g:
            if isinstance(op, tuple): last = e.vm(op[1])
            else: e(op)
    return last

DMA = {}
def emit_interleaved(e, main, groups, start=0):
    n, m = len(main), len(groups)
    gi = 0; last = None
    for k, ins in enumerate(main):
        e(ins)
        if k >= start:
            want = ((k - start + 1) * m) // max(1, n - start)
            while gi < want:
                for op in groups[gi]:
                    if isinstance(op, tuple): last = e.vm(op[1])
                    else: e(op)
                gi += 1
    while gi < m:
        for op in groups[gi]:
            if isinstance(op, tuple): last = e.vm(op[1])
            else: e(op)
        gi += 1
    return last

def w13_trread(e, half):
    e('v_and_b32 v4, 1, v3')
    e('v_lshrrev_b32 v5, 1, v3')
    e('v_lshrrev_b32 v6, 2, v2')
    e('v_and_b32 v7, 3, v2')
    e('v_mul_u32_u24 v8, 57344, v4')
    e('v_lshlrev_b32 v9, 2, v5')
    e('v_add_u32 v9, v9, v6')
    e('v_lshlrev_b32 v9, 8, v9')
    e('v_add_u32 v8, v8, v9')
    e('v_and_b32 v9, 1, v7')
    e('v_lshlrev_b32 v9, 3, v9')
    e('v_add_u32 v8, v8, v9')
    e(f'v_add_u32 v8, {LDS_STAGE}, v8')
    e('v_lshrrev_b32 v7, 1, v7')
    e(f's_lshl_b32 s52, s{sW}, 2')
    e('v_add_u32 v7, s52, v7')
    e('v_lshlrev_b32 v6, 1, v6')
    e('v_lshlrev_b32 v4, 3, v4')
    e('v_xor_b32 v6, v6, v4')
    for mi in range(2):
        e(f'v_add_u32 v9, {2*mi}, v7')
        e('v_xor_b32 v9, v9, v6')
        e('v_lshlrev_b32 v9, 4, v9')
        e(f'v_add_u32 v{10+mi}, v8, v9')
    for mi in range(2):
        for jl in range(7):
            for gg in range(2):
                kap = 14 * half + 2 * jl + gg
                a = (mi * 28 + kap) * 4
                off = (16 * jl + 8 * gg) * 256
                e.ds(f'ds_read_b64_tr_b16 {ar(a,2)}, v{10+mi} offset:{off}')
                e.ds(f'ds_read_b64_tr_b16 {ar(a+2,2)}, v{10+mi} offset:{off + 112*256}')

C_G, C_TC = 220, 160
def gen_G(e):
    G = C_G
    TH, CO, SI = 112, 120, 128
    cscale = 2.0 / (2048.0 * 448.0)
    e('v_cvt_f32_u32 v7, v3')
    for nt in range(2):
        e(f'v_add_u32 v8, {16*nt}, v2')
        e('v_lshlrev_b32 v8, 6, v8')
        e(f'v_add_u32 v8, s{sB}, v8')
        e('v_cvt_f32_u32 v8, v8')
        e(f'v_mul_f32 v8, {lit(1.0/2048)}, v8')
        e('v_mul_f32 v9, v7, v8')
        for t in range(2):
            for ii in range(4):
                cst = 16 * t + 4 * ii
                if cst == 0: e(f'v_mov_b32 v{TH+t*4+ii}, v9')
                else: e(f'v_fmamk_f32 v{TH+t*4+ii}, v8, {lit(float(cst))}, v9')
        for j in range(8): e(f'v_cos_f32 v{CO+j}, v{TH+j}')
        for j in range(8): e(f'v_sin_f32 v{SI+j}, v{TH+j}')
        for j in range(8): e(f'v_mul_f32 v{CO+j}, {lit(cscale)}, v{CO+j}')
        for j in range(8): e(f'v_mul_f32 v{SI+j}, {lit(cscale)}, v{SI+j}')
        for t in range(2):
            for ii in range(4):
                j = t * 4 + ii
                e(f'v_cvt_pk_bf16_f32 v{G+((0*2+t)*2+nt)*4+ii}, v{CO+j}, -v{SI+j}')
                e(f'v_cvt_pk_bf16_f32 v{G+((1*2+t)*2+nt)*4+ii}, v{SI+j}, v{CO+j}')

def gen_TC(e):
    TC = C_TC
    TH, CO, SI, CO2, SI2 = 112, 120, 128, 136, 144
    e(f's_lshl_b32 s61, s{sGRP}, 2')
    e(f's_add_u32 s61, s61, s{sW}')
    e('s_min_u32 s61, s61, 13')
    e('s_lshl_b32 s61, s61, 4')
    e('v_add_u32 v8, s61, v2')
    e('v_cvt_f32_u32 v8, v8')
    e(f'v_mul_f32 v8, {lit(1.0/448)}, v8')
    e('v_lshlrev_b32 v9, 3, v3')
    e('v_cvt_f32_u32 v9, v9')
    e('v_mul_f32 v9, v9, v8')
    e('v_cmp_eq_u32 vcc, 3, v3')
    e('v_mov_b32 v10, 1.0')
    e('v_mov_b32 v7, 0.5')
    e('v_cndmask_b32 v10, v10, v7, vcc')
    e(f'v_mul_f32 v7, {lit(32.0)}, v8')
    for h in range(2):
        for j in range(4):
            cst = 2 * j + (2 if h == 0 else 1)
            e(f'v_fmamk_f32 v{TH+h*4+j}, v8, {lit(float(cst))}, v9')
    e('v_cos_f32 v12, v7')
    e('v_sin_f32 v13, v7')
    for j in range(8): e(f'v_cos_f32 v{CO+j}, v{TH+j}')
    for j in range(8): e(f'v_sin_f32_e64 v{SI+j}, -v{TH+j}')
    cur = (CO, SI); oth = (CO2, SI2)
    for kp in range(7):
        if kp < 6: rot8(e, cur[0], cur[1], oth[0], oth[1], 12, True)
        else:
            e(f'v_mul_f32 v{cur[0]+3}, v{cur[0]+3}, v10')
            e(f'v_mul_f32 v{cur[1]+3}, v{cur[1]+3}, v10')
        for h, kb in enumerate((kp, kp + 7)):
            e(f'v_cvt_pk_bf16_f32 v{TC+kb*4+0}, v{cur[0]+h*4+0}, v{cur[0]+h*4+1}')
            e(f'v_cvt_pk_bf16_f32 v{TC+kb*4+1}, v{cur[0]+h*4+2}, v{cur[0]+h*4+3}')
            e(f'v_cvt_pk_bf16_f32 v{TC+kb*4+2}, v{cur[1]+h*4+0}, v{cur[1]+h*4+1}')
            e(f'v_cvt_pk_bf16_f32 v{TC+kb*4+3}, v{cur[1]+h*4+2}, v{cur[1]+h*4+3}')
        cur, oth = oth, cur

def code_prefetch_wave(e):
    sk = L('cpf')
    e(f's_cmp_lg_u32 s{sW}, {OPT["cpf"]-1}')
    e(f's_cbranch_scc1 {sk}')
    e('s_getpc_b64 s[52:53]')
    e.label('L_pc')
    e('s_lshr_b32 s54, s2, 3')
    e('s_lshl_b32 s54, s54, 10')
    e('s_cmp_ge_u32 s54, L_fin-L_pc-1024')
    e(f's_cbranch_scc1 {sk}')
    e('v_lshlrev_b32 v5, 4, v1')
    e('v_add_u32 v5, s54, v5')
    e('global_load_dwordx4 a[28:31], v5, s[52:53]')
    e.label(sk)

def code_prefetch_entry(e):
    sk = L('cpf')
    e('s_getpc_b64 s[52:53]')
    e.label('L_pc')
    e('s_lshr_b32 s54, s2, 3')
    e('s_lshl_b32 s54, s54, 10')
    e('s_cmp_ge_u32 s54, L_fin-L_pc-1024')
    e(f's_cbranch_scc1 {sk}')
    e('v_lshlrev_b32 v5, 2, v0')
    e('v_add_u32 v5, s54, v5')
    e('global_load_dword a28, v5, s[52:53]')
    e.label(sk)

A_TA, A_FP, A_ACC, A_X = 16, 72, 96, 128
def phase_a_pre(e):
    e.c('======== phase A (before the kernel arguments arrive)')
    TA, FP, ACC, X = A_TA, A_FP, A_ACC, A_X
    e(f's_lshl_b32 s56, s{sGRP}, 2')
    e(f's_add_u32 s56, s56, s{sW}')
    e('s_min_u32 s57, s56, 13')
    e(f's_lshr_b32 s52, s{sW}, 1')
    e('s_lshl_b32 s52, s52, 10')
    e(f's_add_u32 s52, s52, s{sB}')
    e('v_lshlrev_b32 v4, 6, v2')
    e('v_add_u32 v4, s52, v4')
    e('v_mul_u32_u24 v4, 896, v4')
    e('v_lshlrev_b32 v11, 4, v3')
    e('v_add_u32 v4, v4, v11')
    e(f's_and_b32 s52, s{sW}, 1')
    e('s_mul_i32 s52, s52, 448')
    e('v_add_u32 v4, s52, v4')
    if OPT['early']: gen_TA(e)

def gen_TA(e):
    TA, FP, ACC, X = A_TA, A_FP, A_ACC, A_X
    e('s_cmp_lt_u32 s57, 7')
    e('s_cselect_b32 s52, 2, 1')
    e('s_cselect_b32 s53, 0, 7')
    e('s_sub_u32 s53, s57, s53')
    e('s_lshl_b32 s53, s53, 5')
    e('s_add_u32 s53, s53, s52')
    e('s_cmp_lt_u32 s57, 7')
    e(f's_cselect_b32 s58, {lit(1.0)}, {lit(-1.0)}')
    e('v_lshlrev_b32 v5, 1, v2')
    e('v_add_u32 v5, s53, v5')
    e('v_cvt_f32_u32 v5, v5')
    e(f'v_mul_f32 v5, {lit(1.0/448)}, v5')
    e('v_lshlrev_b32 v6, 3, v3')
    e('v_cvt_f32_u32 v6, v6')
    e('v_mul_f32 v6, v6, v5')
    TH, CO, SI = ACC, ACC + 8, ACC + 16
    CO2, SI2 = X + 32, X + 40
    e(f'v_mul_f32 v7, {lit(32.0)}, v5')
    for j in range(8):
        if j == 0: e(f'v_mov_b32 v{TH+j}, v6')
        else: e(f'v_fmamk_f32 v{TH+j}, v5, {lit(float(j))}, v6')
    e('v_cos_f32 v8, v7')
    e('v_sin_f32 v9, v7')
    for j in range(8): e(f'v_cos_f32 v{CO+j}, v{TH+j}')
    for j in range(8): e(f'v_sin_f32_e64 v{SI+j}, -v{TH+j}')
    cur = (CO, SI); oth = (CO2, SI2)
    for t in range(7):
        if t < 6: rot8(e, cur[0], cur[1], oth[0], oth[1], 8, True)
        for i in range(4): e(f'v_cvt_pk_bf16_f32 v{TA+(t*2+0)*4+i}, v{cur[0]+2*i}, v{cur[0]+2*i+1}')
        for i in range(4): e(f'v_cvt_pk_bf16_f32 v{TA+(t*2+1)*4+i}, v{cur[1]+2*i}, v{cur[1]+2*i+1}')
        cur, oth = oth, cur

XS_TOK = []
def phase_a_loads(e):
    X = A_X
    XS_TOK[:] = [e.vm(f'buffer_load_dwordx4 {vr(X+4*i,4)}, v4, {SX}, 0 offen offset:{64*i}') for i in range(7)]

def phase_a(e):
    e.c('======== phase A')
    TA, FP, ACC, X = A_TA, A_FP, A_ACC, A_X
    xs_tok = XS_TOK
    TH, CO, SI = ACC, ACC + 8, ACC + 16
    stamp(e, 'A.issued')
    if not OPT['early']: gen_TA(e)
    e('s_mov_b32 s52, 0x80008000')
    e(f'v_cvt_f32_u32 v7, s{sB}')
    e(f'v_mul_f32 v7, {lit(1.0/64)}, v7')
    e('v_lshlrev_b32 v8, 2, v3')
    e('v_cvt_f32_u32 v8, v8')
    e('v_add_f32 v8, v8, v7')
    for mt in range(2):
        e(f'v_add_u32 v9, {16*mt}, v2')
        e('v_cvt_f32_u32 v9, v9')
        e(f'v_mul_f32 v9, {lit(1.0/32)}, v9')
        e('v_mul_f32 v10, v9, v8')
        for j in range(8):
            cst = 16 * (j >> 2) + (j & 3)
            if cst == 0: e(f'v_mov_b32 v{TH+j}, v10')
            else: e(f'v_fmamk_f32 v{TH+j}, v9, {lit(float(cst))}, v10')
        for j in range(8): e(f'v_cos_f32 v{CO+j}, v{TH+j}')
        for j in range(8): e(f'v_sin_f32 v{SI+j}, v{TH+j}')
        for i in range(4): e(f'v_cvt_pk_bf16_f32 v{FP+mt*12+i}, v{CO+2*i}, v{CO+2*i+1}')
        for i in range(4): e(f'v_cvt_pk_bf16_f32 v{FP+mt*12+4+i}, v{SI+2*i}, v{SI+2*i+1}')
        for i in range(4): e(f'v_xor_b32 v{FP+mt*12+8+i}, s52, v{FP+mt*12+4+i}')
    if OPT['wpf'] == 2: w_prefetch(e)
    p1_loads(e)
    if OPT['wpf'] == 3: w_prefetch(e)
    stamp(e, 'A.constgen')
    e(f's_mul_i32 s52, s{sW}, 7168')
    e('v_lshlrev_b32 v11, 4, v1')
    e('v_add_u32 v4, s52, v11')
    e('v_mov_b32 v5, 0')
    e('v_mov_b32 v6, 0')
    e('s_mov_b32 s52, 0x3f803f80')
    for i in range(7):
        e.wait_vm(xs_tok[i])
        e.ds(f'ds_write_b128 v4, {vr(X+4*i,4)} offset:{1024*i}')
        for d in range(4):
            e(f'v_dot2_f32_bf16 v5, v{X+4*i+d}, s52, v5')
            e(f'v_dot2_f32_bf16 v6, v{X+4*i+d}, v{X+4*i+d}, v6')
    xsum_groups(e, 5, 7)
    xsum_groups(e, 6, 8)
    e(f's_lshl_b32 s52, s{sW}, 7')
    e('v_lshlrev_b32 v7, 3, v2')
    e('v_add_u32 v7, s52, v7')
    e('v_mov_b32 v8, v5')
    e('v_mov_b32 v9, v6')
    e.ds('ds_write_b64 v7, v[8:9] offset:28672')
    e.wait_ds_all()
    stamp(e, 'A.xstaged')
    e.barrier()
    if OPT['wpf'] == 1: w_prefetch(e)
    e('v_mov_b32 v250, 0')
    nonce_tok = e.vm(f'buffer_load_dword v251, v250, {SDBG}, 0 offen sc1')
    e('v_and_b32 v4, 31, v1')
    e('v_lshrrev_b32 v5, 4, v4')
    e('v_lshlrev_b32 v5, 8, v5')
    e('v_lshlrev_b32 v6, 3, v2')
    e('v_add_u32 v5, v5, v6')
    t0 = e.ds('ds_read_b64 v[6:7], v5 offset:28672')
    t1 = e.ds('ds_read_b64 v[8:9], v5 offset:28800')
    xt = {}
    order = [(half, t, mt) for half in range(2) for t in range(7) for mt in range(2)]
    def xreg(mt, tt): return X + (mt * 14 + tt) * 4
    nread = [0]
    def issue_x():
        half, t, mt = order[nread[0]]
        tt = t + 7 * half
        xt[(half, t, mt)] = e.ds(f'ds_read_b128 {vr(xreg(mt,tt),4)}, v11 offset:{(mt*14+tt)*1024}')
        nread[0] += 1
    for _ in range(8): issue_x()
    e.wait_ds(t1)
    e('v_add_f32 v6, v6, v8')
    e('v_add_f32 v7, v7, v9')
    e(f'v_mul_f32 v6, {lit(1.0/448)}, v6')
    e(f'v_mul_f32 v7, {lit(1.0/448)}, v7')
    e('v_fma_f32 v7, -v6, v6, v7')
    e('v_max_f32 v7, 0, v7')
    e(f'v_add_f32 v7, {lit(1e-5)}, v7')
    e('v_rsq_f32 v7, v7')
    e(f's_lshl_b32 s52, s{sW}, 7')
    e('v_lshlrev_b32 v8, 2, v4')
    e('v_add_u32 v9, s52, v8')
    e.ds('ds_write_b32 v9, v7 offset:29184')
    nm = L('nomean')
    e(f's_or_b32 s52, s{sGRP}, s{sW}')
    e('s_cmp_lg_u32 s52, 0')
    e(f's_cbranch_scc1 {nm}')
    e(f's_lshl_b32 s52, s{sB}, 7')
    e(f's_add_u32 s52, s52, 0x{ST1_OFF:x}')
    e(f'buffer_store_dword v6, v8, {SWS}, s52 offen sc1')
    e.label(nm)
    e(f's_lshl_b32 s52, s{sW}, 7')
    e('v_lshlrev_b32 v9, 4, v3')
    e('v_add_u32 v9, s52, v9')
    RR = 240
    tr0 = e.ds(f'ds_read_b128 {vr(RR,4)}, v9 offset:29184')
    tr1 = e.ds(f'ds_read_b128 {vr(RR+4,4)}, v9 offset:29248')
    def acc(mt, c, half): return ACC + ((mt * 2 + c) * 2 + half) * 4
    for (half, t, mt) in order:
        if nread[0] < len(order): issue_x()
        e.wait_ds(xt[(half, t, mt)])
        tt = t + 7 * half
        for c in range(2):
            a = acc(mt, c, half)
            e(f'v_mfma_f32_16x16x32_bf16 {vr(a,4)}, {vr(xreg(mt,tt),4)}, {vr(TA+(t*2+c)*4,4)}, {"0" if t == 0 else vr(a,4)}')
    e.wait_ds(tr1)
    stamp(e, 'A.mfma')
    BF = X; TMP = X + 8
    for c in range(2):
        for mt in range(2):
            for r in range(4): e(f'v_fma_f32 v{TMP+mt*4+r}, v{acc(mt,c,1)+r}, s58, v{acc(mt,c,0)+r}')
            for r in range(4): e(f'v_mul_f32 v{TMP+mt*4+r}, v{TMP+mt*4+r}, v{RR+mt*4+r}')
        for mt in range(2):
            for i in range(2):
                e(f'v_cvt_pk_bf16_f32 v{BF+c*4+mt*2+i}, v{TMP+mt*4+2*i}, v{TMP+mt*4+2*i+1}')
    TT = X + 16
    for mt in range(2):
        C, Sp, Sn = FP + mt * 12, FP + mt * 12 + 4, FP + mt * 12 + 8
        e(f'v_mfma_f32_16x16x32_bf16 {vr(TT+mt*8,4)}, {vr(C,4)}, {vr(BF,4)}, 0')
        e(f'v_mfma_f32_16x16x32_bf16 {vr(TT+mt*8+4,4)}, {vr(Sn,4)}, {vr(BF,4)}, 0')
        e(f'v_mfma_f32_16x16x32_bf16 {vr(TT+mt*8,4)}, {vr(Sp,4)}, {vr(BF+4,4)}, {vr(TT+mt*8,4)}')
        e(f'v_mfma_f32_16x16x32_bf16 {vr(TT+mt*8+4,4)}, {vr(C,4)}, {vr(BF+4,4)}, {vr(TT+mt*8+4,4)}')
    e('s_mov_b32 s52, %d' % (4 * 57344))
    e('v_mul_lo_u32 v4, v3, s52')
    e('v_lshlrev_b32 v5, 2, v2')
    e('v_add_u32 v4, v4, v5')
    e('s_lshl_b32 s52, s56, 12')
    e(f's_lshl_b32 s53, s{sB}, 6')
    e('s_add_u32 s52, s52, s53')
    OUT = X + 40
    for mt in range(2):
        for r in range(4): e(f'v_cvt_pk_bf16_f32 v{OUT+mt*4+r}, v{TT+mt*8+r}, v{TT+mt*8+4+r}')
    ns = L('nostoreA')
    e('s_cmp_ge_u32 s56, 14')
    e(f's_cbranch_scc1 {ns}')
    for mt in range(2):
        for r in range(4):
            e(f's_add_u32 s53, s52, {T1_OFF + (16*mt+r)*57344}')
            e(f'buffer_store_dword v{OUT+mt*4+r}, v4, {SWS}, s53 offen sc1')
    e.label(ns)
    stamp(e, 'A.stored')
    e.wait_vm_all()
    sk, lp, dn = L('nsk'), L('nlp'), L('ndn')
    e(f's_cmp_lg_u32 s{sW}, 0')
    e(f's_cbranch_scc1 {sk}')
    e(f's_mov_b32 s{sSPIN}, 0')
    e.label(lp)
    e(f'v_readfirstlane_b32 s{sNONCE}, v251')
    e('s_nop 1')
    e(f's_cmp_lg_u32 s{sNONCE}, 0')
    e(f's_cbranch_scc1 {dn}')
    e(f'buffer_load_dword v251, v250, {SDBG}, 0 offen sc1')
    e('s_waitcnt vmcnt(0)')
    e(f's_add_u32 s{sSPIN}, s{sSPIN}, 1')
    e(f's_cmp_lt_u32 s{sSPIN}, {MAXSPIN}')
    e(f's_cbranch_scc1 {lp}')
    e.label(dn)
    e.label(sk)
    stamp(e, 'A.drained')
    skn = L('nb')
    e(f's_cmp_lg_u32 s{sW}, 0')
    e(f's_cbranch_scc1 {skn}')
    e(f'v_mov_b32 v14, s{sNONCE}')
    e('v_mov_b32 v15, 29696')
    e('ds_write_b32 v15, v14')
    e('s_waitcnt lgkmcnt(0)')
    e.label(skn)
    signal(e, 0)
    e('v_mov_b32 v15, 29696')
    e('ds_read_b32 v14, v15')
    e('s_waitcnt lgkmcnt(0)')
    e(f'v_readfirstlane_b32 s{sNONCE}, v14')

P2PARK = [16 + 4 * j for j in range(12)] + [92, 96]
def phase_p2(e):
    e.c('======== P2 (w2 re-layout)')
    done = L('p2done'); nojob = L('p2none')
    e('s_cmp_ge_u32 s2, 252')
    e(f's_cbranch_scc1 {nojob}')
    e('s_sub_u32 s56, s2, 224')
    e('s_waitcnt vmcnt(0)')
    e.barrier()
    e.vm_issued = e.vm_done = 0
    e('s_mul_i32 s52, s56, 57344')
    e('v_lshlrev_b32 v4, 4, v0')
    toks = []
    e('s_mov_b32 s57, s52')
    def ld(i):
        e(f's_add_u32 s53, s57, {i*4096}')
        toks.append(e.vm(f'buffer_load_dwordx4 {vr(16+4*i,4)}, v4, {SW2}, s53 offen'))
    for i in range(8): ld(i)
    for i in range(14):
        e(f'v_add_u32 v5, {i*256}, v0')
        e('v_mul_u32_u24 v6, 18725, v5')
        e('v_lshrrev_b32 v6, 20, v6')
        e('v_lshlrev_b32 v6, 5, v6')
        e('v_lshlrev_b32 v5, 4, v5')
        e(f'v_add_u32 v{80+i}, v5, v6')
        e(f'v_add_u32 v{80+i}, {LDS_STAGE}, v{80+i}')
    gen_G(e)
    for i in range(8, 14): ld(i)
    stamp(e, 'P2.issued')
    gen_TC(e)
    for i in range(14):
        e.wait_vm(toks[i])
        e.ds(f'ds_write_b128 v{80+i}, {vr(16+4*i,4)}')
    e.wait_ds_all()
    stamp(e, 'P2.lds')
    e.barrier()
    e('v_lshrrev_b32 v4, 1, v3')
    e('v_lshlrev_b32 v4, 2, v4')
    e('v_lshrrev_b32 v5, 2, v2')
    e('v_add_u32 v4, v4, v5')
    e(f's_lshl_b32 s53, s{sW}, 4')
    e('v_add_u32 v4, s53, v4')
    e('v_mul_u32_u24 v4, 928, v4')
    e('v_and_b32 v5, 1, v3')
    e('v_lshlrev_b32 v5, 4, v5')
    e('v_add_u32 v4, v4, v5')
    e('v_and_b32 v5, 1, v2')
    e('v_lshlrev_b32 v5, 3, v5')
    e('v_add_u32 v4, v4, v5')
    e('v_bfe_u32 v5, v2, 1, 1')
    e('v_mul_u32_u24 v5, 448, v5')
    e('v_add_u32 v4, v4, v5')
    e(f'v_add_u32 v4, {LDS_STAGE}, v4')
    e('v_lshlrev_b32 v5, 4, v1')
    e('s_lshl_b32 s53, s56, 2')
    e(f's_add_u32 s53, s53, s{sW}')
    e('s_lshl_b32 s53, s53, 10')
    e(f's_add_u32 s53, s53, 0x{W2_OFF:x}')
    if OPT['p2park']:
        for j in range(14):
            R = P2PARK[j]
            e.ds(f'ds_read_b64_tr_b16 {vr(R,2)}, v4 offset:{32*j}')
            e.ds(f'ds_read_b64_tr_b16 {vr(R+2,2)}, v4 offset:{32*j + 8*928}')
        e.wait_ds_all()
        e('s_mov_b32 s99, s53')
    trt = []
    for j in range(14 if not OPT['p2park'] else 0):
        R = 16 + 4 * j
        e.ds(f'ds_read_b64_tr_b16 {vr(R,2)}, v4 offset:{32*j}')
        trt.append(e.ds(f'ds_read_b64_tr_b16 {vr(R+2,2)}, v4 offset:{32*j + 8*928}'))
        if j >= 4:
            e.wait_ds(trt[j - 4])
            e(f's_add_u32 s54, s53, {(j-4)*112*1024}')
            e.vm(f'buffer_store_dwordx4 {vr(16+4*(j-4),4)}, v5, {SWS}, s54 offen sc1')
    for j in range(10, 14 if not OPT['p2park'] else 0):
        e.wait_ds(trt[j])
        e(f's_add_u32 s54, s53, {j*112*1024}')
        e.vm(f'buffer_store_dwordx4 {vr(16+4*j,4)}, v5, {SWS}, s54 offen sc1')
    stamp(e, 'P2.stored')
    e(f's_branch {done}')
    e.label(nojob)
    gen_TC(e)
    gen_G(e)
    e.label(done)
    e.wait_vm_all()
    stamp(e, 'P2.drained')
assert all(((p * 18725) >> 20) == p // 56 for p in range(3584)), "magic /56"

def phase_b(e):
    e.c('======== window 1 + phase B')
    e('s_and_b32 s56, s2, 7')
    e('s_lshr_b32 s57, s2, 3')
    e('s_mul_i32 s52, s57, 37')
    e('s_lshr_b32 s52, s52, 8')
    e('s_mul_i32 s53, s52, 7')
    e('s_sub_u32 s53, s57, s53')
    e('s_lshl_b32 s52, s52, 3')
    e('s_add_u32 s56, s56, s52')
    e('s_lshl_b32 s53, s53, 1')
    e(f's_lshr_b32 s54, s{sW}, 1')
    e('s_add_u32 s57, s53, s54')
    e('s_lshr_b32 s59, s53, 2')
    e(f's_and_b32 s58, s{sW}, 1')
    FC, FS, FN = 16, 32, 48
    TIN, BF, WR, WI, XA, YR, YI, YF = 64, 80, 96, 104, 112, 128, 136, 144
    e('s_cmp_lt_u32 s57, 7')
    e('s_cselect_b32 s52, 2, 1')
    e('s_cselect_b32 s53, 0, 7')
    e('s_sub_u32 s53, s57, s53')
    e('s_lshl_b32 s53, s53, 5')
    e('s_add_u32 s53, s53, s52')
    e('v_lshlrev_b32 v6, 1, v2')
    e('v_add_u32 v6, s53, v6')
    e('v_lshlrev_b32 v6, 1, v6')
    e('v_lshlrev_b32 v7, 7, v3')
    e('s_lshl_b32 s52, s58, 10')
    e('s_add_u32 s52, s52, s56')
    e('v_add_u32 v7, s52, v7')
    e('v_mul_u32_u24 v7, 450, v7')
    e('v_add_u32 v6, v6, v7')
    wtok = {}
    for mtl in range(2):
        for r in range(4):
            e(f's_mov_b32 s52, {(16*mtl+r)*14400}')
            e.vm(f'buffer_load_short_d16_hi v{WR+mtl*4+r}, v6, {SWR}, s52 offen')
            wtok[(mtl, r)] = e.vm(f'buffer_load_short_d16_hi v{WI+mtl*4+r}, v6, {SWI}, s52 offen')
    CO, SI, TH = 160, 176, 192
    groups = []
    main = []
    em = main.append
    em('s_lshl_b32 s52, s58, 5')
    em('v_add_u32 v8, s52, v2')
    em('v_cvt_f32_u32 v8, v8')
    em(f'v_mul_f32 v8, {lit(1.0/64)}, v8')
    em('v_lshlrev_b32 v9, 2, v3')
    for tt in range(2):
        em(f's_xor_b32 s52, s58, {tt}')
        em('s_lshl_b32 s52, s52, 5')
        em('v_add_u32 v10, s52, v9')
        em('v_cvt_f32_u32 v10, v10')
        em('v_mul_f32 v10, v10, v8')
        for j in range(8):
            cst = 16 * (j >> 2) + (j & 3)
            if cst == 0: em(f'v_mov_b32 v{TH+j}, v10')
            else: em(f'v_fmamk_f32 v{TH+j}, v8, {lit(float(cst))}, v10')
        for j in range(8): em(f'v_cos_f32 v{CO+tt*8+j}, v{TH+j}')
        for j in range(8): em(f'v_sin_f32 v{SI+tt*8+j}, v{TH+j}')
    def rot(kind, t, j, mt):
        qt = (mt * (j & 3)) & 3
        c, s = f'v{CO+t*8+j}', f'v{SI+t*8+j}'
        if kind == 'C': return [c, '-' + s, '-' + c, s][qt]
        if kind == 'S': return [s, c, '-' + s, '-' + c][qt]
        if kind == 'N': return ['-' + s, '-' + c, s, c][qt]
    for kind, base in (('C', FC), ('S', FS), ('N', FN)):
        for mtl in range(2):
            for tt in range(2):
                for i in range(4):
                    em(f'v_cvt_pk_bf16_f32 v{base+(mtl*2+tt)*4+i}, {rot(kind,tt,2*i,mtl)}, {rot(kind,tt,2*i+1,mtl)}')
    emit_interleaved(e, main, groups)
    if not OPT['p1slot']: p1_finish(e)
    stamp(e, 'W1.p1')
    e('s_mul_i32 s60, s56, 14')
    e('s_add_u32 s60, s60, s57')
    e('s_lshl_b32 s60, s60, 12')
    e(f's_add_u32 s60, s60, 0x{T1_OFF:x}')
    e('v_lshlrev_b32 v11, 8, v3')
    e('v_lshlrev_b32 v10, 2, v2')
    e('v_add_u32 v11, v11, v10')
    stamp(e, 'W1.ready')
    def idx(e):
        e('v_and_b32 v5, 7, v1')
        e('v_lshrrev_b32 v6, 3, v1')
        e('v_lshlrev_b32 v6, 5, v6')
        e('v_add_u32 v5, v5, v6')
        e('s_lshl_b32 s53, s59, 3')
        e('v_add_u32 v5, s53, v5')
        e('v_lshlrev_b32 v5, 6, v5')
    poll(e, 0, 64, idx)
    stamp(e, 'B.go')
    tin = {}
    for tt in range(2):
        e(f's_xor_b32 s52, s58, {tt}')
        e('s_lshl_b32 s52, s52, 11')
        e('s_add_u32 s52, s52, s60')
        for j in range(8):
            off = (16 * (j >> 2) + (j & 3)) * 64
            tin[(tt, j)] = e.vm(f'buffer_load_dword v{TIN+tt*8+j}, v11, {SWS}, s52 offen offset:{off} sc1')
    if OPT['p1slot']: p1_finish(e, R=112)
    else: gen_G(e)
    e('s_mov_b32 s52, 0x05040100')
    e('s_mov_b32 s53, 0x07060302')
    for tt in range(2):
        e.wait_vm(tin[(tt, 7)])
        for i in range(4):
            e(f'v_perm_b32 v{BF+tt*4+i}, v{TIN+tt*8+2*i+1}, v{TIN+tt*8+2*i}, s52')
            e(f'v_perm_b32 v{BF+8+tt*4+i}, v{TIN+tt*8+2*i+1}, v{TIN+tt*8+2*i}, s53')
    stamp(e, 'B.loaded')
    def fr(base, mtl, tt): return vr(base + (mtl * 2 + tt) * 4, 4)
    def mm(d, a, b, first): e(f'v_mfma_f32_16x16x32_bf16 {vr(d,4)}, {a}, {vr(b,4)}, {"0" if first else vr(d,4)}')
    BRE = lambda t: BF + t * 4
    BIM = lambda t: BF + 8 + t * 4
    for step in range(4):
        for mtl in range(2):
            xr, xi = XA + mtl * 8, XA + mtl * 8 + 4
            tt = step & 1
            if step < 2:
                mm(xr, fr(FC, mtl, tt), BRE(tt), step == 0); mm(xi, fr(FN, mtl, tt), BRE(tt), step == 0)
            else:
                mm(xr, fr(FS, mtl, tt), BIM(tt), False); mm(xi, fr(FC, mtl, tt), BIM(tt), False)
    e.wait_vm(wtok[(1, 3)])
    for mtl in range(2):
        for r in range(4):
            xr, xi = XA + mtl * 8 + r, XA + mtl * 8 + 4 + r
            wr, wi = WR + mtl * 4 + r, WI + mtl * 4 + r
            e(f'v_mul_f32 v{YR+mtl*4+r}, v{xr}, v{wr}')
            e(f'v_mul_f32 v{YI+mtl*4+r}, v{xr}, v{wi}')
            e(f'v_fma_f32 v{YR+mtl*4+r}, -v{xi}, v{wi}, v{YR+mtl*4+r}')
            e(f'v_fma_f32 v{YI+mtl*4+r}, v{xi}, v{wr}, v{YI+mtl*4+r}')
    for c, src in ((0, YR), (1, YI)):
        for i in range(4):
            e(f'v_cvt_pk_bf16_f32 v{YF+c*8+i}, v{src+(i>>1)*4+2*(i&1)}, v{src+(i>>1)*4+2*(i&1)+1}')
    e('v_lshlrev_b32 v10, 4, v1')
    e(f's_lshl_b32 s52, s{sW}, 11')
    e('v_add_u32 v12, s52, v10')
    e(f's_xor_b32 s52, s{sW}, 1')
    e('s_lshl_b32 s52, s52, 11')
    e('v_add_u32 v13, s52, v10')
    e.ds(f'ds_write_b128 v12, {vr(YF,4)}')
    e.ds(f'ds_write_b128 v12, {vr(YF+8,4)} offset:1024')
    e.wait_ds_all()
    e.barrier()
    p0 = e.ds(f'ds_read_b128 {vr(YF+4,4)}, v13')
    p1_ = e.ds(f'ds_read_b128 {vr(YF+12,4)}, v13 offset:1024')
    YRE = lambda t: YF + t * 4
    YIM = lambda t: YF + 8 + t * 4
    for mtl in range(2):
        xr, xi = XA + mtl * 8, XA + mtl * 8 + 4
        mm(xr, fr(FC, mtl, 0), YRE(0), True);  mm(xi, fr(FS, mtl, 0), YRE(0), True)
        mm(xr, fr(FN, mtl, 0), YIM(0), False); mm(xi, fr(FC, mtl, 0), YIM(0), False)
    e.wait_ds(p1_)
    for mtl in range(2):
        xr, xi = XA + mtl * 8, XA + mtl * 8 + 4
        mm(xr, fr(FC, mtl, 1), YRE(1), False); mm(xi, fr(FS, mtl, 1), YRE(1), False)
        mm(xr, fr(FN, mtl, 1), YIM(1), False); mm(xi, fr(FC, mtl, 1), YIM(1), False)
    e('s_mov_b32 s52, %d' % (4 * 28672))
    e('v_mul_lo_u32 v4, v3, s52')
    e('v_lshlrev_b32 v5, 2, v2')
    e('v_add_u32 v4, v4, v5')
    e('s_lshl_b32 s52, s57, 11')
    e('s_lshl_b32 s53, s56, 6')
    e('s_add_u32 s52, s52, s53')
    e(f's_mul_i32 s53, s58, {32*28672}')
    e('s_add_u32 s52, s52, s53')
    last = None
    for mtl in range(2):
        for r in range(4): e(f'v_cvt_pk_bf16_f32 v{TIN+mtl*4+r}, v{XA+mtl*8+r}, v{XA+mtl*8+4+r}')
        for r in range(4):
            e(f's_add_u32 s53, s52, {T2_OFF + (16*mtl+r)*28672}')
            last = e.vm(f'buffer_store_dword v{TIN+mtl*4+r}, v4, {SWS}, s53 offen sc1')
    stamp(e, 'B.stored')
    e.wait_vm_all()
    stamp(e, 'B.drained')

def phase_c(e):
    e.c('======== window 2 + phase C')
    e(f's_lshl_b32 s56, s{sGRP}, 2')
    e(f's_add_u32 s56, s56, s{sW}')
    e('s_min_u32 s57, s56, 13')
    G, TC, AIN, VA, PA, XR = C_G, C_TC, 104, 136, 48, 64
    MEAN = XR + 8
    e('v_lshlrev_b32 v5, 6, v2')
    e(f'v_add_u32 v5, s{sB}, v5')
    e('v_mul_u32_u24 v5, 896, v5')
    e('v_lshlrev_b32 v6, 3, v3')
    e('v_add_u32 v5, v5, v6')
    e('s_lshl_b32 s52, s57, 5')
    e('v_add_u32 v5, s52, v5')
    for nt in range(2):
        for pm in range(2):
            e(f's_mov_b32 s52, {nt*16*64*896}')
            e.vm(f'buffer_load_dwordx2 {vr(XR+(nt*2+pm)*2,2)}, v5, {SX}, s52 offen offset:{448*pm}')
    e('v_lshlrev_b32 v12, 2, v1')
    stamp(e, 'W2.ready')
    def idx(e): e('v_lshlrev_b32 v5, 6, v1')
    poll(e, 1, 256, idx, preg=100)
    stamp(e, 'C.go')
    w13_setup(e)
    WG = w13_load_groups()
    wgi = [0]
    def wload(n):
        for _ in range(n):
            if wgi[0] < len(WG):
                emit_groups(e, [WG[wgi[0]]]); wgi[0] += 1
    atok = {}
    for i in range(4):
        e(f's_add_u32 s52, s{sW}, {4*i}')
        e('s_min_u32 s52, s52, 13')
        e(f's_mul_i32 s53, s{sB}, 14')
        e('s_add_u32 s52, s52, s53')
        e('s_lshl_b32 s52, s52, 11')
        e(f's_add_u32 s52, s52, 0x{T2_OFF:x}')
        for t in range(2):
            for ii in range(4):
                atok[(i, t, ii)] = e.vm(f'buffer_load_dword v{AIN+i*8+t*4+ii}, v12, {SWS}, s52 offen offset:{(16*t+4*ii)*64} sc1')
    e('v_lshlrev_b32 v6, 2, v2')
    e(f's_lshl_b32 s52, s{sB}, 7')
    e(f's_add_u32 s52, s52, 0x{ST1_OFF:x}')
    mtok = [e.vm(f'buffer_load_dword v{MEAN+nt}, v6, {SWS}, s52 offen offset:{64*nt} sc1') for nt in range(2)]
    e('v_lshlrev_b32 v11, 4, v1')
    if OPT['p2park']:
        skp = L('p2st')
        e('s_cmp_lt_u32 s2, 224')
        e(f's_cbranch_scc1 {skp}')
        e('s_cmp_ge_u32 s2, 252')
        e(f's_cbranch_scc1 {skp}')
        for j in range(14):
            e(f's_add_u32 s52, s99, {j*112*1024}')
            e(f'buffer_store_dwordx4 {vr(P2PARK[j],4)}, v11, {SWS}, s52 offen sc1')
        e.label(skp)
    e(f's_lshl_b32 s52, s{sW}, 11')
    e('v_add_u32 v12, s52, v11')
    PK = 76
    for i in range(4):
        e.wait_vm(atok[(i, 1, 3)])
        if i == 0: stamp(e, 'C.loaded')
        for nt in range(2):
            for out in range(2):
                d = VA + (out * 2 + nt) * 4
                e(f'v_mfma_f32_16x16x32_bf16 {vr(d,4)}, {vr(AIN+i*8,4)}, {vr(G+((out*2+0)*2+nt)*4,4)}, 0')
        for nt in range(2):
            for out in range(2):
                d = VA + (out * 2 + nt) * 4
                e(f'v_mfma_f32_16x16x32_bf16 {vr(d,4)}, {vr(AIN+i*8+4,4)}, {vr(G+((out*2+1)*2+nt)*4,4)}, {vr(d,4)}')
        sk = L('skip3')
        if i == 3:
            e(f's_cmp_ge_u32 s{sW}, 2')
            e(f's_cbranch_scc1 {sk}')
        for nt in range(2):
            p = PK + nt * 4 + (i & 1) * 8
            vre, vim = VA + (0 * 2 + nt) * 4, VA + (1 * 2 + nt) * 4
            e(f'v_cvt_pk_bf16_f32 v{p+0}, v{vre+0}, v{vre+1}')
            e(f'v_cvt_pk_bf16_f32 v{p+1}, v{vre+2}, v{vre+3}')
            e(f'v_cvt_pk_bf16_f32 v{p+2}, v{vim+0}, v{vim+1}')
            e(f'v_cvt_pk_bf16_f32 v{p+3}, v{vim+2}, v{vim+3}')
            e.ds(f'ds_write_b128 v12, {vr(p,4)} offset:{(4*i*2+nt)*1024}')
        if i == 3: e.label(sk)
        wload(OPT['st1'])
    e.wait_ds_all()
    stamp(e, 'C.st1')
    if OPT['p2mode'] == 1: signal(e, 4)
    else: e.barrier()
    VB = 16
    order = [(kb, nt) for kb in range(14) for nt in range(2)]
    tok = {}
    nread = [0]
    def issue():
        kb, nt = order[nread[0]]
        tok[nread[0]] = e.ds(f'ds_read_b128 {vr(VB+(nread[0]%8)*4,4)}, v11 offset:{(kb*2+nt)*1024}')
        nread[0] += 1
    for _ in range(7): issue()
    for idx_, (kb, nt) in enumerate(order):
        e.wait_ds(tok[idx_])
        par = 0 if kb < 7 else 1
        d = PA + (par * 2 + nt) * 4
        first = kb in (0, 7)
        e(f'v_mfma_f32_16x16x32_bf16 {vr(d,4)}, {vr(TC+kb*4,4)}, {vr(VB+(idx_%8)*4,4)}, {"0" if first else vr(d,4)}')
        if nread[0] < len(order): issue()
        if OPT['st2'] and idx_ % OPT['st2'] == OPT['st2'] - 1: wload(1)
    stamp(e, 'C.st2')
    e.wait_vm(mtok[1])
    H, HP, CP, SQ = 104, 120, 128, 92
    e('s_mov_b32 s52, 0xffff0000')
    for nt in range(2):
        pe, po = PA + nt * 4, PA + 8 + nt * 4
        for pm in range(2):
            xr = XR + (nt * 2 + pm) * 2
            for r in range(4):
                hv = H + (nt * 2 + pm) * 4 + r
                e(f'{"v_add_f32" if pm == 0 else "v_sub_f32"} v{hv}, v{pe+r}, v{po+r}')
                xv = 96 + r
                if r & 1: e(f'v_and_b32 v{xv}, s52, v{xr+(r>>1)}')
                else: e(f'v_lshlrev_b32 v{xv}, 16, v{xr+(r>>1)}')
            for r in range(4):
                hv = H + (nt * 2 + pm) * 4 + r
                e(f'v_add_f32 v{hv}, v{hv}, v{96+r}')
            for i in range(2):
                hv = H + (nt * 2 + pm) * 4 + 2 * i
                e(f'v_cvt_pk_bf16_f32 v{HP+nt*4+pm*2+i}, v{hv}, v{hv+1}')
        e(f'v_mov_b32 v{SQ+nt}, 0')
        for q in range(4):
            hp = HP + nt * 4 + q
            e(f'v_lshlrev_b32 v100, 16, v{hp}')
            e(f'v_and_b32 v101, s52, v{hp}')
            e(f'v_sub_f32 v100, v100, v{MEAN+nt}')
            e(f'v_sub_f32 v101, v101, v{MEAN+nt}')
            e(f'v_fma_f32 v{SQ+nt}, v100, v100, v{SQ+nt}')
            e(f'v_fma_f32 v{SQ+nt}, v101, v101, v{SQ+nt}')
            e(f'v_cvt_pk_bf16_f32 v{CP+nt*4+q}, v100, v101')
            wload(OPT['epi'])
    e('v_lshrrev_b32 v4, 1, v3')
    e('v_lshlrev_b32 v4, 10, v4')
    e('v_and_b32 v5, 1, v3')
    e('v_lshlrev_b32 v5, 9, v5')
    e('v_add_u32 v4, v4, v5')
    e('v_lshlrev_b32 v5, 4, v2')
    e('v_add_u32 v4, v4, v5')
    e(f's_mul_i32 s52, s{sB}, 28')
    e('s_lshl_b32 s53, s57, 1')
    e('s_add_u32 s52, s52, s53')
    e('s_lshl_b32 s52, s52, 10')
    ns, st = L('cnostore'), L('cstat')
    e('s_cmp_ge_u32 s56, 14')
    e(f's_cbranch_scc1 {ns}')
    e(f's_add_u32 s53, s52, 0x{HC_OFF:x}')
    e(f's_add_u32 s54, s52, 0x{HR_OFF:x}')
    for nt in range(2):
        e(f'buffer_store_dwordx4 {vr(CP+nt*4,4)}, v4, {SWS}, s53 offen offset:{256*nt} sc1')
        e(f'buffer_store_dwordx4 {vr(HP+nt*4,4)}, v4, {SWS}, s54 offen offset:{256*nt} sc1')
    e.label(ns)
    for nt in range(2): xsum_groups(e, SQ + nt, 102)
    e('s_cmp_lt_u32 s56, 14')
    e(f's_cbranch_scc1 {st}')
    e(f'v_mov_b32 v{SQ}, 0')
    e(f'v_mov_b32 v{SQ+1}, 0')
    e.label(st)
    e('v_cmp_le_u32 vcc, 16, v1')
    e(f'v_cndmask_b32 v{SQ}, v{SQ}, v{SQ+1}, vcc')
    e('v_lshlrev_b32 v5, 2, v1')
    e(f's_lshl_b32 s52, s{sB}, 11')
    e('s_lshl_b32 s53, s56, 7')
    e('s_add_u32 s52, s52, s53')
    e(f's_add_u32 s52, s52, 0x{ST2_OFF:x}')
    e('s_mov_b64 exec, 0xffffffff')
    last = e.vm(f'buffer_store_dword v{SQ}, v5, {SWS}, s52 offen sc1')
    e('s_mov_b64 exec, -1')
    stamp(e, 'C.stored')
    wload(OPT['post'])
    e.wait_vm(last)
    stamp(e, 'C.drained')
    signal(e, 2)
    global W13_PENDING
    W13_PENDING = (WG, wgi)

NV, NE = 27, 35
def w2reg(mi, s_):
    o = 2 * s_ + mi
    if o < NV: return vr(144 + 4 * o, 4), None
    if o < NE: return ar(224 + 4 * (o - NV), 4), None
    oo = o - NE
    return ar(((oo & 1) * 28 + (oo >> 1)) * 4, 4), (oo & 1, oo >> 1)

def phase_g(e):
    e.c('======== window 3 + G1')
    WG, wgi = W13_PENDING
    wtok = {}
    for _ in range(min(OPT['w3'], len(WG) - wgi[0])):
        wtok[wgi[0]] = emit_groups(e, [WG[wgi[0]]]); wgi[0] += 1
    e('v_lshlrev_b32 v4, 4, v1')
    e(f's_lshl_b32 s56, s{sC}, 3')
    e(f's_lshl_b32 s52, s{sW}, 1')
    e('s_add_u32 s56, s56, s52')
    e(f's_lshl_b32 s57, s{sR}, 2')
    e('s_and_b32 s58, s2, 7')
    e('s_lshr_b32 s59, s2, 3')
    e('s_mul_i32 s52, s59, 37')
    e('s_lshr_b32 s52, s52, 8')
    e('s_mul_i32 s53, s52, 7')
    e('s_sub_u32 s59, s59, s53')
    e('s_lshl_b32 s52, s52, 3')
    e('s_add_u32 s58, s58, s52')
    e(f's_mul_i32 s52, s{sW}, 28')
    e(f's_and_b32 s54, s{sW}, 1')
    for mi in range(2):
        e(f's_xor_b32 s53, s54, {mi}')
        e('s_lshl_b32 s55, s59, 1')
        e('s_add_u32 s53, s53, s55')
        e('s_mul_i32 s53, s53, 112')
        e('s_add_u32 s53, s53, s52')
        e('s_lshl_b32 s53, s53, 10')
        e(f's_add_u32 s{60+mi}, s53, 0x{W2_OFF:x}')
    e(f's_lshr_b32 s53, s{sW}, 1')
    e('s_lshl_b32 s53, s53, 4')
    e('v_xor_b32 v10, s53, v1')
    e('v_lshlrev_b32 v10, 4, v10')
    e('v_min_u32 v8, 13, v1')
    e('v_lshrrev_b32 v9, 1, v8')
    e('v_and_b32 v8, 1, v8')
    e('v_lshlrev_b32 v8, 7, v8')
    e('v_add_u32 v8, v8, v9')
    e('s_lshr_b32 s53, s58, 1')
    e('s_lshl_b32 s53, s53, 3')
    e('v_add_u32 v8, s53, v8')
    e('v_lshlrev_b32 v8, 6, v8')
    def grp_off(dst, g):
        if not OPT['g2rot']: return [f's_mov_b32 s{dst}, {g*4096}']
        return [f's_add_u32 s{dst}, s59, {g}', f's_cmp_ge_u32 s{dst}, 7', f's_cselect_b32 s55, 7, 0',
                f's_sub_u32 s{dst}, s{dst}, s55', f's_lshl_b32 s{dst}, s{dst}, 12']
    def w2load(o):
        s_, mi = o >> 1, o & 1
        reg, dep = w2reg(mi, s_)
        pre = []
        if s_ % 4 == 0 and mi == 0:
            pre = grp_off(62, s_ // 4) + ['s_add_u32 s63, s61, s62', 's_add_u32 s62, s60, s62']
        return pre + [('vm', f'buffer_load_dwordx4 {reg}, v10, {SWS}, s{62+mi} offen offset:{(s_%4)*1024} sc1')]
    def idx0(e): idx(e, True)
    def idx(e, skipw=False):
        e('v_lshrrev_b32 v5, 2, v1')
        e('v_add_u32 v5, s57, v5')
        e('v_and_b32 v6, 7, v5')
        e('v_lshrrev_b32 v5, 3, v5')
        e('v_lshlrev_b32 v5, 5, v5')
        e('v_add_u32 v5, v5, v6')
        e('v_and_b32 v6, 3, v1')
        e('v_lshlrev_b32 v6, 3, v6')
        e('v_add_u32 v5, v5, v6')
        e('v_lshlrev_b32 v5, 6, v5')
        if not skipw: idxw(e, 16)
    def idxw(e, first):
        e(f'v_add_u32 v6, {208 if first == 16 else 224}, v1')
        e('v_lshlrev_b32 v6, 6, v6')
        if not OPT['p2park']: e(f'v_add_u32 v6, {2*0x40000}, v6')
        if first:
            e(f'v_cmp_le_u32 vcc, {first}, v1')
            e('v_cndmask_b32 v5, v5, v6, vcc')
        else:
            e('v_mov_b32 v5, v6')
    e(f's_cmp_ge_u32 s{sC}, 14')
    e('s_cbranch_scc1 L_g2only')
    if OPT['p2mode'] == 1:
        poll(e, 4, 256, lambda e_: e_('v_lshlrev_b32 v5, 6, v1'), preg=232, bar=False)
        poll(e, 2, 16, idx0)
    elif OPT['p2park']:
        poll(e, 2, 16, idx0)
    else:
        poll(e, 2, 44, idx)
    stamp(e, 'G1.go')
    ACC, BR, RRG, T = 64, 16, 48, 128
    ST = 208
    dtok = {}
    e(f's_mul_i32 s96, s{sW}, 7168')
    e(f's_add_u32 s98, s{sR}, s{sW}')
    e('s_and_b32 s98, s98, 3')
    e('s_mul_i32 s98, s98, 7168')
    def hc_groups(nt):
        gs = []
        for i in range(7):
            g = []
            if i == 0:
                g += [f's_add_u32 s97, s57, {nt}', 's_mul_i32 s97, s97, 28672', 's_add_u32 s97, s97, s98', f's_add_u32 s97, s97, 0x{HC_OFF:x}']
            if i == 4: g += ['s_add_u32 s97, s97, 4096']
            if i in (0, 4): g += [f's_add_u32 m0, s96, {nt*28672 + (4096 if i == 4 else 0)}']
            g.append(('vm', f'buffer_load_dwordx4 v4, {SWS}, s97 offen offset:{(i%4)*1024} sc1 lds', ('hc', nt)))
            gs.append(g)
        return gs
    STK = []; STORES = []
    def emit_op(op):
        if isinstance(op, tuple) and op[0] == 'ds':
            STK.append(e.ds(op[1])); return None
        if isinstance(op, tuple) and op[0] == 'dswait':
            e.wait_ds(STK[op[1] * 8 + 7]); return None
        if isinstance(op, tuple):
            t = e.vm(op[1])
            if len(op) > 2:
                if op[2][0] == 'store': STORES.append(t)
                if op[2][0] == 'hc': dtok[op[2][1]] = t
                if op[2][0] == 'st': dtok['st'] = t
            return t
        e(op); return None
    for g in hc_groups(0):
        for op in g: emit_op(op)
    e(f's_add_u32 s54, s57, s{sW}')
    e('s_lshl_b32 s54, s54, 11')
    e(f's_add_u32 s54, s54, 0x{ST2_OFF:x}')
    e(f's_lshl_b32 s55, s{sW}, 11')
    e(f's_add_u32 m0, s55, {LDS_STATS}')
    e.vm(f'buffer_load_dwordx4 v4, {SWS}, s54 offen sc1 lds')
    dtok[0] = e.vm(f'buffer_load_dwordx4 v4, {SWS}, s54 offen offset:1024 sc1 lds')
    while wgi[0] < len(WG):
        wtok[wgi[0]] = emit_groups(e, [WG[wgi[0]]]); wgi[0] += 1
    e('v_add_u32 v6, 57344, v4')
    e('v_and_b32 v5, 31, v1')
    e('v_lshlrev_b32 v5, 2, v5')
    e('v_lshrrev_b32 v7, 5, v1')
    e('v_lshlrev_b32 v7, 10, v7')
    e('v_add_u32 v5, v5, v7')
    e(f'v_add_u32 v5, {LDS_STATS}, v5')
    def stat_ops():
        ops = []
        for nt in range(4):
            b0 = ST + nt * 8
            for i in range(8): ops.append(('ds', f'ds_read_b32 v{b0+i}, v5 offset:{nt*2048 + i*128}'))
        for nt in range(4):
            b0 = ST + nt * 8
            ops.append(('dswait', nt))
            ops += [f'v_add_f32 v{b0}, v{b0}, v{b0+1}', f'v_add_f32 v{b0+2}, v{b0+2}, v{b0+3}', f'v_add_f32 v{b0+4}, v{b0+4}, v{b0+5}',
                    f'v_add_f32 v{b0+6}, v{b0+6}, v{b0+7}', f'v_add_f32 v{b0}, v{b0}, v{b0+2}', f'v_add_f32 v{b0+4}, v{b0+4}, v{b0+6}',
                    f'v_add_f32 v{b0}, v{b0}, v{b0+4}', f'v_mov_b32 v{b0+1}, v{b0}', f'v_mov_b32 v7, {lit(1e-5)}',
                    f'v_permlane32_swap_b32 v{b0+1}, v{b0}', f'v_add_f32 v{b0}, v{b0}, v{b0+1}',
                    f'v_fmamk_f32 v{RRG+4+nt}, v{b0}, {lit(1.0/448)}, v7', f'v_rsq_f32 v{b0}, v{RRG+4+nt}', 's_nop 0',
                    f'v_mul_f32 v{RRG+nt}, {lit(-1.4426950408889634)}, v{b0}']
        return ops
    def epi_half(nt, mi):
        ops = []
        a = ACC + ((nt & 1) * 2 + mi) * 16
        T0 = T
        for r in range(8): ops.append(f'v_mul_f32 v{T0+r}, v{a+r}, v{RRG+nt}')
        for r in range(8):
            ops.append(f'v_exp_f32 v{T0+r}, v{T0+r}')
            ops.append(f'v_mul_f32 v{T0+8+r}, v{a+r}, v{a+8+r}')
        for r in range(8): ops.append(f'v_fma_f32 v{T0+r}, v{T0+r}, v{RRG+4+nt}, v{RRG+4+nt}')
        for r in range(8): ops.append(f'v_rcp_f32 v{T0+r}, v{T0+r}')
        for r in range(8): ops.append(f'v_mul_f32 v{T0+8+r}, v{T0+8+r}, v{T0+r}')
        P = 56 + mi * 4
        for i in range(4): ops.append(f'v_cvt_pk_bf16_f32 v{P+i}, v{T0+8+2*i}, v{T0+8+2*i+1}')
        ops.append(f's_add_u32 s53, s99, {nt*112*1024 + mi*1024}')
        ops.append(('vm', f'buffer_store_dwordx4 {vr(P,4)}, v4, {SWS}, s53 offen sc1', ('store',)))
        return ops
    def epi_ops(nt): return epi_half(nt, 0) + epi_half(nt, 1)
    e('s_mul_i32 s99, s57, 112')
    e('s_add_u32 s99, s99, s56')
    e('s_lshl_b32 s99, s99, 10')
    e(f's_add_u32 s99, s99, 0x{HM_OFF:x}')
    n1 = OPT['w2t1']
    bg = {0: hc_groups(1) + hc_groups(2), 1: hc_groups(3) + [w2load(o) for o in range(0, n1)],
          2: [w2load(o) for o in range(n1, NE)], 3: []}
    last_store = None
    next_late = NE
    def g2_bases(em):
        em('s_lshr_b32 s52, s58, 1')
        em('s_lshl_b32 s52, s52, 2')
        em('s_and_b32 s53, s58, 1')
        em('s_add_u32 s100, s52, s53')
        em('s_sub_u32 s101, s52, s53')
        em('s_add_u32 s101, s101, 3')
        em(f's_mul_i32 s52, s{sW}, 28')
        for k in range(2):
            em(f's_mul_i32 s53, s{100+k}, 112')
            em('s_add_u32 s53, s53, s52')
            em('s_lshl_b32 s53, s53, 10')
            em(f's_add_u32 s{88+k}, s53, 0x{HM_OFF:x}')
    g2_bases(e)
    RING = 64
    rtok = {}
    def ring_load(ph, i):
        if i % 4 == 0: e(f's_add_u32 s90, s{88+ph}, {i*1024}')
        rtok[(ph, i)] = e.vm(f'buffer_load_dwordx4 {vr(RING+(i%8)*4,4)}, v4, {SWS}, s90 offen offset:{(i%4)*1024} sc1')
    def early_check(tok_, addr=8):
        dn, lp = L('ec'), L('ec')
        e(f's_mov_b32 s{sSPIN}, 0')
        e.label(lp)
        if tok_ is None:
            e(f'buffer_load_dword v9, v{addr}, {SWS}, s91 offen sc1')
            e('s_waitcnt vmcnt(0)')
        e(f'v_cmp_ne_u32 vcc, s{sNONCE}, v9')
        e('s_nop 4')
        e(f's_cbranch_vccz {dn}')
        if tok_ is not None:
            e(f'buffer_load_dword v9, v{addr}, {SWS}, s91 offen sc1')
            e('s_waitcnt vmcnt(0)')
        e(f's_add_u32 s{sSPIN}, s{sSPIN}, 1')
        e(f's_cmp_lt_u32 s{sSPIN}, {MAXSPIN}')
        e(f's_cbranch_scc1 {lp}')
        e.label(dn)
    etok = None
    for nt in range(4):
        e.wait_vm(dtok[nt])
        if nt == 1 and OPT['p2park']:
            e.wait_vm(wtk)
            early_check(wtk, addr=11)
        e.barrier()
        if nt == 0: stamp(e, 'G1.t0')
        fill = epi_ops(nt - 1) if nt > 0 else stat_ops()
        sttok = []
        fi = 0; gi = 0
        btok = {}
        n = [0]
        def issue():
            kap = n[0]
            base = 'v4' if nt < 2 else 'v6'
            off = ((nt & 1) * 28 + kap) * 1024
            btok[kap] = e.ds(f'ds_read_b128 {vr(BR+(kap%8)*4,4)}, {base} offset:{off}')
            n[0] += 1
        for _ in range(5): issue()
        nm = 0
        G_ = bg[nt]
        for kap in range(28):
            e.wait_ds(btok[kap])
            for mi in range(2):
                a = ACC + ((nt & 1) * 2 + mi) * 16
                if nt == 0 and (kap * 2 + mi) in wtok: e.wait_vm(wtok[kap * 2 + mi])
                e(f'v_mfma_f32_32x32x16_bf16 {vr(a,16)}, {ar((mi*28+kap)*4,4)}, {vr(BR+(kap%8)*4,4)}, {"0" if kap == 0 else vr(a,16)}')
                nm += 1
                if mi == 0 and n[0] < 28: issue()
                span = 24 if nt == 3 else 56
                want = (len(G_) * nm + span - 1) // span
                while gi < min(want, len(G_)):
                    for op in G_[gi]: emit_op(op)
                    gi += 1
                if nt == 3 and gi >= len(G_) and nm * 21 >= (next_late - NE + 1) * OPT['latesp'] and next_late < 56:
                    dep = w2reg(next_late & 1, next_late >> 1)[1]
                    if dep[1] * 2 + dep[0] < nm:
                        for op in w2load(next_late): emit_op(op)
                        next_late += 1
                if nt == 0 and nm == 36 and OPT['p2park']:
                    e('v_min_u32 v9, 27, v1')
                    e('v_add_u32 v9, 224, v9')
                    e('v_lshlrev_b32 v11, 6, v9')
                    e(f's_add_u32 s91, s{sREP}, 0x{FL_OFF + 2*0x40000:x}')
                    wtk = e.vm(f'buffer_load_dword v9, v11, {SWS}, s91 offen sc1')
                if nt == 3 and nm == OPT['eflag']:
                    e.wait_vm(STORES[3])
                    e.barrier()
                    flag_store(e, 5)
                if nm > 3:
                    fs = OPT['fspan'] if nt == 2 else 50
                    want = (len(fill) * (nm - 3) + fs - 1) // fs
                    while fi < min(want, len(fill)):
                        t = emit_op(fill[fi]); fi += 1
        while fi < len(fill):
            emit_op(fill[fi]); fi += 1
        stamp(e, f'G1.tile{nt}')
    for op in epi_ops(3):
        t = emit_op(op)
        if isinstance(op, tuple): last_store = t
    stamp(e, 'G1.stored')
    assert next_late == 56
    skr, skr2 = L('nog2'), L('nog2')
    e('s_cmp_ge_u32 s2, 224')
    e(f's_cbranch_scc1 {skr}')
    e(f's_add_u32 s91, s{sREP}, 0x{FL_OFF + 5*0x40000:x}')
    e(f'buffer_load_dword v9, v8, {SWS}, s91 offen sc1')
    e.label(skr)
    e('s_waitcnt vmcnt(0)')
    e.vm_done = e.vm_issued
    stamp(e, 'G1.drained')
    signal(e, 3)
    e('s_cmp_ge_u32 s2, 224')
    e('s_cbranch_scc1 L_fin')
    early_check(0)
    e('s_branch L_g2')
    e.label('L_g2only')
    e('s_cmp_ge_u32 s2, 224')
    e('s_cbranch_scc1 L_fin')
    if OPT['p2mode'] == 1: poll(e, 4, 256, lambda e_: e_('v_lshlrev_b32 v5, 6, v1'), preg=232)
    else: poll(e, 2, 28, lambda e_: idxw(e_, 0))
    for o in range(56):
        for op in w2load(o): e(op[1] if isinstance(op, tuple) else op)
    g2_bases(e)
    e(f's_add_u32 s91, s{sREP}, 0x{FL_OFF + 5*0x40000:x}')
    early_check(None)
    e.label('L_g2')
    for i in range(8): ring_load(0, i)
    e.c('======== G2')
    ACC2, R0, HRR = 16, 96, 140
    e(f's_and_b32 s60, s{sW}, 1')
    e('s_lshl_b32 s53, s59, 1')
    e('s_add_u32 s60, s60, s53')
    e(f's_lshr_b32 s61, s{sW}, 1')
    for k in range(3):
        e(f's_xor_b32 s52, s{sW}, {k+1}')
        e('s_mul_i32 s52, s52, 6144')
        e(f'v_add_u32 v{11+k}, s52, v4')
    e(f's_mul_i32 s52, s{sW}, 6144')
    e('v_add_u32 v133, s52, v4')
    e('v_and_b32 v5, 31, v1')
    e('v_mul_u32_u24 v5, %d, v5' % (64 * 896))
    e('v_lshrrev_b32 v6, 5, v1')
    e('v_mul_u32_u24 v6, 448, v6')
    e('v_add_u32 v132, v5, v6')
    HR_ = {0: 140, 1: 136}
    def accreg(ph, mi, off=0, n=16):
        return vr(ACC2 + mi * 16 + off, n) if ph == 0 else ar(80 + mi * 16 + off, n)
    def hr_load(ph):
        e(f's_mul_i32 s52, s{100+ph}, 28')
        e('s_lshl_b32 s53, s60, 1')
        e('s_add_u32 s52, s52, s53')
        e('s_add_u32 s52, s52, s61')
        e('s_lshl_b32 s52, s52, 10')
        e(f's_add_u32 s52, s52, 0x{HR_OFF:x}')
        return e.vm(f'buffer_load_dwordx4 {vr(HR_[ph],4)}, v4, {SWS}, s52 offen sc1')
    def tail_ops(ph, htok):
        ops = []
        for k, (mi, rh) in enumerate(((1, 0), (0, 1), (1, 1))):
            for qd in range(2):
                ops.append(('ds', f'ds_write_b128 v{11+k}, {accreg(ph, mi, rh*8 + qd*4, 4)} offset:{ph*24576 + k*2048 + qd*1024}'))
        ops.append(('dswaitall',))
        ops.append('s_barrier')
        for k in range(3):
            for qd in range(2):
                ops.append(('ds', f'ds_read_b128 {vr(R0+k*8+qd*4,4)}, v133 offset:{ph*24576 + k*2048 + qd*1024}'))
        if ph == 1:
            for r in range(8): ops.append(f'v_accvgpr_read_b32 v{ACC2+r}, a{80+r}')
        ops.append(('dswaitall',))
        for r in range(8):
            ops.append(f'v_add_f32 v{R0+r}, v{R0+r}, v{R0+8+r}')
            ops.append(f'v_add_f32 v{R0+16+r}, v{R0+16+r}, v{ACC2+r}')
        for r in range(8): ops.append(f'v_add_f32 v{R0+r}, v{R0+r}, v{R0+16+r}')
        ops.append(('vmwait', htok))
        PK, O = 120, 124
        for i in range(4): ops.append(f'v_cvt_pk_bf16_f32 v{PK+i}, v{R0+2*i}, v{R0+2*i+1}')
        for i in range(4):
            ops += [f'v_lshlrev_b32 v128, 16, v{PK+i}', f'v_and_b32 v129, s87, v{PK+i}', f'v_lshlrev_b32 v130, 16, v{HR_[ph]+i}',
                    f'v_and_b32 v131, s87, v{HR_[ph]+i}', 'v_add_f32 v128, v128, v130', 'v_add_f32 v129, v129, v131',
                    f'v_cvt_pk_bf16_f32 v{O+i}, v128, v129']
        ops += [f'v_permlane32_swap_b32 v{O}, v{O+2}', f'v_permlane32_swap_b32 v{O+1}, v{O+3}']
        ops += ['s_lshl_b32 s52, s60, 5', 's_lshl_b32 s53, s61, 4', 's_add_u32 s52, s52, s53', f's_mul_i32 s53, s{100+ph}, 896', 's_add_u32 s52, s52, s53']
        om = ['', ' sc1', ' nt', ' sc0 sc1'][OPT['outmod']]
        ops.append(('vm', f'buffer_store_dwordx4 {vr(O,4)}, v132, {SOUT}, s52 offen{om}'))
        return ops
    def run_op(op):
        if isinstance(op, tuple):
            if op[0] == 'ds': e.ds(op[1])
            elif op[0] == 'dswaitall': e.wait_ds_all()
            elif op[0] == 'vmwait': e.wait_vm(op[1])
            elif op[0] == 'vm': e.vm(op[1])
        else: e(op)
    e('s_mov_b32 s87, 0xffff0000')
    htok = {0: hr_load(0)}
    fill = []; fi = 0
    def rl(tau):
        ph_, i_ = divmod(tau, 28)
        if i_ % 4 == 0: e(f's_add_u32 s90, s{88+ph_}, {i_*1024}')
        rtok[tau] = e.vm(f'buffer_load_dwordx4 {vr(RING+(tau%8)*4,4)}, v4, {SWS}, s90 offen offset:{(i_%4)*1024} sc1')
    for i in range(8): rtok[i] = rtok[(0, i)]
    for tau in range(56):
        ph, i = divmod(tau, 28)
        e.wait_vm(rtok[tau])
        if tau == 0: stamp(e, 'G2.first')
        for mi in range(2):
            e(f'v_mfma_f32_32x32x16_bf16 {accreg(ph, mi)}, {w2reg(mi,i)[0]}, {vr(RING+(tau%8)*4,4)}, {"0" if i == 0 else accreg(ph, mi)}')
        if tau == OPT['lpoll']:
            e(f's_add_u32 s91, s{sREP}, 0x{FL_OFF + 3*0x40000:x}')
            ltok = e.vm(f'buffer_load_dword v9, v8, {SWS}, s91 offen sc1')
        if tau + 8 == 28:
            e.wait_vm(ltok)
            early_check(ltok)
            stamp(e, 'G2.go')
        if tau + 8 < 56: rl(tau + 8)
        if tau == 28:
            htok[1] = hr_load(1)
            fill = tail_ops(0, htok[0])
        if tau == 27: stamp(e, 'G2.mfma0')
        if tau > 28:
            want = (len(fill) * (tau - 28) + 23) // 24
            while fi < min(want, len(fill)):
                run_op(fill[fi]); fi += 1
    while fi < len(fill):
        run_op(fill[fi]); fi += 1
    stamp(e, 'G2.mfma1')
    for op in tail_ops(1, htok[1]): run_op(op)
    stamp(e, 'G2.end')

DBGOUT = False
def dbg_out(e):
    sk = L('dbo')
    e('s_waitcnt vmcnt(0)')
    e('s_memrealtime s[84:85]')
    e('s_memtime s[90:91]')
    e('s_waitcnt lgkmcnt(0)')
    e(f's_cmp_lg_u32 s{sW}, 0')
    e(f's_cbranch_scc1 {sk}')
    e('s_and_b32 s52, s2, 63')
    e('s_cmp_lg_u32 s52, 0')
    e(f's_cbranch_scc1 {sk}')
    e('s_lshr_b32 s52, s2, 6')
    e('s_lshl_b32 s52, s52, 4')
    e('s_add_u32 s52, s52, 16')
    e('s_sub_u32 s53, s84, s86')
    e('s_sub_u32 s54, s90, s82')
    e('v_mov_b32 v4, s53'); e('v_mov_b32 v5, s54'); e('v_mov_b32 v6, s86'); e('v_mov_b32 v7, s84')
    e('v_mov_b32 v8, 0')
    e('s_mov_b64 exec, 1')
    e(f'buffer_store_dwordx4 v[4:7], v8, {SDBG}, s52 offen sc1')
    e('s_mov_b64 exec, -1')
    e.label(sk)

def probe(e):
    sk = L('prb'); lp = L('prl')
    e('s_cmp_lg_u32 s2, 0')
    e(f's_cbranch_scc1 {sk}')
    e('s_waitcnt vmcnt(0)')
    e('s_memrealtime s[84:85]')
    e('s_waitcnt lgkmcnt(0)')
    e('s_sub_u32 s84, s84, s86')
    e(f's_cmp_lt_u32 s84, {OPT["probe"]}')
    e(f's_cbranch_scc1 {sk}')
    e('s_mov_b32 s85, 0')
    e.label(lp)
    e('s_sleep 64')
    e('s_add_u32 s85, s85, 1')
    e('s_cmp_lt_u32 s85, 20')
    e(f's_cbranch_scc1 {lp}')
    e.label(sk)

def diag_dump(e):
    if OPT['probe']: probe(e)
    if DBGOUT: dbg_out(e)
    if not DIAG: return
    e.wait_vm_all()
    rstamp(e, 'rt_end')
    e('s_lshl_b32 s52, s2, 2')
    e(f's_add_u32 s52, s52, s{sW}')
    e('s_lshl_b32 s52, s52, 8')
    e(f's_add_u32 s52, s52, 0x{DIAG_OFF:x}')
    e('v_lshlrev_b32 v4, 2, v1')
    e(f'buffer_store_dword v255, v4, {SWS}, s52 offen')

def kernel():
    e = Emit()
    e.label(KN)
    e('s_cmp_ge_u32 s2, 256')
    e('s_cbranch_scc1 L_end')
    e('s_load_dwordx16 s[64:79], s[0:1], 0')
    e('s_load_dwordx4 s[80:83], s[0:1], 64')
    e('s_memrealtime s[86:87]')
    if OPT['cpf'] == 5: code_prefetch_entry(e)
    if DBGOUT: e('s_memtime s[82:83]')
    if DIAG: e('v_mov_b32 v255, 0')
    e('v_lshrrev_b32 v4, 6, v0')
    e('v_and_b32 v1, 63, v0')
    e(f'v_readfirstlane_b32 s{sW}, v4')
    e('v_and_b32 v2, 15, v0')
    e('v_bfe_u32 v3, v0, 4, 2')
    e(f's_and_b32 s{sB}, s2, 7')
    e('s_lshr_b32 s52, s2, 5')
    e('s_lshl_b32 s52, s52, 3')
    e(f's_add_u32 s{sB}, s{sB}, s52')
    e(f's_lshr_b32 s{sGRP}, s2, 3')
    e(f's_and_b32 s{sGRP}, s{sGRP}, 3')
    e('s_lshr_b32 s52, s2, 3')
    e(f's_and_b32 s{sR}, s52, 15')
    e('s_lshr_b32 s52, s52, 4')
    e(f's_and_b32 s{sC}, s2, 7')
    e(f's_lshl_b32 s{sC}, s{sC}, 1')
    e(f's_add_u32 s{sC}, s{sC}, s52')
    e(f's_getreg_b32 s{sREP}, hwreg(HW_REG_XCC_ID, 0, 3)')
    e(f's_lshl_b32 s{sREP}, s{sREP}, 14')
    e(f's_mov_b32 s{sNONCE}, 0')
    phase_a_pre(e)
    e('s_waitcnt lgkmcnt(0)')
    srd(e, S_X, 64, 1835008)
    phase_a_loads(e)
    if OPT['wsoff']:
        e(f's_add_u32 s82, s82, 0x{OPT["wsoff"]*0x100000:x}')
        e('s_addc_u32 s83, s83, 0')
    srd(e, S_WS, 82, WS_SIZE)
    srd(e, S_WR, 66, 2048 * 450)
    srd(e, S_WI, 68, 2048 * 450)
    srd(e, S_W1, 72, 448 * 3584)
    srd(e, S_W3, 74, 448 * 3584)
    srd(e, S_W2, 76, 1792 * 896)
    srd(e, S_OUT, 78, 1835008)
    srd(e, S_DBG, 80, 256)
    e('s_cmp_ge_u32 s2, 224')
    e(f's_cselect_b32 s{S_W1+2}, 0, s{S_W1+2}')
    e(f's_cselect_b32 s{S_W3+2}, 0, s{S_W3+2}')
    if DIAG:
        STAMPS.append('rt_start'); _stamp_n[0] += 1
        e('v_writelane_b32 v255, s86, 0')
    stamp(e, 'start')
    sk = L('nononce')
    e(f's_or_b32 s52, s2, s{sW}')
    e('s_cmp_lg_u32 s52, 0')
    e(f's_cbranch_scc1 {sk}')
    e('s_or_b32 s52, s86, 1')
    e('v_mov_b32 v4, s52')
    e('v_mov_b32 v5, 0')
    e('s_mov_b64 exec, 1')
    e(f'buffer_store_dword v4, v5, {SDBG}, 0 offen sc1')
    e('s_mov_b64 exec, -1')
    e.label(sk)
    phase_a(e)
    p2l, joinl, join2 = L('p2'), L('join'), L('join')
    e('s_cmp_ge_u32 s2, 224')
    e(f's_cbranch_scc1 {p2l}')
    sv_ds = (e.ds_issued, e.ds_done)
    phase_b(e)
    e(f's_branch {joinl}')
    e.label(p2l)
    signal(e, 1)
    if OPT['p2mode'] == 0:
        phase_p2(e)
        if not OPT['p2park']: signal(e, 4)
    else:
        e('s_sub_u32 s52, s2, 224')
        e('s_mul_i32 s52, s52, 50176')
        e('v_lshlrev_b32 v4, 4, v0')
        for i in range(13):
            e(f's_add_u32 s53, s52, {i*4096}')
            e(f'buffer_load_dwordx4 a[32:35], v4, {SW2}, s53 offen')
        gen_TC(e)
        gen_G(e)
    e(f's_branch {join2}')
    e.label(joinl)
    signal(e, 1)
    if OPT['p2mode'] == 1:
        e.vm_issued = e.vm_done = 0
        p2_loads(e)
        gen_TC(e)
        e.wait_vm_all()
        p2_finish(e)
        stamp(e, 'W2.pfin')
    else:
        gen_TC(e)
    if OPT['p1slot']: gen_G(e)
    e.label(join2)
    e.vm_issued = 0; e.vm_done = 0
    phase_c(e)
    phase_g(e)
    e.label('L_fin')
    diag_dump(e)
    e.label('L_end')
    e('s_endpgm')
    return e.out

def build():
    hdr = open('cdna_kernels/' + NAME + '.s.ref').read().split('; Override launch')[0]
    body = kernel()
    body, nn = hazard_pass(body)
    print(f'; {len(body)} lines, {nn} nops inserted', file=sys.stderr)
    lines = [hdr.rstrip('\n'),
             f'; @launch grid=(256,1,1) block=(256,1,1) lds={LDS_BYTES}',
             '.amdgcn_target "amdgcn-amd-amdhsa--gfx950"', '.text', f'.globl {KN}', '.p2align 8', f'.type {KN},@function']
    for ln in body: lines.append(ln if ln.endswith(':') else '    ' + ln)
    lines += ['.section .rodata,"a"', '.p2align 6', f'.amdhsa_kernel {KN}',
              '  .amdhsa_next_free_vgpr 512', '  .amdhsa_next_free_sgpr 102', '  .amdhsa_accum_offset 256',
              '  .amdhsa_group_segment_fixed_size 0', '  .amdhsa_kernarg_size 80', '  .amdhsa_user_sgpr_count 2',
              '  .amdhsa_user_sgpr_kernarg_segment_ptr 1', '  .amdhsa_system_sgpr_workgroup_id_x 1',
              '  .amdhsa_float_denorm_mode_32 3', '.end_amdhsa_kernel']
    return '\n'.join(lines) + '\n'

if __name__ == '__main__':
    for a in list(sys.argv):
        if a.startswith('--opt='):
            for kv in a[6:].split(','):
                k, v = kv.split('='); OPT[k] = int(v)
            sys.argv.remove(a)
    if '--dbgout' in sys.argv:
        DBGOUT = True; sys.argv.remove('--dbgout')
    if '--diag' in sys.argv:
        DIAG = True; sys.argv.remove('--diag')
    out = sys.argv[1] if len(sys.argv) > 1 else 'cdna_kernels/' + NAME + '.s'
    open(out, 'w').write(build())
    if DIAG:
        import json; json.dump(STAMPS, open(out + '.stamps.json', 'w'))
    print('written', out, file=sys.stderr)
```

```python
import sys, struct
from asmlib import Emit, hazard_pass

NAME = "sequential_preLN__spectral_gfnet__glu_gated_swiglu__prompt"
KN = NAME + "_kernel"

T1_OFF  = 0x000000
T2_OFF  = 0x200000
HC_OFF  = 0x400000
HR_OFF  = 0x600000
ST1_OFF = 0x800000
ST2_OFF = 0x810000
W13_OFF = 0x900000
W2_OFF  = 0xD00000
HM_OFF  = 0x1000000
FL_OFF  = 0x1800000
DIAG_OFF = 0x1A00000
WS_SIZE = 0x1C00000
LDS_STAGE = 32768
LDS_STATS = 114688
LDS_BYTES = 114688 + 8192
MAXSPIN = 100000

DIAG = False
OPT = dict(st1=3, st2=6, epi=1, post=8, w3=16, cpf=5, outmod=0, probe=0, pdepth=1, g2rot=0, wsoff=0, eflag=16, epoll=46, fspan=40, w2t1=14, latesp=52, g2mode=1, lpoll=8, p1slot=0, early=0, wpf=1, p2mode=0, w2pf=0, p2park=1, gslot=1, tlb=0, sent=1, fillpos=1)
def f2u(x): return struct.unpack('<I', struct.pack('<f', x))[0]
def lit(x): return '0x%08x' % f2u(x)
def vr(a, n=1): return f'v{a}' if n == 1 else f'v[{a}:{a+n-1}]'
def ar(a, n=1): return f'a{a}' if n == 1 else f'a[{a}:{a+n-1}]'

S_X, S_WS, S_WR, S_WI, S_W1, S_W3, S_W2, S_OUT, S_DBG = 8, 12, 16, 20, 24, 28, 32, 36, 40
SX, SWS, SWR, SWI, SW1, SW3, SW2, SOUT, SDBG = [f's[{a}:{a+3}]' for a in (8, 12, 16, 20, 24, 28, 32, 36, 40)]
sW, sB, sGRP, sNONCE, sREP = 44, 45, 46, 47, 48
sR, sC, sSPIN = 49, 50, 51

def srd(e, d, ptr, size):
    e(f's_mov_b32 s{d}, s{ptr}')
    e(f's_and_b32 s{d+1}, s{ptr+1}, 0xffff')
    e(f's_mov_b32 s{d+2}, 0x{size:x}')
    e(f's_mov_b32 s{d+3}, 0x20000')

_stamp_n = [0]
STAMPS = []
def stamp(e, name):
    if not DIAG: return
    i = _stamp_n[0]; _stamp_n[0] += 1; STAMPS.append(name)
    e('s_memtime s[84:85]')
    e('s_waitcnt lgkmcnt(0)')
    e(f'v_writelane_b32 v255, s84, {i}')
def rstamp(e, name):
    if not DIAG: return
    i = _stamp_n[0]; _stamp_n[0] += 1; STAMPS.append(name)
    e('s_memrealtime s[84:85]')
    e('s_waitcnt lgkmcnt(0)')
    e(f'v_writelane_b32 v255, s84, {i}')

def xsum_groups(e, v, tmp):
    e(f'v_mov_b32 v{tmp}, v{v}')
    e(f'v_permlane32_swap_b32 v{tmp}, v{v}')
    e(f'v_add_f32 v{v}, v{v}, v{tmp}')
    e(f'v_mov_b32 v{tmp}, v{v}')
    e(f'v_permlane16_swap_b32 v{tmp}, v{v}')
    e(f'v_add_f32 v{v}, v{v}, v{tmp}')

def rot8(em, co, si, co2, si2, cs, neg_sin):
    C = 'op_sel:[0,0] op_sel_hi:[1,0]'
    S3 = 'op_sel:[0,1,0] op_sel_hi:[1,1,1]'
    NEG = ' neg_lo:[0,1,0] neg_hi:[0,1,0]'
    for p in range(4):
        em(f'v_pk_mul_f32 v[{co2+2*p}:{co2+2*p+1}], v[{co+2*p}:{co+2*p+1}], v[{cs}:{cs+1}] {C}')
        em(f'v_pk_mul_f32 v[{si2+2*p}:{si2+2*p+1}], v[{si+2*p}:{si+2*p+1}], v[{cs}:{cs+1}] {C}')
    for p in range(4):
        em(f'v_pk_fma_f32 v[{co2+2*p}:{co2+2*p+1}], v[{si+2*p}:{si+2*p+1}], v[{cs}:{cs+1}], v[{co2+2*p}:{co2+2*p+1}] {S3}' + ('' if neg_sin else NEG))
        em(f'v_pk_fma_f32 v[{si2+2*p}:{si2+2*p+1}], v[{co+2*p}:{co+2*p+1}], v[{cs}:{cs+1}], v[{si2+2*p}:{si2+2*p+1}] {S3}' + (NEG if neg_sin else ''))

_lab = [0]
def L(p):
    _lab[0] += 1
    return f'L{p}_{_lab[0]}'

def signal(e, sync):
    e.barrier()
    skip = L('sig')
    e(f's_cmp_lg_u32 s{sW}, 0')
    e(f's_cbranch_scc1 {skip}')
    e(f's_lshl_b32 s52, s2, 6')
    e(f's_add_u32 s52, s52, 0x{FL_OFF + sync*0x40000:x}')
    e(f'v_mov_b32 v14, s{sNONCE}')
    e('v_lshlrev_b32 v15, 14, v1')
    e('s_mov_b64 exec, 0xff')
    e(f'buffer_store_dword v14, v15, {SWS}, s52 offen sc1')
    e('s_mov_b64 exec, -1')
    e.label(skip)

def flag_store(e, sync):
    skip = L('flg')
    e(f's_cmp_lg_u32 s{sW}, 0')
    e(f's_cbranch_scc1 {skip}')
    e(f's_lshl_b32 s52, s2, 6')
    e(f's_add_u32 s52, s52, 0x{FL_OFF + sync*0x40000:x}')
    e(f'v_mov_b32 v14, s{sNONCE}')
    e('v_lshlrev_b32 v15, 14, v1')
    e('s_mov_b64 exec, 0xff')
    e(f'buffer_store_dword v14, v15, {SWS}, s52 offen sc1')
    e('s_mov_b64 exec, -1')
    e.label(skip)

def poll(e, sync, nflags, idx_code, preg=232, bar=True):
    skip = L('pollskip'); loop = L('poll'); done = L('polldone')
    e(f's_cmp_lg_u32 s{sW}, 0')
    e(f's_cbranch_scc1 {skip}')
    idx_code(e)
    nl = max(1, nflags // 64)
    e(f's_add_u32 s52, s{sREP}, 0x{FL_OFF + sync*0x40000:x}')
    for i in range(1, nl): e(f's_add_u32 s{52+i}, s52, {i*64*64}')
    e(f's_mov_b32 s{sSPIN}, 0')
    if nflags <= 32: e(f's_mov_b64 exec, 0x{(1 << nflags) - 1:x}')
    elif nflags < 64: e(f's_mov_b32 exec_hi, 0x{(1 << (nflags - 32)) - 1:x}')
    D = OPT['pdepth']
    def issue(k):
        for i in range(nl): e(f'buffer_load_dword v{preg+k*nl+i}, v5, {SWS}, s{52+i} offen sc1')
    e('s_waitcnt vmcnt(0)') if D == 1 else None
    for k in range(D - 1): issue(k)
    e.label(loop)
    for k in range(D):
        issue((k + D - 1) % D)
        e(f's_waitcnt vmcnt({(D-1)*nl})')
        r = preg + k * nl
        e(f'v_xor_b32 v6, s{sNONCE}, v{r}')
        for i in range(1, nl):
            e(f'v_xor_b32 v7, s{sNONCE}, v{r+i}')
            e('v_or_b32 v6, v6, v7')
        e('v_cmp_ne_u32 vcc, 0, v6')
        e('s_nop 4')
        e(f's_cbranch_vccz {done}')
    e(f's_add_u32 s{sSPIN}, s{sSPIN}, 1')
    e(f's_cmp_lt_u32 s{sSPIN}, {MAXSPIN}')
    e(f's_cbranch_scc1 {loop}')
    e.label(done)
    e('s_mov_b64 exec, -1')
    e.label(skip)
    if bar: e.barrier()

def p1_addr(e, i):
    e(f's_lshl_b32 s53, s{sW}, 2')
    e(f's_add_u32 s53, s53, {i}')
    e('s_cmp_ge_u32 s53, 7')
    e('s_cselect_b32 s54, 7, 0')
    e(f's_cselect_b32 s55, {P1_MS}, 0')
    e('s_sub_u32 s54, s53, s54')
    e('s_lshl_b32 s54, s54, 6')
    e(f's_add_u32 s55, s55, {LDS_STAGE}')
    e('v_add_u32 v12, s54, v1')
    e('v_mul_u32_u24 v13, 4682, v12')
    e('v_lshrrev_b32 v13, 16, v13')
    e('v_mul_u32_u24 v14, 14, v13')
    e('v_sub_u32 v14, v12, v14')
    e('v_lshlrev_b32 v14, 4, v14')
    e(f'v_mul_u32_u24 v15, {P1_RS}, v13')
    e('v_add3_u32 v%d, v15, v14, s55' % P1LR[i])
    if i == 3: e('v_accvgpr_write_b32 a25, v10')
    e('v_lshrrev_b32 v15, 4, v13')
    e('v_mul_u32_u24 v15, 208, v15')
    e('v_add_u32 v15, v15, v13')
    e('v_mul_u32_u24 v15, 3584, v15')
    e('v_add_u32 v15, v15, v14')

P1_RS, P1_MS = 288, 9344
P1LR = [252, 253, 254, 10]
P2LR = [248, 11]
P2_RS, P2_BASE = 480, LDS_STAGE + 2 * 9344 + 64
def p1_loads(e):
    e('s_lshr_b32 s52, s2, 4')
    e('s_lshl_b32 s52, s52, 4')
    e('s_mul_i32 s52, s52, 3584')
    e('s_and_b32 s54, s2, 15')
    e('s_mul_i32 s54, s54, 224')
    e('s_add_u32 s52, s52, s54')
    e(f's_mov_b32 s94, s{S_W1+2}')
    e('s_mov_b32 s95, 0x20000')
    for i in range(4):
        p1_addr(e, i)
        e('s_cmp_ge_u32 s53, 7')
        e(f's_cselect_b32 s92, s{S_W3}, s{S_W1}')
        e(f's_cselect_b32 s93, s{S_W3+1}, s{S_W1+1}')
        if i >= 2:
            e('s_cmp_ge_u32 s53, 14')
            e('s_cselect_b32 s94, 0, s94')
        e.vm(f'buffer_load_dwordx4 {ar(4*i,4)}, v15, s[92:95], s52 offen')

def p2_loads(e):
    e('s_lshr_b32 s52, s2, 1')
    e('s_mul_i32 s52, s52, %d' % (16 * 896))
    e('s_and_b32 s53, s2, 1')
    e('s_mul_i32 s53, s53, 224')
    e('s_add_u32 s52, s52, s53')
    e(f's_mov_b32 s92, s{S_W2}')
    e(f's_mov_b32 s93, s{S_W2+1}')
    e('s_cmp_ge_u32 s2, 224')
    e(f's_cselect_b32 s94, 0, s{S_W2+2}')
    for i in range(2):
        e(f's_lshl_b32 s53, s{sW}, 1')
        e(f's_add_u32 s53, s53, {i}')
        e('s_lshl_b32 s54, s53, 6')
        e('v_add_u32 v12, s54, v1')
        e('v_mul_u32_u24 v13, 2341, v12')
        e('v_lshrrev_b32 v13, 16, v13')
        e('v_mul_u32_u24 v14, 28, v13')
        e('v_sub_u32 v14, v12, v14')
        e('v_cmp_le_u32 vcc, 14, v14')
        e('v_lshlrev_b32 v14, 4, v14')
        e(f'v_mul_u32_u24 v15, {P2_RS}, v13')
        e(f'v_add_u32 v15, v15, v14')
        e(f'v_add_u32 v15, {P2_BASE}, v15')
        e(f'v_accvgpr_write_b32 a{26 if i == 0 else 24}, v15')
        e('v_add_u32 v15, 224, v14')
        e('v_cndmask_b32 v14, v14, v15, vcc')
        e('v_mul_u32_u24 v15, 896, v13')
        e('v_add_u32 v15, v15, v14')
        if i == 1:
            e('s_cmp_ge_u32 s53, 7')
            e('s_cselect_b32 s94, 0, s94')
        e.vm(f'buffer_load_dwordx4 {ar(16+4*i,4)}, v15, s[92:95], s52 offen')
assert all(((i * 2341) >> 16) == i // 28 for i in range(512))

def w_prefetch(e):
    e('s_lshl_b32 s52, s2, 12')
    e('v_lshlrev_b32 v12, 4, v0')
    e('v_add_u32 v12, s52, v12')
    e.vm(f'buffer_load_dwordx4 a[32:35], v12, {SWR}, 0 offen')
    e.vm(f'buffer_load_dwordx4 a[32:35], v12, {SWI}, 0 offen')
    if OPT['w2pf']:
        e.vm(f'buffer_load_dwordx4 a[32:35], v12, {SW2}, 0 offen')
        e('s_mov_b32 s52, 0x100000')
        e.vm(f'buffer_load_dwordx4 a[32:35], v12, {SW2}, s52 offen')
assert all(((i * 4682) >> 16) == i // 14 for i in range(512))

def p1_finish(e, R=64):
    RS, MS, BASE = P1_RS, P1_MS, LDS_STAGE
    skw = L('p1w')
    for i in range(4):
        if i == 2:
            e(f's_cmp_ge_u32 s{sW}, 3')
            e(f's_cbranch_scc1 {skw}')
        if i == 3: e('v_accvgpr_read_b32 v10, a25')
        e(f'ds_write_b128 v{P1LR[i]}, {ar(4*i,4)}')
    e.label(skw)
    e.wait_ds_all()
    e.barrier()
    end = L('p1e')
    e(f's_cmp_eq_u32 s{sW}, 0')
    e(f's_cbranch_scc1 {end}')
    e('v_and_b32 v4, 1, v3')
    e(f'v_mul_u32_u24 v4, {MS}, v4')
    e('v_lshrrev_b32 v5, 1, v3')
    e('v_lshlrev_b32 v5, 2, v5')
    e('v_lshrrev_b32 v6, 2, v2')
    e('v_add_u32 v5, v5, v6')
    e(f'v_mul_u32_u24 v5, {RS}, v5')
    e('v_add_u32 v4, v4, v5')
    e('v_and_b32 v6, 3, v2')
    e('v_lshlrev_b32 v6, 3, v6')
    e('v_add_u32 v4, v4, v6')
    e(f'v_add_u32 v4, {BASE}, v4')
    e('s_and_b32 s54, s2, 15')
    e('s_mul_i32 s54, s54, %d' % (7 * 28))
    e('s_lshr_b32 s53, s2, 4')
    e('s_lshl_b32 s53, s53, 1')
    e('s_add_u32 s54, s54, s53')
    e('s_lshl_b32 s54, s54, 10')
    e(f's_add_u32 s54, s54, 0x{W13_OFF:x}')
    e('v_lshlrev_b32 v5, 4, v1')
    last = L('p1l')
    for m in range(5):
        e(f's_add_u32 s52, s{sW}, {3*m - 1}')
        if m == 4:
            e('s_cmp_ge_u32 s52, 14')
            e(f's_cbranch_scc1 {last}')
        e('s_and_b32 s53, s52, 1')
        e('s_lshr_b32 s52, s52, 1')
        e(f's_mul_i32 s55, s53, {8*RS}')
        e('s_lshl_b32 s61, s52, 5')
        e('s_add_u32 s55, s55, s61')
        e('v_add_u32 v6, s55, v4')
        e(f'ds_read_b64_tr_b16 {vr(R+4*m,2)}, v6')
        e(f'ds_read_b64_tr_b16 {vr(R+4*m+2,2)}, v6 offset:{16*RS}')
        e('s_mul_i32 s52, s52, 28')
        e('s_add_u32 s52, s52, s53')
        e('s_lshl_b32 s52, s52, 10')
        e(f's_add_u32 s{62+m if m < 2 else 86+m}, s52, s54')
    e.label(last)
    e('s_waitcnt lgkmcnt(0)')
    for m in range(4):
        e(f'buffer_store_dwordx4 {vr(R+4*m,4)}, v5, {SWS}, s{62+m if m < 2 else 86+m} offen sc1')
    e(f's_cmp_ge_u32 s{sW}, 3')
    e(f's_cbranch_scc1 {end}')
    e(f'buffer_store_dwordx4 {vr(R+16,4)}, v5, {SWS}, s90 offen sc1')
    e.label(end)

def p2_finish(e, R=128):
    skw2 = L('p2w')
    e('v_accvgpr_read_b32 v7, a26')
    e(f'ds_write_b128 v7, {ar(16,4)}')
    e(f's_cmp_ge_u32 s{sW}, 3')
    e(f's_cbranch_scc1 {skw2}')
    e('v_accvgpr_read_b32 v7, a24')
    e(f'ds_write_b128 v7, {ar(20,4)}')
    e.label(skw2)
    e.wait_ds_all()
    e.barrier()
    end = L('p2e')
    e(f's_cmp_eq_u32 s{sW}, 0')
    e(f's_cbranch_scc1 {end}')
    e('v_lshrrev_b32 v6, 1, v3')
    e('v_lshlrev_b32 v6, 2, v6')
    e('v_lshrrev_b32 v7, 2, v2')
    e('v_add_u32 v6, v6, v7')
    e(f'v_mul_u32_u24 v6, {P2_RS}, v6')
    e('v_and_b32 v7, 1, v3')
    e('v_lshlrev_b32 v7, 4, v7')
    e('v_add_u32 v6, v6, v7')
    e('v_and_b32 v7, 1, v2')
    e('v_lshlrev_b32 v7, 3, v7')
    e('v_add_u32 v6, v6, v7')
    e('v_bfe_u32 v7, v2, 1, 1')
    e('v_mul_u32_u24 v7, 224, v7')
    e('v_add_u32 v6, v6, v7')
    e(f's_sub_u32 s55, s{sW}, 1')
    e('s_lshl_b32 s52, s55, 5')
    e(f's_add_u32 s52, s52, {P2_BASE}')
    e('v_add_u32 v6, s52, v6')
    e('s_and_b32 s54, s2, 1')
    e('s_mul_i32 s54, s54, 7')
    e('s_add_u32 s54, s54, s55')
    e('s_mul_i32 s54, s54, 112')
    e('s_lshr_b32 s53, s2, 1')
    e('s_add_u32 s54, s54, s53')
    e('s_lshl_b32 s54, s54, 10')
    e(f's_add_u32 s54, s54, 0x{W2_OFF:x}')
    e('v_lshlrev_b32 v5, 4, v1')
    for m in range(3):
        e(f'ds_read_b64_tr_b16 {vr(R+4*m,2)}, v6 offset:{96*m}')
        e(f'ds_read_b64_tr_b16 {vr(R+4*m+2,2)}, v6 offset:{96*m + 8*P2_RS}')
    e('s_waitcnt lgkmcnt(0)')
    for m in range(3):
        if m == 2:
            e(f's_cmp_ge_u32 s{sW}, 2')
            e(f's_cbranch_scc1 {end}')
        e(f's_add_u32 s53, s54, {3*m*112*1024}')
        e(f'buffer_store_dwordx4 {vr(R+4*m,4)}, v5, {SWS}, s53 offen sc1')
    e.label(end)

def w13_load_groups():
    gs = []
    for s_ in range(28):
        for mi in range(2):
            g = []
            if s_ % 7 == 0 and mi == 0:
                g += [f's_add_u32 s90, s89, {s_//7}', 's_and_b32 s90, s90, 3', 's_mul_i32 s90, s90, 7168', 's_add_u32 s90, s90, s88',
                      's_add_u32 s91, s90, 28672']
            i = s_ % 7
            if i == 4 and mi == 0: g += ['s_add_u32 s90, s90, 4096', 's_add_u32 s91, s91, 4096']
            g.append(('vm', f'buffer_load_dwordx4 {ar((mi*28+s_)*4,4)}, v254, s[92:95], s{90+mi} offen offset:{(i%4)*1024} sc1'))
            gs.append(g)
    return gs

def w13_setup(e):
    e(f's_mov_b32 s92, s{S_WS}')
    e(f's_mov_b32 s93, s{S_WS+1}')
    e(f's_cmp_ge_u32 s{sC}, 14')
    e(f's_cselect_b32 s94, 0, s{S_WS+2}')
    e('s_mov_b32 s95, 0x20000')
    e(f's_lshl_b32 s88, s{sC}, 3')
    e(f's_lshl_b32 s52, s{sW}, 1')
    e('s_add_u32 s88, s88, s52')
    e('s_mul_i32 s88, s88, 28672')
    e(f's_add_u32 s88, s88, 0x{W13_OFF:x}')
    e(f's_and_b32 s89, s{sR}, 3')
    e('v_lshlrev_b32 v254, 4, v1')

def emit_groups(e, groups):
    last = None
    for g in groups:
        for op in g:
            if isinstance(op, tuple): last = e.vm(op[1])
            else: e(op)
    return last

DMA = {}
def emit_interleaved(e, main, groups, start=0):
    n, m = len(main), len(groups)
    gi = 0; last = None
    for k, ins in enumerate(main):
        e(ins)
        if k >= start:
            want = ((k - start + 1) * m) // max(1, n - start)
            while gi < want:
                for op in groups[gi]:
                    if isinstance(op, tuple): last = e.vm(op[1])
                    else: e(op)
                gi += 1
    while gi < m:
        for op in groups[gi]:
            if isinstance(op, tuple): last = e.vm(op[1])
            else: e(op)
        gi += 1
    return last

def w13_trread(e, half):
    e('v_and_b32 v4, 1, v3')
    e('v_lshrrev_b32 v5, 1, v3')
    e('v_lshrrev_b32 v6, 2, v2')
    e('v_and_b32 v7, 3, v2')
    e('v_mul_u32_u24 v8, 57344, v4')
    e('v_lshlrev_b32 v9, 2, v5')
    e('v_add_u32 v9, v9, v6')
    e('v_lshlrev_b32 v9, 8, v9')
    e('v_add_u32 v8, v8, v9')
    e('v_and_b32 v9, 1, v7')
    e('v_lshlrev_b32 v9, 3, v9')
    e('v_add_u32 v8, v8, v9')
    e(f'v_add_u32 v8, {LDS_STAGE}, v8')
    e('v_lshrrev_b32 v7, 1, v7')
    e(f's_lshl_b32 s52, s{sW}, 2')
    e('v_add_u32 v7, s52, v7')
    e('v_lshlrev_b32 v6, 1, v6')
    e('v_lshlrev_b32 v4, 3, v4')
    e('v_xor_b32 v6, v6, v4')
    for mi in range(2):
        e(f'v_add_u32 v9, {2*mi}, v7')
        e('v_xor_b32 v9, v9, v6')
        e('v_lshlrev_b32 v9, 4, v9')
        e(f'v_add_u32 v{10+mi}, v8, v9')
    for mi in range(2):
        for jl in range(7):
            for gg in range(2):
                kap = 14 * half + 2 * jl + gg
                a = (mi * 28 + kap) * 4
                off = (16 * jl + 8 * gg) * 256
                e.ds(f'ds_read_b64_tr_b16 {ar(a,2)}, v{10+mi} offset:{off}')
                e.ds(f'ds_read_b64_tr_b16 {ar(a+2,2)}, v{10+mi} offset:{off + 112*256}')

C_G, C_TC = 220, 160
def gen_G(e):
    G = C_G
    TH, CO, SI = 112, 120, 128
    cscale = 2.0 / (2048.0 * 448.0)
    e('v_cvt_f32_u32 v7, v3')
    for nt in range(2):
        e(f'v_add_u32 v8, {16*nt}, v2')
        e('v_lshlrev_b32 v8, 6, v8')
        e(f'v_add_u32 v8, s{sB}, v8')
        e('v_cvt_f32_u32 v8, v8')
        e(f'v_mul_f32 v8, {lit(1.0/2048)}, v8')
        e('v_mul_f32 v9, v7, v8')
        for t in range(2):
            for ii in range(4):
                cst = 16 * t + 4 * ii
                if cst == 0: e(f'v_mov_b32 v{TH+t*4+ii}, v9')
                else: e(f'v_fmamk_f32 v{TH+t*4+ii}, v8, {lit(float(cst))}, v9')
        for j in range(8): e(f'v_cos_f32 v{CO+j}, v{TH+j}')
        for j in range(8): e(f'v_sin_f32 v{SI+j}, v{TH+j}')
        for j in range(8): e(f'v_mul_f32 v{CO+j}, {lit(cscale)}, v{CO+j}')
        for j in range(8): e(f'v_mul_f32 v{SI+j}, {lit(cscale)}, v{SI+j}')
        for t in range(2):
            for ii in range(4):
                j = t * 4 + ii
                e(f'v_cvt_pk_bf16_f32 v{G+((0*2+t)*2+nt)*4+ii}, v{CO+j}, -v{SI+j}')
                e(f'v_cvt_pk_bf16_f32 v{G+((1*2+t)*2+nt)*4+ii}, v{SI+j}, v{CO+j}')

def gen_TC(e):
    TC = C_TC
    TH, CO, SI, CO2, SI2 = 112, 120, 128, 136, 144
    e(f's_lshl_b32 s61, s{sGRP}, 2')
    e(f's_add_u32 s61, s61, s{sW}')
    e('s_min_u32 s61, s61, 13')
    e('s_lshl_b32 s61, s61, 4')
    e('v_add_u32 v8, s61, v2')
    e('v_cvt_f32_u32 v8, v8')
    e(f'v_mul_f32 v8, {lit(1.0/448)}, v8')
    e('v_lshlrev_b32 v9, 3, v3')
    e('v_cvt_f32_u32 v9, v9')
    e('v_mul_f32 v9, v9, v8')
    e('v_cmp_eq_u32 vcc, 3, v3')
    e('v_mov_b32 v10, 1.0')
    e('v_mov_b32 v7, 0.5')
    e('v_cndmask_b32 v10, v10, v7, vcc')
    e(f'v_mul_f32 v7, {lit(32.0)}, v8')
    for h in range(2):
        for j in range(4):
            cst = 2 * j + (2 if h == 0 else 1)
            e(f'v_fmamk_f32 v{TH+h*4+j}, v8, {lit(float(cst))}, v9')
    e('v_cos_f32 v12, v7')
    e('v_sin_f32 v13, v7')
    for j in range(8): e(f'v_cos_f32 v{CO+j}, v{TH+j}')
    for j in range(8): e(f'v_sin_f32_e64 v{SI+j}, -v{TH+j}')
    cur = (CO, SI); oth = (CO2, SI2)
    for kp in range(7):
        if kp < 6: rot8(e, cur[0], cur[1], oth[0], oth[1], 12, True)
        else:
            e(f'v_mul_f32 v{cur[0]+3}, v{cur[0]+3}, v10')
            e(f'v_mul_f32 v{cur[1]+3}, v{cur[1]+3}, v10')
        for h, kb in enumerate((kp, kp + 7)):
            e(f'v_cvt_pk_bf16_f32 v{TC+kb*4+0}, v{cur[0]+h*4+0}, v{cur[0]+h*4+1}')
            e(f'v_cvt_pk_bf16_f32 v{TC+kb*4+1}, v{cur[0]+h*4+2}, v{cur[0]+h*4+3}')
            e(f'v_cvt_pk_bf16_f32 v{TC+kb*4+2}, v{cur[1]+h*4+0}, v{cur[1]+h*4+1}')
            e(f'v_cvt_pk_bf16_f32 v{TC+kb*4+3}, v{cur[1]+h*4+2}, v{cur[1]+h*4+3}')
        cur, oth = oth, cur

def code_prefetch_wave(e):
    sk = L('cpf')
    e(f's_cmp_lg_u32 s{sW}, {OPT["cpf"]-1}')
    e(f's_cbranch_scc1 {sk}')
    e('s_getpc_b64 s[52:53]')
    e.label('L_pc')
    e('s_lshr_b32 s54, s2, 3')
    e('s_lshl_b32 s54, s54, 10')
    e('s_cmp_ge_u32 s54, L_fin-L_pc-1024')
    e(f's_cbranch_scc1 {sk}')
    e('v_lshlrev_b32 v5, 4, v1')
    e('v_add_u32 v5, s54, v5')
    e('global_load_dwordx4 a[28:31], v5, s[52:53]')
    e.label(sk)

def code_prefetch_entry(e):
    sk = L('cpf')
    e('s_getpc_b64 s[52:53]')
    e.label('L_pc')
    e('s_lshr_b32 s54, s2, 3')
    e('s_lshl_b32 s54, s54, 10')
    e('s_cmp_ge_u32 s54, L_fin-L_pc-1024')
    e(f's_cbranch_scc1 {sk}')
    e('v_lshlrev_b32 v5, 2, v0')
    e('v_add_u32 v5, s54, v5')
    e('global_load_dword a28, v5, s[52:53]')
    e.label(sk)

A_TA, A_FP, A_ACC, A_X = 16, 72, 96, 128
def phase_a_pre(e):
    e.c('======== phase A (before the kernel arguments arrive)')
    TA, FP, ACC, X = A_TA, A_FP, A_ACC, A_X
    e(f's_lshl_b32 s56, s{sGRP}, 2')
    e(f's_add_u32 s56, s56, s{sW}')
    e('s_min_u32 s57, s56, 13')
    e(f's_lshr_b32 s52, s{sW}, 1')
    e('s_lshl_b32 s52, s52, 10')
    e(f's_add_u32 s52, s52, s{sB}')
    e('v_lshlrev_b32 v4, 6, v2')
    e('v_add_u32 v4, s52, v4')
    e('v_mul_u32_u24 v4, 896, v4')
    e('v_lshlrev_b32 v11, 4, v3')
    e('v_add_u32 v4, v4, v11')
    e(f's_and_b32 s52, s{sW}, 1')
    e('s_mul_i32 s52, s52, 448')
    e('v_add_u32 v4, s52, v4')
    if OPT['early']: gen_TA(e)

def gen_TA(e):
    TA, FP, ACC, X = A_TA, A_FP, A_ACC, A_X
    e('s_cmp_lt_u32 s57, 7')
    e('s_cselect_b32 s52, 2, 1')
    e('s_cselect_b32 s53, 0, 7')
    e('s_sub_u32 s53, s57, s53')
    e('s_lshl_b32 s53, s53, 5')
    e('s_add_u32 s53, s53, s52')
    e('s_cmp_lt_u32 s57, 7')
    e(f's_cselect_b32 s58, {lit(1.0)}, {lit(-1.0)}')
    e('v_lshlrev_b32 v5, 1, v2')
    e('v_add_u32 v5, s53, v5')
    e('v_cvt_f32_u32 v5, v5')
    e(f'v_mul_f32 v5, {lit(1.0/448)}, v5')
    e('v_lshlrev_b32 v6, 3, v3')
    e('v_cvt_f32_u32 v6, v6')
    e('v_mul_f32 v6, v6, v5')
    TH, CO, SI = ACC, ACC + 8, ACC + 16
    CO2, SI2 = X + 32, X + 40
    e(f'v_mul_f32 v7, {lit(32.0)}, v5')
    for j in range(8):
        if j == 0: e(f'v_mov_b32 v{TH+j}, v6')
        else: e(f'v_fmamk_f32 v{TH+j}, v5, {lit(float(j))}, v6')
    e('v_cos_f32 v8, v7')
    e('v_sin_f32 v9, v7')
    for j in range(8): e(f'v_cos_f32 v{CO+j}, v{TH+j}')
    for j in range(8): e(f'v_sin_f32_e64 v{SI+j}, -v{TH+j}')
    cur = (CO, SI); oth = (CO2, SI2)
    for t in range(7):
        if t < 6: rot8(e, cur[0], cur[1], oth[0], oth[1], 8, True)
        for i in range(4): e(f'v_cvt_pk_bf16_f32 v{TA+(t*2+0)*4+i}, v{cur[0]+2*i}, v{cur[0]+2*i+1}')
        for i in range(4): e(f'v_cvt_pk_bf16_f32 v{TA+(t*2+1)*4+i}, v{cur[1]+2*i}, v{cur[1]+2*i+1}')
        cur, oth = oth, cur

XS_TOK = []
def phase_a_loads(e):
    X = A_X
    XS_TOK[:] = [e.vm(f'buffer_load_dwordx4 {vr(X+4*i,4)}, v4, {SX}, 0 offen offset:{64*i}') for i in range(7)]

def phase_a(e):
    e.c('======== phase A')
    TA, FP, ACC, X = A_TA, A_FP, A_ACC, A_X
    xs_tok = XS_TOK
    TH, CO, SI = ACC, ACC + 8, ACC + 16
    if OPT['tlb']:
        sk = L('tlb')
        e(f's_cmp_lg_u32 s{sW}, {OPT["tlb"]-1}')
        e(f's_cbranch_scc1 {sk}')
        e('v_min_u32 v5, 13, v1')
        e('v_lshlrev_b32 v5, 21, v5')
        e(f'buffer_load_dword a36, v5, {SWS}, 0 offen')
        e('v_mov_b32 v5, 0')
        e(f'buffer_load_dword a36, v5, {SOUT}, 0 offen')
        e.label(sk)
    stamp(e, 'A.issued')
    if not OPT['early']: gen_TA(e)
    e('s_mov_b32 s52, 0x80008000')
    e(f'v_cvt_f32_u32 v7, s{sB}')
    e(f'v_mul_f32 v7, {lit(1.0/64)}, v7')
    e('v_lshlrev_b32 v8, 2, v3')
    e('v_cvt_f32_u32 v8, v8')
    e('v_add_f32 v8, v8, v7')
    for mt in range(2):
        e(f'v_add_u32 v9, {16*mt}, v2')
        e('v_cvt_f32_u32 v9, v9')
        e(f'v_mul_f32 v9, {lit(1.0/32)}, v9')
        e('v_mul_f32 v10, v9, v8')
        for j in range(8):
            cst = 16 * (j >> 2) + (j & 3)
            if cst == 0: e(f'v_mov_b32 v{TH+j}, v10')
            else: e(f'v_fmamk_f32 v{TH+j}, v9, {lit(float(cst))}, v10')
        for j in range(8): e(f'v_cos_f32 v{CO+j}, v{TH+j}')
        for j in range(8): e(f'v_sin_f32 v{SI+j}, v{TH+j}')
        for i in range(4): e(f'v_cvt_pk_bf16_f32 v{FP+mt*12+i}, v{CO+2*i}, v{CO+2*i+1}')
        for i in range(4): e(f'v_cvt_pk_bf16_f32 v{FP+mt*12+4+i}, v{SI+2*i}, v{SI+2*i+1}')
        for i in range(4): e(f'v_xor_b32 v{FP+mt*12+8+i}, s52, v{FP+mt*12+4+i}')
    if OPT['wpf'] == 2: w_prefetch(e)
    p1_loads(e)
    if OPT['wpf'] == 3: w_prefetch(e)
    stamp(e, 'A.constgen')
    e(f's_mul_i32 s52, s{sW}, 7168')
    e('v_lshlrev_b32 v11, 4, v1')
    e('v_add_u32 v4, s52, v11')
    e('v_mov_b32 v5, 0')
    e('v_mov_b32 v6, 0')
    e('s_mov_b32 s52, 0x3f803f80')
    for i in range(7):
        e.wait_vm(xs_tok[i])
        e.ds(f'ds_write_b128 v4, {vr(X+4*i,4)} offset:{1024*i}')
        for d in range(4):
            e(f'v_dot2_f32_bf16 v5, v{X+4*i+d}, s52, v5')
            e(f'v_dot2_f32_bf16 v6, v{X+4*i+d}, v{X+4*i+d}, v6')
    xsum_groups(e, 5, 7)
    xsum_groups(e, 6, 8)
    e(f's_lshl_b32 s52, s{sW}, 7')
    e('v_lshlrev_b32 v7, 3, v2')
    e('v_add_u32 v7, s52, v7')
    e('v_mov_b32 v8, v5')
    e('v_mov_b32 v9, v6')
    e.ds('ds_write_b64 v7, v[8:9] offset:28672')
    e.wait_ds_all()
    stamp(e, 'A.xstaged')
    e.barrier()
    if OPT['wpf'] == 1: w_prefetch(e)
    e('v_mov_b32 v250, 0')
    nonce_tok = e.vm(f'buffer_load_dword v251, v250, {SDBG}, 0 offen sc1')
    e('v_and_b32 v4, 31, v1')
    e('v_lshrrev_b32 v5, 4, v4')
    e('v_lshlrev_b32 v5, 8, v5')
    e('v_lshlrev_b32 v6, 3, v2')
    e('v_add_u32 v5, v5, v6')
    t0 = e.ds('ds_read_b64 v[6:7], v5 offset:28672')
    t1 = e.ds('ds_read_b64 v[8:9], v5 offset:28800')
    xt = {}
    order = [(half, t, mt) for half in range(2) for t in range(7) for mt in range(2)]
    def xreg(mt, tt): return X + (mt * 14 + tt) * 4
    nread = [0]
    def issue_x():
        half, t, mt = order[nread[0]]
        tt = t + 7 * half
        xt[(half, t, mt)] = e.ds(f'ds_read_b128 {vr(xreg(mt,tt),4)}, v11 offset:{(mt*14+tt)*1024}')
        nread[0] += 1
    for _ in range(8): issue_x()
    e.wait_ds(t1)
    e('v_add_f32 v6, v6, v8')
    e('v_add_f32 v7, v7, v9')
    e(f'v_mul_f32 v6, {lit(1.0/448)}, v6')
    e(f'v_mul_f32 v7, {lit(1.0/448)}, v7')
    e('v_fma_f32 v7, -v6, v6, v7')
    e('v_max_f32 v7, 0, v7')
    e(f'v_add_f32 v7, {lit(1e-5)}, v7')
    e('v_rsq_f32 v7, v7')
    e(f's_lshl_b32 s52, s{sW}, 7')
    e('v_lshlrev_b32 v8, 2, v4')
    e('v_add_u32 v9, s52, v8')
    e.ds('ds_write_b32 v9, v7 offset:29184')
    nm = L('nomean')
    e(f's_or_b32 s52, s{sGRP}, s{sW}')
    e('s_cmp_lg_u32 s52, 0')
    e(f's_cbranch_scc1 {nm}')
    e(f's_lshl_b32 s52, s{sB}, 7')
    e(f's_add_u32 s52, s52, 0x{ST1_OFF:x}')
    e(f'buffer_store_dword v6, v8, {SWS}, s52 offen sc1')
    e.label(nm)
    e(f's_lshl_b32 s52, s{sW}, 7')
    e('v_lshlrev_b32 v9, 4, v3')
    e('v_add_u32 v9, s52, v9')
    RR = 240
    tr0 = e.ds(f'ds_read_b128 {vr(RR,4)}, v9 offset:29184')
    tr1 = e.ds(f'ds_read_b128 {vr(RR+4,4)}, v9 offset:29248')
    def acc(mt, c, half): return ACC + ((mt * 2 + c) * 2 + half) * 4
    for (half, t, mt) in order:
        if nread[0] < len(order): issue_x()
        e.wait_ds(xt[(half, t, mt)])
        tt = t + 7 * half
        for c in range(2):
            a = acc(mt, c, half)
            e(f'v_mfma_f32_16x16x32_bf16 {vr(a,4)}, {vr(xreg(mt,tt),4)}, {vr(TA+(t*2+c)*4,4)}, {"0" if t == 0 else vr(a,4)}')
    e.wait_ds(tr1)
    stamp(e, 'A.mfma')
    BF = X; TMP = X + 8
    for c in range(2):
        for mt in range(2):
            for r in range(4): e(f'v_fma_f32 v{TMP+mt*4+r}, v{acc(mt,c,1)+r}, s58, v{acc(mt,c,0)+r}')
            for r in range(4): e(f'v_mul_f32 v{TMP+mt*4+r}, v{TMP+mt*4+r}, v{RR+mt*4+r}')
        for mt in range(2):
            for i in range(2):
                e(f'v_cvt_pk_bf16_f32 v{BF+c*4+mt*2+i}, v{TMP+mt*4+2*i}, v{TMP+mt*4+2*i+1}')
    TT = X + 16
    for mt in range(2):
        C, Sp, Sn = FP + mt * 12, FP + mt * 12 + 4, FP + mt * 12 + 8
        e(f'v_mfma_f32_16x16x32_bf16 {vr(TT+mt*8,4)}, {vr(C,4)}, {vr(BF,4)}, 0')
        e(f'v_mfma_f32_16x16x32_bf16 {vr(TT+mt*8+4,4)}, {vr(Sn,4)}, {vr(BF,4)}, 0')
        e(f'v_mfma_f32_16x16x32_bf16 {vr(TT+mt*8,4)}, {vr(Sp,4)}, {vr(BF+4,4)}, {vr(TT+mt*8,4)}')
        e(f'v_mfma_f32_16x16x32_bf16 {vr(TT+mt*8+4,4)}, {vr(C,4)}, {vr(BF+4,4)}, {vr(TT+mt*8+4,4)}')
    e('s_mov_b32 s52, %d' % (4 * 57344))
    e('v_mul_lo_u32 v4, v3, s52')
    e('v_lshlrev_b32 v5, 2, v2')
    e('v_add_u32 v4, v4, v5')
    e('s_lshl_b32 s52, s56, 12')
    e(f's_lshl_b32 s53, s{sB}, 6')
    e('s_add_u32 s52, s52, s53')
    OUT = X + 40
    for mt in range(2):
        for r in range(4): e(f'v_cvt_pk_bf16_f32 v{OUT+mt*4+r}, v{TT+mt*8+r}, v{TT+mt*8+4+r}')
    ns = L('nostoreA')
    e('s_cmp_ge_u32 s56, 14')
    e(f's_cbranch_scc1 {ns}')
    for mt in range(2):
        for r in range(4):
            e(f's_add_u32 s53, s52, {T1_OFF + (16*mt+r)*57344}')
            e(f'buffer_store_dword v{OUT+mt*4+r}, v4, {SWS}, s53 offen sc1')
    e.label(ns)
    stamp(e, 'A.stored')
    e.wait_vm_all()
    sk, lp, dn = L('nsk'), L('nlp'), L('ndn')
    e(f's_cmp_lg_u32 s{sW}, 0')
    e(f's_cbranch_scc1 {sk}')
    e(f's_mov_b32 s{sSPIN}, 0')
    e.label(lp)
    e(f'v_readfirstlane_b32 s{sNONCE}, v251')
    e('s_nop 1')
    e(f's_cmp_lg_u32 s{sNONCE}, 0')
    e(f's_cbranch_scc1 {dn}')
    e(f'buffer_load_dword v251, v250, {SDBG}, 0 offen sc1')
    e('s_waitcnt vmcnt(0)')
    e(f's_add_u32 s{sSPIN}, s{sSPIN}, 1')
    e(f's_cmp_lt_u32 s{sSPIN}, {MAXSPIN}')
    e(f's_cbranch_scc1 {lp}')
    e.label(dn)
    e.label(sk)
    stamp(e, 'A.drained')
    skn = L('nb')
    e(f's_cmp_lg_u32 s{sW}, 0')
    e(f's_cbranch_scc1 {skn}')
    e(f'v_mov_b32 v14, s{sNONCE}')
    e('v_mov_b32 v15, 29696')
    e('ds_write_b32 v15, v14')
    e('s_waitcnt lgkmcnt(0)')
    e.label(skn)
    signal(e, 0)
    e('v_mov_b32 v15, 29696')
    e('ds_read_b32 v14, v15')
    e('s_waitcnt lgkmcnt(0)')
    e(f'v_readfirstlane_b32 s{sNONCE}, v14')

P2PARK = [16 + 4 * j for j in range(12)] + [92, 96]
def phase_p2(e):
    e.c('======== P2 (w2 re-layout)')
    done = L('p2done'); nojob = L('p2none')
    e('s_cmp_ge_u32 s2, 252')
    e(f's_cbranch_scc1 {nojob}')
    e('s_sub_u32 s56, s2, 224')
    e('s_waitcnt vmcnt(0)')
    e.barrier()
    e.vm_issued = e.vm_done = 0
    e('s_mul_i32 s52, s56, 57344')
    e('v_lshlrev_b32 v4, 4, v0')
    toks = []
    e('s_mov_b32 s57, s52')
    def ld(i):
        e(f's_add_u32 s53, s57, {i*4096}')
        toks.append(e.vm(f'buffer_load_dwordx4 {vr(16+4*i,4)}, v4, {SW2}, s53 offen'))
    for i in range(8): ld(i)
    for i in range(14):
        e(f'v_add_u32 v5, {i*256}, v0')
        e('v_mul_u32_u24 v6, 18725, v5')
        e('v_lshrrev_b32 v6, 20, v6')
        e('v_lshlrev_b32 v6, 5, v6')
        e('v_lshlrev_b32 v5, 4, v5')
        e(f'v_add_u32 v{80+i}, v5, v6')
        e(f'v_add_u32 v{80+i}, {LDS_STAGE}, v{80+i}')
    gen_G(e)
    for i in range(8, 14): ld(i)
    stamp(e, 'P2.issued')
    gen_TC(e)
    for i in range(14):
        e.wait_vm(toks[i])
        e.ds(f'ds_write_b128 v{80+i}, {vr(16+4*i,4)}')
    e.wait_ds_all()
    stamp(e, 'P2.lds')
    e.barrier()
    e('v_lshrrev_b32 v4, 1, v3')
    e('v_lshlrev_b32 v4, 2, v4')
    e('v_lshrrev_b32 v5, 2, v2')
    e('v_add_u32 v4, v4, v5')
    e(f's_lshl_b32 s53, s{sW}, 4')
    e('v_add_u32 v4, s53, v4')
    e('v_mul_u32_u24 v4, 928, v4')
    e('v_and_b32 v5, 1, v3')
    e('v_lshlrev_b32 v5, 4, v5')
    e('v_add_u32 v4, v4, v5')
    e('v_and_b32 v5, 1, v2')
    e('v_lshlrev_b32 v5, 3, v5')
    e('v_add_u32 v4, v4, v5')
    e('v_bfe_u32 v5, v2, 1, 1')
    e('v_mul_u32_u24 v5, 448, v5')
    e('v_add_u32 v4, v4, v5')
    e(f'v_add_u32 v4, {LDS_STAGE}, v4')
    e('v_lshlrev_b32 v5, 4, v1')
    e('s_lshl_b32 s53, s56, 2')
    e(f's_add_u32 s53, s53, s{sW}')
    e('s_lshl_b32 s53, s53, 10')
    e(f's_add_u32 s53, s53, 0x{W2_OFF:x}')
    if OPT['p2park']:
        for j in range(14):
            R = P2PARK[j]
            e.ds(f'ds_read_b64_tr_b16 {vr(R,2)}, v4 offset:{32*j}')
            e.ds(f'ds_read_b64_tr_b16 {vr(R+2,2)}, v4 offset:{32*j + 8*928}')
        e.wait_ds_all()
        e('s_mov_b32 s99, s53')
    trt = []
    for j in range(14 if not OPT['p2park'] else 0):
        R = 16 + 4 * j
        e.ds(f'ds_read_b64_tr_b16 {vr(R,2)}, v4 offset:{32*j}')
        trt.append(e.ds(f'ds_read_b64_tr_b16 {vr(R+2,2)}, v4 offset:{32*j + 8*928}'))
        if j >= 4:
            e.wait_ds(trt[j - 4])
            e(f's_add_u32 s54, s53, {(j-4)*112*1024}')
            e.vm(f'buffer_store_dwordx4 {vr(16+4*(j-4),4)}, v5, {SWS}, s54 offen sc1')
    for j in range(10, 14 if not OPT['p2park'] else 0):
        e.wait_ds(trt[j])
        e(f's_add_u32 s54, s53, {j*112*1024}')
        e.vm(f'buffer_store_dwordx4 {vr(16+4*j,4)}, v5, {SWS}, s54 offen sc1')
    stamp(e, 'P2.stored')
    e(f's_branch {done}')
    e.label(nojob)
    gen_TC(e)
    gen_G(e)
    e.label(done)
    e.wait_vm_all()
    stamp(e, 'P2.drained')
assert all(((p * 18725) >> 20) == p // 56 for p in range(3584)), "magic /56"

def phase_b(e):
    e.c('======== window 1 + phase B')
    e('s_and_b32 s56, s2, 7')
    e('s_lshr_b32 s57, s2, 3')
    e('s_mul_i32 s52, s57, 37')
    e('s_lshr_b32 s52, s52, 8')
    e('s_mul_i32 s53, s52, 7')
    e('s_sub_u32 s53, s57, s53')
    e('s_lshl_b32 s52, s52, 3')
    e('s_add_u32 s56, s56, s52')
    e('s_lshl_b32 s53, s53, 1')
    e(f's_lshr_b32 s54, s{sW}, 1')
    e('s_add_u32 s57, s53, s54')
    e('s_lshr_b32 s59, s53, 2')
    e(f's_and_b32 s58, s{sW}, 1')
    FC, FS, FN = 16, 32, 48
    TIN, BF, WR, WI, XA, YR, YI, YF = 64, 80, 96, 104, 112, 128, 136, 144
    e('s_cmp_lt_u32 s57, 7')
    e('s_cselect_b32 s52, 2, 1')
    e('s_cselect_b32 s53, 0, 7')
    e('s_sub_u32 s53, s57, s53')
    e('s_lshl_b32 s53, s53, 5')
    e('s_add_u32 s53, s53, s52')
    e('v_lshlrev_b32 v6, 1, v2')
    e('v_add_u32 v6, s53, v6')
    e('v_lshlrev_b32 v6, 1, v6')
    e('v_lshlrev_b32 v7, 7, v3')
    e('s_lshl_b32 s52, s58, 10')
    e('s_add_u32 s52, s52, s56')
    e('v_add_u32 v7, s52, v7')
    e('v_mul_u32_u24 v7, 450, v7')
    e('v_add_u32 v6, v6, v7')
    wtok = {}
    for mtl in range(2):
        for r in range(4):
            e(f's_mov_b32 s52, {(16*mtl+r)*14400}')
            e.vm(f'buffer_load_short_d16_hi v{WR+mtl*4+r}, v6, {SWR}, s52 offen')
            wtok[(mtl, r)] = e.vm(f'buffer_load_short_d16_hi v{WI+mtl*4+r}, v6, {SWI}, s52 offen')
    CO, SI, TH = 160, 176, 192
    groups = []
    main = []
    em = main.append
    em('s_lshl_b32 s52, s58, 5')
    em('v_add_u32 v8, s52, v2')
    em('v_cvt_f32_u32 v8, v8')
    em(f'v_mul_f32 v8, {lit(1.0/64)}, v8')
    em('v_lshlrev_b32 v9, 2, v3')
    for tt in range(2):
        em(f's_xor_b32 s52, s58, {tt}')
        em('s_lshl_b32 s52, s52, 5')
        em('v_add_u32 v10, s52, v9')
        em('v_cvt_f32_u32 v10, v10')
        em('v_mul_f32 v10, v10, v8')
        for j in range(8):
            cst = 16 * (j >> 2) + (j & 3)
            if cst == 0: em(f'v_mov_b32 v{TH+j}, v10')
            else: em(f'v_fmamk_f32 v{TH+j}, v8, {lit(float(cst))}, v10')
        for j in range(8): em(f'v_cos_f32 v{CO+tt*8+j}, v{TH+j}')
        for j in range(8): em(f'v_sin_f32 v{SI+tt*8+j}, v{TH+j}')
    def rot(kind, t, j, mt):
        qt = (mt * (j & 3)) & 3
        c, s = f'v{CO+t*8+j}', f'v{SI+t*8+j}'
        if kind == 'C': return [c, '-' + s, '-' + c, s][qt]
        if kind == 'S': return [s, c, '-' + s, '-' + c][qt]
        if kind == 'N': return ['-' + s, '-' + c, s, c][qt]
    for kind, base in (('C', FC), ('S', FS), ('N', FN)):
        for mtl in range(2):
            for tt in range(2):
                for i in range(4):
                    em(f'v_cvt_pk_bf16_f32 v{base+(mtl*2+tt)*4+i}, {rot(kind,tt,2*i,mtl)}, {rot(kind,tt,2*i+1,mtl)}')
    emit_interleaved(e, main, groups)
    if not OPT['p1slot']: p1_finish(e)
    stamp(e, 'W1.p1')
    e('s_mul_i32 s60, s56, 14')
    e('s_add_u32 s60, s60, s57')
    e('s_lshl_b32 s60, s60, 12')
    e(f's_add_u32 s60, s60, 0x{T1_OFF:x}')
    e('v_lshlrev_b32 v11, 8, v3')
    e('v_lshlrev_b32 v10, 2, v2')
    e('v_add_u32 v11, v11, v10')
    stamp(e, 'W1.ready')
    def idx(e):
        e('v_and_b32 v5, 7, v1')
        e('v_lshrrev_b32 v6, 3, v1')
        e('v_lshlrev_b32 v6, 5, v6')
        e('v_add_u32 v5, v5, v6')
        e('s_lshl_b32 s53, s59, 3')
        e('v_add_u32 v5, s53, v5')
        e('v_lshlrev_b32 v5, 6, v5')
    poll(e, 0, 64, idx)
    stamp(e, 'B.go')
    tin = {}
    for tt in range(2):
        e(f's_xor_b32 s52, s58, {tt}')
        e('s_lshl_b32 s52, s52, 11')
        e('s_add_u32 s52, s52, s60')
        for j in range(8):
            off = (16 * (j >> 2) + (j & 3)) * 64
            tin[(tt, j)] = e.vm(f'buffer_load_dword v{TIN+tt*8+j}, v11, {SWS}, s52 offen offset:{off} sc1')
    if OPT['p1slot']: p1_finish(e, R=112)
    elif OPT['gslot']: gen_G(e)
    e('s_mov_b32 s52, 0x05040100')
    e('s_mov_b32 s53, 0x07060302')
    for tt in range(2):
        e.wait_vm(tin[(tt, 7)])
        for i in range(4):
            e(f'v_perm_b32 v{BF+tt*4+i}, v{TIN+tt*8+2*i+1}, v{TIN+tt*8+2*i}, s52')
            e(f'v_perm_b32 v{BF+8+tt*4+i}, v{TIN+tt*8+2*i+1}, v{TIN+tt*8+2*i}, s53')
    stamp(e, 'B.loaded')
    def fr(base, mtl, tt): return vr(base + (mtl * 2 + tt) * 4, 4)
    def mm(d, a, b, first): e(f'v_mfma_f32_16x16x32_bf16 {vr(d,4)}, {a}, {vr(b,4)}, {"0" if first else vr(d,4)}')
    BRE = lambda t: BF + t * 4
    BIM = lambda t: BF + 8 + t * 4
    for step in range(4):
        for mtl in range(2):
            xr, xi = XA + mtl * 8, XA + mtl * 8 + 4
            tt = step & 1
            if step < 2:
                mm(xr, fr(FC, mtl, tt), BRE(tt), step == 0); mm(xi, fr(FN, mtl, tt), BRE(tt), step == 0)
            else:
                mm(xr, fr(FS, mtl, tt), BIM(tt), False); mm(xi, fr(FC, mtl, tt), BIM(tt), False)
    e.wait_vm(wtok[(1, 3)])
    for mtl in range(2):
        for r in range(4):
            xr, xi = XA + mtl * 8 + r, XA + mtl * 8 + 4 + r
            wr, wi = WR + mtl * 4 + r, WI + mtl * 4 + r
            e(f'v_mul_f32 v{YR+mtl*4+r}, v{xr}, v{wr}')
            e(f'v_mul_f32 v{YI+mtl*4+r}, v{xr}, v{wi}')
            e(f'v_fma_f32 v{YR+mtl*4+r}, -v{xi}, v{wi}, v{YR+mtl*4+r}')
            e(f'v_fma_f32 v{YI+mtl*4+r}, v{xi}, v{wr}, v{YI+mtl*4+r}')
    for c, src in ((0, YR), (1, YI)):
        for i in range(4):
            e(f'v_cvt_pk_bf16_f32 v{YF+c*8+i}, v{src+(i>>1)*4+2*(i&1)}, v{src+(i>>1)*4+2*(i&1)+1}')
    e('v_lshlrev_b32 v10, 4, v1')
    e(f's_lshl_b32 s52, s{sW}, 11')
    e('v_add_u32 v12, s52, v10')
    e(f's_xor_b32 s52, s{sW}, 1')
    e('s_lshl_b32 s52, s52, 11')
    e('v_add_u32 v13, s52, v10')
    e.ds(f'ds_write_b128 v12, {vr(YF,4)}')
    e.ds(f'ds_write_b128 v12, {vr(YF+8,4)} offset:1024')
    e.wait_ds_all()
    e.barrier()
    p0 = e.ds(f'ds_read_b128 {vr(YF+4,4)}, v13')
    p1_ = e.ds(f'ds_read_b128 {vr(YF+12,4)}, v13 offset:1024')
    YRE = lambda t: YF + t * 4
    YIM = lambda t: YF + 8 + t * 4
    for mtl in range(2):
        xr, xi = XA + mtl * 8, XA + mtl * 8 + 4
        mm(xr, fr(FC, mtl, 0), YRE(0), True);  mm(xi, fr(FS, mtl, 0), YRE(0), True)
        mm(xr, fr(FN, mtl, 0), YIM(0), False); mm(xi, fr(FC, mtl, 0), YIM(0), False)
    e.wait_ds(p1_)
    for mtl in range(2):
        xr, xi = XA + mtl * 8, XA + mtl * 8 + 4
        mm(xr, fr(FC, mtl, 1), YRE(1), False); mm(xi, fr(FS, mtl, 1), YRE(1), False)
        mm(xr, fr(FN, mtl, 1), YIM(1), False); mm(xi, fr(FC, mtl, 1), YIM(1), False)
    e('s_mov_b32 s52, %d' % (4 * 28672))
    e('v_mul_lo_u32 v4, v3, s52')
    e('v_lshlrev_b32 v5, 2, v2')
    e('v_add_u32 v4, v4, v5')
    e('s_lshl_b32 s52, s57, 11')
    e('s_lshl_b32 s53, s56, 6')
    e('s_add_u32 s52, s52, s53')
    e(f's_mul_i32 s53, s58, {32*28672}')
    e('s_add_u32 s52, s52, s53')
    last = None
    for mtl in range(2):
        for r in range(4): e(f'v_cvt_pk_bf16_f32 v{TIN+mtl*4+r}, v{XA+mtl*8+r}, v{XA+mtl*8+4+r}')
        for r in range(4):
            e(f's_add_u32 s53, s52, {T2_OFF + (16*mtl+r)*28672}')
            last = e.vm(f'buffer_store_dword v{TIN+mtl*4+r}, v4, {SWS}, s53 offen sc1')
    stamp(e, 'B.stored')
    e.wait_vm_all()
    stamp(e, 'B.drained')

def phase_c(e):
    e.c('======== window 2 + phase C')
    e(f's_lshl_b32 s56, s{sGRP}, 2')
    e(f's_add_u32 s56, s56, s{sW}')
    e('s_min_u32 s57, s56, 13')
    G, TC, AIN, VA, PA, XR = C_G, C_TC, 104, 136, 48, 64
    MEAN = XR + 8
    e('v_lshlrev_b32 v5, 6, v2')
    e(f'v_add_u32 v5, s{sB}, v5')
    e('v_mul_u32_u24 v5, 896, v5')
    e('v_lshlrev_b32 v6, 3, v3')
    e('v_add_u32 v5, v5, v6')
    e('s_lshl_b32 s52, s57, 5')
    e('v_add_u32 v5, s52, v5')
    for nt in range(2):
        for pm in range(2):
            e(f's_mov_b32 s52, {nt*16*64*896}')
            e.vm(f'buffer_load_dwordx2 {vr(XR+(nt*2+pm)*2,2)}, v5, {SX}, s52 offen offset:{448*pm}')
    e('v_lshlrev_b32 v12, 2, v1')
    stamp(e, 'W2.ready')
    def idx(e): e('v_lshlrev_b32 v5, 6, v1')
    poll(e, 1, 256, idx, preg=100)
    stamp(e, 'C.go')
    w13_setup(e)
    WG = w13_load_groups()
    wgi = [0]
    def wload(n):
        for _ in range(n):
            if wgi[0] < len(WG):
                emit_groups(e, [WG[wgi[0]]]); wgi[0] += 1
    atok = {}
    for i in range(4):
        e(f's_add_u32 s52, s{sW}, {4*i}')
        e('s_min_u32 s52, s52, 13')
        e(f's_mul_i32 s53, s{sB}, 14')
        e('s_add_u32 s52, s52, s53')
        e('s_lshl_b32 s52, s52, 11')
        e(f's_add_u32 s52, s52, 0x{T2_OFF:x}')
        for t in range(2):
            for ii in range(4):
                atok[(i, t, ii)] = e.vm(f'buffer_load_dword v{AIN+i*8+t*4+ii}, v12, {SWS}, s52 offen offset:{(16*t+4*ii)*64} sc1')
    e('v_lshlrev_b32 v6, 2, v2')
    e(f's_lshl_b32 s52, s{sB}, 7')
    e(f's_add_u32 s52, s52, 0x{ST1_OFF:x}')
    mtok = [e.vm(f'buffer_load_dword v{MEAN+nt}, v6, {SWS}, s52 offen offset:{64*nt} sc1') for nt in range(2)]
    e('v_lshlrev_b32 v11, 4, v1')
    if OPT['p2park']:
        skp = L('p2st')
        e('s_cmp_lt_u32 s2, 224')
        e(f's_cbranch_scc1 {skp}')
        e('s_cmp_ge_u32 s2, 252')
        e(f's_cbranch_scc1 {skp}')
        for j in range(14):
            e(f's_add_u32 s52, s99, {j*112*1024}')
            e(f'buffer_store_dwordx4 {vr(P2PARK[j],4)}, v11, {SWS}, s52 offen sc1')
        e.label(skp)
    e(f's_lshl_b32 s52, s{sW}, 11')
    e('v_add_u32 v12, s52, v11')
    PK = 76
    for i in range(4):
        e.wait_vm(atok[(i, 1, 3)])
        if i == 0: stamp(e, 'C.loaded')
        for nt in range(2):
            for out in range(2):
                d = VA + (out * 2 + nt) * 4
                e(f'v_mfma_f32_16x16x32_bf16 {vr(d,4)}, {vr(AIN+i*8,4)}, {vr(G+((out*2+0)*2+nt)*4,4)}, 0')
        for nt in range(2):
            for out in range(2):
                d = VA + (out * 2 + nt) * 4
                e(f'v_mfma_f32_16x16x32_bf16 {vr(d,4)}, {vr(AIN+i*8+4,4)}, {vr(G+((out*2+1)*2+nt)*4,4)}, {vr(d,4)}')
        sk = L('skip3')
        if i == 3:
            e(f's_cmp_ge_u32 s{sW}, 2')
            e(f's_cbranch_scc1 {sk}')
        for nt in range(2):
            p = PK + nt * 4 + (i & 1) * 8
            vre, vim = VA + (0 * 2 + nt) * 4, VA + (1 * 2 + nt) * 4
            e(f'v_cvt_pk_bf16_f32 v{p+0}, v{vre+0}, v{vre+1}')
            e(f'v_cvt_pk_bf16_f32 v{p+1}, v{vre+2}, v{vre+3}')
            e(f'v_cvt_pk_bf16_f32 v{p+2}, v{vim+0}, v{vim+1}')
            e(f'v_cvt_pk_bf16_f32 v{p+3}, v{vim+2}, v{vim+3}')
            e.ds(f'ds_write_b128 v12, {vr(p,4)} offset:{(4*i*2+nt)*1024}')
        if i == 3: e.label(sk)
        wload(OPT['st1'])
    e.wait_ds_all()
    stamp(e, 'C.st1')
    if OPT['p2mode'] == 1: signal(e, 4)
    else: e.barrier()
    VB = 16
    order = [(kb, nt) for kb in range(14) for nt in range(2)]
    tok = {}
    nread = [0]
    def issue():
        kb, nt = order[nread[0]]
        tok[nread[0]] = e.ds(f'ds_read_b128 {vr(VB+(nread[0]%8)*4,4)}, v11 offset:{(kb*2+nt)*1024}')
        nread[0] += 1
    for _ in range(7): issue()
    for idx_, (kb, nt) in enumerate(order):
        e.wait_ds(tok[idx_])
        par = 0 if kb < 7 else 1
        d = PA + (par * 2 + nt) * 4
        first = kb in (0, 7)
        e(f'v_mfma_f32_16x16x32_bf16 {vr(d,4)}, {vr(TC+kb*4,4)}, {vr(VB+(idx_%8)*4,4)}, {"0" if first else vr(d,4)}')
        if nread[0] < len(order): issue()
        if OPT['st2'] and idx_ % OPT['st2'] == OPT['st2'] - 1: wload(1)
    stamp(e, 'C.st2')
    e.wait_vm(mtok[1])
    H, HP, CP, SQ = 104, 120, 128, 92
    e('s_mov_b32 s52, 0xffff0000')
    for nt in range(2):
        pe, po = PA + nt * 4, PA + 8 + nt * 4
        for pm in range(2):
            xr = XR + (nt * 2 + pm) * 2
            for r in range(4):
                hv = H + (nt * 2 + pm) * 4 + r
                e(f'{"v_add_f32" if pm == 0 else "v_sub_f32"} v{hv}, v{pe+r}, v{po+r}')
                xv = 96 + r
                if r & 1: e(f'v_and_b32 v{xv}, s52, v{xr+(r>>1)}')
                else: e(f'v_lshlrev_b32 v{xv}, 16, v{xr+(r>>1)}')
            for r in range(4):
                hv = H + (nt * 2 + pm) * 4 + r
                e(f'v_add_f32 v{hv}, v{hv}, v{96+r}')
            for i in range(2):
                hv = H + (nt * 2 + pm) * 4 + 2 * i
                e(f'v_cvt_pk_bf16_f32 v{HP+nt*4+pm*2+i}, v{hv}, v{hv+1}')
        e(f'v_mov_b32 v{SQ+nt}, 0')
        for q in range(4):
            hp = HP + nt * 4 + q
            e(f'v_lshlrev_b32 v100, 16, v{hp}')
            e(f'v_and_b32 v101, s52, v{hp}')
            e(f'v_sub_f32 v100, v100, v{MEAN+nt}')
            e(f'v_sub_f32 v101, v101, v{MEAN+nt}')
            e(f'v_fma_f32 v{SQ+nt}, v100, v100, v{SQ+nt}')
            e(f'v_fma_f32 v{SQ+nt}, v101, v101, v{SQ+nt}')
            e(f'v_cvt_pk_bf16_f32 v{CP+nt*4+q}, v100, v101')
            wload(OPT['epi'])
    e('v_lshrrev_b32 v4, 1, v3')
    e('v_lshlrev_b32 v4, 10, v4')
    e('v_and_b32 v5, 1, v3')
    e('v_lshlrev_b32 v5, 9, v5')
    e('v_add_u32 v4, v4, v5')
    e('v_lshlrev_b32 v5, 4, v2')
    e('v_add_u32 v4, v4, v5')
    e(f's_mul_i32 s52, s{sB}, 28')
    e('s_lshl_b32 s53, s57, 1')
    e('s_add_u32 s52, s52, s53')
    e('s_lshl_b32 s52, s52, 10')
    ns, st = L('cnostore'), L('cstat')
    e('s_cmp_ge_u32 s56, 14')
    e(f's_cbranch_scc1 {ns}')
    e(f's_add_u32 s53, s52, 0x{HC_OFF:x}')
    e(f's_add_u32 s54, s52, 0x{HR_OFF:x}')
    for nt in range(2):
        e(f'buffer_store_dwordx4 {vr(CP+nt*4,4)}, v4, {SWS}, s53 offen offset:{256*nt} sc1')
        e(f'buffer_store_dwordx4 {vr(HP+nt*4,4)}, v4, {SWS}, s54 offen offset:{256*nt} sc1')
    e.label(ns)
    for nt in range(2): xsum_groups(e, SQ + nt, 102)
    e('s_cmp_lt_u32 s56, 14')
    e(f's_cbranch_scc1 {st}')
    e(f'v_mov_b32 v{SQ}, 0')
    e(f'v_mov_b32 v{SQ+1}, 0')
    e.label(st)
    e('v_cmp_le_u32 vcc, 16, v1')
    e(f'v_cndmask_b32 v{SQ}, v{SQ}, v{SQ+1}, vcc')
    e('v_lshlrev_b32 v5, 2, v1')
    e(f's_lshl_b32 s52, s{sB}, 11')
    e('s_lshl_b32 s53, s56, 7')
    e('s_add_u32 s52, s52, s53')
    e(f's_add_u32 s52, s52, 0x{ST2_OFF:x}')
    e('s_mov_b64 exec, 0xffffffff')
    last = e.vm(f'buffer_store_dword v{SQ}, v5, {SWS}, s52 offen sc1')
    e('s_mov_b64 exec, -1')
    stamp(e, 'C.stored')
    wload(OPT['post'])
    e.wait_vm(last)
    stamp(e, 'C.drained')
    signal(e, 2)
    global W13_PENDING
    W13_PENDING = (WG, wgi)

NV, NE = 27, 35
def w2reg(mi, s_):
    o = 2 * s_ + mi
    if o < NV: return vr(144 + 4 * o, 4), None
    if o < NE: return ar(224 + 4 * (o - NV), 4), None
    oo = o - NE
    return ar(((oo & 1) * 28 + (oo >> 1)) * 4, 4), (oo & 1, oo >> 1)

def hm_fill(e):
    skf = L('fill')
    e(f's_cmp_eq_u32 s{sW}, 0')
    e(f's_cbranch_scc1 {skf}')
    e(f's_cmp_ge_u32 s{sC}, 14')
    e(f's_cbranch_scc1 {skf}')
    for r in range(4): e(f'v_mov_b32 v{136+r}, -1')
    e('v_lshlrev_b32 v140, 4, v1')
    e(f's_lshl_b32 s52, s{sR}, 2')
    e('s_add_u32 s52, s52, 2')
    e('s_mul_i32 s52, s52, 112')
    e(f's_lshl_b32 s53, s{sC}, 3')
    e('s_add_u32 s52, s52, s53')
    for m in range(6):
        e(f's_add_u32 s53, s{sW}, {3*m - 1}')
        if m == 5:
            e('s_cmp_ge_u32 s53, 16')
            e(f's_cbranch_scc1 {skf}')
        e('s_lshr_b32 s54, s53, 3')
        e('s_mul_i32 s54, s54, 112')
        e('s_and_b32 s53, s53, 7')
        e('s_add_u32 s53, s53, s54')
        e('s_add_u32 s53, s53, s52')
        e('s_lshl_b32 s53, s53, 10')
        e(f's_add_u32 s53, s53, 0x{HM_OFF:x}')
        e(f'buffer_store_dwordx4 v[136:139], v140, {SWS}, s53 offen sc1')
    e.label(skf)

def phase_g(e):
    e.c('======== window 3 + G1')
    WG, wgi = W13_PENDING
    if OPT['sent'] and OPT['fillpos'] == 0: hm_fill(e)
    wtok = {}
    for _ in range(min(OPT['w3'], len(WG) - wgi[0])):
        wtok[wgi[0]] = emit_groups(e, [WG[wgi[0]]]); wgi[0] += 1
    e('v_lshlrev_b32 v4, 4, v1')
    e(f's_lshl_b32 s56, s{sC}, 3')
    e(f's_lshl_b32 s52, s{sW}, 1')
    e('s_add_u32 s56, s56, s52')
    e(f's_lshl_b32 s57, s{sR}, 2')
    e('s_and_b32 s58, s2, 7')
    e('s_lshr_b32 s59, s2, 3')
    e('s_mul_i32 s52, s59, 37')
    e('s_lshr_b32 s52, s52, 8')
    e('s_mul_i32 s53, s52, 7')
    e('s_sub_u32 s59, s59, s53')
    e('s_lshl_b32 s52, s52, 3')
    e('s_add_u32 s58, s58, s52')
    e(f's_mul_i32 s52, s{sW}, 28')
    e(f's_and_b32 s54, s{sW}, 1')
    for mi in range(2):
        e(f's_xor_b32 s53, s54, {mi}')
        e('s_lshl_b32 s55, s59, 1')
        e('s_add_u32 s53, s53, s55')
        e('s_mul_i32 s53, s53, 112')
        e('s_add_u32 s53, s53, s52')
        e('s_lshl_b32 s53, s53, 10')
        e(f's_add_u32 s{60+mi}, s53, 0x{W2_OFF:x}')
    e(f's_lshr_b32 s53, s{sW}, 1')
    e('s_lshl_b32 s53, s53, 4')
    e('v_xor_b32 v10, s53, v1')
    e('v_lshlrev_b32 v10, 4, v10')
    e('v_min_u32 v8, 13, v1')
    e('v_lshrrev_b32 v9, 1, v8')
    e('v_and_b32 v8, 1, v8')
    e('v_lshlrev_b32 v8, 7, v8')
    e('v_add_u32 v8, v8, v9')
    e('s_lshr_b32 s53, s58, 1')
    e('s_lshl_b32 s53, s53, 3')
    e('v_add_u32 v8, s53, v8')
    e('v_lshlrev_b32 v8, 6, v8')
    def grp_off(dst, g):
        if not OPT['g2rot']: return [f's_mov_b32 s{dst}, {g*4096}']
        return [f's_add_u32 s{dst}, s59, {g}', f's_cmp_ge_u32 s{dst}, 7', f's_cselect_b32 s55, 7, 0',
                f's_sub_u32 s{dst}, s{dst}, s55', f's_lshl_b32 s{dst}, s{dst}, 12']
    def w2load(o):
        s_, mi = o >> 1, o & 1
        reg, dep = w2reg(mi, s_)
        pre = []
        if s_ % 4 == 0 and mi == 0:
            pre = grp_off(62, s_ // 4) + ['s_add_u32 s63, s61, s62', 's_add_u32 s62, s60, s62']
        return pre + [('vm', f'buffer_load_dwordx4 {reg}, v10, {SWS}, s{62+mi} offen offset:{(s_%4)*1024} sc1')]
    def idx0(e): idx(e, True)
    def idx(e, skipw=False):
        e('v_lshrrev_b32 v5, 2, v1')
        e('v_add_u32 v5, s57, v5')
        e('v_and_b32 v6, 7, v5')
        e('v_lshrrev_b32 v5, 3, v5')
        e('v_lshlrev_b32 v5, 5, v5')
        e('v_add_u32 v5, v5, v6')
        e('v_and_b32 v6, 3, v1')
        e('v_lshlrev_b32 v6, 3, v6')
        e('v_add_u32 v5, v5, v6')
        e('v_lshlrev_b32 v5, 6, v5')
        if not skipw: idxw(e, 16)
    def idxw(e, first):
        e(f'v_add_u32 v6, {208 if first == 16 else 224}, v1')
        e('v_lshlrev_b32 v6, 6, v6')
        if not OPT['p2park']: e(f'v_add_u32 v6, {2*0x40000}, v6')
        if first:
            e(f'v_cmp_le_u32 vcc, {first}, v1')
            e('v_cndmask_b32 v5, v5, v6, vcc')
        else:
            e('v_mov_b32 v5, v6')
    e(f's_cmp_ge_u32 s{sC}, 14')
    e('s_cbranch_scc1 L_g2only')
    if OPT['p2mode'] == 1:
        poll(e, 4, 256, lambda e_: e_('v_lshlrev_b32 v5, 6, v1'), preg=232, bar=False)
        poll(e, 2, 16, idx0)
    elif OPT['p2park']:
        poll(e, 2, 16, idx0)
    else:
        poll(e, 2, 44, idx)
    stamp(e, 'G1.go')
    ACC, BR, RRG, T = 64, 16, 48, 128
    ST = 208
    dtok = {}
    e(f's_mul_i32 s96, s{sW}, 7168')
    e(f's_add_u32 s98, s{sR}, s{sW}')
    e('s_and_b32 s98, s98, 3')
    e('s_mul_i32 s98, s98, 7168')
    def hc_groups(nt):
        gs = []
        for i in range(7):
            g = []
            if i == 0:
                g += [f's_add_u32 s97, s57, {nt}', 's_mul_i32 s97, s97, 28672', 's_add_u32 s97, s97, s98', f's_add_u32 s97, s97, 0x{HC_OFF:x}']
            if i == 4: g += ['s_add_u32 s97, s97, 4096']
            if i in (0, 4): g += [f's_add_u32 m0, s96, {nt*28672 + (4096 if i == 4 else 0)}']
            g.append(('vm', f'buffer_load_dwordx4 v4, {SWS}, s97 offen offset:{(i%4)*1024} sc1 lds', ('hc', nt)))
            gs.append(g)
        return gs
    STK = []; STORES = []
    def emit_op(op):
        if isinstance(op, tuple) and op[0] == 'ds':
            STK.append(e.ds(op[1])); return None
        if isinstance(op, tuple) and op[0] == 'dswait':
            e.wait_ds(STK[op[1] * 8 + 7]); return None
        if isinstance(op, tuple):
            t = e.vm(op[1])
            if len(op) > 2:
                if op[2][0] == 'store': STORES.append(t)
                if op[2][0] == 'hc': dtok[op[2][1]] = t
                if op[2][0] == 'st': dtok['st'] = t
            return t
        e(op); return None
    for g in hc_groups(0):
        for op in g: emit_op(op)
    e(f's_add_u32 s54, s57, s{sW}')
    e('s_lshl_b32 s54, s54, 11')
    e(f's_add_u32 s54, s54, 0x{ST2_OFF:x}')
    e(f's_lshl_b32 s55, s{sW}, 11')
    e(f's_add_u32 m0, s55, {LDS_STATS}')
    e.vm(f'buffer_load_dwordx4 v4, {SWS}, s54 offen sc1 lds')
    dtok[0] = e.vm(f'buffer_load_dwordx4 v4, {SWS}, s54 offen offset:1024 sc1 lds')
    while wgi[0] < len(WG):
        wtok[wgi[0]] = emit_groups(e, [WG[wgi[0]]]); wgi[0] += 1
    e('v_add_u32 v6, 57344, v4')
    e('v_and_b32 v5, 31, v1')
    e('v_lshlrev_b32 v5, 2, v5')
    e('v_lshrrev_b32 v7, 5, v1')
    e('v_lshlrev_b32 v7, 10, v7')
    e('v_add_u32 v5, v5, v7')
    e(f'v_add_u32 v5, {LDS_STATS}, v5')
    def stat_ops():
        ops = []
        for nt in range(4):
            b0 = ST + nt * 8
            for i in range(8): ops.append(('ds', f'ds_read_b32 v{b0+i}, v5 offset:{nt*2048 + i*128}'))
        for nt in range(4):
            b0 = ST + nt * 8
            ops.append(('dswait', nt))
            ops += [f'v_add_f32 v{b0}, v{b0}, v{b0+1}', f'v_add_f32 v{b0+2}, v{b0+2}, v{b0+3}', f'v_add_f32 v{b0+4}, v{b0+4}, v{b0+5}',
                    f'v_add_f32 v{b0+6}, v{b0+6}, v{b0+7}', f'v_add_f32 v{b0}, v{b0}, v{b0+2}', f'v_add_f32 v{b0+4}, v{b0+4}, v{b0+6}',
                    f'v_add_f32 v{b0}, v{b0}, v{b0+4}', f'v_mov_b32 v{b0+1}, v{b0}', f'v_mov_b32 v7, {lit(1e-5)}',
                    f'v_permlane32_swap_b32 v{b0+1}, v{b0}', f'v_add_f32 v{b0}, v{b0}, v{b0+1}',
                    f'v_fmamk_f32 v{RRG+4+nt}, v{b0}, {lit(1.0/448)}, v7', f'v_rsq_f32 v{b0}, v{RRG+4+nt}', 's_nop 0',
                    f'v_mul_f32 v{RRG+nt}, {lit(-1.4426950408889634)}, v{b0}']
        return ops
    def epi_half(nt, mi):
        ops = []
        a = ACC + ((nt & 1) * 2 + mi) * 16
        T0 = T
        for r in range(8): ops.append(f'v_mul_f32 v{T0+r}, v{a+r}, v{RRG+nt}')
        for r in range(8):
            ops.append(f'v_exp_f32 v{T0+r}, v{T0+r}')
            ops.append(f'v_mul_f32 v{T0+8+r}, v{a+r}, v{a+8+r}')
        for r in range(8): ops.append(f'v_fma_f32 v{T0+r}, v{T0+r}, v{RRG+4+nt}, v{RRG+4+nt}')
        for r in range(8): ops.append(f'v_rcp_f32 v{T0+r}, v{T0+r}')
        for r in range(8): ops.append(f'v_mul_f32 v{T0+8+r}, v{T0+8+r}, v{T0+r}')
        P = 56 + mi * 4
        for i in range(4): ops.append(f'v_cvt_pk_bf16_f32 v{P+i}, v{T0+8+2*i}, v{T0+8+2*i+1}')
        ops.append(f's_add_u32 s53, s99, {nt*112*1024 + mi*1024}')
        ops.append(('vm', f'buffer_store_dwordx4 {vr(P,4)}, v4, {SWS}, s53 offen sc1', ('store',)))
        return ops
    def epi_ops(nt): return epi_half(nt, 0) + epi_half(nt, 1)
    e('s_mul_i32 s99, s57, 112')
    e('s_add_u32 s99, s99, s56')
    e('s_lshl_b32 s99, s99, 10')
    e(f's_add_u32 s99, s99, 0x{HM_OFF:x}')
    n1 = OPT['w2t1']
    bg = {0: hc_groups(1) + hc_groups(2), 1: hc_groups(3) + [w2load(o) for o in range(0, n1)],
          2: [w2load(o) for o in range(n1, NE)], 3: []}
    if OPT['sent'] and OPT['fillpos'] in (1, 2):
        for r in range(4): e(f'v_mov_b32 v{12+r}, -1')
        fills = [[f's_add_u32 s53, s99, {nt*112*1024 + mi*1024}', ('vm', f'buffer_store_dwordx4 v[12:15], v4, {SWS}, s53 offen sc1')]
                 for nt in (2, 3) for mi in range(2)]
        if OPT['fillpos'] == 1: bg[0] = bg[0] + fills
        elif OPT['fillpos'] == 2: bg[1] = bg[1][:7] + fills + bg[1][7:]
    last_store = None
    next_late = NE
    def g2_bases(em):
        em('s_lshr_b32 s52, s58, 1')
        em('s_lshl_b32 s52, s52, 2')
        em('s_and_b32 s53, s58, 1')
        em('s_add_u32 s100, s52, s53')
        em('s_sub_u32 s101, s52, s53')
        em('s_add_u32 s101, s101, 3')
        em(f's_mul_i32 s52, s{sW}, 28')
        for k in range(2):
            em(f's_mul_i32 s53, s{100+k}, 112')
            em('s_add_u32 s53, s53, s52')
            em('s_lshl_b32 s53, s53, 10')
            em(f's_add_u32 s{88+k}, s53, 0x{HM_OFF:x}')
    g2_bases(e)
    RING = 64
    rtok = {}
    def ring_load(ph, i):
        if i % 4 == 0: e(f's_add_u32 s90, s{88+ph}, {i*1024}')
        rtok[(ph, i)] = e.vm(f'buffer_load_dwordx4 {vr(RING+(i%8)*4,4)}, v4, {SWS}, s90 offen offset:{(i%4)*1024} sc1')
    def early_check(tok_, addr=8):
        dn, lp = L('ec'), L('ec')
        e(f's_mov_b32 s{sSPIN}, 0')
        e.label(lp)
        if tok_ is None:
            e(f'buffer_load_dword v9, v{addr}, {SWS}, s91 offen sc1')
            e('s_waitcnt vmcnt(0)')
        e(f'v_cmp_ne_u32 vcc, s{sNONCE}, v9')
        e('s_nop 4')
        e(f's_cbranch_vccz {dn}')
        if tok_ is not None:
            e(f'buffer_load_dword v9, v{addr}, {SWS}, s91 offen sc1')
            e('s_waitcnt vmcnt(0)')
        e(f's_add_u32 s{sSPIN}, s{sSPIN}, 1')
        e(f's_cmp_lt_u32 s{sSPIN}, {MAXSPIN}')
        e(f's_cbranch_scc1 {lp}')
        e.label(dn)
    etok = None
    for nt in range(4):
        e.wait_vm(dtok[nt])
        if nt == 1 and OPT['p2park']:
            e.wait_vm(wtk)
            early_check(wtk, addr=11)
        e.barrier()
        if nt == 0: stamp(e, 'G1.t0')
        fill = epi_ops(nt - 1) if nt > 0 else stat_ops()
        sttok = []
        fi = 0; gi = 0
        btok = {}
        n = [0]
        def issue():
            kap = n[0]
            base = 'v4' if nt < 2 else 'v6'
            off = ((nt & 1) * 28 + kap) * 1024
            btok[kap] = e.ds(f'ds_read_b128 {vr(BR+(kap%8)*4,4)}, {base} offset:{off}')
            n[0] += 1
        for _ in range(5): issue()
        nm = 0
        G_ = bg[nt]
        for kap in range(28):
            e.wait_ds(btok[kap])
            for mi in range(2):
                a = ACC + ((nt & 1) * 2 + mi) * 16
                if nt == 0 and (kap * 2 + mi) in wtok: e.wait_vm(wtok[kap * 2 + mi])
                e(f'v_mfma_f32_32x32x16_bf16 {vr(a,16)}, {ar((mi*28+kap)*4,4)}, {vr(BR+(kap%8)*4,4)}, {"0" if kap == 0 else vr(a,16)}')
                nm += 1
                if mi == 0 and n[0] < 28: issue()
                span = 24 if nt == 3 else 56
                want = (len(G_) * nm + span - 1) // span
                while gi < min(want, len(G_)):
                    for op in G_[gi]: emit_op(op)
                    gi += 1
                if nt == 3 and gi >= len(G_) and nm * 21 >= (next_late - NE + 1) * OPT['latesp'] and next_late < 56:
                    dep = w2reg(next_late & 1, next_late >> 1)[1]
                    if dep[1] * 2 + dep[0] < nm:
                        for op in w2load(next_late): emit_op(op)
                        next_late += 1
                if nt == 0 and nm == 28 and OPT['p2park']:
                    e('v_min_u32 v9, 27, v1')
                    e('v_add_u32 v9, 224, v9')
                    e('v_lshlrev_b32 v11, 6, v9')
                    e(f's_add_u32 s91, s{sREP}, 0x{FL_OFF + 2*0x40000:x}')
                    wtk = e.vm(f'buffer_load_dword v9, v11, {SWS}, s91 offen sc1')
                if nt == 3 and nm == OPT['eflag']:
                    e.wait_vm(STORES[3])
                    e.barrier()
                    flag_store(e, 5)
                if nt == 3 and nm == OPT['epoll'] and OPT['sent']:
                    e(f's_add_u32 s91, s{sREP}, 0x{FL_OFF + 5*0x40000:x}')
                    etok = e.vm(f'buffer_load_dword v9, v8, {SWS}, s91 offen sc1')
                if nm > 3:
                    fs = OPT['fspan'] if nt == 2 else 50
                    want = (len(fill) * (nm - 3) + fs - 1) // fs
                    while fi < min(want, len(fill)):
                        t = emit_op(fill[fi]); fi += 1
        while fi < len(fill):
            emit_op(fill[fi]); fi += 1
        stamp(e, f'G1.tile{nt}')
    for op in epi_ops(3):
        t = emit_op(op)
        if isinstance(op, tuple): last_store = t
    stamp(e, 'G1.stored')
    assert next_late == 56
    if OPT['sent']:
        e('s_cmp_ge_u32 s2, 224')
        e('s_cbranch_scc1 L_fin')
        e.wait_vm(etok)
        early_check(etok)
        e('s_branch L_g2')
    else:
        skr, skr2 = L('nog2'), L('nog2')
        e('s_cmp_ge_u32 s2, 224')
        e(f's_cbranch_scc1 {skr}')
        e(f's_add_u32 s91, s{sREP}, 0x{FL_OFF + 5*0x40000:x}')
        e(f'buffer_load_dword v9, v8, {SWS}, s91 offen sc1')
        e.label(skr)
        e('s_waitcnt vmcnt(0)')
        e.vm_done = e.vm_issued
        stamp(e, 'G1.drained')
        signal(e, 3)
        e('s_cmp_ge_u32 s2, 224')
        e('s_cbranch_scc1 L_fin')
        early_check(0)
        e('s_branch L_g2')
    e.label('L_g2only')
    e('s_cmp_ge_u32 s2, 224')
    e('s_cbranch_scc1 L_fin')
    if OPT['p2mode'] == 1: poll(e, 4, 256, lambda e_: e_('v_lshlrev_b32 v5, 6, v1'), preg=232)
    else: poll(e, 2, 28, lambda e_: idxw(e_, 0))
    for o in range(56):
        for op in w2load(o): e(op[1] if isinstance(op, tuple) else op)
    g2_bases(e)
    e(f's_add_u32 s91, s{sREP}, 0x{FL_OFF + 5*0x40000:x}')
    early_check(None)
    e.label('L_g2')
    if not OPT['sent']:
        for i in range(8): ring_load(0, i)
    e.c('======== G2')
    ACC2, R0, HRR = 16, 96, 140
    e(f's_and_b32 s60, s{sW}, 1')
    e('s_lshl_b32 s53, s59, 1')
    e('s_add_u32 s60, s60, s53')
    e(f's_lshr_b32 s61, s{sW}, 1')
    for k in range(3):
        e(f's_xor_b32 s52, s{sW}, {k+1}')
        e('s_mul_i32 s52, s52, 6144')
        e(f'v_add_u32 v{11+k}, s52, v4')
    e(f's_mul_i32 s52, s{sW}, 6144')
    e('v_add_u32 v133, s52, v4')
    e('v_and_b32 v5, 31, v1')
    e('v_mul_u32_u24 v5, %d, v5' % (64 * 896))
    e('v_lshrrev_b32 v6, 5, v1')
    e('v_mul_u32_u24 v6, 448, v6')
    e('v_add_u32 v132, v5, v6')
    HR_ = {0: 140, 1: 136}
    def accreg(ph, mi, off=0, n=16):
        return vr(ACC2 + mi * 16 + off, n) if ph == 0 else ar(80 + mi * 16 + off, n)
    def hr_load(ph):
        e(f's_mul_i32 s52, s{100+ph}, 28')
        e('s_lshl_b32 s53, s60, 1')
        e('s_add_u32 s52, s52, s53')
        e('s_add_u32 s52, s52, s61')
        e('s_lshl_b32 s52, s52, 10')
        e(f's_add_u32 s52, s52, 0x{HR_OFF:x}')
        return e.vm(f'buffer_load_dwordx4 {vr(HR_[ph],4)}, v4, {SWS}, s52 offen sc1')
    def tail_ops(ph, htok):
        ops = []
        for k, (mi, rh) in enumerate(((1, 0), (0, 1), (1, 1))):
            for qd in range(2):
                ops.append(('ds', f'ds_write_b128 v{11+k}, {accreg(ph, mi, rh*8 + qd*4, 4)} offset:{ph*24576 + k*2048 + qd*1024}'))
        ops.append(('dswaitall',))
        ops.append('s_barrier')
        for k in range(3):
            for qd in range(2):
                ops.append(('ds', f'ds_read_b128 {vr(R0+k*8+qd*4,4)}, v133 offset:{ph*24576 + k*2048 + qd*1024}'))
        if ph == 1:
            for r in range(8): ops.append(f'v_accvgpr_read_b32 v{ACC2+r}, a{80+r}')
        ops.append(('dswaitall',))
        for r in range(8):
            ops.append(f'v_add_f32 v{R0+r}, v{R0+r}, v{R0+8+r}')
            ops.append(f'v_add_f32 v{R0+16+r}, v{R0+16+r}, v{ACC2+r}')
        for r in range(8): ops.append(f'v_add_f32 v{R0+r}, v{R0+r}, v{R0+16+r}')
        ops.append(('vmwait', htok))
        PK, O = 120, 124
        for i in range(4): ops.append(f'v_cvt_pk_bf16_f32 v{PK+i}, v{R0+2*i}, v{R0+2*i+1}')
        for i in range(4):
            ops += [f'v_lshlrev_b32 v128, 16, v{PK+i}', f'v_and_b32 v129, s87, v{PK+i}', f'v_lshlrev_b32 v130, 16, v{HR_[ph]+i}',
                    f'v_and_b32 v131, s87, v{HR_[ph]+i}', 'v_add_f32 v128, v128, v130', 'v_add_f32 v129, v129, v131',
                    f'v_cvt_pk_bf16_f32 v{O+i}, v128, v129']
        ops += [f'v_permlane32_swap_b32 v{O}, v{O+2}', f'v_permlane32_swap_b32 v{O+1}, v{O+3}']
        ops += ['s_lshl_b32 s52, s60, 5', 's_lshl_b32 s53, s61, 4', 's_add_u32 s52, s52, s53', f's_mul_i32 s53, s{100+ph}, 896', 's_add_u32 s52, s52, s53']
        om = ['', ' sc1', ' nt', ' sc0 sc1'][OPT['outmod']]
        ops.append(('vm', f'buffer_store_dwordx4 {vr(O,4)}, v132, {SOUT}, s52 offen{om}'))
        return ops
    def run_op(op):
        if isinstance(op, tuple):
            if op[0] == 'ds': e.ds(op[1])
            elif op[0] == 'dswaitall': e.wait_ds_all()
            elif op[0] == 'vmwait': e.wait_vm(op[1])
            elif op[0] == 'vm': e.vm(op[1])
        else: e(op)
    e('s_mov_b32 s87, 0xffff0000')
    fill = []; fi = 0
    SENT = OPT['sent']
    NS = 12 if SENT else 8
    RB = 48 if SENT else RING
    def rreg(tau): return RB + (tau % NS) * 4
    def rl(tau):
        ph_, i_ = divmod(tau, 28)
        if i_ % 4 == 0: e(f's_add_u32 s90, s{88+ph_}, {i_*1024}')
        rtok[tau] = e.vm(f'buffer_load_dwordx4 {vr(rreg(tau),4)}, v4, {SWS}, s90 offen offset:{(i_%4)*1024} sc1')
    def check_group(t0):
        e.wait_vm(rtok[t0 + 3])
        lp, ok = L('sg'), L('sg')
        e(f's_mov_b32 s{sSPIN}, 0')
        e.label(lp)
        r0 = rreg(t0)
        e(f'v_max3_u32 v9, v{r0}, v{r0+1}, v{r0+2}')
        regs = [r0 + 3] + [rreg(t0 + k) + d for k in range(1, 4) for d in range(4)]
        for k in range(0, 12, 2): e(f'v_max3_u32 v9, v9, v{regs[k]}, v{regs[k+1]}')
        e(f'v_max_u32 v9, v9, v{regs[12]}')
        e('v_cmp_eq_u32 vcc, -1, v9')
        e('s_nop 4')
        e(f's_cbranch_vccz {ok}')
        last = min(56, issued[0])
        for t in range(t0, last):
            i_ = t - 28
            if i_ % 4 == 0: e(f's_add_u32 s91, s89, {i_*1024}')
            e(f'buffer_load_dwordx4 {vr(rreg(t),4)}, v4, {SWS}, s91 offen offset:{(i_%4)*1024} sc1')
        e('s_waitcnt vmcnt(0)')
        e(f's_add_u32 s{sSPIN}, s{sSPIN}, 1')
        e(f's_cmp_lt_u32 s{sSPIN}, {MAXSPIN}')
        e(f's_cbranch_scc1 {lp}')
        e.label(ok)
    issued = [0]
    if SENT:
        for t in range(NS): rl(t)
        issued[0] = NS
    else:
        for i in range(8): rtok[i] = rtok[(0, i)]
    htok = {0: hr_load(0)}
    for tau in range(56):
        ph, i = divmod(tau, 28)
        e.wait_vm(rtok[tau])
        if tau == 0: stamp(e, 'G2.first')
        for mi in range(2):
            e(f'v_mfma_f32_32x32x16_bf16 {accreg(ph, mi)}, {w2reg(mi,i)[0]}, {vr(rreg(tau),4)}, {"0" if i == 0 else accreg(ph, mi)}')
        if not SENT:
            if tau == OPT['lpoll']:
                e(f's_add_u32 s91, s{sREP}, 0x{FL_OFF + 3*0x40000:x}')
                ltok = e.vm(f'buffer_load_dword v9, v8, {SWS}, s91 offen sc1')
            if tau + 8 == 28:
                e.wait_vm(ltok)
                early_check(ltok)
                stamp(e, 'G2.go')
        if tau + NS < 56:
            rl(tau + NS); issued[0] = tau + NS + 1
        if SENT and tau >= 26 and (tau + 2) % 4 == 0 and tau + 2 < 56:
            check_group(tau + 2)
            if tau == 26: stamp(e, 'G2.go')
        if tau == 28:
            htok[1] = hr_load(1)
            fill = tail_ops(0, htok[0])
        if tau == 27: stamp(e, 'G2.mfma0')
        if tau > 28:
            want = (len(fill) * (tau - 28) + 23) // 24
            while fi < min(want, len(fill)):
                run_op(fill[fi]); fi += 1
    while fi < len(fill):
        run_op(fill[fi]); fi += 1
    stamp(e, 'G2.mfma1')
    for op in tail_ops(1, htok[1]): run_op(op)
    stamp(e, 'G2.end')

DBGOUT = False
def dbg_out(e):
    sk = L('dbo')
    e('s_waitcnt vmcnt(0)')
    e('s_memrealtime s[84:85]')
    e('s_memtime s[90:91]')
    e('s_waitcnt lgkmcnt(0)')
    e(f's_cmp_lg_u32 s{sW}, 0')
    e(f's_cbranch_scc1 {sk}')
    e('s_and_b32 s52, s2, 63')
    e('s_cmp_lg_u32 s52, 0')
    e(f's_cbranch_scc1 {sk}')
    e('s_lshr_b32 s52, s2, 6')
    e('s_lshl_b32 s52, s52, 4')
    e('s_add_u32 s52, s52, 16')
    e('s_sub_u32 s53, s84, s86')
    e('s_sub_u32 s54, s90, s82')
    e('v_mov_b32 v4, s53'); e('v_mov_b32 v5, s54'); e('v_mov_b32 v6, s86'); e('v_mov_b32 v7, s84')
    e('v_mov_b32 v8, 0')
    e('s_mov_b64 exec, 1')
    e(f'buffer_store_dwordx4 v[4:7], v8, {SDBG}, s52 offen sc1')
    e('s_mov_b64 exec, -1')
    e.label(sk)

def probe(e):
    sk = L('prb'); lp = L('prl')
    e('s_cmp_lg_u32 s2, 0')
    e(f's_cbranch_scc1 {sk}')
    e('s_waitcnt vmcnt(0)')
    e('s_memrealtime s[84:85]')
    e('s_waitcnt lgkmcnt(0)')
    e('s_sub_u32 s84, s84, s86')
    e(f's_cmp_lt_u32 s84, {OPT["probe"]}')
    e(f's_cbranch_scc1 {sk}')
    e('s_mov_b32 s85, 0')
    e.label(lp)
    e('s_sleep 64')
    e('s_add_u32 s85, s85, 1')
    e('s_cmp_lt_u32 s85, 20')
    e(f's_cbranch_scc1 {lp}')
    e.label(sk)

def diag_dump(e):
    if OPT['probe']: probe(e)
    if DBGOUT: dbg_out(e)
    if not DIAG: return
    e.wait_vm_all()
    rstamp(e, 'rt_end')
    e('s_lshl_b32 s52, s2, 2')
    e(f's_add_u32 s52, s52, s{sW}')
    e('s_lshl_b32 s52, s52, 8')
    e(f's_add_u32 s52, s52, 0x{DIAG_OFF:x}')
    e('v_lshlrev_b32 v4, 2, v1')
    e(f'buffer_store_dword v255, v4, {SWS}, s52 offen')

def kernel():
    e = Emit()
    e.label(KN)
    e('s_cmp_ge_u32 s2, 256')
    e('s_cbranch_scc1 L_end')
    e('s_load_dwordx16 s[64:79], s[0:1], 0')
    e('s_load_dwordx4 s[80:83], s[0:1], 64')
    e('s_memrealtime s[86:87]')
    if OPT['cpf'] == 5: code_prefetch_entry(e)
    if DBGOUT: e('s_memtime s[82:83]')
    if DIAG: e('v_mov_b32 v255, 0')
    e('v_lshrrev_b32 v4, 6, v0')
    e('v_and_b32 v1, 63, v0')
    e(f'v_readfirstlane_b32 s{sW}, v4')
    e('v_and_b32 v2, 15, v0')
    e('v_bfe_u32 v3, v0, 4, 2')
    e(f's_and_b32 s{sB}, s2, 7')
    e('s_lshr_b32 s52, s2, 5')
    e('s_lshl_b32 s52, s52, 3')
    e(f's_add_u32 s{sB}, s{sB}, s52')
    e(f's_lshr_b32 s{sGRP}, s2, 3')
    e(f's_and_b32 s{sGRP}, s{sGRP}, 3')
    e('s_lshr_b32 s52, s2, 3')
    e(f's_and_b32 s{sR}, s52, 15')
    e('s_lshr_b32 s52, s52, 4')
    e(f's_and_b32 s{sC}, s2, 7')
    e(f's_lshl_b32 s{sC}, s{sC}, 1')
    e(f's_add_u32 s{sC}, s{sC}, s52')
    e(f's_getreg_b32 s{sREP}, hwreg(HW_REG_XCC_ID, 0, 3)')
    e(f's_lshl_b32 s{sREP}, s{sREP}, 14')
    e(f's_mov_b32 s{sNONCE}, 0')
    phase_a_pre(e)
    e('s_waitcnt lgkmcnt(0)')
    srd(e, S_X, 64, 1835008)
    phase_a_loads(e)
    if OPT['wsoff']:
        e(f's_add_u32 s82, s82, 0x{OPT["wsoff"]*0x100000:x}')
        e('s_addc_u32 s83, s83, 0')
    srd(e, S_WS, 82, WS_SIZE)
    srd(e, S_WR, 66, 2048 * 450)
    srd(e, S_WI, 68, 2048 * 450)
    srd(e, S_W1, 72, 448 * 3584)
    srd(e, S_W3, 74, 448 * 3584)
    srd(e, S_W2, 76, 1792 * 896)
    srd(e, S_OUT, 78, 1835008)
    srd(e, S_DBG, 80, 256)
    e('s_cmp_ge_u32 s2, 224')
    e(f's_cselect_b32 s{S_W1+2}, 0, s{S_W1+2}')
    e(f's_cselect_b32 s{S_W3+2}, 0, s{S_W3+2}')
    if DIAG:
        STAMPS.append('rt_start'); _stamp_n[0] += 1
        e('v_writelane_b32 v255, s86, 0')
    stamp(e, 'start')
    sk = L('nononce')
    e(f's_or_b32 s52, s2, s{sW}')
    e('s_cmp_lg_u32 s52, 0')
    e(f's_cbranch_scc1 {sk}')
    e('s_or_b32 s52, s86, 1')
    e('v_mov_b32 v4, s52')
    e('v_mov_b32 v5, 0')
    e('s_mov_b64 exec, 1')
    e(f'buffer_store_dword v4, v5, {SDBG}, 0 offen sc1')
    e('s_mov_b64 exec, -1')
    e.label(sk)
    phase_a(e)
    if OPT['sent'] and OPT['fillpos'] == 4: hm_fill(e)
    p2l, joinl, join2 = L('p2'), L('join'), L('join')
    e('s_cmp_ge_u32 s2, 224')
    e(f's_cbranch_scc1 {p2l}')
    sv_ds = (e.ds_issued, e.ds_done)
    phase_b(e)
    e(f's_branch {joinl}')
    e.label(p2l)
    signal(e, 1)
    if OPT['p2mode'] == 0:
        phase_p2(e)
        if not OPT['p2park']: signal(e, 4)
    else:
        e('s_sub_u32 s52, s2, 224')
        e('s_mul_i32 s52, s52, 50176')
        e('v_lshlrev_b32 v4, 4, v0')
        for i in range(13):
            e(f's_add_u32 s53, s52, {i*4096}')
            e(f'buffer_load_dwordx4 a[32:35], v4, {SW2}, s53 offen')
        gen_TC(e)
        gen_G(e)
    e(f's_branch {join2}')
    e.label(joinl)
    signal(e, 1)
    if OPT['p2mode'] == 1:
        e.vm_issued = e.vm_done = 0
        p2_loads(e)
        gen_TC(e)
        e.wait_vm_all()
        p2_finish(e)
        stamp(e, 'W2.pfin')
    else:
        gen_TC(e)
    if OPT['p1slot'] or not OPT['gslot']: gen_G(e)
    e.label(join2)
    if OPT['sent'] and OPT['fillpos'] == 3: hm_fill(e)
    e.vm_issued = 0; e.vm_done = 0
    phase_c(e)
    phase_g(e)
    e.label('L_fin')
    diag_dump(e)
    e.label('L_end')
    e('s_endpgm')
    return e.out

def build():
    hdr = open('cdna_kernels/' + NAME + '.s.ref').read().split('; Override launch')[0]
    body = kernel()
    body, nn = hazard_pass(body)
    print(f'; {len(body)} lines, {nn} nops inserted', file=sys.stderr)
    lines = [hdr.rstrip('\n'),
             f'; @launch grid=(256,1,1) block=(256,1,1) lds={LDS_BYTES}',
             '.amdgcn_target "amdgcn-amd-amdhsa--gfx950"', '.text', f'.globl {KN}', '.p2align 8', f'.type {KN},@function']
    for ln in body: lines.append(ln if ln.endswith(':') else '    ' + ln)
    lines += ['.section .rodata,"a"', '.p2align 6', f'.amdhsa_kernel {KN}',
              '  .amdhsa_next_free_vgpr 512', '  .amdhsa_next_free_sgpr 102', '  .amdhsa_accum_offset 256',
              '  .amdhsa_group_segment_fixed_size 0', '  .amdhsa_kernarg_size 80', '  .amdhsa_user_sgpr_count 2',
              '  .amdhsa_user_sgpr_kernarg_segment_ptr 1', '  .amdhsa_system_sgpr_workgroup_id_x 1',
              '  .amdhsa_float_denorm_mode_32 3', '.end_amdhsa_kernel']
    return '\n'.join(lines) + '\n'

if __name__ == '__main__':
    for a in list(sys.argv):
        if a.startswith('--opt='):
            for kv in a[6:].split(','):
                k, v = kv.split('='); OPT[k] = int(v)
            sys.argv.remove(a)
    if '--dbgout' in sys.argv:
        DBGOUT = True; sys.argv.remove('--dbgout')
    if '--diag' in sys.argv:
        DIAG = True; sys.argv.remove('--diag')
    out = sys.argv[1] if len(sys.argv) > 1 else 'cdna_kernels/' + NAME + '.s'
    open(out, 'w').write(build())
    if DIAG:
        import json; json.dump(STAMPS, open(out + '.stamps.json', 'w'))
    print('written', out, file=sys.stderr)
```

```python
import re

REG_RE = re.compile(r'^(-|abs\()?([vas])(\d+|\[(\d+):(\d+)\])\)?$')

def parse_reg(tok):
    t = tok.strip()
    if t.startswith('-'): t = t[1:]
    if t.startswith('abs(') and t.endswith(')'): t = t[4:-1]
    if t.startswith('|') and t.endswith('|'): t = t[1:-1]
    if t == 'vcc': return ('s', 106, 107)
    if t == 'vcc_lo': return ('s', 106, 106)
    if t == 'vcc_hi': return ('s', 107, 107)
    if t == 'exec': return ('s', 126, 127)
    if t == 'exec_lo': return ('s', 126, 126)
    if t == 'exec_hi': return ('s', 127, 127)
    if t == 'm0': return ('s', 124, 124)
    m = re.match(r'^([vas])(\d+)$', t)
    if m: return (m.group(1), int(m.group(2)), int(m.group(2)))
    m = re.match(r'^([vas])\[(\d+):(\d+)\]$', t)
    if m: return (m.group(1), int(m.group(2)), int(m.group(3)))
    return None

def split_ops(s):
    s = s.split(';')[0].strip()
    parts = s.split(None, 1)
    op = parts[0]
    if len(parts) == 1: return op, [], ''
    rest = parts[1]
    extra = ''
    m = re.search(r'\s+(op_sel|op_sel_hi|neg_lo|neg_hi|quad_perm|row_half_mirror|row_mask)\b', rest)
    if m:
        extra = rest[m.start():].strip(); rest = rest[:m.start()]
    toks = [t.strip() for t in rest.split(',')]
    last = toks[-1].split()
    mods = (' '.join(last[1:]) + ' ' + extra).strip()
    toks[-1] = last[0] if last else ''
    return op, toks, mods

TRANS = ('v_exp_f32', 'v_log_f32', 'v_rcp_f32', 'v_rsq_f32', 'v_sqrt_f32', 'v_sin_f32', 'v_cos_f32', 'v_rcp_iflag_f32')

def overlap(a, b):
    return a and b and a[0] == b[0] and a[1] <= b[2] and b[1] <= a[2]

class I:
    __slots__ = ('text', 'op', 'kind', 'wr', 'rd', 'passes', 'srcc', 'dst', 'mods', 'trans', 'states', 'sgpr_rd_const', 'dpp')
    def __init__(self, text):
        self.text = text
        op, toks, mods = split_ops(text)
        base = re.sub(r'_(e32|e64|dpp|sdwa)$', '', op)
        self.op = base; self.mods = mods
        self.wr = []; self.rd = []; self.passes = 0; self.srcc = None; self.dst = None
        self.trans = base in TRANS
        self.states = 1
        self.dpp = op.endswith('_dpp') or 'row_' in mods or 'quad_perm' in mods
        regs = [parse_reg(t) for t in toks]
        if base == 's_nop':
            self.kind = 'nop'; self.states = int(toks[0], 0) + 1
        elif base.startswith('v_mfma'):
            self.kind = 'mfma'
            self.passes = 8 if '32x32' in base else 4
            self.dst = regs[0]; self.wr = [regs[0]]
            self.rd = [r for r in regs[1:4] if r]; self.srcc = regs[3]
        elif base.startswith('v_cmpx'):
            self.kind = 'valu'; self.wr = [regs[0], ('s', 126, 127)]; self.rd = [r for r in regs[1:] if r]
        elif base.startswith('v_'):
            self.kind = 'valu'
            if base in ('v_permlane32_swap_b32', 'v_permlane16_swap_b32'):
                self.wr = [regs[0], regs[1]]; self.rd = [regs[0], regs[1]]
            elif base in ('v_add_co_u32', 'v_sub_co_u32', 'v_addc_co_u32', 'v_subb_co_u32'):
                self.wr = [regs[0], regs[1]]; self.rd = [r for r in regs[2:] if r]
            else:
                self.wr = [regs[0]]; self.rd = [r for r in regs[1:] if r]
                if base.startswith('v_fmac') or base.startswith('v_dot2c') or base.startswith('v_pk_fmac') or base == 'v_writelane_b32' or ('op_sel' in mods and not base.startswith('v_pk_')):
                    self.rd.append(regs[0])
                if base.startswith('v_cndmask') and len(toks) == 3: self.rd.append(('s', 106, 107))
        elif base.startswith('ds_'):
            self.kind = 'ds'
            if base.startswith('ds_read') or base.startswith('ds_bpermute') or base.startswith('ds_permute') or base.startswith('ds_swizzle'):
                self.wr = [regs[0]]; self.rd = [r for r in regs[1:] if r]
            else:
                self.rd = [r for r in regs if r]
        elif base.startswith('buffer_') or base.startswith('global_'):
            self.kind = 'vmem'
            islds = ' lds' in (' ' + mods) or '_lds_' in base
            if base in ('buffer_wbl2', 'buffer_inv'):
                pass
            elif 'load' in base and not islds:
                self.wr = [regs[0]]; self.rd = [r for r in regs[1:] if r]
            elif 'atomic' in base and 'sc0' in mods:
                self.wr = [regs[0]]; self.rd = [r for r in regs if r]
            else:
                self.rd = [r for r in regs if r]
            if islds: self.rd.append(('s', 124, 124))
        elif base.startswith('s_'):
            self.kind = 'salu'
            if base.startswith('s_cmp') or base.startswith('s_cbranch') or base in ('s_branch', 's_barrier', 's_waitcnt', 's_endpgm', 's_sleep', 's_setprio', 's_setpc_b64'):
                self.rd = [r for r in regs if r]
            else:
                self.wr = [regs[0]] if regs and regs[0] else []
                self.rd = [r for r in regs[1:] if r]
                if 'saveexec' in base: self.wr.append(('s', 126, 127))
        else:
            raise ValueError('unknown instr ' + text)

def need(prev, cur):
    n = 0
    def ov(As, Bs): return any(overlap(a, b) for a in As for b in Bs)
    vfile = lambda rs: [r for r in rs if r[0] in 'va']
    sfile = lambda rs: [r for r in rs if r[0] == 's']
    if prev.kind == 'valu':
        pw = vfile(prev.wr); ps = sfile(prev.wr)
        if cur.kind == 'mfma' and ov(pw, cur.rd): n = max(n, 2)
        if cur.kind == 'valu':
            if prev.trans and not cur.trans and ov(pw, cur.rd): n = max(n, 1)
            if prev.trans and cur.trans and ov(pw, cur.rd): n = max(n, 1)
            if cur.op.startswith('v_permlane') and ov(pw, cur.rd): n = max(n, 2)
            if cur.op in ('v_readlane_b32', 'v_readfirstlane_b32') and ov(pw, cur.rd): n = max(n, 1)
            if cur.dpp and ov(pw, cur.rd): n = max(n, 2)
            if ps and ov(ps, sfile(cur.rd)): n = max(n, 4 if cur.op in ('v_readlane_b32', 'v_writelane_b32') else 2)
            if any(r[1] == 126 for r in ps):
                if cur.dpp: n = max(n, 5)
                if cur.op.startswith('v_permlane') or cur.op.startswith('v_read') : n = max(n, 4)
        if cur.kind == 'vmem' and ps and ov(ps, sfile(cur.rd)): n = max(n, 5)
        if cur.kind == 'salu' and ps and ov(ps, sfile(cur.rd)): n = max(n, 2)
        if cur.kind == 'mfma' and any(r[1] == 126 for r in ps): n = max(n, 4)
        if prev.trans and cur.kind in ('ds', 'vmem') and ov(pw, cur.rd): n = max(n, 1)
        if prev.op.startswith('v_dot'):
            same_c = cur.op == prev.op and cur.rd and cur.rd[-1] in pw and not ov(pw, cur.rd[:-1])
            if (ov(pw, cur.rd) or ov(pw, cur.wr)) and not same_c: n = max(n, 3)
    if prev.kind == 'mfma':
        p = prev.passes
        full = {2: 5, 4: 8, 8: 12, 16: 20}[p]
        if cur.kind == 'mfma':
            ab = [r for r in cur.rd if r is not cur.srcc]
            if cur.srcc and overlap(prev.dst, cur.srcc):
                if not (cur.srcc == prev.dst and cur.passes == p):
                    n = max(n, {2: 4, 4: 6, 8: 10, 16: 18}[p])
            abr = cur.rd[:2]
            if ov([prev.dst], abr): n = max(n, full)
            if overlap(prev.dst, cur.dst) and not (cur.srcc == prev.dst and cur.passes == p):
                n = max(n, full)
        elif cur.kind in ('valu', 'ds', 'vmem'):
            if ov([prev.dst], cur.rd) or ov([prev.dst], cur.wr): n = max(n, full)
            if cur.kind == 'valu' and prev.srcc and ov([prev.srcc], cur.wr):
                n = max(n, {2: 1, 4: 3, 8: 7, 16: 15}[p])
    if prev.kind == 'vmem' and 'store' in prev.op and ('x4' in prev.op or 'x3' in prev.op):
        if cur.kind in ('valu',) and ov(vfile(prev.rd), cur.wr): n = max(n, 2)
        elif cur.kind in ('ds', 'vmem', 'mfma') and ov(vfile(prev.rd), cur.wr): n = max(n, 1)
    if prev.kind == 'ds' and 'write' in prev.op and ('b128' in prev.op or 'b96' in prev.op):
        if cur.kind == 'valu' and ov(vfile(prev.rd), cur.wr): n = max(n, 1)
    if prev.kind == 'salu' and any(r[1] == 124 for r in prev.wr):
        if cur.kind == 'vmem' and any(r[1] == 124 for r in cur.rd): n = max(n, 1)
    return n

class Emit:
    def __init__(self):
        self.out = []
        self.vm_issued = 0; self.vm_done = 0
        self.ds_issued = 0; self.ds_done = 0
    def __call__(self, s):
        self.out.append(s)
    def raw(self, s): self.out.append(s)
    def label(self, l): self.out.append(l + ':')
    def c(self, s): self.out.append('; ' + s)
    def vm(self, s):
        if self.vm_issued - self.vm_done >= 63:
            self.wait_vm(self.vm_issued - 62)
        self.out.append(s); self.vm_issued += 1
        return self.vm_issued
    def wait_vm(self, tok):
        if tok <= self.vm_done: return
        n = self.vm_issued - tok
        assert 0 <= n <= 63, n
        self.out.append(f's_waitcnt vmcnt({n})'); self.vm_done = tok
    def wait_vm_all(self):
        self.out.append('s_waitcnt vmcnt(0)'); self.vm_done = self.vm_issued
    def ds(self, s):
        if self.ds_issued - self.ds_done >= 15:
            self.wait_ds(self.ds_issued - 14)
        self.out.append(s); self.ds_issued += 1
        return self.ds_issued
    def wait_ds(self, tok):
        if tok <= self.ds_done: return
        n = self.ds_issued - tok
        assert 0 <= n <= 15, n
        self.out.append(f's_waitcnt lgkmcnt({n})'); self.ds_done = tok
    def wait_ds_all(self):
        self.out.append('s_waitcnt lgkmcnt(0)'); self.ds_done = self.ds_issued
    def barrier(self):
        self.out.append('s_barrier')

def hazard_pass(lines):
    res = []
    hist = []
    saved = {}
    MAXAGE = 24
    nins = 0
    for ln in lines:
        s = ln.split(';')[0].strip()
        if not s or s.startswith('.') and not s.endswith(':') or s.startswith('//'):
            res.append(ln); continue
        if s.endswith(':'):
            lab = s[:-1]
            if lab in saved:
                for h in saved[lab]:
                    d = {id(x[0]): x for x in hist}
                    for it, age in h:
                        if id(it) in d: d[id(it)][1] = min(d[id(it)][1], age)
                        else: hist.append([it, age])
            res.append(ln); continue
        cur = I(s)
        req = 0
        for it, age in hist:
            k = need(it, cur)
            if k > age: req = max(req, k - age)
        while req > 0:
            k = min(req, 16)
            res.append(f's_nop {k-1}'); nins += 1
            for x in hist: x[1] += k
            req -= k
        res.append(ln)
        for x in hist: x[1] += cur.states
        hist = [x for x in hist if x[1] < MAXAGE]
        if cur.kind in ('valu', 'mfma', 'vmem', 'ds', 'salu'):
            hist.append([cur, 0])
        if cur.op.startswith('s_cbranch') or cur.op == 's_branch':
            lab = s.split()[1]
            saved.setdefault(lab, []).append([[it, a] for it, a in hist])
            if cur.op == 's_branch': hist = []
        if cur.op == 's_endpgm': hist = []
    return res, nins
```

```python
import sys, struct
from asmlib import Emit, hazard_pass

NAME = "sequential_preLN__spectral_gfnet__glu_gated_swiglu__prompt"
KN = NAME + "_kernel"

T1_OFF  = 0x000000
T2_OFF  = 0x200000
HC_OFF  = 0x400000
HR_OFF  = 0x600000
ST1_OFF = 0x800000
ST2_OFF = 0x810000
W13_OFF = 0x900000
W2_OFF  = 0xD00000
HM_OFF  = 0x1000000
FL_OFF  = 0x1800000
DIAG_OFF = 0x1A00000
WS_SIZE = 0x1C00000
LDS_STAGE = 32768
LDS_STATS = 114688
LDS_BYTES = 114688 + 8192
MAXSPIN = 100000

DIAG = False
OPT = dict(st1=3, st2=6, epi=1, post=8, w3=16, cpf=5, outmod=0, probe=0, pdepth=1, g2rot=0, wsoff=0, eflag=16, epoll=46, fspan=40, w2t1=14, latesp=52, g2mode=1, lpoll=8, p1slot=0, early=0, wpf=1, p2mode=0, w2pf=0, p2park=1, gslot=1, tlb=0, sent=0, fillpos=1, map8=0, t0reg=0, t0split=1, xnew=1)
def f2u(x): return struct.unpack('<I', struct.pack('<f', x))[0]
def lit(x): return '0x%08x' % f2u(x)
def vr(a, n=1): return f'v{a}' if n == 1 else f'v[{a}:{a+n-1}]'
def ar(a, n=1): return f'a{a}' if n == 1 else f'a[{a}:{a+n-1}]'

S_X, S_WS, S_WR, S_WI, S_W1, S_W3, S_W2, S_OUT, S_DBG = 8, 12, 16, 20, 24, 28, 32, 36, 40
SX, SWS, SWR, SWI, SW1, SW3, SW2, SOUT, SDBG = [f's[{a}:{a+3}]' for a in (8, 12, 16, 20, 24, 28, 32, 36, 40)]
sW, sB, sGRP, sNONCE, sREP = 44, 45, 46, 47, 48
sR, sC, sSPIN = 49, 50, 51

def srd(e, d, ptr, size):
    e(f's_mov_b32 s{d}, s{ptr}')
    e(f's_and_b32 s{d+1}, s{ptr+1}, 0xffff')
    e(f's_mov_b32 s{d+2}, 0x{size:x}')
    e(f's_mov_b32 s{d+3}, 0x20000')

_stamp_n = [0]
STAMPS = []
def stamp(e, name):
    if not DIAG: return
    i = _stamp_n[0]; _stamp_n[0] += 1; STAMPS.append(name)
    e('s_memtime s[84:85]')
    e('s_waitcnt lgkmcnt(0)')
    e(f'v_writelane_b32 v255, s84, {i}')
def rstamp(e, name):
    if not DIAG: return
    i = _stamp_n[0]; _stamp_n[0] += 1; STAMPS.append(name)
    e('s_memrealtime s[84:85]')
    e('s_waitcnt lgkmcnt(0)')
    e(f'v_writelane_b32 v255, s84, {i}')

def xsum_groups(e, v, tmp):
    e(f'v_mov_b32 v{tmp}, v{v}')
    e(f'v_permlane32_swap_b32 v{tmp}, v{v}')
    e(f'v_add_f32 v{v}, v{v}, v{tmp}')
    e(f'v_mov_b32 v{tmp}, v{v}')
    e(f'v_permlane16_swap_b32 v{tmp}, v{v}')
    e(f'v_add_f32 v{v}, v{v}, v{tmp}')

def rot8(em, co, si, co2, si2, cs, neg_sin):
    C = 'op_sel:[0,0] op_sel_hi:[1,0]'
    S3 = 'op_sel:[0,1,0] op_sel_hi:[1,1,1]'
    NEG = ' neg_lo:[0,1,0] neg_hi:[0,1,0]'
    for p in range(4):
        em(f'v_pk_mul_f32 v[{co2+2*p}:{co2+2*p+1}], v[{co+2*p}:{co+2*p+1}], v[{cs}:{cs+1}] {C}')
        em(f'v_pk_mul_f32 v[{si2+2*p}:{si2+2*p+1}], v[{si+2*p}:{si+2*p+1}], v[{cs}:{cs+1}] {C}')
    for p in range(4):
        em(f'v_pk_fma_f32 v[{co2+2*p}:{co2+2*p+1}], v[{si+2*p}:{si+2*p+1}], v[{cs}:{cs+1}], v[{co2+2*p}:{co2+2*p+1}] {S3}' + ('' if neg_sin else NEG))
        em(f'v_pk_fma_f32 v[{si2+2*p}:{si2+2*p+1}], v[{co+2*p}:{co+2*p+1}], v[{cs}:{cs+1}], v[{si2+2*p}:{si2+2*p+1}] {S3}' + (NEG if neg_sin else ''))

_lab = [0]
def L(p):
    _lab[0] += 1
    return f'L{p}_{_lab[0]}'

def signal(e, sync):
    e.barrier()
    skip = L('sig')
    e(f's_cmp_lg_u32 s{sW}, 0')
    e(f's_cbranch_scc1 {skip}')
    e(f's_lshl_b32 s52, s2, 6')
    e(f's_add_u32 s52, s52, 0x{FL_OFF + sync*0x40000:x}')
    e(f'v_mov_b32 v14, s{sNONCE}')
    e('v_lshlrev_b32 v15, 14, v1')
    e('s_mov_b64 exec, 0xff')
    e(f'buffer_store_dword v14, v15, {SWS}, s52 offen sc1')
    e('s_mov_b64 exec, -1')
    e.label(skip)

def flag_store(e, sync):
    skip = L('flg')
    e(f's_cmp_lg_u32 s{sW}, 0')
    e(f's_cbranch_scc1 {skip}')
    e(f's_lshl_b32 s52, s2, 6')
    e(f's_add_u32 s52, s52, 0x{FL_OFF + sync*0x40000:x}')
    e(f'v_mov_b32 v14, s{sNONCE}')
    e('v_lshlrev_b32 v15, 14, v1')
    e('s_mov_b64 exec, 0xff')
    e(f'buffer_store_dword v14, v15, {SWS}, s52 offen sc1')
    e('s_mov_b64 exec, -1')
    e.label(skip)

def poll(e, sync, nflags, idx_code, preg=232, bar=True):
    skip = L('pollskip'); loop = L('poll'); done = L('polldone')
    e(f's_cmp_lg_u32 s{sW}, 0')
    e(f's_cbranch_scc1 {skip}')
    idx_code(e)
    nl = max(1, nflags // 64)
    e(f's_add_u32 s52, s{sREP}, 0x{FL_OFF + sync*0x40000:x}')
    for i in range(1, nl): e(f's_add_u32 s{52+i}, s52, {i*64*64}')
    e(f's_mov_b32 s{sSPIN}, 0')
    if nflags <= 32: e(f's_mov_b64 exec, 0x{(1 << nflags) - 1:x}')
    elif nflags < 64: e(f's_mov_b32 exec_hi, 0x{(1 << (nflags - 32)) - 1:x}')
    D = OPT['pdepth']
    def issue(k):
        for i in range(nl): e(f'buffer_load_dword v{preg+k*nl+i}, v5, {SWS}, s{52+i} offen sc1')
    e('s_waitcnt vmcnt(0)') if D == 1 else None
    for k in range(D - 1): issue(k)
    e.label(loop)
    for k in range(D):
        issue((k + D - 1) % D)
        e(f's_waitcnt vmcnt({(D-1)*nl})')
        r = preg + k * nl
        e(f'v_xor_b32 v6, s{sNONCE}, v{r}')
        for i in range(1, nl):
            e(f'v_xor_b32 v7, s{sNONCE}, v{r+i}')
            e('v_or_b32 v6, v6, v7')
        e('v_cmp_ne_u32 vcc, 0, v6')
        e('s_nop 4')
        e(f's_cbranch_vccz {done}')
    e(f's_add_u32 s{sSPIN}, s{sSPIN}, 1')
    e(f's_cmp_lt_u32 s{sSPIN}, {MAXSPIN}')
    e(f's_cbranch_scc1 {loop}')
    e.label(done)
    e('s_mov_b64 exec, -1')
    e.label(skip)
    if bar: e.barrier()

def p1_addr(e, i):
    e(f's_lshl_b32 s53, s{sW}, 2')
    e(f's_add_u32 s53, s53, {i}')
    e('s_cmp_ge_u32 s53, 7')
    e('s_cselect_b32 s54, 7, 0')
    e(f's_cselect_b32 s55, {P1_MS}, 0')
    e('s_sub_u32 s54, s53, s54')
    e('s_lshl_b32 s54, s54, 6')
    e(f's_add_u32 s55, s55, {LDS_STAGE}')
    e('v_add_u32 v12, s54, v1')
    e('v_mul_u32_u24 v13, 4682, v12')
    e('v_lshrrev_b32 v13, 16, v13')
    e('v_mul_u32_u24 v14, 14, v13')
    e('v_sub_u32 v14, v12, v14')
    e('v_lshlrev_b32 v14, 4, v14')
    e(f'v_mul_u32_u24 v15, {P1_RS}, v13')
    e('v_add3_u32 v%d, v15, v14, s55' % P1LR[i])
    if i == 3: e('v_accvgpr_write_b32 a25, v10')
    e('v_lshrrev_b32 v15, 4, v13')
    e('v_mul_u32_u24 v15, 208, v15')
    e('v_add_u32 v15, v15, v13')
    e('v_mul_u32_u24 v15, 3584, v15')
    e('v_add_u32 v15, v15, v14')

P1_RS, P1_MS = 288, 9344
P1LR = [252, 253, 254, 10]
P2LR = [248, 11]
P2_RS, P2_BASE = 480, LDS_STAGE + 2 * 9344 + 64
def p1_loads(e):
    e('s_lshr_b32 s52, s2, 4')
    e('s_lshl_b32 s52, s52, 4')
    e('s_mul_i32 s52, s52, 3584')
    e('s_and_b32 s54, s2, 15')
    e('s_mul_i32 s54, s54, 224')
    e('s_add_u32 s52, s52, s54')
    e(f's_mov_b32 s94, s{S_W1+2}')
    e('s_mov_b32 s95, 0x20000')
    for i in range(4):
        p1_addr(e, i)
        e('s_cmp_ge_u32 s53, 7')
        e(f's_cselect_b32 s92, s{S_W3}, s{S_W1}')
        e(f's_cselect_b32 s93, s{S_W3+1}, s{S_W1+1}')
        if i >= 2:
            e('s_cmp_ge_u32 s53, 14')
            e('s_cselect_b32 s94, 0, s94')
        e.vm(f'buffer_load_dwordx4 {ar(4*i,4)}, v15, s[92:95], s52 offen')

def p2_loads(e):
    e('s_lshr_b32 s52, s2, 1')
    e('s_mul_i32 s52, s52, %d' % (16 * 896))
    e('s_and_b32 s53, s2, 1')
    e('s_mul_i32 s53, s53, 224')
    e('s_add_u32 s52, s52, s53')
    e(f's_mov_b32 s92, s{S_W2}')
    e(f's_mov_b32 s93, s{S_W2+1}')
    e('s_cmp_ge_u32 s2, 224')
    e(f's_cselect_b32 s94, 0, s{S_W2+2}')
    for i in range(2):
        e(f's_lshl_b32 s53, s{sW}, 1')
        e(f's_add_u32 s53, s53, {i}')
        e('s_lshl_b32 s54, s53, 6')
        e('v_add_u32 v12, s54, v1')
        e('v_mul_u32_u24 v13, 2341, v12')
        e('v_lshrrev_b32 v13, 16, v13')
        e('v_mul_u32_u24 v14, 28, v13')
        e('v_sub_u32 v14, v12, v14')
        e('v_cmp_le_u32 vcc, 14, v14')
        e('v_lshlrev_b32 v14, 4, v14')
        e(f'v_mul_u32_u24 v15, {P2_RS}, v13')
        e(f'v_add_u32 v15, v15, v14')
        e(f'v_add_u32 v15, {P2_BASE}, v15')
        e(f'v_accvgpr_write_b32 a{26 if i == 0 else 24}, v15')
        e('v_add_u32 v15, 224, v14')
        e('v_cndmask_b32 v14, v14, v15, vcc')
        e('v_mul_u32_u24 v15, 896, v13')
        e('v_add_u32 v15, v15, v14')
        if i == 1:
            e('s_cmp_ge_u32 s53, 7')
            e('s_cselect_b32 s94, 0, s94')
        e.vm(f'buffer_load_dwordx4 {ar(16+4*i,4)}, v15, s[92:95], s52 offen')
assert all(((i * 2341) >> 16) == i // 28 for i in range(512))

def w_prefetch(e):
    e('s_lshl_b32 s52, s2, 12')
    e('v_lshlrev_b32 v12, 4, v0')
    e('v_add_u32 v12, s52, v12')
    e.vm(f'buffer_load_dwordx4 a[32:35], v12, {SWR}, 0 offen')
    e.vm(f'buffer_load_dwordx4 a[32:35], v12, {SWI}, 0 offen')
    if OPT['w2pf']:
        e.vm(f'buffer_load_dwordx4 a[32:35], v12, {SW2}, 0 offen')
        e('s_mov_b32 s52, 0x100000')
        e.vm(f'buffer_load_dwordx4 a[32:35], v12, {SW2}, s52 offen')
assert all(((i * 4682) >> 16) == i // 14 for i in range(512))

def p1_finish(e, R=64):
    RS, MS, BASE = P1_RS, P1_MS, LDS_STAGE
    skw = L('p1w')
    for i in range(4):
        if i == 2:
            e(f's_cmp_ge_u32 s{sW}, 3')
            e(f's_cbranch_scc1 {skw}')
        if i == 3: e('v_accvgpr_read_b32 v10, a25')
        e(f'ds_write_b128 v{P1LR[i]}, {ar(4*i,4)}')
    e.label(skw)
    e.wait_ds_all()
    e.barrier()
    end = L('p1e')
    e(f's_cmp_eq_u32 s{sW}, 0')
    e(f's_cbranch_scc1 {end}')
    e('v_and_b32 v4, 1, v3')
    e(f'v_mul_u32_u24 v4, {MS}, v4')
    e('v_lshrrev_b32 v5, 1, v3')
    e('v_lshlrev_b32 v5, 2, v5')
    e('v_lshrrev_b32 v6, 2, v2')
    e('v_add_u32 v5, v5, v6')
    e(f'v_mul_u32_u24 v5, {RS}, v5')
    e('v_add_u32 v4, v4, v5')
    e('v_and_b32 v6, 3, v2')
    e('v_lshlrev_b32 v6, 3, v6')
    e('v_add_u32 v4, v4, v6')
    e(f'v_add_u32 v4, {BASE}, v4')
    e('s_and_b32 s54, s2, 15')
    e('s_mul_i32 s54, s54, %d' % (7 * 28))
    e('s_lshr_b32 s53, s2, 4')
    e('s_lshl_b32 s53, s53, 1')
    e('s_add_u32 s54, s54, s53')
    e('s_lshl_b32 s54, s54, 10')
    e(f's_add_u32 s54, s54, 0x{W13_OFF:x}')
    e('v_lshlrev_b32 v5, 4, v1')
    last = L('p1l')
    for m in range(5):
        e(f's_add_u32 s52, s{sW}, {3*m - 1}')
        if m == 4:
            e('s_cmp_ge_u32 s52, 14')
            e(f's_cbranch_scc1 {last}')
        e('s_and_b32 s53, s52, 1')
        e('s_lshr_b32 s52, s52, 1')
        e(f's_mul_i32 s55, s53, {8*RS}')
        e('s_lshl_b32 s61, s52, 5')
        e('s_add_u32 s55, s55, s61')
        e('v_add_u32 v6, s55, v4')
        e(f'ds_read_b64_tr_b16 {vr(R+4*m,2)}, v6')
        e(f'ds_read_b64_tr_b16 {vr(R+4*m+2,2)}, v6 offset:{16*RS}')
        e('s_mul_i32 s52, s52, 28')
        e('s_add_u32 s52, s52, s53')
        e('s_lshl_b32 s52, s52, 10')
        e(f's_add_u32 s{62+m if m < 2 else 86+m}, s52, s54')
    e.label(last)
    e('s_waitcnt lgkmcnt(0)')
    for m in range(4):
        e(f'buffer_store_dwordx4 {vr(R+4*m,4)}, v5, {SWS}, s{62+m if m < 2 else 86+m} offen sc1')
    e(f's_cmp_ge_u32 s{sW}, 3')
    e(f's_cbranch_scc1 {end}')
    e(f'buffer_store_dwordx4 {vr(R+16,4)}, v5, {SWS}, s90 offen sc1')
    e.label(end)

def p2_finish(e, R=128):
    skw2 = L('p2w')
    e('v_accvgpr_read_b32 v7, a26')
    e(f'ds_write_b128 v7, {ar(16,4)}')
    e(f's_cmp_ge_u32 s{sW}, 3')
    e(f's_cbranch_scc1 {skw2}')
    e('v_accvgpr_read_b32 v7, a24')
    e(f'ds_write_b128 v7, {ar(20,4)}')
    e.label(skw2)
    e.wait_ds_all()
    e.barrier()
    end = L('p2e')
    e(f's_cmp_eq_u32 s{sW}, 0')
    e(f's_cbranch_scc1 {end}')
    e('v_lshrrev_b32 v6, 1, v3')
    e('v_lshlrev_b32 v6, 2, v6')
    e('v_lshrrev_b32 v7, 2, v2')
    e('v_add_u32 v6, v6, v7')
    e(f'v_mul_u32_u24 v6, {P2_RS}, v6')
    e('v_and_b32 v7, 1, v3')
    e('v_lshlrev_b32 v7, 4, v7')
    e('v_add_u32 v6, v6, v7')
    e('v_and_b32 v7, 1, v2')
    e('v_lshlrev_b32 v7, 3, v7')
    e('v_add_u32 v6, v6, v7')
    e('v_bfe_u32 v7, v2, 1, 1')
    e('v_mul_u32_u24 v7, 224, v7')
    e('v_add_u32 v6, v6, v7')
    e(f's_sub_u32 s55, s{sW}, 1')
    e('s_lshl_b32 s52, s55, 5')
    e(f's_add_u32 s52, s52, {P2_BASE}')
    e('v_add_u32 v6, s52, v6')
    e('s_and_b32 s54, s2, 1')
    e('s_mul_i32 s54, s54, 7')
    e('s_add_u32 s54, s54, s55')
    e('s_mul_i32 s54, s54, 112')
    e('s_lshr_b32 s53, s2, 1')
    e('s_add_u32 s54, s54, s53')
    e('s_lshl_b32 s54, s54, 10')
    e(f's_add_u32 s54, s54, 0x{W2_OFF:x}')
    e('v_lshlrev_b32 v5, 4, v1')
    for m in range(3):
        e(f'ds_read_b64_tr_b16 {vr(R+4*m,2)}, v6 offset:{96*m}')
        e(f'ds_read_b64_tr_b16 {vr(R+4*m+2,2)}, v6 offset:{96*m + 8*P2_RS}')
    e('s_waitcnt lgkmcnt(0)')
    for m in range(3):
        if m == 2:
            e(f's_cmp_ge_u32 s{sW}, 2')
            e(f's_cbranch_scc1 {end}')
        e(f's_add_u32 s53, s54, {3*m*112*1024}')
        e(f'buffer_store_dwordx4 {vr(R+4*m,4)}, v5, {SWS}, s53 offen sc1')
    e.label(end)

def w13_load_groups():
    gs = []
    for s_ in range(28):
        for mi in range(2):
            g = []
            if s_ % 7 == 0 and mi == 0:
                g += [f's_add_u32 s90, s89, {s_//7}', 's_and_b32 s90, s90, 3', 's_mul_i32 s90, s90, 7168', 's_add_u32 s90, s90, s88',
                      's_add_u32 s91, s90, 28672']
            i = s_ % 7
            if i == 4 and mi == 0: g += ['s_add_u32 s90, s90, 4096', 's_add_u32 s91, s91, 4096']
            g.append(('vm', f'buffer_load_dwordx4 {ar((mi*28+s_)*4,4)}, v254, s[92:95], s{90+mi} offen offset:{(i%4)*1024} sc1'))
            gs.append(g)
    return gs

def w13_setup(e):
    e(f's_mov_b32 s92, s{S_WS}')
    e(f's_mov_b32 s93, s{S_WS+1}')
    e(f's_cmp_ge_u32 s{sC}, 14')
    e(f's_cselect_b32 s94, 0, s{S_WS+2}')
    e('s_mov_b32 s95, 0x20000')
    e(f's_lshl_b32 s88, s{sC}, 3')
    e(f's_lshl_b32 s52, s{sW}, 1')
    e('s_add_u32 s88, s88, s52')
    e('s_mul_i32 s88, s88, 28672')
    e(f's_add_u32 s88, s88, 0x{W13_OFF:x}')
    e(f's_and_b32 s89, s{sR}, 3')
    e('v_lshlrev_b32 v254, 4, v1')

def emit_groups(e, groups):
    last = None
    for g in groups:
        for op in g:
            if isinstance(op, tuple): last = e.vm(op[1])
            else: e(op)
    return last

DMA = {}
def emit_interleaved(e, main, groups, start=0):
    n, m = len(main), len(groups)
    gi = 0; last = None
    for k, ins in enumerate(main):
        e(ins)
        if k >= start:
            want = ((k - start + 1) * m) // max(1, n - start)
            while gi < want:
                for op in groups[gi]:
                    if isinstance(op, tuple): last = e.vm(op[1])
                    else: e(op)
                gi += 1
    while gi < m:
        for op in groups[gi]:
            if isinstance(op, tuple): last = e.vm(op[1])
            else: e(op)
        gi += 1
    return last

def w13_trread(e, half):
    e('v_and_b32 v4, 1, v3')
    e('v_lshrrev_b32 v5, 1, v3')
    e('v_lshrrev_b32 v6, 2, v2')
    e('v_and_b32 v7, 3, v2')
    e('v_mul_u32_u24 v8, 57344, v4')
    e('v_lshlrev_b32 v9, 2, v5')
    e('v_add_u32 v9, v9, v6')
    e('v_lshlrev_b32 v9, 8, v9')
    e('v_add_u32 v8, v8, v9')
    e('v_and_b32 v9, 1, v7')
    e('v_lshlrev_b32 v9, 3, v9')
    e('v_add_u32 v8, v8, v9')
    e(f'v_add_u32 v8, {LDS_STAGE}, v8')
    e('v_lshrrev_b32 v7, 1, v7')
    e(f's_lshl_b32 s52, s{sW}, 2')
    e('v_add_u32 v7, s52, v7')
    e('v_lshlrev_b32 v6, 1, v6')
    e('v_lshlrev_b32 v4, 3, v4')
    e('v_xor_b32 v6, v6, v4')
    for mi in range(2):
        e(f'v_add_u32 v9, {2*mi}, v7')
        e('v_xor_b32 v9, v9, v6')
        e('v_lshlrev_b32 v9, 4, v9')
        e(f'v_add_u32 v{10+mi}, v8, v9')
    for mi in range(2):
        for jl in range(7):
            for gg in range(2):
                kap = 14 * half + 2 * jl + gg
                a = (mi * 28 + kap) * 4
                off = (16 * jl + 8 * gg) * 256
                e.ds(f'ds_read_b64_tr_b16 {ar(a,2)}, v{10+mi} offset:{off}')
                e.ds(f'ds_read_b64_tr_b16 {ar(a+2,2)}, v{10+mi} offset:{off + 112*256}')

C_G, C_TC = 220, 160
def gen_G(e):
    G = C_G
    TH, CO, SI = 112, 120, 128
    cscale = 2.0 / (2048.0 * 448.0)
    e('v_cvt_f32_u32 v7, v3')
    for nt in range(2):
        e(f'v_add_u32 v8, {16*nt}, v2')
        e('v_lshlrev_b32 v8, 6, v8')
        e(f'v_add_u32 v8, s{sB}, v8')
        e('v_cvt_f32_u32 v8, v8')
        e(f'v_mul_f32 v8, {lit(1.0/2048)}, v8')
        e('v_mul_f32 v9, v7, v8')
        for t in range(2):
            for ii in range(4):
                cst = 16 * t + 4 * ii
                if cst == 0: e(f'v_mov_b32 v{TH+t*4+ii}, v9')
                else: e(f'v_fmamk_f32 v{TH+t*4+ii}, v8, {lit(float(cst))}, v9')
        for j in range(8): e(f'v_cos_f32 v{CO+j}, v{TH+j}')
        for j in range(8): e(f'v_sin_f32 v{SI+j}, v{TH+j}')
        for j in range(8): e(f'v_mul_f32 v{CO+j}, {lit(cscale)}, v{CO+j}')
        for j in range(8): e(f'v_mul_f32 v{SI+j}, {lit(cscale)}, v{SI+j}')
        for t in range(2):
            for ii in range(4):
                j = t * 4 + ii
                e(f'v_cvt_pk_bf16_f32 v{G+((0*2+t)*2+nt)*4+ii}, v{CO+j}, -v{SI+j}')
                e(f'v_cvt_pk_bf16_f32 v{G+((1*2+t)*2+nt)*4+ii}, v{SI+j}, v{CO+j}')

def gen_TC(e):
    TC = C_TC
    TH, CO, SI, CO2, SI2 = 112, 120, 128, 136, 144
    e(f's_lshl_b32 s61, s{sGRP}, 2')
    e(f's_add_u32 s61, s61, s{sW}')
    e('s_min_u32 s61, s61, 13')
    e('s_lshl_b32 s61, s61, 4')
    e('v_add_u32 v8, s61, v2')
    e('v_cvt_f32_u32 v8, v8')
    e(f'v_mul_f32 v8, {lit(1.0/448)}, v8')
    e('v_lshlrev_b32 v9, 3, v3')
    e('v_cvt_f32_u32 v9, v9')
    e('v_mul_f32 v9, v9, v8')
    e('v_cmp_eq_u32 vcc, 3, v3')
    e('v_mov_b32 v10, 1.0')
    e('v_mov_b32 v7, 0.5')
    e('v_cndmask_b32 v10, v10, v7, vcc')
    e(f'v_mul_f32 v7, {lit(32.0)}, v8')
    for h in range(2):
        for j in range(4):
            cst = 2 * j + (2 if h == 0 else 1)
            e(f'v_fmamk_f32 v{TH+h*4+j}, v8, {lit(float(cst))}, v9')
    e('v_cos_f32 v12, v7')
    e('v_sin_f32 v13, v7')
    for j in range(8): e(f'v_cos_f32 v{CO+j}, v{TH+j}')
    for j in range(8): e(f'v_sin_f32_e64 v{SI+j}, -v{TH+j}')
    cur = (CO, SI); oth = (CO2, SI2)
    for kp in range(7):
        if kp < 6: rot8(e, cur[0], cur[1], oth[0], oth[1], 12, True)
        else:
            e(f'v_mul_f32 v{cur[0]+3}, v{cur[0]+3}, v10')
            e(f'v_mul_f32 v{cur[1]+3}, v{cur[1]+3}, v10')
        for h, kb in enumerate((kp, kp + 7)):
            e(f'v_cvt_pk_bf16_f32 v{TC+kb*4+0}, v{cur[0]+h*4+0}, v{cur[0]+h*4+1}')
            e(f'v_cvt_pk_bf16_f32 v{TC+kb*4+1}, v{cur[0]+h*4+2}, v{cur[0]+h*4+3}')
            e(f'v_cvt_pk_bf16_f32 v{TC+kb*4+2}, v{cur[1]+h*4+0}, v{cur[1]+h*4+1}')
            e(f'v_cvt_pk_bf16_f32 v{TC+kb*4+3}, v{cur[1]+h*4+2}, v{cur[1]+h*4+3}')
        cur, oth = oth, cur

def code_prefetch_wave(e):
    sk = L('cpf')
    e(f's_cmp_lg_u32 s{sW}, {OPT["cpf"]-1}')
    e(f's_cbranch_scc1 {sk}')
    e('s_getpc_b64 s[52:53]')
    e.label('L_pc')
    e('s_lshr_b32 s54, s2, 3')
    e('s_lshl_b32 s54, s54, 10')
    e('s_cmp_ge_u32 s54, L_fin-L_pc-1024')
    e(f's_cbranch_scc1 {sk}')
    e('v_lshlrev_b32 v5, 4, v1')
    e('v_add_u32 v5, s54, v5')
    e('global_load_dwordx4 a[28:31], v5, s[52:53]')
    e.label(sk)

def code_prefetch_entry(e):
    sk = L('cpf')
    e('s_getpc_b64 s[52:53]')
    e.label('L_pc')
    e('s_lshr_b32 s54, s2, 3')
    e('s_lshl_b32 s54, s54, 10')
    e('s_cmp_ge_u32 s54, L_fin-L_pc-1024')
    e(f's_cbranch_scc1 {sk}')
    e('v_lshlrev_b32 v5, 2, v0')
    e('v_add_u32 v5, s54, v5')
    e('global_load_dword a28, v5, s[52:53]')
    e.label(sk)

A_TA, A_FP, A_ACC, A_X = 16, 72, 96, 128
def phase_a_pre(e):
    e.c('======== phase A (before the kernel arguments arrive)')
    TA, FP, ACC, X = A_TA, A_FP, A_ACC, A_X
    e(f's_lshl_b32 s56, s{sGRP}, 2')
    e(f's_add_u32 s56, s56, s{sW}')
    e('s_min_u32 s57, s56, 13')
    if OPT['xnew']:
        e(f's_lshl_b32 s52, s{sW}, 9')
        e(f's_add_u32 s52, s52, s{sB}')
        e('v_lshrrev_b32 v4, 3, v1')
        e('v_lshlrev_b32 v4, 6, v4')
        e('v_add_u32 v4, s52, v4')
        e('v_mul_u32_u24 v4, 896, v4')
        e('v_and_b32 v11, 7, v1')
        e('v_lshlrev_b32 v11, 4, v11')
        e('v_add_u32 v4, v4, v11')
    else:
        e(f's_lshr_b32 s52, s{sW}, 1')
        e('s_lshl_b32 s52, s52, 10')
        e(f's_add_u32 s52, s52, s{sB}')
        e('v_lshlrev_b32 v4, 6, v2')
        e('v_add_u32 v4, s52, v4')
        e('v_mul_u32_u24 v4, 896, v4')
        e('v_lshlrev_b32 v11, 4, v3')
        e('v_add_u32 v4, v4, v11')
        e(f's_and_b32 s52, s{sW}, 1')
        e('s_mul_i32 s52, s52, 448')
        e('v_add_u32 v4, s52, v4')
    if OPT['early']: gen_TA(e)

def gen_TA(e):
    TA, FP, ACC, X = A_TA, A_FP, A_ACC, A_X
    e('s_cmp_lt_u32 s57, 7')
    e('s_cselect_b32 s52, 2, 1')
    e('s_cselect_b32 s53, 0, 7')
    e('s_sub_u32 s53, s57, s53')
    e('s_lshl_b32 s53, s53, 5')
    e('s_add_u32 s53, s53, s52')
    e('s_cmp_lt_u32 s57, 7')
    e(f's_cselect_b32 s58, {lit(1.0)}, {lit(-1.0)}')
    e('v_lshlrev_b32 v5, 1, v2')
    e('v_add_u32 v5, s53, v5')
    e('v_cvt_f32_u32 v5, v5')
    e(f'v_mul_f32 v5, {lit(1.0/448)}, v5')
    e('v_lshlrev_b32 v6, 3, v3')
    e('v_cvt_f32_u32 v6, v6')
    e('v_mul_f32 v6, v6, v5')
    TH, CO, SI = ACC, ACC + 8, ACC + 16
    CO2, SI2 = X + 32, X + 40
    e(f'v_mul_f32 v7, {lit(32.0)}, v5')
    for j in range(8):
        if j == 0: e(f'v_mov_b32 v{TH+j}, v6')
        else: e(f'v_fmamk_f32 v{TH+j}, v5, {lit(float(j))}, v6')
    e('v_cos_f32 v8, v7')
    e('v_sin_f32 v9, v7')
    for j in range(8): e(f'v_cos_f32 v{CO+j}, v{TH+j}')
    for j in range(8): e(f'v_sin_f32_e64 v{SI+j}, -v{TH+j}')
    cur = (CO, SI); oth = (CO2, SI2)
    for t in range(7):
        if t < 6: rot8(e, cur[0], cur[1], oth[0], oth[1], 8, True)
        for i in range(4): e(f'v_cvt_pk_bf16_f32 v{TA+(t*2+0)*4+i}, v{cur[0]+2*i}, v{cur[0]+2*i+1}')
        for i in range(4): e(f'v_cvt_pk_bf16_f32 v{TA+(t*2+1)*4+i}, v{cur[1]+2*i}, v{cur[1]+2*i+1}')
        cur, oth = oth, cur

XS_TOK = []
def phase_a_loads(e):
    X = A_X
    XS_TOK[:] = [e.vm(f'buffer_load_dwordx4 {vr(X+4*i,4)}, v4, {SX}, 0 offen offset:{(128 if OPT["xnew"] else 64)*i}') for i in range(7)]

def phase_a(e):
    e.c('======== phase A')
    TA, FP, ACC, X = A_TA, A_FP, A_ACC, A_X
    xs_tok = XS_TOK
    TH, CO, SI = ACC, ACC + 8, ACC + 16
    if OPT['tlb']:
        sk = L('tlb')
        e(f's_cmp_lg_u32 s{sW}, {OPT["tlb"]-1}')
        e(f's_cbranch_scc1 {sk}')
        e('v_min_u32 v5, 13, v1')
        e('v_lshlrev_b32 v5, 21, v5')
        e(f'buffer_load_dword a36, v5, {SWS}, 0 offen')
        e('v_mov_b32 v5, 0')
        e(f'buffer_load_dword a36, v5, {SOUT}, 0 offen')
        e.label(sk)
    stamp(e, 'A.issued')
    if not OPT['early']: gen_TA(e)
    e('s_mov_b32 s52, 0x80008000')
    e(f'v_cvt_f32_u32 v7, s{sB}')
    e(f'v_mul_f32 v7, {lit(1.0/64)}, v7')
    e('v_lshlrev_b32 v8, 2, v3')
    e('v_cvt_f32_u32 v8, v8')
    e('v_add_f32 v8, v8, v7')
    for mt in range(2):
        e(f'v_add_u32 v9, {16*mt}, v2')
        e('v_cvt_f32_u32 v9, v9')
        e(f'v_mul_f32 v9, {lit(1.0/32)}, v9')
        e('v_mul_f32 v10, v9, v8')
        for j in range(8):
            cst = 16 * (j >> 2) + (j & 3)
            if cst == 0: e(f'v_mov_b32 v{TH+j}, v10')
            else: e(f'v_fmamk_f32 v{TH+j}, v9, {lit(float(cst))}, v10')
        for j in range(8): e(f'v_cos_f32 v{CO+j}, v{TH+j}')
        for j in range(8): e(f'v_sin_f32 v{SI+j}, v{TH+j}')
        for i in range(4): e(f'v_cvt_pk_bf16_f32 v{FP+mt*12+i}, v{CO+2*i}, v{CO+2*i+1}')
        for i in range(4): e(f'v_cvt_pk_bf16_f32 v{FP+mt*12+4+i}, v{SI+2*i}, v{SI+2*i+1}')
        for i in range(4): e(f'v_xor_b32 v{FP+mt*12+8+i}, s52, v{FP+mt*12+4+i}')
    if OPT['wpf'] == 2: w_prefetch(e)
    p1_loads(e)
    if OPT['wpf'] == 3: w_prefetch(e)
    stamp(e, 'A.constgen')
    RR = 240
    xt = {}
    order = [(half, t, mt) for half in range(2) for t in range(7) for mt in range(2)]
    def xreg(mt, tt): return X + (mt * 14 + tt) * 4
    nread = [0]
    if OPT['xnew']:
        e('v_lshrrev_b32 v5, 3, v1')
        e(f's_and_b32 s52, s{sW}, 1')
        e('s_lshl_b32 s52, s52, 3')
        e('v_add_u32 v5, s52, v5')
        e('v_and_b32 v6, 7, v1')
        e('v_xor_b32 v7, v5, v6')
        e('v_lshlrev_b32 v7, 4, v7')
        e('v_and_b32 v8, 3, v6')
        e('v_lshlrev_b32 v8, 8, v8')
        e('v_add_u32 v7, v7, v8')
        e('v_lshrrev_b32 v8, 2, v6')
        e('v_lshlrev_b32 v8, 10, v8')
        e('v_add_u32 v7, v7, v8')
        e(f's_lshr_b32 s52, s{sW}, 1')
        e('s_mul_i32 s52, s52, 14336')
        e('v_add_u32 v4, s52, v7')
        e('v_mov_b32 v5, 0')
        e('v_mov_b32 v6, 0')
        e('s_mov_b32 s52, 0x3f803f80')
        for i in range(7):
            e.wait_vm(xs_tok[i])
            e.ds(f'ds_write_b128 v4, {vr(X+4*i,4)} offset:{2048*i}')
            for d in range(4):
                e(f'v_dot2_f32_bf16 v5, v{X+4*i+d}, s52, v5')
                e(f'v_dot2_f32_bf16 v6, v{X+4*i+d}, v{X+4*i+d}, v6')
        for ctl in ('quad_perm:[1,0,3,2]', 'quad_perm:[2,3,0,1]', 'row_half_mirror'):
            e(f'v_add_f32_dpp v5, v5, v5 {ctl} row_mask:0xf bank_mask:0xf')
            e(f'v_add_f32_dpp v6, v6, v6 {ctl} row_mask:0xf bank_mask:0xf')
        e(f'v_mul_f32 v5, {lit(1.0/448)}, v5')
        e(f'v_mul_f32 v6, {lit(1.0/448)}, v6')
        e('v_fma_f32 v6, -v5, v5, v6')
        e('v_max_f32 v6, 0, v6')
        e(f'v_add_f32 v6, {lit(1e-5)}, v6')
        e('v_rsq_f32 v6, v6')
        e('v_lshrrev_b32 v7, 3, v1')
        e(f's_lshl_b32 s52, s{sW}, 3')
        e('v_add_u32 v7, s52, v7')
        e('v_lshlrev_b32 v7, 2, v7')
        e.ds('ds_write_b32 v7, v6 offset:28672')
        nm = L('nomean')
        e(f's_cmp_lg_u32 s{sGRP}, 0')
        e(f's_cbranch_scc1 {nm}')
        e(f's_lshl_b32 s52, s{sB}, 7')
        e(f's_add_u32 s52, s52, 0x{ST1_OFF:x}')
        e(f'buffer_store_dword v5, v7, {SWS}, s52 offen sc1')
        e.label(nm)
        e.wait_ds_all()
        stamp(e, 'A.xstaged')
        e.barrier()
        if OPT['wpf'] == 1: w_prefetch(e)
        e('v_mov_b32 v250, 0')
        nonce_tok = e.vm(f'buffer_load_dword v251, v250, {SDBG}, 0 offen sc1')
        e('v_xor_b32 v5, v2, v3')
        e('v_lshlrev_b32 v6, 8, v3')
        e('v_lshlrev_b32 v11, 4, v5')
        e('v_add_u32 v11, v11, v6')
        e('v_xor_b32 v5, 4, v5')
        e('v_lshlrev_b32 v10, 4, v5')
        e('v_add_u32 v10, v10, v6')
        def issue_x():
            half, t, mt = order[nread[0]]
            tt = t + 7 * half
            xt[(half, t, mt)] = e.ds(f'ds_read_b128 {vr(xreg(mt,tt),4)}, v{10 if tt & 1 else 11} offset:{(mt*14+tt)*1024}')
            nread[0] += 1
        for _ in range(8): issue_x()
        e('v_lshlrev_b32 v9, 4, v3')
        tr0 = e.ds(f'ds_read_b128 {vr(RR,4)}, v9 offset:28672')
        tr1 = e.ds(f'ds_read_b128 {vr(RR+4,4)}, v9 offset:28736')
    else:
        e(f's_mul_i32 s52, s{sW}, 7168')
        e('v_lshlrev_b32 v11, 4, v1')
        e('v_add_u32 v4, s52, v11')
        e('v_mov_b32 v5, 0')
        e('v_mov_b32 v6, 0')
        e('s_mov_b32 s52, 0x3f803f80')
        for i in range(7):
            e.wait_vm(xs_tok[i])
            e.ds(f'ds_write_b128 v4, {vr(X+4*i,4)} offset:{1024*i}')
            for d in range(4):
                e(f'v_dot2_f32_bf16 v5, v{X+4*i+d}, s52, v5')
                e(f'v_dot2_f32_bf16 v6, v{X+4*i+d}, v{X+4*i+d}, v6')
        xsum_groups(e, 5, 7)
        xsum_groups(e, 6, 8)
        e(f's_lshl_b32 s52, s{sW}, 7')
        e('v_lshlrev_b32 v7, 3, v2')
        e('v_add_u32 v7, s52, v7')
        e('v_mov_b32 v8, v5')
        e('v_mov_b32 v9, v6')
        e.ds('ds_write_b64 v7, v[8:9] offset:28672')
        e.wait_ds_all()
        stamp(e, 'A.xstaged')
        e.barrier()
        if OPT['wpf'] == 1: w_prefetch(e)
        e('v_mov_b32 v250, 0')
        nonce_tok = e.vm(f'buffer_load_dword v251, v250, {SDBG}, 0 offen sc1')
        e('v_and_b32 v4, 31, v1')
        e('v_lshrrev_b32 v5, 4, v4')
        e('v_lshlrev_b32 v5, 8, v5')
        e('v_lshlrev_b32 v6, 3, v2')
        e('v_add_u32 v5, v5, v6')
        t0 = e.ds('ds_read_b64 v[6:7], v5 offset:28672')
        t1 = e.ds('ds_read_b64 v[8:9], v5 offset:28800')
        def issue_x():
            half, t, mt = order[nread[0]]
            tt = t + 7 * half
            xt[(half, t, mt)] = e.ds(f'ds_read_b128 {vr(xreg(mt,tt),4)}, v11 offset:{(mt*14+tt)*1024}')
            nread[0] += 1
        for _ in range(8): issue_x()
        e.wait_ds(t1)
        e('v_add_f32 v6, v6, v8')
        e('v_add_f32 v7, v7, v9')
        e(f'v_mul_f32 v6, {lit(1.0/448)}, v6')
        e(f'v_mul_f32 v7, {lit(1.0/448)}, v7')
        e('v_fma_f32 v7, -v6, v6, v7')
        e('v_max_f32 v7, 0, v7')
        e(f'v_add_f32 v7, {lit(1e-5)}, v7')
        e('v_rsq_f32 v7, v7')
        e(f's_lshl_b32 s52, s{sW}, 7')
        e('v_lshlrev_b32 v8, 2, v4')
        e('v_add_u32 v9, s52, v8')
        e.ds('ds_write_b32 v9, v7 offset:29184')
        nm = L('nomean')
        e(f's_or_b32 s52, s{sGRP}, s{sW}')
        e('s_cmp_lg_u32 s52, 0')
        e(f's_cbranch_scc1 {nm}')
        e(f's_lshl_b32 s52, s{sB}, 7')
        e(f's_add_u32 s52, s52, 0x{ST1_OFF:x}')
        e(f'buffer_store_dword v6, v8, {SWS}, s52 offen sc1')
        e.label(nm)
        e(f's_lshl_b32 s52, s{sW}, 7')
        e('v_lshlrev_b32 v9, 4, v3')
        e('v_add_u32 v9, s52, v9')
        tr0 = e.ds(f'ds_read_b128 {vr(RR,4)}, v9 offset:29184')
        tr1 = e.ds(f'ds_read_b128 {vr(RR+4,4)}, v9 offset:29248')
    def acc(mt, c, half): return ACC + ((mt * 2 + c) * 2 + half) * 4
    for (half, t, mt) in order:
        if nread[0] < len(order): issue_x()
        e.wait_ds(xt[(half, t, mt)])
        tt = t + 7 * half
        for c in range(2):
            a = acc(mt, c, half)
            e(f'v_mfma_f32_16x16x32_bf16 {vr(a,4)}, {vr(xreg(mt,tt),4)}, {vr(TA+(t*2+c)*4,4)}, {"0" if t == 0 else vr(a,4)}')
    e.wait_ds(tr1)
    stamp(e, 'A.mfma')
    BF = X; TMP = X + 8
    for c in range(2):
        for mt in range(2):
            for r in range(4): e(f'v_fma_f32 v{TMP+mt*4+r}, v{acc(mt,c,1)+r}, s58, v{acc(mt,c,0)+r}')
            for r in range(4): e(f'v_mul_f32 v{TMP+mt*4+r}, v{TMP+mt*4+r}, v{RR+mt*4+r}')
        for mt in range(2):
            for i in range(2):
                e(f'v_cvt_pk_bf16_f32 v{BF+c*4+mt*2+i}, v{TMP+mt*4+2*i}, v{TMP+mt*4+2*i+1}')
    TT = X + 16
    for mt in range(2):
        C, Sp, Sn = FP + mt * 12, FP + mt * 12 + 4, FP + mt * 12 + 8
        e(f'v_mfma_f32_16x16x32_bf16 {vr(TT+mt*8,4)}, {vr(C,4)}, {vr(BF,4)}, 0')
        e(f'v_mfma_f32_16x16x32_bf16 {vr(TT+mt*8+4,4)}, {vr(Sn,4)}, {vr(BF,4)}, 0')
        e(f'v_mfma_f32_16x16x32_bf16 {vr(TT+mt*8,4)}, {vr(Sp,4)}, {vr(BF+4,4)}, {vr(TT+mt*8,4)}')
        e(f'v_mfma_f32_16x16x32_bf16 {vr(TT+mt*8+4,4)}, {vr(C,4)}, {vr(BF+4,4)}, {vr(TT+mt*8+4,4)}')
    e('s_mov_b32 s52, %d' % (4 * 57344))
    e('v_mul_lo_u32 v4, v3, s52')
    e('v_lshlrev_b32 v5, 2, v2')
    e('v_add_u32 v4, v4, v5')
    e('s_lshl_b32 s52, s56, 12')
    e(f's_lshl_b32 s53, s{sB}, 6')
    e('s_add_u32 s52, s52, s53')
    OUT = X + 40
    for mt in range(2):
        for r in range(4): e(f'v_cvt_pk_bf16_f32 v{OUT+mt*4+r}, v{TT+mt*8+r}, v{TT+mt*8+4+r}')
    ns = L('nostoreA')
    e('s_cmp_ge_u32 s56, 14')
    e(f's_cbranch_scc1 {ns}')
    for mt in range(2):
        for r in range(4):
            e(f's_add_u32 s53, s52, {T1_OFF + (16*mt+r)*57344}')
            e(f'buffer_store_dword v{OUT+mt*4+r}, v4, {SWS}, s53 offen sc1')
    e.label(ns)
    stamp(e, 'A.stored')
    if OPT['wpf'] == 4:
        l0, l1 = L('wp'), L('wp')
        e(f's_cmp_eq_u32 s{sW}, 0')
        e(f's_cbranch_scc1 {l0}')
        e('s_mul_i32 s52, s2, 3072')
        e('v_lshlrev_b32 v12, 4, v0')
        e('v_add_u32 v12, s52, v12')
        e('s_mov_b32 s52, 786432')
        for sr_ in (SWR, SWI):
            e(f'buffer_load_dwordx4 a[32:35], v12, {sr_}, 0 offen')
            e(f'buffer_load_dwordx4 a[32:35], v12, {sr_}, s52 offen')
        e('s_waitcnt vmcnt(4)')
        e(f's_branch {l1}')
        e.label(l0)
        e('s_waitcnt vmcnt(0)')
        e.label(l1)
        e.vm_done = e.vm_issued
    else:
        e.wait_vm_all()
    sk, lp, dn = L('nsk'), L('nlp'), L('ndn')
    e(f's_cmp_lg_u32 s{sW}, 0')
    e(f's_cbranch_scc1 {sk}')
    e(f's_mov_b32 s{sSPIN}, 0')
    e.label(lp)
    e(f'v_readfirstlane_b32 s{sNONCE}, v251')
    e('s_nop 1')
    e(f's_cmp_lg_u32 s{sNONCE}, 0')
    e(f's_cbranch_scc1 {dn}')
    e(f'buffer_load_dword v251, v250, {SDBG}, 0 offen sc1')
    e('s_waitcnt vmcnt(0)')
    e(f's_add_u32 s{sSPIN}, s{sSPIN}, 1')
    e(f's_cmp_lt_u32 s{sSPIN}, {MAXSPIN}')
    e(f's_cbranch_scc1 {lp}')
    e.label(dn)
    e.label(sk)
    stamp(e, 'A.drained')
    skn = L('nb')
    e(f's_cmp_lg_u32 s{sW}, 0')
    e(f's_cbranch_scc1 {skn}')
    e(f'v_mov_b32 v14, s{sNONCE}')
    e('v_mov_b32 v15, 29696')
    e('ds_write_b32 v15, v14')
    e('s_waitcnt lgkmcnt(0)')
    e.label(skn)
    signal(e, 0)
    e('v_mov_b32 v15, 29696')
    e('ds_read_b32 v14, v15')
    e('s_waitcnt lgkmcnt(0)')
    e(f'v_readfirstlane_b32 s{sNONCE}, v14')

P2PARK = [16 + 4 * j for j in range(12)] + [92, 96]
def phase_p2(e):
    e.c('======== P2 (w2 re-layout)')
    done = L('p2done'); nojob = L('p2none')
    e('s_cmp_ge_u32 s2, 252')
    e(f's_cbranch_scc1 {nojob}')
    e('s_sub_u32 s56, s2, 224')
    e('s_waitcnt vmcnt(0)')
    e.barrier()
    e.vm_issued = e.vm_done = 0
    e('s_mul_i32 s52, s56, 57344')
    e('v_lshlrev_b32 v4, 4, v0')
    toks = []
    e('s_mov_b32 s57, s52')
    def ld(i):
        e(f's_add_u32 s53, s57, {i*4096}')
        toks.append(e.vm(f'buffer_load_dwordx4 {vr(16+4*i,4)}, v4, {SW2}, s53 offen'))
    for i in range(8): ld(i)
    for i in range(14):
        e(f'v_add_u32 v5, {i*256}, v0')
        e('v_mul_u32_u24 v6, 18725, v5')
        e('v_lshrrev_b32 v6, 20, v6')
        e('v_lshlrev_b32 v6, 5, v6')
        e('v_lshlrev_b32 v5, 4, v5')
        e(f'v_add_u32 v{80+i}, v5, v6')
        e(f'v_add_u32 v{80+i}, {LDS_STAGE}, v{80+i}')
    gen_G(e)
    for i in range(8, 14): ld(i)
    stamp(e, 'P2.issued')
    gen_TC(e)
    for i in range(14):
        e.wait_vm(toks[i])
        e.ds(f'ds_write_b128 v{80+i}, {vr(16+4*i,4)}')
    e.wait_ds_all()
    stamp(e, 'P2.lds')
    e.barrier()
    e('v_lshrrev_b32 v4, 1, v3')
    e('v_lshlrev_b32 v4, 2, v4')
    e('v_lshrrev_b32 v5, 2, v2')
    e('v_add_u32 v4, v4, v5')
    e(f's_lshl_b32 s53, s{sW}, 4')
    e('v_add_u32 v4, s53, v4')
    e('v_mul_u32_u24 v4, 928, v4')
    e('v_and_b32 v5, 1, v3')
    e('v_lshlrev_b32 v5, 4, v5')
    e('v_add_u32 v4, v4, v5')
    e('v_and_b32 v5, 1, v2')
    e('v_lshlrev_b32 v5, 3, v5')
    e('v_add_u32 v4, v4, v5')
    e('v_bfe_u32 v5, v2, 1, 1')
    e('v_mul_u32_u24 v5, 448, v5')
    e('v_add_u32 v4, v4, v5')
    e(f'v_add_u32 v4, {LDS_STAGE}, v4')
    e('v_lshlrev_b32 v5, 4, v1')
    e('s_lshl_b32 s53, s56, 2')
    e(f's_add_u32 s53, s53, s{sW}')
    e('s_lshl_b32 s53, s53, 10')
    e(f's_add_u32 s53, s53, 0x{W2_OFF:x}')
    if OPT['p2park']:
        for j in range(14):
            R = P2PARK[j]
            e.ds(f'ds_read_b64_tr_b16 {vr(R,2)}, v4 offset:{32*j}')
            e.ds(f'ds_read_b64_tr_b16 {vr(R+2,2)}, v4 offset:{32*j + 8*928}')
        e.wait_ds_all()
        e('s_mov_b32 s99, s53')
    trt = []
    for j in range(14 if not OPT['p2park'] else 0):
        R = 16 + 4 * j
        e.ds(f'ds_read_b64_tr_b16 {vr(R,2)}, v4 offset:{32*j}')
        trt.append(e.ds(f'ds_read_b64_tr_b16 {vr(R+2,2)}, v4 offset:{32*j + 8*928}'))
        if j >= 4:
            e.wait_ds(trt[j - 4])
            e(f's_add_u32 s54, s53, {(j-4)*112*1024}')
            e.vm(f'buffer_store_dwordx4 {vr(16+4*(j-4),4)}, v5, {SWS}, s54 offen sc1')
    for j in range(10, 14 if not OPT['p2park'] else 0):
        e.wait_ds(trt[j])
        e(f's_add_u32 s54, s53, {j*112*1024}')
        e.vm(f'buffer_store_dwordx4 {vr(16+4*j,4)}, v5, {SWS}, s54 offen sc1')
    stamp(e, 'P2.stored')
    e(f's_branch {done}')
    e.label(nojob)
    gen_TC(e)
    gen_G(e)
    e.label(done)
    e.wait_vm_all()
    stamp(e, 'P2.drained')
assert all(((p * 18725) >> 20) == p // 56 for p in range(3584)), "magic /56"

def phase_b(e):
    e.c('======== window 1 + phase B')
    e('s_and_b32 s56, s2, 7')
    e('s_lshr_b32 s57, s2, 3')
    e('s_mul_i32 s52, s57, 37')
    e('s_lshr_b32 s52, s52, 8')
    e('s_mul_i32 s53, s52, 7')
    e('s_sub_u32 s53, s57, s53')
    e('s_lshl_b32 s52, s52, 3')
    e('s_add_u32 s56, s56, s52')
    e('s_lshl_b32 s53, s53, 1')
    e(f's_lshr_b32 s54, s{sW}, 1')
    e('s_add_u32 s57, s53, s54')
    e('s_lshr_b32 s59, s53, 2')
    e(f's_and_b32 s58, s{sW}, 1')
    FC, FS, FN = 16, 32, 48
    TIN, BF, WR, WI, XA, YR, YI, YF = 64, 80, 96, 104, 112, 128, 136, 144
    e('s_cmp_lt_u32 s57, 7')
    e('s_cselect_b32 s52, 2, 1')
    e('s_cselect_b32 s53, 0, 7')
    e('s_sub_u32 s53, s57, s53')
    e('s_lshl_b32 s53, s53, 5')
    e('s_add_u32 s53, s53, s52')
    e('v_lshlrev_b32 v6, 1, v2')
    e('v_add_u32 v6, s53, v6')
    e('v_lshlrev_b32 v6, 1, v6')
    e('v_lshlrev_b32 v7, 7, v3')
    e('s_lshl_b32 s52, s58, 10')
    e('s_add_u32 s52, s52, s56')
    e('v_add_u32 v7, s52, v7')
    e('v_mul_u32_u24 v7, 450, v7')
    e('v_add_u32 v6, v6, v7')
    if OPT['wpf'] != 4:
        wtok = {}
        for mtl in range(2):
            for r in range(4):
                e(f's_mov_b32 s52, {(16*mtl+r)*14400}')
                e.vm(f'buffer_load_short_d16_hi v{WR+mtl*4+r}, v6, {SWR}, s52 offen')
                wtok[(mtl, r)] = e.vm(f'buffer_load_short_d16_hi v{WI+mtl*4+r}, v6, {SWI}, s52 offen')
    else: e('v_mov_b32 v246, v6')
    CO, SI, TH = 160, 176, 192
    groups = []
    main = []
    em = main.append
    em('s_lshl_b32 s52, s58, 5')
    em('v_add_u32 v8, s52, v2')
    em('v_cvt_f32_u32 v8, v8')
    em(f'v_mul_f32 v8, {lit(1.0/64)}, v8')
    em('v_lshlrev_b32 v9, 2, v3')
    for tt in range(2):
        em(f's_xor_b32 s52, s58, {tt}')
        em('s_lshl_b32 s52, s52, 5')
        em('v_add_u32 v10, s52, v9')
        em('v_cvt_f32_u32 v10, v10')
        em('v_mul_f32 v10, v10, v8')
        for j in range(8):
            cst = 16 * (j >> 2) + (j & 3)
            if cst == 0: em(f'v_mov_b32 v{TH+j}, v10')
            else: em(f'v_fmamk_f32 v{TH+j}, v8, {lit(float(cst))}, v10')
        for j in range(8): em(f'v_cos_f32 v{CO+tt*8+j}, v{TH+j}')
        for j in range(8): em(f'v_sin_f32 v{SI+tt*8+j}, v{TH+j}')
    def rot(kind, t, j, mt):
        qt = (mt * (j & 3)) & 3
        c, s = f'v{CO+t*8+j}', f'v{SI+t*8+j}'
        if kind == 'C': return [c, '-' + s, '-' + c, s][qt]
        if kind == 'S': return [s, c, '-' + s, '-' + c][qt]
        if kind == 'N': return ['-' + s, '-' + c, s, c][qt]
    for kind, base in (('C', FC), ('S', FS), ('N', FN)):
        for mtl in range(2):
            for tt in range(2):
                for i in range(4):
                    em(f'v_cvt_pk_bf16_f32 v{base+(mtl*2+tt)*4+i}, {rot(kind,tt,2*i,mtl)}, {rot(kind,tt,2*i+1,mtl)}')
    emit_interleaved(e, main, groups)
    if not OPT['p1slot']: p1_finish(e)
    stamp(e, 'W1.p1')
    if OPT['wpf'] == 4:
        wtok = {}
        for mtl in range(2):
            for r in range(4):
                e(f's_mov_b32 s52, {(16*mtl+r)*14400}')
                e.vm(f'buffer_load_short_d16_hi v{WR+mtl*4+r}, v246, {SWR}, s52 offen')
                wtok[(mtl, r)] = e.vm(f'buffer_load_short_d16_hi v{WI+mtl*4+r}, v246, {SWI}, s52 offen')

    e('s_mul_i32 s60, s56, 14')
    e('s_add_u32 s60, s60, s57')
    e('s_lshl_b32 s60, s60, 12')
    e(f's_add_u32 s60, s60, 0x{T1_OFF:x}')
    e('v_lshlrev_b32 v11, 8, v3')
    e('v_lshlrev_b32 v10, 2, v2')
    e('v_add_u32 v11, v11, v10')
    stamp(e, 'W1.ready')
    def idx(e):
        e('v_and_b32 v5, 7, v1')
        e('v_lshrrev_b32 v6, 3, v1')
        e('v_lshlrev_b32 v6, 5, v6')
        e('v_add_u32 v5, v5, v6')
        e('s_lshl_b32 s53, s59, 3')
        e('v_add_u32 v5, s53, v5')
        e('v_lshlrev_b32 v5, 6, v5')
    poll(e, 0, 64, idx)
    stamp(e, 'B.go'); rstamp(e, 'rt_bgo')
    tin = {}
    for tt in range(2):
        e(f's_xor_b32 s52, s58, {tt}')
        e('s_lshl_b32 s52, s52, 11')
        e('s_add_u32 s52, s52, s60')
        for j in range(8):
            off = (16 * (j >> 2) + (j & 3)) * 64
            tin[(tt, j)] = e.vm(f'buffer_load_dword v{TIN+tt*8+j}, v11, {SWS}, s52 offen offset:{off} sc1')
    if OPT['p1slot']: p1_finish(e, R=112)
    elif OPT['gslot']: gen_G(e)
    e('s_mov_b32 s52, 0x05040100')
    e('s_mov_b32 s53, 0x07060302')
    for tt in range(2):
        e.wait_vm(tin[(tt, 7)])
        for i in range(4):
            e(f'v_perm_b32 v{BF+tt*4+i}, v{TIN+tt*8+2*i+1}, v{TIN+tt*8+2*i}, s52')
            e(f'v_perm_b32 v{BF+8+tt*4+i}, v{TIN+tt*8+2*i+1}, v{TIN+tt*8+2*i}, s53')
    stamp(e, 'B.loaded')
    def fr(base, mtl, tt): return vr(base + (mtl * 2 + tt) * 4, 4)
    def mm(d, a, b, first): e(f'v_mfma_f32_16x16x32_bf16 {vr(d,4)}, {a}, {vr(b,4)}, {"0" if first else vr(d,4)}')
    BRE = lambda t: BF + t * 4
    BIM = lambda t: BF + 8 + t * 4
    for step in range(4):
        for mtl in range(2):
            xr, xi = XA + mtl * 8, XA + mtl * 8 + 4
            tt = step & 1
            if step < 2:
                mm(xr, fr(FC, mtl, tt), BRE(tt), step == 0); mm(xi, fr(FN, mtl, tt), BRE(tt), step == 0)
            else:
                mm(xr, fr(FS, mtl, tt), BIM(tt), False); mm(xi, fr(FC, mtl, tt), BIM(tt), False)
    e.wait_vm(wtok[(1, 3)])
    for mtl in range(2):
        for r in range(4):
            xr, xi = XA + mtl * 8 + r, XA + mtl * 8 + 4 + r
            wr, wi = WR + mtl * 4 + r, WI + mtl * 4 + r
            e(f'v_mul_f32 v{YR+mtl*4+r}, v{xr}, v{wr}')
            e(f'v_mul_f32 v{YI+mtl*4+r}, v{xr}, v{wi}')
            e(f'v_fma_f32 v{YR+mtl*4+r}, -v{xi}, v{wi}, v{YR+mtl*4+r}')
            e(f'v_fma_f32 v{YI+mtl*4+r}, v{xi}, v{wr}, v{YI+mtl*4+r}')
    for c, src in ((0, YR), (1, YI)):
        for i in range(4):
            e(f'v_cvt_pk_bf16_f32 v{YF+c*8+i}, v{src+(i>>1)*4+2*(i&1)}, v{src+(i>>1)*4+2*(i&1)+1}')
    e('v_lshlrev_b32 v10, 4, v1')
    e(f's_lshl_b32 s52, s{sW}, 11')
    e('v_add_u32 v12, s52, v10')
    e(f's_xor_b32 s52, s{sW}, 1')
    e('s_lshl_b32 s52, s52, 11')
    e('v_add_u32 v13, s52, v10')
    e.ds(f'ds_write_b128 v12, {vr(YF,4)}')
    e.ds(f'ds_write_b128 v12, {vr(YF+8,4)} offset:1024')
    e.wait_ds_all()
    e.barrier()
    p0 = e.ds(f'ds_read_b128 {vr(YF+4,4)}, v13')
    p1_ = e.ds(f'ds_read_b128 {vr(YF+12,4)}, v13 offset:1024')
    YRE = lambda t: YF + t * 4
    YIM = lambda t: YF + 8 + t * 4
    for mtl in range(2):
        xr, xi = XA + mtl * 8, XA + mtl * 8 + 4
        mm(xr, fr(FC, mtl, 0), YRE(0), True);  mm(xi, fr(FS, mtl, 0), YRE(0), True)
        mm(xr, fr(FN, mtl, 0), YIM(0), False); mm(xi, fr(FC, mtl, 0), YIM(0), False)
    e.wait_ds(p1_)
    for mtl in range(2):
        xr, xi = XA + mtl * 8, XA + mtl * 8 + 4
        mm(xr, fr(FC, mtl, 1), YRE(1), False); mm(xi, fr(FS, mtl, 1), YRE(1), False)
        mm(xr, fr(FN, mtl, 1), YIM(1), False); mm(xi, fr(FC, mtl, 1), YIM(1), False)
    e('s_mov_b32 s52, %d' % (4 * 28672))
    e('v_mul_lo_u32 v4, v3, s52')
    e('v_lshlrev_b32 v5, 2, v2')
    e('v_add_u32 v4, v4, v5')
    e('s_lshl_b32 s52, s57, 11')
    e('s_lshl_b32 s53, s56, 6')
    e('s_add_u32 s52, s52, s53')
    e(f's_mul_i32 s53, s58, {32*28672}')
    e('s_add_u32 s52, s52, s53')
    last = None
    for mtl in range(2):
        for r in range(4): e(f'v_cvt_pk_bf16_f32 v{TIN+mtl*4+r}, v{XA+mtl*8+r}, v{XA+mtl*8+4+r}')
        for r in range(4):
            e(f's_add_u32 s53, s52, {T2_OFF + (16*mtl+r)*28672}')
            last = e.vm(f'buffer_store_dword v{TIN+mtl*4+r}, v4, {SWS}, s53 offen sc1')
    stamp(e, 'B.stored')
    e.wait_vm_all()
    stamp(e, 'B.drained')

def phase_c(e):
    e.c('======== window 2 + phase C')
    e(f's_lshl_b32 s56, s{sGRP}, 2')
    e(f's_add_u32 s56, s56, s{sW}')
    e('s_min_u32 s57, s56, 13')
    G, TC, AIN, VA, PA, XR = C_G, C_TC, 104, 136, 48, 64
    MEAN = XR + 8
    e('v_lshlrev_b32 v5, 6, v2')
    e(f'v_add_u32 v5, s{sB}, v5')
    e('v_mul_u32_u24 v5, 896, v5')
    e('v_lshlrev_b32 v6, 3, v3')
    e('v_add_u32 v5, v5, v6')
    e('s_lshl_b32 s52, s57, 5')
    e('v_add_u32 v5, s52, v5')
    for nt in range(2):
        for pm in range(2):
            e(f's_mov_b32 s52, {nt*16*64*896}')
            e.vm(f'buffer_load_dwordx2 {vr(XR+(nt*2+pm)*2,2)}, v5, {SX}, s52 offen offset:{448*pm}')
    e('v_lshlrev_b32 v12, 2, v1')
    stamp(e, 'W2.ready')
    def idx(e): e('v_lshlrev_b32 v5, 6, v1')
    poll(e, 1, 256, idx, preg=100)
    stamp(e, 'C.go'); rstamp(e, 'rt_cgo')
    w13_setup(e)
    WG = w13_load_groups()
    wgi = [0]
    def wload(n):
        for _ in range(n):
            if wgi[0] < len(WG):
                emit_groups(e, [WG[wgi[0]]]); wgi[0] += 1
    atok = {}
    for i in range(4):
        e(f's_add_u32 s52, s{sW}, {4*i}')
        e('s_min_u32 s52, s52, 13')
        e(f's_mul_i32 s53, s{sB}, 14')
        e('s_add_u32 s52, s52, s53')
        e('s_lshl_b32 s52, s52, 11')
        e(f's_add_u32 s52, s52, 0x{T2_OFF:x}')
        for t in range(2):
            for ii in range(4):
                atok[(i, t, ii)] = e.vm(f'buffer_load_dword v{AIN+i*8+t*4+ii}, v12, {SWS}, s52 offen offset:{(16*t+4*ii)*64} sc1')
    e('v_lshlrev_b32 v6, 2, v2')
    e(f's_lshl_b32 s52, s{sB}, 7')
    e(f's_add_u32 s52, s52, 0x{ST1_OFF:x}')
    mtok = [e.vm(f'buffer_load_dword v{MEAN+nt}, v6, {SWS}, s52 offen offset:{64*nt} sc1') for nt in range(2)]
    e('v_lshlrev_b32 v11, 4, v1')
    if OPT['p2park']:
        skp = L('p2st')
        e('s_cmp_lt_u32 s2, 224')
        e(f's_cbranch_scc1 {skp}')
        e('s_cmp_ge_u32 s2, 252')
        e(f's_cbranch_scc1 {skp}')
        for j in range(14):
            e(f's_add_u32 s52, s99, {j*112*1024}')
            e(f'buffer_store_dwordx4 {vr(P2PARK[j],4)}, v11, {SWS}, s52 offen sc1')
        e.label(skp)
    e(f's_lshl_b32 s52, s{sW}, 11')
    e('v_add_u32 v12, s52, v11')
    PK = 76
    for i in range(4):
        e.wait_vm(atok[(i, 1, 3)])
        if i == 0: stamp(e, 'C.loaded')
        for nt in range(2):
            for out in range(2):
                d = VA + (out * 2 + nt) * 4
                e(f'v_mfma_f32_16x16x32_bf16 {vr(d,4)}, {vr(AIN+i*8,4)}, {vr(G+((out*2+0)*2+nt)*4,4)}, 0')
        for nt in range(2):
            for out in range(2):
                d = VA + (out * 2 + nt) * 4
                e(f'v_mfma_f32_16x16x32_bf16 {vr(d,4)}, {vr(AIN+i*8+4,4)}, {vr(G+((out*2+1)*2+nt)*4,4)}, {vr(d,4)}')
        sk = L('skip3')
        if i == 3:
            e(f's_cmp_ge_u32 s{sW}, 2')
            e(f's_cbranch_scc1 {sk}')
        for nt in range(2):
            p = PK + nt * 4 + (i & 1) * 8
            vre, vim = VA + (0 * 2 + nt) * 4, VA + (1 * 2 + nt) * 4
            e(f'v_cvt_pk_bf16_f32 v{p+0}, v{vre+0}, v{vre+1}')
            e(f'v_cvt_pk_bf16_f32 v{p+1}, v{vre+2}, v{vre+3}')
            e(f'v_cvt_pk_bf16_f32 v{p+2}, v{vim+0}, v{vim+1}')
            e(f'v_cvt_pk_bf16_f32 v{p+3}, v{vim+2}, v{vim+3}')
            e.ds(f'ds_write_b128 v12, {vr(p,4)} offset:{(4*i*2+nt)*1024}')
        if i == 3: e.label(sk)
        wload(OPT['st1'])
    e.wait_ds_all()
    stamp(e, 'C.st1')
    if OPT['p2mode'] == 1: signal(e, 4)
    else: e.barrier()
    VB = 16
    order = [(kb, nt) for kb in range(14) for nt in range(2)]
    tok = {}
    nread = [0]
    def issue():
        kb, nt = order[nread[0]]
        tok[nread[0]] = e.ds(f'ds_read_b128 {vr(VB+(nread[0]%8)*4,4)}, v11 offset:{(kb*2+nt)*1024}')
        nread[0] += 1
    for _ in range(7): issue()
    for idx_, (kb, nt) in enumerate(order):
        e.wait_ds(tok[idx_])
        par = 0 if kb < 7 else 1
        d = PA + (par * 2 + nt) * 4
        first = kb in (0, 7)
        e(f'v_mfma_f32_16x16x32_bf16 {vr(d,4)}, {vr(TC+kb*4,4)}, {vr(VB+(idx_%8)*4,4)}, {"0" if first else vr(d,4)}')
        if nread[0] < len(order): issue()
        if OPT['st2'] and idx_ % OPT['st2'] == OPT['st2'] - 1: wload(1)
    stamp(e, 'C.st2')
    e.wait_vm(mtok[1])
    H, HP, CP, SQ = 104, 120, 128, 92
    e('s_mov_b32 s52, 0xffff0000')
    for nt in range(2):
        pe, po = PA + nt * 4, PA + 8 + nt * 4
        for pm in range(2):
            xr = XR + (nt * 2 + pm) * 2
            for r in range(4):
                hv = H + (nt * 2 + pm) * 4 + r
                e(f'{"v_add_f32" if pm == 0 else "v_sub_f32"} v{hv}, v{pe+r}, v{po+r}')
                xv = 96 + r
                if r & 1: e(f'v_and_b32 v{xv}, s52, v{xr+(r>>1)}')
                else: e(f'v_lshlrev_b32 v{xv}, 16, v{xr+(r>>1)}')
            for r in range(4):
                hv = H + (nt * 2 + pm) * 4 + r
                e(f'v_add_f32 v{hv}, v{hv}, v{96+r}')
            for i in range(2):
                hv = H + (nt * 2 + pm) * 4 + 2 * i
                e(f'v_cvt_pk_bf16_f32 v{HP+nt*4+pm*2+i}, v{hv}, v{hv+1}')
        e(f'v_mov_b32 v{SQ+nt}, 0')
        for q in range(4):
            hp = HP + nt * 4 + q
            e(f'v_lshlrev_b32 v100, 16, v{hp}')
            e(f'v_and_b32 v101, s52, v{hp}')
            e(f'v_sub_f32 v100, v100, v{MEAN+nt}')
            e(f'v_sub_f32 v101, v101, v{MEAN+nt}')
            e(f'v_fma_f32 v{SQ+nt}, v100, v100, v{SQ+nt}')
            e(f'v_fma_f32 v{SQ+nt}, v101, v101, v{SQ+nt}')
            e(f'v_cvt_pk_bf16_f32 v{CP+nt*4+q}, v100, v101')
            wload(OPT['epi'])
    e('v_lshrrev_b32 v4, 1, v3')
    e('v_lshlrev_b32 v4, 10, v4')
    e('v_and_b32 v5, 1, v3')
    e('v_lshlrev_b32 v5, 9, v5')
    e('v_add_u32 v4, v4, v5')
    e('v_lshlrev_b32 v5, 4, v2')
    e('v_add_u32 v4, v4, v5')
    e(f's_mul_i32 s52, s{sB}, 28')
    e('s_lshl_b32 s53, s57, 1')
    e('s_add_u32 s52, s52, s53')
    e('s_lshl_b32 s52, s52, 10')
    ns, st = L('cnostore'), L('cstat')
    e('s_cmp_ge_u32 s56, 14')
    e(f's_cbranch_scc1 {ns}')
    e(f's_add_u32 s53, s52, 0x{HC_OFF:x}')
    e(f's_add_u32 s54, s52, 0x{HR_OFF:x}')
    for nt in range(2):
        e(f'buffer_store_dwordx4 {vr(CP+nt*4,4)}, v4, {SWS}, s53 offen offset:{256*nt} sc1')
        e(f'buffer_store_dwordx4 {vr(HP+nt*4,4)}, v4, {SWS}, s54 offen offset:{256*nt} sc1')
    e.label(ns)
    for nt in range(2): xsum_groups(e, SQ + nt, 102)
    e('s_cmp_lt_u32 s56, 14')
    e(f's_cbranch_scc1 {st}')
    e(f'v_mov_b32 v{SQ}, 0')
    e(f'v_mov_b32 v{SQ+1}, 0')
    e.label(st)
    e('v_cmp_le_u32 vcc, 16, v1')
    e(f'v_cndmask_b32 v{SQ}, v{SQ}, v{SQ+1}, vcc')
    e('v_lshlrev_b32 v5, 2, v1')
    e(f's_lshl_b32 s52, s{sB}, 11')
    e('s_lshl_b32 s53, s56, 7')
    e('s_add_u32 s52, s52, s53')
    e(f's_add_u32 s52, s52, 0x{ST2_OFF:x}')
    e('s_mov_b64 exec, 0xffffffff')
    last = e.vm(f'buffer_store_dword v{SQ}, v5, {SWS}, s52 offen sc1')
    e('s_mov_b64 exec, -1')
    stamp(e, 'C.stored')
    wload(OPT['post'])
    e.wait_vm(last)
    stamp(e, 'C.drained')
    signal(e, 2)
    global W13_PENDING
    W13_PENDING = (WG, wgi)

NV, NE = 27, 35
def w2reg(mi, s_):
    o = 2 * s_ + mi
    if o < NV: return vr(144 + 4 * o, 4), None
    if o < NE: return ar(224 + 4 * (o - NV), 4), None
    oo = o - NE
    return ar(((oo & 1) * 28 + (oo >> 1)) * 4, 4), (oo & 1, oo >> 1)

def hm_fill(e):
    skf = L('fill')
    e(f's_cmp_eq_u32 s{sW}, 0')
    e(f's_cbranch_scc1 {skf}')
    e(f's_cmp_ge_u32 s{sC}, 14')
    e(f's_cbranch_scc1 {skf}')
    for r in range(4): e(f'v_mov_b32 v{136+r}, -1')
    e('v_lshlrev_b32 v140, 4, v1')
    e(f's_lshl_b32 s52, s{sR}, 2')
    e('s_add_u32 s52, s52, 2')
    e('s_mul_i32 s52, s52, 112')
    e(f's_lshl_b32 s53, s{sC}, 3')
    e('s_add_u32 s52, s52, s53')
    for m in range(6):
        e(f's_add_u32 s53, s{sW}, {3*m - 1}')
        if m == 5:
            e('s_cmp_ge_u32 s53, 16')
            e(f's_cbranch_scc1 {skf}')
        e('s_lshr_b32 s54, s53, 3')
        e('s_mul_i32 s54, s54, 112')
        e('s_and_b32 s53, s53, 7')
        e('s_add_u32 s53, s53, s54')
        e('s_add_u32 s53, s53, s52')
        e('s_lshl_b32 s53, s53, 10')
        e(f's_add_u32 s53, s53, 0x{HM_OFF:x}')
        e(f'buffer_store_dwordx4 v[136:139], v140, {SWS}, s53 offen sc1')
    e.label(skf)

def phase_g(e):
    e.c('======== window 3 + G1')
    WG, wgi = W13_PENDING
    if OPT['sent'] and OPT['fillpos'] == 0: hm_fill(e)
    wtok = {}
    for _ in range(min(OPT['w3'], len(WG) - wgi[0])):
        wtok[wgi[0]] = emit_groups(e, [WG[wgi[0]]]); wgi[0] += 1
    e('v_lshlrev_b32 v4, 4, v1')
    e(f's_lshl_b32 s56, s{sC}, 3')
    e(f's_lshl_b32 s52, s{sW}, 1')
    e('s_add_u32 s56, s56, s52')
    e(f's_lshl_b32 s57, s{sR}, 2')
    e('s_and_b32 s58, s2, 7')
    e('s_lshr_b32 s59, s2, 3')
    e('s_mul_i32 s52, s59, 37')
    e('s_lshr_b32 s52, s52, 8')
    e('s_mul_i32 s53, s52, 7')
    e('s_sub_u32 s59, s59, s53')
    e('s_lshl_b32 s52, s52, 3')
    e('s_add_u32 s58, s58, s52')
    e(f's_mul_i32 s52, s{sW}, 28')
    e(f's_and_b32 s54, s{sW}, 1')
    for mi in range(2):
        e(f's_xor_b32 s53, s54, {mi}')
        e('s_lshl_b32 s55, s59, 1')
        e('s_add_u32 s53, s53, s55')
        e('s_mul_i32 s53, s53, 112')
        e('s_add_u32 s53, s53, s52')
        e('s_lshl_b32 s53, s53, 10')
        e(f's_add_u32 s{60+mi}, s53, 0x{W2_OFF:x}')
    e(f's_lshr_b32 s53, s{sW}, 1')
    e('s_lshl_b32 s53, s53, 4')
    e('v_xor_b32 v10, s53, v1')
    e('v_lshlrev_b32 v10, 4, v10')
    e('v_min_u32 v8, 13, v1')
    if OPT['map8']:
        e('v_lshlrev_b32 v8, 4, v8')
        e('s_lshr_b32 s53, s58, 1')
        e('v_add_u32 v8, s53, v8')
        e('v_mul_u32_u24 v9, 2341, v8')
        e('v_lshrrev_b32 v9, 16, v9')
        e('v_mul_u32_u24 v7, 28, v9')
        e('v_sub_u32 v8, v8, v7')
        e('v_lshlrev_b32 v8, 3, v8')
        e('v_add_u32 v8, v8, v9')
    else:
        e('v_lshrrev_b32 v9, 1, v8')
        e('v_and_b32 v8, 1, v8')
        e('v_lshlrev_b32 v8, 7, v8')
        e('v_add_u32 v8, v8, v9')
        e('s_lshr_b32 s53, s58, 1')
        e('s_lshl_b32 s53, s53, 3')
        e('v_add_u32 v8, s53, v8')
    e('v_lshlrev_b32 v8, 6, v8')
    def grp_off(dst, g):
        if not OPT['g2rot']: return [f's_mov_b32 s{dst}, {g*4096}']
        return [f's_add_u32 s{dst}, s59, {g}', f's_cmp_ge_u32 s{dst}, 7', f's_cselect_b32 s55, 7, 0',
                f's_sub_u32 s{dst}, s{dst}, s55', f's_lshl_b32 s{dst}, s{dst}, 12']
    def w2load(o):
        s_, mi = o >> 1, o & 1
        reg, dep = w2reg(mi, s_)
        pre = []
        if s_ % 4 == 0 and mi == 0:
            pre = grp_off(62, s_ // 4) + ['s_add_u32 s63, s61, s62', 's_add_u32 s62, s60, s62']
        return pre + [('vm', f'buffer_load_dwordx4 {reg}, v10, {SWS}, s{62+mi} offen offset:{(s_%4)*1024} sc1')]
    def idx0(e): idx(e, True)
    def idx(e, skipw=False):
        e('v_lshrrev_b32 v5, 2, v1')
        e('v_add_u32 v5, s57, v5')
        e('v_and_b32 v6, 7, v5')
        e('v_lshrrev_b32 v5, 3, v5')
        e('v_lshlrev_b32 v5, 5, v5')
        e('v_add_u32 v5, v5, v6')
        e('v_and_b32 v6, 3, v1')
        e('v_lshlrev_b32 v6, 3, v6')
        e('v_add_u32 v5, v5, v6')
        e('v_lshlrev_b32 v5, 6, v5')
        if not skipw: idxw(e, 16)
    def idxw(e, first):
        e(f'v_add_u32 v6, {208 if first == 16 else 224}, v1')
        e('v_lshlrev_b32 v6, 6, v6')
        if not OPT['p2park']: e(f'v_add_u32 v6, {2*0x40000}, v6')
        if first:
            e(f'v_cmp_le_u32 vcc, {first}, v1')
            e('v_cndmask_b32 v5, v5, v6, vcc')
        else:
            e('v_mov_b32 v5, v6')
    if OPT['t0split']:
        for i in range(7):
            e(f's_add_u32 s52, s{sW}, {4*i}')
            e('s_mul_i32 s53, s52, 37')
            e('s_lshr_b32 s53, s53, 8')
            e('s_mul_i32 s54, s53, 7')
            e('s_sub_u32 s54, s52, s54')
            e(f's_add_u32 s53, s53, s{sR}')
            e('s_and_b32 s53, s53, 3')
            e('s_mul_i32 s53, s53, 7')
            e('s_add_u32 s53, s53, s54')
            e('s_mul_i32 s54, s57, 28')
            e('s_add_u32 s53, s53, s54')
            e('s_lshl_b32 s53, s53, 10')
            e(f's_add_u32 s{64+i}, s53, 0x{HC_OFF:x}')
        e(f's_lshl_b32 s71, s{sW}, 10')
    e(f's_cmp_ge_u32 s{sC}, 14')
    e('s_cbranch_scc1 L_g2only')
    if OPT['p2mode'] == 1:
        poll(e, 4, 256, lambda e_: e_('v_lshlrev_b32 v5, 6, v1'), preg=232, bar=False)
        poll(e, 2, 16, idx0)
    elif OPT['p2park']:
        poll(e, 2, 16, idx0)
    else:
        poll(e, 2, 44, idx)
    stamp(e, 'G1.go')
    ACC, BR, RRG, T = 64, 16, 48, 128
    ST = 208
    dtok = {}
    e(f's_mul_i32 s96, s{sW}, 7168')
    e(f's_add_u32 s98, s{sR}, s{sW}')
    e('s_and_b32 s98, s98, 3')
    e('s_mul_i32 s98, s98, 7168')
    def hc_groups(nt):
        gs = []
        for i in range(7):
            g = []
            if i == 0:
                g += [f's_add_u32 s97, s57, {nt}', 's_mul_i32 s97, s97, 28672', 's_add_u32 s97, s97, s98', f's_add_u32 s97, s97, 0x{HC_OFF:x}']
            if i == 4: g += ['s_add_u32 s97, s97, 4096']
            if i in (0, 4): g += [f's_add_u32 m0, s96, {nt*28672 + (4096 if i == 4 else 0)}']
            g.append(('vm', f'buffer_load_dwordx4 v4, {SWS}, s97 offen offset:{(i%4)*1024} sc1 lds', ('hc', nt)))
            gs.append(g)
        return gs
    STK = []; STORES = []
    def emit_op(op):
        if isinstance(op, tuple) and op[0] == 'ds':
            STK.append(e.ds(op[1])); return None
        if isinstance(op, tuple) and op[0] == 'dswait':
            e.wait_ds(STK[op[1] * 8 + 7]); return None
        if isinstance(op, tuple):
            t = e.vm(op[1])
            if len(op) > 2:
                if op[2][0] == 'store': STORES.append(t)
                if op[2][0] == 'hc': dtok[op[2][1]] = t
                if op[2][0] == 'st': dtok['st'] = t
            return t
        e(op); return None
    if OPT['t0reg']:
        e('s_mul_i32 s97, s57, 28672')
        e('s_add_u32 s97, s97, s98')
        e(f's_add_u32 s97, s97, 0x{HC_OFF:x}')
        t0tok = []
        for i in range(7):
            if i == 4: e('s_add_u32 s97, s97, 4096')
            t0tok.append(e.vm(f'buffer_load_dwordx4 {vr(64+4*i,4)}, v4, {SWS}, s97 offen offset:{(i%4)*1024} sc1'))
    elif OPT['t0split']:
        t0d = []
        for i in range(7):
            e(f's_add_u32 m0, s71, {4096*i}')
            t0d.append(e.vm(f'buffer_load_dwordx4 v4, {SWS}, s{64+i} offen sc1 lds'))
    else:
        for g in hc_groups(0):
            for op in g: emit_op(op)
    e(f's_add_u32 s54, s57, s{sW}')
    e('s_lshl_b32 s54, s54, 11')
    e(f's_add_u32 s54, s54, 0x{ST2_OFF:x}')
    e(f's_lshl_b32 s55, s{sW}, 11')
    if OPT['t0reg']:
        e(f's_add_u32 s55, s55, {LDS_STATS}')
        e('v_add_u32 v12, s55, v4')
        t0tok.append(e.vm(f'buffer_load_dwordx4 v[92:95], v4, {SWS}, s54 offen sc1'))
        t0tok.append(e.vm(f'buffer_load_dwordx4 v[96:99], v4, {SWS}, s54 offen offset:1024 sc1'))
        dtok[0] = t0tok[-1]
    else:
        e(f's_add_u32 m0, s55, {LDS_STATS}')
        e.vm(f'buffer_load_dwordx4 v4, {SWS}, s54 offen sc1 lds')
        dtok[0] = e.vm(f'buffer_load_dwordx4 v4, {SWS}, s54 offen offset:1024 sc1 lds')
    while wgi[0] < len(WG):
        wtok[wgi[0]] = emit_groups(e, [WG[wgi[0]]]); wgi[0] += 1
    e('v_add_u32 v6, 57344, v4')
    e('v_and_b32 v5, 31, v1')
    e('v_lshlrev_b32 v5, 2, v5')
    e('v_lshrrev_b32 v7, 5, v1')
    e('v_lshlrev_b32 v7, 10, v7')
    e('v_add_u32 v5, v5, v7')
    e(f'v_add_u32 v5, {LDS_STATS}, v5')
    def stat_ops():
        ops = []
        for nt in range(4):
            b0 = ST + nt * 8
            for i in range(8): ops.append(('ds', f'ds_read_b32 v{b0+i}, v5 offset:{nt*2048 + i*128}'))
        for nt in range(4):
            b0 = ST + nt * 8
            ops.append(('dswait', nt))
            ops += [f'v_add_f32 v{b0}, v{b0}, v{b0+1}', f'v_add_f32 v{b0+2}, v{b0+2}, v{b0+3}', f'v_add_f32 v{b0+4}, v{b0+4}, v{b0+5}',
                    f'v_add_f32 v{b0+6}, v{b0+6}, v{b0+7}', f'v_add_f32 v{b0}, v{b0}, v{b0+2}', f'v_add_f32 v{b0+4}, v{b0+4}, v{b0+6}',
                    f'v_add_f32 v{b0}, v{b0}, v{b0+4}', f'v_mov_b32 v{b0+1}, v{b0}', f'v_mov_b32 v7, {lit(1e-5)}',
                    f'v_permlane32_swap_b32 v{b0+1}, v{b0}', f'v_add_f32 v{b0}, v{b0}, v{b0+1}',
                    f'v_fmamk_f32 v{RRG+4+nt}, v{b0}, {lit(1.0/448)}, v7', f'v_rsq_f32 v{b0}, v{RRG+4+nt}', 's_nop 0',
                    f'v_mul_f32 v{RRG+nt}, {lit(-1.4426950408889634)}, v{b0}']
        return ops
    def epi_half(nt, mi):
        ops = []
        a = ACC + ((nt & 1) * 2 + mi) * 16
        T0 = T
        for r in range(8): ops.append(f'v_mul_f32 v{T0+r}, v{a+r}, v{RRG+nt}')
        for r in range(8):
            ops.append(f'v_exp_f32 v{T0+r}, v{T0+r}')
            ops.append(f'v_mul_f32 v{T0+8+r}, v{a+r}, v{a+8+r}')
        for r in range(8): ops.append(f'v_fma_f32 v{T0+r}, v{T0+r}, v{RRG+4+nt}, v{RRG+4+nt}')
        for r in range(8): ops.append(f'v_rcp_f32 v{T0+r}, v{T0+r}')
        for r in range(8): ops.append(f'v_mul_f32 v{T0+8+r}, v{T0+8+r}, v{T0+r}')
        P = 56 + mi * 4
        for i in range(4): ops.append(f'v_cvt_pk_bf16_f32 v{P+i}, v{T0+8+2*i}, v{T0+8+2*i+1}')
        ops.append(f's_add_u32 s53, s99, {nt*112*1024 + mi*1024}')
        ops.append(('vm', f'buffer_store_dwordx4 {vr(P,4)}, v4, {SWS}, s53 offen sc1', ('store',)))
        return ops
    def epi_ops(nt): return epi_half(nt, 0) + epi_half(nt, 1)
    e('s_mul_i32 s99, s57, 112')
    e('s_add_u32 s99, s99, s56')
    e('s_lshl_b32 s99, s99, 10')
    e(f's_add_u32 s99, s99, 0x{HM_OFF:x}')
    n1 = OPT['w2t1']
    bg = {0: hc_groups(1) + hc_groups(2), 1: hc_groups(3) + [w2load(o) for o in range(0, n1)],
          2: [w2load(o) for o in range(n1, NE)], 3: []}
    if OPT['sent'] and OPT['fillpos'] in (1, 2):
        for r in range(4): e(f'v_mov_b32 v{12+r}, -1')
        fills = [[f's_add_u32 s53, s99, {nt*112*1024 + mi*1024}', ('vm', f'buffer_store_dwordx4 v[12:15], v4, {SWS}, s53 offen sc1')]
                 for nt in (2, 3) for mi in range(2)]
        if OPT['fillpos'] == 1: bg[0] = bg[0] + fills
        elif OPT['fillpos'] == 2: bg[1] = bg[1][:7] + fills + bg[1][7:]
    last_store = None
    next_late = NE
    def g2_bases(em):
        em('s_lshr_b32 s52, s58, 1')
        em('s_lshl_b32 s52, s52, 2')
        em('s_and_b32 s53, s58, 1')
        em('s_add_u32 s100, s52, s53')
        em('s_sub_u32 s101, s52, s53')
        em('s_add_u32 s101, s101, 3')
        em(f's_mul_i32 s52, s{sW}, 28')
        for k in range(2):
            em(f's_mul_i32 s53, s{100+k}, 112')
            em('s_add_u32 s53, s53, s52')
            em('s_lshl_b32 s53, s53, 10')
            em(f's_add_u32 s{88+k}, s53, 0x{HM_OFF:x}')
    g2_bases(e)
    RING = 64
    rtok = {}
    def ring_load(ph, i):
        if i % 4 == 0: e(f's_add_u32 s90, s{88+ph}, {i*1024}')
        rtok[(ph, i)] = e.vm(f'buffer_load_dwordx4 {vr(RING+(i%8)*4,4)}, v4, {SWS}, s90 offen offset:{(i%4)*1024} sc1')
    def early_check(tok_, addr=8):
        dn, lp = L('ec'), L('ec')
        e(f's_mov_b32 s{sSPIN}, 0')
        e.label(lp)
        if tok_ is None:
            e(f'buffer_load_dword v9, v{addr}, {SWS}, s91 offen sc1')
            e('s_waitcnt vmcnt(0)')
        e(f'v_cmp_ne_u32 vcc, s{sNONCE}, v9')
        e('s_nop 4')
        e(f's_cbranch_vccz {dn}')
        if tok_ is not None:
            e(f'buffer_load_dword v9, v{addr}, {SWS}, s91 offen sc1')
            e('s_waitcnt vmcnt(0)')
        e(f's_add_u32 s{sSPIN}, s{sSPIN}, 1')
        e(f's_cmp_lt_u32 s{sSPIN}, {MAXSPIN}')
        e(f's_cbranch_scc1 {lp}')
        e.label(dn)
    etok = None
    for nt in range(4):
        if nt == 0 and OPT['t0reg']:
            e('v_add_u32 v13, s96, v4')
            for i in range(7):
                e.wait_vm(t0tok[i])
                e.ds(f'ds_write_b128 v13, {vr(64+4*i,4)} offset:{i*1024}')
            e.wait_vm(t0tok[8])
            e.ds('ds_write_b128 v12, v[92:95]')
            e.ds('ds_write_b128 v12, v[96:99] offset:1024')
            e.wait_ds_all()
        if nt == 0 and OPT['t0split']: e.wait_vm(t0d[1])
        else: e.wait_vm(dtok[nt])
        if nt == 1 and OPT['p2park']:
            e.wait_vm(wtk)
            early_check(wtk, addr=11)
        e.barrier()
        if nt == 0:
            stamp(e, 'G1.t0'); rstamp(e, 'rt_g1a')
        fill = epi_ops(nt - 1) if nt > 0 else stat_ops()
        sttok = []
        fi = 0; gi = 0
        btok = {}
        n = [0]
        def issue():
            kap = n[0]
            base = 'v4' if nt < 2 else 'v6'
            off = ((nt & 1) * 28 + kap) * 1024
            btok[kap] = e.ds(f'ds_read_b128 {vr(BR+(kap%8)*4,4)}, {base} offset:{off}')
            n[0] += 1
        for _ in range(5): issue()
        nm = 0
        G_ = bg[nt]
        for kap in range(28):
            if nt == 0 and OPT['t0split'] and kap in (3, 11):
                e.wait_vm(t0d[3] if kap == 3 else dtok[0])
                e.barrier()
            e.wait_ds(btok[kap])
            for mi in range(2):
                a = ACC + ((nt & 1) * 2 + mi) * 16
                if nt == 0 and (kap * 2 + mi) in wtok: e.wait_vm(wtok[kap * 2 + mi])
                e(f'v_mfma_f32_32x32x16_bf16 {vr(a,16)}, {ar((mi*28+kap)*4,4)}, {vr(BR+(kap%8)*4,4)}, {"0" if kap == 0 else vr(a,16)}')
                nm += 1
                if mi == 0 and n[0] < 28: issue()
                span = 24 if nt == 3 else 56
                want = (len(G_) * nm + span - 1) // span
                while gi < min(want, len(G_)):
                    for op in G_[gi]: emit_op(op)
                    gi += 1
                if nt == 3 and gi >= len(G_) and nm * 21 >= (next_late - NE + 1) * OPT['latesp'] and next_late < 56:
                    dep = w2reg(next_late & 1, next_late >> 1)[1]
                    if dep[1] * 2 + dep[0] < nm:
                        for op in w2load(next_late): emit_op(op)
                        next_late += 1
                if nt == 0 and nm == 28 and OPT['p2park']:
                    e('v_min_u32 v9, 27, v1')
                    e('v_add_u32 v9, 224, v9')
                    e('v_lshlrev_b32 v11, 6, v9')
                    e(f's_add_u32 s91, s{sREP}, 0x{FL_OFF + 2*0x40000:x}')
                    wtk = e.vm(f'buffer_load_dword v9, v11, {SWS}, s91 offen sc1')
                if nt == 3 and nm == OPT['eflag']:
                    e.wait_vm(STORES[3])
                    e.barrier()
                    flag_store(e, 5)
                if nt == 3 and nm == OPT['epoll'] and (OPT['sent'] or OPT['g2mode'] == 2):
                    e(f's_add_u32 s91, s{sREP}, 0x{FL_OFF + 5*0x40000:x}')
                    etok = e.vm(f'buffer_load_dword v9, v8, {SWS}, s91 offen sc1')
                f0 = 24 if (nt == 0 and OPT['t0split']) else 3
                if nm > f0:
                    fs = OPT['fspan'] if nt == 2 else (53 - f0)
                    want = (len(fill) * (nm - f0) + fs - 1) // fs
                    while fi < min(want, len(fill)):
                        t = emit_op(fill[fi]); fi += 1
        while fi < len(fill):
            emit_op(fill[fi]); fi += 1
        stamp(e, f'G1.tile{nt}')
    for op in epi_ops(3):
        t = emit_op(op)
        if isinstance(op, tuple): last_store = t
    stamp(e, 'G1.stored'); rstamp(e, 'rt_g1b')
    assert next_late == 56
    def ring_raw():
        for i in range(8):
            if i % 4 == 0: e(f's_add_u32 s90, s88, {i*1024}')
            e(f'buffer_load_dwordx4 {vr(RING+i*4,4)}, v4, {SWS}, s90 offen offset:{(i%4)*1024} sc1')
    if OPT['sent']:
        e('s_cmp_ge_u32 s2, 224')
        e('s_cbranch_scc1 L_fin')
        e.wait_vm(etok)
        early_check(etok)
        e('s_branch L_g2')
    elif OPT['g2mode'] == 2:
        slow = L('g2slow')
        e('s_cmp_ge_u32 s2, 224')
        e(f's_cbranch_scc1 {slow}')
        e.wait_vm(etok)
        e(f'v_cmp_ne_u32 vcc, s{sNONCE}, v9')
        e('s_nop 4')
        e(f's_cbranch_vccnz {slow}')
        ring_raw()
        e('s_waitcnt vmcnt(8)')
        signal(e, 3)
        e('s_branch L_g2')
        e.label(slow)
        e('s_waitcnt vmcnt(0)')
        signal(e, 3)
        e('s_cmp_ge_u32 s2, 224')
        e('s_cbranch_scc1 L_fin')
        e('s_branch L_g2late')
    else:
        skr, skr2 = L('nog2'), L('nog2')
        e('s_cmp_ge_u32 s2, 224')
        e(f's_cbranch_scc1 {skr}')
        e(f's_add_u32 s91, s{sREP}, 0x{FL_OFF + 5*0x40000:x}')
        e(f'buffer_load_dword v9, v8, {SWS}, s91 offen sc1')
        e.label(skr)
        e('s_waitcnt vmcnt(0)')
        e.vm_done = e.vm_issued
        stamp(e, 'G1.drained')
        signal(e, 3)
        e('s_cmp_ge_u32 s2, 224')
        e('s_cbranch_scc1 L_fin')
        early_check(0)
        e('s_branch L_g2')
    e.label('L_g2only')
    e('s_cmp_ge_u32 s2, 224')
    e('s_cbranch_scc1 L_fin')
    if OPT['p2mode'] == 1: poll(e, 4, 256, lambda e_: e_('v_lshlrev_b32 v5, 6, v1'), preg=232)
    else: poll(e, 2, 28, lambda e_: idxw(e_, 0))
    for o in range(56):
        for op in w2load(o): e(op[1] if isinstance(op, tuple) else op)
    g2_bases(e)
    e.label('L_g2late')
    e(f's_add_u32 s91, s{sREP}, 0x{FL_OFF + 5*0x40000:x}')
    early_check(None)
    if OPT['g2mode'] == 2 and not OPT['sent']: ring_raw()
    e.label('L_g2')
    if OPT['g2mode'] == 2 and not OPT['sent']:
        e.vm_done = e.vm_issued
        for i in range(8):
            e.vm_issued += 1; rtok[(0, i)] = e.vm_issued
    elif not OPT['sent']:
        for i in range(8): ring_load(0, i)
    e.c('======== G2')
    ACC2, R0, HRR = 16, 96, 140
    e(f's_and_b32 s60, s{sW}, 1')
    e('s_lshl_b32 s53, s59, 1')
    e('s_add_u32 s60, s60, s53')
    e(f's_lshr_b32 s61, s{sW}, 1')
    for k in range(3):
        e(f's_xor_b32 s52, s{sW}, {k+1}')
        e('s_mul_i32 s52, s52, 6144')
        e(f'v_add_u32 v{11+k}, s52, v4')
    e(f's_mul_i32 s52, s{sW}, 6144')
    e('v_add_u32 v133, s52, v4')
    e('v_and_b32 v5, 31, v1')
    e('v_mul_u32_u24 v5, %d, v5' % (64 * 896))
    e('v_lshrrev_b32 v6, 5, v1')
    e('v_mul_u32_u24 v6, 448, v6')
    e('v_add_u32 v132, v5, v6')
    HR_ = {0: 140, 1: 136}
    def accreg(ph, mi, off=0, n=16):
        return vr(ACC2 + mi * 16 + off, n) if ph == 0 else ar(80 + mi * 16 + off, n)
    def hr_load(ph):
        e(f's_mul_i32 s52, s{100+ph}, 28')
        e('s_lshl_b32 s53, s60, 1')
        e('s_add_u32 s52, s52, s53')
        e('s_add_u32 s52, s52, s61')
        e('s_lshl_b32 s52, s52, 10')
        e(f's_add_u32 s52, s52, 0x{HR_OFF:x}')
        return e.vm(f'buffer_load_dwordx4 {vr(HR_[ph],4)}, v4, {SWS}, s52 offen sc1')
    def tail_ops(ph, htok):
        ops = []
        for k, (mi, rh) in enumerate(((1, 0), (0, 1), (1, 1))):
            for qd in range(2):
                ops.append(('ds', f'ds_write_b128 v{11+k}, {accreg(ph, mi, rh*8 + qd*4, 4)} offset:{ph*24576 + k*2048 + qd*1024}'))
        ops.append(('dswaitall',))
        ops.append('s_barrier')
        for k in range(3):
            for qd in range(2):
                ops.append(('ds', f'ds_read_b128 {vr(R0+k*8+qd*4,4)}, v133 offset:{ph*24576 + k*2048 + qd*1024}'))
        if ph == 1:
            for r in range(8): ops.append(f'v_accvgpr_read_b32 v{ACC2+r}, a{80+r}')
        ops.append(('dswaitall',))
        for r in range(8):
            ops.append(f'v_add_f32 v{R0+r}, v{R0+r}, v{R0+8+r}')
            ops.append(f'v_add_f32 v{R0+16+r}, v{R0+16+r}, v{ACC2+r}')
        for r in range(8): ops.append(f'v_add_f32 v{R0+r}, v{R0+r}, v{R0+16+r}')
        ops.append(('vmwait', htok))
        PK, O = 120, 124
        for i in range(4): ops.append(f'v_cvt_pk_bf16_f32 v{PK+i}, v{R0+2*i}, v{R0+2*i+1}')
        for i in range(4):
            ops += [f'v_lshlrev_b32 v128, 16, v{PK+i}', f'v_and_b32 v129, s87, v{PK+i}', f'v_lshlrev_b32 v130, 16, v{HR_[ph]+i}',
                    f'v_and_b32 v131, s87, v{HR_[ph]+i}', 'v_add_f32 v128, v128, v130', 'v_add_f32 v129, v129, v131',
                    f'v_cvt_pk_bf16_f32 v{O+i}, v128, v129']
        ops += [f'v_permlane32_swap_b32 v{O}, v{O+2}', f'v_permlane32_swap_b32 v{O+1}, v{O+3}']
        ops += ['s_lshl_b32 s52, s60, 5', 's_lshl_b32 s53, s61, 4', 's_add_u32 s52, s52, s53', f's_mul_i32 s53, s{100+ph}, 896', 's_add_u32 s52, s52, s53']
        om = ['', ' sc1', ' nt', ' sc0 sc1'][OPT['outmod']]
        ops.append(('vm', f'buffer_store_dwordx4 {vr(O,4)}, v132, {SOUT}, s52 offen{om}'))
        return ops
    def run_op(op):
        if isinstance(op, tuple):
            if op[0] == 'ds': e.ds(op[1])
            elif op[0] == 'dswaitall': e.wait_ds_all()
            elif op[0] == 'vmwait': e.wait_vm(op[1])
            elif op[0] == 'vm': e.vm(op[1])
        else: e(op)
    e('s_mov_b32 s87, 0xffff0000')
    fill = []; fi = 0
    SENT = OPT['sent']
    NS = 12 if SENT else 8
    RB = 48 if SENT else RING
    def rreg(tau): return RB + (tau % NS) * 4
    def rl(tau):
        ph_, i_ = divmod(tau, 28)
        if i_ % 4 == 0: e(f's_add_u32 s90, s{88+ph_}, {i_*1024}')
        rtok[tau] = e.vm(f'buffer_load_dwordx4 {vr(rreg(tau),4)}, v4, {SWS}, s90 offen offset:{(i_%4)*1024} sc1')
    def check_group(t0):
        e.wait_vm(rtok[t0 + 3])
        lp, ok = L('sg'), L('sg')
        e(f's_mov_b32 s{sSPIN}, 0')
        e.label(lp)
        r0 = rreg(t0)
        e(f'v_max3_u32 v9, v{r0}, v{r0+1}, v{r0+2}')
        regs = [r0 + 3] + [rreg(t0 + k) + d for k in range(1, 4) for d in range(4)]
        for k in range(0, 12, 2): e(f'v_max3_u32 v9, v9, v{regs[k]}, v{regs[k+1]}')
        e(f'v_max_u32 v9, v9, v{regs[12]}')
        e('v_cmp_eq_u32 vcc, -1, v9')
        e('s_nop 4')
        e(f's_cbranch_vccz {ok}')
        last = min(56, issued[0])
        for t in range(t0, last):
            i_ = t - 28
            if i_ % 4 == 0: e(f's_add_u32 s91, s89, {i_*1024}')
            e(f'buffer_load_dwordx4 {vr(rreg(t),4)}, v4, {SWS}, s91 offen offset:{(i_%4)*1024} sc1')
        e('s_waitcnt vmcnt(0)')
        e(f's_add_u32 s{sSPIN}, s{sSPIN}, 1')
        e(f's_cmp_lt_u32 s{sSPIN}, {MAXSPIN}')
        e(f's_cbranch_scc1 {lp}')
        e.label(ok)
    issued = [0]
    if SENT:
        for t in range(NS): rl(t)
        issued[0] = NS
    else:
        for i in range(8): rtok[i] = rtok[(0, i)]
    htok = {0: hr_load(0)}
    for tau in range(56):
        ph, i = divmod(tau, 28)
        e.wait_vm(rtok[tau])
        if tau == 0: stamp(e, 'G2.first')
        for mi in range(2):
            e(f'v_mfma_f32_32x32x16_bf16 {accreg(ph, mi)}, {w2reg(mi,i)[0]}, {vr(rreg(tau),4)}, {"0" if i == 0 else accreg(ph, mi)}')
        if not SENT:
            if tau == OPT['lpoll']:
                e(f's_add_u32 s91, s{sREP}, 0x{FL_OFF + 3*0x40000:x}')
                ltok = e.vm(f'buffer_load_dword v9, v8, {SWS}, s91 offen sc1')
            if tau + 8 == 28:
                e.wait_vm(ltok)
                early_check(ltok)
                stamp(e, 'G2.go')
        if tau + NS < 56:
            rl(tau + NS); issued[0] = tau + NS + 1
        if SENT and tau >= 26 and (tau + 2) % 4 == 0 and tau + 2 < 56:
            check_group(tau + 2)
            if tau == 26: stamp(e, 'G2.go')
        if tau == 28:
            htok[1] = hr_load(1)
            fill = tail_ops(0, htok[0])
        if tau == 27: stamp(e, 'G2.mfma0')
        if tau > 28:
            want = (len(fill) * (tau - 28) + 23) // 24
            while fi < min(want, len(fill)):
                run_op(fill[fi]); fi += 1
    while fi < len(fill):
        run_op(fill[fi]); fi += 1
    stamp(e, 'G2.mfma1')
    for op in tail_ops(1, htok[1]): run_op(op)
    stamp(e, 'G2.end')

DBGOUT = False
def dbg_out(e):
    sk = L('dbo')
    e('s_waitcnt vmcnt(0)')
    e('s_memrealtime s[84:85]')
    e('s_memtime s[90:91]')
    e('s_waitcnt lgkmcnt(0)')
    e(f's_cmp_lg_u32 s{sW}, 0')
    e(f's_cbranch_scc1 {sk}')
    e('s_and_b32 s52, s2, 63')
    e('s_cmp_lg_u32 s52, 0')
    e(f's_cbranch_scc1 {sk}')
    e('s_lshr_b32 s52, s2, 6')
    e('s_lshl_b32 s52, s52, 4')
    e('s_add_u32 s52, s52, 16')
    e('s_sub_u32 s53, s84, s86')
    e('s_sub_u32 s54, s90, s82')
    e('v_mov_b32 v4, s53'); e('v_mov_b32 v5, s54'); e('v_mov_b32 v6, s86'); e('v_mov_b32 v7, s84')
    e('v_mov_b32 v8, 0')
    e('s_mov_b64 exec, 1')
    e(f'buffer_store_dwordx4 v[4:7], v8, {SDBG}, s52 offen sc1')
    e('s_mov_b64 exec, -1')
    e.label(sk)

def probe(e):
    sk = L('prb'); lp = L('prl')
    e('s_cmp_lg_u32 s2, 0')
    e(f's_cbranch_scc1 {sk}')
    e('s_waitcnt vmcnt(0)')
    e('s_memrealtime s[84:85]')
    e('s_waitcnt lgkmcnt(0)')
    e('s_sub_u32 s84, s84, s86')
    e(f's_cmp_lt_u32 s84, {OPT["probe"]}')
    e(f's_cbranch_scc1 {sk}')
    e('s_mov_b32 s85, 0')
    e.label(lp)
    e('s_sleep 64')
    e('s_add_u32 s85, s85, 1')
    e('s_cmp_lt_u32 s85, 20')
    e(f's_cbranch_scc1 {lp}')
    e.label(sk)

def diag_dump(e):
    if OPT['probe']: probe(e)
    if DBGOUT: dbg_out(e)
    if not DIAG: return
    e.wait_vm_all()
    rstamp(e, 'rt_end')
    e('s_lshl_b32 s52, s2, 2')
    e(f's_add_u32 s52, s52, s{sW}')
    e('s_lshl_b32 s52, s52, 8')
    e(f's_add_u32 s52, s52, 0x{DIAG_OFF:x}')
    e('v_lshlrev_b32 v4, 2, v1')
    e(f'buffer_store_dword v255, v4, {SWS}, s52 offen')

def kernel():
    e = Emit()
    e.label(KN)
    e('s_cmp_ge_u32 s2, 256')
    e('s_cbranch_scc1 L_end')
    e('s_load_dwordx16 s[64:79], s[0:1], 0')
    e('s_load_dwordx4 s[80:83], s[0:1], 64')
    e('s_memrealtime s[86:87]')
    if OPT['cpf'] == 5: code_prefetch_entry(e)
    if DBGOUT: e('s_memtime s[82:83]')
    if DIAG: e('v_mov_b32 v255, 0')
    e('v_lshrrev_b32 v4, 6, v0')
    e('v_and_b32 v1, 63, v0')
    e(f'v_readfirstlane_b32 s{sW}, v4')
    e('v_and_b32 v2, 15, v0')
    e('v_bfe_u32 v3, v0, 4, 2')
    e(f's_and_b32 s{sB}, s2, 7')
    e('s_lshr_b32 s52, s2, 5')
    e('s_lshl_b32 s52, s52, 3')
    e(f's_add_u32 s{sB}, s{sB}, s52')
    e(f's_lshr_b32 s{sGRP}, s2, 3')
    e(f's_and_b32 s{sGRP}, s{sGRP}, 3')
    if OPT['map8']:
        e('s_and_b32 s52, s2, 7')
        e('s_mul_i32 s52, s52, 28')
        e('s_lshr_b32 s53, s2, 3')
        e('s_add_u32 s52, s52, s53')
        e(f's_and_b32 s{sR}, s52, 15')
        e(f's_lshr_b32 s{sC}, s52, 4')
        e('s_cmp_ge_u32 s2, 224')
        e(f's_cselect_b32 s{sC}, 14, s{sC}')
    else:
        e('s_lshr_b32 s52, s2, 3')
        e(f's_and_b32 s{sR}, s52, 15')
        e('s_lshr_b32 s52, s52, 4')
        e(f's_and_b32 s{sC}, s2, 7')
        e(f's_lshl_b32 s{sC}, s{sC}, 1')
        e(f's_add_u32 s{sC}, s{sC}, s52')
    e(f's_getreg_b32 s{sREP}, hwreg(HW_REG_XCC_ID, 0, 3)')
    e(f's_lshl_b32 s{sREP}, s{sREP}, 14')
    e(f's_mov_b32 s{sNONCE}, 0')
    phase_a_pre(e)
    e('s_waitcnt lgkmcnt(0)')
    srd(e, S_X, 64, 1835008)
    phase_a_loads(e)
    if OPT['wsoff']:
        e(f's_add_u32 s82, s82, 0x{OPT["wsoff"]*0x100000:x}')
        e('s_addc_u32 s83, s83, 0')
    srd(e, S_WS, 82, WS_SIZE)
    srd(e, S_WR, 66, 2048 * 450)
    srd(e, S_WI, 68, 2048 * 450)
    srd(e, S_W1, 72, 448 * 3584)
    srd(e, S_W3, 74, 448 * 3584)
    srd(e, S_W2, 76, 1792 * 896)
    srd(e, S_OUT, 78, 1835008)
    srd(e, S_DBG, 80, 256)
    e('s_cmp_ge_u32 s2, 224')
    e(f's_cselect_b32 s{S_W1+2}, 0, s{S_W1+2}')
    e(f's_cselect_b32 s{S_W3+2}, 0, s{S_W3+2}')
    if DIAG:
        STAMPS.append('rt_start'); _stamp_n[0] += 1
        e('v_writelane_b32 v255, s86, 0')
    stamp(e, 'start')
    sk = L('nononce')
    e(f's_or_b32 s52, s2, s{sW}')
    e('s_cmp_lg_u32 s52, 0')
    e(f's_cbranch_scc1 {sk}')
    e('s_or_b32 s52, s86, 1')
    e('v_mov_b32 v4, s52')
    e('v_mov_b32 v5, 0')
    e('s_mov_b64 exec, 1')
    e(f'buffer_store_dword v4, v5, {SDBG}, 0 offen sc1')
    e('s_mov_b64 exec, -1')
    e.label(sk)
    phase_a(e)
    if OPT['sent'] and OPT['fillpos'] == 4: hm_fill(e)
    p2l, joinl, join2 = L('p2'), L('join'), L('join')
    e('s_cmp_ge_u32 s2, 224')
    e(f's_cbranch_scc1 {p2l}')
    sv_ds = (e.ds_issued, e.ds_done)
    phase_b(e)
    e(f's_branch {joinl}')
    e.label(p2l)
    signal(e, 1)
    if OPT['p2mode'] == 0:
        phase_p2(e)
        if not OPT['p2park']: signal(e, 4)
    else:
        e('s_sub_u32 s52, s2, 224')
        e('s_mul_i32 s52, s52, 50176')
        e('v_lshlrev_b32 v4, 4, v0')
        for i in range(13):
            e(f's_add_u32 s53, s52, {i*4096}')
            e(f'buffer_load_dwordx4 a[32:35], v4, {SW2}, s53 offen')
        gen_TC(e)
        gen_G(e)
    e(f's_branch {join2}')
    e.label(joinl)
    signal(e, 1)
    if OPT['p2mode'] == 1:
        e.vm_issued = e.vm_done = 0
        p2_loads(e)
        gen_TC(e)
        e.wait_vm_all()
        p2_finish(e)
        stamp(e, 'W2.pfin')
    else:
        gen_TC(e)
    if OPT['p1slot'] or not OPT['gslot']: gen_G(e)
    e.label(join2)
    if OPT['sent'] and OPT['fillpos'] == 3: hm_fill(e)
    e.vm_issued = 0; e.vm_done = 0
    phase_c(e)
    phase_g(e)
    e.label('L_fin')
    diag_dump(e)
    e.label('L_end')
    e('s_endpgm')
    return e.out

def build():
    hdr = open('cdna_kernels/' + NAME + '.s.ref').read().split('; Override launch')[0]
    body = kernel()
    body, nn = hazard_pass(body)
    print(f'; {len(body)} lines, {nn} nops inserted', file=sys.stderr)
    lines = [hdr.rstrip('\n'),
             f'; @launch grid=(256,1,1) block=(256,1,1) lds={LDS_BYTES}',
             '.amdgcn_target "amdgcn-amd-amdhsa--gfx950"', '.text', f'.globl {KN}', '.p2align 8', f'.type {KN},@function']
    for ln in body: lines.append(ln if ln.endswith(':') else '    ' + ln)
    lines += ['.section .rodata,"a"', '.p2align 6', f'.amdhsa_kernel {KN}',
              '  .amdhsa_next_free_vgpr 512', '  .amdhsa_next_free_sgpr 102', '  .amdhsa_accum_offset 256',
              '  .amdhsa_group_segment_fixed_size 0', '  .amdhsa_kernarg_size 80', '  .amdhsa_user_sgpr_count 2',
              '  .amdhsa_user_sgpr_kernarg_segment_ptr 1', '  .amdhsa_system_sgpr_workgroup_id_x 1',
              '  .amdhsa_float_denorm_mode_32 3', '.end_amdhsa_kernel']
    return '\n'.join(lines) + '\n'

if __name__ == '__main__':
    for a in list(sys.argv):
        if a.startswith('--opt='):
            for kv in a[6:].split(','):
                k, v = kv.split('='); OPT[k] = int(v)
            sys.argv.remove(a)
    if '--dbgout' in sys.argv:
        DBGOUT = True; sys.argv.remove('--dbgout')
    if '--diag' in sys.argv:
        DIAG = True; sys.argv.remove('--diag')
    out = sys.argv[1] if len(sys.argv) > 1 else 'cdna_kernels/' + NAME + '.s'
    open(out, 'w').write(build())
    if DIAG:
        import json; json.dump(STAMPS, open(out + '.stamps.json', 'w'))
    print('written', out, file=sys.stderr)
```

```python
import sys, struct
from asmlib import Emit, hazard_pass

NAME = "sequential_preLN__spectral_gfnet__glu_gated_swiglu__prompt"
KN = NAME + "_kernel"

T1_OFF  = 0x000000
T2_OFF  = 0x200000
HC_OFF  = 0x400000
HR_OFF  = 0x600000
ST1_OFF = 0x800000
ST2_OFF = 0x810000
W13_OFF = 0x900000
W2_OFF  = 0xD00000
HM_OFF  = 0x1000000
FL_OFF  = 0x1800000
DIAG_OFF = 0x1A00000
WS_SIZE = 0x1C00000
LDS_STAGE = 32768
LDS_STATS = 114688
LDS_BYTES = 114688 + 8192
MAXSPIN = 100000

DIAG = False
OPT = dict(st1=3, st2=6, epi=1, post=8, w3=16, cpf=5, outmod=0, probe=0, pdepth=1, g2rot=0, wsoff=0, eflag=16, epoll=46, fspan=40, w2t1=14, latesp=52, g2mode=1, lpoll=8, p1slot=0, early=0, wpf=2, p2mode=0, w2pf=0, p2park=1, gslot=1, tlb=0, sent=0, fillpos=1, map8=0, t0reg=0, t0split=1, xnew=1, stream=0, span0=36)
def f2u(x): return struct.unpack('<I', struct.pack('<f', x))[0]
def lit(x): return '0x%08x' % f2u(x)
def vr(a, n=1): return f'v{a}' if n == 1 else f'v[{a}:{a+n-1}]'
def ar(a, n=1): return f'a{a}' if n == 1 else f'a[{a}:{a+n-1}]'

S_X, S_WS, S_WR, S_WI, S_W1, S_W3, S_W2, S_OUT, S_DBG = 8, 12, 16, 20, 24, 28, 32, 36, 40
SX, SWS, SWR, SWI, SW1, SW3, SW2, SOUT, SDBG = [f's[{a}:{a+3}]' for a in (8, 12, 16, 20, 24, 28, 32, 36, 40)]
sW, sB, sGRP, sNONCE, sREP = 44, 45, 46, 47, 48
sR, sC, sSPIN = 49, 50, 51

def srd(e, d, ptr, size):
    e(f's_mov_b32 s{d}, s{ptr}')
    e(f's_and_b32 s{d+1}, s{ptr+1}, 0xffff')
    e(f's_mov_b32 s{d+2}, 0x{size:x}')
    e(f's_mov_b32 s{d+3}, 0x20000')

_stamp_n = [0]
STAMPS = []
def stamp(e, name):
    if not DIAG: return
    i = _stamp_n[0]; _stamp_n[0] += 1; STAMPS.append(name)
    e('s_memtime s[84:85]')
    e('s_waitcnt lgkmcnt(0)')
    e(f'v_writelane_b32 v255, s84, {i}')
def rstamp(e, name):
    if not DIAG: return
    i = _stamp_n[0]; _stamp_n[0] += 1; STAMPS.append(name)
    e('s_memrealtime s[84:85]')
    e('s_waitcnt lgkmcnt(0)')
    e(f'v_writelane_b32 v255, s84, {i}')

def xsum_groups(e, v, tmp):
    e(f'v_mov_b32 v{tmp}, v{v}')
    e(f'v_permlane32_swap_b32 v{tmp}, v{v}')
    e(f'v_add_f32 v{v}, v{v}, v{tmp}')
    e(f'v_mov_b32 v{tmp}, v{v}')
    e(f'v_permlane16_swap_b32 v{tmp}, v{v}')
    e(f'v_add_f32 v{v}, v{v}, v{tmp}')

def rot8(em, co, si, co2, si2, cs, neg_sin):
    C = 'op_sel:[0,0] op_sel_hi:[1,0]'
    S3 = 'op_sel:[0,1,0] op_sel_hi:[1,1,1]'
    NEG = ' neg_lo:[0,1,0] neg_hi:[0,1,0]'
    for p in range(4):
        em(f'v_pk_mul_f32 v[{co2+2*p}:{co2+2*p+1}], v[{co+2*p}:{co+2*p+1}], v[{cs}:{cs+1}] {C}')
        em(f'v_pk_mul_f32 v[{si2+2*p}:{si2+2*p+1}], v[{si+2*p}:{si+2*p+1}], v[{cs}:{cs+1}] {C}')
    for p in range(4):
        em(f'v_pk_fma_f32 v[{co2+2*p}:{co2+2*p+1}], v[{si+2*p}:{si+2*p+1}], v[{cs}:{cs+1}], v[{co2+2*p}:{co2+2*p+1}] {S3}' + ('' if neg_sin else NEG))
        em(f'v_pk_fma_f32 v[{si2+2*p}:{si2+2*p+1}], v[{co+2*p}:{co+2*p+1}], v[{cs}:{cs+1}], v[{si2+2*p}:{si2+2*p+1}] {S3}' + (NEG if neg_sin else ''))

_lab = [0]
def L(p):
    _lab[0] += 1
    return f'L{p}_{_lab[0]}'

def signal(e, sync):
    e.barrier()
    skip = L('sig')
    e(f's_cmp_lg_u32 s{sW}, 0')
    e(f's_cbranch_scc1 {skip}')
    e(f's_lshl_b32 s52, s2, 6')
    e(f's_add_u32 s52, s52, 0x{FL_OFF + sync*0x40000:x}')
    e(f'v_mov_b32 v14, s{sNONCE}')
    e('v_lshlrev_b32 v15, 14, v1')
    e('s_mov_b64 exec, 0xff')
    e(f'buffer_store_dword v14, v15, {SWS}, s52 offen sc1')
    e('s_mov_b64 exec, -1')
    e.label(skip)

def flag_store(e, sync):
    skip = L('flg')
    e(f's_cmp_lg_u32 s{sW}, 0')
    e(f's_cbranch_scc1 {skip}')
    e(f's_lshl_b32 s52, s2, 6')
    e(f's_add_u32 s52, s52, 0x{FL_OFF + sync*0x40000:x}')
    e(f'v_mov_b32 v14, s{sNONCE}')
    e('v_lshlrev_b32 v15, 14, v1')
    e('s_mov_b64 exec, 0xff')
    e(f'buffer_store_dword v14, v15, {SWS}, s52 offen sc1')
    e('s_mov_b64 exec, -1')
    e.label(skip)

def poll(e, sync, nflags, idx_code, preg=232, bar=True):
    skip = L('pollskip'); loop = L('poll'); done = L('polldone')
    e(f's_cmp_lg_u32 s{sW}, 0')
    e(f's_cbranch_scc1 {skip}')
    idx_code(e)
    nl = max(1, nflags // 64)
    e(f's_add_u32 s52, s{sREP}, 0x{FL_OFF + sync*0x40000:x}')
    for i in range(1, nl): e(f's_add_u32 s{52+i}, s52, {i*64*64}')
    e(f's_mov_b32 s{sSPIN}, 0')
    if nflags <= 32: e(f's_mov_b64 exec, 0x{(1 << nflags) - 1:x}')
    elif nflags < 64: e(f's_mov_b32 exec_hi, 0x{(1 << (nflags - 32)) - 1:x}')
    D = OPT['pdepth']
    def issue(k):
        for i in range(nl): e(f'buffer_load_dword v{preg+k*nl+i}, v5, {SWS}, s{52+i} offen sc1')
    e('s_waitcnt vmcnt(0)') if D == 1 else None
    for k in range(D - 1): issue(k)
    e.label(loop)
    for k in range(D):
        issue((k + D - 1) % D)
        e(f's_waitcnt vmcnt({(D-1)*nl})')
        r = preg + k * nl
        e(f'v_xor_b32 v6, s{sNONCE}, v{r}')
        for i in range(1, nl):
            e(f'v_xor_b32 v7, s{sNONCE}, v{r+i}')
            e('v_or_b32 v6, v6, v7')
        e('v_cmp_ne_u32 vcc, 0, v6')
        e('s_nop 4')
        e(f's_cbranch_vccz {done}')
    e(f's_add_u32 s{sSPIN}, s{sSPIN}, 1')
    e(f's_cmp_lt_u32 s{sSPIN}, {MAXSPIN}')
    e(f's_cbranch_scc1 {loop}')
    e.label(done)
    e('s_mov_b64 exec, -1')
    e.label(skip)
    if bar: e.barrier()

def p1_addr(e, i):
    e(f's_lshl_b32 s53, s{sW}, 2')
    e(f's_add_u32 s53, s53, {i}')
    e('s_cmp_ge_u32 s53, 7')
    e('s_cselect_b32 s54, 7, 0')
    e(f's_cselect_b32 s55, {P1_MS}, 0')
    e('s_sub_u32 s54, s53, s54')
    e('s_lshl_b32 s54, s54, 6')
    e(f's_add_u32 s55, s55, {LDS_STAGE}')
    e('v_add_u32 v12, s54, v1')
    e('v_mul_u32_u24 v13, 4682, v12')
    e('v_lshrrev_b32 v13, 16, v13')
    e('v_mul_u32_u24 v14, 14, v13')
    e('v_sub_u32 v14, v12, v14')
    e('v_lshlrev_b32 v14, 4, v14')
    e(f'v_mul_u32_u24 v15, {P1_RS}, v13')
    e('v_add3_u32 v%d, v15, v14, s55' % P1LR[i])
    if i == 3: e('v_accvgpr_write_b32 a25, v10')
    e('v_lshrrev_b32 v15, 4, v13')
    e('v_mul_u32_u24 v15, 208, v15')
    e('v_add_u32 v15, v15, v13')
    e('v_mul_u32_u24 v15, 3584, v15')
    e('v_add_u32 v15, v15, v14')

P1_RS, P1_MS = 288, 9344
P1LR = [252, 253, 254, 10]
P2LR = [248, 11]
P2_RS, P2_BASE = 480, LDS_STAGE + 2 * 9344 + 64
def p1_loads(e):
    e('s_lshr_b32 s52, s2, 4')
    e('s_lshl_b32 s52, s52, 4')
    e('s_mul_i32 s52, s52, 3584')
    e('s_and_b32 s54, s2, 15')
    e('s_mul_i32 s54, s54, 224')
    e('s_add_u32 s52, s52, s54')
    e(f's_mov_b32 s94, s{S_W1+2}')
    e('s_mov_b32 s95, 0x20000')
    for i in range(4):
        p1_addr(e, i)
        e('s_cmp_ge_u32 s53, 7')
        e(f's_cselect_b32 s92, s{S_W3}, s{S_W1}')
        e(f's_cselect_b32 s93, s{S_W3+1}, s{S_W1+1}')
        if i >= 2:
            e('s_cmp_ge_u32 s53, 14')
            e('s_cselect_b32 s94, 0, s94')
        e.vm(f'buffer_load_dwordx4 {ar(4*i,4)}, v15, s[92:95], s52 offen')

def p2_loads(e):
    e('s_lshr_b32 s52, s2, 1')
    e('s_mul_i32 s52, s52, %d' % (16 * 896))
    e('s_and_b32 s53, s2, 1')
    e('s_mul_i32 s53, s53, 224')
    e('s_add_u32 s52, s52, s53')
    e(f's_mov_b32 s92, s{S_W2}')
    e(f's_mov_b32 s93, s{S_W2+1}')
    e('s_cmp_ge_u32 s2, 224')
    e(f's_cselect_b32 s94, 0, s{S_W2+2}')
    for i in range(2):
        e(f's_lshl_b32 s53, s{sW}, 1')
        e(f's_add_u32 s53, s53, {i}')
        e('s_lshl_b32 s54, s53, 6')
        e('v_add_u32 v12, s54, v1')
        e('v_mul_u32_u24 v13, 2341, v12')
        e('v_lshrrev_b32 v13, 16, v13')
        e('v_mul_u32_u24 v14, 28, v13')
        e('v_sub_u32 v14, v12, v14')
        e('v_cmp_le_u32 vcc, 14, v14')
        e('v_lshlrev_b32 v14, 4, v14')
        e(f'v_mul_u32_u24 v15, {P2_RS}, v13')
        e(f'v_add_u32 v15, v15, v14')
        e(f'v_add_u32 v15, {P2_BASE}, v15')
        e(f'v_accvgpr_write_b32 a{26 if i == 0 else 24}, v15')
        e('v_add_u32 v15, 224, v14')
        e('v_cndmask_b32 v14, v14, v15, vcc')
        e('v_mul_u32_u24 v15, 896, v13')
        e('v_add_u32 v15, v15, v14')
        if i == 1:
            e('s_cmp_ge_u32 s53, 7')
            e('s_cselect_b32 s94, 0, s94')
        e.vm(f'buffer_load_dwordx4 {ar(16+4*i,4)}, v15, s[92:95], s52 offen')
assert all(((i * 2341) >> 16) == i // 28 for i in range(512))

def w_prefetch(e):
    e('s_lshl_b32 s52, s2, 12')
    e('v_lshlrev_b32 v12, 4, v0')
    e('v_add_u32 v12, s52, v12')
    e.vm(f'buffer_load_dwordx4 a[32:35], v12, {SWR}, 0 offen')
    e.vm(f'buffer_load_dwordx4 a[32:35], v12, {SWI}, 0 offen')
    if OPT['w2pf']:
        e.vm(f'buffer_load_dwordx4 a[32:35], v12, {SW2}, 0 offen')
        e('s_mov_b32 s52, 0x100000')
        e.vm(f'buffer_load_dwordx4 a[32:35], v12, {SW2}, s52 offen')
assert all(((i * 4682) >> 16) == i // 14 for i in range(512))

def p1_finish(e, R=64):
    RS, MS, BASE = P1_RS, P1_MS, LDS_STAGE
    skw = L('p1w')
    for i in range(4):
        if i == 2:
            e(f's_cmp_ge_u32 s{sW}, 3')
            e(f's_cbranch_scc1 {skw}')
        if i == 3: e('v_accvgpr_read_b32 v10, a25')
        e(f'ds_write_b128 v{P1LR[i]}, {ar(4*i,4)}')
    e.label(skw)
    e.wait_ds_all()
    e.barrier()
    end = L('p1e')
    e(f's_cmp_eq_u32 s{sW}, 0')
    e(f's_cbranch_scc1 {end}')
    e('v_and_b32 v4, 1, v3')
    e(f'v_mul_u32_u24 v4, {MS}, v4')
    e('v_lshrrev_b32 v5, 1, v3')
    e('v_lshlrev_b32 v5, 2, v5')
    e('v_lshrrev_b32 v6, 2, v2')
    e('v_add_u32 v5, v5, v6')
    e(f'v_mul_u32_u24 v5, {RS}, v5')
    e('v_add_u32 v4, v4, v5')
    e('v_and_b32 v6, 3, v2')
    e('v_lshlrev_b32 v6, 3, v6')
    e('v_add_u32 v4, v4, v6')
    e(f'v_add_u32 v4, {BASE}, v4')
    e('s_and_b32 s54, s2, 15')
    e('s_mul_i32 s54, s54, %d' % (7 * 28))
    e('s_lshr_b32 s53, s2, 4')
    e('s_lshl_b32 s53, s53, 1')
    e('s_add_u32 s54, s54, s53')
    e('s_lshl_b32 s54, s54, 10')
    e(f's_add_u32 s54, s54, 0x{W13_OFF:x}')
    e('v_lshlrev_b32 v5, 4, v1')
    last = L('p1l')
    for m in range(5):
        e(f's_add_u32 s52, s{sW}, {3*m - 1}')
        if m == 4:
            e('s_cmp_ge_u32 s52, 14')
            e(f's_cbranch_scc1 {last}')
        e('s_and_b32 s53, s52, 1')
        e('s_lshr_b32 s52, s52, 1')
        e(f's_mul_i32 s55, s53, {8*RS}')
        e('s_lshl_b32 s61, s52, 5')
        e('s_add_u32 s55, s55, s61')
        e('v_add_u32 v6, s55, v4')
        e(f'ds_read_b64_tr_b16 {vr(R+4*m,2)}, v6')
        e(f'ds_read_b64_tr_b16 {vr(R+4*m+2,2)}, v6 offset:{16*RS}')
        e('s_mul_i32 s52, s52, 28')
        e('s_add_u32 s52, s52, s53')
        e('s_lshl_b32 s52, s52, 10')
        e(f's_add_u32 s{62+m if m < 2 else 86+m}, s52, s54')
    e.label(last)
    e('s_waitcnt lgkmcnt(0)')
    for m in range(4):
        e(f'buffer_store_dwordx4 {vr(R+4*m,4)}, v5, {SWS}, s{62+m if m < 2 else 86+m} offen sc1')
    e(f's_cmp_ge_u32 s{sW}, 3')
    e(f's_cbranch_scc1 {end}')
    e(f'buffer_store_dwordx4 {vr(R+16,4)}, v5, {SWS}, s90 offen sc1')
    e.label(end)

def p2_finish(e, R=128):
    skw2 = L('p2w')
    e('v_accvgpr_read_b32 v7, a26')
    e(f'ds_write_b128 v7, {ar(16,4)}')
    e(f's_cmp_ge_u32 s{sW}, 3')
    e(f's_cbranch_scc1 {skw2}')
    e('v_accvgpr_read_b32 v7, a24')
    e(f'ds_write_b128 v7, {ar(20,4)}')
    e.label(skw2)
    e.wait_ds_all()
    e.barrier()
    end = L('p2e')
    e(f's_cmp_eq_u32 s{sW}, 0')
    e(f's_cbranch_scc1 {end}')
    e('v_lshrrev_b32 v6, 1, v3')
    e('v_lshlrev_b32 v6, 2, v6')
    e('v_lshrrev_b32 v7, 2, v2')
    e('v_add_u32 v6, v6, v7')
    e(f'v_mul_u32_u24 v6, {P2_RS}, v6')
    e('v_and_b32 v7, 1, v3')
    e('v_lshlrev_b32 v7, 4, v7')
    e('v_add_u32 v6, v6, v7')
    e('v_and_b32 v7, 1, v2')
    e('v_lshlrev_b32 v7, 3, v7')
    e('v_add_u32 v6, v6, v7')
    e('v_bfe_u32 v7, v2, 1, 1')
    e('v_mul_u32_u24 v7, 224, v7')
    e('v_add_u32 v6, v6, v7')
    e(f's_sub_u32 s55, s{sW}, 1')
    e('s_lshl_b32 s52, s55, 5')
    e(f's_add_u32 s52, s52, {P2_BASE}')
    e('v_add_u32 v6, s52, v6')
    e('s_and_b32 s54, s2, 1')
    e('s_mul_i32 s54, s54, 7')
    e('s_add_u32 s54, s54, s55')
    e('s_mul_i32 s54, s54, 112')
    e('s_lshr_b32 s53, s2, 1')
    e('s_add_u32 s54, s54, s53')
    e('s_lshl_b32 s54, s54, 10')
    e(f's_add_u32 s54, s54, 0x{W2_OFF:x}')
    e('v_lshlrev_b32 v5, 4, v1')
    for m in range(3):
        e(f'ds_read_b64_tr_b16 {vr(R+4*m,2)}, v6 offset:{96*m}')
        e(f'ds_read_b64_tr_b16 {vr(R+4*m+2,2)}, v6 offset:{96*m + 8*P2_RS}')
    e('s_waitcnt lgkmcnt(0)')
    for m in range(3):
        if m == 2:
            e(f's_cmp_ge_u32 s{sW}, 2')
            e(f's_cbranch_scc1 {end}')
        e(f's_add_u32 s53, s54, {3*m*112*1024}')
        e(f'buffer_store_dwordx4 {vr(R+4*m,4)}, v5, {SWS}, s53 offen sc1')
    e.label(end)

def w13_load_groups():
    gs = []
    for s_ in range(28):
        for mi in range(2):
            g = []
            if s_ % 7 == 0 and mi == 0:
                g += [f's_add_u32 s90, s89, {s_//7}', 's_and_b32 s90, s90, 3', 's_mul_i32 s90, s90, 7168', 's_add_u32 s90, s90, s88',
                      's_add_u32 s91, s90, 28672']
            i = s_ % 7
            if i == 4 and mi == 0: g += ['s_add_u32 s90, s90, 4096', 's_add_u32 s91, s91, 4096']
            g.append(('vm', f'buffer_load_dwordx4 {ar((mi*28+s_)*4,4)}, v254, s[92:95], s{90+mi} offen offset:{(i%4)*1024} sc1'))
            gs.append(g)
    return gs

def w13_setup(e):
    e(f's_mov_b32 s92, s{S_WS}')
    e(f's_mov_b32 s93, s{S_WS+1}')
    e(f's_cmp_ge_u32 s{sC}, 14')
    e(f's_cselect_b32 s94, 0, s{S_WS+2}')
    e('s_mov_b32 s95, 0x20000')
    e(f's_lshl_b32 s88, s{sC}, 3')
    e(f's_lshl_b32 s52, s{sW}, 1')
    e('s_add_u32 s88, s88, s52')
    e('s_mul_i32 s88, s88, 28672')
    e(f's_add_u32 s88, s88, 0x{W13_OFF:x}')
    e(f's_and_b32 s89, s{sR}, 3')
    e('v_lshlrev_b32 v254, 4, v1')

def emit_groups(e, groups):
    last = None
    for g in groups:
        for op in g:
            if isinstance(op, tuple): last = e.vm(op[1])
            else: e(op)
    return last

DMA = {}
def emit_interleaved(e, main, groups, start=0):
    n, m = len(main), len(groups)
    gi = 0; last = None
    for k, ins in enumerate(main):
        e(ins)
        if k >= start:
            want = ((k - start + 1) * m) // max(1, n - start)
            while gi < want:
                for op in groups[gi]:
                    if isinstance(op, tuple): last = e.vm(op[1])
                    else: e(op)
                gi += 1
    while gi < m:
        for op in groups[gi]:
            if isinstance(op, tuple): last = e.vm(op[1])
            else: e(op)
        gi += 1
    return last

def w13_trread(e, half):
    e('v_and_b32 v4, 1, v3')
    e('v_lshrrev_b32 v5, 1, v3')
    e('v_lshrrev_b32 v6, 2, v2')
    e('v_and_b32 v7, 3, v2')
    e('v_mul_u32_u24 v8, 57344, v4')
    e('v_lshlrev_b32 v9, 2, v5')
    e('v_add_u32 v9, v9, v6')
    e('v_lshlrev_b32 v9, 8, v9')
    e('v_add_u32 v8, v8, v9')
    e('v_and_b32 v9, 1, v7')
    e('v_lshlrev_b32 v9, 3, v9')
    e('v_add_u32 v8, v8, v9')
    e(f'v_add_u32 v8, {LDS_STAGE}, v8')
    e('v_lshrrev_b32 v7, 1, v7')
    e(f's_lshl_b32 s52, s{sW}, 2')
    e('v_add_u32 v7, s52, v7')
    e('v_lshlrev_b32 v6, 1, v6')
    e('v_lshlrev_b32 v4, 3, v4')
    e('v_xor_b32 v6, v6, v4')
    for mi in range(2):
        e(f'v_add_u32 v9, {2*mi}, v7')
        e('v_xor_b32 v9, v9, v6')
        e('v_lshlrev_b32 v9, 4, v9')
        e(f'v_add_u32 v{10+mi}, v8, v9')
    for mi in range(2):
        for jl in range(7):
            for gg in range(2):
                kap = 14 * half + 2 * jl + gg
                a = (mi * 28 + kap) * 4
                off = (16 * jl + 8 * gg) * 256
                e.ds(f'ds_read_b64_tr_b16 {ar(a,2)}, v{10+mi} offset:{off}')
                e.ds(f'ds_read_b64_tr_b16 {ar(a+2,2)}, v{10+mi} offset:{off + 112*256}')

C_G, C_TC = 220, 160
def gen_G(e):
    G = C_G
    TH, CO, SI = 112, 120, 128
    cscale = 2.0 / (2048.0 * 448.0)
    e('v_cvt_f32_u32 v7, v3')
    for nt in range(2):
        e(f'v_add_u32 v8, {16*nt}, v2')
        e('v_lshlrev_b32 v8, 6, v8')
        e(f'v_add_u32 v8, s{sB}, v8')
        e('v_cvt_f32_u32 v8, v8')
        e(f'v_mul_f32 v8, {lit(1.0/2048)}, v8')
        e('v_mul_f32 v9, v7, v8')
        for t in range(2):
            for ii in range(4):
                cst = 16 * t + 4 * ii
                if cst == 0: e(f'v_mov_b32 v{TH+t*4+ii}, v9')
                else: e(f'v_fmamk_f32 v{TH+t*4+ii}, v8, {lit(float(cst))}, v9')
        for j in range(8): e(f'v_cos_f32 v{CO+j}, v{TH+j}')
        for j in range(8): e(f'v_sin_f32 v{SI+j}, v{TH+j}')
        for j in range(8): e(f'v_mul_f32 v{CO+j}, {lit(cscale)}, v{CO+j}')
        for j in range(8): e(f'v_mul_f32 v{SI+j}, {lit(cscale)}, v{SI+j}')
        for t in range(2):
            for ii in range(4):
                j = t * 4 + ii
                e(f'v_cvt_pk_bf16_f32 v{G+((0*2+t)*2+nt)*4+ii}, v{CO+j}, -v{SI+j}')
                e(f'v_cvt_pk_bf16_f32 v{G+((1*2+t)*2+nt)*4+ii}, v{SI+j}, v{CO+j}')

def gen_TC(e):
    TC = C_TC
    TH, CO, SI, CO2, SI2 = 112, 120, 128, 136, 144
    e(f's_lshl_b32 s61, s{sGRP}, 2')
    e(f's_add_u32 s61, s61, s{sW}')
    e('s_min_u32 s61, s61, 13')
    e('s_lshl_b32 s61, s61, 4')
    e('v_add_u32 v8, s61, v2')
    e('v_cvt_f32_u32 v8, v8')
    e(f'v_mul_f32 v8, {lit(1.0/448)}, v8')
    e('v_lshlrev_b32 v9, 3, v3')
    e('v_cvt_f32_u32 v9, v9')
    e('v_mul_f32 v9, v9, v8')
    e('v_cmp_eq_u32 vcc, 3, v3')
    e('v_mov_b32 v10, 1.0')
    e('v_mov_b32 v7, 0.5')
    e('v_cndmask_b32 v10, v10, v7, vcc')
    e(f'v_mul_f32 v7, {lit(32.0)}, v8')
    for h in range(2):
        for j in range(4):
            cst = 2 * j + (2 if h == 0 else 1)
            e(f'v_fmamk_f32 v{TH+h*4+j}, v8, {lit(float(cst))}, v9')
    e('v_cos_f32 v12, v7')
    e('v_sin_f32 v13, v7')
    for j in range(8): e(f'v_cos_f32 v{CO+j}, v{TH+j}')
    for j in range(8): e(f'v_sin_f32_e64 v{SI+j}, -v{TH+j}')
    cur = (CO, SI); oth = (CO2, SI2)
    for kp in range(7):
        if kp < 6: rot8(e, cur[0], cur[1], oth[0], oth[1], 12, True)
        else:
            e(f'v_mul_f32 v{cur[0]+3}, v{cur[0]+3}, v10')
            e(f'v_mul_f32 v{cur[1]+3}, v{cur[1]+3}, v10')
        for h, kb in enumerate((kp, kp + 7)):
            e(f'v_cvt_pk_bf16_f32 v{TC+kb*4+0}, v{cur[0]+h*4+0}, v{cur[0]+h*4+1}')
            e(f'v_cvt_pk_bf16_f32 v{TC+kb*4+1}, v{cur[0]+h*4+2}, v{cur[0]+h*4+3}')
            e(f'v_cvt_pk_bf16_f32 v{TC+kb*4+2}, v{cur[1]+h*4+0}, v{cur[1]+h*4+1}')
            e(f'v_cvt_pk_bf16_f32 v{TC+kb*4+3}, v{cur[1]+h*4+2}, v{cur[1]+h*4+3}')
        cur, oth = oth, cur

def code_prefetch_wave(e):
    sk = L('cpf')
    e(f's_cmp_lg_u32 s{sW}, {OPT["cpf"]-1}')
    e(f's_cbranch_scc1 {sk}')
    e('s_getpc_b64 s[52:53]')
    e.label('L_pc')
    e('s_lshr_b32 s54, s2, 3')
    e('s_lshl_b32 s54, s54, 10')
    e('s_cmp_ge_u32 s54, L_fin-L_pc-1024')
    e(f's_cbranch_scc1 {sk}')
    e('v_lshlrev_b32 v5, 4, v1')
    e('v_add_u32 v5, s54, v5')
    e('global_load_dwordx4 a[28:31], v5, s[52:53]')
    e.label(sk)

def code_prefetch_entry(e):
    sk = L('cpf')
    e('s_getpc_b64 s[52:53]')
    e.label('L_pc')
    e('s_lshr_b32 s54, s2, 3')
    e('s_lshl_b32 s54, s54, 10')
    e('s_cmp_ge_u32 s54, L_fin-L_pc-1024')
    e(f's_cbranch_scc1 {sk}')
    e('v_lshlrev_b32 v5, 2, v0')
    e('v_add_u32 v5, s54, v5')
    e('global_load_dword a28, v5, s[52:53]')
    e.label(sk)

A_TA, A_FP, A_ACC, A_X = 16, 72, 96, 128
def phase_a_pre(e):
    e.c('======== phase A (before the kernel arguments arrive)')
    TA, FP, ACC, X = A_TA, A_FP, A_ACC, A_X
    e(f's_lshl_b32 s56, s{sGRP}, 2')
    e(f's_add_u32 s56, s56, s{sW}')
    e('s_min_u32 s57, s56, 13')
    if OPT['xnew']:
        e(f's_lshl_b32 s52, s{sW}, 9')
        e(f's_add_u32 s52, s52, s{sB}')
        e('v_lshrrev_b32 v4, 3, v1')
        e('v_lshlrev_b32 v4, 6, v4')
        e('v_add_u32 v4, s52, v4')
        e('v_mul_u32_u24 v4, 896, v4')
        e('v_and_b32 v11, 7, v1')
        e('v_lshlrev_b32 v11, 4, v11')
        e('v_add_u32 v4, v4, v11')
    else:
        e(f's_lshr_b32 s52, s{sW}, 1')
        e('s_lshl_b32 s52, s52, 10')
        e(f's_add_u32 s52, s52, s{sB}')
        e('v_lshlrev_b32 v4, 6, v2')
        e('v_add_u32 v4, s52, v4')
        e('v_mul_u32_u24 v4, 896, v4')
        e('v_lshlrev_b32 v11, 4, v3')
        e('v_add_u32 v4, v4, v11')
        e(f's_and_b32 s52, s{sW}, 1')
        e('s_mul_i32 s52, s52, 448')
        e('v_add_u32 v4, s52, v4')
    if OPT['early']: gen_TA(e)

def gen_TA(e):
    TA, FP, ACC, X = A_TA, A_FP, A_ACC, A_X
    e('s_cmp_lt_u32 s57, 7')
    e('s_cselect_b32 s52, 2, 1')
    e('s_cselect_b32 s53, 0, 7')
    e('s_sub_u32 s53, s57, s53')
    e('s_lshl_b32 s53, s53, 5')
    e('s_add_u32 s53, s53, s52')
    e('s_cmp_lt_u32 s57, 7')
    e(f's_cselect_b32 s58, {lit(1.0)}, {lit(-1.0)}')
    e('v_lshlrev_b32 v5, 1, v2')
    e('v_add_u32 v5, s53, v5')
    e('v_cvt_f32_u32 v5, v5')
    e(f'v_mul_f32 v5, {lit(1.0/448)}, v5')
    e('v_lshlrev_b32 v6, 3, v3')
    e('v_cvt_f32_u32 v6, v6')
    e('v_mul_f32 v6, v6, v5')
    TH, CO, SI = ACC, ACC + 8, ACC + 16
    CO2, SI2 = X + 32, X + 40
    e(f'v_mul_f32 v7, {lit(32.0)}, v5')
    for j in range(8):
        if j == 0: e(f'v_mov_b32 v{TH+j}, v6')
        else: e(f'v_fmamk_f32 v{TH+j}, v5, {lit(float(j))}, v6')
    e('v_cos_f32 v8, v7')
    e('v_sin_f32 v9, v7')
    for j in range(8): e(f'v_cos_f32 v{CO+j}, v{TH+j}')
    for j in range(8): e(f'v_sin_f32_e64 v{SI+j}, -v{TH+j}')
    cur = (CO, SI); oth = (CO2, SI2)
    for t in range(7):
        if t < 6: rot8(e, cur[0], cur[1], oth[0], oth[1], 8, True)
        for i in range(4): e(f'v_cvt_pk_bf16_f32 v{TA+(t*2+0)*4+i}, v{cur[0]+2*i}, v{cur[0]+2*i+1}')
        for i in range(4): e(f'v_cvt_pk_bf16_f32 v{TA+(t*2+1)*4+i}, v{cur[1]+2*i}, v{cur[1]+2*i+1}')
        cur, oth = oth, cur

XS_TOK = []
def phase_a_loads(e):
    X = A_X
    XS_TOK[:] = [e.vm(f'buffer_load_dwordx4 {vr(X+4*i,4)}, v4, {SX}, 0 offen offset:{(128 if OPT["xnew"] else 64)*i}') for i in range(7)]

def phase_a(e):
    e.c('======== phase A')
    TA, FP, ACC, X = A_TA, A_FP, A_ACC, A_X
    xs_tok = XS_TOK
    TH, CO, SI = ACC, ACC + 8, ACC + 16
    if OPT['tlb']:
        sk = L('tlb')
        e(f's_cmp_lg_u32 s{sW}, {OPT["tlb"]-1}')
        e(f's_cbranch_scc1 {sk}')
        e('v_min_u32 v5, 13, v1')
        e('v_lshlrev_b32 v5, 21, v5')
        e(f'buffer_load_dword a36, v5, {SWS}, 0 offen')
        e('v_mov_b32 v5, 0')
        e(f'buffer_load_dword a36, v5, {SOUT}, 0 offen')
        e.label(sk)
    stamp(e, 'A.issued')
    if not OPT['early']: gen_TA(e)
    e('s_mov_b32 s52, 0x80008000')
    e(f'v_cvt_f32_u32 v7, s{sB}')
    e(f'v_mul_f32 v7, {lit(1.0/64)}, v7')
    e('v_lshlrev_b32 v8, 2, v3')
    e('v_cvt_f32_u32 v8, v8')
    e('v_add_f32 v8, v8, v7')
    for mt in range(2):
        e(f'v_add_u32 v9, {16*mt}, v2')
        e('v_cvt_f32_u32 v9, v9')
        e(f'v_mul_f32 v9, {lit(1.0/32)}, v9')
        e('v_mul_f32 v10, v9, v8')
        for j in range(8):
            cst = 16 * (j >> 2) + (j & 3)
            if cst == 0: e(f'v_mov_b32 v{TH+j}, v10')
            else: e(f'v_fmamk_f32 v{TH+j}, v9, {lit(float(cst))}, v10')
        for j in range(8): e(f'v_cos_f32 v{CO+j}, v{TH+j}')
        for j in range(8): e(f'v_sin_f32 v{SI+j}, v{TH+j}')
        for i in range(4): e(f'v_cvt_pk_bf16_f32 v{FP+mt*12+i}, v{CO+2*i}, v{CO+2*i+1}')
        for i in range(4): e(f'v_cvt_pk_bf16_f32 v{FP+mt*12+4+i}, v{SI+2*i}, v{SI+2*i+1}')
        for i in range(4): e(f'v_xor_b32 v{FP+mt*12+8+i}, s52, v{FP+mt*12+4+i}')
    if OPT['wpf'] == 2: w_prefetch(e)
    p1_loads(e)
    if OPT['wpf'] == 3: w_prefetch(e)
    stamp(e, 'A.constgen')
    RR = 240
    xt = {}
    order = [(half, t, mt) for half in range(2) for t in range(7) for mt in range(2)]
    def xreg(mt, tt): return X + (mt * 14 + tt) * 4
    nread = [0]
    if OPT['xnew']:
        e('v_lshrrev_b32 v5, 3, v1')
        e(f's_and_b32 s52, s{sW}, 1')
        e('s_lshl_b32 s52, s52, 3')
        e('v_add_u32 v5, s52, v5')
        e('v_and_b32 v6, 7, v1')
        e('v_xor_b32 v7, v5, v6')
        e('v_lshlrev_b32 v7, 4, v7')
        e('v_and_b32 v8, 3, v6')
        e('v_lshlrev_b32 v8, 8, v8')
        e('v_add_u32 v7, v7, v8')
        e('v_lshrrev_b32 v8, 2, v6')
        e('v_lshlrev_b32 v8, 10, v8')
        e('v_add_u32 v7, v7, v8')
        e(f's_lshr_b32 s52, s{sW}, 1')
        e('s_mul_i32 s52, s52, 14336')
        e('v_add_u32 v4, s52, v7')
        e('v_mov_b32 v5, 0')
        e('v_mov_b32 v6, 0')
        e('s_mov_b32 s52, 0x3f803f80')
        for i in range(7):
            e.wait_vm(xs_tok[i])
            e.ds(f'ds_write_b128 v4, {vr(X+4*i,4)} offset:{2048*i}')
            for d in range(4):
                e(f'v_dot2_f32_bf16 v5, v{X+4*i+d}, s52, v5')
                e(f'v_dot2_f32_bf16 v6, v{X+4*i+d}, v{X+4*i+d}, v6')
        for ctl in ('quad_perm:[1,0,3,2]', 'quad_perm:[2,3,0,1]', 'row_half_mirror'):
            e(f'v_add_f32_dpp v5, v5, v5 {ctl} row_mask:0xf bank_mask:0xf')
            e(f'v_add_f32_dpp v6, v6, v6 {ctl} row_mask:0xf bank_mask:0xf')
        e(f'v_mul_f32 v5, {lit(1.0/448)}, v5')
        e(f'v_mul_f32 v6, {lit(1.0/448)}, v6')
        e('v_fma_f32 v6, -v5, v5, v6')
        e('v_max_f32 v6, 0, v6')
        e(f'v_add_f32 v6, {lit(1e-5)}, v6')
        e('v_rsq_f32 v6, v6')
        e('v_lshrrev_b32 v7, 3, v1')
        e(f's_lshl_b32 s52, s{sW}, 3')
        e('v_add_u32 v7, s52, v7')
        e('v_lshlrev_b32 v7, 2, v7')
        e.ds('ds_write_b32 v7, v6 offset:28672')
        nm = L('nomean')
        e(f's_cmp_lg_u32 s{sGRP}, 0')
        e(f's_cbranch_scc1 {nm}')
        e(f's_lshl_b32 s52, s{sB}, 7')
        e(f's_add_u32 s52, s52, 0x{ST1_OFF:x}')
        e(f'buffer_store_dword v5, v7, {SWS}, s52 offen sc1')
        e.label(nm)
        e.wait_ds_all()
        stamp(e, 'A.xstaged')
        e.barrier()
        if OPT['wpf'] == 1: w_prefetch(e)
        e('v_mov_b32 v250, 0')
        nonce_tok = e.vm(f'buffer_load_dword v251, v250, {SDBG}, 0 offen sc1')
        e('v_xor_b32 v5, v2, v3')
        e('v_lshlrev_b32 v6, 8, v3')
        e('v_lshlrev_b32 v11, 4, v5')
        e('v_add_u32 v11, v11, v6')
        e('v_xor_b32 v5, 4, v5')
        e('v_lshlrev_b32 v10, 4, v5')
        e('v_add_u32 v10, v10, v6')
        def issue_x():
            half, t, mt = order[nread[0]]
            tt = t + 7 * half
            xt[(half, t, mt)] = e.ds(f'ds_read_b128 {vr(xreg(mt,tt),4)}, v{10 if tt & 1 else 11} offset:{(mt*14+tt)*1024}')
            nread[0] += 1
        for _ in range(8): issue_x()
        e('v_lshlrev_b32 v9, 4, v3')
        tr0 = e.ds(f'ds_read_b128 {vr(RR,4)}, v9 offset:28672')
        tr1 = e.ds(f'ds_read_b128 {vr(RR+4,4)}, v9 offset:28736')
    else:
        e(f's_mul_i32 s52, s{sW}, 7168')
        e('v_lshlrev_b32 v11, 4, v1')
        e('v_add_u32 v4, s52, v11')
        e('v_mov_b32 v5, 0')
        e('v_mov_b32 v6, 0')
        e('s_mov_b32 s52, 0x3f803f80')
        for i in range(7):
            e.wait_vm(xs_tok[i])
            e.ds(f'ds_write_b128 v4, {vr(X+4*i,4)} offset:{1024*i}')
            for d in range(4):
                e(f'v_dot2_f32_bf16 v5, v{X+4*i+d}, s52, v5')
                e(f'v_dot2_f32_bf16 v6, v{X+4*i+d}, v{X+4*i+d}, v6')
        xsum_groups(e, 5, 7)
        xsum_groups(e, 6, 8)
        e(f's_lshl_b32 s52, s{sW}, 7')
        e('v_lshlrev_b32 v7, 3, v2')
        e('v_add_u32 v7, s52, v7')
        e('v_mov_b32 v8, v5')
        e('v_mov_b32 v9, v6')
        e.ds('ds_write_b64 v7, v[8:9] offset:28672')
        e.wait_ds_all()
        stamp(e, 'A.xstaged')
        e.barrier()
        if OPT['wpf'] == 1: w_prefetch(e)
        e('v_mov_b32 v250, 0')
        nonce_tok = e.vm(f'buffer_load_dword v251, v250, {SDBG}, 0 offen sc1')
        e('v_and_b32 v4, 31, v1')
        e('v_lshrrev_b32 v5, 4, v4')
        e('v_lshlrev_b32 v5, 8, v5')
        e('v_lshlrev_b32 v6, 3, v2')
        e('v_add_u32 v5, v5, v6')
        t0 = e.ds('ds_read_b64 v[6:7], v5 offset:28672')
        t1 = e.ds('ds_read_b64 v[8:9], v5 offset:28800')
        def issue_x():
            half, t, mt = order[nread[0]]
            tt = t + 7 * half
            xt[(half, t, mt)] = e.ds(f'ds_read_b128 {vr(xreg(mt,tt),4)}, v11 offset:{(mt*14+tt)*1024}')
            nread[0] += 1
        for _ in range(8): issue_x()
        e.wait_ds(t1)
        e('v_add_f32 v6, v6, v8')
        e('v_add_f32 v7, v7, v9')
        e(f'v_mul_f32 v6, {lit(1.0/448)}, v6')
        e(f'v_mul_f32 v7, {lit(1.0/448)}, v7')
        e('v_fma_f32 v7, -v6, v6, v7')
        e('v_max_f32 v7, 0, v7')
        e(f'v_add_f32 v7, {lit(1e-5)}, v7')
        e('v_rsq_f32 v7, v7')
        e(f's_lshl_b32 s52, s{sW}, 7')
        e('v_lshlrev_b32 v8, 2, v4')
        e('v_add_u32 v9, s52, v8')
        e.ds('ds_write_b32 v9, v7 offset:29184')
        nm = L('nomean')
        e(f's_or_b32 s52, s{sGRP}, s{sW}')
        e('s_cmp_lg_u32 s52, 0')
        e(f's_cbranch_scc1 {nm}')
        e(f's_lshl_b32 s52, s{sB}, 7')
        e(f's_add_u32 s52, s52, 0x{ST1_OFF:x}')
        e(f'buffer_store_dword v6, v8, {SWS}, s52 offen sc1')
        e.label(nm)
        e(f's_lshl_b32 s52, s{sW}, 7')
        e('v_lshlrev_b32 v9, 4, v3')
        e('v_add_u32 v9, s52, v9')
        tr0 = e.ds(f'ds_read_b128 {vr(RR,4)}, v9 offset:29184')
        tr1 = e.ds(f'ds_read_b128 {vr(RR+4,4)}, v9 offset:29248')
    def acc(mt, c, half): return ACC + ((mt * 2 + c) * 2 + half) * 4
    for (half, t, mt) in order:
        if nread[0] < len(order): issue_x()
        e.wait_ds(xt[(half, t, mt)])
        tt = t + 7 * half
        for c in range(2):
            a = acc(mt, c, half)
            e(f'v_mfma_f32_16x16x32_bf16 {vr(a,4)}, {vr(xreg(mt,tt),4)}, {vr(TA+(t*2+c)*4,4)}, {"0" if t == 0 else vr(a,4)}')
    e.wait_ds(tr1)
    stamp(e, 'A.mfma')
    BF = X; TMP = X + 8
    for c in range(2):
        for mt in range(2):
            for r in range(4): e(f'v_fma_f32 v{TMP+mt*4+r}, v{acc(mt,c,1)+r}, s58, v{acc(mt,c,0)+r}')
            for r in range(4): e(f'v_mul_f32 v{TMP+mt*4+r}, v{TMP+mt*4+r}, v{RR+mt*4+r}')
        for mt in range(2):
            for i in range(2):
                e(f'v_cvt_pk_bf16_f32 v{BF+c*4+mt*2+i}, v{TMP+mt*4+2*i}, v{TMP+mt*4+2*i+1}')
    TT = X + 16
    for mt in range(2):
        C, Sp, Sn = FP + mt * 12, FP + mt * 12 + 4, FP + mt * 12 + 8
        e(f'v_mfma_f32_16x16x32_bf16 {vr(TT+mt*8,4)}, {vr(C,4)}, {vr(BF,4)}, 0')
        e(f'v_mfma_f32_16x16x32_bf16 {vr(TT+mt*8+4,4)}, {vr(Sn,4)}, {vr(BF,4)}, 0')
        e(f'v_mfma_f32_16x16x32_bf16 {vr(TT+mt*8,4)}, {vr(Sp,4)}, {vr(BF+4,4)}, {vr(TT+mt*8,4)}')
        e(f'v_mfma_f32_16x16x32_bf16 {vr(TT+mt*8+4,4)}, {vr(C,4)}, {vr(BF+4,4)}, {vr(TT+mt*8+4,4)}')
    e('s_mov_b32 s52, %d' % (4 * 57344))
    e('v_mul_lo_u32 v4, v3, s52')
    e('v_lshlrev_b32 v5, 2, v2')
    e('v_add_u32 v4, v4, v5')
    e('s_lshl_b32 s52, s56, 12')
    e(f's_lshl_b32 s53, s{sB}, 6')
    e('s_add_u32 s52, s52, s53')
    OUT = X + 40
    for mt in range(2):
        for r in range(4): e(f'v_cvt_pk_bf16_f32 v{OUT+mt*4+r}, v{TT+mt*8+r}, v{TT+mt*8+4+r}')
    ns = L('nostoreA')
    e('s_cmp_ge_u32 s56, 14')
    e(f's_cbranch_scc1 {ns}')
    for mt in range(2):
        for r in range(4):
            e(f's_add_u32 s53, s52, {T1_OFF + (16*mt+r)*57344}')
            e(f'buffer_store_dword v{OUT+mt*4+r}, v4, {SWS}, s53 offen sc1')
    e.label(ns)
    stamp(e, 'A.stored')
    if OPT['wpf'] == 4:
        l0, l1 = L('wp'), L('wp')
        e(f's_cmp_eq_u32 s{sW}, 0')
        e(f's_cbranch_scc1 {l0}')
        e('s_mul_i32 s52, s2, 3072')
        e('v_lshlrev_b32 v12, 4, v0')
        e('v_add_u32 v12, s52, v12')
        e('s_mov_b32 s52, 786432')
        for sr_ in (SWR, SWI):
            e(f'buffer_load_dwordx4 a[32:35], v12, {sr_}, 0 offen')
            e(f'buffer_load_dwordx4 a[32:35], v12, {sr_}, s52 offen')
        e('s_waitcnt vmcnt(4)')
        e(f's_branch {l1}')
        e.label(l0)
        e('s_waitcnt vmcnt(0)')
        e.label(l1)
        e.vm_done = e.vm_issued
    else:
        e.wait_vm_all()
    sk, lp, dn = L('nsk'), L('nlp'), L('ndn')
    e(f's_cmp_lg_u32 s{sW}, 0')
    e(f's_cbranch_scc1 {sk}')
    e(f's_mov_b32 s{sSPIN}, 0')
    e.label(lp)
    e(f'v_readfirstlane_b32 s{sNONCE}, v251')
    e('s_nop 1')
    e(f's_cmp_lg_u32 s{sNONCE}, 0')
    e(f's_cbranch_scc1 {dn}')
    e(f'buffer_load_dword v251, v250, {SDBG}, 0 offen sc1')
    e('s_waitcnt vmcnt(0)')
    e(f's_add_u32 s{sSPIN}, s{sSPIN}, 1')
    e(f's_cmp_lt_u32 s{sSPIN}, {MAXSPIN}')
    e(f's_cbranch_scc1 {lp}')
    e.label(dn)
    e.label(sk)
    stamp(e, 'A.drained')
    skn = L('nb')
    e(f's_cmp_lg_u32 s{sW}, 0')
    e(f's_cbranch_scc1 {skn}')
    e(f'v_mov_b32 v14, s{sNONCE}')
    e('v_mov_b32 v15, 29696')
    e('ds_write_b32 v15, v14')
    e('s_waitcnt lgkmcnt(0)')
    e.label(skn)
    signal(e, 0)
    e('v_mov_b32 v15, 29696')
    e('ds_read_b32 v14, v15')
    e('s_waitcnt lgkmcnt(0)')
    e(f'v_readfirstlane_b32 s{sNONCE}, v14')

P2PARK = [16 + 4 * j for j in range(12)] + [92, 96]
def phase_p2(e):
    e.c('======== P2 (w2 re-layout)')
    done = L('p2done'); nojob = L('p2none')
    e('s_cmp_ge_u32 s2, 252')
    e(f's_cbranch_scc1 {nojob}')
    e('s_sub_u32 s56, s2, 224')
    e('s_waitcnt vmcnt(0)')
    e.barrier()
    e.vm_issued = e.vm_done = 0
    e('s_mul_i32 s52, s56, 57344')
    e('v_lshlrev_b32 v4, 4, v0')
    toks = []
    e('s_mov_b32 s57, s52')
    def ld(i):
        e(f's_add_u32 s53, s57, {i*4096}')
        toks.append(e.vm(f'buffer_load_dwordx4 {vr(16+4*i,4)}, v4, {SW2}, s53 offen'))
    for i in range(8): ld(i)
    for i in range(14):
        e(f'v_add_u32 v5, {i*256}, v0')
        e('v_mul_u32_u24 v6, 18725, v5')
        e('v_lshrrev_b32 v6, 20, v6')
        e('v_lshlrev_b32 v6, 5, v6')
        e('v_lshlrev_b32 v5, 4, v5')
        e(f'v_add_u32 v{80+i}, v5, v6')
        e(f'v_add_u32 v{80+i}, {LDS_STAGE}, v{80+i}')
    gen_G(e)
    for i in range(8, 14): ld(i)
    stamp(e, 'P2.issued')
    gen_TC(e)
    for i in range(14):
        e.wait_vm(toks[i])
        e.ds(f'ds_write_b128 v{80+i}, {vr(16+4*i,4)}')
    e.wait_ds_all()
    stamp(e, 'P2.lds')
    e.barrier()
    e('v_lshrrev_b32 v4, 1, v3')
    e('v_lshlrev_b32 v4, 2, v4')
    e('v_lshrrev_b32 v5, 2, v2')
    e('v_add_u32 v4, v4, v5')
    e(f's_lshl_b32 s53, s{sW}, 4')
    e('v_add_u32 v4, s53, v4')
    e('v_mul_u32_u24 v4, 928, v4')
    e('v_and_b32 v5, 1, v3')
    e('v_lshlrev_b32 v5, 4, v5')
    e('v_add_u32 v4, v4, v5')
    e('v_and_b32 v5, 1, v2')
    e('v_lshlrev_b32 v5, 3, v5')
    e('v_add_u32 v4, v4, v5')
    e('v_bfe_u32 v5, v2, 1, 1')
    e('v_mul_u32_u24 v5, 448, v5')
    e('v_add_u32 v4, v4, v5')
    e(f'v_add_u32 v4, {LDS_STAGE}, v4')
    e('v_lshlrev_b32 v5, 4, v1')
    e('s_lshl_b32 s53, s56, 2')
    e(f's_add_u32 s53, s53, s{sW}')
    e('s_lshl_b32 s53, s53, 10')
    e(f's_add_u32 s53, s53, 0x{W2_OFF:x}')
    if OPT['p2park']:
        for j in range(14):
            R = P2PARK[j]
            e.ds(f'ds_read_b64_tr_b16 {vr(R,2)}, v4 offset:{32*j}')
            e.ds(f'ds_read_b64_tr_b16 {vr(R+2,2)}, v4 offset:{32*j + 8*928}')
        e.wait_ds_all()
        e('s_mov_b32 s99, s53')
    trt = []
    for j in range(14 if not OPT['p2park'] else 0):
        R = 16 + 4 * j
        e.ds(f'ds_read_b64_tr_b16 {vr(R,2)}, v4 offset:{32*j}')
        trt.append(e.ds(f'ds_read_b64_tr_b16 {vr(R+2,2)}, v4 offset:{32*j + 8*928}'))
        if j >= 4:
            e.wait_ds(trt[j - 4])
            e(f's_add_u32 s54, s53, {(j-4)*112*1024}')
            e.vm(f'buffer_store_dwordx4 {vr(16+4*(j-4),4)}, v5, {SWS}, s54 offen sc1')
    for j in range(10, 14 if not OPT['p2park'] else 0):
        e.wait_ds(trt[j])
        e(f's_add_u32 s54, s53, {j*112*1024}')
        e.vm(f'buffer_store_dwordx4 {vr(16+4*j,4)}, v5, {SWS}, s54 offen sc1')
    stamp(e, 'P2.stored')
    e(f's_branch {done}')
    e.label(nojob)
    gen_TC(e)
    gen_G(e)
    e.label(done)
    e.wait_vm_all()
    stamp(e, 'P2.drained')
assert all(((p * 18725) >> 20) == p // 56 for p in range(3584)), "magic /56"

def phase_b(e):
    e.c('======== window 1 + phase B')
    e('s_and_b32 s56, s2, 7')
    e('s_lshr_b32 s57, s2, 3')
    e('s_mul_i32 s52, s57, 37')
    e('s_lshr_b32 s52, s52, 8')
    e('s_mul_i32 s53, s52, 7')
    e('s_sub_u32 s53, s57, s53')
    e('s_lshl_b32 s52, s52, 3')
    e('s_add_u32 s56, s56, s52')
    e('s_lshl_b32 s53, s53, 1')
    e(f's_lshr_b32 s54, s{sW}, 1')
    e('s_add_u32 s57, s53, s54')
    e('s_lshr_b32 s59, s53, 2')
    e(f's_and_b32 s58, s{sW}, 1')
    FC, FS, FN = 16, 32, 48
    TIN, BF, WR, WI, XA, YR, YI, YF = 64, 80, 96, 104, 112, 128, 136, 144
    e('s_cmp_lt_u32 s57, 7')
    e('s_cselect_b32 s52, 2, 1')
    e('s_cselect_b32 s53, 0, 7')
    e('s_sub_u32 s53, s57, s53')
    e('s_lshl_b32 s53, s53, 5')
    e('s_add_u32 s53, s53, s52')
    e('v_lshlrev_b32 v6, 1, v2')
    e('v_add_u32 v6, s53, v6')
    e('v_lshlrev_b32 v6, 1, v6')
    e('v_lshlrev_b32 v7, 7, v3')
    e('s_lshl_b32 s52, s58, 10')
    e('s_add_u32 s52, s52, s56')
    e('v_add_u32 v7, s52, v7')
    e('v_mul_u32_u24 v7, 450, v7')
    e('v_add_u32 v6, v6, v7')
    if OPT['wpf'] != 4:
        wtok = {}
        for mtl in range(2):
            for r in range(4):
                e(f's_mov_b32 s52, {(16*mtl+r)*14400}')
                e.vm(f'buffer_load_short_d16_hi v{WR+mtl*4+r}, v6, {SWR}, s52 offen')
                wtok[(mtl, r)] = e.vm(f'buffer_load_short_d16_hi v{WI+mtl*4+r}, v6, {SWI}, s52 offen')
    else: e('v_mov_b32 v246, v6')
    CO, SI, TH = 160, 176, 192
    groups = []
    main = []
    em = main.append
    em('s_lshl_b32 s52, s58, 5')
    em('v_add_u32 v8, s52, v2')
    em('v_cvt_f32_u32 v8, v8')
    em(f'v_mul_f32 v8, {lit(1.0/64)}, v8')
    em('v_lshlrev_b32 v9, 2, v3')
    for tt in range(2):
        em(f's_xor_b32 s52, s58, {tt}')
        em('s_lshl_b32 s52, s52, 5')
        em('v_add_u32 v10, s52, v9')
        em('v_cvt_f32_u32 v10, v10')
        em('v_mul_f32 v10, v10, v8')
        for j in range(8):
            cst = 16 * (j >> 2) + (j & 3)
            if cst == 0: em(f'v_mov_b32 v{TH+j}, v10')
            else: em(f'v_fmamk_f32 v{TH+j}, v8, {lit(float(cst))}, v10')
        for j in range(8): em(f'v_cos_f32 v{CO+tt*8+j}, v{TH+j}')
        for j in range(8): em(f'v_sin_f32 v{SI+tt*8+j}, v{TH+j}')
    def rot(kind, t, j, mt):
        qt = (mt * (j & 3)) & 3
        c, s = f'v{CO+t*8+j}', f'v{SI+t*8+j}'
        if kind == 'C': return [c, '-' + s, '-' + c, s][qt]
        if kind == 'S': return [s, c, '-' + s, '-' + c][qt]
        if kind == 'N': return ['-' + s, '-' + c, s, c][qt]
    for kind, base in (('C', FC), ('S', FS), ('N', FN)):
        for mtl in range(2):
            for tt in range(2):
                for i in range(4):
                    em(f'v_cvt_pk_bf16_f32 v{base+(mtl*2+tt)*4+i}, {rot(kind,tt,2*i,mtl)}, {rot(kind,tt,2*i+1,mtl)}')
    emit_interleaved(e, main, groups)
    if not OPT['p1slot']: p1_finish(e)
    stamp(e, 'W1.p1')
    if OPT['wpf'] == 4:
        wtok = {}
        for mtl in range(2):
            for r in range(4):
                e(f's_mov_b32 s52, {(16*mtl+r)*14400}')
                e.vm(f'buffer_load_short_d16_hi v{WR+mtl*4+r}, v246, {SWR}, s52 offen')
                wtok[(mtl, r)] = e.vm(f'buffer_load_short_d16_hi v{WI+mtl*4+r}, v246, {SWI}, s52 offen')

    e('s_mul_i32 s60, s56, 14')
    e('s_add_u32 s60, s60, s57')
    e('s_lshl_b32 s60, s60, 12')
    e(f's_add_u32 s60, s60, 0x{T1_OFF:x}')
    e('v_lshlrev_b32 v11, 8, v3')
    e('v_lshlrev_b32 v10, 2, v2')
    e('v_add_u32 v11, v11, v10')
    stamp(e, 'W1.ready')
    def idx(e):
        e('v_and_b32 v5, 7, v1')
        e('v_lshrrev_b32 v6, 3, v1')
        e('v_lshlrev_b32 v6, 5, v6')
        e('v_add_u32 v5, v5, v6')
        e('s_lshl_b32 s53, s59, 3')
        e('v_add_u32 v5, s53, v5')
        e('v_lshlrev_b32 v5, 6, v5')
    poll(e, 0, 64, idx)
    stamp(e, 'B.go'); rstamp(e, 'rt_bgo')
    tin = {}
    for tt in range(2):
        e(f's_xor_b32 s52, s58, {tt}')
        e('s_lshl_b32 s52, s52, 11')
        e('s_add_u32 s52, s52, s60')
        for j in range(8):
            off = (16 * (j >> 2) + (j & 3)) * 64
            tin[(tt, j)] = e.vm(f'buffer_load_dword v{TIN+tt*8+j}, v11, {SWS}, s52 offen offset:{off} sc1')
    if OPT['p1slot']: p1_finish(e, R=112)
    elif OPT['gslot']: gen_G(e)
    e('s_mov_b32 s52, 0x05040100')
    e('s_mov_b32 s53, 0x07060302')
    for tt in range(2):
        e.wait_vm(tin[(tt, 7)])
        for i in range(4):
            e(f'v_perm_b32 v{BF+tt*4+i}, v{TIN+tt*8+2*i+1}, v{TIN+tt*8+2*i}, s52')
            e(f'v_perm_b32 v{BF+8+tt*4+i}, v{TIN+tt*8+2*i+1}, v{TIN+tt*8+2*i}, s53')
    stamp(e, 'B.loaded')
    def fr(base, mtl, tt): return vr(base + (mtl * 2 + tt) * 4, 4)
    def mm(d, a, b, first): e(f'v_mfma_f32_16x16x32_bf16 {vr(d,4)}, {a}, {vr(b,4)}, {"0" if first else vr(d,4)}')
    BRE = lambda t: BF + t * 4
    BIM = lambda t: BF + 8 + t * 4
    for step in range(4):
        for mtl in range(2):
            xr, xi = XA + mtl * 8, XA + mtl * 8 + 4
            tt = step & 1
            if step < 2:
                mm(xr, fr(FC, mtl, tt), BRE(tt), step == 0); mm(xi, fr(FN, mtl, tt), BRE(tt), step == 0)
            else:
                mm(xr, fr(FS, mtl, tt), BIM(tt), False); mm(xi, fr(FC, mtl, tt), BIM(tt), False)
    e.wait_vm(wtok[(1, 3)])
    for mtl in range(2):
        for r in range(4):
            xr, xi = XA + mtl * 8 + r, XA + mtl * 8 + 4 + r
            wr, wi = WR + mtl * 4 + r, WI + mtl * 4 + r
            e(f'v_mul_f32 v{YR+mtl*4+r}, v{xr}, v{wr}')
            e(f'v_mul_f32 v{YI+mtl*4+r}, v{xr}, v{wi}')
            e(f'v_fma_f32 v{YR+mtl*4+r}, -v{xi}, v{wi}, v{YR+mtl*4+r}')
            e(f'v_fma_f32 v{YI+mtl*4+r}, v{xi}, v{wr}, v{YI+mtl*4+r}')
    for c, src in ((0, YR), (1, YI)):
        for i in range(4):
            e(f'v_cvt_pk_bf16_f32 v{YF+c*8+i}, v{src+(i>>1)*4+2*(i&1)}, v{src+(i>>1)*4+2*(i&1)+1}')
    e('v_lshlrev_b32 v10, 4, v1')
    e(f's_lshl_b32 s52, s{sW}, 11')
    e('v_add_u32 v12, s52, v10')
    e(f's_xor_b32 s52, s{sW}, 1')
    e('s_lshl_b32 s52, s52, 11')
    e('v_add_u32 v13, s52, v10')
    e.ds(f'ds_write_b128 v12, {vr(YF,4)}')
    e.ds(f'ds_write_b128 v12, {vr(YF+8,4)} offset:1024')
    e.wait_ds_all()
    e.barrier()
    p0 = e.ds(f'ds_read_b128 {vr(YF+4,4)}, v13')
    p1_ = e.ds(f'ds_read_b128 {vr(YF+12,4)}, v13 offset:1024')
    YRE = lambda t: YF + t * 4
    YIM = lambda t: YF + 8 + t * 4
    for mtl in range(2):
        xr, xi = XA + mtl * 8, XA + mtl * 8 + 4
        mm(xr, fr(FC, mtl, 0), YRE(0), True);  mm(xi, fr(FS, mtl, 0), YRE(0), True)
        mm(xr, fr(FN, mtl, 0), YIM(0), False); mm(xi, fr(FC, mtl, 0), YIM(0), False)
    e.wait_ds(p1_)
    for mtl in range(2):
        xr, xi = XA + mtl * 8, XA + mtl * 8 + 4
        mm(xr, fr(FC, mtl, 1), YRE(1), False); mm(xi, fr(FS, mtl, 1), YRE(1), False)
        mm(xr, fr(FN, mtl, 1), YIM(1), False); mm(xi, fr(FC, mtl, 1), YIM(1), False)
    e('s_mov_b32 s52, %d' % (4 * 28672))
    e('v_mul_lo_u32 v4, v3, s52')
    e('v_lshlrev_b32 v5, 2, v2')
    e('v_add_u32 v4, v4, v5')
    e('s_lshl_b32 s52, s57, 11')
    e('s_lshl_b32 s53, s56, 6')
    e('s_add_u32 s52, s52, s53')
    e(f's_mul_i32 s53, s58, {32*28672}')
    e('s_add_u32 s52, s52, s53')
    last = None
    for mtl in range(2):
        for r in range(4): e(f'v_cvt_pk_bf16_f32 v{TIN+mtl*4+r}, v{XA+mtl*8+r}, v{XA+mtl*8+4+r}')
        for r in range(4):
            e(f's_add_u32 s53, s52, {T2_OFF + (16*mtl+r)*28672}')
            last = e.vm(f'buffer_store_dword v{TIN+mtl*4+r}, v4, {SWS}, s53 offen sc1')
    stamp(e, 'B.stored')
    e.wait_vm_all()
    stamp(e, 'B.drained')

def phase_c(e):
    e.c('======== window 2 + phase C')
    e(f's_lshl_b32 s56, s{sGRP}, 2')
    e(f's_add_u32 s56, s56, s{sW}')
    e('s_min_u32 s57, s56, 13')
    G, TC, AIN, VA, PA, XR = C_G, C_TC, 104, 136, 48, 64
    MEAN = XR + 8
    e('v_lshlrev_b32 v5, 6, v2')
    e(f'v_add_u32 v5, s{sB}, v5')
    e('v_mul_u32_u24 v5, 896, v5')
    e('v_lshlrev_b32 v6, 3, v3')
    e('v_add_u32 v5, v5, v6')
    e('s_lshl_b32 s52, s57, 5')
    e('v_add_u32 v5, s52, v5')
    for nt in range(2):
        for pm in range(2):
            e(f's_mov_b32 s52, {nt*16*64*896}')
            e.vm(f'buffer_load_dwordx2 {vr(XR+(nt*2+pm)*2,2)}, v5, {SX}, s52 offen offset:{448*pm}')
    e('v_lshlrev_b32 v12, 2, v1')
    stamp(e, 'W2.ready')
    def idx(e): e('v_lshlrev_b32 v5, 6, v1')
    poll(e, 1, 256, idx, preg=100)
    stamp(e, 'C.go'); rstamp(e, 'rt_cgo')
    w13_setup(e)
    WG = w13_load_groups()
    wgi = [0]
    def wload(n):
        for _ in range(n):
            if wgi[0] < len(WG):
                emit_groups(e, [WG[wgi[0]]]); wgi[0] += 1
    atok = {}
    for i in range(4):
        e(f's_add_u32 s52, s{sW}, {4*i}')
        e('s_min_u32 s52, s52, 13')
        e(f's_mul_i32 s53, s{sB}, 14')
        e('s_add_u32 s52, s52, s53')
        e('s_lshl_b32 s52, s52, 11')
        e(f's_add_u32 s52, s52, 0x{T2_OFF:x}')
        for t in range(2):
            for ii in range(4):
                atok[(i, t, ii)] = e.vm(f'buffer_load_dword v{AIN+i*8+t*4+ii}, v12, {SWS}, s52 offen offset:{(16*t+4*ii)*64} sc1')
    e('v_lshlrev_b32 v6, 2, v2')
    e(f's_lshl_b32 s52, s{sB}, 7')
    e(f's_add_u32 s52, s52, 0x{ST1_OFF:x}')
    mtok = [e.vm(f'buffer_load_dword v{MEAN+nt}, v6, {SWS}, s52 offen offset:{64*nt} sc1') for nt in range(2)]
    e('v_lshlrev_b32 v11, 4, v1')
    if OPT['p2park']:
        skp = L('p2st')
        e('s_cmp_lt_u32 s2, 224')
        e(f's_cbranch_scc1 {skp}')
        e('s_cmp_ge_u32 s2, 252')
        e(f's_cbranch_scc1 {skp}')
        for j in range(14):
            e(f's_add_u32 s52, s99, {j*112*1024}')
            e(f'buffer_store_dwordx4 {vr(P2PARK[j],4)}, v11, {SWS}, s52 offen sc1')
        e.label(skp)
    e(f's_lshl_b32 s52, s{sW}, 11')
    e('v_add_u32 v12, s52, v11')
    PK = 76
    for i in range(4):
        e.wait_vm(atok[(i, 1, 3)])
        if i == 0: stamp(e, 'C.loaded')
        for nt in range(2):
            for out in range(2):
                d = VA + (out * 2 + nt) * 4
                e(f'v_mfma_f32_16x16x32_bf16 {vr(d,4)}, {vr(AIN+i*8,4)}, {vr(G+((out*2+0)*2+nt)*4,4)}, 0')
        for nt in range(2):
            for out in range(2):
                d = VA + (out * 2 + nt) * 4
                e(f'v_mfma_f32_16x16x32_bf16 {vr(d,4)}, {vr(AIN+i*8+4,4)}, {vr(G+((out*2+1)*2+nt)*4,4)}, {vr(d,4)}')
        sk = L('skip3')
        if i == 3:
            e(f's_cmp_ge_u32 s{sW}, 2')
            e(f's_cbranch_scc1 {sk}')
        for nt in range(2):
            p = PK + nt * 4 + (i & 1) * 8
            vre, vim = VA + (0 * 2 + nt) * 4, VA + (1 * 2 + nt) * 4
            e(f'v_cvt_pk_bf16_f32 v{p+0}, v{vre+0}, v{vre+1}')
            e(f'v_cvt_pk_bf16_f32 v{p+1}, v{vre+2}, v{vre+3}')
            e(f'v_cvt_pk_bf16_f32 v{p+2}, v{vim+0}, v{vim+1}')
            e(f'v_cvt_pk_bf16_f32 v{p+3}, v{vim+2}, v{vim+3}')
            e.ds(f'ds_write_b128 v12, {vr(p,4)} offset:{(4*i*2+nt)*1024}')
        if i == 3: e.label(sk)
        wload(OPT['st1'])
    e.wait_ds_all()
    stamp(e, 'C.st1')
    if OPT['p2mode'] == 1: signal(e, 4)
    else: e.barrier()
    VB = 16
    order = [(kb, nt) for kb in range(14) for nt in range(2)]
    tok = {}
    nread = [0]
    def issue():
        kb, nt = order[nread[0]]
        tok[nread[0]] = e.ds(f'ds_read_b128 {vr(VB+(nread[0]%8)*4,4)}, v11 offset:{(kb*2+nt)*1024}')
        nread[0] += 1
    for _ in range(7): issue()
    for idx_, (kb, nt) in enumerate(order):
        e.wait_ds(tok[idx_])
        par = 0 if kb < 7 else 1
        d = PA + (par * 2 + nt) * 4
        first = kb in (0, 7)
        e(f'v_mfma_f32_16x16x32_bf16 {vr(d,4)}, {vr(TC+kb*4,4)}, {vr(VB+(idx_%8)*4,4)}, {"0" if first else vr(d,4)}')
        if nread[0] < len(order): issue()
        if OPT['st2'] and idx_ % OPT['st2'] == OPT['st2'] - 1: wload(1)
    stamp(e, 'C.st2')
    e.wait_vm(mtok[1])
    H, HP, CP, SQ = 104, 120, 128, 92
    e('s_mov_b32 s52, 0xffff0000')
    for nt in range(2):
        pe, po = PA + nt * 4, PA + 8 + nt * 4
        for pm in range(2):
            xr = XR + (nt * 2 + pm) * 2
            for r in range(4):
                hv = H + (nt * 2 + pm) * 4 + r
                e(f'{"v_add_f32" if pm == 0 else "v_sub_f32"} v{hv}, v{pe+r}, v{po+r}')
                xv = 96 + r
                if r & 1: e(f'v_and_b32 v{xv}, s52, v{xr+(r>>1)}')
                else: e(f'v_lshlrev_b32 v{xv}, 16, v{xr+(r>>1)}')
            for r in range(4):
                hv = H + (nt * 2 + pm) * 4 + r
                e(f'v_add_f32 v{hv}, v{hv}, v{96+r}')
            for i in range(2):
                hv = H + (nt * 2 + pm) * 4 + 2 * i
                e(f'v_cvt_pk_bf16_f32 v{HP+nt*4+pm*2+i}, v{hv}, v{hv+1}')
        e(f'v_mov_b32 v{SQ+nt}, 0')
        for q in range(4):
            hp = HP + nt * 4 + q
            e(f'v_lshlrev_b32 v100, 16, v{hp}')
            e(f'v_and_b32 v101, s52, v{hp}')
            e(f'v_sub_f32 v100, v100, v{MEAN+nt}')
            e(f'v_sub_f32 v101, v101, v{MEAN+nt}')
            e(f'v_fma_f32 v{SQ+nt}, v100, v100, v{SQ+nt}')
            e(f'v_fma_f32 v{SQ+nt}, v101, v101, v{SQ+nt}')
            e(f'v_cvt_pk_bf16_f32 v{CP+nt*4+q}, v100, v101')
            wload(OPT['epi'])
    e('v_lshrrev_b32 v4, 1, v3')
    e('v_lshlrev_b32 v4, 10, v4')
    e('v_and_b32 v5, 1, v3')
    e('v_lshlrev_b32 v5, 9, v5')
    e('v_add_u32 v4, v4, v5')
    e('v_lshlrev_b32 v5, 4, v2')
    e('v_add_u32 v4, v4, v5')
    e(f's_mul_i32 s52, s{sB}, 28')
    e('s_lshl_b32 s53, s57, 1')
    e('s_add_u32 s52, s52, s53')
    e('s_lshl_b32 s52, s52, 10')
    ns, st = L('cnostore'), L('cstat')
    e('s_cmp_ge_u32 s56, 14')
    e(f's_cbranch_scc1 {ns}')
    e(f's_add_u32 s53, s52, 0x{HC_OFF:x}')
    e(f's_add_u32 s54, s52, 0x{HR_OFF:x}')
    for nt in range(2):
        e(f'buffer_store_dwordx4 {vr(CP+nt*4,4)}, v4, {SWS}, s53 offen offset:{256*nt} sc1')
        e(f'buffer_store_dwordx4 {vr(HP+nt*4,4)}, v4, {SWS}, s54 offen offset:{256*nt} sc1')
    e.label(ns)
    for nt in range(2): xsum_groups(e, SQ + nt, 102)
    e('s_cmp_lt_u32 s56, 14')
    e(f's_cbranch_scc1 {st}')
    e(f'v_mov_b32 v{SQ}, 0')
    e(f'v_mov_b32 v{SQ+1}, 0')
    e.label(st)
    e('v_cmp_le_u32 vcc, 16, v1')
    e(f'v_cndmask_b32 v{SQ}, v{SQ}, v{SQ+1}, vcc')
    e('v_lshlrev_b32 v5, 2, v1')
    e(f's_lshl_b32 s52, s{sB}, 11')
    e('s_lshl_b32 s53, s56, 7')
    e('s_add_u32 s52, s52, s53')
    e(f's_add_u32 s52, s52, 0x{ST2_OFF:x}')
    e('s_mov_b64 exec, 0xffffffff')
    last = e.vm(f'buffer_store_dword v{SQ}, v5, {SWS}, s52 offen sc1')
    e('s_mov_b64 exec, -1')
    stamp(e, 'C.stored')
    wload(OPT['post'])
    e.wait_vm(last)
    stamp(e, 'C.drained')
    signal(e, 2)
    global W13_PENDING
    W13_PENDING = (WG, wgi)

NV, NE = 27, 35
def w2reg(mi, s_):
    o = 2 * s_ + mi
    if o < NV: return vr(144 + 4 * o, 4), None
    if o < NE: return ar(224 + 4 * (o - NV), 4), None
    oo = o - NE
    return ar(((oo & 1) * 28 + (oo >> 1)) * 4, 4), (oo & 1, oo >> 1)

def hm_fill(e):
    skf = L('fill')
    e(f's_cmp_eq_u32 s{sW}, 0')
    e(f's_cbranch_scc1 {skf}')
    e(f's_cmp_ge_u32 s{sC}, 14')
    e(f's_cbranch_scc1 {skf}')
    for r in range(4): e(f'v_mov_b32 v{136+r}, -1')
    e('v_lshlrev_b32 v140, 4, v1')
    e(f's_lshl_b32 s52, s{sR}, 2')
    e('s_add_u32 s52, s52, 2')
    e('s_mul_i32 s52, s52, 112')
    e(f's_lshl_b32 s53, s{sC}, 3')
    e('s_add_u32 s52, s52, s53')
    for m in range(6):
        e(f's_add_u32 s53, s{sW}, {3*m - 1}')
        if m == 5:
            e('s_cmp_ge_u32 s53, 16')
            e(f's_cbranch_scc1 {skf}')
        e('s_lshr_b32 s54, s53, 3')
        e('s_mul_i32 s54, s54, 112')
        e('s_and_b32 s53, s53, 7')
        e('s_add_u32 s53, s53, s54')
        e('s_add_u32 s53, s53, s52')
        e('s_lshl_b32 s53, s53, 10')
        e(f's_add_u32 s53, s53, 0x{HM_OFF:x}')
        e(f'buffer_store_dwordx4 v[136:139], v140, {SWS}, s53 offen sc1')
    e.label(skf)

def phase_g(e):
    e.c('======== window 3 + G1')
    WG, wgi = W13_PENDING
    if OPT['sent'] and OPT['fillpos'] == 0: hm_fill(e)
    wtok = {}
    for _ in range(min(OPT['w3'], len(WG) - wgi[0])):
        wtok[wgi[0]] = emit_groups(e, [WG[wgi[0]]]); wgi[0] += 1
    e('v_lshlrev_b32 v4, 4, v1')
    e(f's_lshl_b32 s56, s{sC}, 3')
    e(f's_lshl_b32 s52, s{sW}, 1')
    e('s_add_u32 s56, s56, s52')
    e(f's_lshl_b32 s57, s{sR}, 2')
    e('s_and_b32 s58, s2, 7')
    e('s_lshr_b32 s59, s2, 3')
    e('s_mul_i32 s52, s59, 37')
    e('s_lshr_b32 s52, s52, 8')
    e('s_mul_i32 s53, s52, 7')
    e('s_sub_u32 s59, s59, s53')
    e('s_lshl_b32 s52, s52, 3')
    e('s_add_u32 s58, s58, s52')
    e(f's_mul_i32 s52, s{sW}, 28')
    e(f's_and_b32 s54, s{sW}, 1')
    for mi in range(2):
        e(f's_xor_b32 s53, s54, {mi}')
        e('s_lshl_b32 s55, s59, 1')
        e('s_add_u32 s53, s53, s55')
        e('s_mul_i32 s53, s53, 112')
        e('s_add_u32 s53, s53, s52')
        e('s_lshl_b32 s53, s53, 10')
        e(f's_add_u32 s{60+mi}, s53, 0x{W2_OFF:x}')
    e(f's_lshr_b32 s53, s{sW}, 1')
    e('s_lshl_b32 s53, s53, 4')
    e('v_xor_b32 v10, s53, v1')
    e('v_lshlrev_b32 v10, 4, v10')
    e('v_min_u32 v8, 13, v1')
    if OPT['map8']:
        e('v_lshlrev_b32 v8, 4, v8')
        e('s_lshr_b32 s53, s58, 1')
        e('v_add_u32 v8, s53, v8')
        e('v_mul_u32_u24 v9, 2341, v8')
        e('v_lshrrev_b32 v9, 16, v9')
        e('v_mul_u32_u24 v7, 28, v9')
        e('v_sub_u32 v8, v8, v7')
        e('v_lshlrev_b32 v8, 3, v8')
        e('v_add_u32 v8, v8, v9')
    else:
        e('v_lshrrev_b32 v9, 1, v8')
        e('v_and_b32 v8, 1, v8')
        e('v_lshlrev_b32 v8, 7, v8')
        e('v_add_u32 v8, v8, v9')
        e('s_lshr_b32 s53, s58, 1')
        e('s_lshl_b32 s53, s53, 3')
        e('v_add_u32 v8, s53, v8')
    e('v_lshlrev_b32 v8, 6, v8')
    def grp_off(dst, g):
        if not OPT['g2rot']: return [f's_mov_b32 s{dst}, {g*4096}']
        return [f's_add_u32 s{dst}, s59, {g}', f's_cmp_ge_u32 s{dst}, 7', f's_cselect_b32 s55, 7, 0',
                f's_sub_u32 s{dst}, s{dst}, s55', f's_lshl_b32 s{dst}, s{dst}, 12']
    def w2load(o):
        s_, mi = o >> 1, o & 1
        reg, dep = w2reg(mi, s_)
        pre = []
        if s_ % 4 == 0 and mi == 0:
            pre = grp_off(62, s_ // 4) + ['s_add_u32 s63, s61, s62', 's_add_u32 s62, s60, s62']
        return pre + [('vm', f'buffer_load_dwordx4 {reg}, v10, {SWS}, s{62+mi} offen offset:{(s_%4)*1024} sc1')]
    def idx0(e): idx(e, True)
    def idx(e, skipw=False):
        e('v_lshrrev_b32 v5, 2, v1')
        e('v_add_u32 v5, s57, v5')
        e('v_and_b32 v6, 7, v5')
        e('v_lshrrev_b32 v5, 3, v5')
        e('v_lshlrev_b32 v5, 5, v5')
        e('v_add_u32 v5, v5, v6')
        e('v_and_b32 v6, 3, v1')
        e('v_lshlrev_b32 v6, 3, v6')
        e('v_add_u32 v5, v5, v6')
        e('v_lshlrev_b32 v5, 6, v5')
        if not skipw: idxw(e, 16)
    def idxw(e, first):
        e(f'v_add_u32 v6, {208 if first == 16 else 224}, v1')
        e('v_lshlrev_b32 v6, 6, v6')
        if not OPT['p2park']: e(f'v_add_u32 v6, {2*0x40000}, v6')
        if first:
            e(f'v_cmp_le_u32 vcc, {first}, v1')
            e('v_cndmask_b32 v5, v5, v6, vcc')
        else:
            e('v_mov_b32 v5, v6')
    if OPT['t0split']:
        for i in range(7):
            e(f's_add_u32 s52, s{sW}, {4*i}')
            e('s_mul_i32 s53, s52, 37')
            e('s_lshr_b32 s53, s53, 8')
            e('s_mul_i32 s54, s53, 7')
            e('s_sub_u32 s54, s52, s54')
            e(f's_add_u32 s53, s53, s{sR}')
            e('s_and_b32 s53, s53, 3')
            e('s_mul_i32 s53, s53, 7')
            e('s_add_u32 s53, s53, s54')
            e('s_mul_i32 s54, s57, 28')
            e('s_add_u32 s53, s53, s54')
            e('s_lshl_b32 s53, s53, 10')
            e(f's_add_u32 s{64+i}, s53, 0x{HC_OFF:x}')
        e(f's_lshl_b32 s71, s{sW}, 10')
    e(f's_cmp_ge_u32 s{sC}, 14')
    e('s_cbranch_scc1 L_g2only')
    if OPT['p2mode'] == 1:
        poll(e, 4, 256, lambda e_: e_('v_lshlrev_b32 v5, 6, v1'), preg=232, bar=False)
        poll(e, 2, 16, idx0)
    elif OPT['p2park']:
        poll(e, 2, 16, idx0)
    else:
        poll(e, 2, 44, idx)
    stamp(e, 'G1.go')
    ACC, BR, RRG, T = 64, 16, 48, 128
    ST = 208
    dtok = {}
    e(f's_mul_i32 s96, s{sW}, 7168')
    e(f's_add_u32 s98, s{sR}, s{sW}')
    e('s_and_b32 s98, s98, 3')
    e('s_mul_i32 s98, s98, 7168')
    def hc_groups(nt):
        gs = []
        for i in range(7):
            g = []
            if i == 0:
                g += [f's_add_u32 s97, s57, {nt}', 's_mul_i32 s97, s97, 28672', 's_add_u32 s97, s97, s98', f's_add_u32 s97, s97, 0x{HC_OFF:x}']
            if i == 4: g += ['s_add_u32 s97, s97, 4096']
            if i in (0, 4): g += [f's_add_u32 m0, s96, {nt*28672 + (4096 if i == 4 else 0)}']
            g.append(('vm', f'buffer_load_dwordx4 v4, {SWS}, s97 offen offset:{(i%4)*1024} sc1 lds', ('hc', nt)))
            gs.append(g)
        return gs
    STK = []; STORES = []
    def emit_op(op):
        if isinstance(op, tuple) and op[0] == 'ds':
            STK.append(e.ds(op[1])); return None
        if isinstance(op, tuple) and op[0] == 'dswait':
            e.wait_ds(STK[op[1] * 8 + 7]); return None
        if isinstance(op, tuple):
            t = e.vm(op[1])
            if len(op) > 2:
                if op[2][0] == 'store': STORES.append(t)
                if op[2][0] == 'hc': dtok[op[2][1]] = t
                if op[2][0] == 'st': dtok['st'] = t
            return t
        e(op); return None
    if OPT['t0reg']:
        e('s_mul_i32 s97, s57, 28672')
        e('s_add_u32 s97, s97, s98')
        e(f's_add_u32 s97, s97, 0x{HC_OFF:x}')
        t0tok = []
        for i in range(7):
            if i == 4: e('s_add_u32 s97, s97, 4096')
            t0tok.append(e.vm(f'buffer_load_dwordx4 {vr(64+4*i,4)}, v4, {SWS}, s97 offen offset:{(i%4)*1024} sc1'))
    elif OPT['t0split']:
        t0d = []
        for i in range(7):
            e(f's_add_u32 m0, s71, {4096*i}')
            t0d.append(e.vm(f'buffer_load_dwordx4 v4, {SWS}, s{64+i} offen sc1 lds'))
    else:
        for g in hc_groups(0):
            for op in g: emit_op(op)
    e(f's_add_u32 s54, s57, s{sW}')
    e('s_lshl_b32 s54, s54, 11')
    e(f's_add_u32 s54, s54, 0x{ST2_OFF:x}')
    e(f's_lshl_b32 s55, s{sW}, 11')
    if OPT['t0reg']:
        e(f's_add_u32 s55, s55, {LDS_STATS}')
        e('v_add_u32 v12, s55, v4')
        t0tok.append(e.vm(f'buffer_load_dwordx4 v[92:95], v4, {SWS}, s54 offen sc1'))
        t0tok.append(e.vm(f'buffer_load_dwordx4 v[96:99], v4, {SWS}, s54 offen offset:1024 sc1'))
        dtok[0] = t0tok[-1]
    else:
        e(f's_add_u32 m0, s55, {LDS_STATS}')
        e.vm(f'buffer_load_dwordx4 v4, {SWS}, s54 offen sc1 lds')
        dtok[0] = e.vm(f'buffer_load_dwordx4 v4, {SWS}, s54 offen offset:1024 sc1 lds')
    while wgi[0] < len(WG):
        wtok[wgi[0]] = emit_groups(e, [WG[wgi[0]]]); wgi[0] += 1
    e('v_add_u32 v6, 57344, v4')
    e('v_and_b32 v5, 31, v1')
    e('v_lshlrev_b32 v5, 2, v5')
    e('v_lshrrev_b32 v7, 5, v1')
    e('v_lshlrev_b32 v7, 10, v7')
    e('v_add_u32 v5, v5, v7')
    e(f'v_add_u32 v5, {LDS_STATS}, v5')
    def stat_ops():
        ops = []
        for nt in range(4):
            b0 = ST + nt * 8
            for i in range(8): ops.append(('ds', f'ds_read_b32 v{b0+i}, v5 offset:{nt*2048 + i*128}'))
        for nt in range(4):
            b0 = ST + nt * 8
            ops.append(('dswait', nt))
            ops += [f'v_add_f32 v{b0}, v{b0}, v{b0+1}', f'v_add_f32 v{b0+2}, v{b0+2}, v{b0+3}', f'v_add_f32 v{b0+4}, v{b0+4}, v{b0+5}',
                    f'v_add_f32 v{b0+6}, v{b0+6}, v{b0+7}', f'v_add_f32 v{b0}, v{b0}, v{b0+2}', f'v_add_f32 v{b0+4}, v{b0+4}, v{b0+6}',
                    f'v_add_f32 v{b0}, v{b0}, v{b0+4}', f'v_mov_b32 v{b0+1}, v{b0}', f'v_mov_b32 v7, {lit(1e-5)}',
                    f'v_permlane32_swap_b32 v{b0+1}, v{b0}', f'v_add_f32 v{b0}, v{b0}, v{b0+1}',
                    f'v_fmamk_f32 v{RRG+4+nt}, v{b0}, {lit(1.0/448)}, v7', f'v_rsq_f32 v{b0}, v{RRG+4+nt}', 's_nop 0',
                    f'v_mul_f32 v{RRG+nt}, {lit(-1.4426950408889634)}, v{b0}']
        return ops
    def epi_half(nt, mi):
        ops = []
        a = ACC + ((nt & 1) * 2 + mi) * 16
        T0 = T
        for r in range(8): ops.append(f'v_mul_f32 v{T0+r}, v{a+r}, v{RRG+nt}')
        for r in range(8):
            ops.append(f'v_exp_f32 v{T0+r}, v{T0+r}')
            ops.append(f'v_mul_f32 v{T0+8+r}, v{a+r}, v{a+8+r}')
        for r in range(8): ops.append(f'v_fma_f32 v{T0+r}, v{T0+r}, v{RRG+4+nt}, v{RRG+4+nt}')
        for r in range(8): ops.append(f'v_rcp_f32 v{T0+r}, v{T0+r}')
        for r in range(8): ops.append(f'v_mul_f32 v{T0+8+r}, v{T0+8+r}, v{T0+r}')
        P = 56 + mi * 4
        for i in range(4): ops.append(f'v_cvt_pk_bf16_f32 v{P+i}, v{T0+8+2*i}, v{T0+8+2*i+1}')
        ops.append(f's_add_u32 s53, s99, {nt*112*1024 + mi*1024}')
        ops.append(('vm', f'buffer_store_dwordx4 {vr(P,4)}, v4, {SWS}, s53 offen sc1', ('store',)))
        return ops
    def epi_ops(nt): return epi_half(nt, 0) + epi_half(nt, 1)
    e('s_mul_i32 s99, s57, 112')
    e('s_add_u32 s99, s99, s56')
    e('s_lshl_b32 s99, s99, 10')
    e(f's_add_u32 s99, s99, 0x{HM_OFF:x}')
    n1 = OPT['w2t1']
    bg = {0: hc_groups(1) + hc_groups(2), 1: hc_groups(3) + [w2load(o) for o in range(0, n1)],
          2: [w2load(o) for o in range(n1, NE)], 3: []}
    if OPT['sent'] and OPT['fillpos'] in (1, 2):
        for r in range(4): e(f'v_mov_b32 v{12+r}, -1')
        fills = [[f's_add_u32 s53, s99, {nt*112*1024 + mi*1024}', ('vm', f'buffer_store_dwordx4 v[12:15], v4, {SWS}, s53 offen sc1')]
                 for nt in (2, 3) for mi in range(2)]
        if OPT['fillpos'] == 1: bg[0] = bg[0] + fills
        elif OPT['fillpos'] == 2: bg[1] = bg[1][:7] + fills + bg[1][7:]
    last_store = None
    next_late = NE
    def g2_bases(em):
        em('s_lshr_b32 s52, s58, 1')
        em('s_lshl_b32 s52, s52, 2')
        em('s_and_b32 s53, s58, 1')
        em('s_add_u32 s100, s52, s53')
        em('s_sub_u32 s101, s52, s53')
        em('s_add_u32 s101, s101, 3')
        em(f's_mul_i32 s52, s{sW}, 28')
        for k in range(2):
            em(f's_mul_i32 s53, s{100+k}, 112')
            em('s_add_u32 s53, s53, s52')
            em('s_lshl_b32 s53, s53, 10')
            em(f's_add_u32 s{88+k}, s53, 0x{HM_OFF:x}')
    g2_bases(e)
    RING = 64
    rtok = {}
    def ring_load(ph, i):
        if i % 4 == 0: e(f's_add_u32 s90, s{88+ph}, {i*1024}')
        rtok[(ph, i)] = e.vm(f'buffer_load_dwordx4 {vr(RING+(i%8)*4,4)}, v4, {SWS}, s90 offen offset:{(i%4)*1024} sc1')
    def early_check(tok_, addr=8):
        dn, lp = L('ec'), L('ec')
        e(f's_mov_b32 s{sSPIN}, 0')
        e.label(lp)
        if tok_ is None:
            e(f'buffer_load_dword v9, v{addr}, {SWS}, s91 offen sc1')
            e('s_waitcnt vmcnt(0)')
        e(f'v_cmp_ne_u32 vcc, s{sNONCE}, v9')
        e('s_nop 4')
        e(f's_cbranch_vccz {dn}')
        if tok_ is not None:
            e(f'buffer_load_dword v9, v{addr}, {SWS}, s91 offen sc1')
            e('s_waitcnt vmcnt(0)')
        e(f's_add_u32 s{sSPIN}, s{sSPIN}, 1')
        e(f's_cmp_lt_u32 s{sSPIN}, {MAXSPIN}')
        e(f's_cbranch_scc1 {lp}')
        e.label(dn)
    etok = None
    STREAM = OPT['stream']
    btok = {}
    nrd = [0]
    def issue_b():
        g = nrd[0]
        nt_, kap_ = divmod(g, 28)
        base = 'v4' if nt_ < 2 else 'v6'
        off = ((nt_ & 1) * 28 + kap_) * 1024
        btok[g] = e.ds(f'ds_read_b128 {vr(BR+(g%8)*4,4)}, {base} offset:{off}')
        nrd[0] += 1
    for nt in range(4):
        if nt == 0 or not STREAM:
            if nt == 0 and OPT['t0reg']:
                e('v_add_u32 v13, s96, v4')
                for i in range(7):
                    e.wait_vm(t0tok[i])
                    e.ds(f'ds_write_b128 v13, {vr(64+4*i,4)} offset:{i*1024}')
                e.wait_vm(t0tok[8])
                e.ds('ds_write_b128 v12, v[92:95]')
                e.ds('ds_write_b128 v12, v[96:99] offset:1024')
                e.wait_ds_all()
            if nt == 0 and OPT['t0split']: e.wait_vm(t0d[1])
            else: e.wait_vm(dtok[nt])
            if nt == 1 and OPT['p2park']:
                e.wait_vm(wtk)
                early_check(wtk, addr=11)
            e.barrier()
            if nt == 0:
                stamp(e, 'G1.t0'); rstamp(e, 'rt_g1a')
            for _ in range(5): issue_b()
        fill = epi_ops(nt - 1) if nt > 0 else stat_ops()
        fi = 0; gi = 0
        nm = 0
        G_ = bg[nt]
        for kap in range(28):
            g = nt * 28 + kap
            if nt == 0 and OPT['t0split'] and kap in (3, 11):
                e.wait_vm(t0d[3] if kap == 3 else dtok[0])
                e.barrier()
            if STREAM and kap == 23 and nt < 3:
                e.wait_vm(dtok[nt + 1])
                e.barrier()
            e.wait_ds(btok[g])
            for mi in range(2):
                a = ACC + ((nt & 1) * 2 + mi) * 16
                if nt == 0 and (kap * 2 + mi) in wtok: e.wait_vm(wtok[kap * 2 + mi])
                e(f'v_mfma_f32_32x32x16_bf16 {vr(a,16)}, {ar((mi*28+kap)*4,4)}, {vr(BR+(g%8)*4,4)}, {"0" if kap == 0 else vr(a,16)}')
                nm += 1
                if mi == 0 and nrd[0] < ((nt + 1) * 28 if not STREAM else 112): issue_b()
                span = 24 if nt == 3 else ((OPT['span0'] if nt == 0 else 48) if STREAM else 56)
                want = (len(G_) * nm + span - 1) // span
                while gi < min(want, len(G_)):
                    for op in G_[gi]: emit_op(op)
                    gi += 1
                if nt == 3 and gi >= len(G_) and nm * 21 >= (next_late - NE + 1) * OPT['latesp'] and next_late < 56:
                    dep = w2reg(next_late & 1, next_late >> 1)[1]
                    if dep[1] * 2 + dep[0] < nm:
                        for op in w2load(next_late): emit_op(op)
                        next_late += 1
                if nt == 0 and nm == (28 if not STREAM else 40) and OPT['p2park']:
                    e('v_min_u32 v9, 27, v1')
                    e('v_add_u32 v9, 224, v9')
                    e('v_lshlrev_b32 v11, 6, v9')
                    e(f's_add_u32 s91, s{sREP}, 0x{FL_OFF + 2*0x40000:x}')
                    wtk = e.vm(f'buffer_load_dword v9, v11, {SWS}, s91 offen sc1')
                if STREAM and nt == 1 and nm == 12 and OPT['p2park']:
                    e.wait_vm(wtk)
                    early_check(wtk, addr=11)
                if nt == 3 and nm == OPT['eflag']:
                    e.wait_vm(STORES[3])
                    e.barrier()
                    flag_store(e, 5)
                if nt == 3 and nm == OPT['epoll'] and (OPT['sent'] or OPT['g2mode'] == 2):
                    e(f's_add_u32 s91, s{sREP}, 0x{FL_OFF + 5*0x40000:x}')
                    etok = e.vm(f'buffer_load_dword v9, v8, {SWS}, s91 offen sc1')
                f0 = 24 if (nt == 0 and OPT['t0split']) else 3
                if nm > f0:
                    fs = OPT['fspan'] if nt == 2 else (53 - f0)
                    want = (len(fill) * (nm - f0) + fs - 1) // fs
                    while fi < min(want, len(fill)):
                        t = emit_op(fill[fi]); fi += 1
        while fi < len(fill):
            emit_op(fill[fi]); fi += 1
        stamp(e, f'G1.tile{nt}')
    for op in epi_ops(3):
        t = emit_op(op)
        if isinstance(op, tuple): last_store = t
    stamp(e, 'G1.stored'); rstamp(e, 'rt_g1b')
    assert next_late == 56
    def ring_raw():
        for i in range(8):
            if i % 4 == 0: e(f's_add_u32 s90, s88, {i*1024}')
            e(f'buffer_load_dwordx4 {vr(RING+i*4,4)}, v4, {SWS}, s90 offen offset:{(i%4)*1024} sc1')
    if OPT['sent']:
        e('s_cmp_ge_u32 s2, 224')
        e('s_cbranch_scc1 L_fin')
        e.wait_vm(etok)
        early_check(etok)
        e('s_branch L_g2')
    elif OPT['g2mode'] == 2:
        slow = L('g2slow')
        e('s_cmp_ge_u32 s2, 224')
        e(f's_cbranch_scc1 {slow}')
        e.wait_vm(etok)
        e(f'v_cmp_ne_u32 vcc, s{sNONCE}, v9')
        e('s_nop 4')
        e(f's_cbranch_vccnz {slow}')
        ring_raw()
        e('s_waitcnt vmcnt(8)')
        signal(e, 3)
        e('s_branch L_g2')
        e.label(slow)
        e('s_waitcnt vmcnt(0)')
        signal(e, 3)
        e('s_cmp_ge_u32 s2, 224')
        e('s_cbranch_scc1 L_fin')
        e('s_branch L_g2late')
    else:
        skr, skr2 = L('nog2'), L('nog2')
        e('s_cmp_ge_u32 s2, 224')
        e(f's_cbranch_scc1 {skr}')
        e(f's_add_u32 s91, s{sREP}, 0x{FL_OFF + 5*0x40000:x}')
        e(f'buffer_load_dword v9, v8, {SWS}, s91 offen sc1')
        e.label(skr)
        e('s_waitcnt vmcnt(0)')
        e.vm_done = e.vm_issued
        stamp(e, 'G1.drained')
        signal(e, 3)
        e('s_cmp_ge_u32 s2, 224')
        e('s_cbranch_scc1 L_fin')
        early_check(0)
        e('s_branch L_g2')
    e.label('L_g2only')
    e('s_cmp_ge_u32 s2, 224')
    e('s_cbranch_scc1 L_fin')
    if OPT['p2mode'] == 1: poll(e, 4, 256, lambda e_: e_('v_lshlrev_b32 v5, 6, v1'), preg=232)
    else: poll(e, 2, 28, lambda e_: idxw(e_, 0))
    for o in range(56):
        for op in w2load(o): e(op[1] if isinstance(op, tuple) else op)
    g2_bases(e)
    e.label('L_g2late')
    e(f's_add_u32 s91, s{sREP}, 0x{FL_OFF + 5*0x40000:x}')
    early_check(None)
    if OPT['g2mode'] == 2 and not OPT['sent']: ring_raw()
    e.label('L_g2')
    if OPT['g2mode'] == 2 and not OPT['sent']:
        e.vm_done = e.vm_issued
        for i in range(8):
            e.vm_issued += 1; rtok[(0, i)] = e.vm_issued
    elif not OPT['sent']:
        for i in range(8): ring_load(0, i)
    e.c('======== G2')
    ACC2, R0, HRR = 16, 96, 140
    e(f's_and_b32 s60, s{sW}, 1')
    e('s_lshl_b32 s53, s59, 1')
    e('s_add_u32 s60, s60, s53')
    e(f's_lshr_b32 s61, s{sW}, 1')
    for k in range(3):
        e(f's_xor_b32 s52, s{sW}, {k+1}')
        e('s_mul_i32 s52, s52, 6144')
        e(f'v_add_u32 v{11+k}, s52, v4')
    e(f's_mul_i32 s52, s{sW}, 6144')
    e('v_add_u32 v133, s52, v4')
    e('v_and_b32 v5, 31, v1')
    e('v_mul_u32_u24 v5, %d, v5' % (64 * 896))
    e('v_lshrrev_b32 v6, 5, v1')
    e('v_mul_u32_u24 v6, 448, v6')
    e('v_add_u32 v132, v5, v6')
    HR_ = {0: 140, 1: 136}
    def accreg(ph, mi, off=0, n=16):
        return vr(ACC2 + mi * 16 + off, n) if ph == 0 else ar(80 + mi * 16 + off, n)
    def hr_load(ph):
        e(f's_mul_i32 s52, s{100+ph}, 28')
        e('s_lshl_b32 s53, s60, 1')
        e('s_add_u32 s52, s52, s53')
        e('s_add_u32 s52, s52, s61')
        e('s_lshl_b32 s52, s52, 10')
        e(f's_add_u32 s52, s52, 0x{HR_OFF:x}')
        return e.vm(f'buffer_load_dwordx4 {vr(HR_[ph],4)}, v4, {SWS}, s52 offen sc1')
    def tail_ops(ph, htok):
        ops = []
        for k, (mi, rh) in enumerate(((1, 0), (0, 1), (1, 1))):
            for qd in range(2):
                ops.append(('ds', f'ds_write_b128 v{11+k}, {accreg(ph, mi, rh*8 + qd*4, 4)} offset:{ph*24576 + k*2048 + qd*1024}'))
        ops.append(('dswaitall',))
        ops.append('s_barrier')
        for k in range(3):
            for qd in range(2):
                ops.append(('ds', f'ds_read_b128 {vr(R0+k*8+qd*4,4)}, v133 offset:{ph*24576 + k*2048 + qd*1024}'))
        if ph == 1:
            for r in range(8): ops.append(f'v_accvgpr_read_b32 v{ACC2+r}, a{80+r}')
        ops.append(('dswaitall',))
        for r in range(8):
            ops.append(f'v_add_f32 v{R0+r}, v{R0+r}, v{R0+8+r}')
            ops.append(f'v_add_f32 v{R0+16+r}, v{R0+16+r}, v{ACC2+r}')
        for r in range(8): ops.append(f'v_add_f32 v{R0+r}, v{R0+r}, v{R0+16+r}')
        ops.append(('vmwait', htok))
        PK, O = 120, 124
        for i in range(4): ops.append(f'v_cvt_pk_bf16_f32 v{PK+i}, v{R0+2*i}, v{R0+2*i+1}')
        for i in range(4):
            ops += [f'v_lshlrev_b32 v128, 16, v{PK+i}', f'v_and_b32 v129, s87, v{PK+i}', f'v_lshlrev_b32 v130, 16, v{HR_[ph]+i}',
                    f'v_and_b32 v131, s87, v{HR_[ph]+i}', 'v_add_f32 v128, v128, v130', 'v_add_f32 v129, v129, v131',
                    f'v_cvt_pk_bf16_f32 v{O+i}, v128, v129']
        ops += [f'v_permlane32_swap_b32 v{O}, v{O+2}', f'v_permlane32_swap_b32 v{O+1}, v{O+3}']
        ops += ['s_lshl_b32 s52, s60, 5', 's_lshl_b32 s53, s61, 4', 's_add_u32 s52, s52, s53', f's_mul_i32 s53, s{100+ph}, 896', 's_add_u32 s52, s52, s53']
        om = ['', ' sc1', ' nt', ' sc0 sc1'][OPT['outmod']]
        ops.append(('vm', f'buffer_store_dwordx4 {vr(O,4)}, v132, {SOUT}, s52 offen{om}'))
        return ops
    def run_op(op):
        if isinstance(op, tuple):
            if op[0] == 'ds': e.ds(op[1])
            elif op[0] == 'dswaitall': e.wait_ds_all()
            elif op[0] == 'vmwait': e.wait_vm(op[1])
            elif op[0] == 'vm': e.vm(op[1])
        else: e(op)
    e('s_mov_b32 s87, 0xffff0000')
    fill = []; fi = 0
    SENT = OPT['sent']
    NS = 12 if SENT else 8
    RB = 48 if SENT else RING
    def rreg(tau): return RB + (tau % NS) * 4
    def rl(tau):
        ph_, i_ = divmod(tau, 28)
        if i_ % 4 == 0: e(f's_add_u32 s90, s{88+ph_}, {i_*1024}')
        rtok[tau] = e.vm(f'buffer_load_dwordx4 {vr(rreg(tau),4)}, v4, {SWS}, s90 offen offset:{(i_%4)*1024} sc1')
    def check_group(t0):
        e.wait_vm(rtok[t0 + 3])
        lp, ok = L('sg'), L('sg')
        e(f's_mov_b32 s{sSPIN}, 0')
        e.label(lp)
        r0 = rreg(t0)
        e(f'v_max3_u32 v9, v{r0}, v{r0+1}, v{r0+2}')
        regs = [r0 + 3] + [rreg(t0 + k) + d for k in range(1, 4) for d in range(4)]
        for k in range(0, 12, 2): e(f'v_max3_u32 v9, v9, v{regs[k]}, v{regs[k+1]}')
        e(f'v_max_u32 v9, v9, v{regs[12]}')
        e('v_cmp_eq_u32 vcc, -1, v9')
        e('s_nop 4')
        e(f's_cbranch_vccz {ok}')
        last = min(56, issued[0])
        for t in range(t0, last):
            i_ = t - 28
            if i_ % 4 == 0: e(f's_add_u32 s91, s89, {i_*1024}')
            e(f'buffer_load_dwordx4 {vr(rreg(t),4)}, v4, {SWS}, s91 offen offset:{(i_%4)*1024} sc1')
        e('s_waitcnt vmcnt(0)')
        e(f's_add_u32 s{sSPIN}, s{sSPIN}, 1')
        e(f's_cmp_lt_u32 s{sSPIN}, {MAXSPIN}')
        e(f's_cbranch_scc1 {lp}')
        e.label(ok)
    issued = [0]
    if SENT:
        for t in range(NS): rl(t)
        issued[0] = NS
    else:
        for i in range(8): rtok[i] = rtok[(0, i)]
    htok = {0: hr_load(0)}
    for tau in range(56):
        ph, i = divmod(tau, 28)
        e.wait_vm(rtok[tau])
        if tau == 0: stamp(e, 'G2.first')
        for mi in range(2):
            e(f'v_mfma_f32_32x32x16_bf16 {accreg(ph, mi)}, {w2reg(mi,i)[0]}, {vr(rreg(tau),4)}, {"0" if i == 0 else accreg(ph, mi)}')
        if not SENT:
            if tau == OPT['lpoll']:
                e(f's_add_u32 s91, s{sREP}, 0x{FL_OFF + 3*0x40000:x}')
                ltok = e.vm(f'buffer_load_dword v9, v8, {SWS}, s91 offen sc1')
            if tau + 8 == 28:
                e.wait_vm(ltok)
                early_check(ltok)
                stamp(e, 'G2.go')
        if tau + NS < 56:
            rl(tau + NS); issued[0] = tau + NS + 1
        if SENT and tau >= 26 and (tau + 2) % 4 == 0 and tau + 2 < 56:
            check_group(tau + 2)
            if tau == 26: stamp(e, 'G2.go')
        if tau == 28:
            htok[1] = hr_load(1)
            fill = tail_ops(0, htok[0])
        if tau == 27: stamp(e, 'G2.mfma0')
        if tau > 28:
            want = (len(fill) * (tau - 28) + 23) // 24
            while fi < min(want, len(fill)):
                run_op(fill[fi]); fi += 1
    while fi < len(fill):
        run_op(fill[fi]); fi += 1
    stamp(e, 'G2.mfma1')
    for op in tail_ops(1, htok[1]): run_op(op)
    stamp(e, 'G2.end')

DBGOUT = False
def dbg_out(e):
    sk = L('dbo')
    e('s_waitcnt vmcnt(0)')
    e('s_memrealtime s[84:85]')
    e('s_memtime s[90:91]')
    e('s_waitcnt lgkmcnt(0)')
    e(f's_cmp_lg_u32 s{sW}, 0')
    e(f's_cbranch_scc1 {sk}')
    e('s_and_b32 s52, s2, 63')
    e('s_cmp_lg_u32 s52, 0')
    e(f's_cbranch_scc1 {sk}')
    e('s_lshr_b32 s52, s2, 6')
    e('s_lshl_b32 s52, s52, 4')
    e('s_add_u32 s52, s52, 16')
    e('s_sub_u32 s53, s84, s86')
    e('s_sub_u32 s54, s90, s82')
    e('v_mov_b32 v4, s53'); e('v_mov_b32 v5, s54'); e('v_mov_b32 v6, s86'); e('v_mov_b32 v7, s84')
    e('v_mov_b32 v8, 0')
    e('s_mov_b64 exec, 1')
    e(f'buffer_store_dwordx4 v[4:7], v8, {SDBG}, s52 offen sc1')
    e('s_mov_b64 exec, -1')
    e.label(sk)

def probe(e):
    sk = L('prb'); lp = L('prl')
    e('s_cmp_lg_u32 s2, 0')
    e(f's_cbranch_scc1 {sk}')
    e('s_waitcnt vmcnt(0)')
    e('s_memrealtime s[84:85]')
    e('s_waitcnt lgkmcnt(0)')
    e('s_sub_u32 s84, s84, s86')
    e(f's_cmp_lt_u32 s84, {OPT["probe"]}')
    e(f's_cbranch_scc1 {sk}')
    e('s_mov_b32 s85, 0')
    e.label(lp)
    e('s_sleep 64')
    e('s_add_u32 s85, s85, 1')
    e('s_cmp_lt_u32 s85, 20')
    e(f's_cbranch_scc1 {lp}')
    e.label(sk)

def diag_dump(e):
    if OPT['probe']: probe(e)
    if DBGOUT: dbg_out(e)
    if not DIAG: return
    e.wait_vm_all()
    rstamp(e, 'rt_end')
    e('s_lshl_b32 s52, s2, 2')
    e(f's_add_u32 s52, s52, s{sW}')
    e('s_lshl_b32 s52, s52, 8')
    e(f's_add_u32 s52, s52, 0x{DIAG_OFF:x}')
    e('v_lshlrev_b32 v4, 2, v1')
    e(f'buffer_store_dword v255, v4, {SWS}, s52 offen')

def kernel():
    e = Emit()
    e.label(KN)
    e('s_cmp_ge_u32 s2, 256')
    e('s_cbranch_scc1 L_end')
    e('s_load_dwordx16 s[64:79], s[0:1], 0')
    e('s_load_dwordx4 s[80:83], s[0:1], 64')
    e('s_memrealtime s[86:87]')
    if OPT['cpf'] == 5: code_prefetch_entry(e)
    if DBGOUT: e('s_memtime s[82:83]')
    if DIAG: e('v_mov_b32 v255, 0')
    e('v_lshrrev_b32 v4, 6, v0')
    e('v_and_b32 v1, 63, v0')
    e(f'v_readfirstlane_b32 s{sW}, v4')
    e('v_and_b32 v2, 15, v0')
    e('v_bfe_u32 v3, v0, 4, 2')
    e(f's_and_b32 s{sB}, s2, 7')
    e('s_lshr_b32 s52, s2, 5')
    e('s_lshl_b32 s52, s52, 3')
    e(f's_add_u32 s{sB}, s{sB}, s52')
    e(f's_lshr_b32 s{sGRP}, s2, 3')
    e(f's_and_b32 s{sGRP}, s{sGRP}, 3')
    if OPT['map8']:
        e('s_and_b32 s52, s2, 7')
        e('s_mul_i32 s52, s52, 28')
        e('s_lshr_b32 s53, s2, 3')
        e('s_add_u32 s52, s52, s53')
        e(f's_and_b32 s{sR}, s52, 15')
        e(f's_lshr_b32 s{sC}, s52, 4')
        e('s_cmp_ge_u32 s2, 224')
        e(f's_cselect_b32 s{sC}, 14, s{sC}')
    else:
        e('s_lshr_b32 s52, s2, 3')
        e(f's_and_b32 s{sR}, s52, 15')
        e('s_lshr_b32 s52, s52, 4')
        e(f's_and_b32 s{sC}, s2, 7')
        e(f's_lshl_b32 s{sC}, s{sC}, 1')
        e(f's_add_u32 s{sC}, s{sC}, s52')
    e(f's_getreg_b32 s{sREP}, hwreg(HW_REG_XCC_ID, 0, 3)')
    e(f's_lshl_b32 s{sREP}, s{sREP}, 14')
    e(f's_mov_b32 s{sNONCE}, 0')
    phase_a_pre(e)
    e('s_waitcnt lgkmcnt(0)')
    srd(e, S_X, 64, 1835008)
    phase_a_loads(e)
    if OPT['wsoff']:
        e(f's_add_u32 s82, s82, 0x{OPT["wsoff"]*0x100000:x}')
        e('s_addc_u32 s83, s83, 0')
    srd(e, S_WS, 82, WS_SIZE)
    srd(e, S_WR, 66, 2048 * 450)
    srd(e, S_WI, 68, 2048 * 450)
    srd(e, S_W1, 72, 448 * 3584)
    srd(e, S_W3, 74, 448 * 3584)
    srd(e, S_W2, 76, 1792 * 896)
    srd(e, S_OUT, 78, 1835008)
    srd(e, S_DBG, 80, 256)
    e('s_cmp_ge_u32 s2, 224')
    e(f's_cselect_b32 s{S_W1+2}, 0, s{S_W1+2}')
    e(f's_cselect_b32 s{S_W3+2}, 0, s{S_W3+2}')
    if DIAG:
        STAMPS.append('rt_start'); _stamp_n[0] += 1
        e('v_writelane_b32 v255, s86, 0')
    stamp(e, 'start')
    sk = L('nononce')
    e(f's_or_b32 s52, s2, s{sW}')
    e('s_cmp_lg_u32 s52, 0')
    e(f's_cbranch_scc1 {sk}')
    e('s_or_b32 s52, s86, 1')
    e('v_mov_b32 v4, s52')
    e('v_mov_b32 v5, 0')
    e('s_mov_b64 exec, 1')
    e(f'buffer_store_dword v4, v5, {SDBG}, 0 offen sc1')
    e('s_mov_b64 exec, -1')
    e.label(sk)
    phase_a(e)
    if OPT['sent'] and OPT['fillpos'] == 4: hm_fill(e)
    p2l, joinl, join2 = L('p2'), L('join'), L('join')
    e('s_cmp_ge_u32 s2, 224')
    e(f's_cbranch_scc1 {p2l}')
    sv_ds = (e.ds_issued, e.ds_done)
    phase_b(e)
    e(f's_branch {joinl}')
    e.label(p2l)
    signal(e, 1)
    if OPT['p2mode'] == 0:
        phase_p2(e)
        if not OPT['p2park']: signal(e, 4)
    else:
        e('s_sub_u32 s52, s2, 224')
        e('s_mul_i32 s52, s52, 50176')
        e('v_lshlrev_b32 v4, 4, v0')
        for i in range(13):
            e(f's_add_u32 s53, s52, {i*4096}')
            e(f'buffer_load_dwordx4 a[32:35], v4, {SW2}, s53 offen')
        gen_TC(e)
        gen_G(e)
    e(f's_branch {join2}')
    e.label(joinl)
    signal(e, 1)
    if OPT['p2mode'] == 1:
        e.vm_issued = e.vm_done = 0
        p2_loads(e)
        gen_TC(e)
        e.wait_vm_all()
        p2_finish(e)
        stamp(e, 'W2.pfin')
    else:
        gen_TC(e)
    if OPT['p1slot'] or not OPT['gslot']: gen_G(e)
    e.label(join2)
    if OPT['sent'] and OPT['fillpos'] == 3: hm_fill(e)
    e.vm_issued = 0; e.vm_done = 0
    phase_c(e)
    phase_g(e)
    e.label('L_fin')
    diag_dump(e)
    e.label('L_end')
    e('s_endpgm')
    return e.out

def build():
    hdr = open('cdna_kernels/' + NAME + '.s.ref').read().split('; Override launch')[0]
    body = kernel()
    body, nn = hazard_pass(body)
    print(f'; {len(body)} lines, {nn} nops inserted', file=sys.stderr)
    lines = [hdr.rstrip('\n'),
             f'; @launch grid=(256,1,1) block=(256,1,1) lds={LDS_BYTES}',
             '.amdgcn_target "amdgcn-amd-amdhsa--gfx950"', '.text', f'.globl {KN}', '.p2align 8', f'.type {KN},@function']
    for ln in body: lines.append(ln if ln.endswith(':') else '    ' + ln)
    lines += ['.section .rodata,"a"', '.p2align 6', f'.amdhsa_kernel {KN}',
              '  .amdhsa_next_free_vgpr 512', '  .amdhsa_next_free_sgpr 102', '  .amdhsa_accum_offset 256',
              '  .amdhsa_group_segment_fixed_size 0', '  .amdhsa_kernarg_size 80', '  .amdhsa_user_sgpr_count 2',
              '  .amdhsa_user_sgpr_kernarg_segment_ptr 1', '  .amdhsa_system_sgpr_workgroup_id_x 1',
              '  .amdhsa_float_denorm_mode_32 3', '.end_amdhsa_kernel']
    return '\n'.join(lines) + '\n'

if __name__ == '__main__':
    for a in list(sys.argv):
        if a.startswith('--opt='):
            for kv in a[6:].split(','):
                k, v = kv.split('='); OPT[k] = int(v)
            sys.argv.remove(a)
    if '--dbgout' in sys.argv:
        DBGOUT = True; sys.argv.remove('--dbgout')
    if '--diag' in sys.argv:
        DIAG = True; sys.argv.remove('--diag')
    out = sys.argv[1] if len(sys.argv) > 1 else 'cdna_kernels/' + NAME + '.s'
    open(out, 'w').write(build())
    if DIAG:
        import json; json.dump(STAMPS, open(out + '.stamps.json', 'w'))
    print('written', out, file=sys.stderr)
```
